```python
import torch

def _softmax(x, axis=-1):
    return torch.softmax(x, dim=axis)
def _gelu(x):
    return torch.nn.functional.gelu(x, approximate="tanh")
def _silu(x):
    return torch.nn.functional.silu(x)
def _sigmoid(x):
    return torch.sigmoid(x)
def _layernorm(x, axis=-1, eps=1e-5):
    m = x.mean(dim=axis, keepdim=True)
    v = x.var(dim=axis, keepdim=True, unbiased=False)
    return (x - m) / torch.sqrt(v + eps)
def _scatter_add(tgt, idx, src, axis=0):
    return tgt.clone().index_add_(axis, idx, src)
def _segment_sum(src, seg, n):
    out = torch.zeros((n,) + src.shape[1:], dtype=src.dtype)
    return out.index_add_(0, seg, src)
def _pad(x, pw):
    flat = tuple(v for pair in reversed(pw) for v in pair)
    return torch.nn.functional.pad(x, flat)

kernel_name = 'gated_mix__mha_block__glu_gated_geglu__prompt'

def setup_inputs():

    _w = (lambda a: (lambda t: t.to(torch.bfloat16) if t.is_floating_point() else t)(torch.as_tensor(a)))
    def _A_setup():
        B, S, D, H = 1, 2048, 448, 16
        return {
            "x": _w((lambda *s: torch.randn(*s, dtype=torch.bfloat16) * 0.05)(B, S, D)),
            "wqkv": _w((lambda *s: torch.randn(*s, dtype=torch.bfloat16) * 0.8)(D, 3 * D)),
            "wo": _w((lambda *s: torch.randn(*s, dtype=torch.bfloat16) * 0.05)(D, D)),
        }
    _A_in = _A_setup()

    def _B_setup():
        B, S, Dm, Df = 1, 2048, 448, 1792
        return {
            "x": _w((lambda *s: torch.randn(*s, dtype=torch.bfloat16) * 0.05)(B, S, Dm)),
            "w_gate": _w((lambda *s: torch.randn(*s, dtype=torch.bfloat16) * 1.6)(Dm, Df) * (Dm ** -0.5)),
            "w_up": _w((lambda *s: torch.randn(*s, dtype=torch.bfloat16) * 1.6)(Dm, Df) * (Dm ** -0.5)),
            "w_down": _w((lambda *s: torch.randn(*s, dtype=torch.bfloat16) * 1.6)(Df, Dm) * (Df ** -0.5)),
        }
    _B_in = _B_setup()

    return {
        "A_x": _A_in["x"],
        "A_wqkv": _A_in["wqkv"],
        "A_wo": _A_in["wo"],
        "B_x": _B_in["x"],
        "B_w_gate": _B_in["w_gate"],
        "B_w_up": _B_in["w_up"],
        "B_w_down": _B_in["w_down"],
        "gate_w": _w((lambda *s: torch.randn(*s, dtype=torch.bfloat16) * 0.05)(448) * 16.0),
    }

def reference(A_x, A_wqkv, A_wo, B_x, B_w_gate, B_w_up, B_w_down, gate_w):
    def _A_ref(x, wqkv, wo):
        B, S, D = x.shape
        H = 16
        Dh = D // H
        qkv = (lambda x, *d: x.permute(*d))((x @ wqkv).reshape(B, S, 3, H, Dh), 2, 0, 3, 1, 4)
        q, k, v = qkv[0], qkv[1], qkv[2]
        scores = torch.einsum("bhqd,bhkd->bhqk", q, k) * (Dh ** -0.5)
        p = _softmax(scores, axis=-1)
        o = torch.einsum("bhqk,bhkd->bhqd", p, v)
        return (lambda x, *d: x.permute(*d))(o, 0, 2, 1, 3).reshape(B, S, D) @ wo

    def _B_ref(x, w_gate, w_up, w_down):
        g = torch.einsum("bsd,df->bsf", x, w_gate)
        u = torch.einsum("bsd,df->bsf", x, w_up)
        h = _gelu(g) * u
        return torch.einsum("bsf,fd->bsd", h, w_down)

    x = A_x
    g = _sigmoid((x * gate_w).sum(-1, keepdims=True))
    a = _A_ref(x, A_wqkv, A_wo)
    b = _B_ref(x, B_w_gate, B_w_up, B_w_down)
    return g * a + (1 - g) * b
```

```python
import re

TRANS = ("v_exp_f32", "v_log_f32", "v_rcp_f32", "v_rsq_f32", "v_sqrt_f32", "v_sin_f32", "v_cos_f32",
         "v_exp_f16", "v_rcp_f16", "v_rcp_iflag_f32")

_reg_re = re.compile(r"^(-?)(?:abs\()?([vsa])(\d+)\)?$|^(-?)([vsa])\[(\d+):(\d+)\]$")


def vr(a, n=1):
    return f"v{a}" if n == 1 else f"v[{a}:{a + n - 1}]"


def sr(a, n=1):
    return f"s{a}" if n == 1 else f"s[{a}:{a + n - 1}]"


def regs_of(op):
    op = op.strip()
    if op == "vcc":
        return {"s106", "s107"}
    if op == "vcc_lo":
        return {"s106"}
    if op == "vcc_hi":
        return {"s107"}
    if op in ("exec", "exec_lo", "exec_hi"):
        return {"exec"}
    if op == "m0":
        return {"m0"}
    m = _reg_re.match(op)
    if not m:
        return set()
    if m.group(2):
        return {m.group(2) + m.group(3)}
    return {m.group(5) + str(i) for i in range(int(m.group(6)), int(m.group(7)) + 1)}


class Ins:
    __slots__ = ("text", "op", "ops", "defs", "uses", "cls", "label", "srcc", "ab", "data", "dma", "wide", "tag")

    def __init__(self, text):
        self.text = text
        self.label = None
        self.defs = set()
        self.uses = set()
        self.srcc = set()
        self.ab = set()
        self.data = set()
        self.dma = False
        self.wide = False
        self.tag = None
        t = text.split(";")[0].strip()
        if not t:
            self.op, self.ops, self.cls = "", [], "none"
            return
        if t.endswith(":"):
            self.op, self.ops, self.cls = "", [], "none"
            self.label = t[:-1]
            return
        if t.startswith("."):
            self.op, self.ops, self.cls = "", [], "none"
            return
        parts = t.split(None, 1)
        op = parts[0]
        self.op = op
        rest = parts[1] if len(parts) > 1 else ""
        ops = [o.strip() for o in rest.split(",")] if rest else []
        mods = ""
        if ops:
            lp = ops[-1].split(None, 1)
            if lp:
                ops[-1] = lp[0]
                mods = lp[1] if len(lp) > 1 else ""
        clean = []
        for i, o in enumerate(ops):
            sp = o.split(None, 1)
            clean.append(sp[0] if sp else o)
            if len(sp) > 1:
                mods = sp[1] + " " + " ".join(ops[i + 1:]) + " " + mods
                break
        ops = clean
        self.ops = ops
        R = [regs_of(o) for o in ops]
        allr = lambda l: set().union(*l) if l else set()
        if op.startswith("v_mfma"):
            self.cls = "mfma"
            self.defs = R[0]
            self.ab = R[1] | R[2]
            self.srcc = R[3]
            self.uses = self.ab | self.srcc
        elif op.startswith("v_"):
            self.cls = "trans" if op.replace("_e32", "").replace("_e64", "") in TRANS else "valu"
            if op.startswith("v_permlane32_swap") or op.startswith("v_permlane16_swap") or op.startswith("v_swap"):
                self.defs = R[0] | R[1]
                self.uses = R[0] | R[1]
            elif op.startswith("v_nop"):
                pass
            elif re.match(r"v_(add|sub|subrev|addc|subb)_co", op):
                self.defs = R[0] | R[1]
                self.uses = allr(R[2:])
            else:
                self.defs = R[0]
                self.uses = allr(R[1:])
                if re.match(r"v_(fmac|mac|dot2c|pk_fmac|writelane)", op) or "_dpp" in op or "_sdwa" in op:
                    self.uses |= R[0]
                if op.startswith("v_cndmask") and len(ops) == 3:
                    self.uses |= {"s106", "s107"}
            self.uses |= {"exec"}
        elif op.startswith("ds_"):
            self.cls = "ds"
            if op.startswith("ds_read") or op.startswith("ds_bpermute") or op.startswith("ds_permute") or \
                    op.startswith("ds_swizzle") or "_rtn" in op:
                self.defs = R[0]
                self.uses = allr(R[1:])
            else:
                self.uses = allr(R)
        elif op.startswith("buffer_") or op.startswith("global_"):
            self.cls = "vmem"
            if op in ("buffer_inv", "buffer_wbl2"):
                pass
            elif "load" in op:
                if re.search(r"\blds\b", mods) or "_lds_" in op:
                    self.dma = True
                    self.uses = allr(R) | {"m0"}
                else:
                    self.defs = R[0]
                    self.uses = allr(R[1:])
            elif "atomic" in op and re.search(r"\bsc0\b", mods):
                self.defs = R[0]
                self.uses = allr(R)
            else:
                self.uses = allr(R)
                self.data = R[0] if op.startswith("buffer_") else R[1]
                self.wide = "x4" in op or "x3" in op
        elif op.startswith("s_load") or op.startswith("s_memtime") or op.startswith("s_memrealtime") or \
                op.startswith("s_buffer_load"):
            self.cls = "smem"
            self.defs = R[0]
            self.uses = allr(R[1:])
        elif op.startswith("s_"):
            self.cls = "salu"
            if op.startswith("s_cmp") or op.startswith("s_bitcmp"):
                self.uses = allr(R)
            elif re.match(r"s_(waitcnt|barrier|nop|branch|cbranch|endpgm|sleep|setprio|sethalt|setreg|setpc)", op):
                if "vcc" in op:
                    self.uses = {"s106", "s107"}
            elif "saveexec" in op:
                self.defs = R[0] | {"exec"}
                self.uses = allr(R[1:]) | {"exec"}
            else:
                self.defs = R[0]
                self.uses = allr(R[1:])
                if re.match(r"s_(addk|mulk|cmov|bitset)", op):
                    self.uses |= R[0]
        else:
            raise ValueError("cannot parse: " + text)

    def states(self):
        if self.cls == "none":
            return 0
        if self.op == "s_nop":
            return int(self.ops[0], 0) + 1
        return 1


def need_states(p, c):
    n = 0
    pv = p.cls in ("valu", "trans")
    cv = c.cls in ("valu", "trans")
    vdefs = {r for r in p.defs if r[0] in "va" and r != "vcc"}
    sdefs = {r for r in p.defs if r[0] == "s"}
    if pv:
        if c.cls == "mfma" and vdefs & c.uses:
            n = max(n, 2)
        if p.cls == "trans" and c.cls == "valu" and vdefs & c.uses:
            n = max(n, 1)
        if cv and vdefs & c.uses:
            if c.op.startswith("v_readlane") or c.op.startswith("v_readfirstlane"):
                n = max(n, 1)
            if c.op.startswith("v_permlane") or "_dpp" in c.op:
                n = max(n, 2)
            if "_sdwa" in p.op or "op_sel:" in p.text:
                n = max(n, 1)
        if sdefs:
            if cv and sdefs & c.uses:
                n = max(n, 4 if (c.op.startswith("v_readlane") or c.op.startswith("v_writelane")) else 2)
            if c.cls == "vmem" and sdefs & c.uses:
                n = max(n, 5)
            if c.cls in ("salu", "smem") and sdefs & c.uses:
                n = max(n, 1)
        if p.op.startswith("v_dot"):
            if (vdefs & (c.uses | c.defs)) and c.cls != "none":
                if c.op == p.op and not (vdefs & (regs_of(c.ops[1]) | regs_of(c.ops[2]))):
                    pass
                else:
                    n = max(n, 3)
    if p.cls == "mfma":
        big = "32x32" in p.op
        a, b = (12, 10) if big else (8, 6)
        if c.cls == "mfma":
            if p.defs & c.ab:
                n = max(n, a)
            if p.defs & c.srcc and not (p.defs == c.srcc and p.op == c.op):
                n = max(n, b)
            if p.defs & c.defs and not (p.defs == c.defs and p.op == c.op):
                n = max(n, a)
        elif cv or c.cls in ("vmem", "ds"):
            if p.defs & (c.uses | c.defs):
                n = max(n, a)
            if cv and p.srcc & c.defs:
                n = max(n, 7 if big else 3)
    if p.cls == "salu" and "m0" in p.defs and c.dma:
        n = max(n, 1)
    if p.cls == "vmem" and p.wide and p.data & c.defs:
        n = max(n, 2 if cv or c.cls == "mfma" else 1)
    return n


class Asm:
    def __init__(self):
        self.ins = []
        self.vm = []
        self.lg = []
        self.sm = set()
        self.nid = 0
        self.auto = True

    def _emit_raw(self, text):
        i = Ins(text)
        self.ins.append(i)
        return i

    def _wait(self, vm=None, lg=None):
        parts = []
        if vm is not None:
            vm = min(vm, 63)
            parts.append(f"vmcnt({vm})")
            self.vm = self.vm[len(self.vm) - vm:] if vm < len(self.vm) else self.vm
            if vm == 0:
                self.vm = []
        if lg is not None:
            lg = min(lg, 15)
            parts.append(f"lgkmcnt({lg})")
            self.lg = self.lg[len(self.lg) - lg:] if lg < len(self.lg) else self.lg
            if lg == 0:
                self.lg = []
                self.sm = set()
        if parts:
            self._emit_raw("s_waitcnt " + " ".join(parts))

    def wait(self, vm=None, lg=None):
        self._wait(vm, lg)

    def wait_tok(self, *toks):
        vm = lg = None
        for t in toks:
            if t is None:
                continue
            for q, name in ((self.vm, "vm"), (self.lg, "lg")):
                for k, e in enumerate(q):
                    if e[0] == t:
                        left = len(q) - 1 - k
                        if name == "vm":
                            vm = left if vm is None else min(vm, left)
                        else:
                            lg = left if lg is None else min(lg, left)
        if lg is not None and self.sm:
            lg = 0
        self._wait(vm, lg)

    def __call__(self, text):
        toks = None
        for line in text.split("\n"):
            if line.strip():
                toks = self.emit(line.strip())
        return toks

    def emit(self, text):
        i = Ins(text)
        if i.cls != "none" and self.auto:
            touch = i.uses | i.defs
            vm = lg = None
            for k, e in enumerate(self.vm):
                if e[1] & touch:
                    if i.cls == "vmem" and not (e[1] & i.uses):
                        continue
                    vm = len(self.vm) - 1 - k
            for k, e in enumerate(self.lg):
                if e[1] & touch:
                    if i.cls == "ds" and not (e[1] & i.uses):
                        continue
                    lg = len(self.lg) - 1 - k
            if self.sm & touch or (lg is not None and self.sm):
                lg = 0
            self._wait(vm, lg)
        if i.op == "s_waitcnt":
            m = re.search(r"vmcnt\((\d+)\)", text)
            m2 = re.search(r"lgkmcnt\((\d+)\)", text)
            self._wait(int(m.group(1)) if m else None, int(m2.group(1)) if m2 else None)
            return None
        self.ins.append(i)
        tok = None
        if i.cls == "vmem":
            self.nid += 1
            tok = self.nid
            self.vm.append([tok, set(i.defs)])
        elif i.cls == "ds":
            self.nid += 1
            tok = self.nid
            self.lg.append([tok, set(i.defs)])
        elif i.cls == "smem":
            self.sm |= i.defs
        return tok

    def uncounted(self, text):
        sv = self.save()
        n = len(self.ins)
        self.emit(text)
        i = self.ins[-1]
        if i.cls == "vmem":
            self.vm.pop()
        elif i.cls == "ds":
            self.lg.pop()

    def state(self):
        return ([tuple(sorted(e[1])) for e in self.vm], [tuple(sorted(e[1])) for e in self.lg], tuple(sorted(self.sm)))

    def save(self):
        return ([[a, set(b)] for a, b in self.vm], [[a, set(b)] for a, b in self.lg], set(self.sm))

    def restore(self, st):
        self.vm = [[a, set(b)] for a, b in st[0]]
        self.lg = [[a, set(b)] for a, b in st[1]]
        self.sm = set(st[2])

    def clear(self):
        self.vm, self.lg, self.sm = [], [], set()

    def fix_hazards(self, verbose=False):
        WIN = 14
        total = 0
        while True:
            ins = self.ins
            labels = {x.label: k for k, x in enumerate(ins) if x.label}
            jumps = {}
            for k, x in enumerate(ins):
                if x.op.startswith("s_branch") or x.op.startswith("s_cbranch"):
                    jumps.setdefault(labels[x.ops[0]], []).append(k)
            pad = [0] * len(ins)
            added = 0
            for k, c in enumerate(ins):
                if c.cls == "none" or c.op in ("s_nop", "s_waitcnt", "s_barrier"):
                    continue
                short = 0
                stack = [(k, 0)]
                seen = {}
                while stack:
                    j, dist = stack.pop()
                    preds = []
                    if j > 0 and not (ins[j - 1].op in ("s_branch", "s_endpgm", "s_setpc_b64")):
                        preds.append(j - 1)
                    if ins[j].label:
                        preds += jumps.get(j, [])
                    for pj in preds:
                        p = ins[pj]
                        if p.cls != "none":
                            nd = need_states(p, c)
                            if nd > dist:
                                short = max(short, nd - dist)
                        nd2 = dist + p.states() + pad[pj]
                        if nd2 < WIN and seen.get(pj, 99) > nd2:
                            seen[pj] = nd2
                            stack.append((pj, nd2))
                if short:
                    if verbose:
                        print("; hazard pad", short, "before", c.text)
                    pad[k] = short
                    added += short
            if not added:
                return total
            total += added
            out = []
            for k, c in enumerate(ins):
                if pad[k]:
                    out.append(Ins(f"s_nop {pad[k] - 1}"))
                out.append(c)
            self.ins = out

    def text(self):
        return "\n".join((x.text if x.label or x.text.startswith(".") else "    " + x.text) for x in self.ins)


def kernel_desc(name, nvgpr=256, nsgpr=102, accum=None):
    accum = accum if accum is not None else min(256, (nvgpr + 3) // 4 * 4)
    return f""".amdhsa_kernel {name}
  .amdhsa_next_free_vgpr {nvgpr}
  .amdhsa_next_free_sgpr {nsgpr}
  .amdhsa_accum_offset {accum}
  .amdhsa_group_segment_fixed_size 0
  .amdhsa_kernarg_size 88
  .amdhsa_user_sgpr_count 2
  .amdhsa_user_sgpr_kernarg_segment_ptr 1
  .amdhsa_system_sgpr_workgroup_id_x 1
  .amdhsa_float_denorm_mode_32 3
.end_amdhsa_kernel"""
```

```python
import math
import struct
from asmlib import *

S, D, H, DH, F = 2048, 448, 16, 28, 1792

SEC = 64 * 28672
WS_Q = 0
WS_K = SEC
WS_V = 2 * SEC
WS_H = 3 * SEC
WS_O = WS_H + 64 * 114688
WS_G = WS_O + 64 * 32768
WS_FLAG = 0xF00000
WS_BYTES = 0x1000000


def f32(x):
    return "0x%08x" % struct.unpack("<I", struct.pack("<f", x))[0]


LOG2E = 1.4426950408889634
QSCALE = LOG2E * DH ** -0.5
GELU_C1 = 2.0 * math.sqrt(2.0 / math.pi) * LOG2E
GELU_C2 = 0.044715

P_X, P_WQKV, P_WO = 4, 6, 8
P_WG, P_WU, P_WD, P_GW = 12, 14, 16, 18
P_OUT, P_DBG, P_WS = 20, 22, 24
S_WAVE = 26
SRD_WS = 28


def srd(A, d, ptr, nbytes, add=None):
    if add is None:
        A(f"s_mov_b32 s{d}, s{ptr}")
        A(f"s_mov_b32 s{d + 1}, s{ptr + 1}")
    else:
        A(f"s_add_u32 s{d}, s{ptr}, {add}")
        A(f"s_addc_u32 s{d + 1}, s{ptr + 1}, 0")
    A(f"s_mov_b32 s{d + 2}, {nbytes}")
    A(f"s_mov_b32 s{d + 3}, 0x00020000")


def load_args(A):
    A("s_load_dwordx8 s[4:11], s[0:1], 0")
    A("s_load_dwordx8 s[12:19], s[0:1], 32")
    A("s_load_dwordx4 s[20:23], s[0:1], 64")
    A("s_load_dwordx2 s[24:25], s[0:1], 80")


def mfma(d, a, b, c=None):
    cs = vr(d, 16) if c is None else c
    return f"v_mfma_f32_32x32x16_bf16 {vr(d, 16)}, {vr(a, 4)}, {vr(b, 4)}, {cs}"


def interleave(main, fill, start=0):
    out = []
    n = len(main) - start
    j = 0
    for i, m in enumerate(main):
        out += m if isinstance(m, list) else [m]
        if i >= start:
            k = (len(fill) * (i - start + 1)) // n
            out += fill[j:k]
            j = k
    return out + fill[j:]


class Stamps:
    BASE = 70
    WS_OFF = 0xE80000

    def __init__(self, enabled, only=None):
        self.enabled = enabled
        self.only = only
        self.names = []

    def __call__(self, A, name):
        if not self.enabled or (self.only and name not in self.only):
            return
        if name not in self.names:
            self.names.append(name)
        k = self.names.index(name)
        assert k < 15
        A(f"s_memrealtime s[{self.BASE + 2 * k}:{self.BASE + 2 * k + 1}]") if name.startswith("rt") else \
            A(f"s_memtime s[{self.BASE + 2 * k}:{self.BASE + 2 * k + 1}]")

    def flush(self, A):
        if not self.enabled:
            return
        A("s_waitcnt vmcnt(0) lgkmcnt(0)")
        A(f"s_lshl_b32 s100, s2, 3")
        A(f"s_add_u32 s100, s100, s{S_WAVE}")
        A(f"s_lshl_b32 s100, s100, 6")
        A(f"s_add_u32 s100, s100, {self.WS_OFF}")
        A("s_mov_b64 exec, 1")
        for k in range(15):
            A(f"v_mov_b32 v1, s{self.BASE + 2 * k}")
            A(f"buffer_store_dword v1, off, {sr(SRD_WS, 4)}, s100 offset:{4 * k}")
        A("s_mov_b64 exec, -1")
```

```python
from common import *

XF, ACC1, ACC2, WB = 144, 16, 64, 96
VDX0, VDX1, VDP, VDG, VDU = 120, 121, 122, 123, 124
VAX, VAP, VAG, VAGX, VL16, VSTV, VNC1 = 125, 129, 130, 132, 134, 135, 15
PK = 136
SRD_X, SRD_P, SRD_G, SRD_U, SRD_GW = 32, 36, 40, 44, 48
S_RB, S_CG, S_XO, S_PO, S_GO, S_W1K, S_W2K, S_T, S_RT, S_C, S_ST1, S_STH, S_T2, S_QS = range(52, 66)
LX, LP, LQ = 0, 65536, 98304


def decode_and_addresses(A):
    A(f"""
    v_lshrrev_b32 v1, 6, v0
    v_and_b32 v0, 63, v0
    v_readfirstlane_b32 s{S_WAVE}, v1
    s_and_b32 s{S_T}, s2, 1
    s_lshl_b32 s{S_T}, s{S_T}, 3
    s_bfe_u32 s{S_RB}, s2, 0x30003
    s_add_u32 s{S_RB}, s{S_RB}, s{S_T}
    s_bfe_u32 s{S_T}, s2, 0x20001
    s_lshl_b32 s{S_T}, s{S_T}, 2
    s_lshr_b32 s{S_CG}, s2, 6
    s_add_u32 s{S_CG}, s{S_CG}, s{S_T}
    s_lshl_b32 s{S_W1K}, s{S_WAVE}, 10
    s_lshl_b32 s{S_W2K}, s{S_WAVE}, 11
    s_and_b32 s{S_RT}, s{S_WAVE}, 3
    s_lshr_b32 s{S_C}, s{S_WAVE}, 2
    v_lshlrev_b32 v{VL16}, 4, v0
    """)
    A(f"""
    v_lshrrev_b32 v2, 3, v0
    v_and_b32 v3, 7, v0
    v_lshrrev_b32 v5, 1, v2
    v_and_b32 v4, 1, v5
    s_lshl_b32 s{S_T}, s{S_WAVE}, 4
    v_add_u32 v6, s{S_T}, v2
    v_mul_u32_u24 v6, 896, v6
    v_xor_b32 v7, v3, v5
    v_lshl_add_u32 v{VDX0}, v7, 4, v6
    v_xor_b32 v7, 4, v7
    v_lshl_add_u32 v{VDX1}, v7, 4, v6
    v_add_u32 v{VDX1}, {8 * 896 - 1024}, v{VDX1}
    s_lshl_b32 s{S_T}, s{S_WAVE}, 3
    v_add_u32 v6, s{S_T}, v2
    v_lshlrev_b32 v7, 2, v4
    v_xor_b32 v7, v3, v7
    v_lshlrev_b32 v7, 4, v7
    v_mul_u32_u24 v8, 2688, v6
    v_add_u32 v{VDP}, v8, v7
    v_lshlrev_b32 v7, 1, v4
    v_xor_b32 v7, v3, v7
    v_lshlrev_b32 v7, 4, v7
    v_mul_u32_u24 v8, 3584, v6
    v_add_u32 v{VDG}, v8, v7
    v_xor_b32 v7, 64, v7
    v_add_u32 v{VDU}, v8, v7
    """)


def read_addresses(A):
    A(f"""
    v_and_b32 v2, 31, v0
    v_lshrrev_b32 v3, 5, v0
    s_lshl_b32 s{S_T}, s{S_RT}, 12
    v_lshl_add_u32 v4, v2, 7, s{S_T}
    v_bfe_u32 v5, v2, 1, 3
    v_xor_b32 v5, v5, v3
    """)
    for s in range(4):
        A(f"v_xor_b32 v6, {2 * s}, v5")
        A(f"v_lshl_add_u32 v{VAX + s}, v6, 4, v4")
    A(f"""
    v_and_b32 v2, 3, v0
    v_bfe_u32 v4, v0, 2, 2
    v_bfe_u32 v5, v0, 4, 1
    v_bfe_u32 v6, v0, 3, 1
    v_lshl_add_u32 v7, v3, 3, v4
    v_lshlrev_b32 v7, 7, v7
    s_lshl_b32 s{S_T}, s{S_C}, 3
    v_lshl_add_u32 v8, v5, 2, v2
    v_add_u32 v8, s{S_T}, v8
    v_lshlrev_b32 v9, 3, v6
    v_xor_b32 v8, v8, v9
    v_lshl_add_u32 v8, v8, 3, v7
    v_add_u32 v{VAP}, {LP}, v8
    """)


def gu_addresses(A, special):
    if special:
        A(f"""
        v_add_u32 v{VAG}, {LQ}, v8
        v_add_u32 v{VAG + 1}, {LQ + 8192}, v8
        v_mov_b32 v{VAGX}, v8
        """)
        return
    A(f"""
    v_add_u32 v8, s{S_T}, v2
    v_lshlrev_b32 v9, 2, v6
    v_xor_b32 v8, v8, v9
    v_lshlrev_b32 v9, 3, v5
    v_xor_b32 v8, v8, v9
    v_lshl_add_u32 v7, v5, 13, v7
    v_lshl_add_u32 v{VAGX}, v8, 3, v7
    v_xor_b32 v8, 4, v8
    v_lshl_add_u32 v{VAGX + 1}, v8, 3, v7
    v_add_u32 v{VAG}, {LQ}, v{VAGX}
    v_add_u32 v{VAG + 1}, {LQ}, v{VAGX + 1}
    v_mov_b32 v{VNC1}, {f32(-GELU_C1)}
    """)


def dma(m0base, m0s, voff, srd_, sbase, soff, imm=0, setm0=True):
    out = []
    if setm0:
        out.append(f"s_add_u32 m0, s{m0s}, {m0base}")
    out.append(f"s_add_u32 s{S_T2}, s{sbase}, {soff}")
    out.append(f"buffer_load_dwordx4 v{voff}, {sr(srd_, 4)}, s{S_T2} offen{' offset:%d' % imm if imm else ''} lds")
    return out


def stage_dma(stage, special):
    sl = stage % 4
    g = []
    g.append(dma(LX + sl * 16384, S_W2K, VDX0, SRD_X, S_XO, stage * 128))
    g.append([f"buffer_load_dwordx4 v{VDX1}, {sr(SRD_X, 4)}, s{S_T2} offen offset:1024 lds"])
    g.append(dma(LP + sl * 8192, S_W1K, VDP, SRD_P, S_PO, stage * 64 * 2688))
    if special:
        g.append(dma(LQ + sl * 16384, S_W1K, VDP, SRD_P, S_PO, stage * 64 * 2688 + 128))
        g.append(dma(LQ + sl * 16384 + 8192, S_W1K, VDP, SRD_P, S_PO, stage * 64 * 2688 + 256))
    else:
        g.append(dma(LQ + sl * 16384, S_W1K, VDG, SRD_G, S_GO, stage * 64 * 3584))
        g.append(dma(LQ + sl * 16384 + 8192, S_W1K, VDU, SRD_U, S_GO, stage * 64 * 3584))
    return g


P2LOC = {0: (LX, 3), 1: (LQ, 3), 2: (LX, 0), 3: (LQ, 0), 4: (LX, 1), 5: (LQ, 1), 6: (LX, 2)}


def p2_dma(ch, special):
    reg, sl = P2LOC[ch]
    base = reg + sl * 16384
    if special:
        return [dma(base, S_W1K, VDP, SRD_P, S_PO, ch * 64 * 2688 + 384)]
    return [dma(base, S_W1K, VDG, SRD_G, S_GO, ch * 64 * 3584 + 128),
            dma(base + 8192, S_W1K, VDU, SRD_U, S_GO, ch * 64 * 3584 + 128)]


def tr_reads(dst, addr, off):
    return [f"ds_read_b64_tr_b16 {vr(dst, 2)}, v{addr} offset:{off}",
            f"ds_read_b64_tr_b16 {vr(dst + 2, 2)}, v{addr} offset:{off + 512}"]


def reads1(t):
    ch, s = divmod(t, 4)
    sl = ch % 4
    b = WB + 12 * (t & 1)
    return ([f"ds_read_b128 {vr(XF + 4 * t, 4)}, v{VAX + s} offset:{LX + sl * 16384}"] +
            tr_reads(b, VAP, sl * 8192 + s * 2048),
            tr_reads(b + 4, VAG, sl * 16384 + s * 2048),
            tr_reads(b + 8, VAG + 1, sl * 16384 + s * 2048))


def reads2(t, ntile):
    ch, s = divmod(t, 4)
    reg, sl = P2LOC[ch]
    a = VAGX if reg == LX else VAG
    b = WB + 12 * (t & 1)
    return [tr_reads(b + 4 * e, a + e, sl * 16384 + s * 2048) for e in range(ntile)]


def epi_gu(acc, pk, soff_expr, st):
    o = []
    T = [1, 2, 3, 4]
    for half in range(2):
        g = [acc + 4 * half + i for i in range(4)]
        u = [acc + 8 + 4 * half + i for i in range(4)]
        o += [f"v_mul_f32 v{T[i]}, v{g[i]}, v{g[i]}" for i in range(4)]
        o += [f"v_fmamk_f32 v{T[i]}, v{T[i]}, {f32(-GELU_C1 * GELU_C2)}, v{VNC1}" for i in range(4)]
        o += [f"v_mul_f32 v{T[i]}, v{T[i]}, v{g[i]}" for i in range(4)]
        o += [f"v_exp_f32 v{T[i]}, v{T[i]}" for i in range(4)]
        o += [f"v_mul_f32 v{u[i]}, v{g[i]}, v{u[i]}" for i in range(4)]
        o += [f"v_add_f32 v{T[i]}, 1.0, v{T[i]}" for i in range(4)]
        o += [f"v_rcp_f32 v{T[i]}, v{T[i]}" for i in range(4)]
        o += [f"v_mul_f32 v{u[i]}, v{u[i]}, v{T[i]}" for i in range(4)]
        o += [f"v_cvt_pk_bf16_f32 v{pk + 2 * half + i}, v{u[2 * i]}, v{u[2 * i + 1]}" for i in range(2)]
    o.append(f"s_add_u32 s{S_T}, s{S_STH}, {soff_expr}")
    o.append(f"buffer_store_dwordx4 {vr(pk, 4)}, v{VL16}, {sr(SRD_WS, 4)}, s{S_T} offen{st}")
    return o


def epi_qk(acc, scale, soff, st):
    o = []
    if scale:
        o += [f"v_mul_f32 v{acc + r}, s{S_QS}, v{acc + r}" for r in range(16)]
    o += [f"v_cvt_pk_bf16_f32 v{PK + j}, v{acc + 2 * j}, v{acc + 2 * j + 1}" for j in range(8)]
    o.append(f"s_add_u32 s{S_T}, s{S_ST1}, {soff}")
    for q in range(2):
        o.append(f"v_permlane32_swap_b32 v{PK + 4 * q}, v{PK + 4 * q + 2}")
        o.append(f"v_permlane32_swap_b32 v{PK + 4 * q + 1}, v{PK + 4 * q + 3}")
    for q in range(2):
        o.append(f"buffer_store_dwordx4 {vr(PK + 4 * q, 4)}, v{VL16}, {sr(SRD_WS, 4)}, s{S_T} offen offset:{1024 * q}{st}")
    return o


def epi_v(acc, st):
    o = [f"v_cvt_pk_bf16_f32 v{PK + j}, v{acc + 2 * j}, v{acc + 2 * j + 1}" for j in range(8)]
    o.append(f"s_add_u32 s{S_T}, s{S_ST1}, 14336")
    o.append(f"buffer_store_dwordx4 {vr(PK, 4)}, v{VSTV}, {sr(SRD_WS, 4)}, s{S_ST1} offen{st}")
    o.append(f"buffer_store_dwordx4 {vr(PK + 4, 4)}, v{VSTV}, {sr(SRD_WS, 4)}, s{S_T} offen{st}")
    return o


def final_epilogue(st):
    return epi_gu(ACC2, PK, 4096, st), epi_gu(ACC2 + 16, PK + 4, 5120, st)


def gate_loads(A):
    A(f"""
    s_lshl_b32 s{S_T}, s{S_RB}, 7
    s_lshl_b32 s{S_T2}, s{S_CG}, 3
    s_add_u32 s{S_T}, s{S_T}, s{S_T2}
    s_add_u32 s3, s{S_T}, s{S_WAVE}
    s_mul_i32 s{S_T}, s3, 896
    """)
    for r in range(136, 144):
        A(f"v_mov_b32 v{r}, 0")
    A(f"""
    s_mov_b32 exec_hi, 0x00ffffff
    buffer_load_dwordx4 v[136:139], v{VL16}, {sr(SRD_X, 4)}, s{S_T} offen
    buffer_load_dwordx4 v[140:143], v{VL16}, {sr(SRD_GW, 4)}, 0 offen
    s_mov_b32 exec_hi, -1
    """)


def gate_compute(A, st):
    A("v_mov_b32 v1, 0")
    for i in range(4):
        A(f"v_dot2_f32_bf16 v1, v{136 + i}, v{140 + i}, v1")
    for m in ("row_shr:1 row_mask:0xf", "row_shr:2 row_mask:0xf", "row_shr:4 row_mask:0xf", "row_shr:8 row_mask:0xf",
              "row_bcast:15 row_mask:0xa", "row_bcast:31 row_mask:0xc"):
        A(f"v_add_f32_dpp v1, v1, v1 {m} bank_mask:0xf")
    A(f"""
    v_mul_f32 v1, {f32(-LOG2E)}, v1
    v_exp_f32 v1, v1
    s_lshl_b32 s3, s3, 2
    v_add_f32 v1, 1.0, v1
    v_rcp_f32 v1, v1
    s_add_u32 s3, s3, {WS_G}
    s_mov_b32 exec_lo, 0
    s_mov_b32 exec_hi, 0x80000000
    """)
    tok = A(f"buffer_store_dword v1, off, {sr(SRD_WS, 4)}, s3{st}")
    A("s_mov_b64 exec, -1")
    return tok


def program(A, kind, st="", hooks=None, LA=2, p2bars=(7, 15)):
    hooks = hooks or {}
    stamp = hooks.get("stamp", lambda A, n: None)
    special = kind[0] == "Q"
    ntile2 = {"K": 2, "V": 2, "Q4": 1, "Q3": 0}[kind]
    q0 = 4 if kind == "Q3" else 0
    A(f"s_mul_i32 s{S_XO}, s{S_RB}, {128 * 896}")
    if special:
        A(f"s_mov_b32 s{S_PO}, {q0 * 128}")
    else:
        A(f"s_lshl_b32 s{S_PO}, s{S_CG}, 7")
        A(f"s_add_u32 s{S_PO}, s{S_PO}, 896")
        A(f"s_lshl_b32 s{S_GO}, s{S_CG}, 8")
    A.wait(lg=0)
    stamp(A, "karg")
    toks = {}

    def issue(groups, key):
        for g in groups:
            for x in g:
                t = A(x)
                if t:
                    toks[key] = t

    def stage_groups(stg):
        if stg < 7:
            return stage_dma(stg, special)
        if not ntile2 or stg > 10:
            return []
        c0 = 2 * (stg - 7)
        return p2_dma(c0, special) + (p2_dma(c0 + 1, special) if c0 < 6 else [])

    g0 = stage_groups(0)
    srd(A, SRD_X, P_X, S * D * 2)
    issue(g0[:2], 0)
    srd(A, SRD_P, P_WQKV, D * 3 * D * 2)
    issue(g0[2:3], 0)
    if not special:
        srd(A, SRD_G, P_WG, D * F * 2)
        srd(A, SRD_U, P_WU, D * F * 2)
    issue(g0[3:], 0)
    stamp(A, "dma0")
    srd(A, SRD_GW, P_GW, D * 2)
    srd(A, SRD_WS, P_WS, WS_BYTES)
    if "entry" in hooks:
        hooks["entry"](A)
    gate_loads(A)
    for stg in range(1, LA):
        A("s_barrier")
        issue(stage_groups(stg), stg)
    read_addresses(A)
    gu_addresses(A, special)
    A(f"s_lshl_b32 s{S_T}, s{S_RB}, 2")
    A(f"s_add_u32 s{S_T}, s{S_T}, s{S_RT}")
    A(f"s_mul_i32 s{S_ST1}, s{S_T}, 28672")
    A(f"s_lshl_b32 s{S_T2}, s{S_C}, 11")
    if special:
        A(f"s_add_u32 s{S_ST1}, s{S_ST1}, s{S_T2}")
        A(f"s_add_u32 s{S_ST1}, s{S_ST1}, {WS_Q + q0 * 4096}")
        A(f"s_mov_b32 s{S_QS}, {f32(QSCALE)}")
    else:
        A(f"s_mul_i32 s{S_STH}, s{S_T}, 114688")
        A(f"s_add_u32 s{S_STH}, s{S_STH}, s{S_T2}")
        A(f"s_lshl_b32 s{S_T}, s{S_CG}, 13")
        A(f"s_add_u32 s{S_STH}, s{S_STH}, s{S_T}")
        A(f"s_add_u32 s{S_STH}, s{S_STH}, {WS_H}")
        if kind == "K":
            A(f"s_lshl_b32 s{S_T}, s{S_CG}, 12")
            A(f"s_add_u32 s{S_ST1}, s{S_ST1}, s{S_T}")
            A(f"s_add_u32 s{S_ST1}, s{S_ST1}, s{S_T2}")
            A(f"s_add_u32 s{S_ST1}, s{S_ST1}, {WS_K}")
        else:
            A(f"s_lshl_b32 s{S_T}, s{S_CG}, 10")
            A(f"s_add_u32 s{S_ST1}, s{S_ST1}, s{S_T}")
            A(f"s_lshl_b32 s{S_T}, s{S_C}, 9")
            A(f"s_add_u32 s{S_ST1}, s{S_ST1}, s{S_T}")
            A(f"s_add_u32 s{S_ST1}, s{S_ST1}, {WS_V - 7 * 1024}")
            A(f"v_lshrrev_b32 v1, 5, v0")
            A(f"v_mul_u32_u24 v1, {7168 - 512}, v1")
            A(f"v_add_u32 v{VSTV}, v1, v{VL16}")
    toks["gate"] = gate_compute(A, st)

    def mm1(t, i):
        b = WB + 12 * (t & 1) + 4 * i
        c = "0" if t == 0 else None
        if kind == "V" and i == 0:
            return mfma(ACC1, XF + 4 * t, b, c)
        return mfma(ACC1 + 16 * i, b, XF + 4 * t, c)

    def mm2(t, i):
        return mfma(ACC2 + 16 * i, WB + 12 * (t & 1) + 4 * i, XF + 4 * t, "0" if t == 0 else None)

    A.wait_tok(toks[0])
    A("s_barrier")
    stamp(A, "p1_first")
    stamp(A, "rt_first")
    for r in reads1(0):
        for x in r:
            A(x)
    pend = [(g, LA) for g in stage_groups(LA)]

    def pop():
        if pend:
            g, key = pend.pop(0)
            issue([g], key)

    for t in range(28):
        last = t == 27
        nxt = reads1(t + 1) if not last else (reads2(0, ntile2) + [[], [], []])[:3]
        bound = (t + 1) % 4 == 0
        if bound:
            A.wait(lg=0)
        A(mm1(t, 0))
        if bound:
            stg = (t + 1) // 4
            assert not pend
            if stg < 7 or ntile2:
                need = stg if stg < 7 else 7 + p2bars[0] // 8
                A.wait_tok(toks[need], toks.get("gate") if stg == 2 else None)
                A("s_barrier")
                if "p1bar" in hooks:
                    hooks["p1bar"](A, stg)
            pend = [(g, stg + LA) for g in stage_groups(stg + LA)]
            if stg == 7:
                for s2_ in range(stg + LA + 1, 11):
                    pend += [(g, s2_) for g in stage_groups(s2_)]
        for x in nxt[0]:
            A(x)
        A(mm1(t, 1))
        for x in nxt[1]:
            A(x)
        pop()
        A(mm1(t, 2))
        for x in nxt[2]:
            A(x)
        if len(pend) > (2 - t) % 4:
            pop()

    stamp(A, "p1_pass1")
    stamp(A, "rt_pass1")
    if kind == "K":
        e1 = epi_qk(ACC1, False, 0, st)
    elif kind == "V":
        e1 = epi_v(ACC1, st)
    else:
        e1 = epi_qk(ACC1, True, 0, st) + epi_qk(ACC1 + 16, True, 4096, st) + epi_qk(ACC1 + 32, True, 8192, st)
    nq = len(e1)
    if not special:
        e1 = e1 + epi_gu(ACC1 + 16, PK, 0, st) + epi_gu(ACC1 + 32, PK + 4, 1024, st)
    if ntile2 == 0:
        if "p2step" in hooks:
            hooks["p2step"](A, 8)
        for x in e1:
            A(x)
        if "p2step" in hooks:
            hooks["p2step"](A, 20)
        if "special_end" in hooks:
            hooks["special_end"](A)
        return

    done = 0
    qtok = None
    published = False
    nslots = 27 * ntile2
    slot = 0
    for t in range(28):
        nxt = reads2(t + 1, ntile2) if t < 27 else [[]] * ntile2
        bound = t in p2bars
        endbar = t == 27 and not special and "regular_end" in hooks
        if bound or endbar:
            A.wait(lg=0)
        if "p2step" in hooks:
            hooks["p2step"](A, t)
        for i in range(ntile2):
            A(mm2(t, i))
            if endbar and i == 0:
                A("s_barrier")
            if bound and i == 0:
                k = p2bars.index(t)
                need = 7 + p2bars[k + 1] // 8 if k + 1 < len(p2bars) else 10
                pub = not special and not published and done >= nq and t >= 15
                A.wait_tok(toks[need], qtok if pub else None)
                A("s_barrier")
                if pub:
                    published = True
                    if "qkv_done" in hooks:
                        hooks["qkv_done"](A, None)
            for x in nxt[i]:
                A(x)
            if i == 0:
                pop()
            if t >= 1:
                slot += 1
                upto = min(len(e1), (len(e1) * slot * 27) // (nslots * 25))
                while done < upto:
                    tk = A(e1[done])
                    if tk and done < nq:
                        qtok = tk
                    done += 1
    assert done == len(e1) and not pend and (published or special)
    stamp(A, "p1_pass2")
    stamp(A, "rt_pass2")
    if not special and "regular_end" in hooks:
        hooks["regular_end"](A)
        return
    if special:
        e2 = epi_qk(ACC2, True, 12288, st)
    else:
        e2 = sum(final_epilogue(st), [])
    for x in e2:
        A(x)
    if special and "special_end" in hooks:
        hooks["special_end"](A)


def clear_flag(A):
    A(f"""
    s_lshl_b32 s{S_T}, s2, 7
    s_add_u32 s{S_T}, s{S_T}, {WS_FLAG}
    v_mov_b32 v1, 0
    s_mov_b64 exec, 1
    buffer_store_dword v1, off, {sr(SRD_WS, 4)}, s{S_T}
    s_mov_b64 exec, -1
    """)


def phase1_kernel(name, stamps=None, **kw):
    A = Asm()
    A(f".globl {name}\n.p2align 8\n.type {name},@function\n{name}:")
    A("s_cmp_ge_u32 s2, 256")
    A(f"s_cbranch_scc1 {name}_exit")
    stamps = stamps or Stamps(False)
    stamps(A, "rt0")
    stamps(A, "t0")
    load_args(A)
    decode_and_addresses(A)
    A(f"s_cmp_ge_u32 s{S_CG}, 14")
    A(f"s_cbranch_scc1 {name}_q")
    A(f"s_cmp_ge_u32 s{S_CG}, 7")
    A(f"s_cbranch_scc1 {name}_v")
    st0 = A.save()
    for kind, lab in (("K", None), ("V", "_v"), ("Q4", "_q"), ("Q3", "_q3")):
        A.restore(st0)
        if lab:
            A(f"{name}{lab}:")
        if kind == "Q4":
            A(f"s_cmp_eq_u32 s{S_CG}, 15")
            A(f"s_cbranch_scc1 {name}_q3")
        program(A, kind, hooks={"stamp": stamps, "entry": clear_flag}, **kw)
        stamps(A, "p1_end")
        if stamps.enabled:
            A("s_waitcnt vmcnt(0)")
        stamps(A, "p1_drain")
        stamps(A, "rt1")
        stamps.flush(A)
        A("s_endpgm")
    A(f"{name}_exit:")
    A("s_endpgm")
    A.fix_hazards()
    return A.text(), kernel_desc(name)
```

```python
import sys
from common import *
import phase1 as p1

ST = " sc1"
LD = " sc1"

FLAG_S = WS_FLAG
FLAG_O = WS_FLAG + 0x8000
SPIN = 1 << 17

L_WO, L_RING, L_OP, L_MISC = 0, 57344, 106496, 155648
L_O = L_RING
M_HW, M_AS, M_GS, M_MAX = L_MISC, L_MISC + 2048, L_MISC + 3072, L_MISC + 4096

S_F1 = 27
S_HEAD, S_QB, S_MB, S_NB, S_T, S_T2, S_T3 = range(52, 59)
S_OFF, S_CNT, S_GW = 60, 61, 62
S_HOFF, S_SPIN, S_ME, S_MO = 64, 3, 66, 68
SRD_K, SRD_V, SRD_WD, SRD_WO, SRD_DBG, SRD_OUT = 32, 36, 40, 44, 48, 48

VL16 = p1.VL16
OA, SB, PB, QF, KB, VB, VK, VV, VM = 16, 80, 112, 144, 176, 208, 240, 244, 252
VHW = 14
ACC, HB, WBUF = 16, 144, 200
NH = 4
VDW0, VDW1, VH0, VH1, VAWA, VAWB, VG = 240, 241, 242, 243, 244, 246, 248
ACA, TB_, TA_ = 80, 96, 112


class Gen:
    def __init__(self, name, stamps, opt=None):
        self.A = Asm()
        self.name = name
        self.stamp = stamps
        self.opt = opt or {}
        self.late = []
        self.nlab = 0

    def lab(self, s):
        self.nlab += 1
        return f"{self.name}_{s}{self.nlab}"

    def one_lane_store(self, value, soff, wave=None):
        A = self.A
        skip = None
        if wave is not None:
            skip = self.lab("skip")
            A(f"s_cmp_lg_u32 s{S_WAVE}, {wave}")
            A(f"s_cbranch_scc1 {skip}")
        A(f"v_mov_b32 v5, {value}")
        A("s_mov_b64 exec, 1")
        A.uncounted(f"buffer_store_dword v5, off, {sr(SRD_WS, 4)}, s{soff} sc1")
        A("s_mov_b64 exec, -1")
        if skip:
            A(f"{skip}:")

    def check_words(self, load, cmp_, tok, mask=None):
        A = self.A
        back, spin = self.lab("back"), self.lab("spin")
        A.wait_tok(tok)
        if mask:
            A(f"s_mov_b64 exec, {mask}")
        A(cmp_)
        A(f"s_cbranch_vccnz {spin}")
        A(f"{back}:")
        if mask:
            A("s_mov_b64 exec, -1")

        def out(A):
            loop = spin + "_l"
            A(f"{spin}:")
            A(f"s_mov_b32 s{S_SPIN}, {SPIN}")
            A(f"{loop}:")
            A(load)
            A("s_waitcnt vmcnt(0) lgkmcnt(0)" if load.startswith("buffer") else "s_waitcnt lgkmcnt(0)")
            A(cmp_)
            A(f"s_cbranch_vccz {back}")
            A(f"s_sub_u32 s{S_SPIN}, s{S_SPIN}, 1")
            A(f"s_cmp_lg_u32 s{S_SPIN}, 0")
            A(f"s_cbranch_scc1 {loop}")
            A(f"s_branch {back}")

        self.late.append(out)

    def masked(self, mask, text):
        self.A(f"s_mov_b64 exec, {mask}")
        t = self.A(text)
        self.A("s_mov_b64 exec, -1")
        return t

    def hooks(self):
        A = self.A
        st = {}

        def entry(A):
            skip = self.lab("skip")
            A(f"""
            s_lshl_b32 s{S_F1}, s{p1.S_RB}, 4
            s_add_u32 s{S_F1}, s{S_F1}, s{p1.S_CG}
            s_lshl_b32 s{S_F1}, s{S_F1}, 7
            s_add_u32 s{S_F1}, s{S_F1}, {FLAG_S}
            s_cmp_lg_u32 s{S_WAVE}, 0
            s_cbranch_scc1 {skip}
            s_and_b32 s{p1.S_T}, s2, 7
            s_lshl_b32 s{p1.S_T}, s{p1.S_T}, 1
            s_lshr_b32 s{p1.S_T2}, s2, 7
            s_add_u32 s{p1.S_T}, s{p1.S_T}, s{p1.S_T2}
            s_bfe_u32 s{p1.S_T2}, s2, 0x40003
            s_lshl_b32 s{p1.S_T2}, s{p1.S_T2}, 6
            s_add_u32 s{p1.S_T}, s{p1.S_T}, s{p1.S_T2}
            s_lshl_b32 s{p1.S_T}, s{p1.S_T}, 7
            s_add_u32 s{p1.S_T}, s{p1.S_T}, {FLAG_O}
            v_mov_b32 v10, 0
            v_lshlrev_b32 v11, 11, v0
            s_mov_b64 exec, 15
            """)
            A.uncounted(f"buffer_store_dword v10, v11, {sr(SRD_WS, 4)}, s{p1.S_T} offen sc1")
            A("s_mov_b64 exec, 1")
            A.uncounted(f"buffer_store_dword v10, off, {sr(SRD_WS, 4)}, s{S_F1} sc1")
            A("s_mov_b64 exec, -1")
            A(f"{skip}:")

        def p1bar(A, stg):
            if stg != 2:
                return
            srd(A, SRD_DBG, P_DBG, 256)
            skip = self.lab("skip")
            A(f"""
            s_cmp_lg_u32 s{S_WAVE}, 0
            s_cbranch_scc1 {skip}
            s_and_b32 s3, s2, 3
            s_lshl_b32 s3, s3, 6
            v_mov_b32 v5, 1
            s_mov_b64 exec, 1
            """)
            A.uncounted(f"buffer_atomic_add v5, off, {sr(SRD_DBG, 4)}, s3 sc1")
            A("s_mov_b64 exec, -1")
            A(f"{skip}:")

        dbg_load = f"buffer_load_dword v7, v8, {sr(SRD_DBG, 4)}, 0 offen sc1"

        def p2step(A, t):
            if t == 8:
                A(f"""
                s_lshl_b32 s3, s{S_WAVE}, 9
                s_add_u32 s3, s3, {L_MISC}
                v_lshl_add_u32 v8, v0, 3, s3
                v_mov_b64 v[6:7], 0
                ds_write_b64 v8, v[6:7]
                v_and_b32 v8, 3, v0
                v_lshlrev_b32 v8, 6, v8
                """)
                st["dbg"] = A(dbg_load)
            if t == 20:
                self.check_words(dbg_load, "v_cmp_ne_u32 vcc, 64, v7", st["dbg"])

        def qkv_done(A, _):
            self.one_lane_store(1, S_F1, wave=0)

        def regular_end(A):
            A(f"s_cmp_ge_u32 s{S_WAVE}, 4")
            A(f"s_cbranch_scc1 {self.name}_g_e2")
            A(f"s_branch {self.name}_a_e2")

        def special_end(A):
            A("s_waitcnt vmcnt(0) lgkmcnt(0)")
            A("s_barrier")
            self.one_lane_store(1, S_F1, wave=0)
            A(f"s_cmp_ge_u32 s{S_WAVE}, 4")
            A(f"s_cbranch_scc1 {self.name}_g_plain")
            A(f"s_branch {self.name}_a_plain")

        return dict(stamp=self.stamp, entry=entry, p1bar=p1bar, p2step=p2step, qkv_done=qkv_done,
                    regular_end=regular_end, special_end=special_end)

    def decode2(self):
        self.A(f"""
        s_and_b32 s{S_T}, s2, 7
        s_lshr_b32 s{S_T2}, s2, 3
        s_lshl_b32 s{S_HEAD}, s{S_T}, 1
        s_lshr_b32 s{S_T3}, s2, 7
        s_add_u32 s{S_HEAD}, s{S_HEAD}, s{S_T3}
        s_and_b32 s{S_QB}, s{S_T2}, 15
        s_lshl_b32 s{S_MB}, s{S_T}, 2
        s_and_b32 s{S_T3}, s{S_T2}, 3
        s_add_u32 s{S_MB}, s{S_MB}, s{S_T3}
        s_lshr_b32 s{S_NB}, s{S_T2}, 2
        s_and_b32 s{S_GW}, s{S_WAVE}, 3
        """)

    def k_load(self, b):
        return [f"buffer_load_dwordx4 {vr(KB + 8 * b, 4)}, v{VK + b}, {sr(SRD_K, 4)}, s{S_OFF} offen{LD}",
                f"buffer_load_dwordx4 {vr(KB + 8 * b + 4, 4)}, v{VK + b}, {sr(SRD_K, 4)}, s{S_OFF} offen offset:1024{LD}"]

    def v_load(self, b):
        return [f"s_mov_b64 exec, {sr(S_ME, 2)}",
                f"buffer_load_dwordx4 {vr(VB + 8 * b, 4)}, v{VV + 2 * b}, {sr(SRD_V, 4)}, s{S_OFF} offen{LD}",
                f"buffer_load_dwordx4 {vr(VB + 8 * b + 4, 4)}, v{VV + 2 * b + 1}, {sr(SRD_V, 4)}, s{S_OFF} offen{LD}",
                "s_mov_b64 exec, -1"]

    @staticmethod
    def qk(i, half):
        b, j = (i >> 2) & 3, i & 3
        return mfma(SB + 16 * (i & 1), KB + 8 * b + 4 * half, QF + 8 * j + 4 * half, "0" if half == 0 else None)

    @staticmethod
    def pv(i, half):
        b, j = (i >> 2) & 3, i & 3
        return mfma(OA + 16 * j, VB + 8 * b + 4 * half, PB + 4 * half)

    @staticmethod
    def grp(i, g, sub):
        r = SB + 16 * (i & 1) + 4 * g
        o = []
        if sub:
            o += [f"v_sub_f32 v{r + k}, v{r + k}, v{VM + (i & 3)}" for k in range(4)]
        o += [f"v_exp_f32 v{r + k}, v{r + k}" for k in range(4)]
        o += [f"v_cvt_pk_bf16_f32 v{PB + 2 * g + k}, v{r + 2 * k}, v{r + 2 * k + 1}" for k in range(2)]
        return o

    def wait_pair(self, base):
        A = self.A
        want = {f"v{base + 7}"}
        for e in A.vm:
            if e[1] & want:
                A.wait_tok(e[0])
                return

    def v_consts(self):
        A = self.A
        A(f"""
        v_and_b32 v9, 31, v0
        v_cmp_eq_u32 vcc, 28, v9
        v_mov_b32 v9, 0x3f803f80
        v_cndmask_b32 v9, 0, v9, vcc
        """)
        for r in range(32):
            A(f"v_mov_b32 v{VB + r}, v9")

    def attn_start(self, e2):
        A = self.A
        A("s_setprio 1")
        self.decode2()
        A(f"""
        s_mul_i32 s{S_T}, s{S_HEAD}, 28
        s_add_u32 s{S_T2}, s{S_T}, 27
        s_lshr_b32 s{S_T3}, s{S_T}, 6
        s_lshr_b32 s{S_OFF}, s{S_T2}, 6
        s_sub_u32 s{S_OFF}, s{S_OFF}, s{S_T3}
        v_and_b32 v5, 1, v0
        v_mul_u32_u24 v5, s{S_OFF}, v5
        v_bfe_u32 v6, v0, 1, 1
        v_mad_u32_u24 v5, v6, 7, v5
        v_bfe_u32 v6, v0, 2, 2
        v_lshl_add_u32 v5, v6, 4, v5
        s_lshl_b32 s{S_OFF}, s{S_GW}, 6
        s_add_u32 s{S_OFF}, s{S_OFF}, s{S_T3}
        v_add_u32 v5, s{S_OFF}, v5
        s_lshl_b32 s{S_OFF}, s{S_QB}, 4
        s_add_u32 s{S_OFF}, s{S_OFF}, 14
        s_lshr_b32 s{S_T}, s{S_T}, 8
        s_lshr_b32 s{S_T2}, s{S_T2}, 8
        s_add_u32 s{S_T}, s{S_T}, s{S_OFF}
        s_add_u32 s{S_T2}, s{S_T2}, s{S_OFF}
        v_writelane_b32 v5, s{S_T}, 16
        v_writelane_b32 v5, s{S_T2}, 17
        s_mov_b32 s{S_HOFF}, {FLAG_S}
        v_lshlrev_b32 v5, 7, v5
        """)
        load = f"buffer_load_dword v6, v5, {sr(SRD_WS, 4)}, s{S_HOFF} offen sc1"
        tok = self.masked("0x3ffff", load)
        A(f"""
        s_mul_i32 s{S_CNT}, s{S_HEAD}, 7
        s_lshr_b32 s{S_CNT}, s{S_CNT}, 1
        s_lshl_b32 s{S_CNT}, s{S_CNT}, 9
        s_mul_i32 s{S_T2}, s{S_GW}, {16 * 28672}
        s_add_u32 s{S_T3}, s{S_T2}, s{S_CNT}
        s_add_u32 s{S_T3}, s{S_T3}, {WS_K}
        """)
        srd(A, SRD_K, P_WS, 16 * 28672, add=f"s{S_T3}")
        A(f"""
        s_mul_i32 s{S_T3}, s{S_HEAD}, 448
        s_add_u32 s{S_T3}, s{S_T3}, s{S_T2}
        s_add_u32 s{S_T3}, s{S_T3}, {WS_V}
        """)
        srd(A, SRD_V, P_WS, 16 * 28672, add=f"s{S_T3}")
        A(f"""
        s_mov_b32 s{S_ME}, 0x0fffffff
        s_mov_b32 s{S_ME + 1}, 0x0fffffff
        s_mov_b32 s{S_OFF}, 0
        v_lshrrev_b32 v9, 5, v0
        v_mul_u32_u24 v9, {7168 - 512}, v9
        v_add_u32 v{VV}, v9, v{VL16}
        v_mov_b32 v{VK}, v{VL16}
        s_lshl_b32 s{S_T}, s{S_WAVE}, 8
        s_add_u32 s{S_T}, s{S_T}, {M_HW}
        v_lshl_add_u32 v{VHW}, v0, 2, s{S_T}
        """)
        for b in range(1, 4):
            A(f"v_add_u32 v{VK + b}, {b * 28672}, v{VL16}")
        for n in range(1, 8):
            A(f"v_add_u32 v{VV + n}, {n * 14336}, v{VV}")
        self.v_consts()
        for x in (e2[0] if e2 else []):
            A(x)
        self.check_words(load, "v_cmp_eq_u32 vcc, 0, v6", tok, mask="0x3ffff")
        self.stamp(A, "a_flags")
        for j in range(4):
            A(f"""
            s_add_u32 s{S_T2}, s{S_GW}, {j}
            s_and_b32 s{S_T2}, s{S_T2}, 3
            s_lshl_b32 s{S_T3}, s{S_QB}, 2
            s_add_u32 s{S_T2}, s{S_T2}, s{S_T3}
            s_mul_i32 s{S_T2}, s{S_T2}, 28672
            s_add_u32 s{S_T2}, s{S_T2}, s{S_CNT}
            buffer_load_dwordx4 {vr(QF + 8 * j, 4)}, v{VL16}, {sr(SRD_WS, 4)}, s{S_T2} offen{LD}
            buffer_load_dwordx4 {vr(QF + 8 * j + 4, 4)}, v{VL16}, {sr(SRD_WS, 4)}, s{S_T2} offen offset:1024{LD}
            """)
            if j == 0:
                for x in self.k_load(0):
                    A(x)
        for x in (e2[1] if e2 else []):
            A(x)
        if not e2:
            self.masked("1", load)

    def attn_first(self, mask_q):
        A = self.A
        for b in range(3):
            for x in self.v_load(b) + self.k_load(b + 1):
                A(x)
        for r in range(64):
            A(f"v_mov_b32 v{OA + r}, 0")
        for r in range(4):
            A(f"v_mov_b32 v{PB + 4 + r}, 0")
        if mask_q:
            A(f"""
            s_bitcmp1_b32 s{S_HEAD}, 0
            s_cselect_b32 s{S_MO}, -1, 0
            s_cselect_b32 s{S_MO + 1}, 0, -1
            s_mov_b32 exec_lo, 0
            s_mov_b32 exec_hi, s{S_MO + 1}
            """)
            for j in range(4):
                A(f"v_mov_b64 {vr(QF + 8 * j + 6, 2)}, 0")
            A(f"s_mov_b32 exec_lo, s{S_MO}")
            A(f"s_mov_b32 exec_hi, 0")
            for j in range(4):
                A(f"v_mov_b64 {vr(QF + 8 * j, 2)}, 0")
            A("s_mov_b64 exec, -1")
        A(self.qk(0, 0))
        A(self.qk(0, 1))

    def attn_loop(self, sub):
        A = self.A
        lab = self.lab("aloop")
        if A.sm:
            A.wait(lg=0)
        A(f"s_mov_b32 s{S_CNT}, 4")
        A("s_nop 9")
        while A.vm and not A.vm[0][1]:
            A.vm.pop(0)
        st0 = A.state()
        A(f"{lab}:")
        for i in range(16):
            b, j = i >> 2, i & 3
            if j == 3:
                self.wait_pair(KB + 8 * ((b + 1) & 3))
            seq = [self.qk(i + 1, 0)] + self.grp(i, 0, sub) + [self.pv(i - 1, 1)]
            if j == 0:
                seq += self.v_load((b - 1) & 3)
                if b == 0:
                    seq += [f"s_add_u32 s{S_OFF}, s{S_OFF}, {4 * 28672}"]
            seq += self.grp(i, 1, sub) + [self.qk(i + 1, 1)]
            if j == 2:
                seq += self.k_load(b)
            seq += self.grp(i, 2, sub)
            for x in seq:
                A(x)
            if j == 0:
                self.wait_pair(VB + 8 * b)
            A(self.pv(i, 0))
            if i == 0 and not sub:
                A.uncounted(f"ds_write_b32 v{VHW}, v{VHW}")
            if i == 15:
                A(f"s_sub_u32 s{S_CNT}, s{S_CNT}, 1")
                A(f"s_cmp_lg_u32 s{S_CNT}, 0")
            for x in self.grp(i, 3, sub):
                A(x)
        A(f"s_cbranch_scc1 {lab}")
        assert A.state() == st0, (A.state(), st0)
        A("s_nop 1")
        A(self.pv(15, 1))

    def lds_sync(self, base, value_reg, cmp_):
        A = self.A
        A(f"ds_write_b32 v12, v{value_reg}")
        load = f"ds_read_b32 v6, v13"
        tok = A(load)
        self.check_words(load, cmp_, tok)

    def sync_addresses(self, base):
        self.A(f"""
        s_lshl_b32 s{S_T}, s{S_GW}, 8
        s_add_u32 s{S_T}, s{S_T}, {base}
        v_lshl_add_u32 v12, v0, 2, s{S_T}
        v_and_b32 v13, 3, v0
        v_lshlrev_b32 v13, 8, v13
        v_add_u32 v13, {base}, v13
        """)

    def attn_exchange(self, check):
        A = self.A
        for j in range(1, 4):
            A(f"""
            s_add_u32 s{S_T}, s{S_GW}, {j}
            s_and_b32 s{S_T}, s{S_T}, 3
            s_mul_i32 s{S_T}, s{S_T}, 12288
            s_add_u32 s{S_T}, s{S_T}, {L_OP + (j - 1) * 4096}
            v_add_u32 v{8 + j}, s{S_T}, v{VL16}
            """)
            if j < 3:
                for q in range(4):
                    A(f"ds_write_b128 v{8 + j}, {vr(OA + 16 * j + 4 * q, 4)} offset:{1024 * q}")
        for q in range(4):
            A(f"ds_write_b128 v11, {vr(OA + 48 + 4 * q, 4)} offset:{1024 * q}")
        self.sync_addresses(M_AS)
        if check:
            A(f"""
            v_min3_f32 v5, v{OA + 12}, v{OA + 28}, v{OA + 44}
            v_max3_f32 v7, v{OA + 12}, v{OA + 28}, v{OA + 44}
            v_add_f32 v8, v{OA + 12}, v{OA + 28}
            v_min_f32 v5, v5, v{OA + 60}
            v_max_f32 v7, v7, v{OA + 60}
            v_add_f32 v9, v{OA + 44}, v{OA + 60}
            v_cmp_nle_f32 vcc, {f32(2.0 ** -30)}, v5
            v_add_f32 v8, v8, v9
            s_mov_b32 s{S_T}, vcc_hi
            v_cmp_nge_f32 vcc, {f32(2.0 ** 30)}, v7
            s_or_b32 s{S_T}, s{S_T}, vcc_hi
            v_cmp_u_f32 vcc, v8, v8
            s_or_b32 s{S_T}, s{S_T}, vcc_hi
            s_cselect_b32 s{S_T}, 2, 1
            v_mov_b32 v5, s{S_T}
            """)
            self.lds_sync(M_AS, 5, "v_cmp_eq_u32 vcc, 0, v6")
            A("v_cmp_lt_u32 vcc, 1, v6")
            A(f"s_cbranch_vccnz {self.name}_slow")
        else:
            A("v_mov_b32 v5, 4")
            self.lds_sync(M_AS, 5, "v_cmp_gt_u32 vcc, 4, v6")

    def attn_finish(self):
        A = self.A
        A(f"""
        s_mul_i32 s{S_T}, s{S_GW}, 12288
        s_add_u32 s{S_T}, s{S_T}, {L_OP}
        v_add_u32 v9, s{S_T}, v{VL16}
        """)
        R = KB
        order = [3, 0, 1, 2]
        for q in order:
            for p in range(3):
                A(f"ds_read_b128 {vr(R + 16 * p + 4 * q, 4)}, v9 offset:{4096 * p + 1024 * q}")
        A(f"""
        s_lshl_b32 s{S_T3}, s{S_QB}, 2
        s_add_u32 s{S_T3}, s{S_T3}, s{S_GW}
        s_lshl_b32 s{S_T3}, s{S_T3}, 4
        s_add_u32 s{S_T3}, s{S_T3}, s{S_HEAD}
        s_lshl_b32 s{S_T}, s{S_T3}, 11
        s_add_u32 s{S_T}, s{S_T}, {WS_O}
        s_lshl_b32 s{S_T3}, s{S_T3}, 7
        s_add_u32 s{S_T3}, s{S_T3}, {FLAG_O}
        """)
        for n, q in enumerate(order):
            for k in range(0, 4, 2):
                A(f"v_pk_add_f32 {vr(R + 4 * q + k, 2)}, {vr(R + 4 * q + k, 2)}, {vr(R + 16 + 4 * q + k, 2)}")
            for k in range(0, 4, 2):
                A(f"v_pk_add_f32 {vr(OA + 4 * q + k, 2)}, {vr(OA + 4 * q + k, 2)}, {vr(R + 32 + 4 * q + k, 2)}")
            for k in range(0, 4, 2):
                A(f"v_pk_add_f32 {vr(OA + 4 * q + k, 2)}, {vr(OA + 4 * q + k, 2)}, {vr(R + 4 * q + k, 2)}")
            if n == 0:
                A(f"v_mov_b32 v10, v{OA + 12}")
                A(f"v_mov_b32 v11, v{OA + 12}")
            if n == 1:
                A("v_permlane32_swap_b32 v10, v11")
                A("v_rcp_f32 v12, v11")
        for hf in range(2):
            for r in range(8 * hf, 8 * hf + 8):
                A(f"v_mul_f32 v{OA + r}, v{OA + r}, v12")
            for jj in range(4 * hf, 4 * hf + 4):
                A(f"v_cvt_pk_bf16_f32 v{PB + jj}, v{OA + 2 * jj}, v{OA + 2 * jj + 1}")
            if hf == 0:
                A(f"buffer_store_dwordx4 {vr(PB, 4)}, v{VL16}, {sr(SRD_WS, 4)}, s{S_T} offen{ST}")
        A(f"""
        s_mov_b32 exec_lo, 0
        v_mov_b64 {vr(PB + 6, 2)}, 0
        s_mov_b32 exec_lo, -1
        buffer_store_dwordx4 {vr(PB + 4, 4)}, v{VL16}, {sr(SRD_WS, 4)}, s{S_T} offen offset:1024{ST}
        s_waitcnt vmcnt(0)
        """)
        self.one_lane_store(1, S_T3)

    def slow_path(self):
        A = self.A
        A.clear()
        A(f"{self.name}_slow:")
        A("s_waitcnt vmcnt(0) lgkmcnt(0)")
        for j in range(4):
            A(f"v_mov_b32 v{VM + j}, 0xff800000")
        A(f"s_mov_b32 s{S_OFF}, 0")
        A(f"s_mov_b32 s{S_CNT}, 16")
        lab = self.lab("maxloop")
        A(f"{lab}:")
        for x in self.k_load(0):
            A(x)
        for j in range(4):
            A(self.qk(j, 0))
            A(self.qk(j, 1))
            s = SB + 16 * (j & 1)
            for r in range(0, 16, 2):
                A(f"v_max3_f32 v{VM + j}, v{s + r}, v{s + r + 1}, v{VM + j}")
        A(f"s_add_u32 s{S_OFF}, s{S_OFF}, 28672")
        A(f"s_sub_u32 s{S_CNT}, s{S_CNT}, 1")
        A(f"s_cmp_lg_u32 s{S_CNT}, 0")
        A(f"s_cbranch_scc1 {lab}")
        for j in range(4):
            A(f"v_mov_b32 v9, v{VM + j}")
            A(f"v_permlane32_swap_b32 v9, v{VM + j}")
            A(f"v_max_f32 v{VM + j}, v9, v{VM + j}")
            A(f"""
            s_add_u32 s{S_T}, s{S_GW}, {j}
            s_and_b32 s{S_T}, s{S_T}, 3
            s_lshl_b32 s{S_T}, s{S_T}, 8
            s_add_u32 s{S_T}, s{S_T}, {M_MAX}
            v_lshl_add_u32 v{1 + j}, v0, 2, s{S_T}
            s_lshl_b32 s{S_T}, s{S_GW}, 10
            v_add_u32 v10, s{S_T}, v{1 + j}
            ds_write_b32 v10, v{VM + j}
            """)
        A("v_mov_b32 v5, 3")
        self.lds_sync(M_AS, 5, "v_cmp_gt_u32 vcc, 3, v6")
        for j in range(4):
            for w in range(4):
                A(f"ds_read_b32 v{SB + w}, v{1 + j} offset:{1024 * w}")
            A(f"v_max3_f32 v{VM + j}, v{SB}, v{SB + 1}, v{SB + 2}")
            A(f"v_max_f32 v{VM + j}, v{VM + j}, v{SB + 3}")
        A(f"s_mov_b32 s{S_OFF}, 0")
        self.v_consts()
        for x in self.k_load(0):
            A(x)
        self.attn_first(False)
        self.attn_loop(True)
        self.attn_exchange(False)
        A("s_waitcnt vmcnt(0)")
        A(f"s_branch {self.name}_a_fin")

    @staticmethod
    def slot(ks):
        if ks < 7:
            return "B", ks
        if ks < 13:
            return "A", ks - 7
        if ks < 20:
            return "B", ks - 13
        return "A", (ks - 20) % 6

    def wd_dma(self, ks):
        reg, sl = self.slot(ks)
        return [f"s_add_u32 m0, s{S_CNT if reg == 'A' else S_T2}, {sl * 2048}",
                f"s_add_u32 s{S_T}, s{S_OFF}, {ks * 16 * 896}",
                f"buffer_load_dwordx4 v{VDW0}, {sr(SRD_WD, 4)}, s{S_T} offen lds",
                f"buffer_load_dwordx4 v{VDW1}, {sr(SRD_WD, 4)}, s{S_T} offen offset:1024 lds"]

    def wo_dma(self, n):
        return [f"s_add_u32 m0, s{S_T2}, {n * 2048}",
                f"s_add_u32 s{S_T}, s{S_T3}, {n * 16 * 896}",
                f"buffer_load_dwordx4 v{VDW0}, {sr(SRD_WO, 4)}, s{S_T} offen lds",
                f"buffer_load_dwordx4 v{VDW1}, {sr(SRD_WO, 4)}, s{S_T} offen offset:1024 lds"]

    def h_load(self, ks):
        b = HB + 8 * (ks % NH)
        return [f"s_add_u32 s{S_T}, s{S_HOFF}, {ks * 1024}",
                f"buffer_load_dwordx4 {vr(b, 4)}, v{VH0}, {sr(SRD_WS, 4)}, s{S_T} offen{LD}",
                f"buffer_load_dwordx4 {vr(b + 4, 4)}, v{VH1}, {sr(SRD_WS, 4)}, s{S_T} offen{LD}"]

    def gemm_start(self, e2):
        A = self.A
        if e2:
            A("s_setprio 2")
        self.decode2()
        srd(A, SRD_WD, P_WD, F * D * 2)
        srd(A, SRD_WO, P_WO, D * D * 2)
        A(f"""
        v_lshrrev_b32 v9, 3, v0
        v_mul_u32_u24 v10, 896, v9
        v_bfe_u32 v9, v0, 4, 1
        v_lshlrev_b32 v9, 2, v9
        v_and_b32 v11, 7, v0
        v_xor_b32 v9, v9, v11
        v_lshl_add_u32 v{VDW0}, v9, 4, v10
        v_add_u32 v{VDW1}, {7168 - 1024}, v{VDW0}
        s_mul_i32 s{S_T2}, s{S_GW}, 14336
        s_mul_i32 s{S_CNT}, s{S_GW}, 12288
        s_add_u32 s{S_CNT}, s{S_CNT}, {L_RING}
        s_mul_i32 s{S_OFF}, s{S_GW}, {448 * 896}
        s_lshl_b32 s{S_T}, s{S_NB}, 7
        s_add_u32 s{S_OFF}, s{S_OFF}, s{S_T}
        s_mul_i32 s{S_T3}, s{S_GW}, {112 * 896}
        s_add_u32 s{S_T3}, s{S_T3}, s{S_T}
        """)
        dmas = sum([self.wd_dma(ks) for ks in range(13)], [])
        if not e2:
            for x in dmas:
                A(x)
            return
        for x in e2[0] + e2[1]:
            tok = A(x)
        A("s_setprio 0")
        for x in dmas:
            A(x)
        A(f"""
        s_lshl_b32 s{S_T}, s{S_WAVE}, 8
        s_add_u32 s{S_T}, s{S_T}, {M_HW}
        v_lshl_add_u32 v{VHW}, v0, 2, s{S_T}
        v_and_b32 v13, 7, v0
        v_lshlrev_b32 v13, 8, v13
        v_add_u32 v13, {M_HW}, v13
        """)
        A.wait_tok(tok)
        A(f"ds_write_b32 v{VHW}, v{VHW}")
        skip = self.lab("skip")
        A(f"s_cmp_lg_u32 s{S_WAVE}, 4")
        A(f"s_cbranch_scc1 {skip}")
        load = "ds_read_b32 v6, v13"
        tk = A(load)
        self.check_words(load, "v_cmp_eq_u32 vcc, 0, v6", tk)
        self.one_lane_store(2, S_F1)
        A(f"{skip}:")

    def gemm_main(self):
        A = self.A
        A(f"s_cmp_ge_u32 s{S_NB}, 7")
        A(f"s_cbranch_scc1 {self.name}_exit")
        A(f"""
        s_lshr_b32 s{S_T}, s{S_MB}, 1
        s_lshl_b32 s{S_T}, s{S_T}, 4
        s_mul_i32 s{S_HOFF}, s{S_GW}, 7
        s_lshr_b32 s{S_HOFF}, s{S_HOFF}, 1
        s_add_u32 s{S_T}, s{S_T}, s{S_HOFF}
        s_lshl_b32 s{S_T}, s{S_T}, 7
        s_add_u32 s{S_MO}, s{S_T}, {FLAG_S}
        v_and_b32 v5, 3, v0
        v_lshlrev_b32 v5, 7, v5
        """)
        load = f"buffer_load_dword v6, v5, {sr(SRD_WS, 4)}, s{S_MO} offen sc1"
        tok = self.masked("15", load)
        A(f"""
        v_and_b32 v9, 1, v0
        v_lshlrev_b32 v9, 2, v9
        v_bfe_u32 v10, v0, 1, 1
        v_add_u32 v9, v9, v10
        v_bfe_u32 v10, v0, 4, 1
        v_lshl_add_u32 v9, v10, 1, v9
        v_and_b32 v10, 8, v0
        v_xor_b32 v9, v9, v10
        s_and_b32 s{S_T}, s{S_GW}, 1
        s_lshl_b32 s{S_T}, s{S_T}, 3
        v_xor_b32 v9, s{S_T}, v9
        v_lshrrev_b32 v10, 5, v0
        v_bfe_u32 v11, v0, 2, 2
        v_lshl_add_u32 v10, v10, 2, v11
        v_lshlrev_b32 v10, 7, v10
        v_lshl_add_u32 v15, v9, 3, v10
        v_xor_b32 v9, 64, v15
        v_add_u32 v{VAWA}, s{S_CNT}, v15
        v_add_u32 v{VAWA + 1}, s{S_CNT}, v9
        v_add_u32 v{VAWB}, s{S_T2}, v15
        v_add_u32 v{VAWB + 1}, s{S_T2}, v9
        s_lshr_b32 s{S_T}, s{S_GW}, 1
        s_mul_i32 s{S_HOFF}, s{S_T}, 114688
        v_add_u32 v{VH0}, s{S_HOFF}, v{VL16}
        s_sub_u32 s{S_HOFF}, 114688, s{S_HOFF}
        v_add_u32 v{VH1}, s{S_HOFF}, v{VL16}
        s_lshl_b32 s{S_ME}, s{S_MB}, 1
        s_add_u32 s{S_ME}, s{S_ME}, s{S_T}
        s_lshl_b32 s{S_ME}, s{S_ME}, 7
        s_add_u32 s{S_ME}, s{S_ME}, {WS_G}
        s_mul_i32 s{S_HOFF}, s{S_MB}, {2 * 114688}
        s_mul_i32 s{S_T}, s{S_GW}, {28 * 1024}
        s_add_u32 s{S_HOFF}, s{S_HOFF}, s{S_T}
        s_add_u32 s{S_HOFF}, s{S_HOFF}, {WS_H}
        v_and_b32 v9, 31, v0
        v_lshlrev_b32 v9, 2, v9
        buffer_load_dword v{VG}, v9, {sr(SRD_WS, 4)}, s{S_ME} offen{LD}
        """)
        self.check_words(load, "v_cmp_ne_u32 vcc, 2, v6", tok, mask="15")
        self.stamp(A, "g_flags")
        toks = {}

        def issue(lst, key=None):
            for x in lst:
                t = A(x)
                if t and key is not None:
                    toks[key] = t

        def trr(ks):
            reg, sl = self.slot(ks)
            a = VAWA if reg == "A" else VAWB
            b = WBUF + 8 * (ks & 1)
            o = sl * 2048
            return [f"ds_read_b64_tr_b16 {vr(b, 2)}, v{a} offset:{o}",
                    f"ds_read_b64_tr_b16 {vr(b + 2, 2)}, v{a} offset:{o + 1024}",
                    f"ds_read_b64_tr_b16 {vr(b + 4, 2)}, v{a + 1} offset:{o}",
                    f"ds_read_b64_tr_b16 {vr(b + 6, 2)}, v{a + 1} offset:{o + 1024}"]

        for ks in range(NH):
            issue(self.h_load(ks))
        issue(trr(0))
        for ks in range(28):
            if ks < 27:
                A.wait_tok(toks.get(ks + 1))
                issue(trr(ks + 1))
            for jj in range(4):
                A(mfma(ACC + 16 * jj, WBUF + 8 * (ks & 1) + 4 * (jj & 1), HB + 8 * (ks % NH) + 4 * (jj >> 1),
                       "0" if ks == 0 else None))
            if ks + NH < 28:
                issue(self.h_load(ks + NH))
            if ks + 13 < 26:
                issue(self.wd_dma(ks + 13), ks + 13)
            elif ks in (20, 21):
                issue(self.wd_dma(ks + 6), ks + 6)
            if ks >= 21:
                issue(self.wo_dma(ks - 21), "wo")
        A(f"v_add_u32 v9, s{S_CNT}, v{VL16}")
        self.sync_addresses(M_GS)
        for jj in range(1, 4):
            for q in range(4):
                A(f"ds_write_b128 v9, {vr(ACC + 16 * jj + 4 * q, 4)} offset:{4096 * (jj - 1) + 1024 * q}")
        self.stamp(A, "g_loop")
        self.lds_sync(M_GS, 12, "v_cmp_eq_u32 vcc, 0, v6")
        for jj in range(1, 4):
            A(f"""
            s_xor_b32 s{S_T}, s{S_GW}, {jj}
            s_mul_i32 s{S_T}, s{S_T}, 12288
            s_add_u32 s{S_T}, s{S_T}, {L_RING + 4096 * (jj - 1)}
            v_add_u32 v9, s{S_T}, v{VL16}
            """)
            for q in range(4):
                A(f"ds_read_b128 {vr(ACC + 16 * jj + 4 * q, 4)}, v9 offset:{1024 * q}")
        for jj in range(1, 4):
            for r in range(0, 16, 2):
                A(f"v_pk_add_f32 {vr(ACC + r, 2)}, {vr(ACC + r, 2)}, {vr(ACC + 16 * jj + r, 2)}")

    def tail(self, role):
        A = self.A
        A(f"""
        s_lshl_b32 s{S_T}, s{S_MB}, 5
        s_add_u32 s{S_T}, s{S_T}, s{S_WAVE}
        s_lshl_b32 s{S_MO}, s{S_T}, 7
        s_add_u32 s{S_MO}, s{S_MO}, {FLAG_O}
        v_and_b32 v5, 1, v0
        v_lshlrev_b32 v5, 11, v5
        v_bfe_u32 v6, v0, 1, 1
        v_lshl_add_u32 v5, v6, 10, v5
        s_lshl_b32 s{S_T3}, s{S_T}, 11
        s_add_u32 s{S_T3}, s{S_T3}, {WS_O}
        s_lshl_b32 s{S_T2}, s{S_WAVE}, 11
        """)
        load = f"buffer_load_dword v6, v5, {sr(SRD_WS, 4)}, s{S_MO} offen sc1"
        if role == 1:
            A("s_waitcnt vmcnt(0)")
        tok = self.masked("15", load)
        if role == 1:
            srd(A, SRD_OUT, P_OUT, S * D * 2)
            A(f"""
            s_lshr_b32 s{S_T}, s{S_GW}, 1
            s_lshl_b32 s{S_OFF}, s{S_T}, 15
            s_add_u32 s{S_OFF}, s{S_OFF}, {L_O}
            v_add_u32 v14, s{S_OFF}, v{VL16}
            v_and_b32 v10, 31, v0
            v_mul_u32_u24 v10, 896, v10
            v_lshrrev_b32 v11, 5, v0
            v_lshl_add_u32 v10, v11, 5, v10
            s_lshl_b32 s{S_OFF}, s{S_MB}, 1
            s_add_u32 s{S_OFF}, s{S_OFF}, s{S_T}
            s_mul_i32 s{S_OFF}, s{S_OFF}, {32 * 896}
            s_lshl_b32 s{S_T}, s{S_NB}, 7
            s_add_u32 s{S_OFF}, s{S_OFF}, s{S_T}
            s_and_b32 s{S_T}, s{S_GW}, 1
            s_lshl_b32 s{S_T}, s{S_T}, 6
            s_add_u32 s{S_OFF}, s{S_OFF}, s{S_T}
            """)
        A.wait(lg=0)
        A("s_barrier")
        self.check_words(load, "v_cmp_ne_u32 vcc, 1, v6", tok, mask="15")
        self.stamp(A, "t_flag")
        toks = []
        for step in range(2):
            for mt in range(2):
                A(f"s_add_u32 m0, s{S_T2}, {L_O + mt * 32768 + step * 16384}")
                A(f"s_add_u32 s{S_T}, s{S_T3}, {mt * 32768 + step * 16384}")
                for q in range(2):
                    t = A(f"buffer_load_dwordx4 v{VL16}, {sr(SRD_WS, 4)}, s{S_T} offen offset:{1024 * q} sc1 lds")
            toks.append(t)
        A.wait_tok(toks[0])
        A("s_barrier")
        self.stamp(A, "t_odata")
        if role == 0:
            A("s_waitcnt vmcnt(0)")
            A("s_barrier")
            return

        def rd(k):
            o = (28 * (k >> 1) + 16 * (k & 1)) * 128
            b = k % 4
            return [f"ds_read_b128 {vr(TB_ + 4 * b, 4)}, v14 offset:{k * 1024}",
                    f"ds_read_b64_tr_b16 {vr(TA_ + 4 * b, 2)}, v15 offset:{o}",
                    f"ds_read_b64_tr_b16 {vr(TA_ + 4 * b + 2, 2)}, v15 offset:{o + 1024}"]

        for k in range(3):
            for x in rd(k):
                A(x)
        for k in range(32):
            A(mfma(ACA, TA_ + 4 * (k % 4), TB_ + 4 * (k % 4), "0" if k == 0 else None))
            if k + 3 == 16:
                A("s_waitcnt vmcnt(0)")
                A("s_barrier")
            if k + 3 < 32:
                for x in rd(k + 3):
                    A(x)
        for hf in range(2):
            for r in range(8 * hf, 8 * hf + 8):
                A(f"v_sub_f32 v{ACA + r}, v{ACA + r}, v{ACC + r}")
            for r in range(8 * hf, 8 * hf + 8):
                A(f"v_fma_f32 v{ACA + r}, v{VG}, v{ACA + r}, v{ACC + r}")
            for jj in range(4):
                A(f"v_cvt_pk_bf16_f32 v{TA_ + 4 * hf + jj}, v{ACA + 8 * hf + 2 * jj}, v{ACA + 8 * hf + 2 * jj + 1}")
            A(f"buffer_store_dwordx4 {vr(TA_ + 4 * hf, 4)}, v10, {sr(SRD_OUT, 4)}, s{S_OFF} offen offset:{16 * hf}")

    def finish(self):
        A = self.A
        if self.stamp.enabled:
            A("s_waitcnt vmcnt(0)")
            self.stamp(A, "t_end")
            self.stamp(A, "rt_end")
            self.stamp.flush(A)
        A("s_endpgm")

    def build(self):
        A, name = self.A, self.name
        A(f".globl {name}\n.p2align 8\n.type {name},@function\n{name}:")
        A("s_cmp_ge_u32 s2, 256")
        A(f"s_cbranch_scc1 {name}_exit")
        self.stamp(A, "rt0")
        self.stamp(A, "t0")
        load_args(A)
        p1.decode_and_addresses(A)
        A(f"s_cmp_ge_u32 s{p1.S_CG}, 14")
        A(f"s_cbranch_scc1 {name}_q")
        A(f"s_cmp_ge_u32 s{p1.S_CG}, 7")
        A(f"s_cbranch_scc1 {name}_v")
        st0 = A.save()
        ends = {}
        for kind, lab in (("K", None), ("V", "_v"), ("Q4", "_q"), ("Q3", "_q3")):
            A.restore(st0)
            if lab:
                A(f"{name}{lab}:")
            if kind == "Q4":
                A(f"s_cmp_eq_u32 s{p1.S_CG}, 15")
                A(f"s_cbranch_scc1 {name}_q3")
            p1.program(A, kind, ST, self.hooks(), LA=self.opt.get("LA", 2))
            ends[kind] = A.save()
        e2 = p1.final_epilogue(ST)
        for k in ends:
            assert all(not e[1] for e in ends[k][0]) and all(not e[1] for e in ends[k][1]), ends[k]
        A.clear()
        A(f"{name}_a_plain:")
        self.attn_start(None)
        A(f"s_branch {name}_a_go")
        plain = A.state()
        A.clear()
        A(f"{name}_a_e2:")
        self.attn_start(e2)
        assert A.state()[0][-11:-1] == plain[0][:-1] and len(plain[0]) == 11, (A.state(), plain)
        A(f"{name}_a_go:")
        self.attn_first(True)
        self.stamp(A, "a_first")
        self.stamp(A, "rt_first2")
        self.attn_loop(False)
        self.stamp(A, "a_loop")
        self.stamp(A, "rt_loop")
        self.attn_exchange(True)
        A(f"{name}_a_fin:")
        self.attn_finish()
        self.stamp(A, "a_pub")
        A(f"s_cmp_ge_u32 s{S_NB}, 7")
        A(f"s_cbranch_scc1 {name}_a_done")
        self.tail(0)
        A(f"{name}_a_done:")
        self.finish()
        A.clear()
        A(f"{name}_g_plain:")
        self.gemm_start(None)
        A(f"s_branch {name}_g_go")
        A.clear()
        A(f"{name}_g_e2:")
        self.gemm_start(e2)
        A(f"{name}_g_go:")
        A.clear()
        self.gemm_main()
        self.tail(1)
        self.finish()
        self.slow_path()
        k = 0
        while k < len(self.late):
            A.clear()
            self.late[k](A)
            k += 1
        A(f"{name}_exit:")
        A("s_endpgm")
        pads = A.fix_hazards()
        return A.text(), kernel_desc(name), pads


HEADER = open("gated_mix__mha_block__glu_gated_geglu__prompt.s.ref").read().split("; Override")[0]


def main():
    diag = "diag" in sys.argv
    name = "gated_mix__mha_block__glu_gated_geglu__prompt_kernel"
    st = Stamps(diag, "rt0 t0 p1_first p1_pass1 p1_pass2 a_flags a_first a_loop a_pub t_flag t_odata t_end rt_end g_flags g_loop".split())
    g = Gen(name, st)
    code, kd, pads = g.build()
    print(HEADER.rstrip())
    print("; @launch grid=(256,1,1) block=(512,1,1) lds=163840")
    if diag:
        print("; stamps: " + " ".join(st.names))
    print('.amdgcn_target "amdgcn-amd-amdhsa--gfx950"\n.text')
    print(code)
    print('.section .rodata,"a"\n.p2align 6')
    print(kd)


if __name__ == "__main__":
    main()
```

```python
import math
import struct
from asmlib import *

S, D, H, DH, F = 2048, 448, 16, 28, 1792

SEC = 64 * 28672
WS_Q = 0
WS_K = SEC
WS_V = 2 * SEC
WS_H = 3 * SEC
WS_O = WS_H + 64 * 114688
WS_G = WS_O + 64 * 32768
WS_FLAG = 0xF00000
WS_BYTES = 0x1000000


def f32(x):
    return "0x%08x" % struct.unpack("<I", struct.pack("<f", x))[0]


LOG2E = 1.4426950408889634
QSCALE = LOG2E * DH ** -0.5
GELU_C1 = 2.0 * math.sqrt(2.0 / math.pi) * LOG2E
GELU_C2 = 0.044715

P_X, P_WQKV, P_WO = 4, 6, 8
P_WG, P_WU, P_WD, P_GW = 12, 14, 16, 18
P_OUT, P_DBG, P_WS = 20, 22, 24
S_WAVE = 26
S_ROLE = 71
SRD_WS = 28


def srd(A, d, ptr, nbytes, add=None):
    if add is None:
        A(f"s_mov_b32 s{d}, s{ptr}")
        A(f"s_mov_b32 s{d + 1}, s{ptr + 1}")
    else:
        A(f"s_add_u32 s{d}, s{ptr}, {add}")
        A(f"s_addc_u32 s{d + 1}, s{ptr + 1}, 0")
    A(f"s_mov_b32 s{d + 2}, {nbytes}")
    A(f"s_mov_b32 s{d + 3}, 0x00020000")


def load_args(A):
    A("s_load_dwordx8 s[4:11], s[0:1], 0")
    A("s_load_dwordx8 s[12:19], s[0:1], 32")
    A("s_load_dwordx4 s[20:23], s[0:1], 64")
    A("s_load_dwordx2 s[24:25], s[0:1], 80")


def mfma(d, a, b, c=None):
    cs = vr(d, 16) if c is None else c
    return f"v_mfma_f32_32x32x16_bf16 {vr(d, 16)}, {vr(a, 4)}, {vr(b, 4)}, {cs}"


def interleave(main, fill, start=0):
    out = []
    n = len(main) - start
    j = 0
    for i, m in enumerate(main):
        out += m if isinstance(m, list) else [m]
        if i >= start:
            k = (len(fill) * (i - start + 1)) // n
            out += fill[j:k]
            j = k
    return out + fill[j:]


class Stamps:
    WS_OFF = 0xE80000
    EARLY = list(range(88, 102, 2))
    LATE = list(range(32, 48, 2))

    def __init__(self, enabled, only=None):
        self.enabled = enabled
        self.only = only
        self.names = []
        self.reg = {}

    def __call__(self, A, name):
        if not self.enabled or (self.only and name not in self.only):
            return
        if name not in self.names:
            late = name[:2] in ("a_", "g_", "t_") or (name[:3] == "rt_" and name not in ("rt_pass1", "rt_pass2", "rt_first"))
            used = set(self.reg.values())
            pool = [r for r in ((self.LATE if late else []) + self.EARLY) if r not in used]
            self.reg[name] = pool[0]
            self.names.append(name)
        r = self.reg[name]
        A(f"s_memrealtime s[{r}:{r + 1}]") if name.startswith("rt") else A(f"s_memtime s[{r}:{r + 1}]")

    def flush(self, A):
        if not self.enabled:
            return
        A("s_waitcnt vmcnt(0) lgkmcnt(0)")
        A(f"s_lshl_b32 s3, s2, 3")
        A(f"s_add_u32 s3, s3, s{S_WAVE}")
        A(f"s_lshl_b32 s3, s3, 6")
        A(f"s_add_u32 s3, s3, {self.WS_OFF}")
        A("s_mov_b64 exec, 1")
        for k, n in enumerate(self.only):
            if n in self.reg:
                A(f"v_mov_b32 v1, s{self.reg[n]}")
                A(f"buffer_store_dword v1, off, {sr(SRD_WS, 4)}, s3 offset:{4 * k}")
        A("s_mov_b64 exec, -1")


class Rec:
    def __init__(self):
        self.units = []
        self.glue = False

    def __call__(self, text):
        for line in text.split("\n"):
            line = line.strip()
            if not line:
                continue
            op = line.split()[0]
            join = self.glue or op in ("s_addc_u32", "s_cselect_b32")
            if join and self.units:
                self.units[-1].append(line)
            else:
                self.units.append([line])
            if "exec" in line and op.startswith("s_mov"):
                self.glue = not line.endswith("exec, -1")
```

```python
from common import *

XF, ACC1, ACC2, WB = 144, 16, 64, 96
VDX0, VDX1, VDP, VDG, VDU = 120, 121, 122, 123, 124
VAX, VAP, VAG, VAGX, VL16, VSTV, VNC1 = 125, 129, 130, 132, 134, 135, 15
PK = 136
SRD_X, SRD_P, SRD_G, SRD_U, SRD_GW = 32, 36, 40, 44, 48
S_RB, S_CG, S_XO, S_PO, S_GO, S_W1K, S_W2K, S_T, S_RT, S_C, S_ST1, S_STH, S_T2, S_QS = range(52, 66)
LX, LP, LQ = 0, 65536, 98304


def decode_and_addresses(A):
    A(f"""
    v_lshrrev_b32 v1, 6, v0
    v_and_b32 v0, 63, v0
    v_readfirstlane_b32 s{S_WAVE}, v1
    s_and_b32 s{S_T}, s2, 1
    s_lshl_b32 s{S_T}, s{S_T}, 3
    s_bfe_u32 s{S_RB}, s2, 0x30003
    s_add_u32 s{S_RB}, s{S_RB}, s{S_T}
    s_bfe_u32 s{S_T}, s2, 0x20001
    s_lshl_b32 s{S_T}, s{S_T}, 2
    s_lshr_b32 s{S_CG}, s2, 6
    s_add_u32 s{S_CG}, s{S_CG}, s{S_T}
    s_lshl_b32 s{S_W1K}, s{S_WAVE}, 10
    s_lshl_b32 s{S_W2K}, s{S_WAVE}, 11
    s_and_b32 s{S_RT}, s{S_WAVE}, 3
    s_lshr_b32 s{S_C}, s{S_WAVE}, 2
    s_cselect_b32 s{S_ROLE}, 1, 0
    v_lshlrev_b32 v{VL16}, 4, v0
    """)
    A(f"""
    v_lshrrev_b32 v2, 3, v0
    v_and_b32 v3, 7, v0
    v_lshrrev_b32 v5, 1, v2
    v_and_b32 v4, 1, v5
    s_lshl_b32 s{S_T}, s{S_WAVE}, 4
    v_add_u32 v6, s{S_T}, v2
    v_mul_u32_u24 v6, 896, v6
    v_xor_b32 v7, v3, v5
    v_lshl_add_u32 v{VDX0}, v7, 4, v6
    v_xor_b32 v7, 4, v7
    v_lshl_add_u32 v{VDX1}, v7, 4, v6
    v_add_u32 v{VDX1}, {8 * 896 - 1024}, v{VDX1}
    s_lshl_b32 s{S_T}, s{S_WAVE}, 3
    v_add_u32 v6, s{S_T}, v2
    v_lshlrev_b32 v7, 2, v4
    v_xor_b32 v7, v3, v7
    v_lshlrev_b32 v7, 4, v7
    v_mul_u32_u24 v8, 2688, v6
    v_add_u32 v{VDP}, v8, v7
    v_lshlrev_b32 v7, 1, v4
    v_xor_b32 v7, v3, v7
    v_lshlrev_b32 v7, 4, v7
    v_mul_u32_u24 v8, 3584, v6
    v_add_u32 v{VDG}, v8, v7
    v_xor_b32 v7, 64, v7
    v_add_u32 v{VDU}, v8, v7
    """)


def read_addresses(A):
    A(f"""
    v_and_b32 v2, 31, v0
    v_lshrrev_b32 v3, 5, v0
    s_lshl_b32 s{S_T}, s{S_RT}, 12
    v_lshl_add_u32 v4, v2, 7, s{S_T}
    v_bfe_u32 v5, v2, 1, 3
    v_xor_b32 v5, v5, v3
    """)
    for s in range(4):
        A(f"v_xor_b32 v6, {2 * s}, v5")
        A(f"v_lshl_add_u32 v{VAX + s}, v6, 4, v4")
    A(f"""
    v_and_b32 v2, 3, v0
    v_bfe_u32 v4, v0, 2, 2
    v_bfe_u32 v5, v0, 4, 1
    v_bfe_u32 v6, v0, 3, 1
    v_lshl_add_u32 v7, v3, 3, v4
    v_lshlrev_b32 v7, 7, v7
    s_lshl_b32 s{S_T}, s{S_C}, 3
    v_lshl_add_u32 v8, v5, 2, v2
    v_add_u32 v8, s{S_T}, v8
    v_lshlrev_b32 v9, 3, v6
    v_xor_b32 v8, v8, v9
    v_lshl_add_u32 v8, v8, 3, v7
    v_add_u32 v{VAP}, {LP}, v8
    """)


def gu_addresses(A, special):
    if special:
        A(f"""
        v_add_u32 v{VAG}, {LQ}, v8
        v_add_u32 v{VAG + 1}, {LQ + 8192}, v8
        v_mov_b32 v{VAGX}, v8
        """)
        return
    A(f"""
    v_add_u32 v8, s{S_T}, v2
    v_lshlrev_b32 v9, 2, v6
    v_xor_b32 v8, v8, v9
    v_lshlrev_b32 v9, 3, v5
    v_xor_b32 v8, v8, v9
    v_lshl_add_u32 v7, v5, 13, v7
    v_lshl_add_u32 v{VAGX}, v8, 3, v7
    v_xor_b32 v8, 4, v8
    v_lshl_add_u32 v{VAGX + 1}, v8, 3, v7
    v_add_u32 v{VAG}, {LQ}, v{VAGX}
    v_add_u32 v{VAG + 1}, {LQ}, v{VAGX + 1}
    v_mov_b32 v{VNC1}, {f32(-GELU_C1)}
    """)


def dma(m0base, m0s, voff, srd_, sbase, soff, imm=0, setm0=True):
    out = []
    if setm0:
        out.append(f"s_add_u32 m0, s{m0s}, {m0base}")
    out.append(f"s_add_u32 s{S_T2}, s{sbase}, {soff}")
    out.append(f"buffer_load_dwordx4 v{voff}, {sr(srd_, 4)}, s{S_T2} offen{' offset:%d' % imm if imm else ''} lds")
    return out


def stage_dma(stage, special):
    sl = stage % 4
    g = []
    g.append(dma(LX + sl * 16384, S_W2K, VDX0, SRD_X, S_XO, stage * 128) +
             [f"buffer_load_dwordx4 v{VDX1}, {sr(SRD_X, 4)}, s{S_T2} offen offset:1024 lds"])
    g.append(dma(LP + sl * 8192, S_W1K, VDP, SRD_P, S_PO, stage * 64 * 2688))
    if special:
        g.append(dma(LQ + sl * 16384, S_W1K, VDP, SRD_P, S_PO, stage * 64 * 2688 + 128))
        g.append(dma(LQ + sl * 16384 + 8192, S_W1K, VDP, SRD_P, S_PO, stage * 64 * 2688 + 256))
    else:
        g.append(dma(LQ + sl * 16384, S_W1K, VDG, SRD_G, S_GO, stage * 64 * 3584))
        g.append(dma(LQ + sl * 16384 + 8192, S_W1K, VDU, SRD_U, S_GO, stage * 64 * 3584))
    return g


P2LOC = {0: (LX, 3), 1: (LQ, 3), 2: (LX, 0), 3: (LQ, 0), 4: (LX, 1), 5: (LQ, 1), 6: (LX, 2)}


def p2_dma(ch, special):
    reg, sl = P2LOC[ch]
    base = reg + sl * 16384
    if special:
        return [dma(base, S_W1K, VDP, SRD_P, S_PO, ch * 64 * 2688 + 384)]
    return [dma(base, S_W1K, VDG, SRD_G, S_GO, ch * 64 * 3584 + 128),
            dma(base + 8192, S_W1K, VDU, SRD_U, S_GO, ch * 64 * 3584 + 128)]


def tr_reads(dst, addr, off):
    return [f"ds_read_b64_tr_b16 {vr(dst, 2)}, v{addr} offset:{off}",
            f"ds_read_b64_tr_b16 {vr(dst + 2, 2)}, v{addr} offset:{off + 512}"]


def reads1(t):
    ch, s = divmod(t, 4)
    sl = ch % 4
    b = WB + 12 * (t & 1)
    return ([f"ds_read_b128 {vr(XF + 4 * t, 4)}, v{VAX + s} offset:{LX + sl * 16384}"] +
            tr_reads(b, VAP, sl * 8192 + s * 2048),
            tr_reads(b + 4, VAG, sl * 16384 + s * 2048),
            tr_reads(b + 8, VAG + 1, sl * 16384 + s * 2048))


def wb2(t, ntile):
    return WB + 12 * (t & 1) if ntile == 2 else WB + 4 * (t % 6)


def reads2(t, ntile):
    ch, s = divmod(t, 4)
    reg, sl = P2LOC[ch]
    a = VAGX if reg == LX else VAG
    b = wb2(t, ntile)
    return [tr_reads(b + 4 * e, a + e, sl * 16384 + s * 2048) for e in range(ntile)]


def epi_gu(acc, pk, soff_expr, st):
    o = []
    T = [1, 2, 3, 4]
    for half in range(2):
        g = [acc + 4 * half + i for i in range(4)]
        u = [acc + 8 + 4 * half + i for i in range(4)]
        o += [f"v_mul_f32 v{T[i]}, v{g[i]}, v{g[i]}" for i in range(4)]
        o += [f"v_fmamk_f32 v{T[i]}, v{T[i]}, {f32(-GELU_C1 * GELU_C2)}, v{VNC1}" for i in range(4)]
        o += [f"v_mul_f32 v{T[i]}, v{T[i]}, v{g[i]}" for i in range(4)]
        o += [f"v_exp_f32 v{T[i]}, v{T[i]}" for i in range(4)]
        o += [f"v_mul_f32 v{u[i]}, v{g[i]}, v{u[i]}" for i in range(4)]
        o += [f"v_add_f32 v{T[i]}, 1.0, v{T[i]}" for i in range(4)]
        o += [f"v_rcp_f32 v{T[i]}, v{T[i]}" for i in range(4)]
        o += [f"v_mul_f32 v{u[i]}, v{u[i]}, v{T[i]}" for i in range(4)]
        o += [f"v_cvt_pk_bf16_f32 v{pk + 2 * half + i}, v{u[2 * i]}, v{u[2 * i + 1]}" for i in range(2)]
    o.append(f"s_add_u32 s{S_T}, s{S_STH}, {soff_expr}")
    o.append(f"buffer_store_dwordx4 {vr(pk, 4)}, v{VL16}, {sr(SRD_WS, 4)}, s{S_T} offen{st}")
    return o


def epi_qk(acc, scale, soff, st):
    o = []
    if scale:
        o += [f"v_mul_f32 v{acc + r}, s{S_QS}, v{acc + r}" for r in range(16)]
    o += [f"v_cvt_pk_bf16_f32 v{PK + j}, v{acc + 2 * j}, v{acc + 2 * j + 1}" for j in range(8)]
    o.append(f"s_add_u32 s{S_T}, s{S_ST1}, {soff}")
    for q in range(2):
        o.append(f"v_permlane32_swap_b32 v{PK + 4 * q}, v{PK + 4 * q + 2}")
        o.append(f"v_permlane32_swap_b32 v{PK + 4 * q + 1}, v{PK + 4 * q + 3}")
    for q in range(2):
        o.append(f"buffer_store_dwordx4 {vr(PK + 4 * q, 4)}, v{VL16}, {sr(SRD_WS, 4)}, s{S_T} offen offset:{1024 * q}{st}")
    return o


def epi_v(acc, st):
    o = [f"v_cvt_pk_bf16_f32 v{PK + j}, v{acc + 2 * j}, v{acc + 2 * j + 1}" for j in range(8)]
    o.append(f"s_add_u32 s{S_T}, s{S_ST1}, 14336")
    o.append(f"buffer_store_dwordx4 {vr(PK, 4)}, v{VSTV}, {sr(SRD_WS, 4)}, s{S_ST1} offen{st}")
    o.append(f"buffer_store_dwordx4 {vr(PK + 4, 4)}, v{VSTV}, {sr(SRD_WS, 4)}, s{S_T} offen{st}")
    return o


def final_epilogue(st):
    return epi_gu(ACC2, PK, 4096, st), epi_gu(ACC2 + 16, PK + 4, 5120, st)


def gate_loads(A):
    A(f"""
    s_lshl_b32 s{S_T}, s{S_RB}, 7
    s_lshl_b32 s{S_T2}, s{S_CG}, 3
    s_add_u32 s{S_T}, s{S_T}, s{S_T2}
    s_add_u32 s3, s{S_T}, s{S_WAVE}
    s_mul_i32 s{S_T}, s3, 896
    """)
    for r in range(136, 144):
        A(f"v_mov_b32 v{r}, 0")
    A(f"""
    s_mov_b32 exec_hi, 0x00ffffff
    buffer_load_dwordx4 v[136:139], v{VL16}, {sr(SRD_X, 4)}, s{S_T} offen
    buffer_load_dwordx4 v[140:143], v{VL16}, {sr(SRD_GW, 4)}, 0 offen
    s_mov_b32 exec_hi, -1
    """)


def gate_compute(A, st):
    A("v_mov_b32 v1, 0")
    for i in range(4):
        A(f"v_dot2_f32_bf16 v1, v{136 + i}, v{140 + i}, v1")
    for m in ("row_shr:1 row_mask:0xf", "row_shr:2 row_mask:0xf", "row_shr:4 row_mask:0xf", "row_shr:8 row_mask:0xf",
              "row_bcast:15 row_mask:0xa", "row_bcast:31 row_mask:0xc"):
        A(f"v_add_f32_dpp v1, v1, v1 {m} bank_mask:0xf")
    A(f"""
    v_mul_f32 v1, {f32(-LOG2E)}, v1
    v_exp_f32 v1, v1
    s_lshl_b32 s3, s3, 2
    v_add_f32 v1, 1.0, v1
    v_rcp_f32 v1, v1
    s_add_u32 s3, s3, {WS_G}
    s_mov_b32 exec_lo, 0
    s_mov_b32 exec_hi, 0x80000000
    """)
    tok = A(f"buffer_store_dword v1, off, {sr(SRD_WS, 4)}, s3{st}")
    A("s_mov_b64 exec, -1")
    return tok


def program(A, kind, st="", hooks=None, LA0=2, LA=2, p2bars=(7, 15), pubbar=15):
    hooks = hooks or {}
    stamp = hooks.get("stamp", lambda A, n: None)
    special = kind[0] == "Q"
    ntile2 = {"K": 2, "V": 2, "Q4": 1, "Q3": 0}[kind]
    q0 = 4 if kind == "Q3" else 0
    A(f"s_mul_i32 s{S_XO}, s{S_RB}, {128 * 896}")
    if special:
        A(f"s_mov_b32 s{S_PO}, {q0 * 128}")
    else:
        A(f"s_lshl_b32 s{S_PO}, s{S_CG}, 7")
        A(f"s_add_u32 s{S_PO}, s{S_PO}, 896")
        A(f"s_lshl_b32 s{S_GO}, s{S_CG}, 8")
    A.wait(lg=0)
    stamp(A, "karg")
    toks = {}

    def issue(groups, key):
        for g in groups:
            for x in g:
                t = A(x)
                if t:
                    toks[key] = t

    def stage_groups(stg):
        if stg < 7:
            return stage_dma(stg, special)
        if not ntile2 or stg > 10:
            return []
        c0 = 2 * (stg - 7)
        return p2_dma(c0, special) + (p2_dma(c0 + 1, special) if c0 < 6 else [])

    g0 = stage_groups(0)
    srd(A, SRD_X, P_X, S * D * 2)
    issue(g0[:1], 0)
    srd(A, SRD_P, P_WQKV, D * 3 * D * 2)
    issue(g0[1:2], 0)
    if not special:
        srd(A, SRD_G, P_WG, D * F * 2)
        srd(A, SRD_U, P_WU, D * F * 2)
    issue(g0[2:], 0)
    stamp(A, "dma0")
    srd(A, SRD_GW, P_GW, D * 2)
    srd(A, SRD_WS, P_WS, WS_BYTES)
    if "entry" in hooks:
        hooks["entry"](A)
    gate_loads(A)
    for stg in range(1, LA0):
        A("s_barrier")
        issue(stage_groups(stg), stg)
    read_addresses(A)
    gu_addresses(A, special)

    def side_work(role):
        A = Rec()
        S_T, S_T2 = 0, 1
        A(f"s_lshl_b32 s{S_T}, s{S_RB}, 2")
        A(f"s_add_u32 s{S_T}, s{S_T}, s{S_RT}")
        A(f"s_mul_i32 s{S_ST1}, s{S_T}, 28672")
        A(f"s_lshl_b32 s{S_T2}, s{S_C}, 11")
        if special:
            A(f"s_add_u32 s{S_ST1}, s{S_ST1}, s{S_T2}")
            A(f"s_add_u32 s{S_ST1}, s{S_ST1}, {WS_Q + q0 * 4096}")
            A(f"s_mov_b32 s{S_QS}, {f32(QSCALE)}")
        else:
            A(f"s_mul_i32 s{S_STH}, s{S_T}, 114688")
            A(f"s_add_u32 s{S_STH}, s{S_STH}, s{S_T2}")
            A(f"s_lshl_b32 s{S_T}, s{S_CG}, 13")
            A(f"s_add_u32 s{S_STH}, s{S_STH}, s{S_T}")
            A(f"s_add_u32 s{S_STH}, s{S_STH}, {WS_H}")
            if kind == "K":
                A(f"s_lshl_b32 s{S_T}, s{S_CG}, 12")
                A(f"s_add_u32 s{S_ST1}, s{S_ST1}, s{S_T}")
                A(f"s_add_u32 s{S_ST1}, s{S_ST1}, s{S_T2}")
                A(f"s_add_u32 s{S_ST1}, s{S_ST1}, {WS_K}")
            else:
                A(f"s_lshl_b32 s{S_T}, s{S_CG}, 10")
                A(f"s_add_u32 s{S_ST1}, s{S_ST1}, s{S_T}")
                A(f"s_lshl_b32 s{S_T}, s{S_C}, 9")
                A(f"s_add_u32 s{S_ST1}, s{S_ST1}, s{S_T}")
                A(f"s_add_u32 s{S_ST1}, s{S_ST1}, {WS_V - 7 * 1024}")
                A(f"v_lshrrev_b32 v1, 5, v0")
                A(f"v_mul_u32_u24 v1, {7168 - 512}, v1")
                A(f"v_add_u32 v{VSTV}, v1, v{VL16}")
        if "idle" in hooks:
            hooks["idle"](A, role)
        G = Rec()
        gate_compute(G, st)
        return A.units, G.units

    gatetok = A.vm[[k for k, e in enumerate(A.vm) if "v143" in e[1]][0]][0]

    def mm1(t, i):
        b = WB + 12 * (t & 1) + 4 * i
        c = "0" if t == 0 else None
        if kind == "V" and i == 0:
            return mfma(ACC1, XF + 4 * t, b, c)
        return mfma(ACC1 + 16 * i, b, XF + 4 * t, c)

    def mm2(t, i):
        return mfma(ACC2 + 16 * i, wb2(t, ntile2) + 4 * i, XF + 4 * t, "0" if t == 0 else None)

    A.wait_tok(toks[0], gatetok)
    A("s_barrier")
    stamp(A, "p1_first")
    stamp(A, "rt_first")
    for r in reads1(0):
        for x in r:
            A(x)
    pend = [(g, k) for k in range(LA0, LA + 1) for g in stage_groups(k)]

    def pop():
        if pend:
            g, key = pend.pop(0)
            issue([g], key)

    def step1(t, fill):
        nonlocal pend
        last = t == 27
        if not last:
            nxt = reads1(t + 1)
        elif ntile2 == 1:
            nxt = [reads2(k, 1)[0] for k in range(3)]
        else:
            nxt = (reads2(0, ntile2) + [[], [], []])[:3]
        bound = (t + 1) % 4 == 0
        if bound:
            A.wait(lg=0)
        A(mm1(t, 0))
        if bound:
            stg = (t + 1) // 4
            assert not pend
            if stg < 7 or ntile2:
                need = stg if stg < 7 else 7 + p2bars[0] // 8
                A.wait_tok(toks[need])
                A("s_barrier")
                if "p1bar" in hooks:
                    hooks["p1bar"](A, stg)
            pend = [(g, stg + LA) for g in stage_groups(stg + LA)]
            if stg == 7:
                for s2_ in range(stg + LA + 1, 11):
                    pend += [(g, s2_) for g in stage_groups(s2_)]
        left = (2 - t) % 4 + 1
        npop = -(-len(pend) // left) if t < 27 else 2
        for x in nxt[0]:
            A(x)
        for _ in range(npop // 3):
            pop()
        fill(0)
        A(mm1(t, 1))
        for x in nxt[1]:
            A(x)
        for _ in range((npop + 2) // 3):
            pop()
        fill(1)
        A(mm1(t, 2))
        for x in nxt[2]:
            A(x)
        for _ in range((npop + 1) // 3):
            pop()
        fill(2)

    T0, T1, TG = 1, 5, 22
    for t in range(T0):
        step1(t, lambda k: None)
    sv, pend0, toks0 = A.save(), list(pend), dict(toks)
    other, join = hooks["label"]("role1"), hooks["label"]("join")
    A(f"s_cmp_eq_u32 s{S_ROLE}, 0")
    A(f"s_cbranch_scc0 {other}")
    shapes = []
    for role in (0, 1):
        if role:
            A(f"s_branch {join}")
            A(f"{other}:")
            A.restore(sv)
            pend = list(pend0)
            toks.clear()
            toks.update(toks0)
        side, gate = side_work(role)
        for t in range(T0, TG + 1):
            units, lo, hi = (gate, T0, T1) if t <= T1 else (side, T1 + 1, TG)

            def fill(k):
                n = 3 * (hi - lo + 1)
                pos = 3 * (t - lo) + k
                for u in units[len(units) * pos // n:len(units) * (pos + 1) // n]:
                    for x in u:
                        A(x)
            step1(t, fill)
        shapes.append(A.state())
    assert shapes[0] == shapes[1]
    A(f"{join}:")
    for t in range(TG + 1, 28):
        step1(t, lambda k: None)

    stamp(A, "p1_pass1")
    stamp(A, "rt_pass1")
    if kind == "K":
        e1 = epi_qk(ACC1, False, 0, st)
    elif kind == "V":
        e1 = epi_v(ACC1, st)
    else:
        e1 = epi_qk(ACC1, True, 0, st) + epi_qk(ACC1 + 16, True, 4096, st) + epi_qk(ACC1 + 32, True, 8192, st)
    nq = len(e1)
    if not special:
        e1 = e1 + epi_gu(ACC1 + 16, PK, 0, st) + epi_gu(ACC1 + 32, PK + 4, 1024, st)
    if ntile2 == 0:
        if "p2step" in hooks:
            hooks["p2step"](A, 8)
        for x in e1:
            A(x)
        if "p2step" in hooks:
            hooks["p2step"](A, 20)
        if "special_end" in hooks:
            hooks["special_end"](A)
        return

    done = 0
    qtok = None
    published = False
    la = 1 if ntile2 == 2 else 3
    nslots = 27 * ntile2
    slot = 0
    for t in range(28):
        nxt = reads2(t + la, ntile2) if t + la < 28 else [[]] * ntile2
        bound = t + la - 1 in p2bars
        pub = not special and t == pubbar
        endbar = t == 27 and not special and "regular_end" in hooks
        if endbar or (bound and la == 1):
            A.wait(lg=0)
        if "p2step" in hooks:
            hooks["p2step"](A, t)
        for i in range(ntile2):
            A(mm2(t, i))
            if endbar and i == 0:
                A("s_barrier")
            if (bound or pub) and i == 0:
                need = None
                if bound:
                    k = p2bars.index(t + la - 1)
                    need = toks[7 + p2bars[k + 1] // 8 if k + 1 < len(p2bars) else 10]
                assert not pub or done >= nq
                A.wait_tok(need, qtok if pub else None)
                A("s_barrier")
                if pub:
                    published = True
                    if "qkv_done" in hooks:
                        hooks["qkv_done"](A, None)
            for x in nxt[i]:
                A(x)
            if i == 0:
                pop()
            if t >= 1:
                slot += 1
                upto = min(len(e1), (len(e1) * slot * 27) // (nslots * 25))
                if not special:
                    upto = max(upto, min(nq, 8 * slot))
                while done < upto:
                    tk = A(e1[done])
                    if tk and done < nq:
                        qtok = tk
                    done += 1
    assert done == len(e1) and not pend and (published or special)
    stamp(A, "p1_pass2")
    stamp(A, "rt_pass2")
    if not special and "regular_end" in hooks:
        hooks["regular_end"](A)
        return
    if special:
        e2 = epi_qk(ACC2, True, 12288, st)
    else:
        e2 = sum(final_epilogue(st), [])
    for x in e2:
        A(x)
    if special and "special_end" in hooks:
        hooks["special_end"](A)


def clear_flag(A):
    A(f"""
    s_lshl_b32 s{S_T}, s2, 7
    s_add_u32 s{S_T}, s{S_T}, {WS_FLAG}
    v_mov_b32 v1, 0
    s_mov_b64 exec, 1
    buffer_store_dword v1, off, {sr(SRD_WS, 4)}, s{S_T}
    s_mov_b64 exec, -1
    """)


def phase1_kernel(name, stamps=None, **kw):
    A = Asm()
    A(f".globl {name}\n.p2align 8\n.type {name},@function\n{name}:")
    A("s_cmp_ge_u32 s2, 256")
    A(f"s_cbranch_scc1 {name}_exit")
    stamps = stamps or Stamps(False)
    stamps(A, "rt0")
    stamps(A, "t0")
    load_args(A)
    decode_and_addresses(A)
    A(f"s_cmp_ge_u32 s{S_CG}, 14")
    A(f"s_cbranch_scc1 {name}_q")
    A(f"s_cmp_ge_u32 s{S_CG}, 7")
    A(f"s_cbranch_scc1 {name}_v")
    st0 = A.save()
    for kind, lab in (("K", None), ("V", "_v"), ("Q4", "_q"), ("Q3", "_q3")):
        A.restore(st0)
        if lab:
            A(f"{name}{lab}:")
        if kind == "Q4":
            A(f"s_cmp_eq_u32 s{S_CG}, 15")
            A(f"s_cbranch_scc1 {name}_q3")
        program(A, kind, hooks={"stamp": stamps, "entry": clear_flag}, **kw)
        stamps(A, "p1_end")
        if stamps.enabled:
            A("s_waitcnt vmcnt(0)")
        stamps(A, "p1_drain")
        stamps(A, "rt1")
        stamps.flush(A)
        A("s_endpgm")
    A(f"{name}_exit:")
    A("s_endpgm")
    A.fix_hazards()
    return A.text(), kernel_desc(name)
```

```python
import sys
from common import *
import phase1 as p1

ST = " sc1"
LD = " sc1"

FLAG_S = WS_FLAG
FLAG_O = WS_FLAG + 0x8000
SPIN = 1 << 17

L_WO, L_RING, L_OP, L_MISC = 0, 57344, 106496, 155648
L_O = L_RING
M_HW, M_AS, M_GS, M_MAX = L_MISC, L_MISC + 2048, L_MISC + 3072, L_MISC + 4096

S_F1, S_SPIN = 27, 3
S_HEAD, S_QB, S_MB, S_NB, S_GW = range(66, 71)
S_MO, S_T, S_T2, S_T3, S_OFF, S_CNT = 54, 56, 57, 58, 60, 61
SRD_DBG, SRD_OUT = 48, 48
SRD_K, SRD_V, S_Q, S_ME, S_OO, S_OF = 72, 76, 80, 84, 86, 87
SRD_WD, SRD_WO = 72, 76
S_RA, S_RB, S_WDO, S_WOO, S_HOFF, S_GOFF, S_OUTO = range(80, 87)

VL16 = p1.VL16
VPOLL, VHW = 12, 14
OA, SB, PB, QF, KB, VB, VK, VV, VM = 16, 80, 112, 144, 176, 208, 240, 244, 252
VV0 = 10
VXA, VSW, VSR = 120, 124, 125
ACC, HB, WBUF = 16, 80, 160
GL16, GSW, GSR = 1, 2, 3
NDEF = 10
VDW0, VDW1, VTR = 9, 10, 11
VH0, VH1, VAWA, VAWB, VG = 242, 243, 244, 246, 248
ACA, TB_, TA_ = 80, 96, 112
POLLMASK = "0x3ffff"
POLL = f"buffer_load_dword v6, v{VPOLL}, {sr(SRD_WS, 4)}, 0 offen sc1"


class Gen:
    def __init__(self, name, stamps, opt=None):
        self.A = Asm()
        self.name = name
        self.stamp = stamps
        self.opt = opt or {}
        self.late = []
        self.nlab = 0

    def lab(self, s):
        self.nlab += 1
        return f"{self.name}_{s}{self.nlab}"

    def one_lane_store(self, value, soff, wave=None):
        A = self.A
        skip = None
        if wave is not None:
            skip = self.lab("skip")
            A(f"s_cmp_lg_u32 s{S_WAVE}, {wave}")
            A(f"s_cbranch_scc1 {skip}")
        A(f"v_mov_b32 v5, {value}")
        A("s_mov_b64 exec, 1")
        A.uncounted(f"buffer_store_dword v5, off, {sr(SRD_WS, 4)}, s{soff} sc1")
        A("s_mov_b64 exec, -1")
        if skip:
            A(f"{skip}:")

    def check_words(self, load, cmp_, tok, mask=None, nap=0):
        A = self.A
        back, spin = self.lab("back"), self.lab("spin")
        A.wait_tok(tok)
        if mask:
            A(f"s_mov_b64 exec, {mask}")
        A(cmp_)
        A(f"s_cbranch_vccnz {spin}")
        A(f"{back}:")
        if mask:
            A("s_mov_b64 exec, -1")

        def out(A):
            loop = spin + "_l"
            A(f"{spin}:")
            A(f"s_mov_b32 s{S_SPIN}, {SPIN}")
            A(f"{loop}:")
            if nap:
                A(f"s_sleep {nap}")
            A(load)
            A("s_waitcnt vmcnt(0) lgkmcnt(0)" if load.startswith("buffer") else "s_waitcnt lgkmcnt(0)")
            A(cmp_)
            A(f"s_cbranch_vccz {back}")
            A(f"s_sub_u32 s{S_SPIN}, s{S_SPIN}, 1")
            A(f"s_cmp_lg_u32 s{S_SPIN}, 0")
            A(f"s_cbranch_scc1 {loop}")
            A(f"s_branch {back}")

        self.late.append(out)

    def masked(self, mask, text):
        self.A(f"s_mov_b64 exec, {mask}")
        t = self.A(text)
        self.A("s_mov_b64 exec, -1")
        return t

    def hooks(self, early_poll):
        A = self.A
        st = {}

        def entry(A):
            skip = self.lab("skip")
            A(f"""
            s_lshl_b32 s{S_F1}, s{p1.S_RB}, 4
            s_add_u32 s{S_F1}, s{S_F1}, s{p1.S_CG}
            s_lshl_b32 s{S_F1}, s{S_F1}, 7
            s_add_u32 s{S_F1}, s{S_F1}, {FLAG_S}
            s_cmp_lg_u32 s{S_WAVE}, 0
            s_cbranch_scc1 {skip}
            s_and_b32 s{p1.S_T}, s2, 7
            s_lshl_b32 s{p1.S_T}, s{p1.S_T}, 1
            s_lshr_b32 s{p1.S_T2}, s2, 7
            s_add_u32 s{p1.S_T}, s{p1.S_T}, s{p1.S_T2}
            s_bfe_u32 s{p1.S_T2}, s2, 0x40003
            s_lshl_b32 s{p1.S_T2}, s{p1.S_T2}, 6
            s_add_u32 s{p1.S_T}, s{p1.S_T}, s{p1.S_T2}
            s_lshl_b32 s{p1.S_T}, s{p1.S_T}, 7
            s_add_u32 s{p1.S_T}, s{p1.S_T}, {FLAG_O}
            v_mov_b32 v10, 0
            v_lshlrev_b32 v11, 11, v0
            s_mov_b64 exec, 15
            """)
            A.uncounted(f"buffer_store_dword v10, v11, {sr(SRD_WS, 4)}, s{p1.S_T} offen sc1")
            A("s_mov_b64 exec, 1")
            A.uncounted(f"buffer_store_dword v10, off, {sr(SRD_WS, 4)}, s{S_F1} sc1")
            A("s_mov_b64 exec, -1")
            A(f"{skip}:")

        def p1bar(A, stg):
            if stg != 4:
                return
            srd(A, SRD_DBG, P_DBG, 256)
            skip = self.lab("skip")
            A(f"""
            s_cmp_lg_u32 s{S_WAVE}, 0
            s_cbranch_scc1 {skip}
            s_and_b32 s3, s2, 3
            s_lshl_b32 s3, s3, 6
            v_mov_b32 v13, 1
            s_mov_b64 exec, 1
            """)
            A.uncounted(f"buffer_atomic_add v13, off, {sr(SRD_DBG, 4)}, s3 sc1")
            A("s_mov_b64 exec, -1")
            A(f"{skip}:")

        dbg_load = f"buffer_load_dword v7, v8, {sr(SRD_DBG, 4)}, 0 offen sc1"

        def p2step(A, t):
            if t == 8:
                A(f"""
                s_lshl_b32 s3, s{S_WAVE}, 9
                s_add_u32 s3, s3, {L_MISC}
                v_lshl_add_u32 v8, v0, 3, s3
                v_mov_b64 v[6:7], 0
                ds_write_b64 v8, v[6:7]
                v_and_b32 v8, 3, v0
                v_lshlrev_b32 v8, 6, v8
                """)
                st["dbg"] = A(dbg_load)
            if t in (4, 8, 12, 16, 20, 24):
                self.stamp(A, f"p2_{t}")
            if t == 20:
                self.check_words(dbg_load, "v_cmp_gt_u32 vcc, 64, v7", st["dbg"])
            if t == self.opt.get('polls', 23) and early_poll:
                st["poll"] = self.masked(POLLMASK, POLL)

        def qkv_done(A, _):
            self.one_lane_store(1, S_F1, wave=0)

        def regular_end(A):
            A.wait_tok(st["poll"])
            A(f"s_cmp_eq_u32 s{S_ROLE}, 0")
            A(f"s_cbranch_scc0 {self.name}_g_e2")
            A(f"s_branch {self.name}_a_e2")

        def special_end(A):
            A("s_waitcnt vmcnt(0) lgkmcnt(0)")
            A("s_barrier")
            self.one_lane_store(1, S_F1, wave=0)
            A(f"s_cmp_eq_u32 s{S_ROLE}, 0")
            A(f"s_cbranch_scc0 {self.name}_g_plain")
            A(f"s_branch {self.name}_a_plain")

        return dict(stamp=self.stamp, entry=entry, idle=lambda A, role: self.precompute(A, role), label=self.lab, p1bar=p1bar, p2step=p2step, qkv_done=qkv_done,
                    regular_end=regular_end, special_end=special_end)

    def precompute(self, A, role):
        T, T2 = 0, 1
        A(f"""
        s_and_b32 s{T}, s2, 7
        s_lshr_b32 s{T2}, s2, 3
        s_lshl_b32 s{S_HEAD}, s{T}, 1
        s_lshr_b32 s{S_QB}, s2, 7
        s_add_u32 s{S_HEAD}, s{S_HEAD}, s{S_QB}
        s_and_b32 s{S_QB}, s{T2}, 15
        s_lshl_b32 s{S_MB}, s{T}, 2
        s_and_b32 s{S_NB}, s{T2}, 3
        s_add_u32 s{S_MB}, s{S_MB}, s{S_NB}
        s_lshr_b32 s{S_NB}, s{T2}, 2
        s_and_b32 s{S_GW}, s{S_WAVE}, 3
        s_lshl_b32 s{T}, s{S_WAVE}, 8
        s_add_u32 s{T}, s{T}, {M_HW}
        v_lshl_add_u32 v{VHW}, v0, 2, s{T}
        """)
        if role == 0:
            self.precompute_a(A)
        else:
            self.precompute_g(A)

    def precompute_a(self, A):
        T, T2 = 0, 1
        a0, a1 = S_Q, S_Q + 1
        A(f"""
        s_mul_i32 s{T}, s{S_HEAD}, 28
        s_add_u32 s{T2}, s{T}, 27
        s_lshr_b32 s{a0}, s{T}, 6
        s_lshr_b32 s{a1}, s{T2}, 6
        s_sub_u32 s{a1}, s{a1}, s{a0}
        v_and_b32 v5, 1, v0
        v_mul_u32_u24 v5, s{a1}, v5
        v_bfe_u32 v6, v0, 1, 1
        v_mad_u32_u24 v5, v6, 7, v5
        v_bfe_u32 v6, v0, 2, 2
        v_lshl_add_u32 v5, v6, 4, v5
        s_lshl_b32 s{a1}, s{S_GW}, 6
        s_add_u32 s{a1}, s{a1}, s{a0}
        v_add_u32 v5, s{a1}, v5
        s_lshl_b32 s{a1}, s{S_QB}, 4
        s_add_u32 s{a1}, s{a1}, 14
        s_lshr_b32 s{T}, s{T}, 8
        s_lshr_b32 s{T2}, s{T2}, 8
        s_add_u32 s{T}, s{T}, s{a1}
        s_add_u32 s{T2}, s{T2}, s{a1}
        v_writelane_b32 v5, s{T}, 16
        v_writelane_b32 v5, s{T2}, 17
        v_lshlrev_b32 v5, 7, v5
        v_add_u32 v{VPOLL}, {FLAG_S}, v5
        v_lshrrev_b32 v5, 5, v0
        v_mul_u32_u24 v5, {7168 - 512}, v5
        v_add_u32 v{VV0}, v5, v{VL16}
        s_mul_i32 s{S_OO}, s{S_HEAD}, 7
        s_lshr_b32 s{S_OO}, s{S_OO}, 1
        s_lshl_b32 s{S_OO}, s{S_OO}, 9
        s_mul_i32 s{T2}, s{S_GW}, {16 * 28672}
        s_add_u32 s{T}, s{T2}, s{S_OO}
        s_add_u32 s{T}, s{T}, {WS_K}
        """)
        srd(A, SRD_K, P_WS, 16 * 28672, add=f"s{T}")
        A(f"""
        s_mul_i32 s{T}, s{S_HEAD}, 448
        s_add_u32 s{T}, s{T}, s{T2}
        s_add_u32 s{T}, s{T}, {WS_V}
        """)
        srd(A, SRD_V, P_WS, 16 * 28672, add=f"s{T}")
        A(f"s_lshl_b32 s{T2}, s{S_QB}, 2")
        for j in range(4):
            A(f"""
            s_add_u32 s{T}, s{S_GW}, {j}
            s_and_b32 s{T}, s{T}, 3
            s_add_u32 s{T}, s{T}, s{T2}
            s_mul_i32 s{T}, s{T}, 28672
            s_add_u32 s{S_Q + j}, s{T}, s{S_OO}
            """)
        A(f"""
        s_add_u32 s{T}, s{T2}, s{S_GW}
        s_lshl_b32 s{T}, s{T}, 4
        s_add_u32 s{T}, s{T}, s{S_HEAD}
        s_lshl_b32 s{S_OO}, s{T}, 11
        s_add_u32 s{S_OO}, s{S_OO}, {WS_O}
        s_lshl_b32 s{S_OF}, s{T}, 7
        s_add_u32 s{S_OF}, s{S_OF}, {FLAG_O}
        s_mov_b32 s{S_ME}, 0x0fffffff
        s_mov_b32 s{S_ME + 1}, 0x0fffffff
        """)

    def precompute_g(self, A):
        T, T2 = 0, 1
        srd(A, SRD_WD, P_WD, F * D * 2)
        srd(A, SRD_WO, P_WO, D * D * 2)
        A(f"""
        v_lshrrev_b32 v5, 3, v0
        v_mul_u32_u24 v6, 896, v5
        v_bfe_u32 v5, v0, 4, 1
        v_lshlrev_b32 v5, 2, v5
        v_and_b32 v7, 7, v0
        v_xor_b32 v5, v5, v7
        v_lshl_add_u32 v{VDW0}, v5, 4, v6
        v_add_u32 v{VDW1}, {7168 - 1024}, v{VDW0}
        s_mul_i32 s{S_RB}, s{S_GW}, 14336
        s_mul_i32 s{S_RA}, s{S_GW}, 12288
        s_add_u32 s{S_RA}, s{S_RA}, {L_RING}
        s_lshl_b32 s{T}, s{S_NB}, 7
        s_mul_i32 s{S_WDO}, s{S_GW}, {448 * 896}
        s_add_u32 s{S_WDO}, s{S_WDO}, s{T}
        s_mul_i32 s{S_WOO}, s{S_GW}, {112 * 896}
        s_add_u32 s{S_WOO}, s{S_WOO}, s{T}
        s_and_b32 s{T2}, s{S_GW}, 1
        s_lshl_b32 s{S_OUTO}, s{T2}, 6
        s_add_u32 s{S_OUTO}, s{S_OUTO}, s{T}
        s_lshl_b32 s{T2}, s{T2}, 3
        v_and_b32 v5, 1, v0
        v_lshlrev_b32 v5, 2, v5
        v_bfe_u32 v6, v0, 1, 1
        v_add_u32 v5, v5, v6
        v_bfe_u32 v6, v0, 4, 1
        v_lshl_add_u32 v5, v6, 1, v5
        v_and_b32 v6, 8, v0
        v_xor_b32 v5, v5, v6
        v_xor_b32 v5, s{T2}, v5
        v_lshrrev_b32 v6, 5, v0
        v_bfe_u32 v7, v0, 2, 2
        v_lshl_add_u32 v6, v6, 2, v7
        v_lshlrev_b32 v6, 7, v6
        v_lshl_add_u32 v{VTR}, v5, 3, v6
        s_lshr_b32 s{T}, s{S_GW}, 1
        s_lshl_b32 s{T2}, s{S_MB}, 1
        s_add_u32 s{T}, s{T}, s{T2}
        s_lshl_b32 s{S_GOFF}, s{T}, 7
        s_add_u32 s{S_GOFF}, s{S_GOFF}, {WS_G}
        s_mul_i32 s{T}, s{T}, {32 * 896}
        s_add_u32 s{S_OUTO}, s{S_OUTO}, s{T}
        s_mul_i32 s{S_HOFF}, s{S_MB}, {2 * 114688}
        s_mul_i32 s{T}, s{S_GW}, {28 * 1024}
        s_add_u32 s{S_HOFF}, s{S_HOFF}, s{T}
        s_add_u32 s{S_HOFF}, s{S_HOFF}, {WS_H}
        s_lshr_b32 s{T}, s{S_MB}, 1
        s_lshl_b32 s{T}, s{T}, 4
        s_mul_i32 s{T2}, s{S_GW}, 7
        s_lshr_b32 s{T2}, s{T2}, 1
        s_add_u32 s{T}, s{T}, s{T2}
        s_lshl_b32 s{T}, s{T}, 7
        s_add_u32 s{T}, s{T}, {FLAG_S}
        v_and_b32 v5, 3, v0
        v_lshl_add_u32 v{VPOLL}, v5, 7, s{T}
        """)

    def k_load(self, b):
        return [f"buffer_load_dwordx4 {vr(KB + 8 * b, 4)}, v{VK + b}, {sr(SRD_K, 4)}, s{S_OFF} offen{LD}",
                f"buffer_load_dwordx4 {vr(KB + 8 * b + 4, 4)}, v{VK + b}, {sr(SRD_K, 4)}, s{S_OFF} offen offset:1024{LD}"]

    def v_load(self, b):
        return [f"s_mov_b64 exec, {sr(S_ME, 2)}",
                f"buffer_load_dwordx4 {vr(VB + 8 * b, 4)}, v{VV + 2 * b}, {sr(SRD_V, 4)}, s{S_OFF} offen{LD}",
                f"buffer_load_dwordx4 {vr(VB + 8 * b + 4, 4)}, v{VV + 2 * b + 1}, {sr(SRD_V, 4)}, s{S_OFF} offen{LD}",
                "s_mov_b64 exec, -1"]

    @staticmethod
    def qk(i, half):
        b, j = (i >> 2) & 3, i & 3
        return mfma(SB + 16 * (i & 1), KB + 8 * b + 4 * half, QF + 8 * j + 4 * half, "0" if half == 0 else None)

    @staticmethod
    def pv(i, half):
        b, j = (i >> 2) & 3, i & 3
        return mfma(OA + 16 * j, VB + 8 * b + 4 * half, PB + 4 * half)

    @staticmethod
    def grp(i, g, sub):
        r = SB + 16 * (i & 1) + 4 * g
        o = []
        if sub:
            o += [f"v_sub_f32 v{r + k}, v{r + k}, v{VM + (i & 3)}" for k in range(4)]
        o += [f"v_exp_f32 v{r + k}, v{r + k}" for k in range(4)]
        o += [f"v_cvt_pk_bf16_f32 v{PB + 2 * g + k}, v{r + 2 * k}, v{r + 2 * k + 1}" for k in range(2)]
        return o

    def wait_pair(self, base):
        A = self.A
        want = {f"v{base + 7}"}
        for e in A.vm:
            if e[1] & want:
                A.wait_tok(e[0])
                return

    def v_consts(self):
        A = self.A
        A(f"""
        v_and_b32 v8, 31, v0
        v_cmp_eq_u32 vcc, 28, v8
        v_mov_b32 v8, 0x3f803f80
        v_cndmask_b32 v8, 0, v8, vcc
        v_mov_b32 v9, v8
        """)
        for r in range(0, 32, 2):
            A(f"v_mov_b64 {vr(VB + r, 2)}, v[8:9]")

    def q_loads(self):
        A = self.A
        A(f"s_mov_b32 s{S_OFF}, 0")
        for j in range(4):
            A(f"buffer_load_dwordx4 {vr(QF + 8 * j, 4)}, v{VL16}, {sr(SRD_WS, 4)}, s{S_Q + j} offen{LD}")
            A(f"buffer_load_dwordx4 {vr(QF + 8 * j + 4, 4)}, v{VL16}, {sr(SRD_WS, 4)}, s{S_Q + j} offen offset:1024{LD}")
            if j == 0:
                for x in self.k_load(0):
                    A(x)

    def kv_addresses(self):
        A = self.A
        A(f"v_mov_b32 v{VV}, v{VV0}")
        for b in range(1, 4):
            A(f"v_add_u32 v{VK + b}, {b * 28672}, v{VL16}")
        for n in range(1, 8):
            A(f"v_add_u32 v{VV + n}, {n * 14336}, v{VV0}")
        self.v_consts()

    def kv_loads(self, bs):
        for b in bs:
            for x in self.v_load(b) + self.k_load(b + 1):
                self.A(x)

    def clear_o(self):
        A = self.A
        for r in range(0, 64, 2):
            A(f"v_mov_b64 {vr(OA + r, 2)}, 0")
        for r in range(0, 4, 2):
            A(f"v_mov_b64 {vr(PB + 4 + r, 2)}, 0")

    def mask_q(self):
        A = self.A
        A(f"""
        s_bitcmp1_b32 s{S_HEAD}, 0
        s_cselect_b32 s{S_MO}, -1, 0
        s_cselect_b32 s{S_MO + 1}, 0, -1
        s_mov_b32 exec_lo, 0
        s_mov_b32 exec_hi, s{S_MO + 1}
        """)
        self.wait_pair(QF + 24)
        for j in range(4):
            A(f"v_mov_b64 {vr(QF + 8 * j + 6, 2)}, 0")
        A(f"s_mov_b32 exec_lo, s{S_MO}")
        A(f"s_mov_b32 exec_hi, 0")
        for j in range(4):
            A(f"v_mov_b64 {vr(QF + 8 * j, 2)}, 0")
        A("s_mov_b64 exec, -1")

    def exchange_addresses(self):
        A = self.A
        for j in range(4):
            A(f"""
            s_add_u32 s{S_T}, s{S_GW}, {j}
            s_and_b32 s{S_T}, s{S_T}, 3
            s_mul_i32 s{S_T}, s{S_T}, 12288
            s_add_u32 s{S_T}, s{S_T}, {L_OP + max(j - 1, 0) * 4096}
            v_add_u32 v{VXA + j}, s{S_T}, v{VL16}
            """)
        self.sync_addresses(M_AS)

    def attn_loop(self, sub):
        A = self.A
        lab = self.lab("aloop")
        if A.sm:
            A.wait(lg=0)
        A(f"s_mov_b32 s{S_CNT}, 4")
        A("s_nop 9")
        while A.vm and not A.vm[0][1]:
            A.vm.pop(0)
        st0 = A.state()
        A(f"{lab}:")
        for i in range(16):
            b, j = i >> 2, i & 3
            if j == 3:
                self.wait_pair(KB + 8 * ((b + 1) & 3))
            seq = [self.qk(i + 1, 0)] + self.grp(i, 0, sub) + [self.pv(i - 1, 1)]
            if j == 0:
                seq += self.v_load((b - 1) & 3)
                if b == 0:
                    seq += [f"s_add_u32 s{S_OFF}, s{S_OFF}, {4 * 28672}"]
            seq += self.grp(i, 1, sub) + [self.qk(i + 1, 1)]
            if j == 2:
                seq += self.k_load(b)
            seq += self.grp(i, 2, sub)
            for x in seq:
                A(x)
            if j == 0:
                self.wait_pair(VB + 8 * b)
            A(self.pv(i, 0))
            if i == 4 and not sub:
                A.uncounted(f"ds_write_b32 v{VHW}, v{VHW}")
            if i == 15:
                A(f"s_sub_u32 s{S_CNT}, s{S_CNT}, 1")
                A(f"s_cmp_lg_u32 s{S_CNT}, 0")
            for x in self.grp(i, 3, sub):
                A(x)
        A(f"s_cbranch_scc1 {lab}")
        assert A.state() == st0, (A.state(), st0)
        A("s_nop 1")
        A(self.pv(15, 1))

    def lds_sync(self, value_reg, cmp_, VSW=VSW, VSR=VSR):
        A = self.A
        A(f"ds_write_b32 v{VSW}, v{value_reg}")
        load = f"ds_read_b32 v6, v{VSR}"
        tok = A(load)
        self.check_words(load, cmp_, tok)

    def sync_addresses(self, base, VSW=VSW, VSR=VSR):
        self.A(f"""
        s_lshl_b32 s{S_T}, s{S_GW}, 8
        s_add_u32 s{S_T}, s{S_T}, {base}
        v_lshl_add_u32 v{VSW}, v0, 2, s{S_T}
        v_and_b32 v{VSR}, 3, v0
        v_lshlrev_b32 v{VSR}, 8, v{VSR}
        v_add_u32 v{VSR}, {base}, v{VSR}
        """)

    def attn_exchange(self, check):
        A = self.A
        for j in range(1, 4):
            for q in range(4):
                A(f"ds_write_b128 v{VXA + j}, {vr(OA + 16 * j + 4 * q, 4)} offset:{1024 * q}")
        if check:
            A(f"""
            v_min3_f32 v5, v{OA + 12}, v{OA + 28}, v{OA + 44}
            v_max3_f32 v7, v{OA + 12}, v{OA + 28}, v{OA + 44}
            v_add_f32 v8, v{OA + 12}, v{OA + 28}
            v_min_f32 v5, v5, v{OA + 60}
            v_max_f32 v7, v7, v{OA + 60}
            v_add_f32 v9, v{OA + 44}, v{OA + 60}
            v_cmp_nle_f32 vcc, {f32(2.0 ** -30)}, v5
            v_add_f32 v8, v8, v9
            s_mov_b32 s{S_T}, vcc_hi
            v_cmp_nge_f32 vcc, {f32(2.0 ** 30)}, v7
            s_or_b32 s{S_T}, s{S_T}, vcc_hi
            v_cmp_u_f32 vcc, v8, v8
            s_or_b32 s{S_T}, s{S_T}, vcc_hi
            s_cselect_b32 s{S_T}, 2, 1
            v_mov_b32 v5, s{S_T}
            """)
            self.stamp(A, "a_wr")
            self.lds_sync(5, "v_cmp_eq_u32 vcc, 0, v6")
            self.stamp(A, "a_sync")
            A("v_cmp_lt_u32 vcc, 1, v6")
            A(f"s_cbranch_vccnz {self.name}_slow")
        else:
            A("v_mov_b32 v5, 4")
            self.lds_sync(5, "v_cmp_gt_u32 vcc, 4, v6")

    def attn_finish(self):
        A = self.A
        R = KB
        order = [3, 0, 1, 2]
        for q in order:
            for p in range(3):
                A(f"ds_read_b128 {vr(R + 16 * p + 4 * q, 4)}, v{VXA} offset:{4096 * p + 1024 * q}")
        for n, q in enumerate(order):
            for k in range(4):
                A(f"v_add_f32 v{R + 4 * q + k}, v{R + 4 * q + k}, v{R + 16 + 4 * q + k}")
            for k in range(4):
                A(f"v_add_f32 v{OA + 4 * q + k}, v{OA + 4 * q + k}, v{R + 32 + 4 * q + k}")
            for k in range(4):
                A(f"v_add_f32 v{OA + 4 * q + k}, v{OA + 4 * q + k}, v{R + 4 * q + k}")
            if n == 0:
                A(f"v_mov_b32 v10, v{OA + 12}")
                A(f"v_mov_b32 v11, v{OA + 12}")
            if n == 1:
                A("v_permlane32_swap_b32 v10, v11")
                A("v_rcp_f32 v12, v11")
        for hf in range(2):
            for r in range(8 * hf, 8 * hf + 8):
                A(f"v_mul_f32 v{OA + r}, v{OA + r}, v12")
            for jj in range(4 * hf, 4 * hf + 4):
                A(f"v_cvt_pk_bf16_f32 v{PB + jj}, v{OA + 2 * jj}, v{OA + 2 * jj + 1}")
            if hf == 0:
                A(f"buffer_store_dwordx4 {vr(PB, 4)}, v{VL16}, {sr(SRD_WS, 4)}, s{S_OO} offen{ST}")
        A(f"""
        s_mov_b32 exec_lo, 0
        v_mov_b64 {vr(PB + 6, 2)}, 0
        s_mov_b32 exec_lo, -1
        buffer_store_dwordx4 {vr(PB + 4, 4)}, v{VL16}, {sr(SRD_WS, 4)}, s{S_OO} offen offset:1024{ST}
        """)
        self.stamp(A, "a_st")
        A("s_waitcnt vmcnt(0)")
        self.one_lane_store(1, S_OF)

    def slow_path(self):
        A = self.A
        A.clear()
        A(f"{self.name}_slow:")
        A("s_waitcnt vmcnt(0) lgkmcnt(0)")
        for j in range(4):
            A(f"v_mov_b32 v{VM + j}, 0xff800000")
        A(f"s_mov_b32 s{S_OFF}, 0")
        A(f"s_mov_b32 s{S_CNT}, 16")
        lab = self.lab("maxloop")
        A(f"{lab}:")
        for x in self.k_load(0):
            A(x)
        for j in range(4):
            A(self.qk(j, 0))
            A(self.qk(j, 1))
            s = SB + 16 * (j & 1)
            for r in range(0, 16, 2):
                A(f"v_max3_f32 v{VM + j}, v{s + r}, v{s + r + 1}, v{VM + j}")
        A(f"s_add_u32 s{S_OFF}, s{S_OFF}, 28672")
        A(f"s_sub_u32 s{S_CNT}, s{S_CNT}, 1")
        A(f"s_cmp_lg_u32 s{S_CNT}, 0")
        A(f"s_cbranch_scc1 {lab}")
        for j in range(4):
            A(f"v_mov_b32 v9, v{VM + j}")
            A(f"v_permlane32_swap_b32 v9, v{VM + j}")
            A(f"v_max_f32 v{VM + j}, v9, v{VM + j}")
            A(f"""
            s_add_u32 s{S_T}, s{S_GW}, {j}
            s_and_b32 s{S_T}, s{S_T}, 3
            s_lshl_b32 s{S_T}, s{S_T}, 8
            s_add_u32 s{S_T}, s{S_T}, {M_MAX}
            v_lshl_add_u32 v{1 + j}, v0, 2, s{S_T}
            s_lshl_b32 s{S_T}, s{S_GW}, 10
            v_add_u32 v10, s{S_T}, v{1 + j}
            ds_write_b32 v10, v{VM + j}
            """)
        A("v_mov_b32 v5, 3")
        self.lds_sync(5, "v_cmp_gt_u32 vcc, 3, v6")
        for j in range(4):
            for w in range(4):
                A(f"ds_read_b32 v{SB + w}, v{1 + j} offset:{1024 * w}")
            A(f"v_max3_f32 v{VM + j}, v{SB}, v{SB + 1}, v{SB + 2}")
            A(f"v_max_f32 v{VM + j}, v{VM + j}, v{SB + 3}")
        A(f"s_mov_b32 s{S_OFF}, 0")
        self.v_consts()
        for x in self.k_load(0):
            A(x)
        self.kv_loads((0, 1, 2))
        self.clear_o()
        A(self.qk(0, 0))
        A(self.qk(0, 1))
        self.attn_loop(True)
        self.attn_exchange(False)
        A("s_waitcnt vmcnt(0)")
        A(f"s_branch {self.name}_a_fin")

    @staticmethod
    def slot(ks):
        k = ks % 13
        return ("A", k) if k < 6 else ("B", k - 6)

    def wd_dma(self, ks):
        reg, sl = self.slot(ks)
        return [f"s_add_u32 m0, s{S_RA if reg == 'A' else S_RB}, {sl * 2048}",
                f"s_add_u32 s{S_T}, s{S_WDO}, {ks * 16 * 896}",
                f"buffer_load_dwordx4 v{VDW0}, {sr(SRD_WD, 4)}, s{S_T} offen lds",
                f"buffer_load_dwordx4 v{VDW1}, {sr(SRD_WD, 4)}, s{S_T} offen offset:1024 lds"]

    def wo_dma(self, n):
        return [f"s_add_u32 m0, s{S_RB}, {n * 2048}",
                f"s_add_u32 s{S_T}, s{S_WOO}, {n * 16 * 896}",
                f"buffer_load_dwordx4 v{VDW0}, {sr(SRD_WO, 4)}, s{S_T} offen lds",
                f"buffer_load_dwordx4 v{VDW1}, {sr(SRD_WO, 4)}, s{S_T} offen offset:1024 lds"]

    def h_load(self, ks):
        b = HB + 8 * (ks % 10)
        return [f"s_add_u32 s{S_T}, s{S_HOFF}, {ks * 1024}",
                f"buffer_load_dwordx4 {vr(b, 4)}, v{VH0}, {sr(SRD_WS, 4)}, s{S_T} offen{LD}",
                f"buffer_load_dwordx4 {vr(b + 4, 4)}, v{VH1}, {sr(SRD_WS, 4)}, s{S_T} offen{LD}"]

    def gemm_start(self):
        A = self.A
        A(f"""
        v_and_b32 v13, 7, v0
        v_lshlrev_b32 v13, 8, v13
        v_add_u32 v13, {M_HW}, v13
        v_mov_b32 v{GL16}, v{VL16}
        s_waitcnt vmcnt(0)
        ds_write_b32 v{VHW}, v{VHW}
        """)
        load = "ds_read_b32 v6, v13"
        tk = A(load)
        self.check_words(load, "v_cmp_eq_u32 vcc, 0, v6", tk, nap=1)
        self.one_lane_store(2, S_F1, wave=4)
        A(f"s_cmp_ge_u32 s{S_NB}, 7")
        A(f"s_cbranch_scc1 {self.name}_exit")

    def gemm_main(self):
        A = self.A
        toks = {}

        def issue(lst, key=None):
            for x in lst:
                t = A(x)
                if t and key is not None:
                    toks[key] = t

        def trr(ks):
            reg, sl = self.slot(ks)
            a = VAWA if reg == "A" else VAWB
            b = WBUF + 8 * (ks % 10)
            o = sl * 2048
            A.wait_tok(toks[ks])
            issue([f"ds_read_b64_tr_b16 {vr(b, 2)}, v{a} offset:{o}",
                   f"ds_read_b64_tr_b16 {vr(b + 2, 2)}, v{a} offset:{o + 1024}",
                   f"ds_read_b64_tr_b16 {vr(b + 4, 2)}, v{a + 1} offset:{o}",
                   f"ds_read_b64_tr_b16 {vr(b + 6, 2)}, v{a + 1} offset:{o + 1024}"], ("r", ks))

        def dma(ks):
            if ks >= 13:
                A.wait_tok(toks[("r", ks - 13)])
            issue(self.wd_dma(ks), ks)

        def mm(ks):
            for jj in range(4):
                A(mfma(ACC + 16 * jj, WBUF + 8 * (ks % 10) + 4 * (jj & 1), HB + 8 * (ks % 10) + 4 * (jj >> 1),
                       "0" if ks == 0 else None))

        deep = self.opt.get("gdeep", 4)
        for ks in range(deep):
            dma(ks)
        A(f"""
        v_xor_b32 v5, 64, v{VTR}
        v_add_u32 v{VAWA}, s{S_RA}, v{VTR}
        v_add_u32 v{VAWA + 1}, s{S_RA}, v5
        v_add_u32 v{VAWB}, s{S_RB}, v{VTR}
        v_add_u32 v{VAWB + 1}, s{S_RB}, v5
        s_lshr_b32 s{S_T}, s{S_GW}, 1
        s_mul_i32 s{S_T}, s{S_T}, 114688
        v_add_u32 v{VH0}, s{S_T}, v{GL16}
        s_sub_u32 s{S_T}, 114688, s{S_T}
        v_add_u32 v{VH1}, s{S_T}, v{GL16}
        v_and_b32 v5, 31, v0
        v_lshlrev_b32 v5, 2, v5
        buffer_load_dword v{VG}, v5, {sr(SRD_WS, 4)}, s{S_GOFF} offen{LD}
        """)
        self.sync_addresses(M_GS, GSW, GSR)
        for ks in range(deep, 23):
            if ks - deep < 10:
                trr(ks - deep)
            else:
                A.wait_tok(toks[ks - deep])
            dma(ks)
        tok = self.masked("15", POLL)
        self.check_words(POLL, "v_cmp_ne_u32 vcc, 2, v6", tok, mask="15")
        self.stamp(A, "g_flags")
        nh = 4
        for ks in range(nh):
            issue(self.h_load(ks))
        for ks in range(28 - NDEF):
            mm(ks)
            for _ in range(2 if ks >= 12 else 1):
                if nh < 28:
                    assert nh - 10 <= ks
                    issue(self.h_load(nh))
                    nh += 1
            trr(ks + 10)
            if 1 <= ks <= 5:
                dma(ks + 22)
        assert nh == 28
        A.wait_tok(toks[("r", 25)])
        for n in range(7):
            issue(self.wo_dma(n))
        A(f"v_add_u32 v9, s{S_RA}, v{GL16}")
        A(f"v_subrev_u32 v13, {M_GS - M_AS}, v{GSR}")
        A("s_waitcnt lgkmcnt(0)")
        self.stamp(A, "g_pre")
        load = "ds_read_b32 v6, v13"
        tk = A(load)
        self.check_words(load, "v_cmp_eq_u32 vcc, 0, v6", tk, nap=2)
        for ks in range(28 - NDEF, 28):
            mm(ks)
        for jj in range(1, 4):
            for q in range(4):
                A(f"ds_write_b128 v9, {vr(ACC + 16 * jj + 4 * q, 4)} offset:{4096 * (jj - 1) + 1024 * q}")
        self.stamp(A, "g_loop")
        self.lds_sync(GSW, "v_cmp_eq_u32 vcc, 0, v6", GSW, GSR)
        for jj in range(1, 4):
            A(f"""
            s_xor_b32 s{S_T}, s{S_GW}, {jj}
            s_mul_i32 s{S_T}, s{S_T}, 12288
            s_add_u32 s{S_T}, s{S_T}, {L_RING + 4096 * (jj - 1)}
            v_add_u32 v9, s{S_T}, v{GL16}
            """)
            for q in range(4):
                A(f"ds_read_b128 {vr(ACC + 16 * jj + 4 * q, 4)}, v9 offset:{1024 * q}")
        for jj in range(1, 4):
            for r in range(0, 16, 2):
                A(f"v_pk_add_f32 {vr(ACC + r, 2)}, {vr(ACC + r, 2)}, {vr(ACC + 16 * jj + r, 2)}")

    def tail(self, role):
        A = self.A
        L16 = GL16 if role else VL16
        A(f"""
        s_lshl_b32 s{S_T}, s{S_MB}, 5
        s_add_u32 s{S_T}, s{S_T}, s{S_GW}
        s_lshl_b32 s{S_MO}, s{S_T}, 7
        s_add_u32 s{S_MO}, s{S_MO}, {FLAG_O + role * 2048}
        v_lshlrev_b32 v5, 9, v0
        s_lshl_b32 s{S_T3}, s{S_T}, 11
        s_add_u32 s{S_T3}, s{S_T3}, {WS_O + role * 32768}
        s_lshl_b32 s{S_T2}, s{S_GW}, 11
        """)
        load = f"buffer_load_dword v6, v5, {sr(SRD_WS, 4)}, s{S_MO} offen sc1"
        if role == 1:
            A("s_waitcnt vmcnt(0)")
        tok = self.masked("15", load)
        if role == 1:
            srd(A, SRD_OUT, P_OUT, S * D * 2)
            A(f"""
            s_lshr_b32 s{S_T}, s{S_GW}, 1
            s_lshl_b32 s{S_OFF}, s{S_T}, 15
            s_add_u32 s{S_OFF}, s{S_OFF}, {L_O}
            v_add_u32 v14, s{S_OFF}, v{L16}
            v_and_b32 v10, 31, v0
            v_mul_u32_u24 v10, 896, v10
            v_lshrrev_b32 v13, 5, v0
            v_lshl_add_u32 v10, v13, 5, v10
            """)
        A.wait(lg=0)
        self.stamp(A, "t_bar0")
        A("s_barrier")
        self.stamp(A, "t_bar1")
        self.check_words(load, "v_cmp_ne_u32 vcc, 1, v6", tok, mask="15")
        self.stamp(A, "t_flag")
        toks = []
        for step in range(4):
            A(f"s_add_u32 m0, s{S_T2}, {L_O + role * 32768 + step * 8192}")
            A(f"s_add_u32 s{S_T}, s{S_T3}, {step * 8192}")
            for q in range(2):
                t = A(f"buffer_load_dwordx4 v{L16}, {sr(SRD_WS, 4)}, s{S_T} offen offset:{1024 * q} sc1 lds")
            toks.append(t)
        A.wait_tok(toks[0])
        A("s_barrier")
        self.stamp(A, "t_odata")
        if role == 0:
            for step in range(1, 4):
                A.wait_tok(toks[step])
                A("s_barrier")
            return

        def rd(k):
            o = (28 * (k >> 1) + 16 * (k & 1)) * 128
            b = k % 4
            return [f"ds_read_b128 {vr(TB_ + 4 * b, 4)}, v14 offset:{k * 1024}",
                    f"ds_read_b64_tr_b16 {vr(TA_ + 4 * b, 2)}, v{VTR} offset:{o}",
                    f"ds_read_b64_tr_b16 {vr(TA_ + 4 * b + 2, 2)}, v{VTR} offset:{o + 1024}"]

        for k in range(3):
            for x in rd(k):
                A(x)
        for k in range(32):
            A(mfma(ACA, TA_ + 4 * (k % 4), TB_ + 4 * (k % 4), "0" if k == 0 else None))
            if k + 3 < 32:
                if (k + 3) % 8 == 0:
                    A.wait_tok(toks[(k + 3) // 8])
                    A("s_barrier")
                for x in rd(k + 3):
                    A(x)
        self.stamp(A, "t_mm")
        for hf in range(2):
            for r in range(8 * hf, 8 * hf + 8):
                A(f"v_sub_f32 v{ACA + r}, v{ACA + r}, v{ACC + r}")
            for r in range(8 * hf, 8 * hf + 8):
                A(f"v_fma_f32 v{ACA + r}, v{VG}, v{ACA + r}, v{ACC + r}")
            for jj in range(4):
                A(f"v_cvt_pk_bf16_f32 v{TA_ + 4 * hf + jj}, v{ACA + 8 * hf + 2 * jj}, v{ACA + 8 * hf + 2 * jj + 1}")
            A(f"buffer_store_dwordx4 {vr(TA_ + 4 * hf, 4)}, v10, {sr(SRD_OUT, 4)}, s{S_OUTO} offen offset:{16 * hf}")

    def finish(self):
        A = self.A
        if self.stamp.enabled:
            A("s_waitcnt vmcnt(0)")
            self.stamp(A, "t_end")
            self.stamp(A, "rt_end")
            self.stamp.flush(A)
        A("s_endpgm")

    def build(self):
        A, name = self.A, self.name
        A(f".globl {name}\n.p2align 8\n.type {name},@function\n{name}:")
        A("s_cmp_ge_u32 s2, 256")
        A(f"s_cbranch_scc1 {name}_exit")
        self.stamp(A, "rt0")
        self.stamp(A, "t0")
        load_args(A)
        p1.decode_and_addresses(A)
        A(f"s_cmp_ge_u32 s{p1.S_CG}, 14")
        A(f"s_cbranch_scc1 {name}_q")
        A(f"s_cmp_ge_u32 s{p1.S_CG}, 7")
        A(f"s_cbranch_scc1 {name}_v")
        st0 = A.save()
        ends = {}
        for kind, lab in (("K", None), ("V", "_v"), ("Q4", "_q"), ("Q3", "_q3")):
            A.restore(st0)
            if lab:
                A(f"{name}{lab}:")
            if kind == "Q4":
                A(f"s_cmp_eq_u32 s{p1.S_CG}, 15")
                A(f"s_cbranch_scc1 {name}_q3")
            p1.program(A, kind, ST, self.hooks(kind in "KV"), LA0=self.opt.get("LA0", 2), LA=self.opt.get("LA", 2), pubbar=self.opt.get("pubbar", 11))
            ends[kind] = A.save()
        e2 = p1.final_epilogue(ST)
        for k in ends:
            assert all(not e[1] for e in ends[k][0]) and all(not e[1] for e in ends[k][1]), ends[k]
        A.clear()
        A(f"{name}_a_late:")
        for x in e2[0] + e2[1]:
            A(x)
        A(f"{name}_a_plain:")
        tok = self.masked(POLLMASK, POLL)
        A(f"v_mov_b32 v{VK}, v{VL16}")
        self.kv_addresses()
        self.clear_o()
        self.exchange_addresses()
        self.check_words(POLL, "v_cmp_eq_u32 vcc, 0, v6", tok, mask=POLLMASK)
        self.stamp(A, "a_flags")
        self.q_loads()
        self.kv_loads((0, 1, 2))
        A(f"ds_write_b32 v{VHW}, v{VHW}")
        A(f"s_branch {name}_a_go")
        plain = A.save()
        A.clear()
        A(f"{name}_a_e2:")
        self.masked(POLLMASK, "v_cmp_eq_u32 vcc, 0, v6")
        A(f"s_cbranch_vccnz {name}_a_late")
        self.stamp(A, "a_flags")
        A(f"v_mov_b32 v{VK}, v{VL16}")
        self.q_loads()
        self.kv_addresses()
        self.kv_loads((0,))
        for x in e2[0] + e2[1]:
            A(x)
        self.kv_loads((1, 2))
        self.clear_o()
        self.exchange_addresses()
        assert [x for x in A.state()[0] if x] == [tuple(sorted(e[1])) for e in plain[0]]
        A.restore(plain)
        A.lg = []
        A(f"{name}_a_go:")
        self.mask_q()
        A(self.qk(0, 0))
        A(self.qk(0, 1))
        A("s_setprio 1")
        self.stamp(A, "a_first")
        self.attn_loop(False)
        self.stamp(A, "a_loop")
        self.stamp(A, "rt_loop")
        self.attn_exchange(True)
        A(f"{name}_a_fin:")
        self.attn_finish()
        self.stamp(A, "a_pub")
        A(f"s_cmp_ge_u32 s{S_NB}, 7")
        A(f"s_cbranch_scc1 {name}_a_done")
        self.tail(0)
        A(f"{name}_a_done:")
        self.finish()
        A.clear()
        A(f"{name}_g_e2:")
        for x in e2[0] + e2[1]:
            A(x)
        A(f"{name}_g_plain:")
        self.gemm_start()
        self.gemm_main()
        self.tail(1)
        self.finish()
        self.slow_path()
        k = 0
        while k < len(self.late):
            A.clear()
            self.late[k](A)
            k += 1
        A(f"{name}_exit:")
        A("s_endpgm")
        pads = A.fix_hazards()
        return A.text(), kernel_desc(name), pads


HEADER = open("gated_mix__mha_block__glu_gated_geglu__prompt.s.ref").read().split("; Override")[0]


def main():
    diag = "diag" in sys.argv
    name = "gated_mix__mha_block__glu_gated_geglu__prompt_kernel"
    sets = {"diag": "rt0 t0 p1_pass1 p1_pass2 a_flags a_first a_loop a_pub t_flag t_odata t_end rt_end g_flags g_pre g_loop",
            "diagt": "rt0 t0 a_loop a_wr a_sync a_st a_pub t_bar0 t_bar1 t_flag t_odata t_mm t_end g_loop rt_end",
            "diagp": "rt0 t0 p1_pass1 p2_8 p2_12 p2_16 p1_pass2 a_flags a_first t_end rt_end",
            "diagq": "rt0 t0 karg dma0 p1_first p1_pass1 p2_4 t_end rt_end"}
    which = [a for a in sys.argv if a in sets]
    diag = bool(which)
    st = Stamps(diag, sets[which[0]].split() if diag else None)
    opt = {a.split("=")[0]: int(a.split("=")[1]) for a in sys.argv[1:] if "=" in a}
    g = Gen(name, st, opt)
    code, kd, pads = g.build()
    print(HEADER.rstrip())
    print("; @launch grid=(256,1,1) block=(512,1,1) lds=163840")
    if diag:
        print("; stamps: " + " ".join(st.only))
    print('.amdgcn_target "amdgcn-amd-amdhsa--gfx950"\n.text')
    print(code)
    print('.section .rodata,"a"\n.p2align 6')
    print(kd)


if __name__ == "__main__":
    main()
```

```python
from common import *

XF, ACC1, ACC2, WB = 144, 16, 64, 96
VDX0, VDX1, VDP, VDG, VDU = 120, 121, 122, 123, 124
VAX, VAP, VAG, VAGX, VL16, VSTV, VNC1 = 125, 129, 130, 132, 134, 135, 15
PK = 136
SRD_X, SRD_P, SRD_G, SRD_U, SRD_GW = 32, 36, 40, 44, 48
S_RB, S_CG, S_XO, S_PO, S_GO, S_W1K, S_W2K, S_T, S_RT, S_C, S_ST1, S_STH, S_T2, S_QS = range(52, 66)
S_ACT = 0
LX, LP, LQ = 0, 65536, 98304


def decode_and_addresses(A):
    A(f"""
    v_lshrrev_b32 v1, 6, v0
    v_and_b32 v0, 63, v0
    v_readfirstlane_b32 s{S_WAVE}, v1
    s_and_b32 s{S_T}, s2, 1
    s_lshl_b32 s{S_T}, s{S_T}, 3
    s_bfe_u32 s{S_RB}, s2, 0x30003
    s_add_u32 s{S_RB}, s{S_RB}, s{S_T}
    s_bfe_u32 s{S_T}, s2, 0x20001
    s_lshl_b32 s{S_T}, s{S_T}, 2
    s_lshr_b32 s{S_CG}, s2, 6
    s_add_u32 s{S_CG}, s{S_CG}, s{S_T}
    s_lshl_b32 s{S_W1K}, s{S_WAVE}, 10
    s_lshl_b32 s{S_W2K}, s{S_WAVE}, 11
    s_and_b32 s{S_RT}, s{S_WAVE}, 3
    s_lshr_b32 s{S_C}, s{S_WAVE}, 2
    s_cselect_b32 s{S_ROLE}, 1, 0
    v_lshlrev_b32 v{VL16}, 4, v0
    """)
    A(f"""
    v_lshrrev_b32 v2, 3, v0
    v_and_b32 v3, 7, v0
    v_lshrrev_b32 v5, 1, v2
    v_and_b32 v4, 1, v5
    s_lshl_b32 s{S_T}, s{S_WAVE}, 4
    v_add_u32 v6, s{S_T}, v2
    v_mul_u32_u24 v6, 896, v6
    v_xor_b32 v7, v3, v5
    v_lshl_add_u32 v{VDX0}, v7, 4, v6
    v_xor_b32 v7, 4, v7
    v_lshl_add_u32 v{VDX1}, v7, 4, v6
    v_add_u32 v{VDX1}, {8 * 896 - 1024}, v{VDX1}
    s_lshl_b32 s{S_T}, s{S_WAVE}, 3
    v_add_u32 v6, s{S_T}, v2
    v_lshlrev_b32 v7, 2, v4
    v_xor_b32 v7, v3, v7
    v_lshlrev_b32 v7, 4, v7
    v_mul_u32_u24 v8, 2688, v6
    v_add_u32 v{VDP}, v8, v7
    v_lshlrev_b32 v7, 1, v4
    v_xor_b32 v7, v3, v7
    v_lshlrev_b32 v7, 4, v7
    v_mul_u32_u24 v8, 3584, v6
    v_add_u32 v{VDG}, v8, v7
    v_xor_b32 v7, 64, v7
    v_add_u32 v{VDU}, v8, v7
    """)


def read_addresses(A):
    A(f"""
    v_and_b32 v2, 31, v0
    v_lshrrev_b32 v3, 5, v0
    s_lshl_b32 s{S_T}, s{S_RT}, 12
    v_lshl_add_u32 v4, v2, 7, s{S_T}
    v_bfe_u32 v5, v2, 1, 3
    v_xor_b32 v5, v5, v3
    """)
    for s in range(4):
        A(f"v_xor_b32 v6, {2 * s}, v5")
        A(f"v_lshl_add_u32 v{VAX + s}, v6, 4, v4")
    A(f"""
    v_and_b32 v2, 3, v0
    v_bfe_u32 v4, v0, 2, 2
    v_bfe_u32 v5, v0, 4, 1
    v_bfe_u32 v6, v0, 3, 1
    v_lshl_add_u32 v7, v3, 3, v4
    v_lshlrev_b32 v7, 7, v7
    s_lshl_b32 s{S_T}, s{S_C}, 3
    v_lshl_add_u32 v8, v5, 2, v2
    v_add_u32 v8, s{S_T}, v8
    v_lshlrev_b32 v9, 3, v6
    v_xor_b32 v8, v8, v9
    v_lshl_add_u32 v8, v8, 3, v7
    v_add_u32 v{VAP}, {LP}, v8
    """)


def gu_addresses(A, special):
    if special:
        A(f"""
        v_add_u32 v{VAG}, {LQ}, v8
        v_add_u32 v{VAG + 1}, {LQ + 8192}, v8
        v_mov_b32 v{VAGX}, v8
        """)
        return
    A(f"""
    v_add_u32 v8, s{S_T}, v2
    v_lshlrev_b32 v9, 2, v6
    v_xor_b32 v8, v8, v9
    v_lshlrev_b32 v9, 3, v5
    v_xor_b32 v8, v8, v9
    v_lshl_add_u32 v7, v5, 13, v7
    v_lshl_add_u32 v{VAGX}, v8, 3, v7
    v_xor_b32 v8, 4, v8
    v_lshl_add_u32 v{VAGX + 1}, v8, 3, v7
    v_add_u32 v{VAG}, {LQ}, v{VAGX}
    v_add_u32 v{VAG + 1}, {LQ}, v{VAGX + 1}
    v_mov_b32 v{VNC1}, {f32(-GELU_C1)}
    """)


def dma(m0base, m0s, voff, srd_, sbase, soff, imm=0, setm0=True):
    out = []
    if setm0:
        out.append(f"s_add_u32 m0, s{m0s}, {m0base}")
    out.append(f"s_add_u32 s{S_T2}, s{sbase}, {soff}")
    out.append(f"buffer_load_dwordx4 v{voff}, {sr(srd_, 4)}, s{S_T2} offen{' offset:%d' % imm if imm else ''} lds")
    return out


def stage_dma(stage, special, up=0):
    sl = stage % 4
    g = []
    g.append(dma(LX + sl * 16384 + up * 8192, S_W2K, VDX0, SRD_X, S_XO, stage * 128 + up * 64 * 896) +
             [f"buffer_load_dwordx4 v{VDX1}, {sr(SRD_X, 4)}, s{S_T2} offen offset:1024 lds"])
    k0 = stage * 64 + up * 32
    g.append(dma(LP + sl * 8192 + up * 4096, S_W1K, VDP, SRD_P, S_PO, k0 * 2688))
    q = LQ + sl * 16384 + up * 4096
    if special:
        g.append(dma(q, S_W1K, VDP, SRD_P, S_PO, k0 * 2688 + 128))
        g.append(dma(q + 8192, S_W1K, VDP, SRD_P, S_PO, k0 * 2688 + 256))
    else:
        g.append(dma(q, S_W1K, VDG, SRD_G, S_GO, k0 * 3584))
        g.append(dma(q + 8192, S_W1K, VDU, SRD_U, S_GO, k0 * 3584))
    return g


P2LOC = {0: (LX, 3), 1: (LQ, 3), 2: (LX, 0), 3: (LQ, 0), 4: (LX, 1), 5: (LQ, 1), 6: (LX, 2)}


def p2_dma(ch, special, up=0):
    reg, sl = P2LOC[ch]
    base = reg + sl * 16384 + up * 4096
    k0 = ch * 64 + up * 32
    if special:
        return [dma(base, S_W1K, VDP, SRD_P, S_GO, k0 * 2688)]
    return [dma(base, S_W1K, VDG, SRD_G, S_GO, k0 * 3584 + 128),
            dma(base + 8192, S_W1K, VDU, SRD_U, S_GO, k0 * 3584 + 128)]


def tr_reads(dst, addr, off):
    return [f"ds_read_b64_tr_b16 {vr(dst, 2)}, v{addr} offset:{off}",
            f"ds_read_b64_tr_b16 {vr(dst + 2, 2)}, v{addr} offset:{off + 512}"]


LA1, LA2 = 1, 1


def wb1(t):
    return WB + 12 * (t & 1) if LA1 == 1 else (WB + 12, ACC2, WB)[t % 3]


def reads1(t):
    ch, s = divmod(t, 4)
    sl = ch % 4
    b = wb1(t)
    return ([f"ds_read_b128 {vr(XF + 4 * t, 4)}, v{VAX + s} offset:{LX + sl * 16384}"] +
            tr_reads(b, VAP, sl * 8192 + s * 2048),
            tr_reads(b + 4, VAG, sl * 16384 + s * 2048),
            tr_reads(b + 8, VAG + 1, sl * 16384 + s * 2048))


def wb2(t, ntile):
    if ntile == 1:
        return WB + 4 * (t % 6)
    return WB + 12 * (t & 1) if LA2 == 1 else WB + 8 * (t % 3)


def reads2(t, ntile):
    ch, s = divmod(t, 4)
    reg, sl = P2LOC[ch]
    a = VAGX if reg == LX else VAG
    b = wb2(t, ntile)
    return [tr_reads(b + 4 * e, a + e, sl * 16384 + s * 2048) for e in range(ntile)]


def epi_gu(acc, pk, soff_expr, st):
    o = []
    T = [1, 2, 3, 4]
    for half in range(2):
        g = [acc + 4 * half + i for i in range(4)]
        u = [acc + 8 + 4 * half + i for i in range(4)]
        o += [f"v_mul_f32 v{T[i]}, v{g[i]}, v{g[i]}" for i in range(4)]
        o += [f"v_fmamk_f32 v{T[i]}, v{T[i]}, {f32(-GELU_C1 * GELU_C2)}, v{VNC1}" for i in range(4)]
        o += [f"v_mul_f32 v{T[i]}, v{T[i]}, v{g[i]}" for i in range(4)]
        o += [f"v_exp_f32 v{T[i]}, v{T[i]}" for i in range(4)]
        o += [f"v_mul_f32 v{u[i]}, v{g[i]}, v{u[i]}" for i in range(4)]
        o += [f"v_add_f32 v{T[i]}, 1.0, v{T[i]}" for i in range(4)]
        o += [f"v_rcp_f32 v{T[i]}, v{T[i]}" for i in range(4)]
        o += [f"v_mul_f32 v{u[i]}, v{u[i]}, v{T[i]}" for i in range(4)]
        o += [f"v_cvt_pk_bf16_f32 v{pk + 2 * half + i}, v{u[2 * i]}, v{u[2 * i + 1]}" for i in range(2)]
    o.append(f"s_add_u32 s{S_T}, s{S_STH}, {soff_expr}")
    o.append(f"buffer_store_dwordx4 {vr(pk, 4)}, v{VL16}, {sr(SRD_WS, 4)}, s{S_T} offen{st}")
    return o


def epi_qk(acc, scale, soff, st, base=None):
    o = []
    if scale:
        o += [f"v_mul_f32 v{acc + r}, s{S_QS}, v{acc + r}" for r in range(16)]
    o += [f"v_cvt_pk_bf16_f32 v{PK + j}, v{acc + 2 * j}, v{acc + 2 * j + 1}" for j in range(8)]
    o.append(f"s_add_u32 s{S_T}, s{base or S_ST1}, {soff}")
    for q in range(2):
        o.append(f"v_permlane32_swap_b32 v{PK + 4 * q}, v{PK + 4 * q + 2}")
        o.append(f"v_permlane32_swap_b32 v{PK + 4 * q + 1}, v{PK + 4 * q + 3}")
    for q in range(2):
        o.append(f"buffer_store_dwordx4 {vr(PK + 4 * q, 4)}, v{VL16}, {sr(SRD_WS, 4)}, s{S_T} offen offset:{1024 * q}{st}")
    return o


def epi_v(acc, st):
    o = [f"v_cvt_pk_bf16_f32 v{PK + j}, v{acc + 2 * j}, v{acc + 2 * j + 1}" for j in range(8)]
    o.append(f"s_add_u32 s{S_T}, s{S_ST1}, 14336")
    o.append(f"buffer_store_dwordx4 {vr(PK, 4)}, v{VSTV}, {sr(SRD_WS, 4)}, s{S_ST1} offen{st}")
    o.append(f"buffer_store_dwordx4 {vr(PK + 4, 4)}, v{VSTV}, {sr(SRD_WS, 4)}, s{S_T} offen{st}")
    return o


def final_epilogue(st):
    return epi_gu(ACC2, PK, 4096, st), epi_gu(ACC2 + 16, PK + 4, 5120, st)


def gate_loads(A):
    A(f"""
    s_lshl_b32 s{S_T}, s{S_RB}, 7
    s_lshl_b32 s{S_T2}, s{S_CG}, 3
    s_add_u32 s{S_T}, s{S_T}, s{S_T2}
    s_add_u32 s3, s{S_T}, s{S_WAVE}
    s_mul_i32 s{S_T}, s3, 896
    """)
    for r in range(136, 144):
        A(f"v_mov_b32 v{r}, 0")
    A(f"""
    s_mov_b32 exec_hi, 0x00ffffff
    buffer_load_dwordx4 v[136:139], v{VL16}, {sr(SRD_X, 4)}, s{S_T} offen
    buffer_load_dwordx4 v[140:143], v{VL16}, {sr(SRD_GW, 4)}, 0 offen
    s_mov_b32 exec_hi, -1
    """)


def gate_compute(A, st):
    A("v_mov_b32 v1, 0")
    for i in range(4):
        A(f"v_dot2_f32_bf16 v1, v{136 + i}, v{140 + i}, v1")
    for m in ("row_shr:1 row_mask:0xf", "row_shr:2 row_mask:0xf", "row_shr:4 row_mask:0xf", "row_shr:8 row_mask:0xf",
              "row_bcast:15 row_mask:0xa", "row_bcast:31 row_mask:0xc"):
        A(f"v_add_f32_dpp v1, v1, v1 {m} bank_mask:0xf")
    A(f"""
    v_mul_f32 v1, {f32(-LOG2E)}, v1
    v_exp_f32 v1, v1
    s_lshl_b32 s3, s3, 2
    v_add_f32 v1, 1.0, v1
    v_rcp_f32 v1, v1
    s_add_u32 s3, s3, {WS_G}
    s_mov_b32 exec_lo, 0
    s_mov_b32 exec_hi, 0x80000000
    """)
    tok = A(f"buffer_store_dword v1, off, {sr(SRD_WS, 4)}, s3{st}")
    A("s_mov_b64 exec, -1")
    return tok


def program(A, kind, st, hooks, opt):
    global LA1, LA2
    LA1, LA2 = opt.get("la1", 2), opt.get("la2", 1)
    LA0, LA = opt.get("LA0", 2), opt.get("LA", 2)
    p2bars, pubbar, popstart = (7, 15), opt.get("pubbar", 9), opt.get("popstart", 4)
    dma_a = opt.get("dma_a", 1)
    stamp = hooks["stamp"]
    special = kind == "Q"
    ntile2 = 1 if special else 2
    A(f"s_mul_i32 s{S_XO}, s{S_RB}, {128 * 896}")
    if special:
        A(f"s_and_b32 s{S_PO}, s{S_CG}, 1")
        A(f"s_lshl_b32 s{S_PO}, s{S_PO}, 9")
        A(f"s_mov_b32 s{S_GO}, 384")
    else:
        A(f"s_lshl_b32 s{S_PO}, s{S_CG}, 7")
        A(f"s_add_u32 s{S_PO}, s{S_PO}, 896")
        A(f"s_lshl_b32 s{S_GO}, s{S_CG}, 8")
    A.wait(lg=0)
    stamp(A, "karg")
    toks = {}

    def issue(groups, key):
        for g in groups:
            for x in g:
                t = A(x)
                if t:
                    toks[key] = t

    def groups_of(stg, up):
        if stg < 7:
            return stage_dma(stg, special, up)
        if stg > 10:
            return []
        c0 = 2 * (stg - 7)
        return p2_dma(c0, special, up) + (p2_dma(c0 + 1, special, up) if c0 < 6 else [])

    g0 = groups_of(0, 0)
    srd(A, SRD_X, P_X, S * D * 2)
    issue(g0[:1], 0)
    srd(A, SRD_P, P_WQKV, D * 3 * D * 2)
    issue(g0[1:2], 0)
    if not special:
        srd(A, SRD_G, P_WG, D * F * 2)
        srd(A, SRD_U, P_WU, D * F * 2)
    issue(g0[2:], 0)
    stamp(A, "dma0")
    srd(A, SRD_GW, P_GW, D * 2)
    srd(A, SRD_WS, P_WS, WS_BYTES)
    hooks["entry"](A)
    gate_loads(A)
    gatetok = A.vm[-1][0]
    for stg in range(1, LA0):
        A("s_barrier")
        issue(groups_of(stg, 0), stg)
    read_addresses(A)
    gu_addresses(A, special)
    hooks["prologue"](A)

    def side_work(role):
        A = Rec()
        S_T, S_T2 = 0, 1
        A(f"s_lshl_b32 s{S_T}, s{S_RB}, 2")
        A(f"s_add_u32 s{S_T}, s{S_T}, s{S_RT}")
        A(f"s_mul_i32 s{S_ST1}, s{S_T}, 28672")
        if special:
            A(f"s_add_u32 s{S_STH}, s{S_ST1}, {role << 11}")
            A(f"s_lshl_b32 s{S_T}, s{S_PO}, 5")
            A(f"s_add_u32 s{S_ST1}, s{S_STH}, s{S_T}")
            A(f"s_mov_b32 s{S_QS}, {f32(QSCALE)}")
        else:
            A(f"s_mul_i32 s{S_STH}, s{S_T}, 114688")
            A(f"s_lshl_b32 s{S_T}, s{S_CG}, 13")
            A(f"s_add_u32 s{S_STH}, s{S_STH}, s{S_T}")
            A(f"s_add_u32 s{S_STH}, s{S_STH}, {WS_H + (role << 11)}")
            if kind == "K":
                A(f"s_lshl_b32 s{S_T}, s{S_CG}, 12")
                A(f"s_add_u32 s{S_ST1}, s{S_ST1}, s{S_T}")
                A(f"s_add_u32 s{S_ST1}, s{S_ST1}, {WS_K + (role << 11)}")
            else:
                A(f"s_lshl_b32 s{S_T}, s{S_CG}, 10")
                A(f"s_add_u32 s{S_ST1}, s{S_ST1}, s{S_T}")
                A(f"s_add_u32 s{S_ST1}, s{S_ST1}, {WS_V - 7 * 1024 + (role << 9)}")
                A(f"v_lshrrev_b32 v1, 5, v0")
                A(f"v_mul_u32_u24 v1, {7168 - 512}, v1")
                A(f"v_add_u32 v{VSTV}, v1, v{VL16}")
        hooks["idle"](A, role)
        G = Rec()
        gate_compute(G, st)
        return A.units, G.units

    def mm1(t, i):
        b = wb1(t) + 4 * i
        c = "0" if t == 0 else None
        if kind == "V" and i == 0:
            return mfma(ACC1, XF + 4 * t, b, c)
        return mfma(ACC1 + 16 * i, b, XF + 4 * t, c)

    def mm2(t, i):
        return mfma(ACC2 + 16 * i, wb2(t, ntile2) + 4 * i, XF + 4 * t, "0" if t == 0 else None)

    A.wait_tok(toks[0], gatetok)
    A("s_barrier")
    stamp(A, "p1_first")
    stamp(A, "rt_first")
    for k in range(LA1):
        for r in reads1(k):
            for x in r:
                A(x)
    other = hooks["label"]("role1")
    A(f"s_cmp_eq_u32 s{S_ROLE}, 0")
    A(f"s_cbranch_scc0 {other}")
    sv0, toks0 = A.save(), dict(toks)

    def stream(role):
        pend = []

        def stage_groups(stg):
            if not dma_a:
                return [(g, stg) for g in groups_of(stg, 0)]
            if role:
                return []
            return [(g, stg) for pair in zip(groups_of(stg, 0), groups_of(stg, 1)) for g in pair]

        def pop(n=1):
            for _ in range(n):
                if pend:
                    g, key = pend.pop(0)
                    if opt.get("nodma"):
                        toks[key] = None
                    else:
                        issue([g], key)

        side, gate = side_work(role)
        T0, T1, TG = 1, 5, 24

        def fill(t, k):
            if opt.get("nofill") or not T0 <= t <= TG:
                return
            units, lo, hi = (gate, T0, T1) if t <= T1 else (side, T1 + 1, TG)
            n = 3 * (hi - lo + 1)
            pos = 3 * (t - lo) + k
            for u in units[len(units) * pos // n:len(units) * (pos + 1) // n]:
                for x in u:
                    tk = A(x)
                    if tk:
                        toks["gate"] = tk

        for k in range(LA0, LA + 1):
            pend += stage_groups(k)
        for t in range(28):
            if t + LA1 < 28:
                nxt = reads1(t + LA1)
            elif t < 27:
                nxt = [[], [], []]
            elif ntile2 == 1:
                nxt = [reads2(k, 1)[0] for k in range(3)]
            else:
                nxt = reads2(0, 2) + [sum(reads2(1, 2), []) if LA2 == 2 else []]
            bound = (t + LA1) % 4 == 0 if t < 25 else t == 27
            if bound:
                A.wait(lg=0)
            A(mm1(t, 0))
            if bound:
                stg = (t + LA1) // 4
                assert not pend
                need = stg if stg < 7 else 7 + p2bars[0] // 8
                stamp(A, f"b{stg}_pre")
                A.wait_tok(toks.get(need), toks.get("gate") if stg == 4 else None)
                stamp(A, f"b{stg}_vm")
                if not opt.get("nobar"):
                    A("s_barrier")
                stamp(A, f"b{stg}_post")
                hooks["p1bar"](A, stg, role)
                for k in range(stg + LA, stg + LA + 1 if stg < 7 else 11):
                    pend += stage_groups(k)
            left = (3 - LA1 - t) % 4 + 1
            npop = -(-len(pend) // left) if t < 27 else 0
            for i in range(3):
                if i:
                    A(mm1(t, i))
                for x in nxt[i]:
                    A(x)
                pop((npop + (0, 2, 1)[i]) // 3)
                fill(t, i)
        stamp(A, "p1_pass1")
        stamp(A, "rt_pass1")
        if "p1exit" in hooks:
            hooks["p1exit"]()
            return
        if kind == "K":
            e1 = epi_qk(ACC1, False, 0, st)
        elif kind == "V":
            e1 = epi_v(ACC1, st)
        else:
            e1 = sum([epi_qk(ACC1 + 16 * k, True, WS_Q + 4096 * k, st) for k in range(3)], [])
        nq = len(e1)
        if not special:
            e1 = e1 + epi_gu(ACC1 + 16, PK, 0, st) + epi_gu(ACC1 + 32, PK + 4, 1024, st)

        if opt.get("nost"):
            e1 = [("s_nop 0" if x.startswith("buffer_store") else x) for x in e1]
        if opt.get("noe1"):
            e1 = e1[:nq]
        if opt.get("notrans"):
            e1 = [x.replace("v_exp_f32", "v_mov_b32").replace("v_rcp_f32", "v_mov_b32") for x in e1]

        def bar_token(k):
            return toks.get(7 + p2bars[k + 1] // 8 if k + 1 < len(p2bars) else 10)

        if special:
            idle = hooks["label"]("idle")
            A(f"s_bitcmp{1 - role}_b32 s{S_CG}, 0")
            A(f"s_cbranch_scc1 {idle}")
            sv, pend1, toks1 = A.save(), list(pend), dict(toks)
        done = 0
        qtok = None
        la = LA2 if ntile2 == 2 else 3
        nslots = 27 * ntile2
        slot = 0
        for t in range(28):
            nxt = reads2(t + la, ntile2) if t + la < 28 else [[]] * ntile2
            bound = t + la - 1 in p2bars
            pub = not special and t == pubbar
            endbar = t == 27 and not special
            if endbar or (bound and not special):
                A.wait(lg=0)
            hooks["p2step"](A, t, role)
            for i in range(ntile2):
                A(mm2(t, i))
                if endbar and i == 0:
                    A("s_barrier")
                if (bound or pub) and i == 0:
                    assert not pub or done >= nq
                    stamp(A, f"c{t}_pre")
                    A.wait_tok(bar_token(p2bars.index(t + la - 1)) if bound else None, qtok if pub else None)
                    stamp(A, f"c{t}_vm")
                    A("s_barrier")
                    stamp(A, f"c{t}_post")
                    if pub:
                        hooks["qkv_done"](A, role)
                for x in nxt[i]:
                    A(x)
                if special:
                    pop(2)
                elif t >= popstart and (dma_a or i == 0):
                    pop()
                upto = 0
                if t >= 1:
                    slot += 1
                    upto = min(len(e1), (len(e1) * slot * 27) // (nslots * 25))
                if not special:
                    upto = max(upto, min(nq, 8 * (2 * t + i + 1)))
                while done < upto:
                    tk = A(e1[done])
                    if tk and done < nq:
                        qtok = tk
                    done += 1
        assert done == len(e1) and not pend
        stamp(A, "p1_pass2")
        stamp(A, "rt_pass2")
        if "p2exit" in hooks:
            hooks["p2exit"]()
            if special:
                A(f"{idle}:")
                A("s_barrier\ns_barrier")
                hooks["p2exit"]()
            return
        if not special:
            hooks["regular_end"](A, role)
            return
        for x in epi_qk(ACC2, True, WS_Q + 12288, st, base=S_STH):
            A(x)
        fin = hooks["label"]("fin")
        A(f"s_branch {fin}")
        A(f"{idle}:")
        A.restore(sv)
        pend[:] = pend1
        toks.clear()
        toks.update(toks1)
        pop(99)
        hooks["p2step"](A, 8, role)
        n = len(e1) // 3
        for k in range(3):
            for x in e1[k * n:(k + 1) * n]:
                A(x)
            if k < len(p2bars):
                A.wait_tok(bar_token(k))
                A("s_barrier")
        hooks["p2step"](A, 20, role)
        A(f"{fin}:")
        hooks["special_end"](A, role)

    for role in (0, 1):
        if role:
            A(f"{other}:")
            A.restore(sv0)
            toks.clear()
            toks.update(toks0)
        stream(role)
        assert "p1exit" in hooks or "p2exit" in hooks or (all(not e[1] for e in A.vm) and all(not e[1] for e in A.lg)), A.state()
```

```python
import sys
from common import *
import phase1 as p1

ST = " sc1"
LD = " sc1"

FLAG_S = WS_FLAG
FLAG_O = WS_FLAG + 0x8000
SPIN = 1 << 17

L_WO, L_RING, L_OP, L_MISC = 0, 57344, 106496, 155648
L_O = L_RING
L_TR = 131072
M_HW, M_AS, M_GS, M_MAX = L_MISC, L_MISC + 2048, L_MISC + 3072, L_MISC + 4096

S_F1, S_SPIN = 27, 3
S_HEAD, S_QB, S_MB, S_NB, S_GW = range(66, 71)
S_AG = 61
S_MO, S_T, S_T2, S_T3, S_OFF, S_CNT = 54, 56, 57, 58, 60, 61
SRD_DBG, SRD_OUT = 48, 48
SRD_K, SRD_V, S_Q, S_ME, S_OO, S_OF = 72, 76, 80, 84, 86, 87
SRD_WD, SRD_WO = 72, 76
S_RA, S_RB, S_WDO, S_WOO, S_HOFF, S_GOFF, S_OUTO = range(80, 87)

VL16 = p1.VL16
VPOLL, VHW = 12, 14
OA, SB, PB, VB, KB, QF = 16, 80, 112, 160, 192, 224
VV0, VGA, VONE, VM, VHI = 10, 11, 13, 1, 7
S_LO = 62
VK = [VL16, 144, 145, 146]
VV = [VV0] + list(range(147, 154))
VXA, VSW, VSR = 154, 158, 159
ACC, HB, WBUF = 16, 80, 160
GL16, GSW, GSR = 1, 2, 3
NDEF = 10
VDW0, VDW1, VTR = 9, 10, 11
VH0, VH1, VAWA, VAWB, VG = 242, 243, 244, 246, 248
ACA, TB_, TA_ = 80, 96, 112
POLLMASK = "0x1ffff"
POLL = f"buffer_load_dword v6, v{VPOLL}, {sr(SRD_WS, 4)}, 0 offen sc1"


class Gen:
    def __init__(self, name, stamps, opt=None):
        self.A = Asm()
        self.name = name
        self.stamp = stamps
        self.opt = opt or {}
        self.late = []
        self.nlab = 0

    def lab(self, s):
        self.nlab += 1
        return f"{self.name}_{s}{self.nlab}"

    def one_lane_store(self, value, soff, wave=None, tmp=5):
        A = self.A
        skip = None
        if wave is not None:
            skip = self.lab("skip")
            A(f"s_cmp_lg_u32 s{S_WAVE}, {wave}")
            A(f"s_cbranch_scc1 {skip}")
        A(f"v_mov_b32 v{tmp}, {value}")
        A("s_mov_b64 exec, 1")
        A.uncounted(f"buffer_store_dword v{tmp}, off, {sr(SRD_WS, 4)}, s{soff} sc1")
        A("s_mov_b64 exec, -1")
        if skip:
            A(f"{skip}:")

    def check_words(self, load, cmp_, tok, mask=None, nap=0):
        A = self.A
        back, spin = self.lab("back"), self.lab("spin")
        A.wait_tok(tok)
        if mask:
            A(f"s_mov_b64 exec, {mask}")
        A(cmp_)
        A(f"s_cbranch_vccnz {spin}")
        A(f"{back}:")
        if mask:
            A("s_mov_b64 exec, -1")

        def out(A):
            loop = spin + "_l"
            A(f"{spin}:")
            A(f"s_mov_b32 s{S_SPIN}, {SPIN}")
            A(f"{loop}:")
            if nap:
                A(f"s_sleep {nap}")
            A(load)
            A("s_waitcnt vmcnt(0) lgkmcnt(0)" if load.startswith("buffer") else "s_waitcnt lgkmcnt(0)")
            A(cmp_)
            A(f"s_cbranch_vccz {back}")
            A(f"s_sub_u32 s{S_SPIN}, s{S_SPIN}, 1")
            A(f"s_cmp_lg_u32 s{S_SPIN}, 0")
            A(f"s_cbranch_scc1 {loop}")
            A(f"s_branch {back}")

        self.late.append(out)

    def masked(self, mask, text):
        self.A(f"s_mov_b64 exec, {mask}")
        t = self.A(text)
        self.A("s_mov_b64 exec, -1")
        return t

    def hooks(self, early_poll):
        A = self.A
        st = {}

        def entry(A):
            self.code_prefetch(A)
            skip = self.lab("skip")
            A(f"""
            s_lshl_b32 s{S_F1}, s{p1.S_RB}, 4
            s_add_u32 s{S_F1}, s{S_F1}, s{p1.S_CG}
            s_lshl_b32 s{S_F1}, s{S_F1}, 7
            s_add_u32 s{S_F1}, s{S_F1}, {FLAG_S}
            s_cmp_lg_u32 s{S_WAVE}, 0
            s_cbranch_scc1 {skip}
            s_and_b32 s{p1.S_T}, s2, 7
            s_lshl_b32 s{p1.S_T}, s{p1.S_T}, 1
            s_lshr_b32 s{p1.S_T2}, s2, 7
            s_add_u32 s{p1.S_T}, s{p1.S_T}, s{p1.S_T2}
            s_bfe_u32 s{p1.S_T2}, s2, 0x40003
            s_lshl_b32 s{p1.S_T2}, s{p1.S_T2}, 6
            s_add_u32 s{p1.S_T}, s{p1.S_T}, s{p1.S_T2}
            s_lshl_b32 s{p1.S_T}, s{p1.S_T}, 7
            s_add_u32 s{p1.S_T}, s{p1.S_T}, {FLAG_O}
            v_mov_b32 v10, 0
            v_lshlrev_b32 v11, 11, v0
            s_mov_b64 exec, 15
            """)
            A.uncounted(f"buffer_store_dword v10, v11, {sr(SRD_WS, 4)}, s{p1.S_T} offen sc1")
            A("s_mov_b64 exec, 1")
            A.uncounted(f"buffer_store_dword v10, off, {sr(SRD_WS, 4)}, s{S_F1} sc1")
            A("s_mov_b64 exec, -1")
            A(f"{skip}:")

        def p1bar(A, stg, role):
            if stg != 4:
                return
            srd(A, SRD_DBG, P_DBG, 256)
            if role:
                return
            skip = self.lab("skip")
            A(f"""
            s_cmp_lg_u32 s{S_WAVE}, 0
            s_cbranch_scc1 {skip}
            s_and_b32 s3, s2, 3
            s_lshl_b32 s3, s3, 6
            v_mov_b32 v13, 1
            s_mov_b64 exec, 1
            """)
            A.uncounted(f"buffer_atomic_add v13, off, {sr(SRD_DBG, 4)}, s3 sc1")
            A("s_mov_b64 exec, -1")
            A(f"{skip}:")

        dbg_load = f"buffer_load_dword v7, v8, {sr(SRD_DBG, 4)}, 0 offen sc1"

        def p2step(A, t, role):
            if t == 8:
                A(f"""
                s_lshl_b32 s3, s{S_WAVE}, 9
                s_add_u32 s3, s3, {L_MISC}
                v_lshl_add_u32 v8, v0, 3, s3
                v_mov_b64 v[6:7], 0
                ds_write_b64 v8, v[6:7]
                v_and_b32 v8, 3, v0
                v_lshlrev_b32 v8, 6, v8
                """)
                st["dbg"] = A(dbg_load)
            if t in (4, 8, 12, 16, 20, 24):
                self.stamp(A, f"p2_{t}")
            if t == 20:
                self.check_words(dbg_load, "v_cmp_gt_u32 vcc, 64, v7", st["dbg"])
            if early_poll and not role and t >= 4:
                early, consts = self.setup_units()
                units, lo, hi = (early, 4, 12) if t < 12 else (consts, 12, 28)
                for u in units[len(units) * (t - lo) // (hi - lo):len(units) * (t + 1 - lo) // (hi - lo)]:
                    for x in u:
                        A(x)
            if early_poll and role and t >= 16 and t % 2 == 0:
                for x in self.wd_dma((t - 16) // 2):
                    A(x)
            if t == self.opt.get('polls', 23) and early_poll and not role:
                st["poll"] = self.masked(POLLMASK, POLL)

        def qkv_done(A, role):
            if not role:
                self.one_lane_store(1, S_F1, wave=0)

        def regular_end(A, role):
            if not role:
                A.wait_tok(st["poll"])
            A(f"s_branch {self.name}_{'g' if role else 'a'}_e2")

        def special_end(A, role):
            A("s_waitcnt vmcnt(0) lgkmcnt(0)")
            A("s_barrier")
            qkv_done(A, role)
            A(f"s_branch {self.name}_{'g' if role else 'a'}_plain")

        h = dict(stamp=self.stamp, label=self.lab, entry=entry, prologue=lambda A: None, p1bar=p1bar, p2step=p2step,
                 idle=lambda A, role: self.precompute_g0(A) if role else self.precompute(A, 0),
                 qkv_done=qkv_done, regular_end=regular_end, special_end=special_end)
        if self.opt.get("p1exit"):
            h["p1exit"] = self.finish
        if self.opt.get("p2exit"):
            h["p2exit"] = self.finish
        return h

    def code_prefetch(self, A):
        if not self.opt.get("cpf", 1):
            return
        here, skip = self.lab("pc"), self.lab("skip")
        A(f"""
        s_cmp_lg_u32 s{S_WAVE}, 7
        s_cbranch_scc1 {skip}
        s_getpc_b64 s[0:1]
        {here}:
        s_sub_u32 s0, s0, {here}-{self.name}
        s_subb_u32 s1, s1, 0
        s_lshr_b32 s{p1.S_T}, s2, 3
        s_lshl_b32 s{p1.S_T}, s{p1.S_T}, 11
        v_lshl_add_u32 v10, v0, 7, s{p1.S_T}
        v_min_u32 v10, {self.name}_exit-{self.name}, v10
        s_mov_b64 exec, 0xffff
        """)
        A.uncounted("global_load_dword v11, v10, s[0:1]")
        A("s_mov_b64 exec, -1")
        A(f"{skip}:")

    def precompute(self, A, role):
        T, T2 = 0, 1
        A(f"""
        s_and_b32 s{T}, s2, 7
        s_lshr_b32 s{T2}, s2, 3
        s_lshl_b32 s{S_HEAD}, s{T}, 1
        s_lshr_b32 s{S_QB}, s2, 7
        s_add_u32 s{S_HEAD}, s{S_HEAD}, s{S_QB}
        s_and_b32 s{S_QB}, s{T2}, 15
        s_lshl_b32 s{S_MB}, s{T}, 2
        s_and_b32 s{S_NB}, s{T2}, 3
        s_add_u32 s{S_MB}, s{S_MB}, s{S_NB}
        s_lshr_b32 s{S_NB}, s{T2}, 2
        s_and_b32 s{S_GW}, s{S_WAVE}, 3
        s_lshl_b32 s{T}, s{S_WAVE}, 8
        s_add_u32 s{T}, s{T}, {M_HW}
        v_lshl_add_u32 v{VHW}, v0, 2, s{T}
        """)
        if role == 0:
            self.precompute_a(A)
        else:
            self.precompute_g(A)

    def precompute_a(self, A):
        T, T2 = 0, 1
        a0, a1 = S_Q, S_Q + 1
        A(f"""
        s_mul_i32 s{T}, s{S_HEAD}, 28
        s_add_u32 s{T2}, s{T}, 27
        s_lshr_b32 s{a0}, s{T}, 6
        s_lshr_b32 s{a1}, s{T2}, 6
        s_sub_u32 s{a1}, s{a1}, s{a0}
        v_and_b32 v5, 1, v0
        v_mul_u32_u24 v5, s{a1}, v5
        v_bfe_u32 v6, v0, 1, 1
        v_mad_u32_u24 v5, v6, 7, v5
        v_bfe_u32 v6, v0, 2, 2
        v_lshl_add_u32 v5, v6, 4, v5
        s_lshl_b32 s{a1}, s{S_GW}, 6
        s_add_u32 s{a1}, s{a1}, s{a0}
        v_add_u32 v5, s{a1}, v5
        s_lshl_b32 s{a1}, s{S_QB}, 4
        s_lshr_b32 s{T}, s{S_HEAD}, 3
        s_add_u32 s{T}, s{T}, s{a1}
        s_add_u32 s{T}, s{T}, 14
        v_writelane_b32 v5, s{T}, 16
        v_lshlrev_b32 v5, 7, v5
        v_add_u32 v{VPOLL}, {FLAG_S}, v5
        v_lshrrev_b32 v5, 5, v0
        v_mul_u32_u24 v5, {7168 - 512}, v5
        v_add_u32 v{VV0}, v5, v{VL16}
        s_mul_i32 s{S_OO}, s{S_HEAD}, 7
        s_lshr_b32 s{S_OO}, s{S_OO}, 1
        s_lshl_b32 s{S_OO}, s{S_OO}, 9
        s_mul_i32 s{T2}, s{S_GW}, {16 * 28672}
        s_add_u32 s{T}, s{T2}, s{S_OO}
        s_add_u32 s{T}, s{T}, {WS_K}
        """)
        srd(A, SRD_K, P_WS, 16 * 28672, add=f"s{T}")
        A(f"""
        s_mul_i32 s{T}, s{S_HEAD}, 448
        s_add_u32 s{T}, s{T}, s{T2}
        s_add_u32 s{T}, s{T}, {WS_V}
        """)
        srd(A, SRD_V, P_WS, 16 * 28672, add=f"s{T}")
        A(f"s_lshl_b32 s{T2}, s{S_QB}, 2")
        for j in range(4):
            A(f"""
            s_add_u32 s{T}, s{S_GW}, {j + 1}
            s_and_b32 s{T}, s{T}, 3
            s_add_u32 s{T}, s{T}, s{T2}
            s_mul_i32 s{T}, s{T}, 28672
            s_add_u32 s{S_Q + j}, s{T}, s{S_OO}
            """)
        A(f"""
        s_add_u32 s{T}, s{T2}, s{S_GW}
        s_lshl_b32 s{S_OFF}, s{T}, 7
        s_add_u32 s{S_AG}, s{S_OFF}, {WS_G}
        s_lshl_b32 s{T}, s{T}, 4
        s_add_u32 s{T}, s{T}, s{S_HEAD}
        s_lshl_b32 s{S_OO}, s{T}, 11
        s_add_u32 s{S_OO}, s{S_OO}, {WS_O}
        s_lshl_b32 s{S_OF}, s{T}, 7
        s_add_u32 s{S_OF}, s{S_OF}, {FLAG_O}
        s_mov_b32 s{S_ME}, 0x0fffffff
        s_mov_b32 s{S_ME + 1}, 0x0fffffff
        """)

    def precompute_g0(self, A):
        T = 0
        srd(A, SRD_WD, P_WD, F * D * 2)
        A(f"""
        v_lshrrev_b32 v5, 3, v0
        v_mul_u32_u24 v6, 896, v5
        v_lshrrev_b32 v5, 2, v0
        v_and_b32 v5, 4, v5
        v_and_b32 v7, 7, v0
        v_xor_b32 v5, v5, v7
        v_lshl_add_u32 v{VDW0}, v5, 4, v6
        v_add_u32 v{VDW1}, {7168 - 1024}, v{VDW0}
        s_and_b32 s{S_GW}, s{S_WAVE}, 3
        s_mul_i32 s{S_RB}, s{S_GW}, 14336
        s_mul_i32 s{S_RA}, s{S_GW}, 12288
        s_add_u32 s{S_RA}, s{S_RA}, {L_RING}
        s_lshr_b32 s{T}, s2, 5
        s_lshl_b32 s{T}, s{T}, 7
        s_mul_i32 s{S_WDO}, s{S_GW}, {448 * 896}
        s_add_u32 s{S_WDO}, s{S_WDO}, s{T}
        """)

    def precompute_g(self, A):
        T, T2 = 0, 1
        srd(A, SRD_WO, P_WO, D * D * 2)
        A(f"""
        s_lshl_b32 s{T}, s{S_NB}, 7
        s_mul_i32 s{S_WOO}, s{S_GW}, {112 * 896}
        s_add_u32 s{S_WOO}, s{S_WOO}, s{T}
        s_and_b32 s{T2}, s{S_GW}, 1
        s_lshl_b32 s{S_OUTO}, s{T2}, 6
        s_add_u32 s{S_OUTO}, s{S_OUTO}, s{T}
        s_lshl_b32 s{T2}, s{T2}, 3
        v_and_b32 v5, 1, v0
        v_lshlrev_b32 v5, 2, v5
        v_bfe_u32 v6, v0, 1, 1
        v_add_u32 v5, v5, v6
        v_bfe_u32 v6, v0, 4, 1
        v_lshl_add_u32 v5, v6, 1, v5
        v_and_b32 v6, 8, v0
        v_xor_b32 v5, v5, v6
        v_xor_b32 v5, s{T2}, v5
        v_lshrrev_b32 v6, 5, v0
        v_bfe_u32 v7, v0, 2, 2
        v_lshl_add_u32 v6, v6, 2, v7
        v_lshlrev_b32 v6, 7, v6
        v_lshl_add_u32 v{VTR}, v5, 3, v6
        s_lshr_b32 s{T}, s{S_GW}, 1
        s_lshl_b32 s{T2}, s{S_MB}, 1
        s_add_u32 s{T}, s{T}, s{T2}
        s_lshl_b32 s{S_GOFF}, s{T}, 7
        s_add_u32 s{S_GOFF}, s{S_GOFF}, {WS_G}
        s_mul_i32 s{T}, s{T}, {32 * 896}
        s_add_u32 s{S_OUTO}, s{S_OUTO}, s{T}
        s_mul_i32 s{S_HOFF}, s{S_MB}, {2 * 114688}
        s_mul_i32 s{T}, s{S_GW}, {28 * 1024}
        s_add_u32 s{S_HOFF}, s{S_HOFF}, s{T}
        s_add_u32 s{S_HOFF}, s{S_HOFF}, {WS_H}
        s_lshr_b32 s{T}, s{S_MB}, 1
        s_lshl_b32 s{T}, s{T}, 4
        s_mul_i32 s{T2}, s{S_GW}, 7
        s_lshr_b32 s{T2}, s{T2}, 1
        s_add_u32 s{T}, s{T}, s{T2}
        s_lshl_b32 s{T}, s{T}, 7
        s_add_u32 s{T}, s{T}, {FLAG_S}
        v_and_b32 v5, 3, v0
        v_lshl_add_u32 v{VPOLL}, v5, 7, s{T}
        """)

    def k_load(self, b):
        return [f"buffer_load_dwordx4 {vr(KB + 8 * b, 4)}, v{VK[b]}, {sr(SRD_K, 4)}, s{S_OFF} offen{LD}",
                f"buffer_load_dwordx4 {vr(KB + 8 * b + 4, 4)}, v{VK[b]}, {sr(SRD_K, 4)}, s{S_OFF} offen offset:1024{LD}"]

    def v_load(self, b):
        return [f"s_mov_b64 exec, {sr(S_ME, 2)}",
                f"buffer_load_dwordx4 {vr(VB + 8 * b, 4)}, v{VV[2 * b]}, {sr(SRD_V, 4)}, s{S_OFF} offen{LD}",
                f"buffer_load_dwordx4 {vr(VB + 8 * b + 4, 4)}, v{VV[2 * b + 1]}, {sr(SRD_V, 4)}, s{S_OFF} offen{LD}",
                "s_mov_b64 exec, -1"]

    @staticmethod
    def qk(i, half):
        b, j = (i >> 2) & 3, i & 3
        return mfma(SB + 16 * (i & 1), KB + 8 * b + 4 * half, QF + 8 * j + 4 * half, "0" if half == 0 else None)

    @staticmethod
    def pv(i, half, first=False):
        b, j = (i >> 2) & 3, i & 3
        return mfma(OA + 16 * j, VB + 8 * b + 4 * half, PB + 4 * half, "0" if first else None)

    @staticmethod
    def grp(i, g):
        r = SB + 16 * (i & 1) + 4 * g
        return [f"v_exp_f32 v{r + k}, v{r + k}" for k in range(4)] + \
               [f"v_cvt_pk_bf16_f32 v{PB + 2 * g + k}, v{r + 2 * k}, v{r + 2 * k + 1}" for k in range(2)]

    def wait_pair(self, base):
        A = self.A
        want = {f"v{base + 7}"}
        for e in A.vm:
            if e[1] & want:
                A.wait_tok(e[0])
                return

    def setup_units(self):
        R = Rec()
        for b in range(1, 4):
            R(f"v_add_u32 v{VK[b]}, {b * 28672}, v{VL16}")
        for n in range(1, 8):
            R(f"v_add_u32 v{VV[n]}, {n * 14336}, v{VV0}")
        for j in range(4):
            R(f"""
            s_add_u32 s0, s{S_GW}, {j + 1}
            s_and_b32 s0, s0, 3
            s_mul_i32 s0, s0, 12288
            s_add_u32 s0, s0, {L_OP + (j % 3) * 4096}
            v_add_u32 v{VXA + j}, s0, v{VL16}
            """)
        self.sync_addresses(M_AS, A=R, T=0)
        R(f"""
        v_and_b32 v{VONE}, 31, v0
        v_cmp_eq_u32 s[0:1], 28, v{VONE}
        v_mov_b32 v{VONE}, 0x3f803f80
        v_cndmask_b32 v{VONE}, 0, v{VONE}, s[0:1]
        """)
        return R.units, [[f"v_mov_b32 v{VB + r}, v{VONE}"] for r in range(32)]

    def q_loads(self):
        A = self.A
        A(f"s_mov_b32 s{S_OFF}, 0")
        for j in range(4):
            A(f"buffer_load_dwordx4 {vr(QF + 8 * j, 4)}, v{VL16}, {sr(SRD_WS, 4)}, s{S_Q + j} offen{LD}")
            A(f"buffer_load_dwordx4 {vr(QF + 8 * j + 4, 4)}, v{VL16}, {sr(SRD_WS, 4)}, s{S_Q + j} offen offset:1024{LD}")
            if j == 0:
                for x in self.k_load(0):
                    A(x)
        A(f"""
        v_and_b32 v5, 31, v0
        v_lshlrev_b32 v5, 2, v5
        buffer_load_dword v{VGA}, v5, {sr(SRD_WS, 4)}, s{S_AG} offen{LD}
        """)

    def kv_loads(self, bs):
        for b in bs:
            for x in self.v_load(b) + self.k_load(b + 1):
                self.A(x)

    def mask_q(self):
        A = self.A
        A(f"""
        s_bitcmp1_b32 s{S_HEAD}, 0
        s_cselect_b32 s{S_MO}, -1, 0
        s_cselect_b32 s{S_MO + 1}, 0, -1
        s_mov_b32 exec_lo, 0
        s_mov_b32 exec_hi, s{S_MO + 1}
        """)
        self.wait_pair(QF + 24)
        for j in range(4):
            A(f"v_mov_b64 {vr(QF + 8 * j + 6, 2)}, 0")
        A(f"s_mov_b32 exec_lo, s{S_MO}")
        A(f"s_mov_b32 exec_hi, 0")
        for j in range(4):
            A(f"v_mov_b64 {vr(QF + 8 * j, 2)}, 0")
        A("s_mov_b64 exec, -1")

    def attn_main(self):
        A = self.A
        for i in range(64):
            kt, b, j = i >> 2, (i >> 2) & 3, i & 3
            seq = []
            if i < 63:
                if j == 3:
                    self.wait_pair(KB + 8 * ((b + 1) & 3))
                seq.append(self.qk(i + 1, 0))
            seq += self.grp(i, 0)
            if i:
                seq.append(self.pv(i - 1, 1))
            if j == 0 and kt + 3 < 16:
                seq += self.v_load((b - 1) & 3)
                if b == 0:
                    seq += [f"s_add_u32 s{S_OFF}, s{S_OFF}, {4 * 28672}"]
            seq += self.grp(i, 1)
            if i < 63:
                seq.append(self.qk(i + 1, 1))
            if j == 2 and kt + 4 < 16:
                seq += self.k_load(b)
            seq += self.grp(i, 2)
            for x in seq:
                A(x)
            if j == 0:
                self.wait_pair(VB + 8 * b)
            A(self.pv(i, 0, first=i < 4))
            if i == 4:
                A(f"ds_write_b32 v{VHW}, v{VHW}")
            g3 = self.grp(i, 3)
            if i > 60:
                w = [f"ds_write_b128 v{VXA + j - 1}, {vr(OA + 16 * (j - 1) + 4 * q, 4)} offset:{1024 * q}" for q in range(4)]
                g3 = [g3[0], w[0], g3[1], w[1], g3[2], w[2], g3[3], w[3]] + g3[4:]
            for x in g3:
                A(x)
            if i == 63:
                A(f"ds_write_b32 v{VSW}, v{VSW}")
        load = f"ds_read_b32 v6, v{VSR}"
        tok = A(load)
        A(self.pv(63, 1))
        self.stamp(A, "a_loop")
        self.stamp(A, "rt_loop")
        self.check_words(load, "v_cmp_eq_u32 vcc, 0, v6", tok)
        self.stamp(A, "a_sync")

    def lds_sync(self, value_reg, cmp_, VSW=VSW, VSR=VSR):
        A = self.A
        A(f"ds_write_b32 v{VSW}, v{value_reg}")
        load = f"ds_read_b32 v6, v{VSR}"
        tok = A(load)
        self.check_words(load, cmp_, tok)

    def sync_addresses(self, base, VSW=VSW, VSR=VSR, A=None, T=S_T):
        (A or self.A)(f"""
        s_lshl_b32 s{T}, s{S_GW}, 8
        s_add_u32 s{T}, s{T}, {base}
        v_lshl_add_u32 v{VSW}, v0, 2, s{T}
        v_and_b32 v{VSR}, 3, v0
        v_lshlrev_b32 v{VSR}, 8, v{VSR}
        v_add_u32 v{VSR}, {base}, v{VSR}
        """)

    def attn_finish(self):
        A = self.A
        R, O = VB, OA + 48
        order = [3, 0, 1, 2]
        for q in order:
            for p in range(3):
                A(f"ds_read_b128 {vr(R + 16 * p + 4 * q, 4)}, v{VXA + 3} offset:{4096 * p + 1024 * q}")
        for n, q in enumerate(order):
            for k in range(4):
                A(f"v_add_f32 v{R + 4 * q + k}, v{R + 4 * q + k}, v{R + 16 + 4 * q + k}")
            for k in range(4):
                A(f"v_add_f32 v{O + 4 * q + k}, v{O + 4 * q + k}, v{R + 32 + 4 * q + k}")
            for k in range(4):
                A(f"v_add_f32 v{O + 4 * q + k}, v{O + 4 * q + k}, v{R + 4 * q + k}")
            if n == 0:
                A(f"v_mov_b32 v8, v{O + 12}")
                A(f"v_mov_b32 v9, v{O + 12}")
            if n == 1:
                A("v_permlane32_swap_b32 v8, v9")
                A("v_rcp_f32 v12, v9")
            if n == 2:
                A(f"v_med3_f32 v8, v9, s{S_LO}, v{VHI}")
                A(f"v_mul_f32 v12, v12, v{VGA}")
                A("v_cmp_neq_f32 vcc, v8, v9")
        A(f"s_cbranch_vccnz {self.name}_slow")
        A(f"{self.name}_a_fin:")
        for hf in range(2):
            for r in range(8 * hf, 8 * hf + 8):
                A(f"v_mul_f32 v{O + r}, v{O + r}, v12")
            for jj in range(4 * hf, 4 * hf + 4):
                A(f"v_cvt_pk_bf16_f32 v{PB + jj}, v{O + 2 * jj}, v{O + 2 * jj + 1}")
            if hf == 0:
                A(f"buffer_store_dwordx4 {vr(PB, 4)}, v{VL16}, {sr(SRD_WS, 4)}, s{S_OO} offen{ST}")
        A(f"""
        s_mov_b32 exec_lo, 0
        v_mov_b64 {vr(PB + 6, 2)}, 0
        s_mov_b32 exec_lo, -1
        buffer_store_dwordx4 {vr(PB + 4, 4)}, v{VL16}, {sr(SRD_WS, 4)}, s{S_OO} offen offset:1024{ST}
        """)
        self.stamp(A, "a_st")
        self.tail_setup(0)
        A("s_waitcnt vmcnt(0)")
        self.one_lane_store(1, S_OF, tmp=8)

    def slow_path(self):
        A = self.A
        O, Q = OA + 48, QF + 24
        A.clear()
        A(f"{self.name}_slow:")
        A("s_waitcnt vmcnt(0) lgkmcnt(0)")
        A(f"s_mul_i32 s{S_T}, s{S_GW}, {16 * 28672}")
        for d in (SRD_K, SRD_V):
            A(f"s_sub_u32 s{d}, s{d}, s{S_T}")
            A(f"s_subb_u32 s{d + 1}, s{d + 1}, 0")
            A(f"s_mov_b32 s{d + 2}, {64 * 28672}")
        for r in range(8):
            A(f"v_mov_b32 v{VB + r}, v{VONE}")
        A(f"v_mov_b32 v{VM}, 0xff800000")
        for sub in (0, 1):
            lab = self.lab("slowloop")
            A(f"s_mov_b32 s{S_OFF}, 0")
            if sub:
                for r in range(16):
                    A(f"v_mov_b32 v{O + r}, 0")
            A(f"{lab}:")
            for x in self.k_load(0) + (self.v_load(0) if sub else []):
                A(x)
            A(mfma(SB, KB, Q, "0"))
            A(mfma(SB, KB + 4, Q + 4))
            if not sub:
                for r in range(0, 16, 2):
                    A(f"v_max3_f32 v{VM}, v{SB + r}, v{SB + r + 1}, v{VM}")
            else:
                for r in range(16):
                    A(f"v_sub_f32 v{SB + r}, v{SB + r}, v{VM}")
                for g in range(4):
                    for x in self.grp(0, g):
                        A(x)
                A(mfma(O, VB, PB))
                A(mfma(O, VB + 4, PB + 4))
            A(f"s_add_u32 s{S_OFF}, s{S_OFF}, 28672")
            A(f"s_cmp_lt_u32 s{S_OFF}, {64 * 28672}")
            A(f"s_cbranch_scc1 {lab}")
            if not sub:
                A(f"v_mov_b32 v9, v{VM}")
                A(f"v_permlane32_swap_b32 v9, v{VM}")
                A(f"v_max_f32 v{VM}, v9, v{VM}")
        A(f"""
        v_mov_b32 v8, v{O + 12}
        v_mov_b32 v9, v{O + 12}
        v_permlane32_swap_b32 v8, v9
        v_rcp_f32 v12, v9
        v_mul_f32 v12, v12, v{VGA}
        s_branch {self.name}_a_fin
        """)

    @staticmethod
    def slot(ks):
        k = ks % 13
        return ("A", k) if k < 6 else ("B", k - 6)

    def wd_dma(self, ks):
        reg, sl = self.slot(ks)
        return [f"s_add_u32 m0, s{S_RA if reg == 'A' else S_RB}, {sl * 2048}",
                f"s_add_u32 s0, s{S_WDO}, {ks * 16 * 896}",
                f"buffer_load_dwordx4 v{VDW0}, {sr(SRD_WD, 4)}, s0 offen lds",
                f"buffer_load_dwordx4 v{VDW1}, {sr(SRD_WD, 4)}, s0 offen offset:1024 lds"]

    def wo_dma(self, n):
        return [f"s_add_u32 m0, s{S_RB}, {n * 2048}",
                f"s_add_u32 s{S_T}, s{S_WOO}, {n * 16 * 896}",
                f"buffer_load_dwordx4 v{VDW0}, {sr(SRD_WO, 4)}, s{S_T} offen lds",
                f"buffer_load_dwordx4 v{VDW1}, {sr(SRD_WO, 4)}, s{S_T} offen offset:1024 lds"]

    def h_load(self, ks):
        b = HB + 8 * (ks % 10)
        return [f"s_add_u32 s{S_T}, s{S_HOFF}, {ks * 1024}",
                f"buffer_load_dwordx4 {vr(b, 4)}, v{VH0}, {sr(SRD_WS, 4)}, s{S_T} offen{LD}",
                f"buffer_load_dwordx4 {vr(b + 4, 4)}, v{VH1}, {sr(SRD_WS, 4)}, s{S_T} offen{LD}"]

    def gemm_start(self, e2):
        A = self.A
        tok = None
        for x in (e2[0] + e2[1] if e2 else sum([self.wd_dma(ks) for ks in range(6)], [])):
            tok = A(x)
        A("s_setprio 2")
        for ks in range(6, 6 + self.opt.get("gearly", 0)):
            for x in self.wd_dma(ks):
                A(x)
        self.precompute(A, 1)
        A.wait_tok(tok)

    def gemm_main(self):
        A = self.A
        toks = {}
        A.clear()
        first = 6 + self.opt.get("gearly", 0)
        for ks in range(6, first):
            for _ in range(2):
                A.nid += 1
                A.vm.append([A.nid, set()])
                toks[ks] = A.nid

        def issue(lst, key=None):
            for x in lst:
                t = A(x)
                if t and key is not None:
                    toks[key] = t

        def trr(ks):
            reg, sl = self.slot(ks)
            a = VAWA if reg == "A" else VAWB
            b = WBUF + 8 * (ks % 10)
            o = sl * 2048
            A.wait_tok(toks.get(ks))
            issue([f"ds_read_b64_tr_b16 {vr(b, 2)}, v{a} offset:{o}",
                   f"ds_read_b64_tr_b16 {vr(b + 2, 2)}, v{a} offset:{o + 1024}",
                   f"ds_read_b64_tr_b16 {vr(b + 4, 2)}, v{a + 1} offset:{o}",
                   f"ds_read_b64_tr_b16 {vr(b + 6, 2)}, v{a + 1} offset:{o + 1024}"], ("r", ks))

        def dma(ks):
            if ks >= 13:
                A.wait_tok(toks[("r", ks - 13)])
            issue(self.wd_dma(ks), ks)

        def mm(ks):
            for jj in range(4):
                A(mfma(ACC + 16 * jj, WBUF + 8 * (ks % 10) + 4 * (jj & 1), HB + 8 * (ks % 10) + 4 * (jj >> 1),
                       "0" if ks == 0 else None))

        A(f"""
        ds_write_b32 v{VHW}, v{VHW}
        v_xor_b32 v5, 64, v{VTR}
        v_add_u32 v{VAWA}, s{S_RA}, v{VTR}
        v_add_u32 v{VAWA + 1}, s{S_RA}, v5
        v_and_b32 v13, 7, v0
        v_lshlrev_b32 v13, 8, v13
        v_add_u32 v13, {M_HW}, v13
        """)
        for ks in range(6):
            trr(ks)
        A(f"""
        v_mov_b32 v{GL16}, v{VL16}
        v_add_u32 v{VAWB}, s{S_RB}, v{VTR}
        v_add_u32 v{VAWB + 1}, s{S_RB}, v5
        s_lshr_b32 s{S_T}, s{S_GW}, 1
        s_mul_i32 s{S_T}, s{S_T}, 114688
        v_add_u32 v{VH0}, s{S_T}, v{GL16}
        s_sub_u32 s{S_T}, 114688, s{S_T}
        v_add_u32 v{VH1}, s{S_T}, v{GL16}
        """)
        self.sync_addresses(M_GS, GSW, GSR)
        load = "ds_read_b32 v6, v13"
        tk = A(load)
        self.check_words(load, "v_cmp_eq_u32 vcc, 0, v6", tk, nap=1)
        self.one_lane_store(2, S_F1, wave=4)
        self.stamp(A, "g_hw")
        A(f"s_cmp_ge_u32 s{S_NB}, 7")
        A(f"s_cbranch_scc1 {self.name}_exit")
        A(f"""
        v_and_b32 v5, 31, v0
        v_lshlrev_b32 v5, 2, v5
        buffer_load_dword v{VG}, v5, {sr(SRD_WS, 4)}, s{S_GOFF} offen{LD}
        """)
        deep = self.opt.get("gdeep", 3)
        for ks in range(first, 23):
            if 6 <= ks - 7 < 10:
                trr(ks - 7)
            A.wait_tok(toks.get(ks - deep))
            dma(ks)
        self.stamp(A, "g_dma")
        tok = self.masked("15", POLL)
        self.check_words(POLL, "v_cmp_ne_u32 vcc, 2, v6", tok, mask="15", nap=2)
        self.stamp(A, "g_flags")
        self.stamp(A, "rt_gflags")
        A("s_setprio 0")
        nh = self.opt.get("nh", 3)
        for ks in range(nh):
            issue(self.h_load(ks))
        ramp = 28 - NDEF - (10 - nh)
        for ks in range(28 - NDEF):
            mm(ks)
            for _ in range(2 if ks >= ramp else 1):
                if nh < 28:
                    assert nh - 10 <= ks
                    issue(self.h_load(nh))
                    nh += 1
            trr(ks + 10)
            if 1 <= ks <= 5:
                dma(ks + 22)
        assert nh == 28
        A.wait_tok(toks[("r", 25)])
        for n in range(7):
            issue(self.wo_dma(n))
        A(f"v_add_u32 v9, s{S_RA}, v{GL16}")
        A(f"v_subrev_u32 v13, {M_GS - M_AS}, v{GSR}")
        A(f"v_sub_f32 v{VG}, 1.0, v{VG}")
        A("s_waitcnt lgkmcnt(0)")
        for jj in range(1, 4):
            A(f"""
            s_xor_b32 s{S_T}, s{S_GW}, {jj}
            s_mul_i32 s{S_T}, s{S_T}, 12288
            s_add_u32 s{S_T}, s{S_T}, {L_RING + 4096 * (jj - 1)}
            v_add_u32 v{VAWA + jj - 1}, s{S_T}, v{GL16}
            """)
        self.tail_setup(1)
        self.stamp(A, "g_pre")
        self.stamp(A, "rt_gpre")
        load = "ds_read_b32 v6, v13"
        tk = A(load)
        self.check_words(load, "v_cmp_eq_u32 vcc, 0, v6", tk, nap=2)
        wr = []
        for jj in (1, 2, 3, 0):
            for n, ks in enumerate(range(28 - NDEF, 28)):
                A(mfma(ACC + 16 * jj, WBUF + 8 * (ks % 10) + 4 * (jj & 1), HB + 8 * (ks % 10) + 4 * (jj >> 1)))
                if n >= 2 and wr:
                    A(wr.pop(0))
            assert not wr
            wr = [f"ds_write_b128 v9, {vr(ACC + 16 * jj + 4 * q, 4)} offset:{4096 * (jj - 1) + 1024 * q}" for q in range(4)]
            if jj == 3:
                wr.append(f"ds_write_b32 v{GSW}, v{GSW}")
        self.stamp(A, "g_loop")
        self.stamp(A, "rt_gloop")
        load = f"ds_read_b32 v6, v{GSR}"
        self.check_words(load, "v_cmp_eq_u32 vcc, 0, v6", A(load))
        for q in range(4):
            for jj in range(1, 4):
                A(f"ds_read_b128 {vr(ACC + 16 * jj + 4 * q, 4)}, v{VAWA + jj - 1} offset:{1024 * q}")
        for q in range(4):
            r0 = (4 * q, 4 * q + 2)
            for r in r0:
                A(f"v_pk_add_f32 {vr(ACC + 16 + r, 2)}, {vr(ACC + 16 + r, 2)}, {vr(ACC + 32 + r, 2)}")
            for r in r0:
                A(f"v_pk_add_f32 {vr(ACC + r, 2)}, {vr(ACC + r, 2)}, {vr(ACC + 48 + r, 2)}")
            for r in r0:
                A(f"v_pk_add_f32 {vr(ACC + r, 2)}, {vr(ACC + r, 2)}, {vr(ACC + 16 + r, 2)}")
            for r in r0:
                A(f"v_pk_mul_f32 {vr(ACC + r, 2)}, {vr(ACC + r, 2)}, {vr(VG, 2)} op_sel_hi:[1,0]")

    def tail_setup(self, role):
        A = self.A
        A(f"""
        s_lshl_b32 s{S_T}, s{S_MB}, 5
        s_add_u32 s{S_T}, s{S_T}, s{S_GW}
        s_lshl_b32 s{S_MO}, s{S_T}, 7
        s_add_u32 s{S_MO}, s{S_MO}, {FLAG_O + role * 2048}
        v_lshlrev_b32 v5, 9, v0
        s_lshl_b32 s{S_T3}, s{S_T}, 11
        s_add_u32 s{S_T3}, s{S_T3}, {WS_O + role * 32768}
        s_lshl_b32 s{S_T2}, s{S_GW}, 11
        """)
        if role == 1:
            srd(A, SRD_OUT, P_OUT, S * D * 2)
            A(f"""
            s_lshr_b32 s{S_T}, s{S_GW}, 1
            s_lshl_b32 s{S_OFF}, s{S_T}, 15
            s_add_u32 s{S_OFF}, s{S_OFF}, {L_O}
            v_add_u32 v14, s{S_OFF}, v{GL16}
            s_mul_i32 s{S_T}, s{S_GW}, 2560
            s_add_u32 s{S_T}, s{S_T}, {L_TR}
            v_and_b32 v7, 31, v0
            v_mul_u32_u24 v7, 80, v7
            v_lshrrev_b32 v8, 5, v0
            v_lshl_add_u32 v7, v8, 5, v7
            v_add_u32 v7, s{S_T}, v7
            v_lshrrev_b32 v4, 2, v0
            v_and_b32 v12, 3, v0
            v_lshlrev_b32 v12, 4, v12
            v_mul_u32_u24 v8, 80, v4
            v_add_u32 v8, v8, v12
            v_add_u32 v8, s{S_T}, v8
            v_mul_u32_u24 v4, 896, v4
            v_add_u32 v10, v4, v12
            s_add_u32 s{S_OFF}, s{S_OUTO}, {16 * 896}
            """)

    def tail(self, role):
        A = self.A
        L16 = GL16 if role else VL16
        load = f"buffer_load_dword v6, v5, {sr(SRD_WS, 4)}, s{S_MO} offen sc1"
        if role == 1:
            A("s_waitcnt vmcnt(0)")
        tok = self.masked("15", load)
        A.wait(lg=0)
        self.stamp(A, "t_bar0")
        A("s_barrier")
        self.stamp(A, "t_bar1")
        self.check_words(load, "v_cmp_ne_u32 vcc, 1, v6", tok, mask="15")
        self.stamp(A, "t_flag")
        self.stamp(A, "rt_tflag")
        toks = []
        for step in range(4):
            A(f"s_add_u32 m0, s{S_T2}, {L_O + role * 32768 + step * 8192}")
            A(f"s_add_u32 s{S_T}, s{S_T3}, {step * 8192}")
            for q in range(2):
                t = A(f"buffer_load_dwordx4 v{L16}, {sr(SRD_WS, 4)}, s{S_T} offen offset:{1024 * q} sc1 lds")
            toks.append(t)
        A.wait_tok(toks[0])
        A("s_barrier")
        self.stamp(A, "t_odata")
        self.stamp(A, "rt_odata")
        if role == 0:
            for step in range(1, 4):
                A.wait_tok(toks[step])
                A("s_barrier")
            return

        def rd(k):
            o = (28 * (k >> 1) + 16 * (k & 1)) * 128
            b = k % 4
            return [f"ds_read_b128 {vr(TB_ + 4 * b, 4)}, v14 offset:{k * 1024}",
                    f"ds_read_b64_tr_b16 {vr(TA_ + 4 * b, 2)}, v{VTR} offset:{o}",
                    f"ds_read_b64_tr_b16 {vr(TA_ + 4 * b + 2, 2)}, v{VTR} offset:{o + 1024}"]

        for k in range(3):
            for x in rd(k):
                A(x)
        for k in range(32):
            A(mfma(ACC, TA_ + 4 * (k % 4), TB_ + 4 * (k % 4)))
            if k + 3 < 32:
                if (k + 3) % 8 == 0:
                    A.wait_tok(toks[(k + 3) // 8])
                    A("s_barrier")
                for x in rd(k + 3):
                    A(x)
        self.stamp(A, "t_mm")
        for hf in range(2):
            for jj in range(4):
                A(f"v_cvt_pk_bf16_f32 v{TA_ + 4 * hf + jj}, v{ACC + 8 * hf + 2 * jj}, v{ACC + 8 * hf + 2 * jj + 1}")
            A(f"ds_write_b128 v7, {vr(TA_ + 4 * hf, 4)} offset:{16 * hf}")
        for q in range(2):
            A(f"ds_read_b128 {vr(TB_ + 4 * q, 4)}, v8 offset:{16 * 80 * q}")
        for q in range(2):
            A(f"buffer_store_dwordx4 {vr(TB_ + 4 * q, 4)}, v10, {sr(SRD_OUT, 4)}, s{S_OFF if q else S_OUTO} offen{self.opt.get('ost', 0) * ' sc1'}")

    def finish(self):
        A = self.A
        if self.stamp.enabled:
            A("s_waitcnt vmcnt(0)")
            self.stamp(A, "t_end")
            self.stamp(A, "rt_end")
            self.stamp.flush(A)
        A("s_endpgm")

    def build(self):
        A, name = self.A, self.name
        A(f".globl {name}\n.p2align 8\n.type {name},@function\n{name}:")
        A("s_cmp_ge_u32 s2, 256")
        A(f"s_cbranch_scc1 {name}_exit")
        self.stamp(A, "rt0")
        self.stamp(A, "t0")
        load_args(A)
        p1.decode_and_addresses(A)
        A(f"s_cmp_ge_u32 s{p1.S_CG}, 14")
        A(f"s_cbranch_scc1 {name}_q")
        A(f"s_cmp_ge_u32 s{p1.S_CG}, 7")
        A(f"s_cbranch_scc1 {name}_v")
        st0 = A.save()
        for kind, lab in (("K", None), ("V", "_v"), ("Q", "_q")):
            A.restore(st0)
            if lab:
                A(f"{name}{lab}:")
            p1.program(A, kind, ST, self.hooks(kind in "KV"), self.opt)
        if self.opt.get("p1exit") or self.opt.get("p2exit"):
            for f in self.late:
                A.clear()
                f(A)
            A(f"{name}_exit:")
            A("s_endpgm")
            pads = A.fix_hazards()
            return A.text(), kernel_desc(name), pads
        e2 = p1.final_epilogue(ST)
        A.clear()
        A(f"{name}_a_plain:")
        for x in sum(sum(self.setup_units(), []), []):
            A(x)
        A(f"s_branch {name}_a_poll")
        A(f"{name}_a_late:")
        for x in e2[0] + e2[1]:
            A(x)
        A(f"{name}_a_poll:")
        tok = self.masked(POLLMASK, POLL)
        self.check_words(POLL, "v_cmp_eq_u32 vcc, 0, v6", tok, mask=POLLMASK)
        self.stamp(A, "a_flags")
        self.stamp(A, "rt_aflags")
        self.q_loads()
        self.kv_loads((0, 1, 2))
        A(f"ds_write_b32 v{VHW}, v{VHW}")
        A(f"s_branch {name}_a_go")
        plain = A.save()
        A.clear()
        A(f"{name}_a_e2:")
        self.masked(POLLMASK, "v_cmp_eq_u32 vcc, 0, v6")
        A(f"s_cbranch_vccnz {name}_a_late")
        self.stamp(A, "a_flags")
        self.stamp(A, "rt_aflags")
        self.q_loads()
        self.kv_loads((0,))
        for x in e2[0] + e2[1]:
            A(x)
        self.kv_loads((1, 2))
        assert [x for x in A.state()[0] if x] == [tuple(sorted(e[1])) for e in plain[0]]
        A.restore(plain)
        A.lg = []
        A(f"{name}_a_go:")
        A(f"s_mov_b32 s{S_LO}, {f32(2.0 ** -30)}")
        A(f"v_mov_b32 v{VHI}, {f32(2.0 ** 30)}")
        self.mask_q()
        A(self.qk(0, 0))
        A(self.qk(0, 1))
        A("s_setprio 1")
        self.stamp(A, "a_first")
        self.stamp(A, "rt_afirst")
        self.attn_main()
        self.attn_finish()
        self.stamp(A, "a_pub")
        self.stamp(A, "rt_pub")
        A(f"s_cmp_ge_u32 s{S_NB}, 7")
        A(f"s_cbranch_scc1 {name}_a_done")
        self.tail(0)
        A(f"{name}_a_done:")
        self.finish()
        A.clear()
        A(f"{name}_g_plain:")
        self.gemm_start(None)
        A(f"s_branch {name}_g_go")
        A.clear()
        A(f"{name}_g_e2:")
        self.gemm_start(e2)
        A(f"{name}_g_go:")
        self.gemm_main()
        self.tail(1)
        self.finish()
        self.slow_path()
        k = 0
        while k < len(self.late):
            A.clear()
            self.late[k](A)
            k += 1
        A(f"{name}_exit:")
        A("s_endpgm")
        pads = A.fix_hazards()
        return A.text(), kernel_desc(name), pads


HEADER = open("gated_mix__mha_block__glu_gated_geglu__prompt.s.ref").read().split("; Override")[0]


def main():
    diag = "diag" in sys.argv
    name = "gated_mix__mha_block__glu_gated_geglu__prompt_kernel"
    sets = {"diag": "rt0 t0 p1_pass2 a_flags a_first a_loop a_pub t_flag t_end rt_end g_hw g_dma g_flags g_pre g_loop",
            "diagt": "rt0 t0 a_first a_loop a_sync a_st a_pub t_bar0 t_bar1 t_flag t_odata t_mm t_end g_loop rt_end",
            "diagp": "rt0 t0 p1_pass1 p2_4 p2_8 p2_16 p1_pass2 a_flags a_first a_loop t_end rt_end",
            "diagb": "rt0 t0 b2_pre b2_vm b2_post b3_pre b3_vm t_end rt_end",
            "diagc": "rt0 t0 b5_pre b5_vm b5_post b7_pre b7_vm t_end rt_end",
            "diagd": "rt0 t0 p2_4 c7_pre c7_vm c7_post p2_8 t_end rt_end",
            "diage": "rt0 t0 c9_pre c9_vm c9_post c15_pre c15_vm t_end rt_end",
            "diagr": "rt0 t0 p1_first p1_pass1 rt_first rt_pass1 t_end rt_end",
            "diagz": "rt0 rt_end",
            "diagrt": "rt0 rt_pass1 rt_pass2 rt_aflags rt_afirst rt_loop rt_pub rt_tflag rt_odata rt_end rt_gflags rt_gpre rt_gloop",
            "diags": "rt0 t0 p1_pass1 p1_pass2 rt_pass1 rt_pass2 p2_8 t_end rt_end",
            "diagq": "rt0 t0 karg dma0 p1_first p1_pass1 p2_4 t_end rt_end"}
    which = [a for a in sys.argv if a in sets]
    diag = bool(which)
    st = Stamps(diag, sets[which[0]].split() if diag else None)
    opt = {a.split("=")[0]: int(a.split("=")[1]) for a in sys.argv[1:] if "=" in a}
    g = Gen(name, st, opt)
    code, kd, pads = g.build()
    print(HEADER.rstrip())
    print("; @launch grid=(256,1,1) block=(512,1,1) lds=163840")
    if diag:
        print("; stamps: " + " ".join(st.only))
    print('.amdgcn_target "amdgcn-amd-amdhsa--gfx950"\n.text')
    print(code)
    print('.section .rodata,"a"\n.p2align 6')
    print(kd)


if __name__ == "__main__":
    main()
```

```python
import math
import struct
from asmlib import *

S, D, H, DH, F = 2048, 448, 16, 28, 1792

SEC = 64 * 28672
WS_Q = 0
WS_K = SEC
WS_V = 2 * SEC
WS_H = 3 * SEC
WS_O = WS_H + 64 * 114688
WS_G = WS_O + 64 * 32768
WS_FLAG = 0xF00000
WS_BYTES = 0x1000000


def f32(x):
    return "0x%08x" % struct.unpack("<I", struct.pack("<f", x))[0]


LOG2E = 1.4426950408889634
QSCALE = LOG2E * DH ** -0.5
GELU_C1 = 2.0 * math.sqrt(2.0 / math.pi) * LOG2E
GELU_C2 = 0.044715

P_X, P_WQKV, P_WO = 4, 6, 8
P_WG, P_WU, P_WD, P_GW = 12, 14, 16, 18
P_OUT, P_DBG, P_WS = 20, 22, 28
S_WAVE = 26
S_ROLE = 71
SRD_WS = 28


def srd(A, d, ptr, nbytes, add=None):
    if add is None:
        A(f"s_mov_b32 s{d}, s{ptr}")
        A(f"s_mov_b32 s{d + 1}, s{ptr + 1}")
    else:
        A(f"s_add_u32 s{d}, s{ptr}, {add}")
        A(f"s_addc_u32 s{d + 1}, s{ptr + 1}, 0")
    A(f"s_mov_b32 s{d + 2}, {nbytes}")
    A(f"s_mov_b32 s{d + 3}, 0x00020000")


def load_args(A, direct):
    for d, off in direct.items():
        A(f"s_load_dwordx2 s[{d}:{d + 1}], s[0:1], {off}")


def load_args2(A):
    A(f"s_load_dwordx2 s[{P_WO}:{P_WO + 1}], s[0:1], 16")
    A(f"s_load_dwordx2 s[{P_WD}:{P_WD + 1}], s[0:1], 48")
    A("s_load_dwordx4 s[20:23], s[0:1], 64")


def srd_tail(A, d, nbytes):
    A(f"s_mov_b32 s{d + 2}, {nbytes}")
    A(f"s_mov_b32 s{d + 3}, 0x00020000")


def mfma(d, a, b, c=None):
    cs = vr(d, 16) if c is None else c
    return f"v_mfma_f32_32x32x16_bf16 {vr(d, 16)}, {vr(a, 4)}, {vr(b, 4)}, {cs}"


def interleave(main, fill, start=0):
    out = []
    n = len(main) - start
    j = 0
    for i, m in enumerate(main):
        out += m if isinstance(m, list) else [m]
        if i >= start:
            k = (len(fill) * (i - start + 1)) // n
            out += fill[j:k]
            j = k
    return out + fill[j:]


class Stamps:
    WS_OFF = 0xE80000
    EARLY = list(range(88, 102, 2))
    LATE = list(range(32, 48, 2))

    def __init__(self, enabled, only=None):
        self.enabled = enabled
        self.only = only
        self.names = []
        self.reg = {}

    def __call__(self, A, name):
        if not self.enabled or (self.only and name not in self.only):
            return
        if name not in self.names:
            late = name[:2] in ("a_", "g_", "t_") or (name[:3] == "rt_" and name not in ("rt_pass1", "rt_pass2", "rt_first", "rt_pubq"))
            used = set(self.reg.values())
            pool = [r for r in ((self.LATE if late else []) + self.EARLY) if r not in used]
            self.reg[name] = pool[0]
            self.names.append(name)
        r = self.reg[name]
        A(f"s_memrealtime s[{r}:{r + 1}]") if name.startswith("rt") else A(f"s_memtime s[{r}:{r + 1}]")

    def flush(self, A):
        if not self.enabled:
            return
        A("s_waitcnt vmcnt(0) lgkmcnt(0)")
        A(f"s_lshl_b32 s3, s2, 3")
        A(f"s_add_u32 s3, s3, s{S_WAVE}")
        A(f"s_lshl_b32 s3, s3, 6")
        A(f"s_add_u32 s3, s3, {self.WS_OFF}")
        A("s_mov_b64 exec, 1")
        for k, n in enumerate(self.only):
            if n in self.reg:
                A(f"v_mov_b32 v1, s{self.reg[n]}")
                A(f"buffer_store_dword v1, off, {sr(SRD_WS, 4)}, s3 offset:{4 * k}")
        A("s_mov_b64 exec, -1")


class Rec:
    def __init__(self):
        self.units = []
        self.glue = False

    def __call__(self, text):
        for line in text.split("\n"):
            line = line.strip()
            if not line:
                continue
            op = line.split()[0]
            join = self.glue or op in ("s_addc_u32", "s_cselect_b32")
            if join and self.units:
                self.units[-1].append(line)
            else:
                self.units.append([line])
            if "exec" in line and op.startswith("s_mov"):
                self.glue = not line.endswith("exec, -1")
```

```python
from common import *

XF, ACC1, ACC2, WB = 144, 16, 64, 96
VDX0, VDX1, VDP, VDG, VDU = 120, 121, 122, 123, 124
VAX, VAP, VAG, VAGX, VL16, VSTV, VNC1 = 125, 129, 130, 132, 134, 135, 15
PK = 136
SRD_X, SRD_P, SRD_G, SRD_U, SRD_GW = 32, 36, 40, 44, 48
S_RB, S_CG, S_XO, S_PO, S_GO, S_W1K, S_W2K, S_T, S_RT, S_C, S_ST1, S_STH, S_T2, S_QS = range(52, 66)
S_ACT = 0
LX, LP, LQ = 0, 65536, 98304


def decode(A):
    load_args(A, {SRD_X: 0, SRD_P: 8, SRD_G: 32, SRD_U: 40, SRD_GW: 56, SRD_WS: 80})
    A(f"""
    v_lshrrev_b32 v1, 6, v0
    v_and_b32 v0, 63, v0
    v_readfirstlane_b32 s{S_WAVE}, v1
    s_bfe_u32 s{S_T}, s2, 0x20001
    s_lshl_b32 s{S_T}, s{S_T}, 2
    s_lshr_b32 s{S_CG}, s2, 6
    s_add_u32 s{S_CG}, s{S_CG}, s{S_T}
    """)


def x_addresses(A):
    A(f"""
    s_and_b32 s{S_T}, s2, 1
    s_lshl_b32 s{S_T}, s{S_T}, 3
    s_bfe_u32 s{S_RB}, s2, 0x30003
    s_add_u32 s{S_RB}, s{S_RB}, s{S_T}
    v_lshrrev_b32 v2, 3, v0
    v_and_b32 v3, 7, v0
    v_lshrrev_b32 v5, 4, v0
    s_lshl_b32 s{S_T}, s{S_WAVE}, 4
    v_add_u32 v6, s{S_T}, v2
    v_mul_u32_u24 v6, 896, v6
    v_xor_b32 v7, v3, v5
    v_lshl_add_u32 v{VDX0}, v7, 4, v6
    v_xor_b32 v7, 4, v7
    v_lshl_add_u32 v{VDX1}, v7, 4, v6
    v_add_u32 v{VDX1}, {8 * 896 - 1024}, v{VDX1}
    s_mul_i32 s{S_XO}, s{S_RB}, {128 * 896}
    s_lshl_b32 s{S_W1K}, s{S_WAVE}, 10
    s_lshl_b32 s{S_W2K}, s{S_WAVE}, 11
    """)


def w_addresses(A, special):
    A(f"""
    v_and_b32 v4, 1, v5
    s_lshl_b32 s{S_T}, s{S_WAVE}, 3
    v_add_u32 v6, s{S_T}, v2
    v_lshlrev_b32 v7, 2, v4
    v_xor_b32 v7, v3, v7
    v_mul_u32_u24 v8, 2688, v6
    v_lshl_add_u32 v{VDP}, v7, 4, v8
    """)
    if not special:
        A(f"""
        v_lshlrev_b32 v7, 1, v4
        v_xor_b32 v7, v3, v7
        v_mul_u32_u24 v8, 3584, v6
        v_lshl_add_u32 v{VDG}, v7, 4, v8
        v_xor_b32 v{VDU}, 64, v{VDG}
        """)


def read_addresses(A):
    A(f"""
    v_and_b32 v2, 31, v0
    v_lshrrev_b32 v3, 5, v0
    s_lshl_b32 s{S_T}, s{S_RT}, 12
    v_lshl_add_u32 v4, v2, 7, s{S_T}
    v_bfe_u32 v5, v2, 1, 3
    v_xor_b32 v5, v5, v3
    """)
    for s in range(4):
        A(f"v_xor_b32 v6, {2 * s}, v5")
        A(f"v_lshl_add_u32 v{VAX + s}, v6, 4, v4")
    A(f"""
    v_and_b32 v2, 3, v0
    v_bfe_u32 v4, v0, 2, 2
    v_bfe_u32 v5, v0, 4, 1
    v_bfe_u32 v6, v0, 3, 1
    v_lshl_add_u32 v7, v3, 3, v4
    v_lshlrev_b32 v7, 7, v7
    s_lshl_b32 s{S_T}, s{S_C}, 3
    v_lshl_add_u32 v8, v5, 2, v2
    v_add_u32 v8, s{S_T}, v8
    v_lshlrev_b32 v9, 3, v6
    v_xor_b32 v8, v8, v9
    v_lshl_add_u32 v8, v8, 3, v7
    v_add_u32 v{VAP}, {LP}, v8
    """)


def gu_addresses(A, special):
    if special:
        A(f"""
        v_add_u32 v{VAG}, {LQ}, v8
        v_add_u32 v{VAG + 1}, {LQ + 8192}, v8
        v_mov_b32 v{VAGX}, v8
        v_add_u32 v{VAGX + 1}, 8192, v8
        """)
        return
    A(f"""
    v_add_u32 v8, s{S_T}, v2
    v_lshlrev_b32 v9, 2, v6
    v_xor_b32 v8, v8, v9
    v_lshlrev_b32 v9, 3, v5
    v_xor_b32 v8, v8, v9
    v_lshl_add_u32 v7, v5, 13, v7
    v_lshl_add_u32 v{VAGX}, v8, 3, v7
    v_xor_b32 v8, 4, v8
    v_lshl_add_u32 v{VAGX + 1}, v8, 3, v7
    v_add_u32 v{VAG}, {LQ}, v{VAGX}
    v_add_u32 v{VAG + 1}, {LQ}, v{VAGX + 1}
    v_mov_b32 v{VNC1}, {f32(-GELU_C1)}
    """)


def dma(m0base, m0s, voff, srd_, sbase, soff, imm=0, setm0=True):
    out = []
    if setm0:
        out.append(f"s_add_u32 m0, s{m0s}, {m0base}")
    out.append(f"s_add_u32 s{S_T2}, s{sbase}, {soff}")
    out.append(f"buffer_load_dwordx4 v{voff}, {sr(srd_, 4)}, s{S_T2} offen{' offset:%d' % imm if imm else ''} lds")
    return out


def stage_dma(stage, special, up=0):
    sl = stage % 4
    g = []
    g.append(dma(LX + sl * 16384 + up * 8192, S_W2K, VDX0, SRD_X, S_XO, stage * 128 + up * 64 * 896) +
             [f"buffer_load_dwordx4 v{VDX1}, {sr(SRD_X, 4)}, s{S_T2} offen offset:1024 lds"])
    k0 = stage * 64 + up * 32
    g.append(dma(LP + sl * 8192 + up * 4096, S_W1K, VDP, SRD_P, S_PO, k0 * 2688))
    q = LQ + sl * 16384 + up * 4096
    if special:
        g.append(dma(q, S_W1K, VDP, SRD_P, S_PO, k0 * 2688 + 128))
    else:
        g.append(dma(q, S_W1K, VDG, SRD_G, S_GO, k0 * 3584))
        g.append(dma(q + 8192, S_W1K, VDU, SRD_U, S_GO, k0 * 3584))
    return g


P2LOC = {0: (LX, 3), 1: (LQ, 3), 2: (LX, 0), 3: (LQ, 0), 4: (LX, 1), 5: (LQ, 1), 6: (LX, 2)}


def p2_dma(ch, special, up=0):
    reg, sl = P2LOC[ch]
    base = reg + sl * 16384 + up * 4096
    k0 = ch * 64 + up * 32
    if special:
        return [dma(base, S_W1K, VDP, SRD_P, S_PO, k0 * 2688 + 256),
                dma(base + 8192, S_W1K, VDP, SRD_P, S_GO, k0 * 2688)]
    return [dma(base, S_W1K, VDG, SRD_G, S_GO, k0 * 3584 + 128),
            dma(base + 8192, S_W1K, VDU, SRD_U, S_GO, k0 * 3584 + 128)]


def tr_reads(dst, addr, off):
    return [f"ds_read_b64_tr_b16 {vr(dst, 2)}, v{addr} offset:{off}",
            f"ds_read_b64_tr_b16 {vr(dst + 2, 2)}, v{addr} offset:{off + 512}"]


LA1, LA2 = 1, 1


def wb1(t):
    return WB + 12 * (t & 1) if LA1 == 1 else (WB + 12, ACC2, WB)[t % 3]


def reads1(t):
    ch, s = divmod(t, 4)
    sl = ch % 4
    b = wb1(t)
    return ([f"ds_read_b128 {vr(XF + 4 * t, 4)}, v{VAX + s} offset:{LX + sl * 16384}"] +
            tr_reads(b, VAP, sl * 8192 + s * 2048),
            tr_reads(b + 4, VAG, sl * 16384 + s * 2048),
            tr_reads(b + 8, VAG + 1, sl * 16384 + s * 2048))


def wb2(t, ntile):
    if ntile == 1:
        return WB + 4 * (t % 6)
    return WB + 12 * (t & 1) if LA2 == 1 else WB + 8 * (t % 3)


def reads2(t, ntile, img=0):
    if ntile == 1:
        ch, s = divmod(t % 28, 4)
        reg, sl = P2LOC[ch]
        return [tr_reads(wb2(t, 1), (VAGX if reg == LX else VAG) + t // 28, sl * 16384 + s * 2048)]
    ch, s = divmod(t, 4)
    reg, sl = P2LOC[ch]
    a = VAGX if reg == LX else VAG
    b = wb2(t, ntile)
    return [tr_reads(b + 4 * e, a + e, sl * 16384 + s * 2048) for e in range(ntile)]


def epi_gu(acc, pk, soff_expr, st):
    o = []
    T = [1, 2, 3, 4]
    for half in range(2):
        g = [acc + 4 * half + i for i in range(4)]
        u = [acc + 8 + 4 * half + i for i in range(4)]
        o += [f"v_mul_f32 v{T[i]}, v{g[i]}, v{g[i]}" for i in range(4)]
        o += [f"v_fmamk_f32 v{T[i]}, v{T[i]}, {f32(-GELU_C1 * GELU_C2)}, v{VNC1}" for i in range(4)]
        o += [f"v_mul_f32 v{T[i]}, v{T[i]}, v{g[i]}" for i in range(4)]
        o += [f"v_exp_f32 v{T[i]}, v{T[i]}" for i in range(4)]
        o += [f"v_mul_f32 v{u[i]}, v{g[i]}, v{u[i]}" for i in range(4)]
        o += [f"v_add_f32 v{T[i]}, 1.0, v{T[i]}" for i in range(4)]
        o += [f"v_rcp_f32 v{T[i]}, v{T[i]}" for i in range(4)]
        o += [f"v_mul_f32 v{u[i]}, v{u[i]}, v{T[i]}" for i in range(4)]
        o += [f"v_cvt_pk_bf16_f32 v{pk + 2 * half + i}, v{u[2 * i]}, v{u[2 * i + 1]}" for i in range(2)]
    o.append(f"s_add_u32 s{S_T}, s{S_STH}, {soff_expr}")
    o.append(f"buffer_store_dwordx4 {vr(pk, 4)}, v{VL16}, {sr(SRD_WS, 4)}, s{S_T} offen{st}")
    return o


def epi_qk(acc, scale, soff, st, base=None):
    o = []
    if scale:
        o += [f"v_mul_f32 v{acc + r}, s{S_QS}, v{acc + r}" for r in range(16)]
    o += [f"v_cvt_pk_bf16_f32 v{PK + j}, v{acc + 2 * j}, v{acc + 2 * j + 1}" for j in range(8)]
    o.append(f"s_add_u32 s{S_T}, s{base or S_ST1}, {soff}")
    for q in range(2):
        o.append(f"v_permlane32_swap_b32 v{PK + 4 * q}, v{PK + 4 * q + 2}")
        o.append(f"v_permlane32_swap_b32 v{PK + 4 * q + 1}, v{PK + 4 * q + 3}")
    for q in range(2):
        o.append(f"buffer_store_dwordx4 {vr(PK + 4 * q, 4)}, v{VL16}, {sr(SRD_WS, 4)}, s{S_T} offen offset:{1024 * q}{st}")
    return o


def epi_v(acc, st):
    o = [f"v_cvt_pk_bf16_f32 v{PK + j}, v{acc + 2 * j}, v{acc + 2 * j + 1}" for j in range(8)]
    o.append(f"s_add_u32 s{S_T}, s{S_ST1}, 14336")
    o.append(f"buffer_store_dwordx4 {vr(PK, 4)}, v{VSTV}, {sr(SRD_WS, 4)}, s{S_ST1} offen{st}")
    o.append(f"buffer_store_dwordx4 {vr(PK + 4, 4)}, v{VSTV}, {sr(SRD_WS, 4)}, s{S_T} offen{st}")
    return o


def final_epilogue(st):
    return epi_gu(ACC2, PK, 4096, st), epi_gu(ACC2 + 16, PK + 4, 5120, st)


def gate_loads(A):
    A(f"""
    s_lshl_b32 s{S_T}, s{S_RB}, 7
    s_lshl_b32 s{S_T2}, s{S_CG}, 3
    s_add_u32 s{S_T}, s{S_T}, s{S_T2}
    s_add_u32 s3, s{S_T}, s{S_WAVE}
    s_mul_i32 s{S_T}, s3, 896
    """)
    for r in range(136, 144):
        A(f"v_mov_b32 v{r}, 0")
    A(f"""
    s_mov_b32 exec_hi, 0x00ffffff
    buffer_load_dwordx4 v[136:139], v{VL16}, {sr(SRD_X, 4)}, s{S_T} offen
    buffer_load_dwordx4 v[140:143], v{VL16}, {sr(SRD_GW, 4)}, 0 offen
    s_mov_b32 exec_hi, -1
    """)


def gate_compute(A, st):
    A("v_mov_b32 v1, 0")
    for i in range(4):
        A(f"v_dot2_f32_bf16 v1, v{136 + i}, v{140 + i}, v1")
    for m in ("row_shr:1 row_mask:0xf", "row_shr:2 row_mask:0xf", "row_shr:4 row_mask:0xf", "row_shr:8 row_mask:0xf",
              "row_bcast:15 row_mask:0xa", "row_bcast:31 row_mask:0xc"):
        A(f"v_add_f32_dpp v1, v1, v1 {m} bank_mask:0xf")
    A(f"""
    v_mul_f32 v1, {f32(-LOG2E)}, v1
    v_exp_f32 v1, v1
    s_lshl_b32 s3, s3, 2
    v_add_f32 v1, 1.0, v1
    v_rcp_f32 v1, v1
    s_add_u32 s3, s3, {WS_G}
    s_mov_b32 exec_lo, 0
    s_mov_b32 exec_hi, 0x80000000
    """)
    tok = A(f"buffer_store_dword v1, off, {sr(SRD_WS, 4)}, s3{st}")
    A("s_mov_b64 exec, -1")
    return tok


def programs(A, kinds, st, hooks, opt):
    global LA1, LA2
    LA1, LA2 = opt.get("la1", 2), opt.get("la2", 1)
    LA0, LA = opt.get("LA0", 2), opt.get("LA", 2)
    p2bars, pubbar, popstart = (7, 15), opt.get("pubbar", 9), opt.get("popstart", 4)
    dma_a = opt.get("dma_a", 1)
    stamp = hooks["stamp"]
    special = kinds == "Q"
    if special:
        dma_a = opt.get("dma_aq", 0)
    ntile2 = 1 if special else 2
    toks = {}

    def issue(groups, key):
        for g in groups:
            for x in g:
                t = A(x)
                if t:
                    toks[key] = t

    def groups_of(stg, up):
        if stg < 7:
            return stage_dma(stg, special, up)
        if stg > 10:
            return []
        c0 = 2 * (stg - 7)
        return p2_dma(c0, special, up) + (p2_dma(c0 + 1, special, up) if c0 < 6 else [])

    x_addresses(A)
    w_addresses(A, special)
    if special:
        A(f"s_and_b32 s{S_PO}, s{S_CG}, 1")
        A(f"s_lshl_b32 s{S_PO}, s{S_PO}, 9")
        A(f"s_mov_b32 s{S_GO}, 384")
    else:
        A(f"s_lshl_b32 s{S_PO}, s{S_CG}, 7")
        A(f"s_add_u32 s{S_PO}, s{S_PO}, 896")
        A(f"s_lshl_b32 s{S_GO}, s{S_CG}, 8")
    srd_tail(A, SRD_X, S * D * 2)
    srd_tail(A, SRD_P, D * 3 * D * 2)
    if not special:
        srd_tail(A, SRD_G, D * F * 2)
        srd_tail(A, SRD_U, D * F * 2)
    A.wait(lg=0)
    stamp(A, "karg")
    issue(groups_of(0, 0), 0)
    stamp(A, "dma0")
    srd_tail(A, SRD_GW, D * 2)
    srd_tail(A, SRD_WS, WS_BYTES)
    A(f"""
    v_lshlrev_b32 v{VL16}, 4, v0
    s_and_b32 s{S_RT}, s{S_WAVE}, 3
    s_lshr_b32 s{S_C}, s{S_WAVE}, 2
    s_cselect_b32 s{S_ROLE}, 1, 0
    """)
    hooks["entry"](A)
    gate_loads(A)
    gatetok = A.vm[-1][0]
    for stg in range(1, LA0):
        A("s_barrier")
        issue(groups_of(stg, 0), stg)
    read_addresses(A)
    gu_addresses(A, special)
    labels = {(k, r): hooks["label"](f"{k}{r}_") for k in kinds for r in (0, 1)}
    hooks["prologue"](A, special, [labels[k] for k in labels][1:])

    def side_work(kind, role):
        A = Rec()
        S_T, S_T2 = 0, 1
        A(f"s_lshl_b32 s{S_T}, s{S_RB}, 2")
        A(f"s_add_u32 s{S_T}, s{S_T}, s{S_RT}")
        A(f"s_mul_i32 s{S_ST1}, s{S_T}, 28672")
        if special:
            A(f"s_add_u32 s{S_STH}, s{S_ST1}, {role << 11}")
            A(f"s_lshl_b32 s{S_T}, s{S_PO}, 5")
            A(f"s_add_u32 s{S_ST1}, s{S_STH}, s{S_T}")
            A(f"s_mov_b32 s{S_QS}, {f32(QSCALE)}")
        else:
            A(f"s_mul_i32 s{S_STH}, s{S_T}, 114688")
            A(f"s_lshl_b32 s{S_T}, s{S_CG}, 13")
            A(f"s_add_u32 s{S_STH}, s{S_STH}, s{S_T}")
            A(f"s_add_u32 s{S_STH}, s{S_STH}, {WS_H + (role << 11)}")
            if kind == "K":
                A(f"s_lshl_b32 s{S_T}, s{S_CG}, 12")
                A(f"s_add_u32 s{S_ST1}, s{S_ST1}, s{S_T}")
                A(f"s_add_u32 s{S_ST1}, s{S_ST1}, {WS_K + (role << 11)}")
            else:
                A(f"s_lshl_b32 s{S_T}, s{S_CG}, 10")
                A(f"s_add_u32 s{S_ST1}, s{S_ST1}, s{S_T}")
                A(f"s_add_u32 s{S_ST1}, s{S_ST1}, {WS_V - 7 * 1024 + (role << 9)}")
                A(f"v_lshrrev_b32 v1, 5, v0")
                A(f"v_mul_u32_u24 v1, {7168 - 512}, v1")
                A(f"v_add_u32 v{VSTV}, v1, v{VL16}")
        hooks["idle"](A, role)
        G = Rec()
        gate_compute(G, st)
        return A.units, G.units

    def mm1(kind, t, i):
        b = wb1(t) + 4 * i
        c = "0" if t == 0 else None
        if kind == "V" and i == 0:
            return mfma(ACC1, XF + 4 * t, b, c)
        return mfma(ACC1 + 16 * i, b, XF + 4 * t, c)

    def mm2(t, i):
        return mfma(ACC2 + 16 * i, wb2(t, ntile2) + 4 * i, XF + 4 * t, "0" if t == 0 else None)

    A.wait_tok(toks[0], gatetok)
    A("s_barrier")
    stamp(A, "p1_first")
    stamp(A, "rt_first")
    nt1 = 2 if special else 3
    for k in range(LA1):
        for r in reads1(k)[:nt1]:
            for x in r:
                A(x)
    if not special:
        v = hooks["label"]("isv")
        A(f"s_cmp_ge_u32 s{S_CG}, 7")
        A(f"s_cbranch_scc0 {v}")
        A(f"s_cmp_eq_u32 s{S_ROLE}, 0")
        A(f"s_cbranch_scc1 {labels['V', 0]}")
        A(f"s_branch {labels['V', 1]}")
        A(f"{v}:")
    A(f"s_cmp_eq_u32 s{S_ROLE}, 0")
    A(f"s_cbranch_scc0 {labels[kinds[0], 1]}")
    sv0, toks0 = A.save(), dict(toks)

    def stream(kind, role):
        pend = []

        def stage_groups(stg):
            if not dma_a:
                return [(g, stg) for g in groups_of(stg, 0)]
            if role:
                return []
            return [(g, stg) for pair in zip(groups_of(stg, 0), groups_of(stg, 1)) for g in pair]

        def pop(n=1):
            for _ in range(n):
                if pend:
                    g, key = pend.pop(0)
                    if opt.get("nodma"):
                        toks[key] = None
                    else:
                        issue([g], key)

        side, gate = side_work(kind, role)
        T0, T1, TG = 1, 5, 24

        def fill(t, k):
            if opt.get("nofill") or not T0 <= t <= TG:
                return
            units, lo, hi = (gate, T0, T1) if t <= T1 else (side, T1 + 1, TG)
            n = 3 * (hi - lo + 1)
            pos = 3 * (t - lo) + k
            for u in units[len(units) * pos // n:len(units) * (pos + 1) // n]:
                for x in u:
                    tk = A(x)
                    if tk:
                        toks["gate"] = tk

        for k in range(LA0, LA + 1):
            pend += stage_groups(k)
        for t in range(28):
            if t + LA1 < 28:
                nxt = reads1(t + LA1)
            elif t < 27:
                nxt = [[], [], []]
            elif ntile2 == 1:
                nxt = [reads2(k, 1)[0] for k in range(3)]
            else:
                nxt = reads2(0, 2) + [sum(reads2(1, 2), []) if LA2 == 2 else []]
            bound = (t + LA1) % 4 == 0 if t < 25 else t == 27
            if bound:
                A.wait(lg=0)
            A(mm1(kind, t, 0))
            if bound:
                stg = (t + LA1) // 4
                assert not pend
                need = stg if stg < 7 else 7 + p2bars[0] // 8
                stamp(A, f"b{stg}_pre")
                A.wait_tok(toks.get(need), toks.get("gate") if stg == 4 else None)
                stamp(A, f"b{stg}_vm")
                if not opt.get("nobar"):
                    A("s_barrier")
                stamp(A, f"b{stg}_post")
                hooks["p1bar"](A, stg, role)
                todo = list(range(stg + LA, stg + LA + 1 if stg < 7 else 11))
                if special and LA == 2 and stg >= 6:
                    todo = [8, 9] if stg == 6 else [10]
                for k in todo:
                    pend += stage_groups(k)
            left = (3 - LA1 - t) % 4 + 1
            npop = -(-len(pend) // left) if t < 27 else len(pend) * special
            for i in range(3):
                if 0 < i < nt1:
                    A(mm1(kind, t, i))
                for x in (nxt[i] if i < nt1 or t == 27 else []):
                    A(x)
                pop((npop + (0, 2, 1)[i]) // 3)
                fill(t, i)
        stamp(A, "p1_pass1")
        stamp(A, "rt_pass1")
        if "p1exit" in hooks:
            hooks["p1exit"]()
            return
        if kind == "K":
            e1 = epi_qk(ACC1, False, 0, st)
        elif kind == "V":
            e1 = epi_v(ACC1, st)
        else:
            e1 = sum([epi_qk(ACC1 + 16 * k, True, WS_Q + 4096 * k, st) for k in range(2)], [])
        nq = len(e1)
        if not special:
            e1 = e1 + epi_gu(ACC1 + 16, PK, 0, st) + epi_gu(ACC1 + 32, PK + 4, 1024, st)

        if opt.get("nost"):
            e1 = [("s_nop 0" if x.startswith("buffer_store") else x) for x in e1]
        if opt.get("noe1"):
            e1 = e1[:nq]
        if opt.get("notrans"):
            e1 = [x.replace("v_exp_f32", "v_mov_b32").replace("v_rcp_f32", "v_mov_b32") for x in e1]

        def bar_token(k):
            return toks.get(7 + p2bars[k + 1] // 8 if k + 1 < len(p2bars) else 10)

        done = 0
        qtok = None
        la = LA2 if ntile2 == 2 else 3
        nslots = 27 * ntile2
        slot = 0
        for t in range(28):
            nxt = reads2(t + la, ntile2) if t + la < 28 or special else [[]] * ntile2
            bound = t + la - 1 in p2bars
            pub = not special and t == pubbar
            endbar = t == 27 and not special
            if endbar or (bound and not special):
                A.wait(lg=0)
            hooks["p2step"](A, t, role)
            for i in range(ntile2):
                A(mm2(t, i))
                if endbar and i == 0:
                    A("s_barrier")
                if (bound or pub) and i == 0:
                    assert not pub or done >= nq
                    stamp(A, f"c{t}_pre")
                    A.wait_tok(bar_token(p2bars.index(t + la - 1)) if bound else None, qtok if pub else None)
                    stamp(A, f"c{t}_vm")
                    A("s_barrier")
                    stamp(A, f"c{t}_post")
                    if pub:
                        hooks["qkv_done"](A, role)
                for x in nxt[i]:
                    A(x)
                if special:
                    pop(2 if t >= 2 else 0)
                elif t >= popstart and (dma_a or i == 0):
                    pop()
                upto = 0
                if t >= 1:
                    slot += 1
                    upto = min(len(e1), (len(e1) * slot * 27) // (nslots * 25))
                upto = max(upto, min(nq, 8 * (ntile2 * t + i + 1)))
                while done < upto:
                    tk = A(e1[done])
                    if tk and done < nq:
                        qtok = tk
                    done += 1
        assert done == len(e1) and not pend
        stamp(A, "p1_pass2")
        stamp(A, "rt_pass2")
        if "p2exit" in hooks:
            hooks["p2exit"]()
            return
        if not special:
            hooks["regular_end"](A, role)
            return
        e2 = epi_qk(ACC2, True, WS_Q + 8192, st)
        idle, fin = hooks["label"]("idle"), hooks["label"]("fin")
        A(f"s_bitcmp{1 - role}_b32 s{S_CG}, 0")
        A(f"s_cbranch_scc1 {idle}")
        sv = A.save()
        done = 0
        for t in range(28):
            A(mfma(ACC1, wb2(28 + t, 1), XF + 4 * t, "0" if t == 0 else None))
            for x in (reads2(28 + t + 3, 1)[0] if t + 3 < 28 else []):
                A(x)
            while t >= 1 and done < min(len(e2), 6 * t):
                A(e2[done])
                done += 1
        for x in epi_qk(ACC1, True, WS_Q + 12288, st, base=S_STH):
            A(x)
        A(f"s_branch {fin}")
        A(f"{idle}:")
        A.restore(sv)
        for x in e2:
            A(x)
        A(f"{fin}:")
        hooks["special_end"](A, role)

    for n, (kind, role) in enumerate(labels):
        if n:
            hooks["target"](A, labels[kind, role])
            A.restore(sv0)
            toks.clear()
            toks.update(toks0)
        stream(kind, role)
        assert "p1exit" in hooks or "p2exit" in hooks or (all(not e[1] for e in A.vm) and all(not e[1] for e in A.lg)), A.state()
```

```python
import sys
from common import *
import phase1 as p1

ST = " sc1"
LD = " sc1"

FLAG_S = WS_FLAG
FLAG_O = WS_FLAG + 0x8000
SPIN = 1 << 17

L_WO, L_RING, L_OP, L_MISC = 0, 57344, 106496, 155648
L_O = L_RING
L_TR = 131072
M_HW, M_AS, M_GS, M_MAX = L_MISC, L_MISC + 2048, L_MISC + 3072, L_MISC + 4096

S_F1, S_SPIN = 27, 3
S_HEAD, S_QB, S_MB, S_NB, S_GW = range(66, 71)
S_AG = 61
S_MO, S_T, S_T2, S_T3, S_OFF, S_CNT = 54, 56, 57, 58, 60, 61
SRD_DBG, SRD_OUT = 48, 48
SRD_K, SRD_V, S_Q, S_ME, S_OO, S_OF = 72, 76, 80, 84, 86, 87
SRD_WD, SRD_WO = 72, 76
S_RA, S_RB, S_WDO, S_WOO, S_HOFF, S_GOFF, S_OUTO = range(80, 87)

VL16 = p1.VL16
VPOLL, VHW = 12, 14
OA, SB, PB, VB, KB, QF = 16, 80, 112, 160, 192, 224
VV0, VGA, VONE, VM, VHI = 10, 11, 13, 1, 7
VMLO, VMHI, VGAD = 120, 121, 122
S_LO = 62
VK = [VL16, 144, 145, 146]
VV = [VV0] + list(range(147, 154))
VXA, VSW, VSR = 154, 158, 159
ACC, HB, WBUF = 16, 80, 160
GL16, GSW, GSR = 1, 2, 3
NDEF = 10
VDW0, VDW1, VTR = 9, 10, 11
VH0, VH1, VAWA, VAWB, VG = 242, 243, 244, 246, 248
ACA, TB_, TA_ = 80, 96, 112
POLLMASK = "0x1ffff"
POLL = f"buffer_load_dword v6, v{VPOLL}, {sr(SRD_WS, 4)}, 0 offen sc1"


class Gen:
    def __init__(self, name, stamps, opt=None):
        self.A = Asm()
        self.name = name
        self.stamp = stamps
        self.opt = opt or {}
        self.late = []
        self.nlab = 0

    def lab(self, s):
        self.nlab += 1
        return f"{self.name}_{s}{self.nlab}"

    def one_lane_store(self, value, soff, wave=None, tmp=5):
        A = self.A
        skip = None
        if wave is not None:
            skip = self.lab("skip")
            A(f"s_cmp_lg_u32 s{S_WAVE}, {wave}")
            A(f"s_cbranch_scc1 {skip}")
        A(f"v_mov_b32 v{tmp}, {value}")
        A("s_mov_b64 exec, 1")
        A.uncounted(f"buffer_store_dword v{tmp}, off, {sr(SRD_WS, 4)}, s{soff} sc1")
        A("s_mov_b64 exec, -1")
        if skip:
            A(f"{skip}:")

    def check_words(self, load, cmp_, tok, mask=None, nap=0):
        A = self.A
        ok, loop = self.lab("ok"), self.lab("again")
        A.wait_tok(tok)
        if mask:
            A(f"s_mov_b64 exec, {mask}")
        A(cmp_)
        A(f"s_cbranch_vccz {ok}")
        sv = A.save()
        A(f"s_mov_b32 s{S_SPIN}, {SPIN}")
        A(f"{loop}:")
        if nap:
            A(f"s_sleep {nap}")
        A(load)
        A("s_waitcnt vmcnt(0)" if load.startswith("buffer") else "s_waitcnt lgkmcnt(0)")
        A(cmp_)
        A(f"s_cbranch_vccz {ok}")
        A(f"s_sub_u32 s{S_SPIN}, s{S_SPIN}, 1")
        A(f"s_cbranch_scc0 {loop}")
        A.restore(sv)
        A(f"{ok}:")
        if mask:
            A("s_mov_b64 exec, -1")

    def target(self, A, label, inline=False):
        if not self.opt.get("warm", 0):
            A(f"{label}:")
            return
        if inline:
            A(f"s_branch {label}")
        A(".p2align 6")
        A(f"{label}_w:")
        A("s_setpc_b64 s[0:1]")
        A(f"{label}:")

    def warm(self, A, special, own):
        if not self.opt.get("warm", 0):
            return
        n = self.name
        t = own + ([f"{n}_a_plain", f"{n}_g_plain", f"{n}_a_poll", f"{n}_a_go", f"{n}_g_go"] if special else
                   [f"{n}_a_e2", f"{n}_g_e2", f"{n}_a_late", f"{n}_a_go"])
        for w, lab in enumerate(t):
            skip = self.lab("skip")
            A(f"s_cmp_lg_u32 s{S_WAVE}, {w}")
            A(f"s_cbranch_scc1 {skip}")
            A(f"s_call_b64 s[0:1], {lab}_w")
            A(f"{skip}:")

    def masked(self, mask, text):
        self.A(f"s_mov_b64 exec, {mask}")
        t = self.A(text)
        self.A("s_mov_b64 exec, -1")
        return t

    def hooks(self, early_poll):
        A = self.A
        st = {}

        def entry(A):
            self.code_prefetch(A)
            skip = self.lab("skip")
            A(f"""
            s_lshl_b32 s{S_F1}, s{p1.S_RB}, 4
            s_add_u32 s{S_F1}, s{S_F1}, s{p1.S_CG}
            s_lshl_b32 s{S_F1}, s{S_F1}, 7
            s_add_u32 s{S_F1}, s{S_F1}, {FLAG_S}
            s_cmp_lg_u32 s{S_WAVE}, 0
            s_cbranch_scc1 {skip}
            s_and_b32 s{p1.S_T}, s2, 7
            s_lshl_b32 s{p1.S_T}, s{p1.S_T}, 1
            s_lshr_b32 s{p1.S_T2}, s2, 7
            s_add_u32 s{p1.S_T}, s{p1.S_T}, s{p1.S_T2}
            s_bfe_u32 s{p1.S_T2}, s2, 0x40003
            s_lshl_b32 s{p1.S_T2}, s{p1.S_T2}, 6
            s_add_u32 s{p1.S_T}, s{p1.S_T}, s{p1.S_T2}
            s_lshl_b32 s{p1.S_T}, s{p1.S_T}, 7
            s_add_u32 s{p1.S_T}, s{p1.S_T}, {FLAG_O}
            v_mov_b32 v10, 0
            v_lshlrev_b32 v11, 11, v0
            s_mov_b64 exec, 15
            """)
            A.uncounted(f"buffer_store_dword v10, v11, {sr(SRD_WS, 4)}, s{p1.S_T} offen sc1")
            A("s_mov_b64 exec, 1")
            A.uncounted(f"buffer_store_dword v10, off, {sr(SRD_WS, 4)}, s{S_F1} sc1")
            A("s_mov_b64 exec, -1")
            A(f"{skip}:")

        def p1bar(A, stg, role):
            if stg != 4:
                return
            srd(A, SRD_DBG, P_DBG, 256)
            if role:
                return
            skip = self.lab("skip")
            A(f"""
            s_cmp_lg_u32 s{S_WAVE}, 0
            s_cbranch_scc1 {skip}
            s_and_b32 s3, s2, 3
            s_lshl_b32 s3, s3, 6
            v_mov_b32 v13, 1
            s_mov_b64 exec, 1
            """)
            A.uncounted(f"buffer_atomic_add v13, off, {sr(SRD_DBG, 4)}, s3 sc1")
            A("s_mov_b64 exec, -1")
            A(f"{skip}:")

        dbg_load = f"buffer_load_dword v7, v8, {sr(SRD_DBG, 4)}, 0 offen sc1"

        def clear_misc(A):
            A(f"""
            s_lshl_b32 s3, s{S_WAVE}, 9
            s_add_u32 s3, s3, {L_MISC}
            v_lshl_add_u32 v8, v0, 3, s3
            v_mov_b64 v[6:7], 0
            ds_write_b64 v8, v[6:7]
            """)

        def p2step(A, t, role):
            if t == 8:
                if early_poll:
                    clear_misc(A)
                A(f"""
                v_and_b32 v8, 3, v0
                v_lshlrev_b32 v8, 6, v8
                """)
                st["dbg"] = A(dbg_load)
            if t in (4, 8, 12, 16, 20, 24):
                self.stamp(A, f"p2_{t}")
            if t == 20:
                self.check_words(dbg_load, "v_cmp_gt_u32 vcc, 64, v7", st["dbg"])
            if early_poll and not role and t >= 4:
                early, consts = self.setup_units()
                units, lo, hi = (early, 4, 12) if t < 12 else (consts, 12, 28)
                for u in units[len(units) * (t - lo) // (hi - lo):len(units) * (t + 1 - lo) // (hi - lo)]:
                    for x in u:
                        A(x)
            if early_poll and role and t >= 16 and t % 2 == 0:
                for x in self.wd_dma((t - 16) // 2):
                    A(x)
            if t == self.opt.get('polls', 25) and early_poll and not role:
                st["poll"] = self.masked(POLLMASK, POLL)

        def qkv_done(A, role):
            if not role:
                self.one_lane_store(1, S_F1, wave=0)
                self.stamp(A, "rt_pubq")

        def regular_end(A, role):
            if not role:
                A.wait_tok(st["poll"])
            A(f"s_branch {self.name}_{'g' if role else 'a'}_e2")

        def special_end(A, role):
            A("s_waitcnt vmcnt(0) lgkmcnt(0)")
            A("s_barrier")
            qkv_done(A, role)
            clear_misc(A)
            A("s_waitcnt lgkmcnt(0)")
            A("s_barrier")
            A(f"s_branch {self.name}_{'g' if role else 'a'}_plain")

        h = dict(stamp=self.stamp, label=self.lab, entry=entry, prologue=self.warm, target=self.target, p1bar=p1bar, p2step=p2step,
                 idle=lambda A, role: self.precompute_g0(A) if role else self.precompute(A, 0),
                 qkv_done=qkv_done, regular_end=regular_end, special_end=special_end)
        if self.opt.get("p1exit"):
            h["p1exit"] = self.finish
        if self.opt.get("p2exit"):
            h["p2exit"] = self.finish
        return h

    def code_prefetch(self, A):
        if not self.opt.get("cpf", 1):
            return
        here, skip = self.lab("pc"), self.lab("skip")
        A(f"""
        s_cmp_lg_u32 s{S_WAVE}, 7
        s_cbranch_scc1 {skip}
        s_getpc_b64 s[0:1]
        {here}:
        s_sub_u32 s0, s0, {here}-{self.name}
        s_subb_u32 s1, s1, 0
        s_lshr_b32 s{p1.S_T}, s2, 3
        s_lshl_b32 s{p1.S_T}, s{p1.S_T}, 11
        v_lshl_add_u32 v10, v0, 7, s{p1.S_T}
        v_min_u32 v10, {self.name}_exit-{self.name}, v10
        s_mov_b64 exec, 0xffff
        """)
        A.uncounted("global_load_dword v11, v10, s[0:1]")
        A("s_mov_b64 exec, -1")
        A(f"{skip}:")

    def precompute(self, A, role):
        T, T2 = 0, 1
        A(f"""
        s_and_b32 s{T}, s2, 7
        s_lshr_b32 s{T2}, s2, 3
        s_lshl_b32 s{S_HEAD}, s{T}, 1
        s_lshr_b32 s{S_QB}, s2, 7
        s_add_u32 s{S_HEAD}, s{S_HEAD}, s{S_QB}
        s_and_b32 s{S_QB}, s{T2}, 15
        s_lshl_b32 s{S_MB}, s{T}, 2
        s_and_b32 s{S_NB}, s{T2}, 3
        s_add_u32 s{S_MB}, s{S_MB}, s{S_NB}
        s_lshr_b32 s{S_NB}, s{T2}, 2
        s_and_b32 s{S_GW}, s{S_WAVE}, 3
        s_lshl_b32 s{T}, s{S_WAVE}, 8
        s_add_u32 s{T}, s{T}, {M_HW}
        v_lshl_add_u32 v{VHW}, v0, 2, s{T}
        """)
        if role == 0:
            self.precompute_a(A)
        else:
            self.precompute_g(A)

    def precompute_a(self, A):
        T, T2 = 0, 1
        a0, a1 = S_Q, S_Q + 1
        A(f"""
        s_mul_i32 s{T}, s{S_HEAD}, 28
        s_add_u32 s{T2}, s{T}, 27
        s_lshr_b32 s{a0}, s{T}, 6
        s_lshr_b32 s{a1}, s{T2}, 6
        s_sub_u32 s{a1}, s{a1}, s{a0}
        v_and_b32 v5, 1, v0
        v_mul_u32_u24 v5, s{a1}, v5
        v_bfe_u32 v6, v0, 1, 1
        v_mad_u32_u24 v5, v6, 7, v5
        v_bfe_u32 v6, v0, 2, 2
        v_lshl_add_u32 v5, v6, 4, v5
        s_lshl_b32 s{a1}, s{S_GW}, 6
        s_add_u32 s{a1}, s{a1}, s{a0}
        v_add_u32 v5, s{a1}, v5
        s_lshl_b32 s{a1}, s{S_QB}, 4
        s_lshr_b32 s{T}, s{S_HEAD}, 3
        s_add_u32 s{T}, s{T}, s{a1}
        s_add_u32 s{T}, s{T}, 14
        v_writelane_b32 v5, s{T}, 16
        v_lshlrev_b32 v5, 7, v5
        v_add_u32 v{VPOLL}, {FLAG_S}, v5
        v_lshrrev_b32 v5, 5, v0
        v_mul_u32_u24 v5, {7168 - 512}, v5
        v_add_u32 v{VV0}, v5, v{VL16}
        s_mul_i32 s{S_OO}, s{S_HEAD}, 7
        s_lshr_b32 s{S_OO}, s{S_OO}, 1
        s_lshl_b32 s{S_OO}, s{S_OO}, 9
        s_mul_i32 s{T2}, s{S_GW}, {16 * 28672}
        s_add_u32 s{T}, s{T2}, s{S_OO}
        s_add_u32 s{T}, s{T}, {WS_K}
        """)
        srd(A, SRD_K, P_WS, 16 * 28672, add=f"s{T}")
        A(f"""
        s_mul_i32 s{T}, s{S_HEAD}, 448
        s_add_u32 s{T}, s{T}, s{T2}
        s_add_u32 s{T}, s{T}, {WS_V}
        """)
        srd(A, SRD_V, P_WS, 16 * 28672, add=f"s{T}")
        A(f"s_lshl_b32 s{T2}, s{S_QB}, 2")
        for j in range(4):
            A(f"""
            s_add_u32 s{T}, s{S_GW}, {j + 1}
            s_and_b32 s{T}, s{T}, 3
            s_add_u32 s{T}, s{T}, s{T2}
            s_mul_i32 s{T}, s{T}, 28672
            s_add_u32 s{S_Q + j}, s{T}, s{S_OO}
            """)
        A(f"""
        s_add_u32 s{T}, s{T2}, s{S_GW}
        s_lshl_b32 s{S_OFF}, s{T}, 7
        s_add_u32 s{S_AG}, s{S_OFF}, {WS_G}
        s_lshl_b32 s{T}, s{T}, 4
        s_add_u32 s{T}, s{T}, s{S_HEAD}
        s_lshl_b32 s{S_OO}, s{T}, 11
        s_add_u32 s{S_OO}, s{S_OO}, {WS_O}
        s_lshl_b32 s{S_OF}, s{T}, 7
        s_add_u32 s{S_OF}, s{S_OF}, {FLAG_O}
        s_mov_b32 s{S_ME}, 0x0fffffff
        s_mov_b32 s{S_ME + 1}, 0x0fffffff
        """)

    def precompute_g0(self, A):
        T = 0
        srd(A, SRD_WD, P_WD, F * D * 2)
        A(f"""
        v_lshrrev_b32 v5, 3, v0
        v_mul_u32_u24 v6, 896, v5
        v_lshrrev_b32 v5, 2, v0
        v_and_b32 v5, 4, v5
        v_and_b32 v7, 7, v0
        v_xor_b32 v5, v5, v7
        v_lshl_add_u32 v{VDW0}, v5, 4, v6
        v_add_u32 v{VDW1}, {7168 - 1024}, v{VDW0}
        s_and_b32 s{S_GW}, s{S_WAVE}, 3
        s_mul_i32 s{S_RB}, s{S_GW}, 14336
        s_mul_i32 s{S_RA}, s{S_GW}, 12288
        s_add_u32 s{S_RA}, s{S_RA}, {L_RING}
        s_lshr_b32 s{T}, s2, 5
        s_lshl_b32 s{T}, s{T}, 7
        s_mul_i32 s{S_WDO}, s{S_GW}, {448 * 896}
        s_add_u32 s{S_WDO}, s{S_WDO}, s{T}
        """)

    def precompute_g(self, A):
        T, T2 = 0, 1
        srd(A, SRD_WO, P_WO, D * D * 2)
        A(f"""
        s_lshl_b32 s{T}, s{S_NB}, 7
        s_mul_i32 s{S_WOO}, s{S_GW}, {112 * 896}
        s_add_u32 s{S_WOO}, s{S_WOO}, s{T}
        s_and_b32 s{T2}, s{S_GW}, 1
        s_lshl_b32 s{S_OUTO}, s{T2}, 6
        s_add_u32 s{S_OUTO}, s{S_OUTO}, s{T}
        s_lshl_b32 s{T2}, s{T2}, 3
        v_and_b32 v5, 1, v0
        v_lshlrev_b32 v5, 2, v5
        v_bfe_u32 v6, v0, 1, 1
        v_add_u32 v5, v5, v6
        v_bfe_u32 v6, v0, 4, 1
        v_lshl_add_u32 v5, v6, 1, v5
        v_and_b32 v6, 8, v0
        v_xor_b32 v5, v5, v6
        v_xor_b32 v5, s{T2}, v5
        v_lshrrev_b32 v6, 5, v0
        v_bfe_u32 v7, v0, 2, 2
        v_lshl_add_u32 v6, v6, 2, v7
        v_lshlrev_b32 v6, 7, v6
        v_lshl_add_u32 v{VTR}, v5, 3, v6
        s_lshr_b32 s{T}, s{S_GW}, 1
        s_lshl_b32 s{T2}, s{S_MB}, 1
        s_add_u32 s{T}, s{T}, s{T2}
        s_lshl_b32 s{S_GOFF}, s{T}, 7
        s_add_u32 s{S_GOFF}, s{S_GOFF}, {WS_G}
        s_mul_i32 s{T}, s{T}, {32 * 896}
        s_add_u32 s{S_OUTO}, s{S_OUTO}, s{T}
        s_mul_i32 s{S_HOFF}, s{S_MB}, {2 * 114688}
        s_mul_i32 s{T}, s{S_GW}, {28 * 1024}
        s_add_u32 s{S_HOFF}, s{S_HOFF}, s{T}
        s_add_u32 s{S_HOFF}, s{S_HOFF}, {WS_H}
        s_lshr_b32 s{T}, s{S_MB}, 1
        s_lshl_b32 s{T}, s{T}, 4
        s_mul_i32 s{T2}, s{S_GW}, 7
        s_lshr_b32 s{T2}, s{T2}, 1
        s_add_u32 s{T}, s{T}, s{T2}
        s_lshl_b32 s{T}, s{T}, 7
        s_add_u32 s{T}, s{T}, {FLAG_S}
        v_and_b32 v5, 3, v0
        v_lshl_add_u32 v{VPOLL}, v5, 7, s{T}
        """)

    def k_load(self, b):
        return [f"buffer_load_dwordx4 {vr(KB + 8 * b, 4)}, v{VK[b]}, {sr(SRD_K, 4)}, s{S_OFF} offen{LD}",
                f"buffer_load_dwordx4 {vr(KB + 8 * b + 4, 4)}, v{VK[b]}, {sr(SRD_K, 4)}, s{S_OFF} offen offset:1024{LD}"]

    def v_load(self, b):
        return [f"s_mov_b64 exec, {sr(S_ME, 2)}",
                f"buffer_load_dwordx4 {vr(VB + 8 * b, 4)}, v{VV[2 * b]}, {sr(SRD_V, 4)}, s{S_OFF} offen{LD}",
                f"buffer_load_dwordx4 {vr(VB + 8 * b + 4, 4)}, v{VV[2 * b + 1]}, {sr(SRD_V, 4)}, s{S_OFF} offen{LD}",
                "s_mov_b64 exec, -1"]

    @staticmethod
    def qk(i, half):
        b, j = (i >> 2) & 3, i & 3
        return mfma(SB + 16 * (i & 1), KB + 8 * b + 4 * half, QF + 8 * j + 4 * half, "0" if half == 0 else None)

    @staticmethod
    def pv(i, half, first=False):
        b, j = (i >> 2) & 3, i & 3
        return mfma(OA + 16 * j, VB + 8 * b + 4 * half, PB + 4 * half, "0" if first else None)

    @staticmethod
    def grp(i, g):
        r = SB + 16 * (i & 1) + 4 * g
        return [f"v_exp_f32 v{r + k}, v{r + k}" for k in range(4)] + \
               [f"v_cvt_pk_bf16_f32 v{PB + 2 * g + k}, v{r + 2 * k}, v{r + 2 * k + 1}" for k in range(2)]

    def wait_pair(self, base):
        A = self.A
        want = {f"v{base + 7}"}
        for e in A.vm:
            if e[1] & want:
                A.wait_tok(e[0])
                return

    def setup_units(self):
        R = Rec()
        for b in range(1, 4):
            R(f"v_add_u32 v{VK[b]}, {b * 28672}, v{VL16}")
        for n in range(1, 8):
            R(f"v_add_u32 v{VV[n]}, {n * 14336}, v{VV0}")
        for j in range(4):
            R(f"""
            s_add_u32 s0, s{S_GW}, {j + 1}
            s_and_b32 s0, s0, 3
            s_mul_i32 s0, s0, 12288
            s_add_u32 s0, s0, {L_OP + (j % 3) * 4096}
            v_add_u32 v{VXA + j}, s0, v{VL16}
            """)
        self.sync_addresses(M_AS, A=R, T=0)
        R(f"""
        s_and_b32 s0, s{S_HEAD}, 1
        v_lshrrev_b32 v{VMLO}, 5, v0
        v_or_b32 v{VMHI}, s0, v{VMLO}
        v_xor_b32 v{VMHI}, s0, v{VMHI}
        v_add_u32 v{VMHI}, -1, v{VMHI}
        v_xor_b32 v{VMLO}, 1, v{VMLO}
        v_and_b32 v{VMLO}, s0, v{VMLO}
        v_add_u32 v{VMLO}, -1, v{VMLO}
        v_and_b32 v{VGAD}, 31, v0
        v_lshlrev_b32 v{VGAD}, 2, v{VGAD}
        """)
        R(f"""
        v_and_b32 v{VONE}, 31, v0
        v_cmp_eq_u32 s[0:1], 28, v{VONE}
        v_mov_b32 v{VONE}, 0x3f803f80
        v_cndmask_b32 v{VONE}, 0, v{VONE}, s[0:1]
        """)
        return R.units, [[f"v_mov_b32 v{VB + r}, v{VONE}"] for r in range(32)]

    def first_loads(self):
        q = lambda j: [[f"buffer_load_dwordx4 {vr(QF + 8 * j + 4 * t, 4)}, v{VL16}, {sr(SRD_WS, 4)}, s{S_Q + j} offen"
                        f"{' offset:1024' * t}{LD}"] for t in range(2)]
        k = lambda b: [[x] for x in self.k_load(b)]
        return q(0) + k(0) + q(1) + [self.v_load(0)] + q(2) + q(3) + k(1) + \
            [[f"buffer_load_dword v{VGA}, v{VGAD}, {sr(SRD_WS, 4)}, s{S_AG} offen{LD}"]]

    def mask_q(self, j):
        self.wait_pair(QF + 8 * j)
        for r, m in ((0, VMLO), (1, VMLO), (6, VMHI), (7, VMHI)):
            self.A(f"v_and_b32 v{QF + 8 * j + r}, v{QF + 8 * j + r}, v{m}")

    def attn_main(self):
        A = self.A
        todo = [x for kt in range(1, 16) for x in (("v", kt, 4 * kt - 12), ("k", kt + 1, 4 * kt - 10)) if x[1] < 16]
        base = 0

        def loads(i, kind):
            nonlocal base
            if not todo or todo[0][2] > i or (todo[0][2] == i and todo[0][0] != kind) or issued[0] == i:
                return []
            kd, kt, _ = todo.pop(0)
            issued[0] = i
            o = []
            if kt >> 2 != base:
                base = kt >> 2
                o.append(f"s_add_u32 s{S_OFF}, s{S_OFF}, {4 * 28672}")
            return o + (self.v_load(kt & 3) if kd == "v" else self.k_load(kt & 3))

        issued = [-1]
        for i in range(64):
            kt, b, j = i >> 2, (i >> 2) & 3, i & 3
            seq = []
            if i < 3:
                self.mask_q(i + 1)
            if i < 63:
                if j == 3:
                    self.wait_pair(KB + 8 * ((b + 1) & 3))
                seq.append(self.qk(i + 1, 0))
            seq += self.grp(i, 0)
            if i:
                seq.append(self.pv(i - 1, 1))
            seq += loads(i, "v")
            seq += self.grp(i, 1)
            if i < 63:
                seq.append(self.qk(i + 1, 1))
            seq += loads(i, "k")
            seq += self.grp(i, 2)
            for x in seq:
                A(x)
            if j == 0:
                self.wait_pair(VB + 8 * b)
            A(self.pv(i, 0, first=i < 4))
            if i == 4:
                A(f"ds_write_b32 v{VHW}, v{VHW}")
            if i in (0, 4, 8, 16):
                self.stamp(A, f"a_t{i}")
            g3 = self.grp(i, 3)
            if i > 60:
                w = [f"ds_write_b128 v{VXA + j - 1}, {vr(OA + 16 * (j - 1) + 4 * q, 4)} offset:{1024 * q}" for q in range(4)]
                g3 = [g3[0], w[0], g3[1], w[1], g3[2], w[2], g3[3], w[3]] + g3[4:]
            for x in g3:
                A(x)
            if i == 63:
                A(f"ds_write_b32 v{VSW}, v{VSW}")
        assert not todo
        load = f"ds_read_b32 v6, v{VSR}"
        tok = A(load)
        A(self.pv(63, 1))
        self.stamp(A, "a_loop")
        self.stamp(A, "rt_loop")
        self.check_words(load, "v_cmp_eq_u32 vcc, 0, v6", tok)
        self.stamp(A, "a_sync")

    def lds_sync(self, value_reg, cmp_, VSW=VSW, VSR=VSR):
        A = self.A
        A(f"ds_write_b32 v{VSW}, v{value_reg}")
        load = f"ds_read_b32 v6, v{VSR}"
        tok = A(load)
        self.check_words(load, cmp_, tok)

    def sync_addresses(self, base, VSW=VSW, VSR=VSR, A=None, T=S_T):
        (A or self.A)(f"""
        s_lshl_b32 s{T}, s{S_GW}, 8
        s_add_u32 s{T}, s{T}, {base}
        v_lshl_add_u32 v{VSW}, v0, 2, s{T}
        v_and_b32 v{VSR}, 3, v0
        v_lshlrev_b32 v{VSR}, 8, v{VSR}
        v_add_u32 v{VSR}, {base}, v{VSR}
        """)

    def attn_finish(self):
        A = self.A
        R, O = VB, OA + 48
        order = [3, 0, 1, 2]
        for q in order:
            for p in range(3):
                A(f"ds_read_b128 {vr(R + 16 * p + 4 * q, 4)}, v{VXA + 3} offset:{4096 * p + 1024 * q}")
        for n, q in enumerate(order):
            for k in range(4):
                A(f"v_add_f32 v{R + 4 * q + k}, v{R + 4 * q + k}, v{R + 16 + 4 * q + k}")
            for k in range(4):
                A(f"v_add_f32 v{O + 4 * q + k}, v{O + 4 * q + k}, v{R + 32 + 4 * q + k}")
            for k in range(4):
                A(f"v_add_f32 v{O + 4 * q + k}, v{O + 4 * q + k}, v{R + 4 * q + k}")
            if n == 0:
                A(f"v_mov_b32 v8, v{O + 12}")
                A(f"v_mov_b32 v9, v{O + 12}")
            if n == 1:
                A("v_permlane32_swap_b32 v8, v9")
                A("v_rcp_f32 v12, v9")
            if n == 2:
                A(f"v_med3_f32 v8, v9, s{S_LO}, v{VHI}")
                A(f"v_mul_f32 v12, v12, v{VGA}")
                A("v_cmp_neq_f32 vcc, v8, v9")
        A(f"s_cbranch_vccnz {self.name}_slow")
        A(f"{self.name}_a_fin:")
        for hf in range(2):
            for r in range(8 * hf, 8 * hf + 8):
                A(f"v_mul_f32 v{O + r}, v{O + r}, v12")
            for jj in range(4 * hf, 4 * hf + 4):
                A(f"v_cvt_pk_bf16_f32 v{PB + jj}, v{O + 2 * jj}, v{O + 2 * jj + 1}")
            if hf == 0:
                A(f"buffer_store_dwordx4 {vr(PB, 4)}, v{VL16}, {sr(SRD_WS, 4)}, s{S_OO} offen{ST}")
        A(f"""
        s_mov_b32 exec_lo, 0
        v_mov_b64 {vr(PB + 6, 2)}, 0
        s_mov_b32 exec_lo, -1
        buffer_store_dwordx4 {vr(PB + 4, 4)}, v{VL16}, {sr(SRD_WS, 4)}, s{S_OO} offen offset:1024{ST}
        """)
        self.stamp(A, "a_st")
        self.tail_setup(0)
        A("s_waitcnt vmcnt(0)")
        self.one_lane_store(1, S_OF, tmp=8)

    def slow_path(self):
        A = self.A
        O, Q = OA + 48, QF + 24
        A.clear()
        A(f"{self.name}_slow:")
        A("s_waitcnt vmcnt(0) lgkmcnt(0)")
        A(f"s_mul_i32 s{S_T}, s{S_GW}, {16 * 28672}")
        for d in (SRD_K, SRD_V):
            A(f"s_sub_u32 s{d}, s{d}, s{S_T}")
            A(f"s_subb_u32 s{d + 1}, s{d + 1}, 0")
            A(f"s_mov_b32 s{d + 2}, {64 * 28672}")
        for r in range(8):
            A(f"v_mov_b32 v{VB + r}, v{VONE}")
        A(f"v_mov_b32 v{VM}, 0xff800000")
        for sub in (0, 1):
            lab = self.lab("slowloop")
            A(f"s_mov_b32 s{S_OFF}, 0")
            if sub:
                for r in range(16):
                    A(f"v_mov_b32 v{O + r}, 0")
            A(f"{lab}:")
            for x in self.k_load(0) + (self.v_load(0) if sub else []):
                A(x)
            A(mfma(SB, KB, Q, "0"))
            A(mfma(SB, KB + 4, Q + 4))
            if not sub:
                for r in range(0, 16, 2):
                    A(f"v_max3_f32 v{VM}, v{SB + r}, v{SB + r + 1}, v{VM}")
            else:
                for r in range(16):
                    A(f"v_sub_f32 v{SB + r}, v{SB + r}, v{VM}")
                for g in range(4):
                    for x in self.grp(0, g):
                        A(x)
                A(mfma(O, VB, PB))
                A(mfma(O, VB + 4, PB + 4))
            A(f"s_add_u32 s{S_OFF}, s{S_OFF}, 28672")
            A(f"s_cmp_lt_u32 s{S_OFF}, {64 * 28672}")
            A(f"s_cbranch_scc1 {lab}")
            if not sub:
                A(f"v_mov_b32 v9, v{VM}")
                A(f"v_permlane32_swap_b32 v9, v{VM}")
                A(f"v_max_f32 v{VM}, v9, v{VM}")
        A(f"""
        v_mov_b32 v8, v{O + 12}
        v_mov_b32 v9, v{O + 12}
        v_permlane32_swap_b32 v8, v9
        v_rcp_f32 v12, v9
        v_mul_f32 v12, v12, v{VGA}
        s_branch {self.name}_a_fin
        """)

    @staticmethod
    def slot(ks):
        k = ks % 13
        return ("A", k) if k < 6 else ("B", k - 6)

    def wd_dma(self, ks):
        reg, sl = self.slot(ks)
        return [f"s_add_u32 m0, s{S_RA if reg == 'A' else S_RB}, {sl * 2048}",
                f"s_add_u32 s0, s{S_WDO}, {ks * 16 * 896}",
                f"buffer_load_dwordx4 v{VDW0}, {sr(SRD_WD, 4)}, s0 offen lds",
                f"buffer_load_dwordx4 v{VDW1}, {sr(SRD_WD, 4)}, s0 offen offset:1024 lds"]

    def wo_dma(self, n):
        return [f"s_add_u32 m0, s{S_RB}, {n * 2048}",
                f"s_add_u32 s{S_T}, s{S_WOO}, {n * 16 * 896}",
                f"buffer_load_dwordx4 v{VDW0}, {sr(SRD_WO, 4)}, s{S_T} offen lds",
                f"buffer_load_dwordx4 v{VDW1}, {sr(SRD_WO, 4)}, s{S_T} offen offset:1024 lds"]

    def h_load(self, ks):
        b = HB + 8 * (ks % 10)
        return [f"s_add_u32 s{S_T}, s{S_HOFF}, {ks * 1024}",
                f"buffer_load_dwordx4 {vr(b, 4)}, v{VH0}, {sr(SRD_WS, 4)}, s{S_T} offen{LD}",
                f"buffer_load_dwordx4 {vr(b + 4, 4)}, v{VH1}, {sr(SRD_WS, 4)}, s{S_T} offen{LD}"]

    def gemm_start(self, e2):
        A = self.A
        tok = None
        for x in (e2[0] + e2[1] if e2 else sum([self.wd_dma(ks) for ks in range(6)], [])):
            tok = A(x)
        A("s_setprio 2")
        for ks in range(6, 6 + self.opt.get("gearly", 0)):
            for x in self.wd_dma(ks):
                A(x)
        self.precompute(A, 1)
        A.wait_tok(tok)

    def gemm_main(self):
        A = self.A
        toks = {}
        A.clear()
        first = 6 + self.opt.get("gearly", 0)
        for ks in range(6, first):
            for _ in range(2):
                A.nid += 1
                A.vm.append([A.nid, set()])
                toks[ks] = A.nid

        def issue(lst, key=None):
            for x in lst:
                t = A(x)
                if t and key is not None:
                    toks[key] = t

        def trr(ks):
            reg, sl = self.slot(ks)
            a = VAWA if reg == "A" else VAWB
            b = WBUF + 8 * (ks % 10)
            o = sl * 2048
            A.wait_tok(toks.get(ks))
            issue([f"ds_read_b64_tr_b16 {vr(b, 2)}, v{a} offset:{o}",
                   f"ds_read_b64_tr_b16 {vr(b + 2, 2)}, v{a} offset:{o + 1024}",
                   f"ds_read_b64_tr_b16 {vr(b + 4, 2)}, v{a + 1} offset:{o}",
                   f"ds_read_b64_tr_b16 {vr(b + 6, 2)}, v{a + 1} offset:{o + 1024}"], ("r", ks))

        def dma(ks):
            if ks >= 13:
                A.wait_tok(toks[("r", ks - 13)])
            issue(self.wd_dma(ks), ks)

        def mm(ks):
            for jj in range(4):
                A(mfma(ACC + 16 * jj, WBUF + 8 * (ks % 10) + 4 * (jj & 1), HB + 8 * (ks % 10) + 4 * (jj >> 1),
                       "0" if ks == 0 else None))

        A(f"""
        ds_write_b32 v{VHW}, v{VHW}
        v_xor_b32 v5, 64, v{VTR}
        v_add_u32 v{VAWA}, s{S_RA}, v{VTR}
        v_add_u32 v{VAWA + 1}, s{S_RA}, v5
        v_and_b32 v13, 7, v0
        v_lshlrev_b32 v13, 8, v13
        v_add_u32 v13, {M_HW}, v13
        """)
        for ks in range(6):
            trr(ks)
        A(f"""
        v_mov_b32 v{GL16}, v{VL16}
        v_add_u32 v{VAWB}, s{S_RB}, v{VTR}
        v_add_u32 v{VAWB + 1}, s{S_RB}, v5
        s_lshr_b32 s{S_T}, s{S_GW}, 1
        s_mul_i32 s{S_T}, s{S_T}, 114688
        v_add_u32 v{VH0}, s{S_T}, v{GL16}
        s_sub_u32 s{S_T}, 114688, s{S_T}
        v_add_u32 v{VH1}, s{S_T}, v{GL16}
        """)
        self.sync_addresses(M_GS, GSW, GSR)
        load = "ds_read_b32 v6, v13"
        tk = A(load)
        self.check_words(load, "v_cmp_eq_u32 vcc, 0, v6", tk, nap=1)
        self.one_lane_store(2, S_F1, wave=4)
        self.stamp(A, "g_hw")
        A(f"s_cmp_ge_u32 s{S_NB}, 7")
        A(f"s_cbranch_scc1 {self.name}_exit")
        A(f"""
        v_and_b32 v5, 31, v0
        v_lshlrev_b32 v5, 2, v5
        buffer_load_dword v{VG}, v5, {sr(SRD_WS, 4)}, s{S_GOFF} offen{LD}
        """)
        deep = self.opt.get("gdeep", 3)
        for ks in range(first, 23):
            if 6 <= ks - 7 < 10:
                trr(ks - 7)
            A.wait_tok(toks.get(ks - deep))
            dma(ks)
        self.stamp(A, "g_dma")
        tok = self.masked("15", POLL)
        self.check_words(POLL, "v_cmp_ne_u32 vcc, 2, v6", tok, mask="15", nap=2)
        self.stamp(A, "g_flags")
        self.stamp(A, "rt_gflags")
        A("s_setprio 0")
        nh = self.opt.get("nh", 3)
        for ks in range(nh):
            issue(self.h_load(ks))
        ramp = 28 - NDEF - (10 - nh)
        for ks in range(28 - NDEF):
            mm(ks)
            for _ in range(2 if ks >= ramp else 1):
                if nh < 28:
                    assert nh - 10 <= ks
                    issue(self.h_load(nh))
                    nh += 1
            trr(ks + 10)
            if 1 <= ks <= 5:
                dma(ks + 22)
        assert nh == 28
        A.wait_tok(toks[("r", 25)])
        for n in range(7):
            issue(self.wo_dma(n))
        A(f"v_add_u32 v9, s{S_RA}, v{GL16}")
        A(f"v_subrev_u32 v13, {M_GS - M_AS}, v{GSR}")
        A(f"v_sub_f32 v{VG}, 1.0, v{VG}")
        A("s_waitcnt lgkmcnt(0)")
        for jj in range(1, 4):
            A(f"""
            s_xor_b32 s{S_T}, s{S_GW}, {jj}
            s_mul_i32 s{S_T}, s{S_T}, 12288
            s_add_u32 s{S_T}, s{S_T}, {L_RING + 4096 * (jj - 1)}
            v_add_u32 v{VAWA + jj - 1}, s{S_T}, v{GL16}
            """)
        self.tail_setup(1)
        self.stamp(A, "g_pre")
        self.stamp(A, "rt_gpre")
        load = "ds_read_b32 v6, v13"
        tk = A(load)
        self.check_words(load, "v_cmp_eq_u32 vcc, 0, v6", tk, nap=2)
        wr = []
        for jj in (1, 2, 3, 0):
            for n, ks in enumerate(range(28 - NDEF, 28)):
                A(mfma(ACC + 16 * jj, WBUF + 8 * (ks % 10) + 4 * (jj & 1), HB + 8 * (ks % 10) + 4 * (jj >> 1)))
                if n >= 2 and wr:
                    A(wr.pop(0))
            assert not wr
            wr = [f"ds_write_b128 v9, {vr(ACC + 16 * jj + 4 * q, 4)} offset:{4096 * (jj - 1) + 1024 * q}" for q in range(4)]
            if jj == 3:
                wr.append(f"ds_write_b32 v{GSW}, v{GSW}")
        self.stamp(A, "g_loop")
        self.stamp(A, "rt_gloop")
        load = f"ds_read_b32 v6, v{GSR}"
        self.check_words(load, "v_cmp_eq_u32 vcc, 0, v6", A(load))
        for q in range(4):
            for jj in range(1, 4):
                A(f"ds_read_b128 {vr(ACC + 16 * jj + 4 * q, 4)}, v{VAWA + jj - 1} offset:{1024 * q}")
        for q in range(4):
            r0 = (4 * q, 4 * q + 2)
            for r in r0:
                A(f"v_pk_add_f32 {vr(ACC + 16 + r, 2)}, {vr(ACC + 16 + r, 2)}, {vr(ACC + 32 + r, 2)}")
            for r in r0:
                A(f"v_pk_add_f32 {vr(ACC + r, 2)}, {vr(ACC + r, 2)}, {vr(ACC + 48 + r, 2)}")
            for r in r0:
                A(f"v_pk_add_f32 {vr(ACC + r, 2)}, {vr(ACC + r, 2)}, {vr(ACC + 16 + r, 2)}")
            for r in r0:
                A(f"v_pk_mul_f32 {vr(ACC + r, 2)}, {vr(ACC + r, 2)}, {vr(VG, 2)} op_sel_hi:[1,0]")

    def tail_setup(self, role):
        A = self.A
        A(f"""
        s_lshl_b32 s{S_T}, s{S_MB}, 5
        s_add_u32 s{S_T}, s{S_T}, s{S_GW}
        s_lshl_b32 s{S_MO}, s{S_T}, 7
        s_add_u32 s{S_MO}, s{S_MO}, {FLAG_O + role * 2048}
        v_lshlrev_b32 v5, 9, v0
        s_lshl_b32 s{S_T3}, s{S_T}, 11
        s_add_u32 s{S_T3}, s{S_T3}, {WS_O + role * 32768}
        s_lshl_b32 s{S_T2}, s{S_GW}, 11
        """)
        if role == 1:
            srd(A, SRD_OUT, P_OUT, S * D * 2)
            A(f"""
            s_lshr_b32 s{S_T}, s{S_GW}, 1
            s_lshl_b32 s{S_OFF}, s{S_T}, 15
            s_add_u32 s{S_OFF}, s{S_OFF}, {L_O}
            v_add_u32 v14, s{S_OFF}, v{GL16}
            s_mul_i32 s{S_T}, s{S_GW}, 2560
            s_add_u32 s{S_T}, s{S_T}, {L_TR}
            v_and_b32 v7, 31, v0
            v_mul_u32_u24 v7, 80, v7
            v_lshrrev_b32 v8, 5, v0
            v_lshl_add_u32 v7, v8, 5, v7
            v_add_u32 v7, s{S_T}, v7
            v_lshrrev_b32 v4, 2, v0
            v_and_b32 v12, 3, v0
            v_lshlrev_b32 v12, 4, v12
            v_mul_u32_u24 v8, 80, v4
            v_add_u32 v8, v8, v12
            v_add_u32 v8, s{S_T}, v8
            v_mul_u32_u24 v4, 896, v4
            v_add_u32 v10, v4, v12
            s_add_u32 s{S_OFF}, s{S_OUTO}, {16 * 896}
            """)

    def tail(self, role):
        A = self.A
        L16 = GL16 if role else VL16
        load = f"buffer_load_dword v6, v5, {sr(SRD_WS, 4)}, s{S_MO} offen sc1"
        if role == 1:
            A("s_waitcnt vmcnt(0)")
        tok = self.masked("15", load)
        A.wait(lg=0)
        self.stamp(A, "t_bar0")
        A("s_barrier")
        self.stamp(A, "t_bar1")
        self.check_words(load, "v_cmp_ne_u32 vcc, 1, v6", tok, mask="15")
        self.stamp(A, "t_flag")
        self.stamp(A, "rt_tflag")
        toks = []
        for step in range(4):
            A(f"s_add_u32 m0, s{S_T2}, {L_O + role * 32768 + step * 8192}")
            A(f"s_add_u32 s{S_T}, s{S_T3}, {step * 8192}")
            for q in range(2):
                t = A(f"buffer_load_dwordx4 v{L16}, {sr(SRD_WS, 4)}, s{S_T} offen offset:{1024 * q} sc1 lds")
            toks.append(t)
        A.wait_tok(toks[0])
        A("s_barrier")
        self.stamp(A, "t_odata")
        self.stamp(A, "rt_odata")
        if role == 0:
            for step in range(1, 4):
                A.wait_tok(toks[step])
                A("s_barrier")
            return

        def rd(k):
            o = (28 * (k >> 1) + 16 * (k & 1)) * 128
            b = k % 4
            return [f"ds_read_b128 {vr(TB_ + 4 * b, 4)}, v14 offset:{k * 1024}",
                    f"ds_read_b64_tr_b16 {vr(TA_ + 4 * b, 2)}, v{VTR} offset:{o}",
                    f"ds_read_b64_tr_b16 {vr(TA_ + 4 * b + 2, 2)}, v{VTR} offset:{o + 1024}"]

        for k in range(3):
            for x in rd(k):
                A(x)
        for k in range(32):
            A(mfma(ACC, TA_ + 4 * (k % 4), TB_ + 4 * (k % 4)))
            if k + 3 < 32:
                if (k + 3) % 8 == 0:
                    A.wait_tok(toks[(k + 3) // 8])
                    A("s_barrier")
                for x in rd(k + 3):
                    A(x)
        self.stamp(A, "t_mm")
        for hf in range(2):
            for jj in range(4):
                A(f"v_cvt_pk_bf16_f32 v{TA_ + 4 * hf + jj}, v{ACC + 8 * hf + 2 * jj}, v{ACC + 8 * hf + 2 * jj + 1}")
            A(f"ds_write_b128 v7, {vr(TA_ + 4 * hf, 4)} offset:{16 * hf}")
        for q in range(2):
            A(f"ds_read_b128 {vr(TB_ + 4 * q, 4)}, v8 offset:{16 * 80 * q}")
        for q in range(2):
            A(f"buffer_store_dwordx4 {vr(TB_ + 4 * q, 4)}, v10, {sr(SRD_OUT, 4)}, s{S_OFF if q else S_OUTO} offen{self.opt.get('ost', 0) * ' sc1'}")

    def finish(self):
        A = self.A
        if self.stamp.enabled:
            A("s_waitcnt vmcnt(0)")
            self.stamp(A, "t_end")
            self.stamp(A, "rt_end")
            self.stamp.flush(A)
        A("s_endpgm")

    def build(self):
        A, name = self.A, self.name
        A(f".globl {name}\n.p2align 8\n.type {name},@function\n{name}:")
        A("s_cmp_ge_u32 s2, 256")
        A(f"s_cbranch_scc1 {name}_exit")
        self.stamp(A, "rt0")
        self.stamp(A, "t0")
        p1.decode(A)
        A(f"s_cmp_ge_u32 s{p1.S_CG}, 14")
        A(f"s_cbranch_scc1 {name}_q")
        st0 = A.save()
        p1.programs(A, "KV", ST + self.opt.get("ntkv", 0) * " nt", self.hooks(True), self.opt)
        A.restore(st0)
        A(f"{name}_q:")
        p1.programs(A, "Q", ST + self.opt.get("ntq", 0) * " nt", self.hooks(False), self.opt)
        if self.opt.get("p1exit") or self.opt.get("p2exit"):
            for f in self.late:
                A.clear()
                f(A)
            A(f"{name}_exit:")
            A("s_endpgm")
            pads = A.fix_hazards()
            return A.text(), kernel_desc(name), pads
        e2 = p1.final_epilogue(ST + self.opt.get("ntkv", 0) * " nt")
        A.clear()
        self.target(A, f"{name}_a_plain")
        for x in sum(sum(self.setup_units(), []), []):
            A(x)
        A(f"s_branch {name}_a_poll")
        self.target(A, f"{name}_a_late")
        for x in e2[0] + e2[1]:
            A(x)
        self.target(A, f"{name}_a_poll", inline=True)
        tok = self.masked(POLLMASK, POLL)
        self.check_words(POLL, "v_cmp_eq_u32 vcc, 0, v6", tok, mask=POLLMASK)
        self.stamp(A, "a_flags")
        self.stamp(A, "rt_aflags")
        A(f"s_mov_b32 s{S_OFF}, 0")
        for x in sum(self.first_loads(), []):
            A(x)
        A(f"ds_write_b32 v{VHW}, v{VHW}")
        A(f"s_branch {name}_a_go")
        plain = A.save()
        A.clear()
        self.target(A, f"{name}_a_e2")
        self.masked(POLLMASK, "v_cmp_eq_u32 vcc, 0, v6")
        A(f"s_cbranch_vccnz {name}_a_late")
        self.stamp(A, "a_flags")
        self.stamp(A, "rt_aflags")
        A(f"s_mov_b32 s{S_OFF}, 0")
        work = e2[0][:-2] + e2[1][:-2]
        fl = self.first_loads()
        step = self.opt.get("lstep", 9)
        for k, x in enumerate(work):
            if k % step == 0 and fl:
                for y in fl.pop(0):
                    A(y)
            A(x)
        assert not fl
        for x in e2[0][-2:] + e2[1][-2:]:
            A(x)
        self.stamp(A, "a_e2b")
        assert [x for x in A.state()[0] if x] == [tuple(sorted(e[1])) for e in plain[0]]
        A.restore(plain)
        A.lg = []
        self.target(A, f"{name}_a_go", inline=True)
        A(f"s_mov_b32 s{S_LO}, {f32(2.0 ** -30)}")
        A(f"v_mov_b32 v{VHI}, {f32(2.0 ** 30)}")
        self.mask_q(0)
        A(self.qk(0, 0))
        A(self.qk(0, 1))
        A("s_setprio 1")
        self.stamp(A, "a_first")
        self.stamp(A, "rt_afirst")
        self.attn_main()
        self.attn_finish()
        self.stamp(A, "a_pub")
        self.stamp(A, "rt_pub")
        A(f"s_cmp_ge_u32 s{S_NB}, 7")
        A(f"s_cbranch_scc1 {name}_a_done")
        self.tail(0)
        A(f"{name}_a_done:")
        self.finish()
        A.clear()
        self.target(A, f"{name}_g_plain")
        self.gemm_start(None)
        A(f"s_branch {name}_g_go")
        A.clear()
        self.target(A, f"{name}_g_e2")
        self.gemm_start(e2)
        self.target(A, f"{name}_g_go", inline=True)
        self.gemm_main()
        self.tail(1)
        self.finish()
        self.slow_path()
        k = 0
        while k < len(self.late):
            A.clear()
            self.late[k](A)
            k += 1
        A(f"{name}_exit:")
        A("s_endpgm")
        pads = A.fix_hazards()
        return A.text(), kernel_desc(name), pads


HEADER = open("gated_mix__mha_block__glu_gated_geglu__prompt.s.ref").read().split("; Override")[0]


def main():
    diag = "diag" in sys.argv
    name = "gated_mix__mha_block__glu_gated_geglu__prompt_kernel"
    sets = {"diag": "rt0 t0 p1_pass2 a_flags a_first a_loop a_pub t_flag t_end rt_end g_hw g_dma g_flags g_pre g_loop",
            "diagt": "rt0 t0 a_first a_loop a_sync a_st a_pub t_bar0 t_bar1 t_flag t_odata t_mm t_end g_loop rt_end",
            "diagp": "rt0 t0 p1_pass1 p2_4 p2_8 p2_16 p1_pass2 a_flags a_first a_loop t_end rt_end",
            "diagb": "rt0 t0 b2_pre b2_vm b2_post b3_pre b3_vm t_end rt_end",
            "diagc": "rt0 t0 b5_pre b5_vm b5_post b7_pre b7_vm t_end rt_end",
            "diagd": "rt0 t0 p2_4 c7_pre c7_vm c7_post p2_8 t_end rt_end",
            "diage": "rt0 t0 c9_pre c9_vm c9_post c15_pre c15_vm t_end rt_end",
            "diagr": "rt0 t0 p1_first p1_pass1 rt_first rt_pass1 t_end rt_end",
            "diagz": "rt0 rt_end",
            "diagrt": "rt0 rt_first rt_pass1 rt_pubq rt_pass2 rt_aflags rt_afirst rt_loop rt_pub rt_tflag rt_odata rt_end rt_gflags rt_gpre",
            "diags": "rt0 t0 p1_pass1 p1_pass2 rt_pass1 rt_pass2 p2_8 t_end rt_end",
            "diaga": "rt0 t0 p1_pass2 a_flags a_e2b a_first a_t0 a_t4 a_t8 a_t16 t_end rt_end",
            "diagq": "rt0 t0 karg dma0 p1_first p1_pass1 p2_4 t_end rt_end"}
    which = [a for a in sys.argv if a in sets]
    diag = bool(which)
    st = Stamps(diag, sets[which[0]].split() if diag else None)
    opt = {a.split("=")[0]: int(a.split("=")[1]) for a in sys.argv[1:] if "=" in a}
    g = Gen(name, st, opt)
    code, kd, pads = g.build()
    print(HEADER.rstrip())
    print("; @launch grid=(256,1,1) block=(512,1,1) lds=163840")
    if diag:
        print("; stamps: " + " ".join(st.only))
    print('.amdgcn_target "amdgcn-amd-amdhsa--gfx950"\n.text')
    print(code)
    print('.section .rodata,"a"\n.p2align 6')
    print(kd)


if __name__ == "__main__":
    main()
```

```python
import sys
from common import *
import phase1 as p1

ST = " sc1"
LD = " sc1"

FLAG_S = WS_FLAG
FLAG_O = WS_FLAG + 0x8000
SPIN = 1 << 17

L_WO, L_RING, L_OP, L_MISC = 0, 57344, 106496, 155648
L_O = L_RING
L_TR = 131072
M_HW, M_AS, M_GS, M_MAX = L_MISC, L_MISC + 2048, L_MISC + 3072, L_MISC + 4096

S_F1, S_SPIN = 27, 3
S_HEAD, S_QB, S_MB, S_NB, S_GW = range(66, 71)
S_AG = 61
S_MO, S_T, S_T2, S_T3, S_OFF, S_CNT = 54, 56, 57, 58, 60, 61
SRD_DBG, SRD_OUT = 48, 48
SRD_K, SRD_V, S_Q, S_ME, S_OO, S_OF = 72, 76, 80, 84, 86, 87
SRD_WD, SRD_WO = 72, 76
S_RA, S_RB, S_WDO, S_WOO, S_HOFF, S_GOFF, S_OUTO = range(80, 87)

VL16 = p1.VL16
VPOLL, VHW = 12, 14
OA, SB, PB, VB, KB, QF = 16, 80, 112, 160, 192, 224
VV0, VGA, VONE, VM, VHI = 10, 11, 13, 1, 7
VMLO, VMHI, VGAD = 120, 121, 122
S_LO = 62
VK = [VL16, 144, 145, 146]
VV = [VV0] + list(range(147, 154))
VXA, VSW, VSR = 154, 158, 159
ACC, HB, WBUF = 16, 80, 160
GL16, GSW, GSR = 1, 2, 3
NDEF = 10
VDW0, VDW1, VTR = 9, 10, 11
VH0, VH1, VAWA, VAWB, VG = 242, 243, 244, 246, 248
ACA, TB_, TA_ = 80, 96, 112
POLLMASK = "0x1ffff"
POLL = f"buffer_load_dword v6, v{VPOLL}, {sr(SRD_WS, 4)}, 0 offen sc1"


class Gen:
    def __init__(self, name, stamps, opt=None):
        self.A = Asm()
        self.name = name
        self.stamp = stamps
        self.opt = opt or {}
        self.late = []
        self.nlab = 0

    def pad(self, where):
        us = self.opt.get("pad_" + where)
        if not us:
            return
        A, L = self.A, self.lab("pad")
        A.auto = False
        A(f"{L}:")
        A("s_memrealtime s[98:99]")
        A._emit_raw("s_waitcnt lgkmcnt(0)")
        A("s_sub_u32 s98, s98, s96")
        A(f"s_cmp_lt_u32 s98, {us * 100}")
        A(f"s_cbranch_scc1 {L}")
        A.auto = True
        A.sm = set()

    def lab(self, s):
        self.nlab += 1
        return f"{self.name}_{s}{self.nlab}"

    def one_lane_store(self, value, soff, wave=None, tmp=5):
        A = self.A
        skip = None
        if wave is not None:
            skip = self.lab("skip")
            A(f"s_cmp_lg_u32 s{S_WAVE}, {wave}")
            A(f"s_cbranch_scc1 {skip}")
        A(f"v_mov_b32 v{tmp}, {value}")
        A("s_mov_b64 exec, 1")
        A.uncounted(f"buffer_store_dword v{tmp}, off, {sr(SRD_WS, 4)}, s{soff} sc1")
        A("s_mov_b64 exec, -1")
        if skip:
            A(f"{skip}:")

    def check_words(self, load, cmp_, tok, mask=None, nap=0):
        A = self.A
        ok, loop = self.lab("ok"), self.lab("again")
        A.wait_tok(tok)
        if mask:
            A(f"s_mov_b64 exec, {mask}")
        A(cmp_)
        A(f"s_cbranch_vccz {ok}")
        sv = A.save()
        A(f"s_mov_b32 s{S_SPIN}, {SPIN}")
        A(f"{loop}:")
        if nap:
            A(f"s_sleep {nap}")
        A(load)
        A("s_waitcnt vmcnt(0)" if load.startswith("buffer") else "s_waitcnt lgkmcnt(0)")
        A(cmp_)
        A(f"s_cbranch_vccz {ok}")
        A(f"s_sub_u32 s{S_SPIN}, s{S_SPIN}, 1")
        A(f"s_cbranch_scc0 {loop}")
        A.restore(sv)
        A(f"{ok}:")
        if mask:
            A("s_mov_b64 exec, -1")

    def target(self, A, label, inline=False):
        if not self.opt.get("warm", 0):
            A(f"{label}:")
            return
        if inline:
            A(f"s_branch {label}")
        A(".p2align 6")
        A(f"{label}_w:")
        A("s_setpc_b64 s[0:1]")
        A(f"{label}:")

    def warm(self, A, special, own):
        if not self.opt.get("warm", 0):
            return
        n = self.name
        t = own + ([f"{n}_a_plain", f"{n}_g_plain", f"{n}_a_poll", f"{n}_a_go", f"{n}_g_go"] if special else
                   [f"{n}_a_e2", f"{n}_g_e2", f"{n}_a_late", f"{n}_a_go"])
        for w, lab in enumerate(t):
            skip = self.lab("skip")
            A(f"s_cmp_lg_u32 s{S_WAVE}, {w}")
            A(f"s_cbranch_scc1 {skip}")
            A(f"s_call_b64 s[0:1], {lab}_w")
            A(f"{skip}:")

    def masked(self, mask, text):
        self.A(f"s_mov_b64 exec, {mask}")
        t = self.A(text)
        self.A("s_mov_b64 exec, -1")
        return t

    def hooks(self, early_poll):
        A = self.A
        st = {}

        def entry(A):
            self.code_prefetch(A)
            skip = self.lab("skip")
            A(f"""
            s_lshl_b32 s{S_F1}, s{p1.S_RB}, 4
            s_add_u32 s{S_F1}, s{S_F1}, s{p1.S_CG}
            s_lshl_b32 s{S_F1}, s{S_F1}, 7
            s_add_u32 s{S_F1}, s{S_F1}, {FLAG_S}
            s_cmp_lg_u32 s{S_WAVE}, 0
            s_cbranch_scc1 {skip}
            s_and_b32 s{p1.S_T}, s2, 7
            s_lshl_b32 s{p1.S_T}, s{p1.S_T}, 1
            s_lshr_b32 s{p1.S_T2}, s2, 7
            s_add_u32 s{p1.S_T}, s{p1.S_T}, s{p1.S_T2}
            s_bfe_u32 s{p1.S_T2}, s2, 0x40003
            s_lshl_b32 s{p1.S_T2}, s{p1.S_T2}, 6
            s_add_u32 s{p1.S_T}, s{p1.S_T}, s{p1.S_T2}
            s_lshl_b32 s{p1.S_T}, s{p1.S_T}, 7
            s_add_u32 s{p1.S_T}, s{p1.S_T}, {FLAG_O}
            v_mov_b32 v10, 0
            v_lshlrev_b32 v11, 11, v0
            s_mov_b64 exec, 15
            """)
            A.uncounted(f"buffer_store_dword v10, v11, {sr(SRD_WS, 4)}, s{p1.S_T} offen sc1")
            A("s_mov_b64 exec, 1")
            A.uncounted(f"buffer_store_dword v10, off, {sr(SRD_WS, 4)}, s{S_F1} sc1")
            A("s_mov_b64 exec, -1")
            A(f"{skip}:")

        def p1bar(A, stg, role):
            if stg == 1:
                self.pad("b1")
            if stg == 7:
                self.pad("p1")
            if stg != 4:
                return
            srd(A, SRD_DBG, P_DBG, 256)
            if role:
                return
            skip = self.lab("skip")
            A(f"""
            s_cmp_lg_u32 s{S_WAVE}, 0
            s_cbranch_scc1 {skip}
            s_and_b32 s3, s2, 3
            s_lshl_b32 s3, s3, 6
            v_mov_b32 v13, 1
            s_mov_b64 exec, 1
            """)
            A.uncounted(f"buffer_atomic_add v13, off, {sr(SRD_DBG, 4)}, s3 sc1")
            A("s_mov_b64 exec, -1")
            A(f"{skip}:")

        dbg_load = f"buffer_load_dword v7, v8, {sr(SRD_DBG, 4)}, 0 offen sc1"

        def clear_misc(A):
            A(f"""
            s_lshl_b32 s3, s{S_WAVE}, 9
            s_add_u32 s3, s3, {L_MISC}
            v_lshl_add_u32 v8, v0, 3, s3
            v_mov_b64 v[6:7], 0
            ds_write_b64 v8, v[6:7]
            """)

        def p2step(A, t, role):
            if t == 8:
                if early_poll:
                    clear_misc(A)
                A(f"""
                v_and_b32 v8, 3, v0
                v_lshlrev_b32 v8, 6, v8
                """)
                st["dbg"] = A(dbg_load)
            if t in (4, 8, 12, 16, 20, 24):
                self.stamp(A, f"p2_{t}")
            if t == 20:
                self.check_words(dbg_load, "v_cmp_gt_u32 vcc, 64, v7", st["dbg"])
            if early_poll and not role and t >= 4:
                early, consts = self.setup_units()
                units, lo, hi = (early, 4, 12) if t < 12 else (consts, 12, 28)
                for u in units[len(units) * (t - lo) // (hi - lo):len(units) * (t + 1 - lo) // (hi - lo)]:
                    for x in u:
                        A(x)
            if early_poll and role and t >= 16 and t % 2 == 0:
                for x in self.wd_dma((t - 16) // 2):
                    A(x)
            if t == self.opt.get('polls', 25) and early_poll and not role:
                st["poll"] = self.masked(POLLMASK, POLL)

        def qkv_done(A, role):
            if not role:
                self.one_lane_store(1, S_F1, wave=0)
                self.stamp(A, "rt_pubq")

        def regular_end(A, role):
            if self.opt.get("pad_p2"):
                self.pad("p2")
                if not role:
                    st["poll"] = self.masked(POLLMASK, POLL)
            if not role:
                A.wait_tok(st["poll"])
            A(f"s_branch {self.name}_{'g' if role else 'a'}_e2")

        def special_end(A, role):
            A("s_waitcnt vmcnt(0) lgkmcnt(0)")
            A("s_barrier")
            qkv_done(A, role)
            self.pad("p2")
            clear_misc(A)
            A("s_waitcnt lgkmcnt(0)")
            A("s_barrier")
            A(f"s_branch {self.name}_{'g' if role else 'a'}_plain")

        h = dict(stamp=self.stamp, label=self.lab, entry=entry, prologue=self.warm, target=self.target, p1bar=p1bar, p2step=p2step,
                 idle=lambda A, role: self.precompute_g0(A) if role else self.precompute(A, 0),
                 qkv_done=qkv_done, regular_end=regular_end, special_end=special_end)
        if self.opt.get("p1exit"):
            h["p1exit"] = self.finish
        if self.opt.get("p2exit"):
            h["p2exit"] = self.finish
        return h

    def code_prefetch(self, A):
        if not self.opt.get("cpf", 1):
            return
        here, skip = self.lab("pc"), self.lab("skip")
        A(f"""
        s_cmp_lg_u32 s{S_WAVE}, 7
        s_cbranch_scc1 {skip}
        s_getpc_b64 s[0:1]
        {here}:
        s_sub_u32 s0, s0, {here}-{self.name}
        s_subb_u32 s1, s1, 0
        s_lshr_b32 s{p1.S_T}, s2, 3
        s_lshl_b32 s{p1.S_T}, s{p1.S_T}, 11
        v_lshl_add_u32 v10, v0, 7, s{p1.S_T}
        v_min_u32 v10, {self.name}_exit-{self.name}, v10
        s_mov_b64 exec, 0xffff
        """)
        A.uncounted("global_load_dword v11, v10, s[0:1]")
        A("s_mov_b64 exec, -1")
        A(f"{skip}:")

    def precompute(self, A, role):
        T, T2 = 0, 1
        A(f"""
        s_and_b32 s{T}, s2, 7
        s_lshr_b32 s{T2}, s2, 3
        s_lshl_b32 s{S_HEAD}, s{T}, 1
        s_lshr_b32 s{S_QB}, s2, 7
        s_add_u32 s{S_HEAD}, s{S_HEAD}, s{S_QB}
        s_and_b32 s{S_QB}, s{T2}, 15
        s_lshl_b32 s{S_MB}, s{T}, 2
        s_and_b32 s{S_NB}, s{T2}, 3
        s_add_u32 s{S_MB}, s{S_MB}, s{S_NB}
        s_lshr_b32 s{S_NB}, s{T2}, 2
        s_and_b32 s{S_GW}, s{S_WAVE}, 3
        s_lshl_b32 s{T}, s{S_WAVE}, 8
        s_add_u32 s{T}, s{T}, {M_HW}
        v_lshl_add_u32 v{VHW}, v0, 2, s{T}
        """)
        if role == 0:
            self.precompute_a(A)
        else:
            self.precompute_g(A)

    def precompute_a(self, A):
        T, T2 = 0, 1
        a0, a1 = S_Q, S_Q + 1
        A(f"""
        s_mul_i32 s{T}, s{S_HEAD}, 28
        s_add_u32 s{T2}, s{T}, 27
        s_lshr_b32 s{a0}, s{T}, 6
        s_lshr_b32 s{a1}, s{T2}, 6
        s_sub_u32 s{a1}, s{a1}, s{a0}
        v_and_b32 v5, 1, v0
        v_mul_u32_u24 v5, s{a1}, v5
        v_bfe_u32 v6, v0, 1, 1
        v_mad_u32_u24 v5, v6, 7, v5
        v_bfe_u32 v6, v0, 2, 2
        v_lshl_add_u32 v5, v6, 4, v5
        s_lshl_b32 s{a1}, s{S_GW}, 6
        s_add_u32 s{a1}, s{a1}, s{a0}
        v_add_u32 v5, s{a1}, v5
        s_lshl_b32 s{a1}, s{S_QB}, 4
        s_lshr_b32 s{T}, s{S_HEAD}, 3
        s_add_u32 s{T}, s{T}, s{a1}
        s_add_u32 s{T}, s{T}, 14
        v_writelane_b32 v5, s{T}, 16
        v_lshlrev_b32 v5, 7, v5
        v_add_u32 v{VPOLL}, {FLAG_S}, v5
        v_lshrrev_b32 v5, 5, v0
        v_mul_u32_u24 v5, {7168 - 512}, v5
        v_add_u32 v{VV0}, v5, v{VL16}
        s_mul_i32 s{S_OO}, s{S_HEAD}, 7
        s_lshr_b32 s{S_OO}, s{S_OO}, 1
        s_lshl_b32 s{S_OO}, s{S_OO}, 9
        s_mul_i32 s{T2}, s{S_GW}, {16 * 28672}
        s_add_u32 s{T}, s{T2}, s{S_OO}
        s_add_u32 s{T}, s{T}, {WS_K}
        """)
        srd(A, SRD_K, P_WS, 16 * 28672, add=f"s{T}")
        A(f"""
        s_mul_i32 s{T}, s{S_HEAD}, 448
        s_add_u32 s{T}, s{T}, s{T2}
        s_add_u32 s{T}, s{T}, {WS_V}
        """)
        srd(A, SRD_V, P_WS, 16 * 28672, add=f"s{T}")
        A(f"s_lshl_b32 s{T2}, s{S_QB}, 2")
        for j in range(4):
            A(f"""
            s_add_u32 s{T}, s{S_GW}, {j + 1}
            s_and_b32 s{T}, s{T}, 3
            s_add_u32 s{T}, s{T}, s{T2}
            s_mul_i32 s{T}, s{T}, 28672
            s_add_u32 s{S_Q + j}, s{T}, s{S_OO}
            """)
        A(f"""
        s_add_u32 s{T}, s{T2}, s{S_GW}
        s_lshl_b32 s{S_OFF}, s{T}, 7
        s_add_u32 s{S_AG}, s{S_OFF}, {WS_G}
        s_lshl_b32 s{T}, s{T}, 4
        s_add_u32 s{T}, s{T}, s{S_HEAD}
        s_lshl_b32 s{S_OO}, s{T}, 11
        s_add_u32 s{S_OO}, s{S_OO}, {WS_O}
        s_lshl_b32 s{S_OF}, s{T}, 7
        s_add_u32 s{S_OF}, s{S_OF}, {FLAG_O}
        s_mov_b32 s{S_ME}, 0x0fffffff
        s_mov_b32 s{S_ME + 1}, 0x0fffffff
        """)

    def precompute_g0(self, A):
        T = 0
        srd(A, SRD_WD, P_WD, F * D * 2)
        A(f"""
        v_lshrrev_b32 v5, 3, v0
        v_mul_u32_u24 v6, 896, v5
        v_lshrrev_b32 v5, 2, v0
        v_and_b32 v5, 4, v5
        v_and_b32 v7, 7, v0
        v_xor_b32 v5, v5, v7
        v_lshl_add_u32 v{VDW0}, v5, 4, v6
        v_add_u32 v{VDW1}, {7168 - 1024}, v{VDW0}
        s_and_b32 s{S_GW}, s{S_WAVE}, 3
        s_mul_i32 s{S_RB}, s{S_GW}, 14336
        s_mul_i32 s{S_RA}, s{S_GW}, 12288
        s_add_u32 s{S_RA}, s{S_RA}, {L_RING}
        s_lshr_b32 s{T}, s2, 5
        s_lshl_b32 s{T}, s{T}, 7
        s_mul_i32 s{S_WDO}, s{S_GW}, {448 * 896}
        s_add_u32 s{S_WDO}, s{S_WDO}, s{T}
        """)

    def precompute_g(self, A):
        T, T2 = 0, 1
        srd(A, SRD_WO, P_WO, D * D * 2)
        A(f"""
        s_lshl_b32 s{T}, s{S_NB}, 7
        s_mul_i32 s{S_WOO}, s{S_GW}, {112 * 896}
        s_add_u32 s{S_WOO}, s{S_WOO}, s{T}
        s_and_b32 s{T2}, s{S_GW}, 1
        s_lshl_b32 s{S_OUTO}, s{T2}, 6
        s_add_u32 s{S_OUTO}, s{S_OUTO}, s{T}
        s_lshl_b32 s{T2}, s{T2}, 3
        v_and_b32 v5, 1, v0
        v_lshlrev_b32 v5, 2, v5
        v_bfe_u32 v6, v0, 1, 1
        v_add_u32 v5, v5, v6
        v_bfe_u32 v6, v0, 4, 1
        v_lshl_add_u32 v5, v6, 1, v5
        v_and_b32 v6, 8, v0
        v_xor_b32 v5, v5, v6
        v_xor_b32 v5, s{T2}, v5
        v_lshrrev_b32 v6, 5, v0
        v_bfe_u32 v7, v0, 2, 2
        v_lshl_add_u32 v6, v6, 2, v7
        v_lshlrev_b32 v6, 7, v6
        v_lshl_add_u32 v{VTR}, v5, 3, v6
        s_lshr_b32 s{T}, s{S_GW}, 1
        s_lshl_b32 s{T2}, s{S_MB}, 1
        s_add_u32 s{T}, s{T}, s{T2}
        s_lshl_b32 s{S_GOFF}, s{T}, 7
        s_add_u32 s{S_GOFF}, s{S_GOFF}, {WS_G}
        s_mul_i32 s{T}, s{T}, {32 * 896}
        s_add_u32 s{S_OUTO}, s{S_OUTO}, s{T}
        s_mul_i32 s{S_HOFF}, s{S_MB}, {2 * 114688}
        s_mul_i32 s{T}, s{S_GW}, {28 * 1024}
        s_add_u32 s{S_HOFF}, s{S_HOFF}, s{T}
        s_add_u32 s{S_HOFF}, s{S_HOFF}, {WS_H}
        s_lshr_b32 s{T}, s{S_MB}, 1
        s_lshl_b32 s{T}, s{T}, 4
        s_mul_i32 s{T2}, s{S_GW}, 7
        s_lshr_b32 s{T2}, s{T2}, 1
        s_add_u32 s{T}, s{T}, s{T2}
        s_lshl_b32 s{T}, s{T}, 7
        s_add_u32 s{T}, s{T}, {FLAG_S}
        v_and_b32 v5, 3, v0
        v_lshl_add_u32 v{VPOLL}, v5, 7, s{T}
        """)

    def k_load(self, b):
        return [f"buffer_load_dwordx4 {vr(KB + 8 * b, 4)}, v{VK[b]}, {sr(SRD_K, 4)}, s{S_OFF} offen{LD}",
                f"buffer_load_dwordx4 {vr(KB + 8 * b + 4, 4)}, v{VK[b]}, {sr(SRD_K, 4)}, s{S_OFF} offen offset:1024{LD}"]

    def v_load(self, b):
        return [f"s_mov_b64 exec, {sr(S_ME, 2)}",
                f"buffer_load_dwordx4 {vr(VB + 8 * b, 4)}, v{VV[2 * b]}, {sr(SRD_V, 4)}, s{S_OFF} offen{LD}",
                f"buffer_load_dwordx4 {vr(VB + 8 * b + 4, 4)}, v{VV[2 * b + 1]}, {sr(SRD_V, 4)}, s{S_OFF} offen{LD}",
                "s_mov_b64 exec, -1"]

    @staticmethod
    def qk(i, half):
        b, j = (i >> 2) & 3, i & 3
        return mfma(SB + 16 * (i & 1), KB + 8 * b + 4 * half, QF + 8 * j + 4 * half, "0" if half == 0 else None)

    @staticmethod
    def pv(i, half, first=False):
        b, j = (i >> 2) & 3, i & 3
        return mfma(OA + 16 * j, VB + 8 * b + 4 * half, PB + 4 * half, "0" if first else None)

    @staticmethod
    def grp(i, g):
        r = SB + 16 * (i & 1) + 4 * g
        return [f"v_exp_f32 v{r + k}, v{r + k}" for k in range(4)] + \
               [f"v_cvt_pk_bf16_f32 v{PB + 2 * g + k}, v{r + 2 * k}, v{r + 2 * k + 1}" for k in range(2)]

    def wait_pair(self, base):
        A = self.A
        want = {f"v{base + 7}"}
        for e in A.vm:
            if e[1] & want:
                A.wait_tok(e[0])
                return

    def setup_units(self):
        R = Rec()
        for b in range(1, 4):
            R(f"v_add_u32 v{VK[b]}, {b * 28672}, v{VL16}")
        for n in range(1, 8):
            R(f"v_add_u32 v{VV[n]}, {n * 14336}, v{VV0}")
        for j in range(4):
            R(f"""
            s_add_u32 s0, s{S_GW}, {j + 1}
            s_and_b32 s0, s0, 3
            s_mul_i32 s0, s0, 12288
            s_add_u32 s0, s0, {L_OP + (j % 3) * 4096}
            v_add_u32 v{VXA + j}, s0, v{VL16}
            """)
        self.sync_addresses(M_AS, A=R, T=0)
        R(f"""
        s_and_b32 s0, s{S_HEAD}, 1
        v_lshrrev_b32 v{VMLO}, 5, v0
        v_or_b32 v{VMHI}, s0, v{VMLO}
        v_xor_b32 v{VMHI}, s0, v{VMHI}
        v_add_u32 v{VMHI}, -1, v{VMHI}
        v_xor_b32 v{VMLO}, 1, v{VMLO}
        v_and_b32 v{VMLO}, s0, v{VMLO}
        v_add_u32 v{VMLO}, -1, v{VMLO}
        v_and_b32 v{VGAD}, 31, v0
        v_lshlrev_b32 v{VGAD}, 2, v{VGAD}
        """)
        R(f"""
        v_and_b32 v{VONE}, 31, v0
        v_cmp_eq_u32 s[0:1], 28, v{VONE}
        v_mov_b32 v{VONE}, 0x3f803f80
        v_cndmask_b32 v{VONE}, 0, v{VONE}, s[0:1]
        """)
        return R.units, [[f"v_mov_b32 v{VB + r}, v{VONE}"] for r in range(32)]

    def first_loads(self):
        q = lambda j: [[f"buffer_load_dwordx4 {vr(QF + 8 * j + 4 * t, 4)}, v{VL16}, {sr(SRD_WS, 4)}, s{S_Q + j} offen"
                        f"{' offset:1024' * t}{LD}"] for t in range(2)]
        k = lambda b: [[x] for x in self.k_load(b)]
        return q(0) + k(0) + q(1) + [self.v_load(0)] + q(2) + q(3) + k(1) + \
            [[f"buffer_load_dword v{VGA}, v{VGAD}, {sr(SRD_WS, 4)}, s{S_AG} offen{LD}"]]

    def mask_q(self, j):
        self.wait_pair(QF + 8 * j)
        for r, m in ((0, VMLO), (1, VMLO), (6, VMHI), (7, VMHI)):
            self.A(f"v_and_b32 v{QF + 8 * j + r}, v{QF + 8 * j + r}, v{m}")

    def attn_main(self):
        A = self.A
        todo = [x for kt in range(1, 16) for x in (("v", kt, 4 * kt - 12), ("k", kt + 1, 4 * kt - 10)) if x[1] < 16]
        base = 0

        def loads(i, kind):
            nonlocal base
            if not todo or todo[0][2] > i or (todo[0][2] == i and todo[0][0] != kind) or issued[0] == i:
                return []
            kd, kt, _ = todo.pop(0)
            issued[0] = i
            o = []
            if kt >> 2 != base:
                base = kt >> 2
                o.append(f"s_add_u32 s{S_OFF}, s{S_OFF}, {4 * 28672}")
            return o + (self.v_load(kt & 3) if kd == "v" else self.k_load(kt & 3))

        issued = [-1]
        for i in range(64):
            kt, b, j = i >> 2, (i >> 2) & 3, i & 3
            seq = []
            if i < 3:
                self.mask_q(i + 1)
            if i < 63:
                if j == 3:
                    self.wait_pair(KB + 8 * ((b + 1) & 3))
                seq.append(self.qk(i + 1, 0))
            seq += self.grp(i, 0)
            if i:
                seq.append(self.pv(i - 1, 1))
            seq += loads(i, "v")
            seq += self.grp(i, 1)
            if i < 63:
                seq.append(self.qk(i + 1, 1))
            seq += loads(i, "k")
            seq += self.grp(i, 2)
            for x in seq:
                A(x)
            if j == 0:
                self.wait_pair(VB + 8 * b)
            A(self.pv(i, 0, first=i < 4))
            if i == 4:
                A(f"ds_write_b32 v{VHW}, v{VHW}")
            if i in (0, 4, 8, 16):
                self.stamp(A, f"a_t{i}")
            g3 = self.grp(i, 3)
            if i > 60:
                w = [f"ds_write_b128 v{VXA + j - 1}, {vr(OA + 16 * (j - 1) + 4 * q, 4)} offset:{1024 * q}" for q in range(4)]
                g3 = [g3[0], w[0], g3[1], w[1], g3[2], w[2], g3[3], w[3]] + g3[4:]
            for x in g3:
                A(x)
            if i == 63:
                self.pad("loop")
                A(f"ds_write_b32 v{VSW}, v{VSW}")
        assert not todo
        load = f"ds_read_b32 v6, v{VSR}"
        tok = A(load)
        A(self.pv(63, 1))
        self.stamp(A, "a_loop")
        self.stamp(A, "rt_loop")
        self.check_words(load, "v_cmp_eq_u32 vcc, 0, v6", tok)
        self.stamp(A, "a_sync")

    def lds_sync(self, value_reg, cmp_, VSW=VSW, VSR=VSR):
        A = self.A
        A(f"ds_write_b32 v{VSW}, v{value_reg}")
        load = f"ds_read_b32 v6, v{VSR}"
        tok = A(load)
        self.check_words(load, cmp_, tok)

    def sync_addresses(self, base, VSW=VSW, VSR=VSR, A=None, T=S_T):
        (A or self.A)(f"""
        s_lshl_b32 s{T}, s{S_GW}, 8
        s_add_u32 s{T}, s{T}, {base}
        v_lshl_add_u32 v{VSW}, v0, 2, s{T}
        v_and_b32 v{VSR}, 3, v0
        v_lshlrev_b32 v{VSR}, 8, v{VSR}
        v_add_u32 v{VSR}, {base}, v{VSR}
        """)

    def attn_finish(self):
        A = self.A
        R, O = VB, OA + 48
        order = [3, 0, 1, 2]
        for q in order:
            for p in range(3):
                A(f"ds_read_b128 {vr(R + 16 * p + 4 * q, 4)}, v{VXA + 3} offset:{4096 * p + 1024 * q}")
        for n, q in enumerate(order):
            for k in range(4):
                A(f"v_add_f32 v{R + 4 * q + k}, v{R + 4 * q + k}, v{R + 16 + 4 * q + k}")
            for k in range(4):
                A(f"v_add_f32 v{O + 4 * q + k}, v{O + 4 * q + k}, v{R + 32 + 4 * q + k}")
            for k in range(4):
                A(f"v_add_f32 v{O + 4 * q + k}, v{O + 4 * q + k}, v{R + 4 * q + k}")
            if n == 0:
                A(f"v_mov_b32 v8, v{O + 12}")
                A(f"v_mov_b32 v9, v{O + 12}")
            if n == 1:
                A("v_permlane32_swap_b32 v8, v9")
                A("v_rcp_f32 v12, v9")
            if n == 2:
                A(f"v_med3_f32 v8, v9, s{S_LO}, v{VHI}")
                A(f"v_mul_f32 v12, v12, v{VGA}")
                A("v_cmp_neq_f32 vcc, v8, v9")
        A(f"s_cbranch_vccnz {self.name}_slow")
        A(f"{self.name}_a_fin:")
        for hf in range(2):
            for r in range(8 * hf, 8 * hf + 8):
                A(f"v_mul_f32 v{O + r}, v{O + r}, v12")
            for jj in range(4 * hf, 4 * hf + 4):
                A(f"v_cvt_pk_bf16_f32 v{PB + jj}, v{O + 2 * jj}, v{O + 2 * jj + 1}")
            if hf == 0:
                A(f"buffer_store_dwordx4 {vr(PB, 4)}, v{VL16}, {sr(SRD_WS, 4)}, s{S_OO} offen{ST}")
        A(f"""
        s_mov_b32 exec_lo, 0
        v_mov_b64 {vr(PB + 6, 2)}, 0
        s_mov_b32 exec_lo, -1
        buffer_store_dwordx4 {vr(PB + 4, 4)}, v{VL16}, {sr(SRD_WS, 4)}, s{S_OO} offen offset:1024{ST}
        """)
        self.stamp(A, "a_st")
        self.tail_setup(0)
        A("s_waitcnt vmcnt(0)")
        self.one_lane_store(1, S_OF, tmp=8)

    def slow_path(self):
        A = self.A
        O, Q = OA + 48, QF + 24
        A.clear()
        A(f"{self.name}_slow:")
        A("s_waitcnt vmcnt(0) lgkmcnt(0)")
        A(f"s_mul_i32 s{S_T}, s{S_GW}, {16 * 28672}")
        for d in (SRD_K, SRD_V):
            A(f"s_sub_u32 s{d}, s{d}, s{S_T}")
            A(f"s_subb_u32 s{d + 1}, s{d + 1}, 0")
            A(f"s_mov_b32 s{d + 2}, {64 * 28672}")
        for r in range(8):
            A(f"v_mov_b32 v{VB + r}, v{VONE}")
        A(f"v_mov_b32 v{VM}, 0xff800000")
        for sub in (0, 1):
            lab = self.lab("slowloop")
            A(f"s_mov_b32 s{S_OFF}, 0")
            if sub:
                for r in range(16):
                    A(f"v_mov_b32 v{O + r}, 0")
            A(f"{lab}:")
            for x in self.k_load(0) + (self.v_load(0) if sub else []):
                A(x)
            A(mfma(SB, KB, Q, "0"))
            A(mfma(SB, KB + 4, Q + 4))
            if not sub:
                for r in range(0, 16, 2):
                    A(f"v_max3_f32 v{VM}, v{SB + r}, v{SB + r + 1}, v{VM}")
            else:
                for r in range(16):
                    A(f"v_sub_f32 v{SB + r}, v{SB + r}, v{VM}")
                for g in range(4):
                    for x in self.grp(0, g):
                        A(x)
                A(mfma(O, VB, PB))
                A(mfma(O, VB + 4, PB + 4))
            A(f"s_add_u32 s{S_OFF}, s{S_OFF}, 28672")
            A(f"s_cmp_lt_u32 s{S_OFF}, {64 * 28672}")
            A(f"s_cbranch_scc1 {lab}")
            if not sub:
                A(f"v_mov_b32 v9, v{VM}")
                A(f"v_permlane32_swap_b32 v9, v{VM}")
                A(f"v_max_f32 v{VM}, v9, v{VM}")
        A(f"""
        v_mov_b32 v8, v{O + 12}
        v_mov_b32 v9, v{O + 12}
        v_permlane32_swap_b32 v8, v9
        v_rcp_f32 v12, v9
        v_mul_f32 v12, v12, v{VGA}
        s_branch {self.name}_a_fin
        """)

    @staticmethod
    def slot(ks):
        k = ks % 13
        return ("A", k) if k < 6 else ("B", k - 6)

    def wd_dma(self, ks):
        reg, sl = self.slot(ks)
        return [f"s_add_u32 m0, s{S_RA if reg == 'A' else S_RB}, {sl * 2048}",
                f"s_add_u32 s0, s{S_WDO}, {ks * 16 * 896}",
                f"buffer_load_dwordx4 v{VDW0}, {sr(SRD_WD, 4)}, s0 offen lds",
                f"buffer_load_dwordx4 v{VDW1}, {sr(SRD_WD, 4)}, s0 offen offset:1024 lds"]

    def wo_dma(self, n):
        return [f"s_add_u32 m0, s{S_RB}, {n * 2048}",
                f"s_add_u32 s{S_T}, s{S_WOO}, {n * 16 * 896}",
                f"buffer_load_dwordx4 v{VDW0}, {sr(SRD_WO, 4)}, s{S_T} offen lds",
                f"buffer_load_dwordx4 v{VDW1}, {sr(SRD_WO, 4)}, s{S_T} offen offset:1024 lds"]

    def h_load(self, ks):
        b = HB + 8 * (ks % 10)
        return [f"s_add_u32 s{S_T}, s{S_HOFF}, {ks * 1024}",
                f"buffer_load_dwordx4 {vr(b, 4)}, v{VH0}, {sr(SRD_WS, 4)}, s{S_T} offen{LD}",
                f"buffer_load_dwordx4 {vr(b + 4, 4)}, v{VH1}, {sr(SRD_WS, 4)}, s{S_T} offen{LD}"]

    def gemm_start(self, e2):
        A = self.A
        tok = None
        for x in (e2[0] + e2[1] if e2 else sum([self.wd_dma(ks) for ks in range(6)], [])):
            tok = A(x)
        A("s_setprio 2")
        for ks in range(6, 6 + self.opt.get("gearly", 0)):
            for x in self.wd_dma(ks):
                A(x)
        self.precompute(A, 1)
        A.wait_tok(tok)

    def gemm_main(self):
        A = self.A
        toks = {}
        A.clear()
        first = 6 + self.opt.get("gearly", 0)
        for ks in range(6, first):
            for _ in range(2):
                A.nid += 1
                A.vm.append([A.nid, set()])
                toks[ks] = A.nid

        def issue(lst, key=None):
            for x in lst:
                t = A(x)
                if t and key is not None:
                    toks[key] = t

        def trr(ks):
            reg, sl = self.slot(ks)
            a = VAWA if reg == "A" else VAWB
            b = WBUF + 8 * (ks % 10)
            o = sl * 2048
            A.wait_tok(toks.get(ks))
            issue([f"ds_read_b64_tr_b16 {vr(b, 2)}, v{a} offset:{o}",
                   f"ds_read_b64_tr_b16 {vr(b + 2, 2)}, v{a} offset:{o + 1024}",
                   f"ds_read_b64_tr_b16 {vr(b + 4, 2)}, v{a + 1} offset:{o}",
                   f"ds_read_b64_tr_b16 {vr(b + 6, 2)}, v{a + 1} offset:{o + 1024}"], ("r", ks))

        def dma(ks):
            if ks >= 13:
                A.wait_tok(toks[("r", ks - 13)])
            issue(self.wd_dma(ks), ks)

        def mm(ks):
            for jj in range(4):
                A(mfma(ACC + 16 * jj, WBUF + 8 * (ks % 10) + 4 * (jj & 1), HB + 8 * (ks % 10) + 4 * (jj >> 1),
                       "0" if ks == 0 else None))

        A(f"""
        ds_write_b32 v{VHW}, v{VHW}
        v_xor_b32 v5, 64, v{VTR}
        v_add_u32 v{VAWA}, s{S_RA}, v{VTR}
        v_add_u32 v{VAWA + 1}, s{S_RA}, v5
        v_and_b32 v13, 7, v0
        v_lshlrev_b32 v13, 8, v13
        v_add_u32 v13, {M_HW}, v13
        """)
        for ks in range(6):
            trr(ks)
        A(f"""
        v_mov_b32 v{GL16}, v{VL16}
        v_add_u32 v{VAWB}, s{S_RB}, v{VTR}
        v_add_u32 v{VAWB + 1}, s{S_RB}, v5
        s_lshr_b32 s{S_T}, s{S_GW}, 1
        s_mul_i32 s{S_T}, s{S_T}, 114688
        v_add_u32 v{VH0}, s{S_T}, v{GL16}
        s_sub_u32 s{S_T}, 114688, s{S_T}
        v_add_u32 v{VH1}, s{S_T}, v{GL16}
        """)
        self.sync_addresses(M_GS, GSW, GSR)
        load = "ds_read_b32 v6, v13"
        tk = A(load)
        self.check_words(load, "v_cmp_eq_u32 vcc, 0, v6", tk, nap=1)
        self.one_lane_store(2, S_F1, wave=4)
        self.stamp(A, "g_hw")
        A(f"s_cmp_ge_u32 s{S_NB}, 7")
        A(f"s_cbranch_scc1 {self.name}_exit")
        A(f"""
        v_and_b32 v5, 31, v0
        v_lshlrev_b32 v5, 2, v5
        buffer_load_dword v{VG}, v5, {sr(SRD_WS, 4)}, s{S_GOFF} offen{LD}
        """)
        deep = self.opt.get("gdeep", 3)
        for ks in range(first, 23):
            if 6 <= ks - 7 < 10:
                trr(ks - 7)
            A.wait_tok(toks.get(ks - deep))
            dma(ks)
        self.stamp(A, "g_dma")
        tok = self.masked("15", POLL)
        self.check_words(POLL, "v_cmp_ne_u32 vcc, 2, v6", tok, mask="15", nap=2)
        self.stamp(A, "g_flags")
        self.stamp(A, "rt_gflags")
        A("s_setprio 0")
        nh = self.opt.get("nh", 3)
        for ks in range(nh):
            issue(self.h_load(ks))
        ramp = 28 - NDEF - (10 - nh)
        for ks in range(28 - NDEF):
            mm(ks)
            for _ in range(2 if ks >= ramp else 1):
                if nh < 28:
                    assert nh - 10 <= ks
                    issue(self.h_load(nh))
                    nh += 1
            trr(ks + 10)
            if 1 <= ks <= 5:
                dma(ks + 22)
        assert nh == 28
        A.wait_tok(toks[("r", 25)])
        for n in range(7):
            issue(self.wo_dma(n))
        A(f"v_add_u32 v9, s{S_RA}, v{GL16}")
        A(f"v_subrev_u32 v13, {M_GS - M_AS}, v{GSR}")
        A(f"v_sub_f32 v{VG}, 1.0, v{VG}")
        A("s_waitcnt lgkmcnt(0)")
        for jj in range(1, 4):
            A(f"""
            s_xor_b32 s{S_T}, s{S_GW}, {jj}
            s_mul_i32 s{S_T}, s{S_T}, 12288
            s_add_u32 s{S_T}, s{S_T}, {L_RING + 4096 * (jj - 1)}
            v_add_u32 v{VAWA + jj - 1}, s{S_T}, v{GL16}
            """)
        self.tail_setup(1)
        self.stamp(A, "g_pre")
        self.stamp(A, "rt_gpre")
        load = "ds_read_b32 v6, v13"
        tk = A(load)
        self.check_words(load, "v_cmp_eq_u32 vcc, 0, v6", tk, nap=2)
        wr = []
        for jj in (1, 2, 3, 0):
            for n, ks in enumerate(range(28 - NDEF, 28)):
                A(mfma(ACC + 16 * jj, WBUF + 8 * (ks % 10) + 4 * (jj & 1), HB + 8 * (ks % 10) + 4 * (jj >> 1)))
                if n >= 2 and wr:
                    A(wr.pop(0))
            assert not wr
            wr = [f"ds_write_b128 v9, {vr(ACC + 16 * jj + 4 * q, 4)} offset:{4096 * (jj - 1) + 1024 * q}" for q in range(4)]
            if jj == 3:
                wr.append(f"ds_write_b32 v{GSW}, v{GSW}")
        self.stamp(A, "g_loop")
        self.stamp(A, "rt_gloop")
        load = f"ds_read_b32 v6, v{GSR}"
        self.check_words(load, "v_cmp_eq_u32 vcc, 0, v6", A(load))
        for q in range(4):
            for jj in range(1, 4):
                A(f"ds_read_b128 {vr(ACC + 16 * jj + 4 * q, 4)}, v{VAWA + jj - 1} offset:{1024 * q}")
        for q in range(4):
            r0 = (4 * q, 4 * q + 2)
            for r in r0:
                A(f"v_pk_add_f32 {vr(ACC + 16 + r, 2)}, {vr(ACC + 16 + r, 2)}, {vr(ACC + 32 + r, 2)}")
            for r in r0:
                A(f"v_pk_add_f32 {vr(ACC + r, 2)}, {vr(ACC + r, 2)}, {vr(ACC + 48 + r, 2)}")
            for r in r0:
                A(f"v_pk_add_f32 {vr(ACC + r, 2)}, {vr(ACC + r, 2)}, {vr(ACC + 16 + r, 2)}")
            for r in r0:
                A(f"v_pk_mul_f32 {vr(ACC + r, 2)}, {vr(ACC + r, 2)}, {vr(VG, 2)} op_sel_hi:[1,0]")

    def tail_setup(self, role):
        A = self.A
        A(f"""
        s_lshl_b32 s{S_T}, s{S_MB}, 5
        s_add_u32 s{S_T}, s{S_T}, s{S_GW}
        s_lshl_b32 s{S_MO}, s{S_T}, 7
        s_add_u32 s{S_MO}, s{S_MO}, {FLAG_O + role * 2048}
        v_lshlrev_b32 v5, 9, v0
        s_lshl_b32 s{S_T3}, s{S_T}, 11
        s_add_u32 s{S_T3}, s{S_T3}, {WS_O + role * 32768}
        s_lshl_b32 s{S_T2}, s{S_GW}, 11
        """)
        if role == 1:
            srd(A, SRD_OUT, P_OUT, S * D * 2)
            A(f"""
            s_lshr_b32 s{S_T}, s{S_GW}, 1
            s_lshl_b32 s{S_OFF}, s{S_T}, 15
            s_add_u32 s{S_OFF}, s{S_OFF}, {L_O}
            v_add_u32 v14, s{S_OFF}, v{GL16}
            s_mul_i32 s{S_T}, s{S_GW}, 2560
            s_add_u32 s{S_T}, s{S_T}, {L_TR}
            v_and_b32 v7, 31, v0
            v_mul_u32_u24 v7, 80, v7
            v_lshrrev_b32 v8, 5, v0
            v_lshl_add_u32 v7, v8, 5, v7
            v_add_u32 v7, s{S_T}, v7
            v_lshrrev_b32 v4, 2, v0
            v_and_b32 v12, 3, v0
            v_lshlrev_b32 v12, 4, v12
            v_mul_u32_u24 v8, 80, v4
            v_add_u32 v8, v8, v12
            v_add_u32 v8, s{S_T}, v8
            v_mul_u32_u24 v4, 896, v4
            v_add_u32 v10, v4, v12
            s_add_u32 s{S_OFF}, s{S_OUTO}, {16 * 896}
            """)

    def tail(self, role):
        A = self.A
        L16 = GL16 if role else VL16
        load = f"buffer_load_dword v6, v5, {sr(SRD_WS, 4)}, s{S_MO} offen sc1"
        if role == 1:
            A("s_waitcnt vmcnt(0)")
        tok = self.masked("15", load)
        A.wait(lg=0)
        self.stamp(A, "t_bar0")
        A("s_barrier")
        self.stamp(A, "t_bar1")
        self.check_words(load, "v_cmp_ne_u32 vcc, 1, v6", tok, mask="15")
        self.stamp(A, "t_flag")
        self.stamp(A, "rt_tflag")
        toks = []
        for step in range(4):
            A(f"s_add_u32 m0, s{S_T2}, {L_O + role * 32768 + step * 8192}")
            A(f"s_add_u32 s{S_T}, s{S_T3}, {step * 8192}")
            for q in range(2):
                t = A(f"buffer_load_dwordx4 v{L16}, {sr(SRD_WS, 4)}, s{S_T} offen offset:{1024 * q} sc1 lds")
            toks.append(t)
        A.wait_tok(toks[0])
        A("s_barrier")
        self.stamp(A, "t_odata")
        self.stamp(A, "rt_odata")
        if role == 0:
            for step in range(1, 4):
                A.wait_tok(toks[step])
                A("s_barrier")
            return

        def rd(k):
            o = (28 * (k >> 1) + 16 * (k & 1)) * 128
            b = k % 4
            return [f"ds_read_b128 {vr(TB_ + 4 * b, 4)}, v14 offset:{k * 1024}",
                    f"ds_read_b64_tr_b16 {vr(TA_ + 4 * b, 2)}, v{VTR} offset:{o}",
                    f"ds_read_b64_tr_b16 {vr(TA_ + 4 * b + 2, 2)}, v{VTR} offset:{o + 1024}"]

        for k in range(3):
            for x in rd(k):
                A(x)
        for k in range(32):
            A(mfma(ACC, TA_ + 4 * (k % 4), TB_ + 4 * (k % 4)))
            if k + 3 < 32:
                if (k + 3) % 8 == 0:
                    A.wait_tok(toks[(k + 3) // 8])
                    A("s_barrier")
                for x in rd(k + 3):
                    A(x)
        self.stamp(A, "t_mm")
        for hf in range(2):
            for jj in range(4):
                A(f"v_cvt_pk_bf16_f32 v{TA_ + 4 * hf + jj}, v{ACC + 8 * hf + 2 * jj}, v{ACC + 8 * hf + 2 * jj + 1}")
            A(f"ds_write_b128 v7, {vr(TA_ + 4 * hf, 4)} offset:{16 * hf}")
        for q in range(2):
            A(f"ds_read_b128 {vr(TB_ + 4 * q, 4)}, v8 offset:{16 * 80 * q}")
        for q in range(2):
            A(f"buffer_store_dwordx4 {vr(TB_ + 4 * q, 4)}, v10, {sr(SRD_OUT, 4)}, s{S_OFF if q else S_OUTO} offen{self.opt.get('ost', 0) * ' sc1'}")

    def finish(self):
        A = self.A
        if self.opt.get("pad_end"):
            A("s_waitcnt vmcnt(0)")
            self.pad("end")
        if self.stamp.enabled:
            A("s_waitcnt vmcnt(0)")
            self.stamp(A, "t_end")
            self.stamp(A, "rt_end")
            self.stamp.flush(A)
        A("s_endpgm")

    def build(self):
        A, name = self.A, self.name
        A(f".globl {name}\n.p2align 8\n.type {name},@function\n{name}:")
        A("s_cmp_ge_u32 s2, 256")
        A(f"s_cbranch_scc1 {name}_exit")
        if any(k.startswith("pad_") for k in self.opt):
            A("s_memrealtime s[96:97]")
        self.stamp(A, "rt0")
        self.stamp(A, "t0")
        p1.decode(A)
        A(f"s_cmp_ge_u32 s{p1.S_CG}, 14")
        A(f"s_cbranch_scc1 {name}_q")
        st0 = A.save()
        p1.programs(A, "KV", ST + self.opt.get("ntkv", 0) * " nt", self.hooks(True), self.opt)
        A.restore(st0)
        A(f"{name}_q:")
        p1.programs(A, "Q", ST + self.opt.get("ntq", 0) * " nt", self.hooks(False), self.opt)
        if self.opt.get("p1exit") or self.opt.get("p2exit"):
            for f in self.late:
                A.clear()
                f(A)
            A(f"{name}_exit:")
            A("s_endpgm")
            pads = A.fix_hazards()
            return A.text(), kernel_desc(name), pads
        e2 = p1.final_epilogue(ST + self.opt.get("ntkv", 0) * " nt")
        A.clear()
        self.target(A, f"{name}_a_plain")
        for x in sum(sum(self.setup_units(), []), []):
            A(x)
        A(f"s_branch {name}_a_poll")
        self.target(A, f"{name}_a_late")
        for x in e2[0] + e2[1]:
            A(x)
        self.target(A, f"{name}_a_poll", inline=True)
        tok = self.masked(POLLMASK, POLL)
        self.check_words(POLL, "v_cmp_eq_u32 vcc, 0, v6", tok, mask=POLLMASK)
        self.stamp(A, "a_flags")
        self.stamp(A, "rt_aflags")
        A(f"s_mov_b32 s{S_OFF}, 0")
        for x in sum(self.first_loads(), []):
            A(x)
        A(f"ds_write_b32 v{VHW}, v{VHW}")
        A(f"s_branch {name}_a_go")
        plain = A.save()
        A.clear()
        self.target(A, f"{name}_a_e2")
        self.masked(POLLMASK, "v_cmp_eq_u32 vcc, 0, v6")
        A(f"s_cbranch_vccnz {name}_a_late")
        self.stamp(A, "a_flags")
        self.stamp(A, "rt_aflags")
        A(f"s_mov_b32 s{S_OFF}, 0")
        work = e2[0][:-2] + e2[1][:-2]
        fl = self.first_loads()
        step = self.opt.get("lstep", 9)
        for k, x in enumerate(work):
            if k % step == 0 and fl:
                for y in fl.pop(0):
                    A(y)
            A(x)
        assert not fl
        for x in e2[0][-2:] + e2[1][-2:]:
            A(x)
        self.stamp(A, "a_e2b")
        assert [x for x in A.state()[0] if x] == [tuple(sorted(e[1])) for e in plain[0]]
        A.restore(plain)
        A.lg = []
        self.target(A, f"{name}_a_go", inline=True)
        A(f"s_mov_b32 s{S_LO}, {f32(2.0 ** -30)}")
        A(f"v_mov_b32 v{VHI}, {f32(2.0 ** 30)}")
        self.mask_q(0)
        A(self.qk(0, 0))
        A(self.qk(0, 1))
        A("s_setprio 1")
        self.stamp(A, "a_first")
        self.stamp(A, "rt_afirst")
        self.attn_main()
        self.attn_finish()
        self.stamp(A, "a_pub")
        self.stamp(A, "rt_pub")
        A(f"s_cmp_ge_u32 s{S_NB}, 7")
        A(f"s_cbranch_scc1 {name}_a_done")
        self.tail(0)
        A(f"{name}_a_done:")
        self.finish()
        A.clear()
        self.target(A, f"{name}_g_plain")
        self.gemm_start(None)
        A(f"s_branch {name}_g_go")
        A.clear()
        self.target(A, f"{name}_g_e2")
        self.gemm_start(e2)
        self.target(A, f"{name}_g_go", inline=True)
        self.gemm_main()
        self.tail(1)
        self.finish()
        self.slow_path()
        k = 0
        while k < len(self.late):
            A.clear()
            self.late[k](A)
            k += 1
        A(f"{name}_exit:")
        A("s_endpgm")
        pads = A.fix_hazards()
        return A.text(), kernel_desc(name), pads


HEADER = open("gated_mix__mha_block__glu_gated_geglu__prompt.s.ref").read().split("; Override")[0]


def main():
    diag = "diag" in sys.argv
    name = "gated_mix__mha_block__glu_gated_geglu__prompt_kernel"
    sets = {"diag": "rt0 t0 p1_pass2 a_flags a_first a_loop a_pub t_flag t_end rt_end g_hw g_dma g_flags g_pre g_loop",
            "diagt": "rt0 t0 a_first a_loop a_sync a_st a_pub t_bar0 t_bar1 t_flag t_odata t_mm t_end g_loop rt_end",
            "diagp": "rt0 t0 p1_pass1 p2_4 p2_8 p2_16 p1_pass2 a_flags a_first a_loop t_end rt_end",
            "diagb": "rt0 t0 b2_pre b2_vm b2_post b3_pre b3_vm t_end rt_end",
            "diagc": "rt0 t0 b5_pre b5_vm b5_post b7_pre b7_vm t_end rt_end",
            "diagd": "rt0 t0 p2_4 c7_pre c7_vm c7_post p2_8 t_end rt_end",
            "diage": "rt0 t0 c9_pre c9_vm c9_post c15_pre c15_vm t_end rt_end",
            "diagr": "rt0 t0 p1_first p1_pass1 rt_first rt_pass1 t_end rt_end",
            "diagz": "rt0 rt_end",
            "diagrt": "rt0 rt_first rt_pass1 rt_pubq rt_pass2 rt_aflags rt_afirst rt_loop rt_pub rt_tflag rt_odata rt_end rt_gflags rt_gpre",
            "diags": "rt0 t0 p1_pass1 p1_pass2 rt_pass1 rt_pass2 p2_8 t_end rt_end",
            "diaga": "rt0 t0 p1_pass2 a_flags a_e2b a_first a_t0 a_t4 a_t8 a_t16 t_end rt_end",
            "diagq": "rt0 t0 karg dma0 p1_first p1_pass1 p2_4 t_end rt_end"}
    which = [a for a in sys.argv if a in sets]
    diag = bool(which)
    st = Stamps(diag, sets[which[0]].split() if diag else None)
    opt = {a.split("=")[0]: int(a.split("=")[1]) for a in sys.argv[1:] if "=" in a}
    g = Gen(name, st, opt)
    code, kd, pads = g.build()
    print(HEADER.rstrip())
    print("; @launch grid=(256,1,1) block=(512,1,1) lds=163840")
    if diag:
        print("; stamps: " + " ".join(st.only))
    print('.amdgcn_target "amdgcn-amd-amdhsa--gfx950"\n.text')
    print(code)
    print('.section .rodata,"a"\n.p2align 6')
    print(kd)


if __name__ == "__main__":
    main()
```

```python
from common import *

XF, ACC1, ACC2, WB = 144, 16, 64, 96
VDX0, VDX1, VDP, VDG, VDU = 120, 121, 122, 123, 124
VAX, VAP, VAG, VAGX, VL16, VSTV, VNC1 = 125, 129, 130, 132, 134, 135, 15
PK = 136
SRD_X, SRD_P, SRD_G, SRD_U, SRD_GW = 32, 36, 40, 44, 48
S_RB, S_CG, S_XO, S_PO, S_GO, S_W1K, S_W2K, S_T, S_RT, S_C, S_ST1, S_STH, S_T2, S_QS = range(52, 66)
S_ACT = 0
LX, LP, LQ = 0, 65536, 98304


def decode(A):
    load_args(A, {SRD_X: 0, SRD_P: 8, SRD_G: 32, SRD_U: 40, SRD_GW: 56, SRD_WS: 80})
    A(f"""
    v_lshrrev_b32 v1, 6, v0
    v_and_b32 v0, 63, v0
    v_readfirstlane_b32 s{S_WAVE}, v1
    s_bfe_u32 s{S_T}, s2, 0x20001
    s_lshl_b32 s{S_T}, s{S_T}, 2
    s_lshr_b32 s{S_CG}, s2, 6
    s_add_u32 s{S_CG}, s{S_CG}, s{S_T}
    """)


def x_addresses(A):
    A(f"""
    s_and_b32 s{S_T}, s2, 1
    s_lshl_b32 s{S_T}, s{S_T}, 3
    s_bfe_u32 s{S_RB}, s2, 0x30003
    s_add_u32 s{S_RB}, s{S_RB}, s{S_T}
    v_lshrrev_b32 v2, 3, v0
    v_and_b32 v3, 7, v0
    v_lshrrev_b32 v5, 4, v0
    s_lshl_b32 s{S_T}, s{S_WAVE}, 4
    v_add_u32 v6, s{S_T}, v2
    v_mul_u32_u24 v6, 896, v6
    v_xor_b32 v7, v3, v5
    v_lshl_add_u32 v{VDX0}, v7, 4, v6
    v_xor_b32 v7, 4, v7
    v_lshl_add_u32 v{VDX1}, v7, 4, v6
    v_add_u32 v{VDX1}, {8 * 896 - 1024}, v{VDX1}
    s_mul_i32 s{S_XO}, s{S_RB}, {128 * 896}
    s_lshl_b32 s{S_W1K}, s{S_WAVE}, 10
    s_lshl_b32 s{S_W2K}, s{S_WAVE}, 11
    """)


def w_addresses(A, special):
    A(f"""
    v_and_b32 v4, 1, v5
    s_lshl_b32 s{S_T}, s{S_WAVE}, 3
    v_add_u32 v6, s{S_T}, v2
    v_lshlrev_b32 v7, 2, v4
    v_xor_b32 v7, v3, v7
    v_mul_u32_u24 v8, 2688, v6
    v_lshl_add_u32 v{VDP}, v7, 4, v8
    """)
    if not special:
        A(f"""
        v_lshlrev_b32 v7, 1, v4
        v_xor_b32 v7, v3, v7
        v_mul_u32_u24 v8, 3584, v6
        v_lshl_add_u32 v{VDG}, v7, 4, v8
        v_xor_b32 v{VDU}, 64, v{VDG}
        """)


def read_addresses(A):
    A(f"""
    v_and_b32 v2, 31, v0
    v_lshrrev_b32 v3, 5, v0
    s_lshl_b32 s{S_T}, s{S_RT}, 12
    v_lshl_add_u32 v4, v2, 7, s{S_T}
    v_bfe_u32 v5, v2, 1, 3
    v_xor_b32 v5, v5, v3
    """)
    for s in range(4):
        A(f"v_xor_b32 v6, {2 * s}, v5")
        A(f"v_lshl_add_u32 v{VAX + s}, v6, 4, v4")
    A(f"""
    v_and_b32 v2, 3, v0
    v_bfe_u32 v4, v0, 2, 2
    v_bfe_u32 v5, v0, 4, 1
    v_bfe_u32 v6, v0, 3, 1
    v_lshl_add_u32 v7, v3, 3, v4
    v_lshlrev_b32 v7, 7, v7
    s_lshl_b32 s{S_T}, s{S_C}, 3
    v_lshl_add_u32 v8, v5, 2, v2
    v_add_u32 v8, s{S_T}, v8
    v_lshlrev_b32 v9, 3, v6
    v_xor_b32 v8, v8, v9
    v_lshl_add_u32 v8, v8, 3, v7
    v_add_u32 v{VAP}, {LP}, v8
    """)


def gu_addresses(A, special):
    if special:
        A(f"""
        v_add_u32 v{VAG}, {LQ}, v8
        v_add_u32 v{VAG + 1}, {LQ + 8192}, v8
        v_mov_b32 v{VAGX}, v8
        v_add_u32 v{VAGX + 1}, 8192, v8
        """)
        return
    A(f"""
    v_add_u32 v8, s{S_T}, v2
    v_lshlrev_b32 v9, 2, v6
    v_xor_b32 v8, v8, v9
    v_lshlrev_b32 v9, 3, v5
    v_xor_b32 v8, v8, v9
    v_lshl_add_u32 v7, v5, 13, v7
    v_lshl_add_u32 v{VAGX}, v8, 3, v7
    v_xor_b32 v8, 4, v8
    v_lshl_add_u32 v{VAGX + 1}, v8, 3, v7
    v_add_u32 v{VAG}, {LQ}, v{VAGX}
    v_add_u32 v{VAG + 1}, {LQ}, v{VAGX + 1}
    v_mov_b32 v{VNC1}, {f32(-GELU_C1)}
    """)


def dma(m0base, m0s, voff, srd_, sbase, soff, imm=0, setm0=True):
    out = []
    if setm0:
        out.append(f"s_add_u32 m0, s{m0s}, {m0base}")
    out.append(f"s_add_u32 s{S_T2}, s{sbase}, {soff}")
    out.append(f"buffer_load_dwordx4 v{voff}, {sr(srd_, 4)}, s{S_T2} offen{' offset:%d' % imm if imm else ''} lds")
    return out


def stage_dma(stage, special, up=0):
    sl = stage % 4
    g = []
    g.append(dma(LX + sl * 16384 + up * 8192, S_W2K, VDX0, SRD_X, S_XO, stage * 128 + up * 64 * 896) +
             [f"buffer_load_dwordx4 v{VDX1}, {sr(SRD_X, 4)}, s{S_T2} offen offset:1024 lds"])
    k0 = stage * 64 + up * 32
    g.append(dma(LP + sl * 8192 + up * 4096, S_W1K, VDP, SRD_P, S_PO, k0 * 2688))
    q = LQ + sl * 16384 + up * 4096
    if special:
        g.append(dma(q, S_W1K, VDP, SRD_P, S_PO, k0 * 2688 + 128))
    else:
        g.append(dma(q, S_W1K, VDG, SRD_G, S_GO, k0 * 3584))
        g.append(dma(q + 8192, S_W1K, VDU, SRD_U, S_GO, k0 * 3584))
    return g


P2LOC = {0: (LX, 3), 1: (LQ, 3), 2: (LX, 0), 3: (LQ, 0), 4: (LX, 1), 5: (LQ, 1), 6: (LX, 2)}


def p2_dma(ch, special, up=0):
    reg, sl = P2LOC[ch]
    base = reg + sl * 16384 + up * 4096
    k0 = ch * 64 + up * 32
    if special:
        return [dma(base, S_W1K, VDP, SRD_P, S_PO, k0 * 2688 + 256),
                dma(base + 8192, S_W1K, VDP, SRD_P, S_GO, k0 * 2688)]
    return [dma(base, S_W1K, VDG, SRD_G, S_GO, k0 * 3584 + 128),
            dma(base + 8192, S_W1K, VDU, SRD_U, S_GO, k0 * 3584 + 128)]


def tr_reads(dst, addr, off):
    return [f"ds_read_b64_tr_b16 {vr(dst, 2)}, v{addr} offset:{off}",
            f"ds_read_b64_tr_b16 {vr(dst + 2, 2)}, v{addr} offset:{off + 512}"]


LA1, LA2 = 1, 1


def wb1(t):
    return WB + 12 * (t & 1) if LA1 == 1 else (WB + 12, ACC2, WB)[t % 3]


def reads1(t):
    ch, s = divmod(t, 4)
    sl = ch % 4
    b = wb1(t)
    return ([f"ds_read_b128 {vr(XF + 4 * t, 4)}, v{VAX + s} offset:{LX + sl * 16384}"] +
            tr_reads(b, VAP, sl * 8192 + s * 2048),
            tr_reads(b + 4, VAG, sl * 16384 + s * 2048),
            tr_reads(b + 8, VAG + 1, sl * 16384 + s * 2048))


def wb2(t, ntile):
    if ntile == 1:
        return WB + 4 * (t % 6)
    return WB + 12 * (t & 1) if LA2 == 1 else WB + 8 * (t % 3)


def reads2(t, ntile, img=0):
    if ntile == 1:
        ch, s = divmod(t % 28, 4)
        reg, sl = P2LOC[ch]
        return [tr_reads(wb2(t, 1), (VAGX if reg == LX else VAG) + t // 28, sl * 16384 + s * 2048)]
    ch, s = divmod(t, 4)
    reg, sl = P2LOC[ch]
    a = VAGX if reg == LX else VAG
    b = wb2(t, ntile)
    return [tr_reads(b + 4 * e, a + e, sl * 16384 + s * 2048) for e in range(ntile)]


def epi_gu(acc, pk, soff_expr, st):
    o = []
    T = [1, 2, 3, 4]
    for half in range(2):
        g = [acc + 4 * half + i for i in range(4)]
        u = [acc + 8 + 4 * half + i for i in range(4)]
        o += [f"v_mul_f32 v{T[i]}, v{g[i]}, v{g[i]}" for i in range(4)]
        o += [f"v_fmamk_f32 v{T[i]}, v{T[i]}, {f32(-GELU_C1 * GELU_C2)}, v{VNC1}" for i in range(4)]
        o += [f"v_mul_f32 v{T[i]}, v{T[i]}, v{g[i]}" for i in range(4)]
        o += [f"v_exp_f32 v{T[i]}, v{T[i]}" for i in range(4)]
        o += [f"v_mul_f32 v{u[i]}, v{g[i]}, v{u[i]}" for i in range(4)]
        o += [f"v_add_f32 v{T[i]}, 1.0, v{T[i]}" for i in range(4)]
        o += [f"v_rcp_f32 v{T[i]}, v{T[i]}" for i in range(4)]
        o += [f"v_mul_f32 v{u[i]}, v{u[i]}, v{T[i]}" for i in range(4)]
        o += [f"v_cvt_pk_bf16_f32 v{pk + 2 * half + i}, v{u[2 * i]}, v{u[2 * i + 1]}" for i in range(2)]
    o.append(f"s_add_u32 s{S_T}, s{S_STH}, {soff_expr}")
    o.append(f"buffer_store_dwordx4 {vr(pk, 4)}, v{VL16}, {sr(SRD_WS, 4)}, s{S_T} offen{st}")
    return o


def epi_qk(acc, scale, soff, st, base=None):
    o = []
    if scale:
        o += [f"v_mul_f32 v{acc + r}, s{S_QS}, v{acc + r}" for r in range(16)]
    o += [f"v_cvt_pk_bf16_f32 v{PK + j}, v{acc + 2 * j}, v{acc + 2 * j + 1}" for j in range(8)]
    o.append(f"s_add_u32 s{S_T}, s{base or S_ST1}, {soff}")
    for q in range(2):
        o.append(f"v_permlane32_swap_b32 v{PK + 4 * q}, v{PK + 4 * q + 2}")
        o.append(f"v_permlane32_swap_b32 v{PK + 4 * q + 1}, v{PK + 4 * q + 3}")
    for q in range(2):
        o.append(f"buffer_store_dwordx4 {vr(PK + 4 * q, 4)}, v{VL16}, {sr(SRD_WS, 4)}, s{S_T} offen offset:{1024 * q}{st}")
    return o


def epi_v(acc, st):
    o = [f"v_cvt_pk_bf16_f32 v{PK + j}, v{acc + 2 * j}, v{acc + 2 * j + 1}" for j in range(8)]
    o.append(f"s_add_u32 s{S_T}, s{S_ST1}, 14336")
    o.append(f"buffer_store_dwordx4 {vr(PK, 4)}, v{VSTV}, {sr(SRD_WS, 4)}, s{S_ST1} offen{st}")
    o.append(f"buffer_store_dwordx4 {vr(PK + 4, 4)}, v{VSTV}, {sr(SRD_WS, 4)}, s{S_T} offen{st}")
    return o


def final_epilogue(st):
    return epi_gu(ACC2, PK, 4096, st), epi_gu(ACC2 + 16, PK + 4, 5120, st)


def gate_loads(A):
    A(f"""
    s_lshl_b32 s10, s{S_RB}, 7
    s_lshl_b32 s11, s{S_CG}, 3
    s_add_u32 s10, s10, s11
    s_add_u32 s3, s10, s{S_WAVE}
    s_mul_i32 s10, s3, 896
    """)
    for r in range(136, 144, 2):
        A(f"v_mov_b64 {vr(r, 2)}, 0")
    A(f"""
    s_mov_b32 exec_hi, 0x00ffffff
    buffer_load_dwordx4 v[136:139], v{VL16}, {sr(SRD_X, 4)}, s10 offen
    buffer_load_dwordx4 v[140:143], v{VL16}, {sr(SRD_GW, 4)}, 0 offen
    s_mov_b64 exec, -1
    """)


def gate_compute(A, st):
    A("v_mov_b32 v1, 0")
    for i in range(4):
        A(f"v_dot2_f32_bf16 v1, v{136 + i}, v{140 + i}, v1")
    for m in ("row_shr:1 row_mask:0xf", "row_shr:2 row_mask:0xf", "row_shr:4 row_mask:0xf", "row_shr:8 row_mask:0xf",
              "row_bcast:15 row_mask:0xa", "row_bcast:31 row_mask:0xc"):
        A(f"v_add_f32_dpp v1, v1, v1 {m} bank_mask:0xf")
    A(f"""
    v_mul_f32 v1, {f32(-LOG2E)}, v1
    v_exp_f32 v1, v1
    s_lshl_b32 s3, s3, 2
    v_add_f32 v1, 1.0, v1
    v_rcp_f32 v1, v1
    s_add_u32 s3, s3, {WS_G}
    s_mov_b32 exec_lo, 0
    s_mov_b32 exec_hi, 0x80000000
    """)
    tok = A(f"buffer_store_dword v1, off, {sr(SRD_WS, 4)}, s3{st}")
    A("s_mov_b64 exec, -1")
    return tok


def programs(A, kinds, st, hooks, opt):
    global LA1, LA2
    LA1, LA2 = opt.get("la1", 2), opt.get("la2", 1)
    LA0, LA = opt.get("LA0", 2), opt.get("LA", 2)
    p2bars, pubbar, popstart = (7, 15), opt.get("pubbar", 9), opt.get("popstart", 4)
    dma_a = opt.get("dma_a", 1)
    stamp = hooks["stamp"]
    special = kinds == "Q"
    if special:
        dma_a = opt.get("dma_aq", 0)
    ntile2 = 1 if special else 2
    toks = {}

    def issue(groups, key):
        for g in groups:
            for x in g:
                t = A(x)
                if t:
                    toks[key] = t

    def groups_of(stg, up):
        if stg < 7:
            return stage_dma(stg, special, up)
        if stg > 10:
            return []
        c0 = 2 * (stg - 7)
        return p2_dma(c0, special, up) + (p2_dma(c0 + 1, special, up) if c0 < 6 else [])

    x_addresses(A)
    w_addresses(A, special)
    if special:
        A(f"s_and_b32 s{S_PO}, s{S_CG}, 1")
        A(f"s_lshl_b32 s{S_PO}, s{S_PO}, 9")
        A(f"s_mov_b32 s{S_GO}, 384")
    else:
        A(f"s_lshl_b32 s{S_PO}, s{S_CG}, 7")
        A(f"s_add_u32 s{S_PO}, s{S_PO}, 896")
        A(f"s_lshl_b32 s{S_GO}, s{S_CG}, 8")
    srd_tail(A, SRD_X, S * D * 2)
    srd_tail(A, SRD_P, D * 3 * D * 2)
    if not special:
        srd_tail(A, SRD_G, D * F * 2)
        srd_tail(A, SRD_U, D * F * 2)
    pfpos = opt.get("pfpos", 2)
    if pfpos == 2:
        hooks["prefetch"](A, 0)
    A.wait(lg=0)
    stamp(A, "karg")
    stamp(A, "rtkarg")
    issue(groups_of(0, 0), 0)
    stamp(A, "dma0")
    stamp(A, "rtdma0")
    srd_tail(A, SRD_GW, D * 2)
    srd_tail(A, SRD_WS, WS_BYTES)
    A(f"""
    v_lshlrev_b32 v{VL16}, 4, v0
    s_and_b32 s{S_RT}, s{S_WAVE}, 3
    s_lshr_b32 s{S_C}, s{S_WAVE}, 2
    s_cselect_b32 s{S_ROLE}, 1, 0
    """)
    hooks["entry"](A)
    for stg in range(1, LA0):
        A("s_barrier")
        if pfpos == 0:
            hooks["prefetch"](A, 0)
        issue(groups_of(stg, 0), stg)
        if pfpos == 1:
            hooks["prefetch"](A, 0)
    if opt.get("gatepos", 0) == 0:
        gate_loads(A)
    read_addresses(A)
    gu_addresses(A, special)
    labels = {(k, r): hooks["label"](f"{k}{r}_") for k in kinds for r in (0, 1)}
    hooks["prologue"](A, special, [labels[k] for k in labels][1:])

    def side_work(kind, role):
        A = Rec()
        S_T, S_T2 = 0, 1
        A(f"s_lshl_b32 s{S_T}, s{S_RB}, 2")
        A(f"s_add_u32 s{S_T}, s{S_T}, s{S_RT}")
        A(f"s_mul_i32 s{S_ST1}, s{S_T}, 28672")
        if special:
            A(f"s_add_u32 s{S_STH}, s{S_ST1}, {role << 11}")
            A(f"s_lshl_b32 s{S_T}, s{S_PO}, 5")
            A(f"s_add_u32 s{S_ST1}, s{S_STH}, s{S_T}")
            A(f"s_mov_b32 s{S_QS}, {f32(QSCALE)}")
        else:
            A(f"s_mul_i32 s{S_STH}, s{S_T}, 114688")
            A(f"s_lshl_b32 s{S_T}, s{S_CG}, 13")
            A(f"s_add_u32 s{S_STH}, s{S_STH}, s{S_T}")
            A(f"s_add_u32 s{S_STH}, s{S_STH}, {WS_H + (role << 11)}")
            if kind == "K":
                A(f"s_lshl_b32 s{S_T}, s{S_CG}, 12")
                A(f"s_add_u32 s{S_ST1}, s{S_ST1}, s{S_T}")
                A(f"s_add_u32 s{S_ST1}, s{S_ST1}, {WS_K + (role << 11)}")
            else:
                A(f"s_lshl_b32 s{S_T}, s{S_CG}, 10")
                A(f"s_add_u32 s{S_ST1}, s{S_ST1}, s{S_T}")
                A(f"s_add_u32 s{S_ST1}, s{S_ST1}, {WS_V - 7 * 1024 + (role << 9)}")
                A(f"v_lshrrev_b32 v{VSTV}, 5, v0")
                A(f"v_mul_u32_u24 v{VSTV}, {7168 - 512}, v{VSTV}")
                A(f"v_add_u32 v{VSTV}, v{VSTV}, v{VL16}")
        hooks["idle"](A, role)
        L, G = Rec(), Rec()
        gate_loads(L)
        gate_compute(G, st)
        return A.units, L.units, G.units

    def mm1(kind, t, i):
        b = wb1(t) + 4 * i
        c = "0" if t == 0 else None
        if kind == "V" and i == 0:
            return mfma(ACC1, XF + 4 * t, b, c)
        return mfma(ACC1 + 16 * i, b, XF + 4 * t, c)

    def mm2(t, i):
        return mfma(ACC2 + 16 * i, wb2(t, ntile2) + 4 * i, XF + 4 * t, "0" if t == 0 else None)

    stamp(A, "rtpro")
    A.wait_tok(toks[0])
    stamp(A, "rtvm0")
    A("s_barrier")
    stamp(A, "p1_first")
    stamp(A, "rt_first")
    nt1 = 2 if special else 3
    for k in range(LA1):
        for r in reads1(k)[:nt1]:
            for x in r:
                A(x)
    if not special:
        v = hooks["label"]("isv")
        A(f"s_cmp_ge_u32 s{S_CG}, 7")
        A(f"s_cbranch_scc0 {v}")
        A(f"s_cmp_eq_u32 s{S_ROLE}, 0")
        A(f"s_cbranch_scc1 {labels['V', 0]}")
        A(f"s_branch {labels['V', 1]}")
        A(f"{v}:")
    A(f"s_cmp_eq_u32 s{S_ROLE}, 0")
    A(f"s_cbranch_scc0 {labels[kinds[0], 1]}")
    sv0, toks0 = A.save(), dict(toks)

    def stream(kind, role):
        pend = []

        def stage_groups(stg):
            if not dma_a:
                return [(g, stg) for g in groups_of(stg, 0)]
            if role:
                return []
            return [(g, stg) for pair in zip(groups_of(stg, 0), groups_of(stg, 1)) for g in pair]

        def pop(n=1):
            for _ in range(n):
                if pend:
                    g, key = pend.pop(0)
                    if opt.get("nodma"):
                        toks[key] = None
                    else:
                        issue([g], key)

        side, gload, gate = side_work(kind, role)
        half = len(side) // 3
        plan = [(gload, 4, 6), (side[:half], 7, 11), (gate, 12, 16), (side[half:], 17, 25)]
        if opt.get("gatepos", 0) == 0:
            plan = [(gate, 3, 7), (side, 8, 25)]

        def fill(t, k):
            hit = [p for p in plan if p[1] <= t <= p[2]]
            if opt.get("nofill") or not hit:
                return
            units, lo, hi = hit[0]
            n = 3 * (hi - lo + 1)
            pos = 3 * (t - lo) + k
            for u in units[len(units) * pos // n:len(units) * (pos + 1) // n]:
                for x in u:
                    tk = A(x)
                    if tk and "store" in x:
                        toks["gate"] = tk

        for k in range(LA0, LA + 1):
            pend += stage_groups(k)
        for t in range(28):
            if t + LA1 < 28:
                nxt = reads1(t + LA1)
            elif t < 27:
                nxt = [[], [], []]
            elif ntile2 == 1:
                nxt = [reads2(k, 1)[0] for k in range(3)]
            else:
                nxt = reads2(0, 2) + [sum(reads2(1, 2), []) if LA2 == 2 else []]
            bound = (t + LA1) % 4 == 0 if t < 25 else t == 27
            if bound:
                A.wait(lg=0)
            A(mm1(kind, t, 0))
            if bound:
                stg = (t + LA1) // 4
                assert not pend
                need = stg if stg < 7 else 7 + p2bars[0] // 8
                stamp(A, f"b{stg}_pre")
                A.wait_tok(toks.get(need), toks.get("gate") if stg == 6 else None)
                stamp(A, f"b{stg}_vm")
                if not opt.get("nobar"):
                    A("s_barrier")
                stamp(A, f"b{stg}_post")
                stamp(A, f"rtb{stg}")
                hooks["p1bar"](A, stg, role)
                todo = list(range(stg + LA, stg + LA + 1 if stg < 7 else 11))
                if special and LA == 2 and stg >= 6:
                    todo = [8, 9] if stg == 6 else [10]
                for k in todo:
                    pend += stage_groups(k)
            left = (3 - LA1 - t) % 4 + 1
            npop = -(-len(pend) // left) if t < 27 else len(pend) * special
            for i in range(3):
                if 0 < i < nt1:
                    A(mm1(kind, t, i))
                for x in (nxt[i] if i < nt1 or t == 27 else []):
                    A(x)
                pop((npop + (0, 2, 1)[i]) // 3)
                fill(t, i)
            if t == opt.get("pf2", 21):
                hooks["prefetch"](A, 1)
        stamp(A, "p1_pass1")
        stamp(A, "rt_pass1")
        if "p1exit" in hooks:
            hooks["p1exit"]()
            return
        if kind == "K":
            e1 = epi_qk(ACC1, False, 0, st)
        elif kind == "V":
            e1 = epi_v(ACC1, st)
        else:
            e1 = sum([epi_qk(ACC1 + 16 * k, True, WS_Q + 4096 * k, st) for k in range(2)], [])
        nq = len(e1)
        if not special:
            e1 = e1 + epi_gu(ACC1 + 16, PK, 0, st) + epi_gu(ACC1 + 32, PK + 4, 1024, st)

        if opt.get("nost"):
            e1 = [("s_nop 0" if x.startswith("buffer_store") else x) for x in e1]
        if opt.get("noe1"):
            e1 = e1[:nq]
        if opt.get("notrans"):
            e1 = [x.replace("v_exp_f32", "v_mov_b32").replace("v_rcp_f32", "v_mov_b32") for x in e1]

        def bar_token(k):
            return toks.get(7 + p2bars[k + 1] // 8 if k + 1 < len(p2bars) else 10)

        done = 0
        qtok = None
        la = LA2 if ntile2 == 2 else 3
        nslots = 27 * ntile2
        slot = 0
        for t in range(28):
            nxt = reads2(t + la, ntile2) if t + la < 28 or special else [[]] * ntile2
            bound = t + la - 1 in p2bars
            pub = not special and t == pubbar
            endbar = t == 27 and not special
            if endbar or (bound and not special):
                A.wait(lg=0)
            hooks["p2step"](A, t, role)
            for i in range(ntile2):
                A(mm2(t, i))
                if endbar and i == 0:
                    A("s_barrier")
                if (bound or pub) and i == 0:
                    assert not pub or done >= nq
                    stamp(A, f"c{t}_pre")
                    A.wait_tok(bar_token(p2bars.index(t + la - 1)) if bound else None, qtok if pub else None)
                    stamp(A, f"c{t}_vm")
                    A("s_barrier")
                    stamp(A, f"c{t}_post")
                    if pub:
                        hooks["qkv_done"](A, role)
                for x in nxt[i]:
                    A(x)
                if special:
                    pop(2 if t >= 2 else 0)
                elif t >= popstart and (dma_a or i == 0):
                    pop()
                upto = 0
                if t >= 1:
                    slot += 1
                    upto = min(len(e1), (len(e1) * slot * 27) // (nslots * 25))
                upto = max(upto, min(nq, 8 * (ntile2 * t + i + 1)))
                while done < upto:
                    tk = A(e1[done])
                    if tk and done < nq:
                        qtok = tk
                    done += 1
        assert done == len(e1) and not pend
        stamp(A, "p1_pass2")
        stamp(A, "rt_pass2")
        if "p2exit" in hooks:
            hooks["p2exit"]()
            return
        if not special:
            hooks["regular_end"](A, role)
            return
        e2 = epi_qk(ACC2, True, WS_Q + 8192, st)
        idle, fin = hooks["label"]("idle"), hooks["label"]("fin")
        A(f"s_bitcmp{1 - role}_b32 s{S_CG}, 0")
        A(f"s_cbranch_scc1 {idle}")
        sv = A.save()
        done = 0
        for t in range(28):
            A(mfma(ACC1, wb2(28 + t, 1), XF + 4 * t, "0" if t == 0 else None))
            for x in (reads2(28 + t + 3, 1)[0] if t + 3 < 28 else []):
                A(x)
            while t >= 1 and done < min(len(e2), 6 * t):
                A(e2[done])
                done += 1
        for x in epi_qk(ACC1, True, WS_Q + 12288, st, base=S_STH):
            A(x)
        A(f"s_branch {fin}")
        A(f"{idle}:")
        A.restore(sv)
        for x in e2:
            A(x)
        A(f"{fin}:")
        hooks["special_end"](A, role)

    for n, (kind, role) in enumerate(labels):
        if n:
            hooks["target"](A, labels[kind, role])
            A.restore(sv0)
            toks.clear()
            toks.update(toks0)
        stream(kind, role)
        assert "p1exit" in hooks or "p2exit" in hooks or (all(not e[1] for e in A.vm) and all(not e[1] for e in A.lg)), A.state()
```

```python
import sys
from common import *
import phase1 as p1

ST = " sc1"
LD = " sc1"

FLAG_S = WS_FLAG
FLAG_O = WS_FLAG + 0x8000
SPIN = 1 << 17

L_WO, L_RING, L_OP, L_MISC = 0, 57344, 106496, 155648
L_O = L_RING
L_TR = 131072
M_HW, M_AS, M_GS, M_MAX = L_MISC, L_MISC + 2048, L_MISC + 3072, L_MISC + 4096

S_F1, S_SPIN = 27, 3
S_HEAD, S_QB, S_MB, S_NB, S_GW = range(66, 71)
S_AG = 61
S_MO, S_T, S_T2, S_T3, S_OFF, S_CNT = 54, 56, 57, 58, 60, 61
SRD_DBG, SRD_OUT = 48, 48
SRD_K, SRD_V, S_Q, S_ME, S_OO, S_OF = 72, 76, 80, 84, 86, 87
SRD_WD, SRD_WO = 72, 76
S_RA, S_RB, S_WDO, S_WOO, S_HOFF, S_GOFF, S_OUTO = range(80, 87)

VL16 = p1.VL16
VPOLL, VHW = 12, 14
OA, SB, PB, VB, KB, QF = 16, 80, 112, 160, 192, 224
VV0, VGA, VONE, VM, VHI = 10, 11, 13, 1, 7
VMLO, VMHI, VGAD = 120, 121, 122
S_LO = 62
VK = [VL16, 144, 145, 146]
VV = [VV0] + list(range(147, 154))
VXA, VSW, VSR = 154, 158, 159
ACC, HB, WBUF = 16, 80, 160
GL16, GSW, GSR = 1, 2, 3
NDEF = 10
VDW0, VDW1, VTR = 9, 10, 11
VH0, VH1, VAWA, VAWB, VG = 242, 243, 244, 246, 248
ACA, TB_, TA_ = 80, 96, 112
POLLMASK = "0x1ffff"
POLL = f"buffer_load_dword v6, v{VPOLL}, {sr(SRD_WS, 4)}, 0 offen sc1"


class Gen:
    def __init__(self, name, stamps, opt=None):
        self.A = Asm()
        self.name = name
        self.stamp = stamps
        self.opt = opt or {}
        self.late = []
        self.nlab = 0

    def pad(self, where):
        us = self.opt.get("pad_" + where)
        if not us:
            return
        A, L = self.A, self.lab("pad")
        A.auto = False
        A(f"{L}:")
        A("s_memrealtime s[98:99]")
        A._emit_raw("s_waitcnt lgkmcnt(0)")
        A("s_sub_u32 s98, s98, s96")
        A(f"s_cmp_lt_u32 s98, {us * 100}")
        A(f"s_cbranch_scc1 {L}")
        A.auto = True
        A.sm = set()

    def lab(self, s):
        self.nlab += 1
        return f"{self.name}_{s}{self.nlab}"

    def one_lane_store(self, value, soff, wave=None, tmp=5):
        A = self.A
        skip = None
        if wave is not None:
            skip = self.lab("skip")
            A(f"s_cmp_lg_u32 s{S_WAVE}, {wave}")
            A(f"s_cbranch_scc1 {skip}")
        A(f"v_mov_b32 v{tmp}, {value}")
        A("s_mov_b64 exec, 1")
        A.uncounted(f"buffer_store_dword v{tmp}, off, {sr(SRD_WS, 4)}, s{soff} sc1")
        A("s_mov_b64 exec, -1")
        if skip:
            A(f"{skip}:")

    def check_words(self, load, cmp_, tok, mask=None, nap=0):
        A = self.A
        ok, loop = self.lab("ok"), self.lab("again")
        A.wait_tok(tok)
        if mask:
            A(f"s_mov_b64 exec, {mask}")
        A(cmp_)
        A(f"s_cbranch_vccz {ok}")
        sv = A.save()
        A(f"s_mov_b32 s{S_SPIN}, {SPIN}")
        A(f"{loop}:")
        if nap:
            A(f"s_sleep {nap}")
        A(load)
        A("s_waitcnt vmcnt(0)" if load.startswith("buffer") else "s_waitcnt lgkmcnt(0)")
        A(cmp_)
        A(f"s_cbranch_vccz {ok}")
        A(f"s_sub_u32 s{S_SPIN}, s{S_SPIN}, 1")
        A(f"s_cbranch_scc0 {loop}")
        A.restore(sv)
        A(f"{ok}:")
        if mask:
            A("s_mov_b64 exec, -1")

    def target(self, A, label, inline=False):
        if not self.opt.get("warm", 0):
            A(f"{label}:")
            return
        if inline:
            A(f"s_branch {label}")
        A(".p2align 6")
        A(f"{label}_w:")
        A("s_setpc_b64 s[0:1]")
        A(f"{label}:")

    def warm(self, A, special, own):
        if not self.opt.get("warm", 0):
            return
        n = self.name
        t = own + ([f"{n}_a_plain", f"{n}_g_plain", f"{n}_a_poll", f"{n}_a_go", f"{n}_g_go"] if special else
                   [f"{n}_a_e2", f"{n}_g_e2", f"{n}_a_late", f"{n}_a_go"])
        for w, lab in enumerate(t):
            skip = self.lab("skip")
            A(f"s_cmp_lg_u32 s{S_WAVE}, {w}")
            A(f"s_cbranch_scc1 {skip}")
            A(f"s_call_b64 s[0:1], {lab}_w")
            A(f"{skip}:")

    def masked(self, mask, text):
        self.A(f"s_mov_b64 exec, {mask}")
        t = self.A(text)
        self.A("s_mov_b64 exec, -1")
        return t

    def hooks(self, early_poll):
        A = self.A
        st = {}

        def entry(A):
            self.code_prefetch(A)
            skip = self.lab("skip")
            A(f"""
            s_lshl_b32 s{S_F1}, s{p1.S_RB}, 4
            s_add_u32 s{S_F1}, s{S_F1}, s{p1.S_CG}
            s_lshl_b32 s{S_F1}, s{S_F1}, 7
            s_add_u32 s{S_F1}, s{S_F1}, {FLAG_S}
            s_cmp_lg_u32 s{S_WAVE}, 0
            s_cbranch_scc1 {skip}
            s_and_b32 s{p1.S_T}, s2, 7
            s_lshl_b32 s{p1.S_T}, s{p1.S_T}, 1
            s_lshr_b32 s{p1.S_T2}, s2, 7
            s_add_u32 s{p1.S_T}, s{p1.S_T}, s{p1.S_T2}
            s_bfe_u32 s{p1.S_T2}, s2, 0x40003
            s_lshl_b32 s{p1.S_T2}, s{p1.S_T2}, 6
            s_add_u32 s{p1.S_T}, s{p1.S_T}, s{p1.S_T2}
            s_lshl_b32 s{p1.S_T}, s{p1.S_T}, 7
            s_add_u32 s{p1.S_T}, s{p1.S_T}, {FLAG_O}
            v_mov_b32 v10, 0
            v_lshlrev_b32 v11, 11, v0
            s_mov_b64 exec, 15
            """)
            A.uncounted(f"buffer_store_dword v10, v11, {sr(SRD_WS, 4)}, s{p1.S_T} offen sc1")
            A("s_mov_b64 exec, 1")
            A.uncounted(f"buffer_store_dword v10, off, {sr(SRD_WS, 4)}, s{S_F1} sc1")
            A("s_mov_b64 exec, -1")
            A(f"{skip}:")

        def p1bar(A, stg, role):
            if stg == 1:
                self.pad("b1")

            if stg == 7:
                self.pad("p1")
            if stg != 6:
                return
            srd(A, SRD_DBG, P_DBG, 256)
            if role:
                return
            skip = self.lab("skip")
            A(f"""
            s_cmp_lg_u32 s{S_WAVE}, 0
            s_cbranch_scc1 {skip}
            s_and_b32 s3, s2, 3
            s_lshl_b32 s3, s3, 6
            v_mov_b32 v13, 1
            s_mov_b64 exec, 1
            """)
            A.uncounted(f"buffer_atomic_add v13, off, {sr(SRD_DBG, 4)}, s3 sc1")
            A("s_mov_b64 exec, -1")
            A(f"{skip}:")

        dbg_load = f"buffer_load_dword v7, v8, {sr(SRD_DBG, 4)}, 0 offen sc1"

        def clear_misc(A):
            A(f"""
            s_lshl_b32 s3, s{S_WAVE}, 9
            s_add_u32 s3, s3, {L_MISC}
            v_lshl_add_u32 v8, v0, 3, s3
            v_mov_b64 v[6:7], 0
            ds_write_b64 v8, v[6:7]
            """)

        def p2step(A, t, role):
            if t == 8:
                if early_poll:
                    clear_misc(A)
                A(f"""
                v_and_b32 v8, 3, v0
                v_lshlrev_b32 v8, 6, v8
                """)
                st["dbg"] = A(dbg_load)
            if t in (4, 8, 12, 16, 20, 24):
                self.stamp(A, f"p2_{t}")
            if t == 20:
                self.check_words(dbg_load, "v_cmp_gt_u32 vcc, 64, v7", st["dbg"])
            if early_poll and not role and t >= 4:
                early, consts = self.setup_units()
                units, lo, hi = (early, 4, 12) if t < 12 else (consts, 12, 28)
                for u in units[len(units) * (t - lo) // (hi - lo):len(units) * (t + 1 - lo) // (hi - lo)]:
                    for x in u:
                        A(x)
            if early_poll and role and t >= 16 and t % 2 == 0:
                for x in self.wd_dma((t - 16) // 2):
                    A(x)
            if t == self.opt.get('polls', 25) and early_poll and not role:
                st["poll"] = self.masked(POLLMASK, POLL)

        def qkv_done(A, role):
            if not role:
                self.one_lane_store(1, S_F1, wave=0)
                self.stamp(A, "rt_pubq")

        def regular_end(A, role):
            if self.opt.get("pad_p2"):
                self.pad("p2")
                if not role:
                    st["poll"] = self.masked(POLLMASK, POLL)
            if not role:
                A.wait_tok(st["poll"])
            A(f"s_branch {self.name}_{'g' if role else 'a'}_e2")

        def special_end(A, role):
            A("s_waitcnt vmcnt(0) lgkmcnt(0)")
            A("s_barrier")
            qkv_done(A, role)
            self.pad("p2")
            clear_misc(A)
            A("s_waitcnt lgkmcnt(0)")
            A("s_barrier")
            A(f"s_branch {self.name}_{'g' if role else 'a'}_plain")

        h = dict(stamp=self.stamp, label=self.lab, entry=entry, prologue=self.warm, target=self.target, prefetch=self.data_prefetch, p1bar=p1bar, p2step=p2step,
                 idle=lambda A, role: self.precompute_g0(A) if role else self.precompute(A, 0),
                 qkv_done=qkv_done, regular_end=regular_end, special_end=special_end)
        if self.opt.get("p1exit"):
            h["p1exit"] = self.finish
        if self.opt.get("p2exit"):
            h["p2exit"] = self.finish
        return h

    def data_prefetch(self, A, which):
        if not self.opt.get("pf", 3) >> which & 1:
            return
        A(f"""
        s_lshl_b32 s10, s2, 3
        s_add_u32 s10, s10, s{S_WAVE}
        s_lshl_b32 s11, s10, 7
        v_lshl_add_u32 v13, v0, 18, s11
        """)
        if which == 0:
            skip = self.opt.get("pfskip", 1)
            srd_tail(A, p1.SRD_G, D * F * 2)
            srd_tail(A, p1.SRD_U, D * F * 2)
            A(f"""
            s_mul_i32 s10, s10, 896
            v_lshl_add_u32 v15, v0, 7, s10
            s_mov_b32 s10, {skip * 64 * 3584}
            s_mov_b32 s11, {skip * 64 * 2688}
            s_mov_b64 exec, {(1 << (7 - skip)) - 1}
            buffer_load_dword v11, v15, {sr(p1.SRD_X, 4)}, 0 offen offset:{128 * skip}
            buffer_load_dword v11, v13, {sr(p1.SRD_P, 4)}, s11 offen
            s_mov_b64 exec, 0x7f
            buffer_load_dword v11, v13, {sr(p1.SRD_G, 4)}, s10 offen
            buffer_load_dword v11, v13, {sr(p1.SRD_U, 4)}, s10 offen
            s_mov_b64 exec, -1
            """)
        else:
            srd(A, 4, P_WD, F * D * 2)
            srd(A, 12, P_WO, D * D * 2)
            A(f"""
            s_mov_b64 exec, 0x7f
            buffer_load_dword v11, v13, s[4:7], 0 offen
            buffer_load_dword v11, v13, s[12:15], 0 offen
            s_mov_b64 exec, -1
            """)

    def code_prefetch(self, A):
        if not self.opt.get("cpf", 1):
            return
        here, skip = self.lab("pc"), self.lab("skip")
        A(f"""
        s_cmp_lg_u32 s{S_WAVE}, 7
        s_cbranch_scc1 {skip}
        s_getpc_b64 s[0:1]
        {here}:
        s_sub_u32 s0, s0, {here}-{self.name}
        s_subb_u32 s1, s1, 0
        s_lshr_b32 s{p1.S_T}, s2, 3
        s_lshl_b32 s{p1.S_T}, s{p1.S_T}, 11
        v_lshl_add_u32 v10, v0, 7, s{p1.S_T}
        v_min_u32 v10, {self.name}_exit-{self.name}, v10
        s_mov_b64 exec, 0xffff
        """)
        A.uncounted("global_load_dword v11, v10, s[0:1]")
        A("v_lshlrev_b32 v10, 7, v0")
        A.uncounted(f"buffer_load_dword v11, v10, {sr(p1.SRD_GW, 4)}, 0 offen")
        A("s_mov_b64 exec, -1")
        A(f"{skip}:")

    def precompute(self, A, role):
        T, T2 = 0, 1
        A(f"""
        s_and_b32 s{T}, s2, 7
        s_lshr_b32 s{T2}, s2, 3
        s_lshl_b32 s{S_HEAD}, s{T}, 1
        s_lshr_b32 s{S_QB}, s2, 7
        s_add_u32 s{S_HEAD}, s{S_HEAD}, s{S_QB}
        s_and_b32 s{S_QB}, s{T2}, 15
        s_lshl_b32 s{S_MB}, s{T}, 2
        s_and_b32 s{S_NB}, s{T2}, 3
        s_add_u32 s{S_MB}, s{S_MB}, s{S_NB}
        s_lshr_b32 s{S_NB}, s{T2}, 2
        s_and_b32 s{S_GW}, s{S_WAVE}, 3
        s_lshl_b32 s{T}, s{S_WAVE}, 8
        s_add_u32 s{T}, s{T}, {M_HW}
        v_lshl_add_u32 v{VHW}, v0, 2, s{T}
        """)
        if role == 0:
            self.precompute_a(A)
        else:
            self.precompute_g(A)

    def precompute_a(self, A):
        T, T2 = 0, 1
        a0, a1 = S_Q, S_Q + 1
        A(f"""
        s_mul_i32 s{T}, s{S_HEAD}, 28
        s_add_u32 s{T2}, s{T}, 27
        s_lshr_b32 s{a0}, s{T}, 6
        s_lshr_b32 s{a1}, s{T2}, 6
        s_sub_u32 s{a1}, s{a1}, s{a0}
        v_and_b32 v5, 1, v0
        v_mul_u32_u24 v5, s{a1}, v5
        v_bfe_u32 v6, v0, 1, 1
        v_mad_u32_u24 v5, v6, 7, v5
        v_bfe_u32 v6, v0, 2, 2
        v_lshl_add_u32 v5, v6, 4, v5
        s_lshl_b32 s{a1}, s{S_GW}, 6
        s_add_u32 s{a1}, s{a1}, s{a0}
        v_add_u32 v5, s{a1}, v5
        s_lshl_b32 s{a1}, s{S_QB}, 4
        s_lshr_b32 s{T}, s{S_HEAD}, 3
        s_add_u32 s{T}, s{T}, s{a1}
        s_add_u32 s{T}, s{T}, 14
        v_writelane_b32 v5, s{T}, 16
        v_lshlrev_b32 v5, 7, v5
        v_add_u32 v{VPOLL}, {FLAG_S}, v5
        v_lshrrev_b32 v5, 5, v0
        v_mul_u32_u24 v5, {7168 - 512}, v5
        v_add_u32 v{VV0}, v5, v{VL16}
        s_mul_i32 s{S_OO}, s{S_HEAD}, 7
        s_lshr_b32 s{S_OO}, s{S_OO}, 1
        s_lshl_b32 s{S_OO}, s{S_OO}, 9
        s_mul_i32 s{T2}, s{S_GW}, {16 * 28672}
        s_add_u32 s{T}, s{T2}, s{S_OO}
        s_add_u32 s{T}, s{T}, {WS_K}
        """)
        srd(A, SRD_K, P_WS, 16 * 28672, add=f"s{T}")
        A(f"""
        s_mul_i32 s{T}, s{S_HEAD}, 448
        s_add_u32 s{T}, s{T}, s{T2}
        s_add_u32 s{T}, s{T}, {WS_V}
        """)
        srd(A, SRD_V, P_WS, 16 * 28672, add=f"s{T}")
        A(f"s_lshl_b32 s{T2}, s{S_QB}, 2")
        for j in range(4):
            A(f"""
            s_add_u32 s{T}, s{S_GW}, {j + 1}
            s_and_b32 s{T}, s{T}, 3
            s_add_u32 s{T}, s{T}, s{T2}
            s_mul_i32 s{T}, s{T}, 28672
            s_add_u32 s{S_Q + j}, s{T}, s{S_OO}
            """)
        A(f"""
        s_add_u32 s{T}, s{T2}, s{S_GW}
        s_lshl_b32 s{S_OFF}, s{T}, 7
        s_add_u32 s{S_AG}, s{S_OFF}, {WS_G}
        s_lshl_b32 s{T}, s{T}, 4
        s_add_u32 s{T}, s{T}, s{S_HEAD}
        s_lshl_b32 s{S_OO}, s{T}, 11
        s_add_u32 s{S_OO}, s{S_OO}, {WS_O}
        s_lshl_b32 s{S_OF}, s{T}, 7
        s_add_u32 s{S_OF}, s{S_OF}, {FLAG_O}
        s_mov_b32 s{S_ME}, 0x0fffffff
        s_mov_b32 s{S_ME + 1}, 0x0fffffff
        """)

    def precompute_g0(self, A):
        T = 0
        srd(A, SRD_WD, P_WD, F * D * 2)
        A(f"""
        v_lshrrev_b32 v5, 3, v0
        v_mul_u32_u24 v6, 896, v5
        v_lshrrev_b32 v5, 2, v0
        v_and_b32 v5, 4, v5
        v_and_b32 v7, 7, v0
        v_xor_b32 v5, v5, v7
        v_lshl_add_u32 v{VDW0}, v5, 4, v6
        v_add_u32 v{VDW1}, {7168 - 1024}, v{VDW0}
        s_and_b32 s{S_GW}, s{S_WAVE}, 3
        s_mul_i32 s{S_RB}, s{S_GW}, 14336
        s_mul_i32 s{S_RA}, s{S_GW}, 12288
        s_add_u32 s{S_RA}, s{S_RA}, {L_RING}
        s_lshr_b32 s{T}, s2, 5
        s_lshl_b32 s{T}, s{T}, 7
        s_mul_i32 s{S_WDO}, s{S_GW}, {448 * 896}
        s_add_u32 s{S_WDO}, s{S_WDO}, s{T}
        """)

    def precompute_g(self, A):
        T, T2 = 0, 1
        srd(A, SRD_WO, P_WO, D * D * 2)
        A(f"""
        s_lshl_b32 s{T}, s{S_NB}, 7
        s_mul_i32 s{S_WOO}, s{S_GW}, {112 * 896}
        s_add_u32 s{S_WOO}, s{S_WOO}, s{T}
        s_and_b32 s{T2}, s{S_GW}, 1
        s_lshl_b32 s{S_OUTO}, s{T2}, 6
        s_add_u32 s{S_OUTO}, s{S_OUTO}, s{T}
        s_lshl_b32 s{T2}, s{T2}, 3
        v_and_b32 v5, 1, v0
        v_lshlrev_b32 v5, 2, v5
        v_bfe_u32 v6, v0, 1, 1
        v_add_u32 v5, v5, v6
        v_bfe_u32 v6, v0, 4, 1
        v_lshl_add_u32 v5, v6, 1, v5
        v_and_b32 v6, 8, v0
        v_xor_b32 v5, v5, v6
        v_xor_b32 v5, s{T2}, v5
        v_lshrrev_b32 v6, 5, v0
        v_bfe_u32 v7, v0, 2, 2
        v_lshl_add_u32 v6, v6, 2, v7
        v_lshlrev_b32 v6, 7, v6
        v_lshl_add_u32 v{VTR}, v5, 3, v6
        s_lshr_b32 s{T}, s{S_GW}, 1
        s_lshl_b32 s{T2}, s{S_MB}, 1
        s_add_u32 s{T}, s{T}, s{T2}
        s_lshl_b32 s{S_GOFF}, s{T}, 7
        s_add_u32 s{S_GOFF}, s{S_GOFF}, {WS_G}
        s_mul_i32 s{T}, s{T}, {32 * 896}
        s_add_u32 s{S_OUTO}, s{S_OUTO}, s{T}
        s_mul_i32 s{S_HOFF}, s{S_MB}, {2 * 114688}
        s_mul_i32 s{T}, s{S_GW}, {28 * 1024}
        s_add_u32 s{S_HOFF}, s{S_HOFF}, s{T}
        s_add_u32 s{S_HOFF}, s{S_HOFF}, {WS_H}
        s_lshr_b32 s{T}, s{S_MB}, 1
        s_lshl_b32 s{T}, s{T}, 4
        s_mul_i32 s{T2}, s{S_GW}, 7
        s_lshr_b32 s{T2}, s{T2}, 1
        s_add_u32 s{T}, s{T}, s{T2}
        s_lshl_b32 s{T}, s{T}, 7
        s_add_u32 s{T}, s{T}, {FLAG_S}
        v_and_b32 v5, 3, v0
        v_lshl_add_u32 v{VPOLL}, v5, 7, s{T}
        """)

    def k_load(self, b):
        return [f"buffer_load_dwordx4 {vr(KB + 8 * b, 4)}, v{VK[b]}, {sr(SRD_K, 4)}, s{S_OFF} offen{LD}",
                f"buffer_load_dwordx4 {vr(KB + 8 * b + 4, 4)}, v{VK[b]}, {sr(SRD_K, 4)}, s{S_OFF} offen offset:1024{LD}"]

    def v_load(self, b):
        return [f"s_mov_b64 exec, {sr(S_ME, 2)}",
                f"buffer_load_dwordx4 {vr(VB + 8 * b, 4)}, v{VV[2 * b]}, {sr(SRD_V, 4)}, s{S_OFF} offen{LD}",
                f"buffer_load_dwordx4 {vr(VB + 8 * b + 4, 4)}, v{VV[2 * b + 1]}, {sr(SRD_V, 4)}, s{S_OFF} offen{LD}",
                "s_mov_b64 exec, -1"]

    @staticmethod
    def qk(i, half):
        b, j = (i >> 2) & 3, i & 3
        return mfma(SB + 16 * (i & 1), KB + 8 * b + 4 * half, QF + 8 * j + 4 * half, "0" if half == 0 else None)

    @staticmethod
    def pv(i, half, first=False):
        b, j = (i >> 2) & 3, i & 3
        return mfma(OA + 16 * j, VB + 8 * b + 4 * half, PB + 4 * half, "0" if first else None)

    @staticmethod
    def grp(i, g):
        r = SB + 16 * (i & 1) + 4 * g
        return [f"v_exp_f32 v{r + k}, v{r + k}" for k in range(4)] + \
               [f"v_cvt_pk_bf16_f32 v{PB + 2 * g + k}, v{r + 2 * k}, v{r + 2 * k + 1}" for k in range(2)]

    def wait_pair(self, base):
        A = self.A
        want = {f"v{base + 7}"}
        for e in A.vm:
            if e[1] & want:
                A.wait_tok(e[0])
                return

    def setup_units(self):
        R = Rec()
        for b in range(1, 4):
            R(f"v_add_u32 v{VK[b]}, {b * 28672}, v{VL16}")
        for n in range(1, 8):
            R(f"v_add_u32 v{VV[n]}, {n * 14336}, v{VV0}")
        for j in range(4):
            R(f"""
            s_add_u32 s0, s{S_GW}, {j + 1}
            s_and_b32 s0, s0, 3
            s_mul_i32 s0, s0, 12288
            s_add_u32 s0, s0, {L_OP + (j % 3) * 4096}
            v_add_u32 v{VXA + j}, s0, v{VL16}
            """)
        self.sync_addresses(M_AS, A=R, T=0)
        R(f"""
        s_and_b32 s0, s{S_HEAD}, 1
        v_lshrrev_b32 v{VMLO}, 5, v0
        v_or_b32 v{VMHI}, s0, v{VMLO}
        v_xor_b32 v{VMHI}, s0, v{VMHI}
        v_add_u32 v{VMHI}, -1, v{VMHI}
        v_xor_b32 v{VMLO}, 1, v{VMLO}
        v_and_b32 v{VMLO}, s0, v{VMLO}
        v_add_u32 v{VMLO}, -1, v{VMLO}
        v_and_b32 v{VGAD}, 31, v0
        v_lshlrev_b32 v{VGAD}, 2, v{VGAD}
        """)
        R(f"""
        v_and_b32 v{VONE}, 31, v0
        v_cmp_eq_u32 s[0:1], 28, v{VONE}
        v_mov_b32 v{VONE}, 0x3f803f80
        v_cndmask_b32 v{VONE}, 0, v{VONE}, s[0:1]
        """)
        return R.units, [[f"v_mov_b32 v{VB + r}, v{VONE}"] for r in range(32)]

    def first_loads(self):
        q = lambda j: [[f"buffer_load_dwordx4 {vr(QF + 8 * j + 4 * t, 4)}, v{VL16}, {sr(SRD_WS, 4)}, s{S_Q + j} offen"
                        f"{' offset:1024' * t}{LD}"] for t in range(2)]
        k = lambda b: [[x] for x in self.k_load(b)]
        return q(0) + k(0) + q(1) + [self.v_load(0)] + q(2) + q(3) + k(1) + \
            [[f"buffer_load_dword v{VGA}, v{VGAD}, {sr(SRD_WS, 4)}, s{S_AG} offen{LD}"]]

    def mask_q(self, j):
        self.wait_pair(QF + 8 * j)
        for r, m in ((0, VMLO), (1, VMLO), (6, VMHI), (7, VMHI)):
            self.A(f"v_and_b32 v{QF + 8 * j + r}, v{QF + 8 * j + r}, v{m}")

    def attn_main(self):
        A = self.A
        todo = [x for kt in range(1, 16) for x in (("v", kt, 4 * kt - 12), ("k", kt + 1, 4 * kt - 10)) if x[1] < 16]
        base = 0

        def loads(i, kind):
            nonlocal base
            if not todo or todo[0][2] > i or (todo[0][2] == i and todo[0][0] != kind) or issued[0] == i:
                return []
            kd, kt, _ = todo.pop(0)
            issued[0] = i
            o = []
            if kt >> 2 != base:
                base = kt >> 2
                o.append(f"s_add_u32 s{S_OFF}, s{S_OFF}, {4 * 28672}")
            return o + (self.v_load(kt & 3) if kd == "v" else self.k_load(kt & 3))

        issued = [-1]
        for i in range(64):
            kt, b, j = i >> 2, (i >> 2) & 3, i & 3
            seq = []
            if i < 3:
                self.mask_q(i + 1)
            if i < 63:
                if j == 3:
                    self.wait_pair(KB + 8 * ((b + 1) & 3))
                seq.append(self.qk(i + 1, 0))
            seq += self.grp(i, 0)
            if i:
                seq.append(self.pv(i - 1, 1))
            seq += loads(i, "v")
            seq += self.grp(i, 1)
            if i < 63:
                seq.append(self.qk(i + 1, 1))
            seq += loads(i, "k")
            seq += self.grp(i, 2)
            for x in seq:
                A(x)
            if j == 0:
                self.wait_pair(VB + 8 * b)
            A(self.pv(i, 0, first=i < 4))
            if i == 4:
                A(f"ds_write_b32 v{VHW}, v{VHW}")
            if i in (0, 4, 8, 16):
                self.stamp(A, f"a_t{i}")
            g3 = self.grp(i, 3)
            if i > 60:
                w = [f"ds_write_b128 v{VXA + j - 1}, {vr(OA + 16 * (j - 1) + 4 * q, 4)} offset:{1024 * q}" for q in range(4)]
                g3 = [g3[0], w[0], g3[1], w[1], g3[2], w[2], g3[3], w[3]] + g3[4:]
            for x in g3:
                A(x)
            if i == 63:
                self.pad("loop")
                A(f"ds_write_b32 v{VSW}, v{VSW}")
        assert not todo
        load = f"ds_read_b32 v6, v{VSR}"
        tok = A(load)
        A(self.pv(63, 1))
        self.stamp(A, "a_loop")
        self.stamp(A, "rt_loop")
        self.check_words(load, "v_cmp_eq_u32 vcc, 0, v6", tok)
        self.stamp(A, "a_sync")

    def lds_sync(self, value_reg, cmp_, VSW=VSW, VSR=VSR):
        A = self.A
        A(f"ds_write_b32 v{VSW}, v{value_reg}")
        load = f"ds_read_b32 v6, v{VSR}"
        tok = A(load)
        self.check_words(load, cmp_, tok)

    def sync_addresses(self, base, VSW=VSW, VSR=VSR, A=None, T=S_T):
        (A or self.A)(f"""
        s_lshl_b32 s{T}, s{S_GW}, 8
        s_add_u32 s{T}, s{T}, {base}
        v_lshl_add_u32 v{VSW}, v0, 2, s{T}
        v_and_b32 v{VSR}, 3, v0
        v_lshlrev_b32 v{VSR}, 8, v{VSR}
        v_add_u32 v{VSR}, {base}, v{VSR}
        """)

    def attn_finish(self):
        A = self.A
        R, O = VB, OA + 48
        order = [3, 0, 1, 2]
        for q in order:
            for p in range(3):
                A(f"ds_read_b128 {vr(R + 16 * p + 4 * q, 4)}, v{VXA + 3} offset:{4096 * p + 1024 * q}")
        for n, q in enumerate(order):
            for k in range(4):
                A(f"v_add_f32 v{R + 4 * q + k}, v{R + 4 * q + k}, v{R + 16 + 4 * q + k}")
            for k in range(4):
                A(f"v_add_f32 v{O + 4 * q + k}, v{O + 4 * q + k}, v{R + 32 + 4 * q + k}")
            for k in range(4):
                A(f"v_add_f32 v{O + 4 * q + k}, v{O + 4 * q + k}, v{R + 4 * q + k}")
            if n == 0:
                A(f"v_mov_b32 v8, v{O + 12}")
                A(f"v_mov_b32 v9, v{O + 12}")
            if n == 1:
                A("v_permlane32_swap_b32 v8, v9")
                A("v_rcp_f32 v12, v9")
            if n == 2:
                A(f"v_med3_f32 v8, v9, s{S_LO}, v{VHI}")
                A(f"v_mul_f32 v12, v12, v{VGA}")
                A("v_cmp_neq_f32 vcc, v8, v9")
        A(f"s_cbranch_vccnz {self.name}_slow")
        A(f"{self.name}_a_fin:")
        for hf in range(2):
            for r in range(8 * hf, 8 * hf + 8):
                A(f"v_mul_f32 v{O + r}, v{O + r}, v12")
            for jj in range(4 * hf, 4 * hf + 4):
                A(f"v_cvt_pk_bf16_f32 v{PB + jj}, v{O + 2 * jj}, v{O + 2 * jj + 1}")
            if hf == 0:
                A(f"buffer_store_dwordx4 {vr(PB, 4)}, v{VL16}, {sr(SRD_WS, 4)}, s{S_OO} offen{ST}")
        A(f"""
        s_mov_b32 exec_lo, 0
        v_mov_b64 {vr(PB + 6, 2)}, 0
        s_mov_b32 exec_lo, -1
        buffer_store_dwordx4 {vr(PB + 4, 4)}, v{VL16}, {sr(SRD_WS, 4)}, s{S_OO} offen offset:1024{ST}
        """)
        self.stamp(A, "a_st")
        self.tail_setup(0)
        A("s_waitcnt vmcnt(0)")
        self.one_lane_store(1, S_OF, tmp=8)

    def slow_path(self):
        A = self.A
        O, Q = OA + 48, QF + 24
        A.clear()
        A(f"{self.name}_slow:")
        A("s_waitcnt vmcnt(0) lgkmcnt(0)")
        A(f"s_mul_i32 s{S_T}, s{S_GW}, {16 * 28672}")
        for d in (SRD_K, SRD_V):
            A(f"s_sub_u32 s{d}, s{d}, s{S_T}")
            A(f"s_subb_u32 s{d + 1}, s{d + 1}, 0")
            A(f"s_mov_b32 s{d + 2}, {64 * 28672}")
        for r in range(8):
            A(f"v_mov_b32 v{VB + r}, v{VONE}")
        A(f"v_mov_b32 v{VM}, 0xff800000")
        for sub in (0, 1):
            lab = self.lab("slowloop")
            A(f"s_mov_b32 s{S_OFF}, 0")
            if sub:
                for r in range(16):
                    A(f"v_mov_b32 v{O + r}, 0")
            A(f"{lab}:")
            for x in self.k_load(0) + (self.v_load(0) if sub else []):
                A(x)
            A(mfma(SB, KB, Q, "0"))
            A(mfma(SB, KB + 4, Q + 4))
            if not sub:
                for r in range(0, 16, 2):
                    A(f"v_max3_f32 v{VM}, v{SB + r}, v{SB + r + 1}, v{VM}")
            else:
                for r in range(16):
                    A(f"v_sub_f32 v{SB + r}, v{SB + r}, v{VM}")
                for g in range(4):
                    for x in self.grp(0, g):
                        A(x)
                A(mfma(O, VB, PB))
                A(mfma(O, VB + 4, PB + 4))
            A(f"s_add_u32 s{S_OFF}, s{S_OFF}, 28672")
            A(f"s_cmp_lt_u32 s{S_OFF}, {64 * 28672}")
            A(f"s_cbranch_scc1 {lab}")
            if not sub:
                A(f"v_mov_b32 v9, v{VM}")
                A(f"v_permlane32_swap_b32 v9, v{VM}")
                A(f"v_max_f32 v{VM}, v9, v{VM}")
        A(f"""
        v_mov_b32 v8, v{O + 12}
        v_mov_b32 v9, v{O + 12}
        v_permlane32_swap_b32 v8, v9
        v_rcp_f32 v12, v9
        v_mul_f32 v12, v12, v{VGA}
        s_branch {self.name}_a_fin
        """)

    @staticmethod
    def slot(ks):
        k = ks % 13
        return ("A", k) if k < 6 else ("B", k - 6)

    def wd_dma(self, ks):
        reg, sl = self.slot(ks)
        return [f"s_add_u32 m0, s{S_RA if reg == 'A' else S_RB}, {sl * 2048}",
                f"s_add_u32 s0, s{S_WDO}, {ks * 16 * 896}",
                f"buffer_load_dwordx4 v{VDW0}, {sr(SRD_WD, 4)}, s0 offen lds",
                f"buffer_load_dwordx4 v{VDW1}, {sr(SRD_WD, 4)}, s0 offen offset:1024 lds"]

    def wo_dma(self, n):
        return [f"s_add_u32 m0, s{S_RB}, {n * 2048}",
                f"s_add_u32 s{S_T}, s{S_WOO}, {n * 16 * 896}",
                f"buffer_load_dwordx4 v{VDW0}, {sr(SRD_WO, 4)}, s{S_T} offen lds",
                f"buffer_load_dwordx4 v{VDW1}, {sr(SRD_WO, 4)}, s{S_T} offen offset:1024 lds"]

    def h_load(self, ks):
        b = HB + 8 * (ks % 10)
        return [f"s_add_u32 s{S_T}, s{S_HOFF}, {ks * 1024}",
                f"buffer_load_dwordx4 {vr(b, 4)}, v{VH0}, {sr(SRD_WS, 4)}, s{S_T} offen{LD}",
                f"buffer_load_dwordx4 {vr(b + 4, 4)}, v{VH1}, {sr(SRD_WS, 4)}, s{S_T} offen{LD}"]

    def gemm_start(self, e2):
        A = self.A
        tok = None
        for x in (e2[0] + e2[1] if e2 else sum([self.wd_dma(ks) for ks in range(6)], [])):
            tok = A(x)
        A("s_setprio 2")
        for ks in range(6, 6 + self.opt.get("gearly", 0)):
            for x in self.wd_dma(ks):
                A(x)
        self.precompute(A, 1)
        A.wait_tok(tok)

    def gemm_main(self):
        A = self.A
        toks = {}
        A.clear()
        first = 6 + self.opt.get("gearly", 0)
        for ks in range(6, first):
            for _ in range(2):
                A.nid += 1
                A.vm.append([A.nid, set()])
                toks[ks] = A.nid

        def issue(lst, key=None):
            for x in lst:
                t = A(x)
                if t and key is not None:
                    toks[key] = t

        def trr(ks):
            reg, sl = self.slot(ks)
            a = VAWA if reg == "A" else VAWB
            b = WBUF + 8 * (ks % 10)
            o = sl * 2048
            A.wait_tok(toks.get(ks))
            issue([f"ds_read_b64_tr_b16 {vr(b, 2)}, v{a} offset:{o}",
                   f"ds_read_b64_tr_b16 {vr(b + 2, 2)}, v{a} offset:{o + 1024}",
                   f"ds_read_b64_tr_b16 {vr(b + 4, 2)}, v{a + 1} offset:{o}",
                   f"ds_read_b64_tr_b16 {vr(b + 6, 2)}, v{a + 1} offset:{o + 1024}"], ("r", ks))

        def dma(ks):
            if ks >= 13:
                A.wait_tok(toks[("r", ks - 13)])
            issue(self.wd_dma(ks), ks)

        def mm(ks):
            for jj in range(4):
                A(mfma(ACC + 16 * jj, WBUF + 8 * (ks % 10) + 4 * (jj & 1), HB + 8 * (ks % 10) + 4 * (jj >> 1),
                       "0" if ks == 0 else None))

        A(f"""
        ds_write_b32 v{VHW}, v{VHW}
        v_xor_b32 v5, 64, v{VTR}
        v_add_u32 v{VAWA}, s{S_RA}, v{VTR}
        v_add_u32 v{VAWA + 1}, s{S_RA}, v5
        v_and_b32 v13, 7, v0
        v_lshlrev_b32 v13, 8, v13
        v_add_u32 v13, {M_HW}, v13
        """)
        for ks in range(6):
            trr(ks)
        A(f"""
        v_mov_b32 v{GL16}, v{VL16}
        v_add_u32 v{VAWB}, s{S_RB}, v{VTR}
        v_add_u32 v{VAWB + 1}, s{S_RB}, v5
        s_lshr_b32 s{S_T}, s{S_GW}, 1
        s_mul_i32 s{S_T}, s{S_T}, 114688
        v_add_u32 v{VH0}, s{S_T}, v{GL16}
        s_sub_u32 s{S_T}, 114688, s{S_T}
        v_add_u32 v{VH1}, s{S_T}, v{GL16}
        """)
        self.sync_addresses(M_GS, GSW, GSR)
        load = "ds_read_b32 v6, v13"
        tk = A(load)
        self.check_words(load, "v_cmp_eq_u32 vcc, 0, v6", tk, nap=1)
        self.one_lane_store(2, S_F1, wave=4)
        self.stamp(A, "g_hw")
        A(f"s_cmp_ge_u32 s{S_NB}, 7")
        A(f"s_cbranch_scc1 {self.name}_exit")
        A(f"""
        v_and_b32 v5, 31, v0
        v_lshlrev_b32 v5, 2, v5
        buffer_load_dword v{VG}, v5, {sr(SRD_WS, 4)}, s{S_GOFF} offen{LD}
        """)
        deep = self.opt.get("gdeep", 3)
        for ks in range(first, 23):
            if 6 <= ks - 7 < 10:
                trr(ks - 7)
            A.wait_tok(toks.get(ks - deep))
            dma(ks)
        self.stamp(A, "g_dma")
        tok = self.masked("15", POLL)
        self.check_words(POLL, "v_cmp_ne_u32 vcc, 2, v6", tok, mask="15", nap=2)
        self.stamp(A, "g_flags")
        self.stamp(A, "rt_gflags")
        A("s_setprio 0")
        nh = self.opt.get("nh", 3)
        for ks in range(nh):
            issue(self.h_load(ks))
        ramp = 28 - NDEF - (10 - nh)
        for ks in range(28 - NDEF):
            mm(ks)
            for _ in range(2 if ks >= ramp else 1):
                if nh < 28:
                    assert nh - 10 <= ks
                    issue(self.h_load(nh))
                    nh += 1
            trr(ks + 10)
            if 1 <= ks <= 5:
                dma(ks + 22)
        assert nh == 28
        A.wait_tok(toks[("r", 25)])
        for n in range(7):
            issue(self.wo_dma(n))
        A(f"v_add_u32 v9, s{S_RA}, v{GL16}")
        A(f"v_subrev_u32 v13, {M_GS - M_AS}, v{GSR}")
        A(f"v_sub_f32 v{VG}, 1.0, v{VG}")
        A("s_waitcnt lgkmcnt(0)")
        for jj in range(1, 4):
            A(f"""
            s_xor_b32 s{S_T}, s{S_GW}, {jj}
            s_mul_i32 s{S_T}, s{S_T}, 12288
            s_add_u32 s{S_T}, s{S_T}, {L_RING + 4096 * (jj - 1)}
            v_add_u32 v{VAWA + jj - 1}, s{S_T}, v{GL16}
            """)
        self.tail_setup(1)
        self.stamp(A, "g_pre")
        self.stamp(A, "rt_gpre")
        load = "ds_read_b32 v6, v13"
        tk = A(load)
        self.check_words(load, "v_cmp_eq_u32 vcc, 0, v6", tk, nap=2)
        wr = []
        for jj in (1, 2, 3, 0):
            for n, ks in enumerate(range(28 - NDEF, 28)):
                A(mfma(ACC + 16 * jj, WBUF + 8 * (ks % 10) + 4 * (jj & 1), HB + 8 * (ks % 10) + 4 * (jj >> 1)))
                if n >= 2 and wr:
                    A(wr.pop(0))
            assert not wr
            wr = [f"ds_write_b128 v9, {vr(ACC + 16 * jj + 4 * q, 4)} offset:{4096 * (jj - 1) + 1024 * q}" for q in range(4)]
            if jj == 3:
                wr.append(f"ds_write_b32 v{GSW}, v{GSW}")
        self.stamp(A, "g_loop")
        self.stamp(A, "rt_gloop")
        load = f"ds_read_b32 v6, v{GSR}"
        self.check_words(load, "v_cmp_eq_u32 vcc, 0, v6", A(load))
        for q in range(4):
            for jj in range(1, 4):
                A(f"ds_read_b128 {vr(ACC + 16 * jj + 4 * q, 4)}, v{VAWA + jj - 1} offset:{1024 * q}")
        for q in range(4):
            r0 = (4 * q, 4 * q + 2)
            for r in r0:
                A(f"v_pk_add_f32 {vr(ACC + 16 + r, 2)}, {vr(ACC + 16 + r, 2)}, {vr(ACC + 32 + r, 2)}")
            for r in r0:
                A(f"v_pk_add_f32 {vr(ACC + r, 2)}, {vr(ACC + r, 2)}, {vr(ACC + 48 + r, 2)}")
            for r in r0:
                A(f"v_pk_add_f32 {vr(ACC + r, 2)}, {vr(ACC + r, 2)}, {vr(ACC + 16 + r, 2)}")
            for r in r0:
                A(f"v_pk_mul_f32 {vr(ACC + r, 2)}, {vr(ACC + r, 2)}, {vr(VG, 2)} op_sel_hi:[1,0]")

    def tail_setup(self, role):
        A = self.A
        A(f"""
        s_lshl_b32 s{S_T}, s{S_MB}, 5
        s_add_u32 s{S_T}, s{S_T}, s{S_GW}
        s_lshl_b32 s{S_MO}, s{S_T}, 7
        s_add_u32 s{S_MO}, s{S_MO}, {FLAG_O + role * 2048}
        v_lshlrev_b32 v5, 9, v0
        s_lshl_b32 s{S_T3}, s{S_T}, 11
        s_add_u32 s{S_T3}, s{S_T3}, {WS_O + role * 32768}
        s_lshl_b32 s{S_T2}, s{S_GW}, 11
        """)
        if role == 1:
            srd(A, SRD_OUT, P_OUT, S * D * 2)
            A(f"""
            s_lshr_b32 s{S_T}, s{S_GW}, 1
            s_lshl_b32 s{S_OFF}, s{S_T}, 15
            s_add_u32 s{S_OFF}, s{S_OFF}, {L_O}
            v_add_u32 v14, s{S_OFF}, v{GL16}
            s_mul_i32 s{S_T}, s{S_GW}, 2560
            s_add_u32 s{S_T}, s{S_T}, {L_TR}
            v_and_b32 v7, 31, v0
            v_mul_u32_u24 v7, 80, v7
            v_lshrrev_b32 v8, 5, v0
            v_lshl_add_u32 v7, v8, 5, v7
            v_add_u32 v7, s{S_T}, v7
            v_lshrrev_b32 v4, 2, v0
            v_and_b32 v12, 3, v0
            v_lshlrev_b32 v12, 4, v12
            v_mul_u32_u24 v8, 80, v4
            v_add_u32 v8, v8, v12
            v_add_u32 v8, s{S_T}, v8
            v_mul_u32_u24 v4, 896, v4
            v_add_u32 v10, v4, v12
            s_add_u32 s{S_OFF}, s{S_OUTO}, {16 * 896}
            """)

    def tail(self, role):
        A = self.A
        L16 = GL16 if role else VL16
        load = f"buffer_load_dword v6, v5, {sr(SRD_WS, 4)}, s{S_MO} offen sc1"
        if role == 1:
            A("s_waitcnt vmcnt(0)")
        tok = self.masked("15", load)
        A.wait(lg=0)
        self.stamp(A, "t_bar0")
        A("s_barrier")
        self.stamp(A, "t_bar1")
        self.check_words(load, "v_cmp_ne_u32 vcc, 1, v6", tok, mask="15")
        self.stamp(A, "t_flag")
        self.stamp(A, "rt_tflag")
        toks = []
        for step in range(4):
            A(f"s_add_u32 m0, s{S_T2}, {L_O + role * 32768 + step * 8192}")
            A(f"s_add_u32 s{S_T}, s{S_T3}, {step * 8192}")
            for q in range(2):
                t = A(f"buffer_load_dwordx4 v{L16}, {sr(SRD_WS, 4)}, s{S_T} offen offset:{1024 * q} sc1 lds")
            toks.append(t)
        A.wait_tok(toks[0])
        A("s_barrier")
        self.stamp(A, "t_odata")
        self.stamp(A, "rt_odata")
        if role == 0:
            for step in range(1, 4):
                A.wait_tok(toks[step])
                A("s_barrier")
            return

        def rd(k):
            o = (28 * (k >> 1) + 16 * (k & 1)) * 128
            b = k % 4
            return [f"ds_read_b128 {vr(TB_ + 4 * b, 4)}, v14 offset:{k * 1024}",
                    f"ds_read_b64_tr_b16 {vr(TA_ + 4 * b, 2)}, v{VTR} offset:{o}",
                    f"ds_read_b64_tr_b16 {vr(TA_ + 4 * b + 2, 2)}, v{VTR} offset:{o + 1024}"]

        for k in range(3):
            for x in rd(k):
                A(x)
        for k in range(32):
            A(mfma(ACC, TA_ + 4 * (k % 4), TB_ + 4 * (k % 4)))
            if k + 3 < 32:
                if (k + 3) % 8 == 0:
                    A.wait_tok(toks[(k + 3) // 8])
                    A("s_barrier")
                for x in rd(k + 3):
                    A(x)
        self.stamp(A, "t_mm")
        for hf in range(2):
            for jj in range(4):
                A(f"v_cvt_pk_bf16_f32 v{TA_ + 4 * hf + jj}, v{ACC + 8 * hf + 2 * jj}, v{ACC + 8 * hf + 2 * jj + 1}")
            A(f"ds_write_b128 v7, {vr(TA_ + 4 * hf, 4)} offset:{16 * hf}")
        for q in range(2):
            A(f"ds_read_b128 {vr(TB_ + 4 * q, 4)}, v8 offset:{16 * 80 * q}")
        for q in range(2):
            A(f"buffer_store_dwordx4 {vr(TB_ + 4 * q, 4)}, v10, {sr(SRD_OUT, 4)}, s{S_OFF if q else S_OUTO} offen{self.opt.get('ost', 0) * ' sc1'}")

    def finish(self):
        A = self.A
        if self.opt.get("pad_end"):
            A("s_waitcnt vmcnt(0)")
            self.pad("end")
        if self.stamp.enabled:
            A("s_waitcnt vmcnt(0)")
            self.stamp(A, "t_end")
            self.stamp(A, "rt_end")
            self.stamp.flush(A)
        A("s_endpgm")

    def build(self):
        A, name = self.A, self.name
        A(f".globl {name}\n.p2align 8\n.type {name},@function\n{name}:")
        A("s_cmp_ge_u32 s2, 256")
        A(f"s_cbranch_scc1 {name}_exit")
        if any(k.startswith("pad_") for k in self.opt):
            A("s_memrealtime s[96:97]")
        self.stamp(A, "rt0")
        self.stamp(A, "t0")
        p1.decode(A)
        A(f"s_cmp_ge_u32 s{p1.S_CG}, 14")
        A(f"s_cbranch_scc1 {name}_q")
        st0 = A.save()
        p1.programs(A, "KV", ST + self.opt.get("ntkv", 0) * " nt", self.hooks(True), self.opt)
        A.restore(st0)
        A(f"{name}_q:")
        p1.programs(A, "Q", ST + self.opt.get("ntq", 0) * " nt", self.hooks(False), self.opt)
        if self.opt.get("p1exit") or self.opt.get("p2exit"):
            for f in self.late:
                A.clear()
                f(A)
            A(f"{name}_exit:")
            A("s_endpgm")
            pads = A.fix_hazards()
            return A.text(), kernel_desc(name), pads
        e2 = p1.final_epilogue(ST + self.opt.get("ntkv", 0) * " nt")
        A.clear()
        self.target(A, f"{name}_a_plain")
        for x in sum(sum(self.setup_units(), []), []):
            A(x)
        A(f"s_branch {name}_a_poll")
        self.target(A, f"{name}_a_late")
        for x in e2[0] + e2[1]:
            A(x)
        self.target(A, f"{name}_a_poll", inline=True)
        tok = self.masked(POLLMASK, POLL)
        self.check_words(POLL, "v_cmp_eq_u32 vcc, 0, v6", tok, mask=POLLMASK)
        self.stamp(A, "a_flags")
        self.stamp(A, "rt_aflags")
        A(f"s_mov_b32 s{S_OFF}, 0")
        for x in sum(self.first_loads(), []):
            A(x)
        A(f"ds_write_b32 v{VHW}, v{VHW}")
        A(f"s_branch {name}_a_go")
        plain = A.save()
        A.clear()
        self.target(A, f"{name}_a_e2")
        self.masked(POLLMASK, "v_cmp_eq_u32 vcc, 0, v6")
        A(f"s_cbranch_vccnz {name}_a_late")
        self.stamp(A, "a_flags")
        self.stamp(A, "rt_aflags")
        A(f"s_mov_b32 s{S_OFF}, 0")
        work = e2[0][:-2] + e2[1][:-2]
        fl = self.first_loads()
        step = self.opt.get("lstep", 9)
        for k, x in enumerate(work):
            if k % step == 0 and fl:
                for y in fl.pop(0):
                    A(y)
            A(x)
        assert not fl
        for x in e2[0][-2:] + e2[1][-2:]:
            A(x)
        self.stamp(A, "a_e2b")
        assert [x for x in A.state()[0] if x] == [tuple(sorted(e[1])) for e in plain[0]]
        A.restore(plain)
        A.lg = []
        self.target(A, f"{name}_a_go", inline=True)
        A(f"s_mov_b32 s{S_LO}, {f32(2.0 ** -30)}")
        A(f"v_mov_b32 v{VHI}, {f32(2.0 ** 30)}")
        self.mask_q(0)
        A(self.qk(0, 0))
        A(self.qk(0, 1))
        A("s_setprio 1")
        self.stamp(A, "a_first")
        self.stamp(A, "rt_afirst")
        self.attn_main()
        self.attn_finish()
        self.stamp(A, "a_pub")
        self.stamp(A, "rt_pub")
        A(f"s_cmp_ge_u32 s{S_NB}, 7")
        A(f"s_cbranch_scc1 {name}_a_done")
        self.tail(0)
        A(f"{name}_a_done:")
        self.finish()
        A.clear()
        self.target(A, f"{name}_g_plain")
        self.gemm_start(None)
        A(f"s_branch {name}_g_go")
        A.clear()
        self.target(A, f"{name}_g_e2")
        self.gemm_start(e2)
        self.target(A, f"{name}_g_go", inline=True)
        self.gemm_main()
        self.tail(1)
        self.finish()
        self.slow_path()
        k = 0
        while k < len(self.late):
            A.clear()
            self.late[k](A)
            k += 1
        A(f"{name}_exit:")
        A("s_endpgm")
        pads = A.fix_hazards()
        return A.text(), kernel_desc(name), pads


HEADER = open("gated_mix__mha_block__glu_gated_geglu__prompt.s.ref").read().split("; Override")[0]


def main():
    diag = "diag" in sys.argv
    name = "gated_mix__mha_block__glu_gated_geglu__prompt_kernel"
    sets = {"diag": "rt0 t0 p1_pass2 a_flags a_first a_loop a_pub t_flag t_end rt_end g_hw g_dma g_flags g_pre g_loop",
            "diagt": "rt0 t0 a_first a_loop a_sync a_st a_pub t_bar0 t_bar1 t_flag t_odata t_mm t_end g_loop rt_end",
            "diagp": "rt0 t0 p1_pass1 p2_4 p2_8 p2_16 p1_pass2 a_flags a_first a_loop t_end rt_end",
            "diagb": "rt0 t0 b2_pre b2_vm b2_post b3_pre b3_vm t_end rt_end",
            "diagc": "rt0 t0 b5_pre b5_vm b5_post b7_pre b7_vm t_end rt_end",
            "diagd": "rt0 t0 p2_4 c7_pre c7_vm c7_post p2_8 t_end rt_end",
            "diage": "rt0 t0 c9_pre c9_vm c9_post c15_pre c15_vm t_end rt_end",
            "diagr": "rt0 t0 p1_first p1_pass1 rt_first rt_pass1 t_end rt_end",
            "diagz": "rt0 rt_end",
            "diagrt": "rt0 rt_first rt_pass1 rt_pubq rt_pass2 rt_aflags rt_afirst rt_loop rt_pub rt_tflag rt_odata rt_end rt_gflags rt_gpre",
            "diags": "rt0 t0 p1_pass1 p1_pass2 rt_pass1 rt_pass2 p2_8 t_end rt_end",
            "diaga": "rt0 t0 p1_pass2 a_flags a_e2b a_first a_t0 a_t4 a_t8 a_t16 t_end rt_end",
            "diagru": "rt0 rtkarg rtdma0 rtpro rtvm0 rt_first rtb1 rt_end",
            "diagrv": "rt0 rtb1 rtb2 rtb3 rtb4 rtb5 rtb6 rt_end",
            "diagq": "rt0 t0 karg dma0 p1_first p1_pass1 p2_4 t_end rt_end"}
    which = [a for a in sys.argv if a in sets]
    diag = bool(which)
    st = Stamps(diag, sets[which[0]].split() if diag else None)
    opt = {a.split("=")[0]: int(a.split("=")[1]) for a in sys.argv[1:] if "=" in a}
    g = Gen(name, st, opt)
    code, kd, pads = g.build()
    print(HEADER.rstrip())
    print("; @launch grid=(256,1,1) block=(512,1,1) lds=163840")
    if diag:
        print("; stamps: " + " ".join(st.only))
    print('.amdgcn_target "amdgcn-amd-amdhsa--gfx950"\n.text')
    print(code)
    print('.section .rodata,"a"\n.p2align 6')
    print(kd)


if __name__ == "__main__":
    main()
```

```python
from common import *

XF, ACC1, ACC2, WB = 144, 16, 64, 96
VDX0, VDX1, VDP, VDG, VDU = 120, 121, 122, 123, 124
VAX, VAP, VAG, VAGX, VL16, VSTV, VNC1 = 125, 129, 130, 132, 134, 135, 15
PK = 136
SRD_X, SRD_P, SRD_G, SRD_U, SRD_GW = 32, 36, 40, 44, 48
S_RB, S_CG, S_XO, S_PO, S_GO, S_W1K, S_W2K, S_T, S_RT, S_C, S_ST1, S_STH, S_T2, S_QS = range(52, 66)
S_ACT = 0
LX, LP, LQ = 0, 65536, 98304


SX = None


def decode(A):
    load_args(A, {SRD_X: 0, SRD_P: 8, SRD_G: 32, SRD_U: 40, SRD_GW: 56, SRD_WS: 80})
    A(f"""
    v_lshrrev_b32 v1, 6, v0
    v_and_b32 v0, 63, v0
    v_readfirstlane_b32 s{S_WAVE}, v1
    """)
    if SX is None:
        A(f"""
        s_bfe_u32 s{S_T}, s2, 0x20001
        s_lshl_b32 s{S_T}, s{S_T}, 2
        s_lshr_b32 s{S_CG}, s2, 6
        s_add_u32 s{S_CG}, s{S_CG}, s{S_T}
        """)
    else:
        A(f"""
        s_add_u32 s{S_T}, s2, {7 - SX}
        s_and_b32 s{S_T}, s{S_T}, 7
        s_lshl_b32 s{S_T}, s{S_T}, 1
        s_lshr_b32 s{S_CG}, s2, 7
        s_add_u32 s{S_CG}, s{S_CG}, s{S_T}
        """)


def x_addresses(A):
    if SX is None:
        A(f"""
        s_and_b32 s{S_T}, s2, 1
        s_lshl_b32 s{S_T}, s{S_T}, 3
        s_bfe_u32 s{S_RB}, s2, 0x30003
        s_add_u32 s{S_RB}, s{S_RB}, s{S_T}
        """)
    else:
        A(f"s_bfe_u32 s{S_RB}, s2, 0x40003")
    A(f"""
    v_lshrrev_b32 v2, 3, v0
    v_and_b32 v3, 7, v0
    v_lshrrev_b32 v5, 4, v0
    s_lshl_b32 s{S_T}, s{S_WAVE}, 4
    v_add_u32 v6, s{S_T}, v2
    v_mul_u32_u24 v6, 896, v6
    v_xor_b32 v7, v3, v5
    v_lshl_add_u32 v{VDX0}, v7, 4, v6
    v_xor_b32 v7, 4, v7
    v_lshl_add_u32 v{VDX1}, v7, 4, v6
    v_add_u32 v{VDX1}, {8 * 896 - 1024}, v{VDX1}
    s_mul_i32 s{S_XO}, s{S_RB}, {128 * 896}
    s_lshl_b32 s{S_W1K}, s{S_WAVE}, 10
    s_lshl_b32 s{S_W2K}, s{S_WAVE}, 11
    """)


def w_addresses(A, special):
    A(f"""
    v_and_b32 v4, 1, v5
    s_lshl_b32 s{S_T}, s{S_WAVE}, 3
    v_add_u32 v6, s{S_T}, v2
    v_lshlrev_b32 v7, 2, v4
    v_xor_b32 v7, v3, v7
    v_mul_u32_u24 v8, 2688, v6
    v_lshl_add_u32 v{VDP}, v7, 4, v8
    """)
    if not special:
        A(f"""
        v_lshlrev_b32 v7, 1, v4
        v_xor_b32 v7, v3, v7
        v_mul_u32_u24 v8, 3584, v6
        v_lshl_add_u32 v{VDG}, v7, 4, v8
        v_xor_b32 v{VDU}, 64, v{VDG}
        """)


def read_addresses(A):
    A(f"""
    v_and_b32 v2, 31, v0
    v_lshrrev_b32 v3, 5, v0
    s_lshl_b32 s{S_T}, s{S_RT}, 12
    v_lshl_add_u32 v4, v2, 7, s{S_T}
    v_bfe_u32 v5, v2, 1, 3
    v_xor_b32 v5, v5, v3
    """)
    for s in range(4):
        A(f"v_xor_b32 v6, {2 * s}, v5")
        A(f"v_lshl_add_u32 v{VAX + s}, v6, 4, v4")
    A(f"""
    v_and_b32 v2, 3, v0
    v_bfe_u32 v4, v0, 2, 2
    v_bfe_u32 v5, v0, 4, 1
    v_bfe_u32 v6, v0, 3, 1
    v_lshl_add_u32 v7, v3, 3, v4
    v_lshlrev_b32 v7, 7, v7
    s_lshl_b32 s{S_T}, s{S_C}, 3
    v_lshl_add_u32 v8, v5, 2, v2
    v_add_u32 v8, s{S_T}, v8
    v_lshlrev_b32 v9, 3, v6
    v_xor_b32 v8, v8, v9
    v_lshl_add_u32 v8, v8, 3, v7
    v_add_u32 v{VAP}, {LP}, v8
    """)


def gu_addresses(A, special):
    if special:
        A(f"""
        v_add_u32 v{VAG}, {LQ}, v8
        v_add_u32 v{VAG + 1}, {LQ + 8192}, v8
        v_mov_b32 v{VAGX}, v8
        v_add_u32 v{VAGX + 1}, 8192, v8
        """)
        return
    A(f"""
    v_add_u32 v8, s{S_T}, v2
    v_lshlrev_b32 v9, 2, v6
    v_xor_b32 v8, v8, v9
    v_lshlrev_b32 v9, 3, v5
    v_xor_b32 v8, v8, v9
    v_lshl_add_u32 v7, v5, 13, v7
    v_lshl_add_u32 v{VAGX}, v8, 3, v7
    v_xor_b32 v8, 4, v8
    v_lshl_add_u32 v{VAGX + 1}, v8, 3, v7
    v_add_u32 v{VAG}, {LQ}, v{VAGX}
    v_add_u32 v{VAG + 1}, {LQ}, v{VAGX + 1}
    v_mov_b32 v{VNC1}, {f32(-GELU_C1)}
    """)


def dma(m0base, m0s, voff, srd_, sbase, soff, imm=0, setm0=True):
    out = []
    if setm0:
        out.append(f"s_add_u32 m0, s{m0s}, {m0base}")
    out.append(f"s_add_u32 s{S_T2}, s{sbase}, {soff}")
    out.append(f"buffer_load_dwordx4 v{voff}, {sr(srd_, 4)}, s{S_T2} offen{' offset:%d' % imm if imm else ''} lds")
    return out


def stage_dma(stage, special, up=0):
    sl = stage % 4
    g = []
    g.append(dma(LX + sl * 16384 + up * 8192, S_W2K, VDX0, SRD_X, S_XO, stage * 128 + up * 64 * 896) +
             [f"buffer_load_dwordx4 v{VDX1}, {sr(SRD_X, 4)}, s{S_T2} offen offset:1024 lds"])
    k0 = stage * 64 + up * 32
    g.append(dma(LP + sl * 8192 + up * 4096, S_W1K, VDP, SRD_P, S_PO, k0 * 2688))
    q = LQ + sl * 16384 + up * 4096
    if special:
        g.append(dma(q, S_W1K, VDP, SRD_P, S_PO, k0 * 2688 + 128))
    else:
        g.append(dma(q, S_W1K, VDG, SRD_G, S_GO, k0 * 3584))
        g.append(dma(q + 8192, S_W1K, VDU, SRD_U, S_GO, k0 * 3584))
    return g


P2LOC = {0: (LX, 3), 1: (LQ, 3), 2: (LX, 0), 3: (LQ, 0), 4: (LX, 1), 5: (LQ, 1), 6: (LX, 2)}


def p2_dma(ch, special, up=0):
    reg, sl = P2LOC[ch]
    base = reg + sl * 16384 + up * 4096
    k0 = ch * 64 + up * 32
    if special:
        return [dma(base, S_W1K, VDP, SRD_P, S_PO, k0 * 2688 + 256),
                dma(base + 8192, S_W1K, VDP, SRD_P, S_GO, k0 * 2688)]
    return [dma(base, S_W1K, VDG, SRD_G, S_GO, k0 * 3584 + 128),
            dma(base + 8192, S_W1K, VDU, SRD_U, S_GO, k0 * 3584 + 128)]


def tr_reads(dst, addr, off):
    return [f"ds_read_b64_tr_b16 {vr(dst, 2)}, v{addr} offset:{off}",
            f"ds_read_b64_tr_b16 {vr(dst + 2, 2)}, v{addr} offset:{off + 512}"]


LA1, LA2 = 1, 1


def wb1(t):
    return WB + 12 * (t & 1) if LA1 == 1 else (WB + 12, ACC2, WB)[t % 3]


def reads1(t):
    ch, s = divmod(t, 4)
    sl = ch % 4
    b = wb1(t)
    return ([f"ds_read_b128 {vr(XF + 4 * t, 4)}, v{VAX + s} offset:{LX + sl * 16384}"] +
            tr_reads(b, VAP, sl * 8192 + s * 2048),
            tr_reads(b + 4, VAG, sl * 16384 + s * 2048),
            tr_reads(b + 8, VAG + 1, sl * 16384 + s * 2048))


def wb2(t, ntile):
    if ntile == 1:
        return WB + 4 * (t % 6)
    return WB + 12 * (t & 1) if LA2 == 1 else WB + 8 * (t % 3)


def reads2(t, ntile, img=0):
    if ntile == 1:
        ch, s = divmod(t % 28, 4)
        reg, sl = P2LOC[ch]
        return [tr_reads(wb2(t, 1), (VAGX if reg == LX else VAG) + t // 28, sl * 16384 + s * 2048)]
    ch, s = divmod(t, 4)
    reg, sl = P2LOC[ch]
    a = VAGX if reg == LX else VAG
    b = wb2(t, ntile)
    return [tr_reads(b + 4 * e, a + e, sl * 16384 + s * 2048) for e in range(ntile)]


def epi_gu(acc, pk, soff_expr, st):
    o = []
    T = [1, 2, 3, 4]
    for half in range(2):
        g = [acc + 4 * half + i for i in range(4)]
        u = [acc + 8 + 4 * half + i for i in range(4)]
        o += [f"v_mul_f32 v{T[i]}, v{g[i]}, v{g[i]}" for i in range(4)]
        o += [f"v_fmamk_f32 v{T[i]}, v{T[i]}, {f32(-GELU_C1 * GELU_C2)}, v{VNC1}" for i in range(4)]
        o += [f"v_mul_f32 v{T[i]}, v{T[i]}, v{g[i]}" for i in range(4)]
        o += [f"v_exp_f32 v{T[i]}, v{T[i]}" for i in range(4)]
        o += [f"v_mul_f32 v{u[i]}, v{g[i]}, v{u[i]}" for i in range(4)]
        o += [f"v_add_f32 v{T[i]}, 1.0, v{T[i]}" for i in range(4)]
        o += [f"v_rcp_f32 v{T[i]}, v{T[i]}" for i in range(4)]
        o += [f"v_mul_f32 v{u[i]}, v{u[i]}, v{T[i]}" for i in range(4)]
        o += [f"v_cvt_pk_bf16_f32 v{pk + 2 * half + i}, v{u[2 * i]}, v{u[2 * i + 1]}" for i in range(2)]
    o.append(f"s_add_u32 s{S_T}, s{S_STH}, {soff_expr}")
    o.append(f"buffer_store_dwordx4 {vr(pk, 4)}, v{VL16}, {sr(SRD_WS, 4)}, s{S_T} offen{st}")
    return o


def epi_qk(acc, scale, soff, st, base=None):
    o = []
    if scale:
        o += [f"v_mul_f32 v{acc + r}, s{S_QS}, v{acc + r}" for r in range(16)]
    o += [f"v_cvt_pk_bf16_f32 v{PK + j}, v{acc + 2 * j}, v{acc + 2 * j + 1}" for j in range(8)]
    o.append(f"s_add_u32 s{S_T}, s{base or S_ST1}, {soff}")
    for q in range(2):
        o.append(f"v_permlane32_swap_b32 v{PK + 4 * q}, v{PK + 4 * q + 2}")
        o.append(f"v_permlane32_swap_b32 v{PK + 4 * q + 1}, v{PK + 4 * q + 3}")
    for q in range(2):
        o.append(f"buffer_store_dwordx4 {vr(PK + 4 * q, 4)}, v{VL16}, {sr(SRD_WS, 4)}, s{S_T} offen offset:{1024 * q}{st}")
    return o


def epi_v(acc, st):
    o = [f"v_cvt_pk_bf16_f32 v{PK + j}, v{acc + 2 * j}, v{acc + 2 * j + 1}" for j in range(8)]
    o.append(f"s_add_u32 s{S_T}, s{S_ST1}, 14336")
    o.append(f"buffer_store_dwordx4 {vr(PK, 4)}, v{VSTV}, {sr(SRD_WS, 4)}, s{S_ST1} offen{st}")
    o.append(f"buffer_store_dwordx4 {vr(PK + 4, 4)}, v{VSTV}, {sr(SRD_WS, 4)}, s{S_T} offen{st}")
    return o


def final_epilogue(st):
    return epi_gu(ACC2, PK, 4096, st), epi_gu(ACC2 + 16, PK + 4, 5120, st)


def gate_loads(A):
    A(f"""
    s_lshl_b32 s10, s{S_RB}, 7
    s_lshl_b32 s11, s{S_CG}, 3
    s_add_u32 s10, s10, s11
    s_add_u32 s3, s10, s{S_WAVE}
    s_mul_i32 s10, s3, 896
    """)
    for r in range(136, 144, 2):
        A(f"v_mov_b64 {vr(r, 2)}, 0")
    A(f"""
    s_mov_b32 exec_hi, 0x00ffffff
    buffer_load_dwordx4 v[136:139], v{VL16}, {sr(SRD_X, 4)}, s10 offen
    buffer_load_dwordx4 v[140:143], v{VL16}, {sr(SRD_GW, 4)}, 0 offen
    s_mov_b64 exec, -1
    """)


def gate_compute(A, st):
    A("v_mov_b32 v1, 0")
    for i in range(4):
        A(f"v_dot2_f32_bf16 v1, v{136 + i}, v{140 + i}, v1")
    for m in ("row_shr:1 row_mask:0xf", "row_shr:2 row_mask:0xf", "row_shr:4 row_mask:0xf", "row_shr:8 row_mask:0xf",
              "row_bcast:15 row_mask:0xa", "row_bcast:31 row_mask:0xc"):
        A(f"v_add_f32_dpp v1, v1, v1 {m} bank_mask:0xf")
    A(f"""
    v_mul_f32 v1, {f32(-LOG2E)}, v1
    v_exp_f32 v1, v1
    s_lshl_b32 s3, s3, 2
    v_add_f32 v1, 1.0, v1
    v_rcp_f32 v1, v1
    s_add_u32 s3, s3, {WS_G}
    s_mov_b32 exec_lo, 0
    s_mov_b32 exec_hi, 0x80000000
    """)
    tok = A(f"buffer_store_dword v1, off, {sr(SRD_WS, 4)}, s3{st}")
    A("s_mov_b64 exec, -1")
    return tok


def programs(A, kinds, st, hooks, opt):
    global LA1, LA2
    LA1, LA2 = opt.get("la1", 2), opt.get("la2", 1)
    LA0, LA = opt.get("LA0", 2), opt.get("LA", 2)
    p2bars, pubbar, popstart = (7, 15), opt.get("pubbar", 9), opt.get("popstart", 4)
    dma_a = opt.get("dma_a", 1)
    stamp = hooks["stamp"]
    special = kinds == "Q"
    if special:
        dma_a = opt.get("dma_aq", 0)
    ntile2 = 1 if special else 2
    toks = {}

    def issue(groups, key):
        for g in groups:
            for x in g:
                t = A(x)
                if t:
                    toks[key] = t

    def groups_of(stg, up):
        if stg < 7:
            return stage_dma(stg, special, up)
        if stg > 10:
            return []
        c0 = 2 * (stg - 7)
        return p2_dma(c0, special, up) + (p2_dma(c0 + 1, special, up) if c0 < 6 else [])

    x_addresses(A)
    w_addresses(A, special)
    if special:
        A(f"s_and_b32 s{S_PO}, s{S_CG}, 1")
        A(f"s_lshl_b32 s{S_PO}, s{S_PO}, 9")
        A(f"s_mov_b32 s{S_GO}, 384")
    else:
        A(f"s_lshl_b32 s{S_PO}, s{S_CG}, 7")
        A(f"s_add_u32 s{S_PO}, s{S_PO}, 896")
        A(f"s_lshl_b32 s{S_GO}, s{S_CG}, 8")
    srd_tail(A, SRD_X, S * D * 2)
    srd_tail(A, SRD_P, D * 3 * D * 2)
    if not special:
        srd_tail(A, SRD_G, D * F * 2)
        srd_tail(A, SRD_U, D * F * 2)
    pfpos = opt.get("pfpos", 1)
    if pfpos == 2:
        hooks["prefetch"](A, 0)
    A.wait(lg=0)
    stamp(A, "karg")
    stamp(A, "rtkarg")
    split = opt.get("split0", 0) and LA1 == 2
    g0 = groups_of(0, 0)
    if split:
        late = hooks["label"]("late")
        issue(g0[:1], "x0")
        A(f"s_cmp_ge_u32 s{S_WAVE}, 4")
        A(f"s_cbranch_scc1 {late}")
        sv = A.save()
        issue(g0[1:], 0)
        A(f"{late}:")
        A.restore(sv)
    else:
        issue(g0, 0)
    stamp(A, "dma0")
    stamp(A, "rtdma0")
    srd_tail(A, SRD_GW, D * 2)
    srd_tail(A, SRD_WS, WS_BYTES)
    A(f"""
    v_lshlrev_b32 v{VL16}, 4, v0
    s_and_b32 s{S_RT}, s{S_WAVE}, 3
    s_lshr_b32 s{S_C}, s{S_WAVE}, 2
    s_cselect_b32 s{S_ROLE}, 1, 0
    """)
    hooks["entry"](A)
    for stg in range(1, LA0):
        A("s_barrier")
        if split:
            early = hooks["label"]("early")
            A(f"s_cmp_lt_u32 s{S_WAVE}, 4")
            A(f"s_cbranch_scc1 {early}")
            issue(g0[1:], 0)
            A(f"{early}:")
        if pfpos == 0:
            hooks["prefetch"](A, 0)
        issue(groups_of(stg, 0), stg)
        if pfpos == 1:
            hooks["prefetch"](A, 0)
    if opt.get("gatepos", 0) == 0:
        gate_loads(A)
    read_addresses(A)
    gu_addresses(A, special)
    labels = {(k, r): hooks["label"](f"{k}{r}_") for k in kinds for r in (0, 1)}
    hooks["prologue"](A, special, [labels[k] for k in labels][1:])

    def side_work(kind, role):
        A = Rec()
        S_T, S_T2 = 0, 1
        A(f"s_lshl_b32 s{S_T}, s{S_RB}, 2")
        A(f"s_add_u32 s{S_T}, s{S_T}, s{S_RT}")
        A(f"s_mul_i32 s{S_ST1}, s{S_T}, 28672")
        if special:
            A(f"s_add_u32 s{S_STH}, s{S_ST1}, {role << 11}")
            A(f"s_lshl_b32 s{S_T}, s{S_PO}, 5")
            A(f"s_add_u32 s{S_ST1}, s{S_STH}, s{S_T}")
            A(f"s_mov_b32 s{S_QS}, {f32(QSCALE)}")
        else:
            A(f"s_mul_i32 s{S_STH}, s{S_T}, 114688")
            A(f"s_lshl_b32 s{S_T}, s{S_CG}, 13")
            A(f"s_add_u32 s{S_STH}, s{S_STH}, s{S_T}")
            A(f"s_add_u32 s{S_STH}, s{S_STH}, {WS_H + (role << 11)}")
            if kind == "K":
                A(f"s_lshl_b32 s{S_T}, s{S_CG}, 12")
                A(f"s_add_u32 s{S_ST1}, s{S_ST1}, s{S_T}")
                A(f"s_add_u32 s{S_ST1}, s{S_ST1}, {WS_K + (role << 11)}")
            else:
                A(f"s_lshl_b32 s{S_T}, s{S_CG}, 10")
                A(f"s_add_u32 s{S_ST1}, s{S_ST1}, s{S_T}")
                A(f"s_add_u32 s{S_ST1}, s{S_ST1}, {WS_V - 7 * 1024 + (role << 9)}")
                A(f"v_lshrrev_b32 v{VSTV}, 5, v0")
                A(f"v_mul_u32_u24 v{VSTV}, {7168 - 512}, v{VSTV}")
                A(f"v_add_u32 v{VSTV}, v{VSTV}, v{VL16}")
        hooks["idle"](A, role)
        L, G = Rec(), Rec()
        gate_loads(L)
        gate_compute(G, st)
        return A.units, L.units, G.units

    def mm1(kind, t, i):
        b = wb1(t) + 4 * i
        c = "0" if t == 0 else None
        if kind == "V" and i == 0:
            return mfma(ACC1, XF + 4 * t, b, c)
        return mfma(ACC1 + 16 * i, b, XF + 4 * t, c)

    def mm2(t, i):
        return mfma(ACC2 + 16 * i, wb2(t, ntile2) + 4 * i, XF + 4 * t, "0" if t == 0 else None)

    stamp(A, "rtpro")
    if split:
        skip = hooks["label"]("skip")
        sv = A.save()
        A.wait_tok(toks["x0"])
        A(f"s_cmp_ge_u32 s{S_WAVE}, 4")
        A(f"s_cbranch_scc1 {skip}")
        A.wait_tok(toks[0])
        A(f"{skip}:")
        A.restore(sv)
    else:
        A.wait_tok(toks[0])
    stamp(A, "rtvm0")
    A("s_barrier")
    stamp(A, "p1_first")
    stamp(A, "rt_first")
    nt1 = 2 if special else 3
    for k in range(LA1):
        for r in reads1(k)[:nt1]:
            for x in r:
                A(x)
    if not special:
        v = hooks["label"]("isv")
        A(f"s_cmp_ge_u32 s{S_CG}, 7")
        A(f"s_cbranch_scc0 {v}")
        A(f"s_cmp_eq_u32 s{S_ROLE}, 0")
        A(f"s_cbranch_scc1 {labels['V', 0]}")
        A(f"s_branch {labels['V', 1]}")
        A(f"{v}:")
    A(f"s_cmp_eq_u32 s{S_ROLE}, 0")
    A(f"s_cbranch_scc0 {labels[kinds[0], 1]}")
    sv0, toks0 = A.save(), dict(toks)

    def stream(kind, role):
        pend = []

        def stage_groups(stg):
            if not dma_a:
                return [(g, stg) for g in groups_of(stg, 0)]
            if role:
                return []
            return [(g, stg) for pair in zip(groups_of(stg, 0), groups_of(stg, 1)) for g in pair]

        def pop(n=1):
            for _ in range(n):
                if pend:
                    g, key = pend.pop(0)
                    if opt.get("nodma"):
                        toks[key] = None
                    else:
                        issue([g], key)

        side, gload, gate = side_work(kind, role)
        half = len(side) // 3
        plan = [(gload, 4, 6), (side[:half], 7, 11), (gate, 12, 16), (side[half:], 17, 25)]
        if opt.get("gatepos", 0) == 0:
            plan = [(gate, 3, 7), (side, 8, 25)]

        def fill(t, k):
            hit = [p for p in plan if p[1] <= t <= p[2]]
            if opt.get("nofill") or not hit:
                return
            units, lo, hi = hit[0]
            n = 3 * (hi - lo + 1)
            pos = 3 * (t - lo) + k
            for u in units[len(units) * pos // n:len(units) * (pos + 1) // n]:
                for x in u:
                    tk = A(x)
                    if tk and "store" in x:
                        toks["gate"] = tk

        for k in range(LA0, LA + 1):
            pend += stage_groups(k)
        for t in range(28):
            if t + LA1 < 28:
                nxt = reads1(t + LA1)
            elif t < 27:
                nxt = [[], [], []]
            elif ntile2 == 1:
                nxt = [reads2(k, 1)[0] for k in range(3)]
            else:
                nxt = reads2(0, 2) + [sum(reads2(1, 2), []) if LA2 == 2 else []]
            bound = (t + LA1) % 4 == 0 if t < 25 else t == 27
            if split and t == 0:
                nxt = [[], [], []]
            if split and t == 1:
                nxt = [a_ + b_ for a_, b_ in zip(reads1(2), reads1(3))]
            if bound:
                A.wait(lg=0)
            A(mm1(kind, t, 0))
            if split and t == 1:
                A.wait_tok(toks[0])
                A("s_barrier")
            if bound:
                stg = (t + LA1) // 4
                assert not pend
                need = stg if stg < 7 else 7 + p2bars[0] // 8
                stamp(A, f"b{stg}_pre")
                A.wait_tok(toks.get(need), toks.get("gate") if stg == 6 else None)
                stamp(A, f"b{stg}_vm")
                if not opt.get("nobar"):
                    A("s_barrier")
                stamp(A, f"b{stg}_post")
                stamp(A, f"rtb{stg}")
                hooks["p1bar"](A, stg, role)
                todo = list(range(stg + LA, stg + LA + 1 if stg < 7 else 11))
                if special and LA == 2 and stg >= 6:
                    todo = [8, 9] if stg == 6 else [10]
                for k in todo:
                    pend += stage_groups(k)
            left = (3 - LA1 - t) % 4 + 1
            npop = -(-len(pend) // left) if t < 27 else len(pend) * special
            for i in range(3):
                if 0 < i < nt1:
                    A(mm1(kind, t, i))
                for x in (nxt[i] if i < nt1 or t == 27 else []):
                    A(x)
                pop((npop + (0, 2, 1)[i]) // 3)
                fill(t, i)
            if t == opt.get("pf2", 21):
                hooks["prefetch"](A, 1)
        stamp(A, "p1_pass1")
        stamp(A, "rt_pass1")
        if "p1exit" in hooks:
            hooks["p1exit"]()
            return
        if kind == "K":
            e1 = epi_qk(ACC1, False, 0, st)
        elif kind == "V":
            e1 = epi_v(ACC1, st)
        else:
            e1 = sum([epi_qk(ACC1 + 16 * k, True, WS_Q + 4096 * k, st) for k in range(2)], [])
        nq = len(e1)
        if not special:
            e1 = e1 + epi_gu(ACC1 + 16, PK, 0, st) + epi_gu(ACC1 + 32, PK + 4, 1024, st)

        if opt.get("nost"):
            e1 = [("s_nop 0" if x.startswith("buffer_store") else x) for x in e1]
        if opt.get("noe1"):
            e1 = e1[:nq]
        if opt.get("notrans"):
            e1 = [x.replace("v_exp_f32", "v_mov_b32").replace("v_rcp_f32", "v_mov_b32") for x in e1]

        def bar_token(k):
            return toks.get(7 + p2bars[k + 1] // 8 if k + 1 < len(p2bars) else 10)

        done = 0
        qtok = None
        la = LA2 if ntile2 == 2 else 3
        nslots = 27 * ntile2
        slot = 0
        for t in range(28):
            nxt = reads2(t + la, ntile2) if t + la < 28 or special else [[]] * ntile2
            bound = t + la - 1 in p2bars
            pub = not special and t == pubbar
            endbar = t == 27 and not special
            if endbar or (bound and not special):
                A.wait(lg=0)
            hooks["p2step"](A, t, role)
            for i in range(ntile2):
                A(mm2(t, i))
                if endbar and i == 0:
                    A("s_barrier")
                if (bound or pub) and i == 0:
                    assert not pub or done >= nq
                    stamp(A, f"c{t}_pre")
                    A.wait_tok(bar_token(p2bars.index(t + la - 1)) if bound else None, qtok if pub else None)
                    stamp(A, f"c{t}_vm")
                    A("s_barrier")
                    stamp(A, f"c{t}_post")
                    if pub:
                        hooks["qkv_done"](A, role)
                for x in nxt[i]:
                    A(x)
                if special:
                    pop(2 if t >= 2 else 0)
                elif t >= popstart and (dma_a or i == 0):
                    pop()
                upto = 0
                if t >= 1:
                    slot += 1
                    upto = min(len(e1), (len(e1) * slot * 27) // (nslots * 25))
                upto = max(upto, min(nq, 8 * (ntile2 * t + i + 1)))
                while done < upto:
                    tk = A(e1[done])
                    if tk and done < nq:
                        qtok = tk
                    done += 1
        assert done == len(e1) and not pend
        stamp(A, "p1_pass2")
        stamp(A, "rt_pass2")
        if "p2exit" in hooks:
            hooks["p2exit"]()
            return
        if not special:
            hooks["regular_end"](A, role)
            return
        e2 = epi_qk(ACC2, True, WS_Q + 8192, st)
        idle, fin = hooks["label"]("idle"), hooks["label"]("fin")
        A(f"s_bitcmp{1 - role}_b32 s{S_CG}, 0")
        A(f"s_cbranch_scc1 {idle}")
        sv = A.save()
        done = 0
        for t in range(28):
            A(mfma(ACC1, wb2(28 + t, 1), XF + 4 * t, "0" if t == 0 else None))
            for x in (reads2(28 + t + 3, 1)[0] if t + 3 < 28 else []):
                A(x)
            while t >= 1 and done < min(len(e2), 6 * t):
                A(e2[done])
                done += 1
        for x in epi_qk(ACC1, True, WS_Q + 12288, st, base=S_STH):
            A(x)
        A(f"s_branch {fin}")
        A(f"{idle}:")
        A.restore(sv)
        for x in e2:
            A(x)
        A(f"{fin}:")
        hooks["special_end"](A, role)

    for n, (kind, role) in enumerate(labels):
        if n:
            hooks["target"](A, labels[kind, role])
            A.restore(sv0)
            toks.clear()
            toks.update(toks0)
        stream(kind, role)
        assert "p1exit" in hooks or "p2exit" in hooks or (all(not e[1] for e in A.vm) and all(not e[1] for e in A.lg)), A.state()
```

```python
import sys
from common import *
import phase1 as p1

ST = " sc1"
LD = " sc1"

FLAG_S = WS_FLAG
FLAG_O = WS_FLAG + 0x8000
SPIN = 1 << 17

L_WO, L_RING, L_OP, L_MISC = 0, 57344, 106496, 155648
L_O = L_RING
L_TR = 131072
M_HW, M_AS, M_GS, M_MAX = L_MISC, L_MISC + 2048, L_MISC + 3072, L_MISC + 4096

S_F1, S_SPIN = 27, 3
S_HEAD, S_QB, S_MB, S_NB, S_GW = range(66, 71)
S_AG = 61
S_MO, S_T, S_T2, S_T3, S_OFF, S_CNT = 54, 56, 57, 58, 60, 61
SRD_DBG, SRD_OUT = 48, 48
SRD_K, SRD_V, S_Q, S_ME, S_OO, S_OF = 72, 76, 80, 84, 86, 87
SRD_WD, SRD_WO = 72, 76
S_RA, S_RB, S_WDO, S_WOO, S_HOFF, S_GOFF, S_OUTO = range(80, 87)

VL16 = p1.VL16
VPOLL, VHW = 12, 14
OA, SB, PB, VB, KB, QF = 16, 80, 112, 160, 192, 224
VV0, VGA, VONE, VM, VHI = 10, 11, 13, 1, 7
VMLO, VMHI, VGAD = 120, 121, 122
S_LO = 62
VK = [VL16, 144, 145, 146]
VV = [VV0] + list(range(147, 154))
VXA, VSW, VSR = 154, 158, 159
ACC, HB, WBUF = 16, 80, 160
GL16, GSW, GSR = 1, 2, 3
NDEF = 10
VDW0, VDW1, VTR = 9, 10, 11
VH0, VH1, VAWA, VAWB, VG = 242, 243, 244, 246, 248
VPW, VPR, VGATE, VOUT, VTP = 240, 250, 241, 253, 254
ACA, TB_, TA_ = 80, 96, 112
POLLMASK = "0x1ffff"
POLL = f"buffer_load_dword v6, v{VPOLL}, {sr(SRD_WS, 4)}, 0 offen sc1"


class Gen:
    def __init__(self, name, stamps, opt=None):
        self.A = Asm()
        self.name = name
        self.stamp = stamps
        self.opt = opt or {}
        self.late = []
        self.nlab = 0

    def pad(self, where):
        us = self.opt.get("pad_" + where)
        if not us:
            return
        A, L = self.A, self.lab("pad")
        A.auto = False
        A(f"{L}:")
        A("s_memrealtime s[98:99]")
        A._emit_raw("s_waitcnt lgkmcnt(0)")
        A("s_sub_u32 s98, s98, s96")
        A(f"s_cmp_lt_u32 s98, {us * 100}")
        A(f"s_cbranch_scc1 {L}")
        A.auto = True
        A.sm = set()

    def lab(self, s):
        self.nlab += 1
        return f"{self.name}_{s}{self.nlab}"

    def one_lane_store(self, value, soff, wave=None, tmp=5):
        A = self.A
        skip = None
        if wave is not None:
            skip = self.lab("skip")
            A(f"s_cmp_lg_u32 s{S_WAVE}, {wave}")
            A(f"s_cbranch_scc1 {skip}")
        A(f"v_mov_b32 v{tmp}, {value}")
        A("s_mov_b64 exec, 1")
        A.uncounted(f"buffer_store_dword v{tmp}, off, {sr(SRD_WS, 4)}, s{soff} sc1")
        A("s_mov_b64 exec, -1")
        if skip:
            A(f"{skip}:")

    def check_words(self, load, cmp_, tok, mask=None, nap=0):
        A = self.A
        ok, loop = self.lab("ok"), self.lab("again")
        A.wait_tok(tok)
        if mask:
            A(f"s_mov_b64 exec, {mask}")
        A(cmp_)
        A(f"s_cbranch_vccz {ok}")
        sv = A.save()
        A(f"s_mov_b32 s{S_SPIN}, {SPIN}")
        A(f"{loop}:")
        if nap:
            A(f"s_sleep {nap}")
        A(load)
        A("s_waitcnt vmcnt(0)" if load.startswith("buffer") else "s_waitcnt lgkmcnt(0)")
        A(cmp_)
        A(f"s_cbranch_vccz {ok}")
        A(f"s_sub_u32 s{S_SPIN}, s{S_SPIN}, 1")
        A(f"s_cbranch_scc0 {loop}")
        A.restore(sv)
        A(f"{ok}:")
        if mask:
            A("s_mov_b64 exec, -1")

    def target(self, A, label, inline=False):
        if not self.opt.get("warm", 0):
            A(f"{label}:")
            return
        if inline:
            A(f"s_branch {label}")
        A(".p2align 6")
        A(f"{label}_w:")
        A("s_setpc_b64 s[0:1]")
        A(f"{label}:")

    def warm(self, A, special, own):
        if not self.opt.get("warm", 0):
            return
        n = self.name
        t = own + ([f"{n}_a_plain", f"{n}_g_plain", f"{n}_a_poll", f"{n}_a_go", f"{n}_g_go"] if special else
                   [f"{n}_a_e2", f"{n}_g_e2", f"{n}_a_late", f"{n}_a_go"])
        for w, lab in enumerate(t):
            skip = self.lab("skip")
            A(f"s_cmp_lg_u32 s{S_WAVE}, {w}")
            A(f"s_cbranch_scc1 {skip}")
            A(f"s_call_b64 s[0:1], {lab}_w")
            A(f"{skip}:")

    def masked(self, mask, text):
        self.A(f"s_mov_b64 exec, {mask}")
        t = self.A(text)
        self.A("s_mov_b64 exec, -1")
        return t

    def hooks(self, early_poll):
        A = self.A
        st = {}

        def entry(A):
            self.code_prefetch(A)
            skip = self.lab("skip")
            A(f"""
            s_lshl_b32 s{S_F1}, s{p1.S_RB}, 4
            s_add_u32 s{S_F1}, s{S_F1}, s{p1.S_CG}
            s_lshl_b32 s{S_F1}, s{S_F1}, 7
            s_add_u32 s{S_F1}, s{S_F1}, {FLAG_S}
            s_cmp_lg_u32 s{S_WAVE}, 0
            s_cbranch_scc1 {skip}
            s_and_b32 s{p1.S_T}, s2, 7
            s_lshl_b32 s{p1.S_T}, s{p1.S_T}, 1
            s_lshr_b32 s{p1.S_T2}, s2, 7
            s_add_u32 s{p1.S_T}, s{p1.S_T}, s{p1.S_T2}
            s_bfe_u32 s{p1.S_T2}, s2, 0x40003
            s_lshl_b32 s{p1.S_T2}, s{p1.S_T2}, 6
            s_add_u32 s{p1.S_T}, s{p1.S_T}, s{p1.S_T2}
            s_lshl_b32 s{p1.S_T}, s{p1.S_T}, 7
            s_add_u32 s{p1.S_T}, s{p1.S_T}, {FLAG_O}
            v_mov_b32 v10, 0
            v_lshlrev_b32 v11, 11, v0
            s_mov_b64 exec, 15
            """)
            A.uncounted(f"buffer_store_dword v10, v11, {sr(SRD_WS, 4)}, s{p1.S_T} offen sc1")
            A("s_mov_b64 exec, 1")
            A.uncounted(f"buffer_store_dword v10, off, {sr(SRD_WS, 4)}, s{S_F1} sc1")
            A("s_mov_b64 exec, -1")
            A(f"{skip}:")

        def p1bar(A, stg, role):
            if stg == 1:
                self.pad("b1")

            if stg == 7:
                self.pad("p1")
            if stg != 6:
                return
            srd(A, SRD_DBG, P_DBG, 256)
            if role:
                return
            skip = self.lab("skip")
            A(f"""
            s_cmp_lg_u32 s{S_WAVE}, 0
            s_cbranch_scc1 {skip}
            s_and_b32 s3, s2, 3
            s_lshl_b32 s3, s3, 6
            v_mov_b32 v13, 1
            s_mov_b64 exec, 1
            """)
            A.uncounted(f"buffer_atomic_add v13, off, {sr(SRD_DBG, 4)}, s3 sc1")
            A("s_mov_b64 exec, -1")
            A(f"{skip}:")

        dbg_load = f"buffer_load_dword v7, v8, {sr(SRD_DBG, 4)}, 0 offen sc1"

        def clear_misc(A):
            A(f"""
            s_lshl_b32 s3, s{S_WAVE}, 9
            s_add_u32 s3, s3, {L_MISC}
            v_lshl_add_u32 v8, v0, 3, s3
            v_mov_b64 v[6:7], 0
            ds_write_b64 v8, v[6:7]
            """)

        def p2step(A, t, role):
            if t == 8:
                if early_poll:
                    clear_misc(A)
                A(f"""
                v_and_b32 v8, 3, v0
                v_lshlrev_b32 v8, 6, v8
                """)
                st["dbg"] = A(dbg_load)
            if t in (4, 8, 12, 16, 20, 24):
                self.stamp(A, f"p2_{t}")
            if t == 20:
                self.check_words(dbg_load, "v_cmp_gt_u32 vcc, 64, v7", st["dbg"])
            if early_poll and not role and t >= 4:
                early, consts = self.setup_units()
                units, lo, hi = (early, 4, 12) if t < 12 else (consts, 12, 28)
                for u in units[len(units) * (t - lo) // (hi - lo):len(units) * (t + 1 - lo) // (hi - lo)]:
                    for x in u:
                        A(x)
            if early_poll and role and t >= 16 and t % 2 == 0:
                for x in self.wd_dma((t - 16) // 2):
                    A(x)
            if t == self.opt.get('polls', 25) and early_poll and not role:
                st["poll"] = self.masked(POLLMASK, POLL)

        def qkv_done(A, role):
            if not role:
                self.one_lane_store(1, S_F1, wave=0)
                self.stamp(A, "rt_pubq")

        def regular_end(A, role):
            if self.opt.get("pad_p2"):
                self.pad("p2")
                if not role:
                    st["poll"] = self.masked(POLLMASK, POLL)
            if not role:
                A.wait_tok(st["poll"])
            A(f"s_branch {self.name}_{'g' if role else 'a'}_e2")

        def special_end(A, role):
            A("s_waitcnt vmcnt(0) lgkmcnt(0)")
            A("s_barrier")
            qkv_done(A, role)
            self.pad("p2")
            clear_misc(A)
            A("s_waitcnt lgkmcnt(0)")
            A("s_barrier")
            A(f"s_branch {self.name}_{'g' if role else 'a'}_plain")

        h = dict(stamp=self.stamp, label=self.lab, entry=entry, prologue=self.warm, target=self.target, prefetch=self.data_prefetch, p1bar=p1bar, p2step=p2step,
                 idle=lambda A, role: self.precompute_g0(A) if role else self.precompute(A, 0),
                 qkv_done=qkv_done, regular_end=regular_end, special_end=special_end)
        if self.opt.get("p1exit"):
            h["p1exit"] = self.finish
        if self.opt.get("p2exit"):
            h["p2exit"] = self.finish
        return h

    def data_prefetch(self, A, which):
        if not self.opt.get("pf", 3) >> which & 1:
            return
        A(f"""
        s_lshl_b32 s10, s2, 3
        s_add_u32 s10, s10, s{S_WAVE}
        s_lshl_b32 s11, s10, 7
        v_lshl_add_u32 v13, v0, 18, s11
        """)
        if which == 0:
            skip = self.opt.get("pfskip", 3)
            srd_tail(A, p1.SRD_G, D * F * 2)
            srd_tail(A, p1.SRD_U, D * F * 2)
            A(f"""
            s_mul_i32 s10, s10, 896
            v_lshl_add_u32 v15, v0, 7, s10
            s_mov_b32 s10, {skip * 64 * 3584}
            s_mov_b32 s11, {skip * 64 * 2688}
            s_mov_b64 exec, {(1 << (7 - skip)) - 1}
            buffer_load_dword v11, v15, {sr(p1.SRD_X, 4)}, 0 offen offset:{128 * skip}
            buffer_load_dword v11, v13, {sr(p1.SRD_P, 4)}, s11 offen
            s_mov_b64 exec, 0x7f
            buffer_load_dword v11, v13, {sr(p1.SRD_G, 4)}, s10 offen
            buffer_load_dword v11, v13, {sr(p1.SRD_U, 4)}, s10 offen
            s_mov_b64 exec, -1
            """)
        else:
            srd(A, 4, P_WD, F * D * 2)
            srd(A, 12, P_WO, D * D * 2)
            A(f"""
            s_mov_b64 exec, 0x7f
            buffer_load_dword v11, v13, s[4:7], 0 offen
            buffer_load_dword v11, v13, s[12:15], 0 offen
            s_mov_b64 exec, -1
            """)

    def code_prefetch(self, A):
        if not self.opt.get("cpf", 1):
            return
        here, skip = self.lab("pc"), self.lab("skip")
        A(f"""
        s_cmp_lg_u32 s{S_WAVE}, 7
        s_cbranch_scc1 {skip}
        s_getpc_b64 s[0:1]
        {here}:
        s_sub_u32 s0, s0, {here}-{self.name}
        s_subb_u32 s1, s1, 0
        s_lshr_b32 s{p1.S_T}, s2, 3
        s_lshl_b32 s{p1.S_T}, s{p1.S_T}, 11
        v_lshl_add_u32 v10, v0, 7, s{p1.S_T}
        v_min_u32 v10, {self.name}_exit-{self.name}, v10
        s_mov_b64 exec, 0xffff
        """)
        A.uncounted("global_load_dword v11, v10, s[0:1]")
        A("v_lshlrev_b32 v10, 7, v0")
        A.uncounted(f"buffer_load_dword v11, v10, {sr(p1.SRD_GW, 4)}, 0 offen")
        A("s_mov_b64 exec, -1")
        A(f"{skip}:")

    def precompute(self, A, role):
        T, T2 = 0, 1
        A(f"""
        s_and_b32 s{T}, s2, 7
        s_lshr_b32 s{T2}, s2, 3
        s_lshl_b32 s{S_HEAD}, s{T}, 1
        s_lshr_b32 s{S_QB}, s2, 7
        s_add_u32 s{S_HEAD}, s{S_HEAD}, s{S_QB}
        s_and_b32 s{S_QB}, s{T2}, 15
        s_and_b32 s{S_GW}, s{S_WAVE}, 3
        s_lshl_b32 s{T}, s{S_WAVE}, 8
        s_add_u32 s{T}, s{T}, {M_HW}
        v_lshl_add_u32 v{VHW}, v0, 2, s{T}
        """)
        if role == 0:
            self.out_tile(A)
            self.precompute_a(A)
        else:
            self.precompute_g(A)

    def out_tile(self, A):
        sg = self.opt.get("sg")
        if sg is None:
            A(f"""
            s_and_b32 s{S_MB}, s2, 7
            s_lshl_b32 s{S_MB}, s{S_MB}, 2
            s_bfe_u32 s{S_NB}, s2, 0x20003
            s_add_u32 s{S_MB}, s{S_MB}, s{S_NB}
            s_lshr_b32 s{S_NB}, s2, 5
            """)
            return
        A(f"""
        s_add_u32 s0, s2, {7 - sg}
        s_and_b32 s0, s0, 7
        s_lshl_b32 s0, s0, 5
        s_lshr_b32 s1, s2, 3
        s_add_u32 s0, s0, s1
        s_mul_i32 s{S_MB}, s0, 9363
        s_lshr_b32 s{S_MB}, s{S_MB}, 16
        s_mul_i32 s1, s{S_MB}, 7
        s_sub_u32 s{S_NB}, s0, s1
        s_cmp_ge_u32 s0, 224
        s_cselect_b32 s{S_NB}, 7, s{S_NB}
        s_min_u32 s{S_MB}, s{S_MB}, 31
        """)

    def precompute_a(self, A):
        T, T2 = 0, 1
        a0, a1 = S_Q, S_Q + 1
        A(f"""
        s_mul_i32 s{T}, s{S_HEAD}, 28
        s_add_u32 s{T2}, s{T}, 27
        s_lshr_b32 s{a0}, s{T}, 6
        s_lshr_b32 s{a1}, s{T2}, 6
        s_sub_u32 s{a1}, s{a1}, s{a0}
        v_and_b32 v5, 1, v0
        v_mul_u32_u24 v5, s{a1}, v5
        v_bfe_u32 v6, v0, 1, 1
        v_mad_u32_u24 v5, v6, 7, v5
        v_bfe_u32 v6, v0, 2, 2
        v_lshl_add_u32 v5, v6, 4, v5
        s_lshl_b32 s{a1}, s{S_GW}, 6
        s_add_u32 s{a1}, s{a1}, s{a0}
        v_add_u32 v5, s{a1}, v5
        s_lshl_b32 s{a1}, s{S_QB}, 4
        s_lshr_b32 s{T}, s{S_HEAD}, 3
        s_add_u32 s{T}, s{T}, s{a1}
        s_add_u32 s{T}, s{T}, 14
        v_writelane_b32 v5, s{T}, 16
        v_lshlrev_b32 v5, 7, v5
        v_add_u32 v{VPOLL}, {FLAG_S}, v5
        v_lshrrev_b32 v5, 5, v0
        v_mul_u32_u24 v5, {7168 - 512}, v5
        v_add_u32 v{VV0}, v5, v{VL16}
        s_mul_i32 s{S_OO}, s{S_HEAD}, 7
        s_lshr_b32 s{S_OO}, s{S_OO}, 1
        s_lshl_b32 s{S_OO}, s{S_OO}, 9
        s_mul_i32 s{T2}, s{S_GW}, {16 * 28672}
        s_add_u32 s{T}, s{T2}, s{S_OO}
        s_add_u32 s{T}, s{T}, {WS_K}
        """)
        srd(A, SRD_K, P_WS, 16 * 28672, add=f"s{T}")
        A(f"""
        s_mul_i32 s{T}, s{S_HEAD}, 448
        s_add_u32 s{T}, s{T}, s{T2}
        s_add_u32 s{T}, s{T}, {WS_V}
        """)
        srd(A, SRD_V, P_WS, 16 * 28672, add=f"s{T}")
        A(f"s_lshl_b32 s{T2}, s{S_QB}, 2")
        for j in range(4):
            A(f"""
            s_add_u32 s{T}, s{S_GW}, {j + 1}
            s_and_b32 s{T}, s{T}, 3
            s_add_u32 s{T}, s{T}, s{T2}
            s_mul_i32 s{T}, s{T}, 28672
            s_add_u32 s{S_Q + j}, s{T}, s{S_OO}
            """)
        A(f"""
        s_add_u32 s{T}, s{T2}, s{S_GW}
        s_lshl_b32 s{S_OFF}, s{T}, 7
        s_add_u32 s{S_AG}, s{S_OFF}, {WS_G}
        s_lshl_b32 s{T}, s{T}, 4
        s_add_u32 s{T}, s{T}, s{S_HEAD}
        s_lshl_b32 s{S_OO}, s{T}, 11
        s_add_u32 s{S_OO}, s{S_OO}, {WS_O}
        s_lshl_b32 s{S_OF}, s{T}, 7
        s_add_u32 s{S_OF}, s{S_OF}, {FLAG_O}
        s_mov_b32 s{S_ME}, 0x0fffffff
        s_mov_b32 s{S_ME + 1}, 0x0fffffff
        """)

    def precompute_g0(self, A):
        T = 0
        srd(A, SRD_WD, P_WD, F * D * 2)
        A(f"""
        v_lshrrev_b32 v5, 3, v0
        v_mul_u32_u24 v6, 896, v5
        v_lshrrev_b32 v5, 2, v0
        v_and_b32 v5, 4, v5
        v_and_b32 v7, 7, v0
        v_xor_b32 v5, v5, v7
        v_lshl_add_u32 v{VDW0}, v5, 4, v6
        v_add_u32 v{VDW1}, {7168 - 1024}, v{VDW0}
        s_and_b32 s{S_GW}, s{S_WAVE}, 3
        s_mul_i32 s{S_RB}, s{S_GW}, 14336
        s_mul_i32 s{S_RA}, s{S_GW}, 12288
        s_add_u32 s{S_RA}, s{S_RA}, {L_RING}
        """)
        self.out_tile(A)
        A(f"""
        s_lshl_b32 s{T}, s{S_NB}, 7
        s_mul_i32 s{S_WDO}, s{S_GW}, {448 * 896}
        s_add_u32 s{S_WDO}, s{S_WDO}, s{T}
        """)

    def precompute_g(self, A):
        T, T2 = 0, 1
        srd(A, SRD_WO, P_WO, D * D * 2)
        A(f"""
        s_lshl_b32 s{T}, s{S_NB}, 7
        s_mul_i32 s{S_WOO}, s{S_GW}, {112 * 896}
        s_add_u32 s{S_WOO}, s{S_WOO}, s{T}
        s_and_b32 s{T2}, s{S_GW}, 1
        s_lshl_b32 s{S_OUTO}, s{T2}, 6
        s_add_u32 s{S_OUTO}, s{S_OUTO}, s{T}
        s_lshl_b32 s{T2}, s{T2}, 3
        v_and_b32 v5, 1, v0
        v_lshlrev_b32 v5, 2, v5
        v_bfe_u32 v6, v0, 1, 1
        v_add_u32 v5, v5, v6
        v_bfe_u32 v6, v0, 4, 1
        v_lshl_add_u32 v5, v6, 1, v5
        v_and_b32 v6, 8, v0
        v_xor_b32 v5, v5, v6
        v_xor_b32 v5, s{T2}, v5
        v_lshrrev_b32 v6, 5, v0
        v_bfe_u32 v7, v0, 2, 2
        v_lshl_add_u32 v6, v6, 2, v7
        v_lshlrev_b32 v6, 7, v6
        v_lshl_add_u32 v{VTR}, v5, 3, v6
        s_lshr_b32 s{T}, s{S_GW}, 1
        s_lshl_b32 s{T2}, s{S_MB}, 1
        s_add_u32 s{T}, s{T}, s{T2}
        s_lshl_b32 s{S_GOFF}, s{T}, 7
        s_add_u32 s{S_GOFF}, s{S_GOFF}, {WS_G}
        s_mul_i32 s{T}, s{T}, {32 * 896}
        s_add_u32 s{S_OUTO}, s{S_OUTO}, s{T}
        s_mul_i32 s{S_HOFF}, s{S_MB}, {2 * 114688}
        s_mul_i32 s{T}, s{S_GW}, {28 * 1024}
        s_add_u32 s{S_HOFF}, s{S_HOFF}, s{T}
        s_add_u32 s{S_HOFF}, s{S_HOFF}, {WS_H}
        s_lshr_b32 s{T}, s{S_MB}, 1
        s_lshl_b32 s{T}, s{T}, 4
        s_mul_i32 s{T2}, s{S_GW}, 7
        s_lshr_b32 s{T2}, s{T2}, 1
        s_add_u32 s{T}, s{T}, s{T2}
        s_lshl_b32 s{T}, s{T}, 7
        s_add_u32 s{T}, s{T}, {FLAG_S}
        v_and_b32 v5, 3, v0
        v_lshl_add_u32 v{VPOLL}, v5, 7, s{T}
        """)

    def k_load(self, b):
        return [f"buffer_load_dwordx4 {vr(KB + 8 * b, 4)}, v{VK[b]}, {sr(SRD_K, 4)}, s{S_OFF} offen{LD}",
                f"buffer_load_dwordx4 {vr(KB + 8 * b + 4, 4)}, v{VK[b]}, {sr(SRD_K, 4)}, s{S_OFF} offen offset:1024{LD}"]

    def v_load(self, b):
        return [f"s_mov_b64 exec, {sr(S_ME, 2)}",
                f"buffer_load_dwordx4 {vr(VB + 8 * b, 4)}, v{VV[2 * b]}, {sr(SRD_V, 4)}, s{S_OFF} offen{LD}",
                f"buffer_load_dwordx4 {vr(VB + 8 * b + 4, 4)}, v{VV[2 * b + 1]}, {sr(SRD_V, 4)}, s{S_OFF} offen{LD}",
                "s_mov_b64 exec, -1"]

    @staticmethod
    def qk(i, half):
        b, j = (i >> 2) & 3, i & 3
        return mfma(SB + 16 * (i & 1), KB + 8 * b + 4 * half, QF + 8 * j + 4 * half, "0" if half == 0 else None)

    @staticmethod
    def pv(i, half, first=False):
        b, j = (i >> 2) & 3, i & 3
        return mfma(OA + 16 * j, VB + 8 * b + 4 * half, PB + 4 * half, "0" if first else None)

    @staticmethod
    def grp(i, g):
        r = SB + 16 * (i & 1) + 4 * g
        return [f"v_exp_f32 v{r + k}, v{r + k}" for k in range(4)] + \
               [f"v_cvt_pk_bf16_f32 v{PB + 2 * g + k}, v{r + 2 * k}, v{r + 2 * k + 1}" for k in range(2)]

    def wait_pair(self, base):
        A = self.A
        want = {f"v{base + 7}"}
        for e in A.vm:
            if e[1] & want:
                A.wait_tok(e[0])
                return

    def setup_units(self):
        R = Rec()
        for b in range(1, 4):
            R(f"v_add_u32 v{VK[b]}, {b * 28672}, v{VL16}")
        for n in range(1, 8):
            R(f"v_add_u32 v{VV[n]}, {n * 14336}, v{VV0}")
        for j in range(4):
            R(f"""
            s_add_u32 s0, s{S_GW}, {j + 1}
            s_and_b32 s0, s0, 3
            s_mul_i32 s0, s0, 12288
            s_add_u32 s0, s0, {L_OP + (j % 3) * 4096}
            v_add_u32 v{VXA + j}, s0, v{VL16}
            """)
        self.sync_addresses(M_AS, A=R, T=0)
        R(f"""
        s_and_b32 s0, s{S_HEAD}, 1
        v_lshrrev_b32 v{VMLO}, 5, v0
        v_or_b32 v{VMHI}, s0, v{VMLO}
        v_xor_b32 v{VMHI}, s0, v{VMHI}
        v_add_u32 v{VMHI}, -1, v{VMHI}
        v_xor_b32 v{VMLO}, 1, v{VMLO}
        v_and_b32 v{VMLO}, s0, v{VMLO}
        v_add_u32 v{VMLO}, -1, v{VMLO}
        v_and_b32 v{VGAD}, 31, v0
        v_lshlrev_b32 v{VGAD}, 2, v{VGAD}
        """)
        R(f"""
        v_and_b32 v{VONE}, 31, v0
        v_cmp_eq_u32 s[0:1], 28, v{VONE}
        v_mov_b32 v{VONE}, 0x3f803f80
        v_cndmask_b32 v{VONE}, 0, v{VONE}, s[0:1]
        """)
        return R.units, [[f"v_mov_b32 v{VB + r}, v{VONE}"] for r in range(32)]

    def first_loads(self):
        q = lambda j: [[f"buffer_load_dwordx4 {vr(QF + 8 * j + 4 * t, 4)}, v{VL16}, {sr(SRD_WS, 4)}, s{S_Q + j} offen"
                        f"{' offset:1024' * t}{LD}"] for t in range(2)]
        k = lambda b: [[x] for x in self.k_load(b)]
        return q(0) + k(0) + q(1) + [self.v_load(0)] + q(2) + q(3) + k(1) + \
            [[f"buffer_load_dword v{VGA}, v{VGAD}, {sr(SRD_WS, 4)}, s{S_AG} offen{LD}"]]

    def mask_q(self, j):
        self.wait_pair(QF + 8 * j)
        for r, m in ((0, VMLO), (1, VMLO), (6, VMHI), (7, VMHI)):
            self.A(f"v_and_b32 v{QF + 8 * j + r}, v{QF + 8 * j + r}, v{m}")

    def attn_main(self):
        A = self.A
        todo = [x for kt in range(1, 16) for x in (("v", kt, 4 * kt - 12), ("k", kt + 1, 4 * kt - 10)) if x[1] < 16]
        base = 0

        def loads(i, kind):
            nonlocal base
            if not todo or todo[0][2] > i or (todo[0][2] == i and todo[0][0] != kind) or issued[0] == i:
                return []
            kd, kt, _ = todo.pop(0)
            issued[0] = i
            o = []
            if kt >> 2 != base:
                base = kt >> 2
                o.append(f"s_add_u32 s{S_OFF}, s{S_OFF}, {4 * 28672}")
            return o + (self.v_load(kt & 3) if kd == "v" else self.k_load(kt & 3))

        issued = [-1]
        for i in range(64):
            kt, b, j = i >> 2, (i >> 2) & 3, i & 3
            seq = []
            if i < 3:
                self.mask_q(i + 1)
            if i < 63:
                if j == 3:
                    self.wait_pair(KB + 8 * ((b + 1) & 3))
                seq.append(self.qk(i + 1, 0))
            seq += self.grp(i, 0)
            if i:
                seq.append(self.pv(i - 1, 1))
            seq += loads(i, "v")
            seq += self.grp(i, 1)
            if i < 63:
                seq.append(self.qk(i + 1, 1))
            seq += loads(i, "k")
            seq += self.grp(i, 2)
            for x in seq:
                A(x)
            if j == 0:
                self.wait_pair(VB + 8 * b)
            A(self.pv(i, 0, first=i < 4))
            if i == 4:
                A(f"ds_write_b32 v{VHW}, v{VHW}")
            if i in (0, 4, 8, 16):
                self.stamp(A, f"a_t{i}")
            g3 = self.grp(i, 3)
            if i > 60:
                w = [f"ds_write_b128 v{VXA + j - 1}, {vr(OA + 16 * (j - 1) + 4 * q, 4)} offset:{1024 * q}" for q in range(4)]
                g3 = [g3[0], w[0], g3[1], w[1], g3[2], w[2], g3[3], w[3]] + g3[4:]
            for x in g3:
                A(x)
            if i == 63:
                self.pad("loop")
                A(f"ds_write_b32 v{VSW}, v{VSW}")
        assert not todo
        load = f"ds_read_b32 v6, v{VSR}"
        tok = A(load)
        A(self.pv(63, 1))
        self.stamp(A, "a_loop")
        self.stamp(A, "rt_loop")
        self.check_words(load, "v_cmp_eq_u32 vcc, 0, v6", tok)
        self.stamp(A, "a_sync")

    def lds_sync(self, value_reg, cmp_, VSW=VSW, VSR=VSR):
        A = self.A
        A(f"ds_write_b32 v{VSW}, v{value_reg}")
        load = f"ds_read_b32 v6, v{VSR}"
        tok = A(load)
        self.check_words(load, cmp_, tok)

    def sync_addresses(self, base, VSW=VSW, VSR=VSR, A=None, T=S_T):
        (A or self.A)(f"""
        s_lshl_b32 s{T}, s{S_GW}, 8
        s_add_u32 s{T}, s{T}, {base}
        v_lshl_add_u32 v{VSW}, v0, 2, s{T}
        v_and_b32 v{VSR}, 3, v0
        v_lshlrev_b32 v{VSR}, 8, v{VSR}
        v_add_u32 v{VSR}, {base}, v{VSR}
        """)

    def attn_finish(self):
        A = self.A
        R, O = VB, OA + 48
        order = [3, 0, 1, 2]
        for q in order:
            for p in range(3):
                A(f"ds_read_b128 {vr(R + 16 * p + 4 * q, 4)}, v{VXA + 3} offset:{4096 * p + 1024 * q}")
        for n, q in enumerate(order):
            for k in range(4):
                A(f"v_add_f32 v{R + 4 * q + k}, v{R + 4 * q + k}, v{R + 16 + 4 * q + k}")
            for k in range(4):
                A(f"v_add_f32 v{O + 4 * q + k}, v{O + 4 * q + k}, v{R + 32 + 4 * q + k}")
            for k in range(4):
                A(f"v_add_f32 v{O + 4 * q + k}, v{O + 4 * q + k}, v{R + 4 * q + k}")
            if n == 0:
                A(f"v_mov_b32 v8, v{O + 12}")
                A(f"v_mov_b32 v9, v{O + 12}")
            if n == 1:
                A("v_permlane32_swap_b32 v8, v9")
                A("v_rcp_f32 v12, v9")
            if n == 2:
                A(f"v_med3_f32 v8, v9, s{S_LO}, v{VHI}")
                A(f"v_mul_f32 v12, v12, v{VGA}")
                A("v_cmp_neq_f32 vcc, v8, v9")
        A(f"s_cbranch_vccnz {self.name}_slow")
        A(f"{self.name}_a_fin:")
        for hf in range(2):
            for r in range(8 * hf, 8 * hf + 8):
                A(f"v_mul_f32 v{O + r}, v{O + r}, v12")
            for jj in range(4 * hf, 4 * hf + 4):
                A(f"v_cvt_pk_bf16_f32 v{PB + jj}, v{O + 2 * jj}, v{O + 2 * jj + 1}")
            if hf == 0:
                A(f"buffer_store_dwordx4 {vr(PB, 4)}, v{VL16}, {sr(SRD_WS, 4)}, s{S_OO} offen{ST}")
        A(f"""
        s_mov_b32 exec_lo, 0
        v_mov_b64 {vr(PB + 6, 2)}, 0
        s_mov_b32 exec_lo, -1
        buffer_store_dwordx4 {vr(PB + 4, 4)}, v{VL16}, {sr(SRD_WS, 4)}, s{S_OO} offen offset:1024{ST}
        """)
        self.stamp(A, "a_st")
        self.tail_setup(0)
        A("s_waitcnt vmcnt(0)")
        self.one_lane_store(1, S_OF, tmp=8)

    def slow_path(self):
        A = self.A
        O, Q = OA + 48, QF + 24
        A.clear()
        A(f"{self.name}_slow:")
        A("s_waitcnt vmcnt(0) lgkmcnt(0)")
        A(f"s_mul_i32 s{S_T}, s{S_GW}, {16 * 28672}")
        for d in (SRD_K, SRD_V):
            A(f"s_sub_u32 s{d}, s{d}, s{S_T}")
            A(f"s_subb_u32 s{d + 1}, s{d + 1}, 0")
            A(f"s_mov_b32 s{d + 2}, {64 * 28672}")
        for r in range(8):
            A(f"v_mov_b32 v{VB + r}, v{VONE}")
        A(f"v_mov_b32 v{VM}, 0xff800000")
        for sub in (0, 1):
            lab = self.lab("slowloop")
            A(f"s_mov_b32 s{S_OFF}, 0")
            if sub:
                for r in range(16):
                    A(f"v_mov_b32 v{O + r}, 0")
            A(f"{lab}:")
            for x in self.k_load(0) + (self.v_load(0) if sub else []):
                A(x)
            A(mfma(SB, KB, Q, "0"))
            A(mfma(SB, KB + 4, Q + 4))
            if not sub:
                for r in range(0, 16, 2):
                    A(f"v_max3_f32 v{VM}, v{SB + r}, v{SB + r + 1}, v{VM}")
            else:
                for r in range(16):
                    A(f"v_sub_f32 v{SB + r}, v{SB + r}, v{VM}")
                for g in range(4):
                    for x in self.grp(0, g):
                        A(x)
                A(mfma(O, VB, PB))
                A(mfma(O, VB + 4, PB + 4))
            A(f"s_add_u32 s{S_OFF}, s{S_OFF}, 28672")
            A(f"s_cmp_lt_u32 s{S_OFF}, {64 * 28672}")
            A(f"s_cbranch_scc1 {lab}")
            if not sub:
                A(f"v_mov_b32 v9, v{VM}")
                A(f"v_permlane32_swap_b32 v9, v{VM}")
                A(f"v_max_f32 v{VM}, v9, v{VM}")
        A(f"""
        v_mov_b32 v8, v{O + 12}
        v_mov_b32 v9, v{O + 12}
        v_permlane32_swap_b32 v8, v9
        v_rcp_f32 v12, v9
        v_mul_f32 v12, v12, v{VGA}
        s_branch {self.name}_a_fin
        """)

    @staticmethod
    def slot(ks):
        k = ks % 13
        return ("A", k) if k < 6 else ("B", k - 6)

    def wd_dma(self, ks):
        reg, sl = self.slot(ks)
        return [f"s_add_u32 m0, s{S_RA if reg == 'A' else S_RB}, {sl * 2048}",
                f"s_add_u32 s0, s{S_WDO}, {ks * 16 * 896}",
                f"buffer_load_dwordx4 v{VDW0}, {sr(SRD_WD, 4)}, s0 offen lds",
                f"buffer_load_dwordx4 v{VDW1}, {sr(SRD_WD, 4)}, s0 offen offset:1024 lds"]

    def wo_dma(self, n):
        return [f"s_add_u32 m0, s{S_RB}, {n * 2048}",
                f"s_add_u32 s{S_T}, s{S_WOO}, {n * 16 * 896}",
                f"buffer_load_dwordx4 v{VDW0}, {sr(SRD_WO, 4)}, s{S_T} offen lds",
                f"buffer_load_dwordx4 v{VDW1}, {sr(SRD_WO, 4)}, s{S_T} offen offset:1024 lds"]

    def h_load(self, ks):
        b = HB + 8 * (ks % 10)
        return [f"s_add_u32 s{S_T}, s{S_HOFF}, {ks * 1024}",
                f"buffer_load_dwordx4 {vr(b, 4)}, v{VH0}, {sr(SRD_WS, 4)}, s{S_T} offen{LD}",
                f"buffer_load_dwordx4 {vr(b + 4, 4)}, v{VH1}, {sr(SRD_WS, 4)}, s{S_T} offen{LD}"]

    def gemm_start(self, e2):
        A = self.A
        tok = None
        for x in (e2[0] + e2[1] if e2 else sum([self.wd_dma(ks) for ks in range(6)], [])):
            tok = A(x)
        A("s_setprio 2")
        for ks in range(6, 6 + self.opt.get("gearly", 0)):
            for x in self.wd_dma(ks):
                A(x)
        self.precompute(A, 1)
        A.wait_tok(tok)

    def gemm_main(self):
        A = self.A
        toks = {}
        A.clear()
        first = 6 + self.opt.get("gearly", 0)
        for ks in range(6, first):
            for _ in range(2):
                A.nid += 1
                A.vm.append([A.nid, set()])
                toks[ks] = A.nid

        def issue(lst, key=None):
            for x in lst:
                t = A(x)
                if t and key is not None:
                    toks[key] = t

        def trr(ks):
            reg, sl = self.slot(ks)
            a = VAWA if reg == "A" else VAWB
            b = WBUF + 8 * (ks % 10)
            o = sl * 2048
            A.wait_tok(toks.get(ks))
            issue([f"ds_read_b64_tr_b16 {vr(b, 2)}, v{a} offset:{o}",
                   f"ds_read_b64_tr_b16 {vr(b + 2, 2)}, v{a} offset:{o + 1024}",
                   f"ds_read_b64_tr_b16 {vr(b + 4, 2)}, v{a + 1} offset:{o}",
                   f"ds_read_b64_tr_b16 {vr(b + 6, 2)}, v{a + 1} offset:{o + 1024}"], ("r", ks))

        def dma(ks):
            if ks >= 13:
                A.wait_tok(toks[("r", ks - 13)])
            issue(self.wd_dma(ks), ks)

        def mm(ks):
            for jj in range(4):
                A(mfma(ACC + 16 * jj, WBUF + 8 * (ks % 10) + 4 * (jj & 1), HB + 8 * (ks % 10) + 4 * (jj >> 1),
                       "0" if ks == 0 else None))

        A(f"""
        ds_write_b32 v{VHW}, v{VHW}
        v_xor_b32 v5, 64, v{VTR}
        v_add_u32 v{VAWA}, s{S_RA}, v{VTR}
        v_add_u32 v{VAWA + 1}, s{S_RA}, v5
        v_and_b32 v13, 7, v0
        v_lshlrev_b32 v13, 8, v13
        v_add_u32 v13, {M_HW}, v13
        """)
        for ks in range(6):
            trr(ks)
        A(f"""
        v_mov_b32 v{GL16}, v{VL16}
        v_add_u32 v{VAWB}, s{S_RB}, v{VTR}
        v_add_u32 v{VAWB + 1}, s{S_RB}, v5
        s_lshr_b32 s{S_T}, s{S_GW}, 1
        s_mul_i32 s{S_T}, s{S_T}, 114688
        v_add_u32 v{VH0}, s{S_T}, v{GL16}
        s_sub_u32 s{S_T}, 114688, s{S_T}
        v_add_u32 v{VH1}, s{S_T}, v{GL16}
        """)
        self.sync_addresses(M_GS, GSW, GSR)
        load = "ds_read_b32 v6, v13"
        tk = A(load)
        self.check_words(load, "v_cmp_eq_u32 vcc, 0, v6", tk, nap=1)
        self.one_lane_store(2, S_F1, wave=4)
        self.stamp(A, "g_hw")
        A(f"s_cmp_ge_u32 s{S_NB}, 7")
        A(f"s_cbranch_scc1 {self.name}_exit")
        A(f"""
        v_and_b32 v5, 31, v0
        v_lshlrev_b32 v5, 2, v5
        buffer_load_dword v{VG}, v5, {sr(SRD_WS, 4)}, s{S_GOFF} offen{LD}
        """)
        A(f"v_add_u32 v{VPW}, s{S_RA}, v{GL16}")
        A(f"v_subrev_u32 v{VGATE}, {M_GS - M_AS}, v{GSR}")
        for jj in range(1, 4):
            A(f"""
            s_xor_b32 s{S_T}, s{S_GW}, {jj}
            s_mul_i32 s{S_T}, s{S_T}, 12288
            s_add_u32 s{S_T}, s{S_T}, {L_RING + 4096 * (jj - 1)}
            v_add_u32 v{VPR + jj - 1}, s{S_T}, v{GL16}
            """)
        self.tail_setup(1)
        deep = self.opt.get("gdeep", 3)
        for ks in range(first, 23):
            if 6 <= ks - 7 < 10:
                trr(ks - 7)
            A.wait_tok(toks.get(ks - deep))
            dma(ks)
        self.stamp(A, "g_dma")
        tok = self.masked("15", POLL)
        self.check_words(POLL, "v_cmp_ne_u32 vcc, 2, v6", tok, mask="15", nap=2)
        A(f"v_sub_f32 v{VG}, 1.0, v{VG}")
        self.stamp(A, "g_flags")
        self.stamp(A, "rt_gflags")
        A("s_setprio 0")
        nh = self.opt.get("nh", 3)
        for ks in range(nh):
            issue(self.h_load(ks))
        ramp = 28 - NDEF - (10 - nh)
        for ks in range(28 - NDEF):
            mm(ks)
            for _ in range(2 if ks >= ramp else 1):
                if nh < 28:
                    assert nh - 10 <= ks
                    issue(self.h_load(nh))
                    nh += 1
            trr(ks + 10)
            if 1 <= ks <= 5:
                dma(ks + 22)
        assert nh == 28
        A.wait_tok(toks[("r", 25)])
        for n in range(7):
            issue(self.wo_dma(n))
        A("s_waitcnt lgkmcnt(0)")
        self.stamp(A, "g_pre")
        self.stamp(A, "rt_gpre")
        load = f"ds_read_b32 v6, v{VGATE}"
        tk = A(load)
        self.check_words(load, "v_cmp_eq_u32 vcc, 0, v6", tk, nap=2)
        wr = []
        for jj in (1, 2, 3, 0):
            for n, ks in enumerate(range(28 - NDEF, 28)):
                A(mfma(ACC + 16 * jj, WBUF + 8 * (ks % 10) + 4 * (jj & 1), HB + 8 * (ks % 10) + 4 * (jj >> 1)))
                if n >= 2 and wr:
                    A(wr.pop(0))
            assert not wr
            wr = [f"ds_write_b128 v{VPW}, {vr(ACC + 16 * jj + 4 * q, 4)} offset:{4096 * (jj - 1) + 1024 * q}" for q in range(4)]
            if jj == 3:
                wr.append(f"ds_write_b32 v{GSW}, v{GSW}")
        self.stamp(A, "g_loop")
        self.stamp(A, "rt_gloop")
        load = f"ds_read_b32 v6, v{GSR}"
        self.check_words(load, "v_cmp_eq_u32 vcc, 0, v6", A(load))
        for q in range(4):
            for jj in range(1, 4):
                A(f"ds_read_b128 {vr(ACC + 16 * jj + 4 * q, 4)}, v{VPR + jj - 1} offset:{1024 * q}")
        for q in range(4):
            r0 = (4 * q, 4 * q + 2)
            for r in r0:
                A(f"v_pk_add_f32 {vr(ACC + 16 + r, 2)}, {vr(ACC + 16 + r, 2)}, {vr(ACC + 32 + r, 2)}")
            for r in r0:
                A(f"v_pk_add_f32 {vr(ACC + r, 2)}, {vr(ACC + r, 2)}, {vr(ACC + 48 + r, 2)}")
            for r in r0:
                A(f"v_pk_add_f32 {vr(ACC + r, 2)}, {vr(ACC + r, 2)}, {vr(ACC + 16 + r, 2)}")
            for r in r0:
                A(f"v_pk_mul_f32 {vr(ACC + r, 2)}, {vr(ACC + r, 2)}, {vr(VG, 2)} op_sel_hi:[1,0]")

    def tail_setup(self, role):
        A = self.A
        A(f"""
        s_lshl_b32 s{S_T}, s{S_MB}, 5
        s_add_u32 s{S_T}, s{S_T}, s{S_GW}
        s_lshl_b32 s{S_MO}, s{S_T}, 7
        s_add_u32 s{S_MO}, s{S_MO}, {FLAG_O + role * 2048}
        v_lshlrev_b32 v{VTP if role else 5}, 9, v0
        s_lshl_b32 s{10 if role else S_T3}, s{S_T}, 11
        s_add_u32 s{10 if role else S_T3}, s{10 if role else S_T3}, {WS_O + role * 32768}
        s_lshl_b32 s{11 if role else S_T2}, s{S_GW}, 11
        """)
        if role == 1:
            srd(A, SRD_OUT, P_OUT, S * D * 2)
            A(f"""
            s_lshr_b32 s{S_T}, s{S_GW}, 1
            s_lshl_b32 s{S_OFF}, s{S_T}, 15
            s_add_u32 s{S_OFF}, s{S_OFF}, {L_O}
            v_add_u32 v14, s{S_OFF}, v{GL16}
            s_mul_i32 s{S_T}, s{S_GW}, 2560
            s_add_u32 s{S_T}, s{S_T}, {L_TR}
            v_and_b32 v7, 31, v0
            v_mul_u32_u24 v7, 80, v7
            v_lshrrev_b32 v8, 5, v0
            v_lshl_add_u32 v7, v8, 5, v7
            v_add_u32 v7, s{S_T}, v7
            v_lshrrev_b32 v4, 2, v0
            v_and_b32 v15, 3, v0
            v_lshlrev_b32 v15, 4, v15
            v_mul_u32_u24 v8, 80, v4
            v_add_u32 v8, v8, v15
            v_add_u32 v8, s{S_T}, v8
            v_mul_u32_u24 v4, 896, v4
            v_add_u32 v{VOUT}, v4, v15
            s_add_u32 s{S_OFF}, s{S_OUTO}, {16 * 896}
            """)

    def tail(self, role):
        A = self.A
        L16 = GL16 if role else VL16
        load = f"buffer_load_dword v6, v{VTP if role else 5}, {sr(SRD_WS, 4)}, s{S_MO} offen sc1"
        if role == 1:
            A("s_waitcnt vmcnt(0)")
        tok = self.masked("15", load)
        A.wait(lg=0)
        self.stamp(A, "t_bar0")
        A("s_barrier")
        self.stamp(A, "t_bar1")
        self.check_words(load, "v_cmp_ne_u32 vcc, 1, v6", tok, mask="15")
        self.stamp(A, "t_flag")
        self.stamp(A, "rt_tflag")
        toks = []
        for step in range(4):
            A(f"s_add_u32 m0, s{11 if role else S_T2}, {L_O + role * 32768 + step * 8192}")
            A(f"s_add_u32 s{S_T}, s{10 if role else S_T3}, {step * 8192}")
            for q in range(2):
                t = A(f"buffer_load_dwordx4 v{L16}, {sr(SRD_WS, 4)}, s{S_T} offen offset:{1024 * q} sc1 lds")
            toks.append(t)
        A.wait_tok(toks[0])
        A("s_barrier")
        self.stamp(A, "t_odata")
        self.stamp(A, "rt_odata")
        if role == 0:
            for step in range(1, 4):
                A.wait_tok(toks[step])
                A("s_barrier")
            return

        def rd(k):
            o = (28 * (k >> 1) + 16 * (k & 1)) * 128
            b = k % 4
            return [f"ds_read_b128 {vr(TB_ + 4 * b, 4)}, v14 offset:{k * 1024}",
                    f"ds_read_b64_tr_b16 {vr(TA_ + 4 * b, 2)}, v{VTR} offset:{o}",
                    f"ds_read_b64_tr_b16 {vr(TA_ + 4 * b + 2, 2)}, v{VTR} offset:{o + 1024}"]

        for k in range(3):
            for x in rd(k):
                A(x)
        for k in range(32):
            A(mfma(ACC, TA_ + 4 * (k % 4), TB_ + 4 * (k % 4)))
            if k + 3 < 32:
                if (k + 3) % 8 == 0:
                    A.wait_tok(toks[(k + 3) // 8])
                    A("s_barrier")
                for x in rd(k + 3):
                    A(x)
        self.stamp(A, "t_mm")
        for hf in range(2):
            for jj in range(4):
                A(f"v_cvt_pk_bf16_f32 v{TA_ + 4 * hf + jj}, v{ACC + 8 * hf + 2 * jj}, v{ACC + 8 * hf + 2 * jj + 1}")
            A(f"ds_write_b128 v7, {vr(TA_ + 4 * hf, 4)} offset:{16 * hf}")
        for q in range(2):
            A(f"ds_read_b128 {vr(TB_ + 4 * q, 4)}, v8 offset:{16 * 80 * q}")
        for q in range(2):
            A(f"buffer_store_dwordx4 {vr(TB_ + 4 * q, 4)}, v{VOUT}, {sr(SRD_OUT, 4)}, s{S_OFF if q else S_OUTO} offen{('', ' sc1', ' nt', ' sc0 sc1')[self.opt.get('ost', 0)]}")

    def finish(self):
        A = self.A
        if self.opt.get("pad_end"):
            A("s_waitcnt vmcnt(0)")
            self.pad("end")
        if self.stamp.enabled:
            A("s_waitcnt vmcnt(0)")
            self.stamp(A, "t_end")
            self.stamp(A, "rt_end")
            self.stamp.flush(A)
        A("s_endpgm")

    def build(self):
        A, name = self.A, self.name
        A(f".globl {name}\n.p2align 8\n.type {name},@function\n{name}:")
        A("s_cmp_ge_u32 s2, 256")
        A(f"s_cbranch_scc1 {name}_exit")
        if any(k.startswith("pad_") for k in self.opt):
            A("s_memrealtime s[96:97]")
        self.stamp(A, "rt0")
        self.stamp(A, "t0")
        p1.SX = self.opt.get('sx')
        p1.decode(A)
        A(f"s_cmp_ge_u32 s{p1.S_CG}, 14")
        A(f"s_cbranch_scc1 {name}_q")
        st0 = A.save()
        p1.programs(A, "KV", ST + self.opt.get("ntkv", 0) * " nt", self.hooks(True), self.opt)
        A.restore(st0)
        A(f"{name}_q:")
        p1.programs(A, "Q", ST + self.opt.get("ntq", 0) * " nt", self.hooks(False), self.opt)
        if self.opt.get("p1exit") or self.opt.get("p2exit"):
            for f in self.late:
                A.clear()
                f(A)
            A(f"{name}_exit:")
            A("s_endpgm")
            pads = A.fix_hazards()
            return A.text(), kernel_desc(name), pads
        e2 = p1.final_epilogue(ST + self.opt.get("ntkv", 0) * " nt")
        A.clear()
        self.target(A, f"{name}_a_plain")
        for x in sum(sum(self.setup_units(), []), []):
            A(x)
        A(f"s_branch {name}_a_poll")
        self.target(A, f"{name}_a_late")
        for x in e2[0] + e2[1]:
            A(x)
        self.target(A, f"{name}_a_poll", inline=True)
        tok = self.masked(POLLMASK, POLL)
        self.check_words(POLL, "v_cmp_eq_u32 vcc, 0, v6", tok, mask=POLLMASK)
        self.stamp(A, "a_flags")
        self.stamp(A, "rt_aflags")
        A(f"s_mov_b32 s{S_OFF}, 0")
        for x in sum(self.first_loads(), []):
            A(x)
        A(f"ds_write_b32 v{VHW}, v{VHW}")
        A(f"s_branch {name}_a_go")
        plain = A.save()
        A.clear()
        self.target(A, f"{name}_a_e2")
        self.masked(POLLMASK, "v_cmp_eq_u32 vcc, 0, v6")
        A(f"s_cbranch_vccnz {name}_a_late")
        self.stamp(A, "a_flags")
        self.stamp(A, "rt_aflags")
        A(f"s_mov_b32 s{S_OFF}, 0")
        work = e2[0][:-2] + e2[1][:-2]
        fl = self.first_loads()
        step = self.opt.get("lstep", 9)
        for k, x in enumerate(work):
            if k % step == 0 and fl:
                for y in fl.pop(0):
                    A(y)
            A(x)
        assert not fl
        for x in e2[0][-2:] + e2[1][-2:]:
            A(x)
        self.stamp(A, "a_e2b")
        assert [x for x in A.state()[0] if x] == [tuple(sorted(e[1])) for e in plain[0]]
        A.restore(plain)
        A.lg = []
        self.target(A, f"{name}_a_go", inline=True)
        A(f"s_mov_b32 s{S_LO}, {f32(2.0 ** -30)}")
        A(f"v_mov_b32 v{VHI}, {f32(2.0 ** 30)}")
        self.mask_q(0)
        A(self.qk(0, 0))
        A(self.qk(0, 1))
        A("s_setprio 1")
        self.stamp(A, "a_first")
        self.stamp(A, "rt_afirst")
        self.attn_main()
        self.attn_finish()
        self.stamp(A, "a_pub")
        self.stamp(A, "rt_pub")
        A(f"s_cmp_ge_u32 s{S_NB}, 7")
        A(f"s_cbranch_scc1 {name}_a_done")
        self.tail(0)
        A(f"{name}_a_done:")
        self.finish()
        A.clear()
        self.target(A, f"{name}_g_plain")
        self.gemm_start(None)
        A(f"s_branch {name}_g_go")
        A.clear()
        self.target(A, f"{name}_g_e2")
        self.gemm_start(e2)
        self.target(A, f"{name}_g_go", inline=True)
        self.gemm_main()
        self.tail(1)
        self.finish()
        self.slow_path()
        k = 0
        while k < len(self.late):
            A.clear()
            self.late[k](A)
            k += 1
        A(f"{name}_exit:")
        A("s_endpgm")
        pads = A.fix_hazards()
        return A.text(), kernel_desc(name), pads


HEADER = open("gated_mix__mha_block__glu_gated_geglu__prompt.s.ref").read().split("; Override")[0]


def main():
    diag = "diag" in sys.argv
    name = "gated_mix__mha_block__glu_gated_geglu__prompt_kernel"
    sets = {"diag": "rt0 t0 p1_pass2 a_flags a_first a_loop a_pub t_flag t_end rt_end g_hw g_dma g_flags g_pre g_loop",
            "diagt": "rt0 t0 a_first a_loop a_sync a_st a_pub t_bar0 t_bar1 t_flag t_odata t_mm t_end g_loop rt_end",
            "diagp": "rt0 t0 p1_pass1 p2_4 p2_8 p2_16 p1_pass2 a_flags a_first a_loop t_end rt_end",
            "diagb": "rt0 t0 b2_pre b2_vm b2_post b3_pre b3_vm t_end rt_end",
            "diagc": "rt0 t0 b5_pre b5_vm b5_post b7_pre b7_vm t_end rt_end",
            "diagd": "rt0 t0 p2_4 c7_pre c7_vm c7_post p2_8 t_end rt_end",
            "diage": "rt0 t0 c9_pre c9_vm c9_post c15_pre c15_vm t_end rt_end",
            "diagr": "rt0 t0 p1_first p1_pass1 rt_first rt_pass1 t_end rt_end",
            "diagz": "rt0 rt_end",
            "diagrt": "rt0 rt_first rt_pass1 rt_pubq rt_pass2 rt_aflags rt_afirst rt_loop rt_pub rt_tflag rt_odata rt_end rt_gflags rt_gpre",
            "diags": "rt0 t0 p1_pass1 p1_pass2 rt_pass1 rt_pass2 p2_8 t_end rt_end",
            "diaga": "rt0 t0 p1_pass2 a_flags a_e2b a_first a_t0 a_t4 a_t8 a_t16 t_end rt_end",
            "diagru": "rt0 rtkarg rtdma0 rtpro rtvm0 rt_first rtb1 rt_end",
            "diagrv": "rt0 rtb1 rtb2 rtb3 rtb4 rtb5 rtb6 rt_end",
            "diagq": "rt0 t0 karg dma0 p1_first p1_pass1 p2_4 t_end rt_end"}
    which = [a for a in sys.argv if a in sets]
    diag = bool(which)
    st = Stamps(diag, sets[which[0]].split() if diag else None)
    opt = {a.split("=")[0]: int(a.split("=")[1]) for a in sys.argv[1:] if "=" in a}
    g = Gen(name, st, opt)
    code, kd, pads = g.build()
    print(HEADER.rstrip())
    print("; @launch grid=(256,1,1) block=(512,1,1) lds=163840")
    if diag:
        print("; stamps: " + " ".join(st.only))
    print('.amdgcn_target "amdgcn-amd-amdhsa--gfx950"\n.text')
    print(code)
    print('.section .rodata,"a"\n.p2align 6')
    print(kd)


if __name__ == "__main__":
    main()
```

```python
import sys
from common import *
import phase1 as p1

ST = " sc1"
LD = " sc1"

FLAG_S = WS_FLAG
FLAG_O = WS_FLAG + 0x8000
SPIN = 1 << 17

L_WO, L_RING, L_OP, L_MISC = 0, 57344, 106496, 155648
L_O = L_RING
L_TR = 131072
M_HW, M_AS, M_GS, M_MAX = L_MISC, L_MISC + 2048, L_MISC + 3072, L_MISC + 4096

S_F1, S_SPIN = 27, 3
S_HEAD, S_QB, S_MB, S_NB, S_GW = range(66, 71)
S_AG = 61
S_MO, S_T, S_T2, S_T3, S_OFF, S_CNT = 54, 56, 57, 58, 60, 61
SRD_DBG, SRD_OUT = 48, 48
SRD_K, SRD_V, S_Q, S_ME, S_OO, S_OF = 72, 76, 80, 84, 86, 87
SRD_WD, SRD_WO = 72, 76
S_RA, S_RB, S_WDO, S_WOO, S_HOFF, S_GOFF, S_OUTO = range(80, 87)

VL16 = p1.VL16
VPOLL, VHW = 12, 14
OA, SB, PB, VB, KB, QF = 16, 80, 112, 160, 192, 224
VV0, VGA, VONE, VM, VHI = 10, 11, 13, 1, 7
VMLO, VMHI, VGAD = 120, 121, 122
S_LO = 62
VK = [VL16, 144, 145, 146]
VV = [VV0] + list(range(147, 154))
VXA, VSW, VSR = 154, 158, 159
ACC, HB, WBUF = 16, 80, 160
GL16, GSW, GSR = 1, 2, 3
NDEF = 10
VDW0, VDW1, VTR = 9, 10, 11
VH0, VH1, VAWA, VAWB, VG = 242, 243, 244, 246, 248
VPW, VPR, VGATE, VOUT, VTP = 240, 250, 241, 253, 254
ACA, TB_, TA_ = 80, 96, 112
POLLMASK = "0x1ffff"
POLL = f"buffer_load_dword v6, v{VPOLL}, {sr(SRD_WS, 4)}, 0 offen sc1"


class Gen:
    def __init__(self, name, stamps, opt=None):
        self.A = Asm()
        self.name = name
        self.stamp = stamps
        self.opt = opt or {}
        self.late = []
        self.nlab = 0

    def pad(self, where):
        us = self.opt.get("pad_" + where)
        if not us:
            return
        A, L = self.A, self.lab("pad")
        A.auto = False
        A(f"{L}:")
        A("s_memrealtime s[98:99]")
        A._emit_raw("s_waitcnt lgkmcnt(0)")
        A("s_sub_u32 s98, s98, s96")
        A(f"s_cmp_lt_u32 s98, {us * 100}")
        A(f"s_cbranch_scc1 {L}")
        A.auto = True
        A.sm = set()

    def lab(self, s):
        self.nlab += 1
        return f"{self.name}_{s}{self.nlab}"

    def one_lane_store(self, value, soff, wave=None, tmp=5):
        A = self.A
        skip = None
        if wave is not None:
            skip = self.lab("skip")
            A(f"s_cmp_lg_u32 s{S_WAVE}, {wave}")
            A(f"s_cbranch_scc1 {skip}")
        A(f"v_mov_b32 v{tmp}, {value}")
        A("s_mov_b64 exec, 1")
        A.uncounted(f"buffer_store_dword v{tmp}, off, {sr(SRD_WS, 4)}, s{soff} sc1")
        A("s_mov_b64 exec, -1")
        if skip:
            A(f"{skip}:")

    def check_words(self, load, cmp_, tok, mask=None, nap=0):
        A = self.A
        ok, loop = self.lab("ok"), self.lab("again")
        A.wait_tok(tok)
        if mask:
            A(f"s_mov_b64 exec, {mask}")
        A(cmp_)
        A(f"s_cbranch_vccz {ok}")
        sv = A.save()
        A(f"s_mov_b32 s{S_SPIN}, {SPIN}")
        A(f"{loop}:")
        if nap:
            A(f"s_sleep {nap}")
        A(load)
        A("s_waitcnt vmcnt(0)" if load.startswith("buffer") else "s_waitcnt lgkmcnt(0)")
        A(cmp_)
        A(f"s_cbranch_vccz {ok}")
        A(f"s_sub_u32 s{S_SPIN}, s{S_SPIN}, 1")
        A(f"s_cbranch_scc0 {loop}")
        A.restore(sv)
        A(f"{ok}:")
        if mask:
            A("s_mov_b64 exec, -1")

    def target(self, A, label, inline=False):
        if not self.opt.get("warm", 0):
            A(f"{label}:")
            return
        if inline:
            A(f"s_branch {label}")
        A(".p2align 6")
        A(f"{label}_w:")
        A("s_setpc_b64 s[0:1]")
        A(f"{label}:")

    def warm(self, A, special, own):
        if not self.opt.get("warm", 0):
            return
        n = self.name
        t = own + ([f"{n}_a_plain", f"{n}_g_plain", f"{n}_a_poll", f"{n}_a_go", f"{n}_g_go"] if special else
                   [f"{n}_a_e2", f"{n}_g_e2", f"{n}_a_late", f"{n}_a_go"])
        for w, lab in enumerate(t):
            skip = self.lab("skip")
            A(f"s_cmp_lg_u32 s{S_WAVE}, {w}")
            A(f"s_cbranch_scc1 {skip}")
            A(f"s_call_b64 s[0:1], {lab}_w")
            A(f"{skip}:")

    def masked(self, mask, text):
        self.A(f"s_mov_b64 exec, {mask}")
        t = self.A(text)
        self.A("s_mov_b64 exec, -1")
        return t

    def hooks(self, early_poll):
        A = self.A
        st = {}

        def entry(A):
            self.code_prefetch(A)
            skip = self.lab("skip")
            A(f"""
            s_lshl_b32 s{S_F1}, s{p1.S_RB}, 4
            s_add_u32 s{S_F1}, s{S_F1}, s{p1.S_CG}
            s_lshl_b32 s{S_F1}, s{S_F1}, 7
            s_add_u32 s{S_F1}, s{S_F1}, {FLAG_S}
            s_cmp_lg_u32 s{S_WAVE}, 0
            s_cbranch_scc1 {skip}
            s_and_b32 s{p1.S_T}, s2, 7
            s_lshl_b32 s{p1.S_T}, s{p1.S_T}, 1
            s_lshr_b32 s{p1.S_T2}, s2, 7
            s_add_u32 s{p1.S_T}, s{p1.S_T}, s{p1.S_T2}
            s_bfe_u32 s{p1.S_T2}, s2, 0x40003
            s_lshl_b32 s{p1.S_T2}, s{p1.S_T2}, 6
            s_add_u32 s{p1.S_T}, s{p1.S_T}, s{p1.S_T2}
            s_lshl_b32 s{p1.S_T}, s{p1.S_T}, 7
            s_add_u32 s{p1.S_T}, s{p1.S_T}, {FLAG_O}
            v_mov_b32 v10, 0
            v_lshlrev_b32 v11, 11, v0
            s_mov_b64 exec, 15
            """)
            A.uncounted(f"buffer_store_dword v10, v11, {sr(SRD_WS, 4)}, s{p1.S_T} offen sc1")
            A("s_mov_b64 exec, 1")
            A.uncounted(f"buffer_store_dword v10, off, {sr(SRD_WS, 4)}, s{S_F1} sc1")
            A("s_mov_b64 exec, -1")
            A(f"{skip}:")

        def p1bar(A, stg, role):
            if stg == 1:
                self.pad("b1")

            if stg == 7:
                self.pad("p1")
            if stg != 6:
                return
            srd(A, SRD_DBG, P_DBG, 256)
            if role:
                return
            skip = self.lab("skip")
            A(f"""
            s_cmp_lg_u32 s{S_WAVE}, 0
            s_cbranch_scc1 {skip}
            s_and_b32 s3, s2, 3
            s_lshl_b32 s3, s3, 6
            v_mov_b32 v13, 1
            s_mov_b64 exec, 1
            """)
            A.uncounted(f"buffer_atomic_add v13, off, {sr(SRD_DBG, 4)}, s3 sc1")
            A("s_mov_b64 exec, -1")
            A(f"{skip}:")

        dbg_load = f"buffer_load_dword v7, v8, {sr(SRD_DBG, 4)}, 0 offen sc1"

        def clear_misc(A):
            A(f"""
            s_lshl_b32 s3, s{S_WAVE}, 9
            s_add_u32 s3, s3, {L_MISC}
            v_lshl_add_u32 v8, v0, 3, s3
            v_mov_b64 v[6:7], 0
            ds_write_b64 v8, v[6:7]
            """)

        def p2step(A, t, role):
            if t == 8:
                if early_poll:
                    clear_misc(A)
                A(f"""
                v_and_b32 v8, 3, v0
                v_lshlrev_b32 v8, 6, v8
                """)
                st["dbg"] = A(dbg_load)
            if t in (4, 8, 12, 16, 20, 24):
                self.stamp(A, f"p2_{t}")
            if t == 20:
                self.check_words(dbg_load, "v_cmp_gt_u32 vcc, 64, v7", st["dbg"])
            if early_poll and not role and t >= 4:
                early, consts = self.setup_units()
                units, lo, hi = (early, 4, 12) if t < 12 else (consts, 12, 28)
                for u in units[len(units) * (t - lo) // (hi - lo):len(units) * (t + 1 - lo) // (hi - lo)]:
                    for x in u:
                        A(x)
            if early_poll and role and t >= 16 and t % 2 == 0:
                for x in self.wd_dma((t - 16) // 2):
                    A(x)
            if t == self.opt.get('polls', 25) and early_poll and not role:
                st["poll"] = self.masked(POLLMASK, POLL)

        def qkv_done(A, role):
            if not role:
                self.one_lane_store(1, S_F1, wave=0)
                self.stamp(A, "rt_pubq")

        def regular_end(A, role):
            if self.opt.get("pad_p2"):
                self.pad("p2")
                if not role:
                    st["poll"] = self.masked(POLLMASK, POLL)
            if not role:
                A.wait_tok(st["poll"])
            A(f"s_branch {self.name}_{'g' if role else 'a'}_e2")

        def special_end(A, role):
            A("s_waitcnt vmcnt(0) lgkmcnt(0)")
            A("s_barrier")
            qkv_done(A, role)
            self.pad("p2")
            clear_misc(A)
            A("s_waitcnt lgkmcnt(0)")
            A("s_barrier")
            A(f"s_branch {self.name}_{'g' if role else 'a'}_plain")

        h = dict(stamp=self.stamp, label=self.lab, entry=entry, prologue=self.warm, target=self.target, prefetch=self.data_prefetch, p1bar=p1bar, p2step=p2step,
                 idle=lambda A, role: self.precompute_g0(A) if role else self.precompute(A, 0),
                 qkv_done=qkv_done, regular_end=regular_end, special_end=special_end)
        if self.opt.get("p1exit"):
            h["p1exit"] = self.finish
        if self.opt.get("p2exit"):
            h["p2exit"] = self.finish
        return h

    def data_prefetch(self, A, which):
        if not self.opt.get("pf", 3) >> which & 1:
            return
        if which == 0 and self.opt.get("pfx"):
            skip, lab = self.opt.get("pfskip", 3), self.lab("skip")
            srd_tail(A, p1.SRD_G, D * F * 2)
            srd_tail(A, p1.SRD_U, D * F * 2)
            A.wait(lg=0)
            A(f"""
            s_bitcmp1_b32 s2, 2
            s_cbranch_scc1 {lab}
            s_lshr_b32 s10, s2, 3
            s_lshl_b32 s10, s10, 2
            s_and_b32 s11, s2, 3
            s_add_u32 s10, s10, s11
            s_lshl_b32 s10, s10, 3
            s_add_u32 s10, s10, s{S_WAVE}
            s_lshl_b32 s11, s10, 7
            v_lshl_add_u32 v13, v0, 17, s11
            s_mov_b32 s10, {skip * 64 * 3584}
            s_mov_b32 s11, {skip * 64 * 2688}
            s_mov_b64 exec, 0x3fff
            """)
            for d, so in ((p1.SRD_G, "s10"), (p1.SRD_U, "s10"), (p1.SRD_P, "s11"), (p1.SRD_X, "0")):
                A.uncounted(f"buffer_load_dword v11, v13, {sr(d, 4)}, {so} offen")
            A("s_mov_b64 exec, -1")
            A(f"{lab}:")
            return
        A(f"""
        s_lshl_b32 s10, s2, 3
        s_add_u32 s10, s10, s{S_WAVE}
        s_lshl_b32 s11, s10, 7
        v_lshl_add_u32 v13, v0, 18, s11
        """)
        if which == 0:
            skip = self.opt.get("pfskip", 3)
            srd_tail(A, p1.SRD_G, D * F * 2)
            srd_tail(A, p1.SRD_U, D * F * 2)
            A(f"""
            s_mul_i32 s10, s10, 896
            v_lshl_add_u32 v15, v0, 7, s10
            s_mov_b32 s10, {skip * 64 * 3584}
            s_mov_b32 s11, {skip * 64 * 2688}
            s_mov_b64 exec, {(1 << (7 - skip)) - 1}
            buffer_load_dword v11, v15, {sr(p1.SRD_X, 4)}, 0 offen offset:{128 * skip}
            buffer_load_dword v11, v13, {sr(p1.SRD_P, 4)}, s11 offen
            s_mov_b64 exec, 0x7f
            buffer_load_dword v11, v13, {sr(p1.SRD_G, 4)}, s10 offen
            buffer_load_dword v11, v13, {sr(p1.SRD_U, 4)}, s10 offen
            s_mov_b64 exec, -1
            """)
        else:
            srd(A, 4, P_WD, F * D * 2)
            srd(A, 12, P_WO, D * D * 2)
            A(f"""
            s_mov_b64 exec, 0x7f
            buffer_load_dword v11, v13, s[4:7], 0 offen
            buffer_load_dword v11, v13, s[12:15], 0 offen
            s_mov_b64 exec, -1
            """)

    def code_prefetch(self, A):
        if not self.opt.get("cpf", 1):
            return
        here, skip = self.lab("pc"), self.lab("skip")
        A(f"""
        s_cmp_lg_u32 s{S_WAVE}, 7
        s_cbranch_scc1 {skip}
        s_getpc_b64 s[0:1]
        {here}:
        s_sub_u32 s0, s0, {here}-{self.name}
        s_subb_u32 s1, s1, 0
        s_lshr_b32 s{p1.S_T}, s2, 3
        s_lshl_b32 s{p1.S_T}, s{p1.S_T}, 11
        v_lshl_add_u32 v10, v0, 7, s{p1.S_T}
        v_min_u32 v10, {self.name}_exit-{self.name}, v10
        s_mov_b64 exec, 0xffff
        """)
        A.uncounted("global_load_dword v11, v10, s[0:1]")
        A("v_lshlrev_b32 v10, 7, v0")
        A.uncounted(f"buffer_load_dword v11, v10, {sr(p1.SRD_GW, 4)}, 0 offen")
        A("s_mov_b64 exec, -1")
        A(f"{skip}:")

    def precompute(self, A, role):
        T, T2 = 0, 1
        A(f"""
        s_and_b32 s{T}, s2, 7
        s_lshr_b32 s{T2}, s2, 3
        s_lshl_b32 s{S_HEAD}, s{T}, 1
        s_lshr_b32 s{S_QB}, s2, 7
        s_add_u32 s{S_HEAD}, s{S_HEAD}, s{S_QB}
        s_and_b32 s{S_QB}, s{T2}, 15
        s_and_b32 s{S_GW}, s{S_WAVE}, 3
        s_lshl_b32 s{T}, s{S_WAVE}, 8
        s_add_u32 s{T}, s{T}, {M_HW}
        v_lshl_add_u32 v{VHW}, v0, 2, s{T}
        """)
        if role == 0:
            self.out_tile(A)
            self.precompute_a(A)
        else:
            self.precompute_g(A)

    def out_tile(self, A):
        sg = self.opt.get("sg")
        if sg is None:
            A(f"""
            s_and_b32 s{S_MB}, s2, 7
            s_lshl_b32 s{S_MB}, s{S_MB}, 2
            s_bfe_u32 s{S_NB}, s2, 0x20003
            s_add_u32 s{S_MB}, s{S_MB}, s{S_NB}
            s_lshr_b32 s{S_NB}, s2, 5
            """)
            return
        A(f"""
        s_add_u32 s0, s2, {7 - sg}
        s_and_b32 s0, s0, 7
        s_lshl_b32 s0, s0, 5
        s_lshr_b32 s1, s2, 3
        s_add_u32 s0, s0, s1
        s_mul_i32 s{S_MB}, s0, 9363
        s_lshr_b32 s{S_MB}, s{S_MB}, 16
        s_mul_i32 s1, s{S_MB}, 7
        s_sub_u32 s{S_NB}, s0, s1
        s_cmp_ge_u32 s0, 224
        s_cselect_b32 s{S_NB}, 7, s{S_NB}
        s_min_u32 s{S_MB}, s{S_MB}, 31
        """)

    def precompute_a(self, A):
        T, T2 = 0, 1
        a0, a1 = S_Q, S_Q + 1
        A(f"""
        s_mul_i32 s{T}, s{S_HEAD}, 28
        s_add_u32 s{T2}, s{T}, 27
        s_lshr_b32 s{a0}, s{T}, 6
        s_lshr_b32 s{a1}, s{T2}, 6
        s_sub_u32 s{a1}, s{a1}, s{a0}
        v_and_b32 v5, 1, v0
        v_mul_u32_u24 v5, s{a1}, v5
        v_bfe_u32 v6, v0, 1, 1
        v_mad_u32_u24 v5, v6, 7, v5
        v_bfe_u32 v6, v0, 2, 2
        v_lshl_add_u32 v5, v6, 4, v5
        s_lshl_b32 s{a1}, s{S_GW}, 6
        s_add_u32 s{a1}, s{a1}, s{a0}
        v_add_u32 v5, s{a1}, v5
        s_lshl_b32 s{a1}, s{S_QB}, 4
        s_lshr_b32 s{T}, s{S_HEAD}, 3
        s_add_u32 s{T}, s{T}, s{a1}
        s_add_u32 s{T}, s{T}, 14
        v_writelane_b32 v5, s{T}, 16
        v_lshlrev_b32 v5, 7, v5
        v_add_u32 v{VPOLL}, {FLAG_S}, v5
        v_lshrrev_b32 v5, 5, v0
        v_mul_u32_u24 v5, {7168 - 512}, v5
        v_add_u32 v{VV0}, v5, v{VL16}
        s_mul_i32 s{S_OO}, s{S_HEAD}, 7
        s_lshr_b32 s{S_OO}, s{S_OO}, 1
        s_lshl_b32 s{S_OO}, s{S_OO}, 9
        s_mul_i32 s{T2}, s{S_GW}, {16 * 28672}
        s_add_u32 s{T}, s{T2}, s{S_OO}
        s_add_u32 s{T}, s{T}, {WS_K}
        """)
        srd(A, SRD_K, P_WS, 16 * 28672, add=f"s{T}")
        A(f"""
        s_mul_i32 s{T}, s{S_HEAD}, 448
        s_add_u32 s{T}, s{T}, s{T2}
        s_add_u32 s{T}, s{T}, {WS_V}
        """)
        srd(A, SRD_V, P_WS, 16 * 28672, add=f"s{T}")
        A(f"s_lshl_b32 s{T2}, s{S_QB}, 2")
        for j in range(4):
            A(f"""
            s_add_u32 s{T}, s{S_GW}, {j + 1}
            s_and_b32 s{T}, s{T}, 3
            s_add_u32 s{T}, s{T}, s{T2}
            s_mul_i32 s{T}, s{T}, 28672
            s_add_u32 s{S_Q + j}, s{T}, s{S_OO}
            """)
        A(f"""
        s_add_u32 s{T}, s{T2}, s{S_GW}
        s_lshl_b32 s{S_OFF}, s{T}, 7
        s_add_u32 s{S_AG}, s{S_OFF}, {WS_G}
        s_lshl_b32 s{T}, s{T}, 4
        s_add_u32 s{T}, s{T}, s{S_HEAD}
        s_lshl_b32 s{S_OO}, s{T}, 11
        s_add_u32 s{S_OO}, s{S_OO}, {WS_O}
        s_lshl_b32 s{S_OF}, s{T}, 7
        s_add_u32 s{S_OF}, s{S_OF}, {FLAG_O}
        s_mov_b32 s{S_ME}, 0x0fffffff
        s_mov_b32 s{S_ME + 1}, 0x0fffffff
        """)

    def precompute_g0(self, A):
        T = 0
        srd(A, SRD_WD, P_WD, F * D * 2)
        A(f"""
        v_lshrrev_b32 v5, 3, v0
        v_mul_u32_u24 v6, 896, v5
        v_lshrrev_b32 v5, 2, v0
        v_and_b32 v5, 4, v5
        v_and_b32 v7, 7, v0
        v_xor_b32 v5, v5, v7
        v_lshl_add_u32 v{VDW0}, v5, 4, v6
        v_add_u32 v{VDW1}, {7168 - 1024}, v{VDW0}
        s_and_b32 s{S_GW}, s{S_WAVE}, 3
        s_mul_i32 s{S_RB}, s{S_GW}, 14336
        s_mul_i32 s{S_RA}, s{S_GW}, 12288
        s_add_u32 s{S_RA}, s{S_RA}, {L_RING}
        """)
        self.out_tile(A)
        A(f"""
        s_lshl_b32 s{T}, s{S_NB}, 7
        s_mul_i32 s{S_WDO}, s{S_GW}, {448 * 896}
        s_add_u32 s{S_WDO}, s{S_WDO}, s{T}
        """)

    def precompute_g(self, A):
        T, T2 = 0, 1
        srd(A, SRD_WO, P_WO, D * D * 2)
        A(f"""
        s_lshl_b32 s{T}, s{S_NB}, 7
        s_mul_i32 s{S_WOO}, s{S_GW}, {112 * 896}
        s_add_u32 s{S_WOO}, s{S_WOO}, s{T}
        s_and_b32 s{T2}, s{S_GW}, 1
        s_lshl_b32 s{S_OUTO}, s{T2}, 6
        s_add_u32 s{S_OUTO}, s{S_OUTO}, s{T}
        s_lshl_b32 s{T2}, s{T2}, 3
        v_and_b32 v5, 1, v0
        v_lshlrev_b32 v5, 2, v5
        v_bfe_u32 v6, v0, 1, 1
        v_add_u32 v5, v5, v6
        v_bfe_u32 v6, v0, 4, 1
        v_lshl_add_u32 v5, v6, 1, v5
        v_and_b32 v6, 8, v0
        v_xor_b32 v5, v5, v6
        v_xor_b32 v5, s{T2}, v5
        v_lshrrev_b32 v6, 5, v0
        v_bfe_u32 v7, v0, 2, 2
        v_lshl_add_u32 v6, v6, 2, v7
        v_lshlrev_b32 v6, 7, v6
        v_lshl_add_u32 v{VTR}, v5, 3, v6
        s_lshr_b32 s{T}, s{S_GW}, 1
        s_lshl_b32 s{T2}, s{S_MB}, 1
        s_add_u32 s{T}, s{T}, s{T2}
        s_lshl_b32 s{S_GOFF}, s{T}, 7
        s_add_u32 s{S_GOFF}, s{S_GOFF}, {WS_G}
        s_mul_i32 s{T}, s{T}, {32 * 896}
        s_add_u32 s{S_OUTO}, s{S_OUTO}, s{T}
        s_mul_i32 s{S_HOFF}, s{S_MB}, {2 * 114688}
        s_mul_i32 s{T}, s{S_GW}, {28 * 1024}
        s_add_u32 s{S_HOFF}, s{S_HOFF}, s{T}
        s_add_u32 s{S_HOFF}, s{S_HOFF}, {WS_H}
        s_lshr_b32 s{T}, s{S_MB}, 1
        s_lshl_b32 s{T}, s{T}, 4
        s_mul_i32 s{T2}, s{S_GW}, 7
        s_lshr_b32 s{T2}, s{T2}, 1
        s_add_u32 s{T}, s{T}, s{T2}
        s_lshl_b32 s{T}, s{T}, 7
        s_add_u32 s{T}, s{T}, {FLAG_S}
        v_and_b32 v5, 3, v0
        v_lshl_add_u32 v{VPOLL}, v5, 7, s{T}
        """)

    def k_load(self, b):
        return [f"buffer_load_dwordx4 {vr(KB + 8 * b, 4)}, v{VK[b]}, {sr(SRD_K, 4)}, s{S_OFF} offen{LD}",
                f"buffer_load_dwordx4 {vr(KB + 8 * b + 4, 4)}, v{VK[b]}, {sr(SRD_K, 4)}, s{S_OFF} offen offset:1024{LD}"]

    def v_load(self, b):
        return [f"s_mov_b64 exec, {sr(S_ME, 2)}",
                f"buffer_load_dwordx4 {vr(VB + 8 * b, 4)}, v{VV[2 * b]}, {sr(SRD_V, 4)}, s{S_OFF} offen{LD}",
                f"buffer_load_dwordx4 {vr(VB + 8 * b + 4, 4)}, v{VV[2 * b + 1]}, {sr(SRD_V, 4)}, s{S_OFF} offen{LD}",
                "s_mov_b64 exec, -1"]

    @staticmethod
    def qk(i, half):
        b, j = (i >> 2) & 3, i & 3
        return mfma(SB + 16 * (i & 1), KB + 8 * b + 4 * half, QF + 8 * j + 4 * half, "0" if half == 0 else None)

    @staticmethod
    def pv(i, half, first=False):
        b, j = (i >> 2) & 3, i & 3
        return mfma(OA + 16 * j, VB + 8 * b + 4 * half, PB + 4 * half, "0" if first else None)

    @staticmethod
    def grp(i, g):
        r = SB + 16 * (i & 1) + 4 * g
        return [f"v_exp_f32 v{r + k}, v{r + k}" for k in range(4)] + \
               [f"v_cvt_pk_bf16_f32 v{PB + 2 * g + k}, v{r + 2 * k}, v{r + 2 * k + 1}" for k in range(2)]

    def wait_pair(self, base):
        A = self.A
        want = {f"v{base + 7}"}
        for e in A.vm:
            if e[1] & want:
                A.wait_tok(e[0])
                return

    def setup_units(self):
        R = Rec()
        for b in range(1, 4):
            R(f"v_add_u32 v{VK[b]}, {b * 28672}, v{VL16}")
        for n in range(1, 8):
            R(f"v_add_u32 v{VV[n]}, {n * 14336}, v{VV0}")
        for j in range(4):
            R(f"""
            s_add_u32 s0, s{S_GW}, {j + 1}
            s_and_b32 s0, s0, 3
            s_mul_i32 s0, s0, 12288
            s_add_u32 s0, s0, {L_OP + (j % 3) * 4096}
            v_add_u32 v{VXA + j}, s0, v{VL16}
            """)
        self.sync_addresses(M_AS, A=R, T=0)
        R(f"""
        s_and_b32 s0, s{S_HEAD}, 1
        v_lshrrev_b32 v{VMLO}, 5, v0
        v_or_b32 v{VMHI}, s0, v{VMLO}
        v_xor_b32 v{VMHI}, s0, v{VMHI}
        v_add_u32 v{VMHI}, -1, v{VMHI}
        v_xor_b32 v{VMLO}, 1, v{VMLO}
        v_and_b32 v{VMLO}, s0, v{VMLO}
        v_add_u32 v{VMLO}, -1, v{VMLO}
        v_and_b32 v{VGAD}, 31, v0
        v_lshlrev_b32 v{VGAD}, 2, v{VGAD}
        """)
        R(f"""
        v_and_b32 v{VONE}, 31, v0
        v_cmp_eq_u32 s[0:1], 28, v{VONE}
        v_mov_b32 v{VONE}, 0x3f803f80
        v_cndmask_b32 v{VONE}, 0, v{VONE}, s[0:1]
        """)
        return R.units, [[f"v_mov_b32 v{VB + r}, v{VONE}"] for r in range(32)]

    def first_loads(self):
        q = lambda j: [[f"buffer_load_dwordx4 {vr(QF + 8 * j + 4 * t, 4)}, v{VL16}, {sr(SRD_WS, 4)}, s{S_Q + j} offen"
                        f"{' offset:1024' * t}{LD}"] for t in range(2)]
        k = lambda b: [[x] for x in self.k_load(b)]
        return q(0) + k(0) + q(1) + [self.v_load(0)] + q(2) + q(3) + k(1) + \
            [[f"buffer_load_dword v{VGA}, v{VGAD}, {sr(SRD_WS, 4)}, s{S_AG} offen{LD}"]]

    def mask_q(self, j):
        self.wait_pair(QF + 8 * j)
        for r, m in ((0, VMLO), (1, VMLO), (6, VMHI), (7, VMHI)):
            self.A(f"v_and_b32 v{QF + 8 * j + r}, v{QF + 8 * j + r}, v{m}")

    def attn_main(self):
        A = self.A
        todo = [x for kt in range(1, 16) for x in (("v", kt, 4 * kt - 12), ("k", kt + 1, 4 * kt - 10)) if x[1] < 16]
        base = 0

        def loads(i, kind):
            nonlocal base
            if not todo or todo[0][2] > i or (todo[0][2] == i and todo[0][0] != kind) or issued[0] == i:
                return []
            kd, kt, _ = todo.pop(0)
            issued[0] = i
            o = []
            if kt >> 2 != base:
                base = kt >> 2
                o.append(f"s_add_u32 s{S_OFF}, s{S_OFF}, {4 * 28672}")
            return o + (self.v_load(kt & 3) if kd == "v" else self.k_load(kt & 3))

        issued = [-1]
        for i in range(64):
            kt, b, j = i >> 2, (i >> 2) & 3, i & 3
            seq = []
            if i < 3:
                self.mask_q(i + 1)
            if i < 63:
                if j == 3:
                    self.wait_pair(KB + 8 * ((b + 1) & 3))
                seq.append(self.qk(i + 1, 0))
            seq += self.grp(i, 0)
            if i:
                seq.append(self.pv(i - 1, 1))
            seq += loads(i, "v")
            seq += self.grp(i, 1)
            if i < 63:
                seq.append(self.qk(i + 1, 1))
            seq += loads(i, "k")
            seq += self.grp(i, 2)
            for x in seq:
                A(x)
            if j == 0:
                self.wait_pair(VB + 8 * b)
            A(self.pv(i, 0, first=i < 4))
            if i == 4:
                A(f"ds_write_b32 v{VHW}, v{VHW}")
            if i in (0, 4, 8, 16):
                self.stamp(A, f"a_t{i}")
            g3 = self.grp(i, 3)
            if i > 60:
                w = [f"ds_write_b128 v{VXA + j - 1}, {vr(OA + 16 * (j - 1) + 4 * q, 4)} offset:{1024 * q}" for q in range(4)]
                g3 = [g3[0], w[0], g3[1], w[1], g3[2], w[2], g3[3], w[3]] + g3[4:]
            for x in g3:
                A(x)
            if i == 63:
                self.pad("loop")
                A(f"ds_write_b32 v{VSW}, v{VSW}")
        assert not todo
        load = f"ds_read_b32 v6, v{VSR}"
        tok = A(load)
        A(self.pv(63, 1))
        self.stamp(A, "a_loop")
        self.stamp(A, "rt_loop")
        self.check_words(load, "v_cmp_eq_u32 vcc, 0, v6", tok)
        self.stamp(A, "a_sync")

    def lds_sync(self, value_reg, cmp_, VSW=VSW, VSR=VSR):
        A = self.A
        A(f"ds_write_b32 v{VSW}, v{value_reg}")
        load = f"ds_read_b32 v6, v{VSR}"
        tok = A(load)
        self.check_words(load, cmp_, tok)

    def sync_addresses(self, base, VSW=VSW, VSR=VSR, A=None, T=S_T):
        (A or self.A)(f"""
        s_lshl_b32 s{T}, s{S_GW}, 8
        s_add_u32 s{T}, s{T}, {base}
        v_lshl_add_u32 v{VSW}, v0, 2, s{T}
        v_and_b32 v{VSR}, 3, v0
        v_lshlrev_b32 v{VSR}, 8, v{VSR}
        v_add_u32 v{VSR}, {base}, v{VSR}
        """)

    def attn_finish(self):
        A = self.A
        R, O = VB, OA + 48
        order = [3, 0, 1, 2]
        for q in order:
            for p in range(3):
                A(f"ds_read_b128 {vr(R + 16 * p + 4 * q, 4)}, v{VXA + 3} offset:{4096 * p + 1024 * q}")
        for n, q in enumerate(order):
            for k in range(4):
                A(f"v_add_f32 v{R + 4 * q + k}, v{R + 4 * q + k}, v{R + 16 + 4 * q + k}")
            for k in range(4):
                A(f"v_add_f32 v{O + 4 * q + k}, v{O + 4 * q + k}, v{R + 32 + 4 * q + k}")
            for k in range(4):
                A(f"v_add_f32 v{O + 4 * q + k}, v{O + 4 * q + k}, v{R + 4 * q + k}")
            if n == 0:
                A(f"v_mov_b32 v8, v{O + 12}")
                A(f"v_mov_b32 v9, v{O + 12}")
            if n == 1:
                A("v_permlane32_swap_b32 v8, v9")
                A("v_rcp_f32 v12, v9")
            if n == 2:
                A(f"v_med3_f32 v8, v9, s{S_LO}, v{VHI}")
                A(f"v_mul_f32 v12, v12, v{VGA}")
                A("v_cmp_neq_f32 vcc, v8, v9")
        A(f"s_cbranch_vccnz {self.name}_slow")
        A(f"{self.name}_a_fin:")
        for hf in range(2):
            for r in range(8 * hf, 8 * hf + 8):
                A(f"v_mul_f32 v{O + r}, v{O + r}, v12")
            for jj in range(4 * hf, 4 * hf + 4):
                A(f"v_cvt_pk_bf16_f32 v{PB + jj}, v{O + 2 * jj}, v{O + 2 * jj + 1}")
            if hf == 0:
                A(f"buffer_store_dwordx4 {vr(PB, 4)}, v{VL16}, {sr(SRD_WS, 4)}, s{S_OO} offen{ST}")
        A(f"""
        s_mov_b32 exec_lo, 0
        v_mov_b64 {vr(PB + 6, 2)}, 0
        s_mov_b32 exec_lo, -1
        buffer_store_dwordx4 {vr(PB + 4, 4)}, v{VL16}, {sr(SRD_WS, 4)}, s{S_OO} offen offset:1024{ST}
        """)
        self.stamp(A, "a_st")
        self.tail_setup(0)
        A("s_waitcnt vmcnt(0)")
        self.one_lane_store(1, S_OF, tmp=8)

    def slow_path(self):
        A = self.A
        O, Q = OA + 48, QF + 24
        A.clear()
        A(f"{self.name}_slow:")
        A("s_waitcnt vmcnt(0) lgkmcnt(0)")
        A(f"s_mul_i32 s{S_T}, s{S_GW}, {16 * 28672}")
        for d in (SRD_K, SRD_V):
            A(f"s_sub_u32 s{d}, s{d}, s{S_T}")
            A(f"s_subb_u32 s{d + 1}, s{d + 1}, 0")
            A(f"s_mov_b32 s{d + 2}, {64 * 28672}")
        for r in range(8):
            A(f"v_mov_b32 v{VB + r}, v{VONE}")
        A(f"v_mov_b32 v{VM}, 0xff800000")
        for sub in (0, 1):
            lab = self.lab("slowloop")
            A(f"s_mov_b32 s{S_OFF}, 0")
            if sub:
                for r in range(16):
                    A(f"v_mov_b32 v{O + r}, 0")
            A(f"{lab}:")
            for x in self.k_load(0) + (self.v_load(0) if sub else []):
                A(x)
            A(mfma(SB, KB, Q, "0"))
            A(mfma(SB, KB + 4, Q + 4))
            if not sub:
                for r in range(0, 16, 2):
                    A(f"v_max3_f32 v{VM}, v{SB + r}, v{SB + r + 1}, v{VM}")
            else:
                for r in range(16):
                    A(f"v_sub_f32 v{SB + r}, v{SB + r}, v{VM}")
                for g in range(4):
                    for x in self.grp(0, g):
                        A(x)
                A(mfma(O, VB, PB))
                A(mfma(O, VB + 4, PB + 4))
            A(f"s_add_u32 s{S_OFF}, s{S_OFF}, 28672")
            A(f"s_cmp_lt_u32 s{S_OFF}, {64 * 28672}")
            A(f"s_cbranch_scc1 {lab}")
            if not sub:
                A(f"v_mov_b32 v9, v{VM}")
                A(f"v_permlane32_swap_b32 v9, v{VM}")
                A(f"v_max_f32 v{VM}, v9, v{VM}")
        A(f"""
        v_mov_b32 v8, v{O + 12}
        v_mov_b32 v9, v{O + 12}
        v_permlane32_swap_b32 v8, v9
        v_rcp_f32 v12, v9
        v_mul_f32 v12, v12, v{VGA}
        s_branch {self.name}_a_fin
        """)

    @staticmethod
    def slot(ks):
        k = ks % 13
        return ("A", k) if k < 6 else ("B", k - 6)

    def wd_dma(self, ks):
        reg, sl = self.slot(ks)
        return [f"s_add_u32 m0, s{S_RA if reg == 'A' else S_RB}, {sl * 2048}",
                f"s_add_u32 s0, s{S_WDO}, {ks * 16 * 896}",
                f"buffer_load_dwordx4 v{VDW0}, {sr(SRD_WD, 4)}, s0 offen lds",
                f"buffer_load_dwordx4 v{VDW1}, {sr(SRD_WD, 4)}, s0 offen offset:1024 lds"]

    def wo_dma(self, n):
        return [f"s_add_u32 m0, s{S_RB}, {n * 2048}",
                f"s_add_u32 s{S_T}, s{S_WOO}, {n * 16 * 896}",
                f"buffer_load_dwordx4 v{VDW0}, {sr(SRD_WO, 4)}, s{S_T} offen lds",
                f"buffer_load_dwordx4 v{VDW1}, {sr(SRD_WO, 4)}, s{S_T} offen offset:1024 lds"]

    def h_load(self, ks):
        b = HB + 8 * (ks % 10)
        return [f"s_add_u32 s{S_T}, s{S_HOFF}, {ks * 1024}",
                f"buffer_load_dwordx4 {vr(b, 4)}, v{VH0}, {sr(SRD_WS, 4)}, s{S_T} offen{LD}",
                f"buffer_load_dwordx4 {vr(b + 4, 4)}, v{VH1}, {sr(SRD_WS, 4)}, s{S_T} offen{LD}"]

    def gemm_start(self, e2):
        A = self.A
        tok = None
        for x in (e2[0] + e2[1] if e2 else sum([self.wd_dma(ks) for ks in range(6)], [])):
            tok = A(x)
        A("s_setprio 2")
        for ks in range(6, 6 + self.opt.get("gearly", 0)):
            for x in self.wd_dma(ks):
                A(x)
        self.precompute(A, 1)
        A.wait_tok(tok)

    def gemm_main(self):
        A = self.A
        toks = {}
        A.clear()
        first = 6 + self.opt.get("gearly", 0)
        for ks in range(6, first):
            for _ in range(2):
                A.nid += 1
                A.vm.append([A.nid, set()])
                toks[ks] = A.nid

        def issue(lst, key=None):
            for x in lst:
                t = A(x)
                if t and key is not None:
                    toks[key] = t

        def trr(ks):
            reg, sl = self.slot(ks)
            a = VAWA if reg == "A" else VAWB
            b = WBUF + 8 * (ks % 10)
            o = sl * 2048
            A.wait_tok(toks.get(ks))
            issue([f"ds_read_b64_tr_b16 {vr(b, 2)}, v{a} offset:{o}",
                   f"ds_read_b64_tr_b16 {vr(b + 2, 2)}, v{a} offset:{o + 1024}",
                   f"ds_read_b64_tr_b16 {vr(b + 4, 2)}, v{a + 1} offset:{o}",
                   f"ds_read_b64_tr_b16 {vr(b + 6, 2)}, v{a + 1} offset:{o + 1024}"], ("r", ks))

        def dma(ks):
            if ks >= 13:
                A.wait_tok(toks[("r", ks - 13)])
            issue(self.wd_dma(ks), ks)

        def mm(ks):
            for jj in range(4):
                A(mfma(ACC + 16 * jj, WBUF + 8 * (ks % 10) + 4 * (jj & 1), HB + 8 * (ks % 10) + 4 * (jj >> 1),
                       "0" if ks == 0 else None))

        A(f"""
        ds_write_b32 v{VHW}, v{VHW}
        v_xor_b32 v5, 64, v{VTR}
        v_add_u32 v{VAWA}, s{S_RA}, v{VTR}
        v_add_u32 v{VAWA + 1}, s{S_RA}, v5
        v_and_b32 v13, 7, v0
        v_lshlrev_b32 v13, 8, v13
        v_add_u32 v13, {M_HW}, v13
        """)
        for ks in range(6):
            trr(ks)
        A(f"""
        v_mov_b32 v{GL16}, v{VL16}
        v_add_u32 v{VAWB}, s{S_RB}, v{VTR}
        v_add_u32 v{VAWB + 1}, s{S_RB}, v5
        s_lshr_b32 s{S_T}, s{S_GW}, 1
        s_mul_i32 s{S_T}, s{S_T}, 114688
        v_add_u32 v{VH0}, s{S_T}, v{GL16}
        s_sub_u32 s{S_T}, 114688, s{S_T}
        v_add_u32 v{VH1}, s{S_T}, v{GL16}
        """)
        self.sync_addresses(M_GS, GSW, GSR)
        load = "ds_read_b32 v6, v13"
        tk = A(load)
        self.check_words(load, "v_cmp_eq_u32 vcc, 0, v6", tk, nap=1)
        self.one_lane_store(2, S_F1, wave=4)
        self.stamp(A, "g_hw")
        A(f"s_cmp_ge_u32 s{S_NB}, 7")
        A(f"s_cbranch_scc1 {self.name}_exit")
        A(f"""
        v_and_b32 v5, 31, v0
        v_lshlrev_b32 v5, 2, v5
        buffer_load_dword v{VG}, v5, {sr(SRD_WS, 4)}, s{S_GOFF} offen{LD}
        """)
        A(f"v_add_u32 v{VPW}, s{S_RA}, v{GL16}")
        A(f"v_subrev_u32 v{VGATE}, {M_GS - M_AS}, v{GSR}")
        for jj in range(1, 4):
            A(f"""
            s_xor_b32 s{S_T}, s{S_GW}, {jj}
            s_mul_i32 s{S_T}, s{S_T}, 12288
            s_add_u32 s{S_T}, s{S_T}, {L_RING + 4096 * (jj - 1)}
            v_add_u32 v{VPR + jj - 1}, s{S_T}, v{GL16}
            """)
        self.tail_setup(1)
        deep = self.opt.get("gdeep", 3)
        for ks in range(first, 23):
            if 6 <= ks - 7 < 10:
                trr(ks - 7)
            A.wait_tok(toks.get(ks - deep))
            dma(ks)
        self.stamp(A, "g_dma")
        tok = self.masked("15", POLL)
        self.check_words(POLL, "v_cmp_ne_u32 vcc, 2, v6", tok, mask="15", nap=2)
        A(f"v_sub_f32 v{VG}, 1.0, v{VG}")
        self.stamp(A, "g_flags")
        self.stamp(A, "rt_gflags")
        A("s_setprio 0")
        nh = self.opt.get("nh", 3)
        for ks in range(nh):
            issue(self.h_load(ks))
        ramp = 28 - NDEF - (10 - nh)
        for ks in range(28 - NDEF):
            mm(ks)
            for _ in range(2 if ks >= ramp else 1):
                if nh < 28:
                    assert nh - 10 <= ks
                    issue(self.h_load(nh))
                    nh += 1
            trr(ks + 10)
            if 1 <= ks <= 5:
                dma(ks + 22)
        assert nh == 28
        A.wait_tok(toks[("r", 25)])
        for n in range(7):
            issue(self.wo_dma(n))
        A("s_waitcnt lgkmcnt(0)")
        self.stamp(A, "g_pre")
        self.stamp(A, "rt_gpre")
        load = f"ds_read_b32 v6, v{VGATE}"
        tk = A(load)
        self.check_words(load, "v_cmp_eq_u32 vcc, 0, v6", tk, nap=2)
        wr = []
        for jj in (1, 2, 3, 0):
            for n, ks in enumerate(range(28 - NDEF, 28)):
                A(mfma(ACC + 16 * jj, WBUF + 8 * (ks % 10) + 4 * (jj & 1), HB + 8 * (ks % 10) + 4 * (jj >> 1)))
                if n >= 2 and wr:
                    A(wr.pop(0))
            assert not wr
            wr = [f"ds_write_b128 v{VPW}, {vr(ACC + 16 * jj + 4 * q, 4)} offset:{4096 * (jj - 1) + 1024 * q}" for q in range(4)]
            if jj == 3:
                wr.append(f"ds_write_b32 v{GSW}, v{GSW}")
        self.stamp(A, "g_loop")
        self.stamp(A, "rt_gloop")
        load = f"ds_read_b32 v6, v{GSR}"
        self.check_words(load, "v_cmp_eq_u32 vcc, 0, v6", A(load))
        for q in range(4):
            for jj in range(1, 4):
                A(f"ds_read_b128 {vr(ACC + 16 * jj + 4 * q, 4)}, v{VPR + jj - 1} offset:{1024 * q}")
        for q in range(4):
            r0 = (4 * q, 4 * q + 2)
            for r in r0:
                A(f"v_pk_add_f32 {vr(ACC + 16 + r, 2)}, {vr(ACC + 16 + r, 2)}, {vr(ACC + 32 + r, 2)}")
            for r in r0:
                A(f"v_pk_add_f32 {vr(ACC + r, 2)}, {vr(ACC + r, 2)}, {vr(ACC + 48 + r, 2)}")
            for r in r0:
                A(f"v_pk_add_f32 {vr(ACC + r, 2)}, {vr(ACC + r, 2)}, {vr(ACC + 16 + r, 2)}")
            for r in r0:
                A(f"v_pk_mul_f32 {vr(ACC + r, 2)}, {vr(ACC + r, 2)}, {vr(VG, 2)} op_sel_hi:[1,0]")

    def tail_setup(self, role):
        A = self.A
        A(f"""
        s_lshl_b32 s{S_T}, s{S_MB}, 5
        s_add_u32 s{S_T}, s{S_T}, s{S_GW}
        s_lshl_b32 s{S_MO}, s{S_T}, 7
        s_add_u32 s{S_MO}, s{S_MO}, {FLAG_O + role * 2048}
        v_lshlrev_b32 v{VTP if role else 5}, 9, v0
        s_lshl_b32 s{10 if role else S_T3}, s{S_T}, 11
        s_add_u32 s{10 if role else S_T3}, s{10 if role else S_T3}, {WS_O + role * 32768}
        s_lshl_b32 s{11 if role else S_T2}, s{S_GW}, 11
        """)
        if role == 1:
            srd(A, SRD_OUT, P_OUT, S * D * 2)
            A(f"""
            s_lshr_b32 s{S_T}, s{S_GW}, 1
            s_lshl_b32 s{S_OFF}, s{S_T}, 15
            s_add_u32 s{S_OFF}, s{S_OFF}, {L_O}
            v_add_u32 v14, s{S_OFF}, v{GL16}
            s_mul_i32 s{S_T}, s{S_GW}, 2560
            s_add_u32 s{S_T}, s{S_T}, {L_TR}
            v_and_b32 v7, 31, v0
            v_mul_u32_u24 v7, 80, v7
            v_lshrrev_b32 v8, 5, v0
            v_lshl_add_u32 v7, v8, 5, v7
            v_add_u32 v7, s{S_T}, v7
            v_lshrrev_b32 v4, 2, v0
            v_and_b32 v15, 3, v0
            v_lshlrev_b32 v15, 4, v15
            v_mul_u32_u24 v8, 80, v4
            v_add_u32 v8, v8, v15
            v_add_u32 v8, s{S_T}, v8
            v_mul_u32_u24 v4, 896, v4
            v_add_u32 v{VOUT}, v4, v15
            s_add_u32 s{S_OFF}, s{S_OUTO}, {16 * 896}
            """)

    def tail(self, role):
        A = self.A
        L16 = GL16 if role else VL16
        load = f"buffer_load_dword v6, v{VTP if role else 5}, {sr(SRD_WS, 4)}, s{S_MO} offen sc1"
        if role == 1:
            A("s_waitcnt vmcnt(0)")
        tok = self.masked("15", load)
        A.wait(lg=0)
        self.stamp(A, "t_bar0")
        A("s_barrier")
        self.stamp(A, "t_bar1")
        self.check_words(load, "v_cmp_ne_u32 vcc, 1, v6", tok, mask="15")
        self.stamp(A, "t_flag")
        self.stamp(A, "rt_tflag")
        toks = []
        for step in range(4):
            A(f"s_add_u32 m0, s{11 if role else S_T2}, {L_O + role * 32768 + step * 8192}")
            A(f"s_add_u32 s{S_T}, s{10 if role else S_T3}, {step * 8192}")
            for q in range(2):
                t = A(f"buffer_load_dwordx4 v{L16}, {sr(SRD_WS, 4)}, s{S_T} offen offset:{1024 * q} sc1 lds")
            toks.append(t)
        A.wait_tok(toks[0])
        A("s_barrier")
        self.stamp(A, "t_odata")
        self.stamp(A, "rt_odata")
        if role == 0:
            for step in range(1, 4):
                A.wait_tok(toks[step])
                A("s_barrier")
            return

        def rd(k):
            o = (28 * (k >> 1) + 16 * (k & 1)) * 128
            b = k % 4
            return [f"ds_read_b128 {vr(TB_ + 4 * b, 4)}, v14 offset:{k * 1024}",
                    f"ds_read_b64_tr_b16 {vr(TA_ + 4 * b, 2)}, v{VTR} offset:{o}",
                    f"ds_read_b64_tr_b16 {vr(TA_ + 4 * b + 2, 2)}, v{VTR} offset:{o + 1024}"]

        for k in range(3):
            for x in rd(k):
                A(x)
        for k in range(32):
            A(mfma(ACC, TA_ + 4 * (k % 4), TB_ + 4 * (k % 4)))
            if k + 3 < 32:
                if (k + 3) % 8 == 0:
                    A.wait_tok(toks[(k + 3) // 8])
                    A("s_barrier")
                for x in rd(k + 3):
                    A(x)
        self.stamp(A, "t_mm")
        for hf in range(2):
            for jj in range(4):
                A(f"v_cvt_pk_bf16_f32 v{TA_ + 4 * hf + jj}, v{ACC + 8 * hf + 2 * jj}, v{ACC + 8 * hf + 2 * jj + 1}")
            A(f"ds_write_b128 v7, {vr(TA_ + 4 * hf, 4)} offset:{16 * hf}")
        for q in range(2):
            A(f"ds_read_b128 {vr(TB_ + 4 * q, 4)}, v8 offset:{16 * 80 * q}")
        for q in range(2):
            A(f"buffer_store_dwordx4 {vr(TB_ + 4 * q, 4)}, v{VOUT}, {sr(SRD_OUT, 4)}, s{S_OFF if q else S_OUTO} offen{('', ' sc1', ' nt', ' sc0 sc1')[self.opt.get('ost', 0)]}")

    def finish(self):
        A = self.A
        if self.opt.get("pad_end"):
            A("s_waitcnt vmcnt(0)")
            self.pad("end")
        if self.stamp.enabled:
            A("s_waitcnt vmcnt(0)")
            self.stamp(A, "t_end")
            self.stamp(A, "rt_end")
            self.stamp.flush(A)
        A("s_endpgm")

    def build(self):
        A, name = self.A, self.name
        A(f".globl {name}\n.p2align 8\n.type {name},@function\n{name}:")
        A("s_cmp_ge_u32 s2, 256")
        A(f"s_cbranch_scc1 {name}_exit")
        if any(k.startswith("pad_") for k in self.opt):
            A("s_memrealtime s[96:97]")
        self.stamp(A, "rt0")
        self.stamp(A, "t0")
        p1.SX = self.opt.get('sx')
        p1.decode(A)
        A(f"s_cmp_ge_u32 s{p1.S_CG}, 14")
        A(f"s_cbranch_scc1 {name}_q")
        st0 = A.save()
        p1.programs(A, "KV", ST + self.opt.get("ntkv", 0) * " nt", self.hooks(True), self.opt)
        A.restore(st0)
        A(f"{name}_q:")
        p1.programs(A, "Q", ST + self.opt.get("ntq", 0) * " nt", self.hooks(False), self.opt)
        if self.opt.get("p1exit") or self.opt.get("p2exit"):
            for f in self.late:
                A.clear()
                f(A)
            A(f"{name}_exit:")
            A("s_endpgm")
            pads = A.fix_hazards()
            return A.text(), kernel_desc(name), pads
        e2 = p1.final_epilogue(ST + self.opt.get("ntkv", 0) * " nt")
        A.clear()
        self.target(A, f"{name}_a_plain")
        for x in sum(sum(self.setup_units(), []), []):
            A(x)
        A(f"s_branch {name}_a_poll")
        self.target(A, f"{name}_a_late")
        for x in e2[0] + e2[1]:
            A(x)
        self.target(A, f"{name}_a_poll", inline=True)
        tok = self.masked(POLLMASK, POLL)
        self.check_words(POLL, "v_cmp_eq_u32 vcc, 0, v6", tok, mask=POLLMASK)
        self.stamp(A, "a_flags")
        self.stamp(A, "rt_aflags")
        A(f"s_mov_b32 s{S_OFF}, 0")
        for x in sum(self.first_loads(), []):
            A(x)
        A(f"ds_write_b32 v{VHW}, v{VHW}")
        A(f"s_branch {name}_a_go")
        plain = A.save()
        A.clear()
        self.target(A, f"{name}_a_e2")
        self.masked(POLLMASK, "v_cmp_eq_u32 vcc, 0, v6")
        A(f"s_cbranch_vccnz {name}_a_late")
        self.stamp(A, "a_flags")
        self.stamp(A, "rt_aflags")
        A(f"s_mov_b32 s{S_OFF}, 0")
        work = e2[0][:-2] + e2[1][:-2]
        fl = self.first_loads()
        step = self.opt.get("lstep", 9)
        for k, x in enumerate(work):
            if k % step == 0 and fl:
                for y in fl.pop(0):
                    A(y)
            A(x)
        assert not fl
        for x in e2[0][-2:] + e2[1][-2:]:
            A(x)
        self.stamp(A, "a_e2b")
        assert [x for x in A.state()[0] if x] == [tuple(sorted(e[1])) for e in plain[0]]
        A.restore(plain)
        A.lg = []
        self.target(A, f"{name}_a_go", inline=True)
        A(f"s_mov_b32 s{S_LO}, {f32(2.0 ** -30)}")
        A(f"v_mov_b32 v{VHI}, {f32(2.0 ** 30)}")
        self.mask_q(0)
        A(self.qk(0, 0))
        A(self.qk(0, 1))
        A("s_setprio 1")
        self.stamp(A, "a_first")
        self.stamp(A, "rt_afirst")
        self.attn_main()
        self.attn_finish()
        self.stamp(A, "a_pub")
        self.stamp(A, "rt_pub")
        A(f"s_cmp_ge_u32 s{S_NB}, 7")
        A(f"s_cbranch_scc1 {name}_a_done")
        self.tail(0)
        A(f"{name}_a_done:")
        self.finish()
        A.clear()
        self.target(A, f"{name}_g_plain")
        self.gemm_start(None)
        A(f"s_branch {name}_g_go")
        A.clear()
        self.target(A, f"{name}_g_e2")
        self.gemm_start(e2)
        self.target(A, f"{name}_g_go", inline=True)
        self.gemm_main()
        self.tail(1)
        self.finish()
        self.slow_path()
        k = 0
        while k < len(self.late):
            A.clear()
            self.late[k](A)
            k += 1
        A(f"{name}_exit:")
        A("s_endpgm")
        pads = A.fix_hazards()
        return A.text(), kernel_desc(name), pads


HEADER = open("gated_mix__mha_block__glu_gated_geglu__prompt.s.ref").read().split("; Override")[0]


def main():
    diag = "diag" in sys.argv
    name = "gated_mix__mha_block__glu_gated_geglu__prompt_kernel"
    sets = {"diag": "rt0 t0 p1_pass2 a_flags a_first a_loop a_pub t_flag t_end rt_end g_hw g_dma g_flags g_pre g_loop",
            "diagt": "rt0 t0 a_first a_loop a_sync a_st a_pub t_bar0 t_bar1 t_flag t_odata t_mm t_end g_loop rt_end",
            "diagp": "rt0 t0 p1_pass1 p2_4 p2_8 p2_16 p1_pass2 a_flags a_first a_loop t_end rt_end",
            "diagb": "rt0 t0 b2_pre b2_vm b2_post b3_pre b3_vm t_end rt_end",
            "diagc": "rt0 t0 b5_pre b5_vm b5_post b7_pre b7_vm t_end rt_end",
            "diagd": "rt0 t0 p2_4 c7_pre c7_vm c7_post p2_8 t_end rt_end",
            "diage": "rt0 t0 c9_pre c9_vm c9_post c15_pre c15_vm t_end rt_end",
            "diagr": "rt0 t0 p1_first p1_pass1 rt_first rt_pass1 t_end rt_end",
            "diagz": "rt0 rt_end",
            "diagrt": "rt0 rt_first rt_pass1 rt_pubq rt_pass2 rt_aflags rt_afirst rt_loop rt_pub rt_tflag rt_odata rt_end rt_gflags rt_gpre",
            "diags": "rt0 t0 p1_pass1 p1_pass2 rt_pass1 rt_pass2 p2_8 t_end rt_end",
            "diaga": "rt0 t0 p1_pass2 a_flags a_e2b a_first a_t0 a_t4 a_t8 a_t16 t_end rt_end",
            "diagru": "rt0 rtkarg rtdma0 rtpro rtvm0 rt_first rtb1 rt_end",
            "diagrv": "rt0 rtb1 rtb2 rtb3 rtb4 rtb5 rtb6 rt_end",
            "diagq": "rt0 t0 karg dma0 p1_first p1_pass1 p2_4 t_end rt_end"}
    which = [a for a in sys.argv if a in sets]
    diag = bool(which)
    st = Stamps(diag, sets[which[0]].split() if diag else None)
    opt = {a.split("=")[0]: int(a.split("=")[1]) for a in sys.argv[1:] if "=" in a}
    g = Gen(name, st, opt)
    code, kd, pads = g.build()
    print(HEADER.rstrip())
    print("; @launch grid=(256,1,1) block=(512,1,1) lds=163840")
    if diag:
        print("; stamps: " + " ".join(st.only))
    print('.amdgcn_target "amdgcn-amd-amdhsa--gfx950"\n.text')
    print(code)
    print('.section .rodata,"a"\n.p2align 6')
    print(kd)


if __name__ == "__main__":
    main()
```

```python
from common import *

XF, ACC1, ACC2, WB = 144, 16, 64, 96
VDX0, VDX1, VDP, VDG, VDU = 120, 121, 122, 123, 124
VAX, VAP, VAG, VAGX, VL16, VSTV, VNC1 = 125, 129, 130, 132, 134, 135, 15
PK = 136
SRD_X, SRD_P, SRD_G, SRD_U, SRD_GW = 32, 36, 40, 44, 48
S_RB, S_CG, S_XO, S_PO, S_GO, S_W1K, S_W2K, S_T, S_RT, S_C, S_ST1, S_STH, S_T2, S_QS = range(52, 66)
S_ACT = 0
LX, LP, LQ = 0, 65536, 98304


SX = None


def decode(A):
    load_args(A, {SRD_X: 0, SRD_P: 8, SRD_G: 32, SRD_U: 40, SRD_GW: 56, SRD_WS: 80})
    A(f"""
    v_lshrrev_b32 v1, 6, v0
    v_and_b32 v0, 63, v0
    v_readfirstlane_b32 s{S_WAVE}, v1
    """)
    if SX is None:
        A(f"""
        s_bfe_u32 s{S_T}, s2, 0x20001
        s_lshl_b32 s{S_T}, s{S_T}, 2
        s_lshr_b32 s{S_CG}, s2, 6
        s_add_u32 s{S_CG}, s{S_CG}, s{S_T}
        """)
    else:
        A(f"""
        s_add_u32 s{S_T}, s2, {7 - SX}
        s_and_b32 s{S_T}, s{S_T}, 7
        s_lshl_b32 s{S_T}, s{S_T}, 1
        s_lshr_b32 s{S_CG}, s2, 7
        s_add_u32 s{S_CG}, s{S_CG}, s{S_T}
        """)


def x_addresses(A):
    if SX is None:
        A(f"""
        s_and_b32 s{S_T}, s2, 1
        s_lshl_b32 s{S_T}, s{S_T}, 3
        s_bfe_u32 s{S_RB}, s2, 0x30003
        s_add_u32 s{S_RB}, s{S_RB}, s{S_T}
        """)
    else:
        A(f"s_bfe_u32 s{S_RB}, s2, 0x40003")
    A(f"""
    v_lshrrev_b32 v2, 3, v0
    v_and_b32 v3, 7, v0
    v_lshrrev_b32 v5, 4, v0
    s_lshl_b32 s{S_T}, s{S_WAVE}, 4
    v_add_u32 v6, s{S_T}, v2
    v_mul_u32_u24 v6, 896, v6
    v_xor_b32 v7, v3, v5
    v_lshl_add_u32 v{VDX0}, v7, 4, v6
    v_xor_b32 v7, 4, v7
    v_lshl_add_u32 v{VDX1}, v7, 4, v6
    v_add_u32 v{VDX1}, {8 * 896 - 1024}, v{VDX1}
    s_mul_i32 s{S_XO}, s{S_RB}, {128 * 896}
    s_lshl_b32 s{S_W1K}, s{S_WAVE}, 10
    s_lshl_b32 s{S_W2K}, s{S_WAVE}, 11
    """)


def w_addresses(A, special):
    A(f"""
    v_and_b32 v4, 1, v5
    s_lshl_b32 s{S_T}, s{S_WAVE}, 3
    v_add_u32 v6, s{S_T}, v2
    v_lshlrev_b32 v7, 2, v4
    v_xor_b32 v7, v3, v7
    v_mul_u32_u24 v8, 2688, v6
    v_lshl_add_u32 v{VDP}, v7, 4, v8
    """)
    if not special:
        A(f"""
        v_lshlrev_b32 v7, 1, v4
        v_xor_b32 v7, v3, v7
        v_mul_u32_u24 v8, 3584, v6
        v_lshl_add_u32 v{VDG}, v7, 4, v8
        v_xor_b32 v{VDU}, 64, v{VDG}
        """)


def read_addresses(A):
    A(f"""
    v_and_b32 v2, 31, v0
    v_lshrrev_b32 v3, 5, v0
    s_lshl_b32 s{S_T}, s{S_RT}, 12
    v_lshl_add_u32 v4, v2, 7, s{S_T}
    v_bfe_u32 v5, v2, 1, 3
    v_xor_b32 v5, v5, v3
    """)
    for s in range(4):
        A(f"v_xor_b32 v6, {2 * s}, v5")
        A(f"v_lshl_add_u32 v{VAX + s}, v6, 4, v4")
    A(f"""
    v_and_b32 v2, 3, v0
    v_bfe_u32 v4, v0, 2, 2
    v_bfe_u32 v5, v0, 4, 1
    v_bfe_u32 v6, v0, 3, 1
    v_lshl_add_u32 v7, v3, 3, v4
    v_lshlrev_b32 v7, 7, v7
    s_lshl_b32 s{S_T}, s{S_C}, 3
    v_lshl_add_u32 v8, v5, 2, v2
    v_add_u32 v8, s{S_T}, v8
    v_lshlrev_b32 v9, 3, v6
    v_xor_b32 v8, v8, v9
    v_lshl_add_u32 v8, v8, 3, v7
    v_add_u32 v{VAP}, {LP}, v8
    """)


def gu_addresses(A, special):
    if special:
        A(f"""
        v_add_u32 v{VAG}, {LQ}, v8
        v_add_u32 v{VAG + 1}, {LQ + 8192}, v8
        v_mov_b32 v{VAGX}, v8
        v_add_u32 v{VAGX + 1}, 8192, v8
        """)
        return
    A(f"""
    v_add_u32 v8, s{S_T}, v2
    v_lshlrev_b32 v9, 2, v6
    v_xor_b32 v8, v8, v9
    v_lshlrev_b32 v9, 3, v5
    v_xor_b32 v8, v8, v9
    v_lshl_add_u32 v7, v5, 13, v7
    v_lshl_add_u32 v{VAGX}, v8, 3, v7
    v_xor_b32 v8, 4, v8
    v_lshl_add_u32 v{VAGX + 1}, v8, 3, v7
    v_add_u32 v{VAG}, {LQ}, v{VAGX}
    v_add_u32 v{VAG + 1}, {LQ}, v{VAGX + 1}
    v_mov_b32 v{VNC1}, {f32(-GELU_C1)}
    """)


def dma(m0base, m0s, voff, srd_, sbase, soff, imm=0, setm0=True):
    out = []
    if setm0:
        out.append(f"s_add_u32 m0, s{m0s}, {m0base}")
    out.append(f"s_add_u32 s{S_T2}, s{sbase}, {soff}")
    out.append(f"buffer_load_dwordx4 v{voff}, {sr(srd_, 4)}, s{S_T2} offen{' offset:%d' % imm if imm else ''} lds")
    return out


def stage_dma(stage, special, up=0):
    sl = stage % 4
    g = []
    g.append(dma(LX + sl * 16384 + up * 8192, S_W2K, VDX0, SRD_X, S_XO, stage * 128 + up * 64 * 896) +
             [f"buffer_load_dwordx4 v{VDX1}, {sr(SRD_X, 4)}, s{S_T2} offen offset:1024 lds"])
    k0 = stage * 64 + up * 32
    g.append(dma(LP + sl * 8192 + up * 4096, S_W1K, VDP, SRD_P, S_PO, k0 * 2688))
    q = LQ + sl * 16384 + up * 4096
    if special:
        g.append(dma(q, S_W1K, VDP, SRD_P, S_PO, k0 * 2688 + 128))
    else:
        g.append(dma(q, S_W1K, VDG, SRD_G, S_GO, k0 * 3584))
        g.append(dma(q + 8192, S_W1K, VDU, SRD_U, S_GO, k0 * 3584))
    return g


P2LOC = {0: (LX, 3), 1: (LQ, 3), 2: (LX, 0), 3: (LQ, 0), 4: (LX, 1), 5: (LQ, 1), 6: (LX, 2)}


def p2_dma(ch, special, up=0):
    reg, sl = P2LOC[ch]
    base = reg + sl * 16384 + up * 4096
    k0 = ch * 64 + up * 32
    if special:
        return [dma(base, S_W1K, VDP, SRD_P, S_PO, k0 * 2688 + 256),
                dma(base + 8192, S_W1K, VDP, SRD_P, S_GO, k0 * 2688)]
    return [dma(base, S_W1K, VDG, SRD_G, S_GO, k0 * 3584 + 128),
            dma(base + 8192, S_W1K, VDU, SRD_U, S_GO, k0 * 3584 + 128)]


def tr_reads(dst, addr, off):
    return [f"ds_read_b64_tr_b16 {vr(dst, 2)}, v{addr} offset:{off}",
            f"ds_read_b64_tr_b16 {vr(dst + 2, 2)}, v{addr} offset:{off + 512}"]


LA1, LA2 = 1, 1


def wb1(t):
    return WB + 12 * (t & 1) if LA1 == 1 else (WB + 12, ACC2, WB)[t % 3]


def reads1(t):
    ch, s = divmod(t, 4)
    sl = ch % 4
    b = wb1(t)
    return ([f"ds_read_b128 {vr(XF + 4 * t, 4)}, v{VAX + s} offset:{LX + sl * 16384}"] +
            tr_reads(b, VAP, sl * 8192 + s * 2048),
            tr_reads(b + 4, VAG, sl * 16384 + s * 2048),
            tr_reads(b + 8, VAG + 1, sl * 16384 + s * 2048))


def wb2(t, ntile):
    if ntile == 1:
        return WB + 4 * (t % 6)
    return WB + 12 * (t & 1) if LA2 == 1 else WB + 8 * (t % 3)


def reads2(t, ntile, img=0):
    if ntile == 1:
        ch, s = divmod(t % 28, 4)
        reg, sl = P2LOC[ch]
        return [tr_reads(wb2(t, 1), (VAGX if reg == LX else VAG) + t // 28, sl * 16384 + s * 2048)]
    ch, s = divmod(t, 4)
    reg, sl = P2LOC[ch]
    a = VAGX if reg == LX else VAG
    b = wb2(t, ntile)
    return [tr_reads(b + 4 * e, a + e, sl * 16384 + s * 2048) for e in range(ntile)]


def epi_gu(acc, pk, soff_expr, st):
    o = []
    T = [1, 2, 3, 4]
    for half in range(2):
        g = [acc + 4 * half + i for i in range(4)]
        u = [acc + 8 + 4 * half + i for i in range(4)]
        o += [f"v_mul_f32 v{T[i]}, v{g[i]}, v{g[i]}" for i in range(4)]
        o += [f"v_fmamk_f32 v{T[i]}, v{T[i]}, {f32(-GELU_C1 * GELU_C2)}, v{VNC1}" for i in range(4)]
        o += [f"v_mul_f32 v{T[i]}, v{T[i]}, v{g[i]}" for i in range(4)]
        o += [f"v_exp_f32 v{T[i]}, v{T[i]}" for i in range(4)]
        o += [f"v_mul_f32 v{u[i]}, v{g[i]}, v{u[i]}" for i in range(4)]
        o += [f"v_add_f32 v{T[i]}, 1.0, v{T[i]}" for i in range(4)]
        o += [f"v_rcp_f32 v{T[i]}, v{T[i]}" for i in range(4)]
        o += [f"v_mul_f32 v{u[i]}, v{u[i]}, v{T[i]}" for i in range(4)]
        o += [f"v_cvt_pk_bf16_f32 v{pk + 2 * half + i}, v{u[2 * i]}, v{u[2 * i + 1]}" for i in range(2)]
    o.append(f"s_add_u32 s{S_T}, s{S_STH}, {soff_expr}")
    o.append(f"buffer_store_dwordx4 {vr(pk, 4)}, v{VL16}, {sr(SRD_WS, 4)}, s{S_T} offen{st}")
    return o


def epi_qk(acc, scale, soff, st, base=None):
    o = []
    if scale:
        o += [f"v_mul_f32 v{acc + r}, s{S_QS}, v{acc + r}" for r in range(16)]
    o += [f"v_cvt_pk_bf16_f32 v{PK + j}, v{acc + 2 * j}, v{acc + 2 * j + 1}" for j in range(8)]
    o.append(f"s_add_u32 s{S_T}, s{base or S_ST1}, {soff}")
    for q in range(2):
        o.append(f"v_permlane32_swap_b32 v{PK + 4 * q}, v{PK + 4 * q + 2}")
        o.append(f"v_permlane32_swap_b32 v{PK + 4 * q + 1}, v{PK + 4 * q + 3}")
    for q in range(2):
        o.append(f"buffer_store_dwordx4 {vr(PK + 4 * q, 4)}, v{VL16}, {sr(SRD_WS, 4)}, s{S_T} offen offset:{1024 * q}{st}")
    return o


def epi_v(acc, st):
    o = [f"v_cvt_pk_bf16_f32 v{PK + j}, v{acc + 2 * j}, v{acc + 2 * j + 1}" for j in range(8)]
    o.append(f"s_add_u32 s{S_T}, s{S_ST1}, 14336")
    o.append(f"buffer_store_dwordx4 {vr(PK, 4)}, v{VSTV}, {sr(SRD_WS, 4)}, s{S_ST1} offen{st}")
    o.append(f"buffer_store_dwordx4 {vr(PK + 4, 4)}, v{VSTV}, {sr(SRD_WS, 4)}, s{S_T} offen{st}")
    return o


def final_epilogue(st):
    return epi_gu(ACC2, PK, 4096, st), epi_gu(ACC2 + 16, PK + 4, 5120, st)


def gate_loads(A):
    A(f"""
    s_lshl_b32 s10, s{S_RB}, 7
    s_lshl_b32 s11, s{S_CG}, 3
    s_add_u32 s10, s10, s11
    s_add_u32 s3, s10, s{S_WAVE}
    s_mul_i32 s10, s3, 896
    """)
    for r in range(136, 144, 2):
        A(f"v_mov_b64 {vr(r, 2)}, 0")
    A(f"""
    s_mov_b32 exec_hi, 0x00ffffff
    buffer_load_dwordx4 v[136:139], v{VL16}, {sr(SRD_X, 4)}, s10 offen
    buffer_load_dwordx4 v[140:143], v{VL16}, {sr(SRD_GW, 4)}, 0 offen
    s_mov_b64 exec, -1
    """)


def gate_compute(A, st):
    A("v_mov_b32 v1, 0")
    for i in range(4):
        A(f"v_dot2_f32_bf16 v1, v{136 + i}, v{140 + i}, v1")
    for m in ("row_shr:1 row_mask:0xf", "row_shr:2 row_mask:0xf", "row_shr:4 row_mask:0xf", "row_shr:8 row_mask:0xf",
              "row_bcast:15 row_mask:0xa", "row_bcast:31 row_mask:0xc"):
        A(f"v_add_f32_dpp v1, v1, v1 {m} bank_mask:0xf")
    A(f"""
    v_mul_f32 v1, {f32(-LOG2E)}, v1
    v_exp_f32 v1, v1
    s_lshl_b32 s3, s3, 2
    v_add_f32 v1, 1.0, v1
    v_rcp_f32 v1, v1
    s_add_u32 s3, s3, {WS_G}
    s_mov_b32 exec_lo, 0
    s_mov_b32 exec_hi, 0x80000000
    """)
    tok = A(f"buffer_store_dword v1, off, {sr(SRD_WS, 4)}, s3{st}")
    A("s_mov_b64 exec, -1")
    return tok


def programs(A, kinds, st, hooks, opt):
    global LA1, LA2
    LA1, LA2 = opt.get("la1", 2), opt.get("la2", 1)
    LA0, LA = opt.get("LA0", 2), opt.get("LA", 2)
    p2bars, pubbar, popstart = (7, 15), opt.get("pubbar", 9), opt.get("popstart", 4)
    dma_a = opt.get("dma_a", 1)
    stamp = hooks["stamp"]
    special = kinds == "Q"
    if special:
        dma_a = opt.get("dma_aq", 0)
        LA = opt.get("LAq", 2)
    ntile2 = 1 if special else 2
    toks = {}

    def issue(groups, key):
        for g in groups:
            for x in g:
                t = A(x)
                if t:
                    toks[key] = t

    def groups_of(stg, up):
        if stg < 7:
            return stage_dma(stg, special, up)
        if stg > 10:
            return []
        c0 = 2 * (stg - 7)
        return p2_dma(c0, special, up) + (p2_dma(c0 + 1, special, up) if c0 < 6 else [])

    x_addresses(A)
    w_addresses(A, special)
    if special:
        A(f"s_and_b32 s{S_PO}, s{S_CG}, 1")
        A(f"s_lshl_b32 s{S_PO}, s{S_PO}, 9")
        A(f"s_mov_b32 s{S_GO}, 384")
    else:
        A(f"s_lshl_b32 s{S_PO}, s{S_CG}, 7")
        A(f"s_add_u32 s{S_PO}, s{S_PO}, 896")
        A(f"s_lshl_b32 s{S_GO}, s{S_CG}, 8")
    srd_tail(A, SRD_X, S * D * 2)
    srd_tail(A, SRD_P, D * 3 * D * 2)
    if not special:
        srd_tail(A, SRD_G, D * F * 2)
        srd_tail(A, SRD_U, D * F * 2)
    pfpos = opt.get("pfpos", 1)
    if pfpos == 2:
        hooks["prefetch"](A, 0)
    A.wait(lg=0)
    stamp(A, "karg")
    stamp(A, "rtkarg")
    split = opt.get("split0", 0) and LA1 == 2
    g0 = groups_of(0, 0)
    if split:
        late = hooks["label"]("late")
        issue(g0[:1], "x0")
        A(f"s_cmp_ge_u32 s{S_WAVE}, 4")
        A(f"s_cbranch_scc1 {late}")
        sv = A.save()
        issue(g0[1:], 0)
        A(f"{late}:")
        A.restore(sv)
    else:
        issue(g0, 0)
    stamp(A, "dma0")
    stamp(A, "rtdma0")
    srd_tail(A, SRD_GW, D * 2)
    srd_tail(A, SRD_WS, WS_BYTES)
    A(f"""
    v_lshlrev_b32 v{VL16}, 4, v0
    s_and_b32 s{S_RT}, s{S_WAVE}, 3
    s_lshr_b32 s{S_C}, s{S_WAVE}, 2
    s_cselect_b32 s{S_ROLE}, 1, 0
    """)
    hooks["entry"](A)
    for stg in range(1, LA0):
        A("s_barrier")
        if split:
            early = hooks["label"]("early")
            A(f"s_cmp_lt_u32 s{S_WAVE}, 4")
            A(f"s_cbranch_scc1 {early}")
            issue(g0[1:], 0)
            A(f"{early}:")
        if pfpos == 0:
            hooks["prefetch"](A, 0)
        issue(groups_of(stg, 0), stg)
        if pfpos == 1:
            hooks["prefetch"](A, 0)
    if opt.get("gatepos", 0) == 0:
        gate_loads(A)
    read_addresses(A)
    gu_addresses(A, special)
    labels = {(k, r): hooks["label"](f"{k}{r}_") for k in kinds for r in (0, 1)}
    hooks["prologue"](A, special, [labels[k] for k in labels][1:])

    def side_work(kind, role):
        A = Rec()
        S_T, S_T2 = 0, 1
        A(f"s_lshl_b32 s{S_T}, s{S_RB}, 2")
        A(f"s_add_u32 s{S_T}, s{S_T}, s{S_RT}")
        A(f"s_mul_i32 s{S_ST1}, s{S_T}, 28672")
        if special:
            A(f"s_add_u32 s{S_STH}, s{S_ST1}, {role << 11}")
            A(f"s_lshl_b32 s{S_T}, s{S_PO}, 5")
            A(f"s_add_u32 s{S_ST1}, s{S_STH}, s{S_T}")
            A(f"s_mov_b32 s{S_QS}, {f32(QSCALE)}")
        else:
            A(f"s_mul_i32 s{S_STH}, s{S_T}, 114688")
            A(f"s_lshl_b32 s{S_T}, s{S_CG}, 13")
            A(f"s_add_u32 s{S_STH}, s{S_STH}, s{S_T}")
            A(f"s_add_u32 s{S_STH}, s{S_STH}, {WS_H + (role << 11)}")
            if kind == "K":
                A(f"s_lshl_b32 s{S_T}, s{S_CG}, 12")
                A(f"s_add_u32 s{S_ST1}, s{S_ST1}, s{S_T}")
                A(f"s_add_u32 s{S_ST1}, s{S_ST1}, {WS_K + (role << 11)}")
            else:
                A(f"s_lshl_b32 s{S_T}, s{S_CG}, 10")
                A(f"s_add_u32 s{S_ST1}, s{S_ST1}, s{S_T}")
                A(f"s_add_u32 s{S_ST1}, s{S_ST1}, {WS_V - 7 * 1024 + (role << 9)}")
                A(f"v_lshrrev_b32 v{VSTV}, 5, v0")
                A(f"v_mul_u32_u24 v{VSTV}, {7168 - 512}, v{VSTV}")
                A(f"v_add_u32 v{VSTV}, v{VSTV}, v{VL16}")
        hooks["idle"](A, role)
        L, G = Rec(), Rec()
        gate_loads(L)
        gate_compute(G, st)
        return A.units, L.units, G.units

    def mm1(kind, t, i):
        b = wb1(t) + 4 * i
        c = "0" if t == 0 else None
        if kind == "V" and i == 0:
            return mfma(ACC1, XF + 4 * t, b, c)
        return mfma(ACC1 + 16 * i, b, XF + 4 * t, c)

    def mm2(t, i):
        return mfma(ACC2 + 16 * i, wb2(t, ntile2) + 4 * i, XF + 4 * t, "0" if t == 0 else None)

    stamp(A, "rtpro")
    if split:
        skip = hooks["label"]("skip")
        sv = A.save()
        A.wait_tok(toks["x0"])
        A(f"s_cmp_ge_u32 s{S_WAVE}, 4")
        A(f"s_cbranch_scc1 {skip}")
        A.wait_tok(toks[0])
        A(f"{skip}:")
        A.restore(sv)
    else:
        A.wait_tok(toks[0])
    stamp(A, "rtvm0")
    A("s_barrier")
    stamp(A, "p1_first")
    stamp(A, "rt_first")
    nt1 = 2 if special else 3
    for k in range(LA1):
        for r in reads1(k)[:nt1]:
            for x in r:
                A(x)
    if not special:
        v = hooks["label"]("isv")
        A(f"s_cmp_ge_u32 s{S_CG}, 7")
        A(f"s_cbranch_scc0 {v}")
        A(f"s_cmp_eq_u32 s{S_ROLE}, 0")
        A(f"s_cbranch_scc1 {labels['V', 0]}")
        A(f"s_branch {labels['V', 1]}")
        A(f"{v}:")
    A(f"s_cmp_eq_u32 s{S_ROLE}, 0")
    A(f"s_cbranch_scc0 {labels[kinds[0], 1]}")
    sv0, toks0 = A.save(), dict(toks)

    def one_wait(ms):
        regs = set().union(*[Ins(m).uses for m in ms])
        A.wait_tok(*[e[0] for e in A.lg if e[1] & regs])

    def stream(kind, role):
        pend = []

        def stage_groups(stg):
            if not dma_a:
                return [(g, stg) for g in groups_of(stg, 0)]
            if role:
                return []
            return [(g, stg) for pair in zip(groups_of(stg, 0), groups_of(stg, 1)) for g in pair]

        def pop(n=1):
            for _ in range(n):
                if pend:
                    g, key = pend.pop(0)
                    if opt.get("nodma"):
                        toks[key] = None
                    else:
                        issue([g], key)

        side, gload, gate = side_work(kind, role)
        half = len(side) // 3
        plan = [(gload, 4, 6), (side[:half], 7, 11), (gate, 12, 16), (side[half:], 17, 25)]
        if opt.get("gatepos", 0) == 0:
            plan = [(gate, 3, 7), (side, 8, 25)]

        def fill(t, k):
            hit = [p for p in plan if p[1] <= t <= p[2]]
            if opt.get("nofill") or not hit:
                return
            units, lo, hi = hit[0]
            n = 3 * (hi - lo + 1)
            pos = 3 * (t - lo) + k
            for u in units[len(units) * pos // n:len(units) * (pos + 1) // n]:
                for x in u:
                    tk = A(x)
                    if tk and "store" in x:
                        toks["gate"] = tk

        for k in range(LA0, LA + 1):
            pend += stage_groups(k)
        for t in range(28):
            if t + LA1 < 28:
                nxt = reads1(t + LA1)
            elif t < 27:
                nxt = [[], [], []]
            elif ntile2 == 1:
                nxt = [reads2(k, 1)[0] for k in range(3)]
            else:
                nxt = reads2(0, 2) + [sum(reads2(1, 2), []) if LA2 == 2 else []]
            bound = (t + LA1) % 4 == 0 if t < 25 else t == 27
            if split and t == 0:
                nxt = [[], [], []]
            if split and t == 1:
                nxt = [a_ + b_ for a_, b_ in zip(reads1(2), reads1(3))]
            if bound:
                A.wait(lg=0)
            if opt.get("merge1", 1) and LA1 == 2 and t > 1:
                one_wait([mm1(kind, t, i) for i in range(nt1)])
            A(mm1(kind, t, 0))
            if split and t == 1:
                A.wait_tok(toks[0])
                A("s_barrier")
            if bound:
                stg = (t + LA1) // 4
                assert not pend
                need = stg if stg < 7 else 7 + p2bars[0] // 8
                stamp(A, f"b{stg}_pre")
                A.wait_tok(toks.get(need), toks.get("gate") if stg == 4 else None)
                stamp(A, f"b{stg}_vm")
                if not opt.get("nobar"):
                    A("s_barrier")
                stamp(A, f"b{stg}_post")
                stamp(A, f"rtb{stg}")
                hooks["p1bar"](A, stg, role)
                todo = list(range(stg + LA, stg + LA + 1 if stg < 7 else 11))
                if special and LA == 2 and stg >= 6:
                    todo = [8, 9] if stg == 6 else [10]
                for k in todo:
                    pend += stage_groups(k)
            left = (3 - LA1 - t) % 4 + 1
            npop = -(-len(pend) // left) if t < 27 else len(pend) * special
            for i in range(3):
                if 0 < i < nt1:
                    A(mm1(kind, t, i))
                for x in (nxt[i] if i < nt1 or t == 27 else []):
                    A(x)
                pop((npop + (0, 2, 1)[i]) // 3)
                fill(t, i)
            if t == opt.get("pf2", 21):
                hooks["prefetch"](A, 1)
        stamp(A, "p1_pass1")
        stamp(A, "rt_pass1")
        if "p1exit" in hooks:
            hooks["p1exit"]()
            return
        if kind == "K":
            e1 = epi_qk(ACC1, False, 0, st)
        elif kind == "V":
            e1 = epi_v(ACC1, st)
        else:
            e1 = sum([epi_qk(ACC1 + 16 * k, True, WS_Q + 4096 * k, st) for k in range(2)], [])
        nq = len(e1)
        if not special:
            e1 = e1 + epi_gu(ACC1 + 16, PK, 0, st) + epi_gu(ACC1 + 32, PK + 4, 1024, st)

        if opt.get("nost"):
            e1 = [("s_nop 0" if x.startswith("buffer_store") else x) for x in e1]
        if opt.get("noe1"):
            e1 = e1[:nq]
        if opt.get("notrans"):
            e1 = [x.replace("v_exp_f32", "v_mov_b32").replace("v_rcp_f32", "v_mov_b32") for x in e1]

        def bar_token(k):
            return toks.get(7 + p2bars[k + 1] // 8 if k + 1 < len(p2bars) else 10)

        done = 0
        qtok = None
        la = LA2 if ntile2 == 2 else 3
        nslots = 27 * ntile2
        slot = 0
        for t in range(28):
            nxt = reads2(t + la, ntile2) if t + la < 28 or special else [[]] * ntile2
            bound = t + la - 1 in p2bars
            pub = not special and t == pubbar
            endbar = t == 27 and not special
            if endbar or (bound and not special):
                A.wait(lg=0)
            hooks["p2step"](A, t, role)
            if opt.get("merge2", 0):
                one_wait([mm2(t, i) for i in range(ntile2)])
            for i in range(ntile2):
                A(mm2(t, i))
                if endbar and i == 0:
                    A("s_barrier")
                if (bound or pub) and i == 0:
                    assert not pub or done >= nq
                    stamp(A, f"c{t}_pre")
                    A.wait_tok(bar_token(p2bars.index(t + la - 1)) if bound else None, qtok if pub else None)
                    stamp(A, f"c{t}_vm")
                    A("s_barrier")
                    stamp(A, f"c{t}_post")
                    if pub:
                        hooks["qkv_done"](A, role)
                for x in nxt[i]:
                    A(x)
                if special:
                    pop(2 if t >= 2 else 0)
                elif t >= popstart and (dma_a or i == 0):
                    pop()
                upto = 0
                if t >= 1:
                    slot += 1
                    upto = min(len(e1), (len(e1) * slot * 27) // (nslots * 25))
                upto = max(upto, min(nq, (opt.get("qpace", 8) if special else 8) * (ntile2 * t + i + 1)))
                while done < upto:
                    tk = A(e1[done])
                    if tk and done < nq:
                        qtok = tk
                    done += 1
        assert done == len(e1) and not pend
        stamp(A, "p1_pass2")
        stamp(A, "rt_pass2")
        if "p2exit" in hooks:
            hooks["p2exit"]()
            return
        if not special:
            hooks["regular_end"](A, role)
            return
        e2 = epi_qk(ACC2, True, WS_Q + 8192, st)
        idle, fin = hooks["label"]("idle"), hooks["label"]("fin")
        A(f"s_bitcmp{1 - role}_b32 s{S_CG}, 0")
        A(f"s_cbranch_scc1 {idle}")
        sv = A.save()
        done = 0
        for t in range(28):
            A(mfma(ACC1, wb2(28 + t, 1), XF + 4 * t, "0" if t == 0 else None))
            for x in (reads2(28 + t + 3, 1)[0] if t + 3 < 28 else []):
                A(x)
            while t >= 1 and done < min(len(e2), opt.get("qpace2", 6) * t):
                A(e2[done])
                done += 1
        stamp(A, "q_2b")
        for x in epi_qk(ACC1, True, WS_Q + 12288, st, base=S_STH):
            A(x)
        stamp(A, "q_epi")
        A(f"s_branch {fin}")
        A(f"{idle}:")
        A.restore(sv)
        for x in e2:
            A(x)
        A(f"{fin}:")
        hooks["special_end"](A, role)

    for n, (kind, role) in enumerate(labels):
        if n:
            hooks["target"](A, labels[kind, role])
            A.restore(sv0)
            toks.clear()
            toks.update(toks0)
        stream(kind, role)
        assert "p1exit" in hooks or "p2exit" in hooks or (all(not e[1] for e in A.vm) and all(not e[1] for e in A.lg)), A.state()
```

```python
import sys
from common import *
import phase1 as p1

ST = " sc1"
LD = " sc1"

FLAG_S = WS_FLAG
FLAG_O = WS_FLAG + 0x8000
SPIN = 1 << 17

L_WO, L_RING, L_OP, L_MISC = 0, 57344, 106496, 155648
L_O = L_RING
L_TR = 131072
M_HW, M_AS, M_GS, M_MAX = L_MISC, L_MISC + 2048, L_MISC + 3072, L_MISC + 4096

S_F1, S_SPIN = 27, 3
S_HEAD, S_QB, S_MB, S_NB, S_GW = range(66, 71)
S_AG = 61
S_MO, S_T, S_T2, S_T3, S_OFF, S_CNT = 54, 56, 57, 58, 60, 61
SRD_DBG, SRD_OUT = 48, 48
SRD_K, SRD_V, S_Q, S_ME, S_OO, S_OF = 72, 76, 80, 84, 86, 87
SRD_WD, SRD_WO = 72, 76
S_RA, S_RB, S_WDO, S_WOO, S_HOFF, S_GOFF, S_OUTO = range(80, 87)

VL16 = p1.VL16
VPOLL, VHW = 12, 14
OA, SB, PB, VB, KB, QF = 16, 80, 112, 160, 192, 224
VV0, VGA, VONE, VM, VHI = 10, 11, 13, 1, 7
VMLO, VMHI, VGAD = 120, 121, 122
S_LO = 62
VK = [VL16, 144, 145, 146]
VV = [VV0] + list(range(147, 154))
VXA, VSW, VSR = 154, 158, 159
ACC, HB, WBUF = 16, 80, 160
GL16, GSW, GSR = 1, 2, 3
NDEF = 10
VDW0, VDW1, VTR = 9, 10, 11
VH0, VH1, VAWA, VAWB, VG = 242, 243, 244, 246, 248
VPW, VPR, VGATE, VOUT, VTP = 240, 250, 241, 253, 254
ACA, TB_, TA_ = 80, 96, 112
POLLMASK = "0x1ffff"
POLL = f"buffer_load_dword v6, v{VPOLL}, {sr(SRD_WS, 4)}, 0 offen sc1"


class Gen:
    def __init__(self, name, stamps, opt=None):
        self.A = Asm()
        self.name = name
        self.stamp = stamps
        self.opt = opt or {}
        self.late = []
        self.nlab = 0

    def pad(self, where):
        us = self.opt.get("pad_" + where)
        if not us:
            return
        A, L = self.A, self.lab("pad")
        A.auto = False
        A(f"{L}:")
        A("s_memrealtime s[98:99]")
        A._emit_raw("s_waitcnt lgkmcnt(0)")
        A("s_sub_u32 s98, s98, s96")
        A(f"s_cmp_lt_u32 s98, {us * 100}")
        A(f"s_cbranch_scc1 {L}")
        A.auto = True
        A.sm = set()

    def lab(self, s):
        self.nlab += 1
        return f"{self.name}_{s}{self.nlab}"

    def one_lane_store(self, value, soff, wave=None, tmp=5):
        A = self.A
        skip = None
        if wave is not None:
            skip = self.lab("skip")
            A(f"s_cmp_lg_u32 s{S_WAVE}, {wave}")
            A(f"s_cbranch_scc1 {skip}")
        A(f"v_mov_b32 v{tmp}, {value}")
        A("s_mov_b64 exec, 1")
        A.uncounted(f"buffer_store_dword v{tmp}, off, {sr(SRD_WS, 4)}, s{soff} sc1")
        A("s_mov_b64 exec, -1")
        if skip:
            A(f"{skip}:")

    def check_words(self, load, cmp_, tok, mask=None, nap=0):
        A = self.A
        ok, loop = self.lab("ok"), self.lab("again")
        A.wait_tok(tok)
        if mask:
            A(f"s_mov_b64 exec, {mask}")
        A(cmp_)
        A(f"s_cbranch_vccz {ok}")
        sv = A.save()
        A(f"s_mov_b32 s{S_SPIN}, {SPIN}")
        A(f"{loop}:")
        if nap:
            A(f"s_sleep {nap}")
        A(load)
        A("s_waitcnt vmcnt(0)" if load.startswith("buffer") else "s_waitcnt lgkmcnt(0)")
        A(cmp_)
        A(f"s_cbranch_vccz {ok}")
        A(f"s_sub_u32 s{S_SPIN}, s{S_SPIN}, 1")
        A(f"s_cbranch_scc0 {loop}")
        A.restore(sv)
        A(f"{ok}:")
        if mask:
            A("s_mov_b64 exec, -1")

    def target(self, A, label, inline=False):
        if not self.opt.get("warm", 0):
            A(f"{label}:")
            return
        if inline:
            A(f"s_branch {label}")
        A(".p2align 6")
        A(f"{label}_w:")
        A("s_setpc_b64 s[0:1]")
        A(f"{label}:")

    def warm(self, A, special, own):
        if not self.opt.get("warm", 0):
            return
        n = self.name
        t = own + ([f"{n}_a_plain", f"{n}_g_plain", f"{n}_a_poll", f"{n}_a_go", f"{n}_g_go"] if special else
                   [f"{n}_a_e2", f"{n}_g_e2", f"{n}_a_late", f"{n}_a_go"])
        for w, lab in enumerate(t):
            skip = self.lab("skip")
            A(f"s_cmp_lg_u32 s{S_WAVE}, {w}")
            A(f"s_cbranch_scc1 {skip}")
            A(f"s_call_b64 s[0:1], {lab}_w")
            A(f"{skip}:")

    DBG = f"buffer_load_dword v7, v8, {sr(SRD_DBG, 4)}, 0 offen sc1"

    def arrived_load(self):
        self.A("v_and_b32 v8, 3, v0")
        self.A("v_lshlrev_b32 v8, 6, v8")
        return self.A(self.DBG)

    def arrived_check(self, tok):
        self.check_words(self.DBG, "v_cmp_gt_u32 vcc, 64, v7", tok)

    def masked(self, mask, text):
        self.A(f"s_mov_b64 exec, {mask}")
        t = self.A(text)
        self.A("s_mov_b64 exec, -1")
        return t

    def hooks(self, early_poll):
        A = self.A
        st = {}

        def entry(A):
            self.code_prefetch(A)
            skip = self.lab("skip")
            A(f"""
            s_lshl_b32 s{S_F1}, s{p1.S_RB}, 4
            s_add_u32 s{S_F1}, s{S_F1}, s{p1.S_CG}
            s_lshl_b32 s{S_F1}, s{S_F1}, 7
            s_add_u32 s{S_F1}, s{S_F1}, {FLAG_S}
            s_cmp_lg_u32 s{S_WAVE}, 0
            s_cbranch_scc1 {skip}
            s_and_b32 s{p1.S_T}, s2, 7
            s_lshl_b32 s{p1.S_T}, s{p1.S_T}, 1
            s_lshr_b32 s{p1.S_T2}, s2, 7
            s_add_u32 s{p1.S_T}, s{p1.S_T}, s{p1.S_T2}
            s_bfe_u32 s{p1.S_T2}, s2, 0x40003
            s_lshl_b32 s{p1.S_T2}, s{p1.S_T2}, 6
            s_add_u32 s{p1.S_T}, s{p1.S_T}, s{p1.S_T2}
            s_lshl_b32 s{p1.S_T}, s{p1.S_T}, 7
            s_add_u32 s{p1.S_T}, s{p1.S_T}, {FLAG_O}
            v_mov_b32 v10, 0
            v_lshlrev_b32 v11, 11, v0
            s_mov_b64 exec, 15
            """)
            A.uncounted(f"buffer_store_dword v10, v11, {sr(SRD_WS, 4)}, s{p1.S_T} offen sc1")
            A("s_mov_b64 exec, 1")
            A.uncounted(f"buffer_store_dword v10, off, {sr(SRD_WS, 4)}, s{S_F1} sc1")
            A("s_mov_b64 exec, -1")
            A(f"{skip}:")

        def p1bar(A, stg, role):
            if stg == 1:
                self.pad("b1")

            if stg == 7:
                self.pad("p1")
            if stg != 4:
                return
            srd(A, SRD_DBG, P_DBG, 256)
            if role:
                return
            skip = self.lab("skip")
            A(f"""
            s_cmp_lg_u32 s{S_WAVE}, 0
            s_cbranch_scc1 {skip}
            s_and_b32 s3, s2, 3
            s_lshl_b32 s3, s3, 6
            v_mov_b32 v13, 1
            s_mov_b64 exec, 1
            """)
            A.uncounted(f"buffer_atomic_add v13, off, {sr(SRD_DBG, 4)}, s3 sc1")
            A("s_mov_b64 exec, -1")
            A(f"{skip}:")


        def clear_misc(A):
            A(f"""
            s_lshl_b32 s3, s{S_WAVE}, 9
            s_add_u32 s3, s3, {L_MISC}
            v_lshl_add_u32 v8, v0, 3, s3
            v_mov_b64 v[6:7], 0
            ds_write_b64 v8, v[6:7]
            """)

        def p2step(A, t, role):
            if t == 8 and early_poll:
                clear_misc(A)
            if t == 14 and early_poll and not role:
                st["dbg"] = self.arrived_load()
            if t in (4, 8, 12, 16, 20, 24):
                self.stamp(A, f"p2_{t}")
            if t == self.opt.get('polls', 25) - 1 and early_poll and not role:
                self.arrived_check(st["dbg"])
            if early_poll and not role and t >= 4:
                early, consts = self.setup_units()
                units, lo, hi = (early, 4, 12) if t < 12 else (consts, 12, 28)
                for u in units[len(units) * (t - lo) // (hi - lo):len(units) * (t + 1 - lo) // (hi - lo)]:
                    for x in u:
                        A(x)
            if early_poll and role and t >= 16 and t % 2 == 0:
                for x in self.wd_dma((t - 16) // 2):
                    A(x)
            if t == self.opt.get('polls', 25) and early_poll and not role:
                st["poll"] = self.masked(POLLMASK, POLL)

        def qkv_done(A, role):
            if not role:
                self.one_lane_store(1, S_F1, wave=0)
                self.stamp(A, "rt_pubq")

        def regular_end(A, role):
            if self.opt.get("pad_p2"):
                self.pad("p2")
                if not role:
                    st["poll"] = self.masked(POLLMASK, POLL)
            if not role:
                A.wait_tok(st["poll"])
            A(f"s_branch {self.name}_{'g' if role else 'a'}_e2")

        def special_end(A, role):
            A("s_waitcnt vmcnt(0) lgkmcnt(0)")
            self.stamp(A, "q_drain")
            A("s_barrier")
            qkv_done(A, role)
            self.pad("p2")
            clear_misc(A)
            A("s_waitcnt lgkmcnt(0)")
            A("s_barrier")
            A(f"s_branch {self.name}_{'g' if role else 'a'}_plain")

        h = dict(stamp=self.stamp, label=self.lab, entry=entry, prologue=self.warm, target=self.target, prefetch=self.data_prefetch, p1bar=p1bar, p2step=p2step,
                 idle=lambda A, role: self.precompute_g0(A) if role else self.precompute(A, 0),
                 qkv_done=qkv_done, regular_end=regular_end, special_end=special_end)
        if self.opt.get("p1exit"):
            h["p1exit"] = self.finish
        if self.opt.get("p2exit"):
            h["p2exit"] = self.finish
        return h

    def data_prefetch(self, A, which):
        if not self.opt.get("pf", 3) >> which & 1:
            return
        if which == 0 and self.opt.get("pfx"):
            skip, lab = self.opt.get("pfskip", 3), self.lab("skip")
            srd_tail(A, p1.SRD_G, D * F * 2)
            srd_tail(A, p1.SRD_U, D * F * 2)
            A.wait(lg=0)
            A(f"""
            s_bitcmp1_b32 s2, 2
            s_cbranch_scc1 {lab}
            s_lshr_b32 s10, s2, 3
            s_lshl_b32 s10, s10, 2
            s_and_b32 s11, s2, 3
            s_add_u32 s10, s10, s11
            s_lshl_b32 s10, s10, 3
            s_add_u32 s10, s10, s{S_WAVE}
            s_lshl_b32 s11, s10, 7
            v_lshl_add_u32 v13, v0, 17, s11
            s_mov_b32 s10, {skip * 64 * 3584}
            s_mov_b32 s11, {skip * 64 * 2688}
            s_mov_b64 exec, 0x3fff
            """)
            for d, so in ((p1.SRD_G, "s10"), (p1.SRD_U, "s10"), (p1.SRD_P, "s11"), (p1.SRD_X, "0")):
                A.uncounted(f"buffer_load_dword v11, v13, {sr(d, 4)}, {so} offen")
            A("s_mov_b64 exec, -1")
            A(f"{lab}:")
            return
        A(f"""
        s_lshl_b32 s10, s2, 3
        s_add_u32 s10, s10, s{S_WAVE}
        s_lshl_b32 s11, s10, 7
        v_lshl_add_u32 v13, v0, 18, s11
        """)
        if which == 0:
            skip = self.opt.get("pfskip", 3)
            srd_tail(A, p1.SRD_G, D * F * 2)
            srd_tail(A, p1.SRD_U, D * F * 2)
            A(f"""
            s_mul_i32 s10, s10, 896
            v_lshl_add_u32 v15, v0, 7, s10
            s_mov_b32 s10, {skip * 64 * 3584}
            s_mov_b32 s11, {skip * 64 * 2688}
            s_mov_b64 exec, {(1 << (7 - skip)) - 1}
            buffer_load_dword v11, v15, {sr(p1.SRD_X, 4)}, 0 offen offset:{128 * skip}
            buffer_load_dword v11, v13, {sr(p1.SRD_P, 4)}, s11 offen
            s_mov_b64 exec, 0x7f
            buffer_load_dword v11, v13, {sr(p1.SRD_G, 4)}, s10 offen
            buffer_load_dword v11, v13, {sr(p1.SRD_U, 4)}, s10 offen
            s_mov_b64 exec, -1
            """)
        else:
            srd(A, 4, P_WD, F * D * 2)
            srd(A, 12, P_WO, D * D * 2)
            A(f"""
            s_mov_b64 exec, 0x7f
            buffer_load_dword v11, v13, s[4:7], 0 offen
            buffer_load_dword v11, v13, s[12:15], 0 offen
            s_mov_b64 exec, -1
            """)

    def code_prefetch(self, A):
        if not self.opt.get("cpf", 1):
            return
        here, skip = self.lab("pc"), self.lab("skip")
        A(f"""
        s_cmp_lg_u32 s{S_WAVE}, 7
        s_cbranch_scc1 {skip}
        s_getpc_b64 s[0:1]
        {here}:
        s_sub_u32 s0, s0, {here}-{self.name}
        s_subb_u32 s1, s1, 0
        s_lshr_b32 s{p1.S_T}, s2, 3
        s_lshl_b32 s{p1.S_T}, s{p1.S_T}, 11
        v_lshl_add_u32 v10, v0, 7, s{p1.S_T}
        v_min_u32 v10, {self.name}_exit-{self.name}, v10
        s_mov_b64 exec, 0xffff
        """)
        A.uncounted("global_load_dword v11, v10, s[0:1]")
        A("v_lshlrev_b32 v10, 7, v0")
        A.uncounted(f"buffer_load_dword v11, v10, {sr(p1.SRD_GW, 4)}, 0 offen")
        A("s_mov_b64 exec, -1")
        A(f"{skip}:")

    def precompute(self, A, role):
        T, T2 = 0, 1
        A(f"""
        s_and_b32 s{T}, s2, 7
        s_lshr_b32 s{T2}, s2, 3
        s_lshl_b32 s{S_HEAD}, s{T}, 1
        s_lshr_b32 s{S_QB}, s2, 7
        s_add_u32 s{S_HEAD}, s{S_HEAD}, s{S_QB}
        s_and_b32 s{S_QB}, s{T2}, 15
        s_and_b32 s{S_GW}, s{S_WAVE}, 3
        s_lshl_b32 s{T}, s{S_WAVE}, 8
        s_add_u32 s{T}, s{T}, {M_HW}
        v_lshl_add_u32 v{VHW}, v0, 2, s{T}
        """)
        if role == 0:
            self.out_tile(A)
            self.precompute_a(A)
        else:
            self.precompute_g(A)

    def out_tile(self, A):
        sg = self.opt.get("sg")
        if sg is None:
            A(f"""
            s_and_b32 s{S_MB}, s2, 7
            s_lshl_b32 s{S_MB}, s{S_MB}, 2
            s_bfe_u32 s{S_NB}, s2, 0x20003
            s_add_u32 s{S_MB}, s{S_MB}, s{S_NB}
            s_lshr_b32 s{S_NB}, s2, 5
            """)
            return
        A(f"""
        s_add_u32 s0, s2, {7 - sg}
        s_and_b32 s0, s0, 7
        s_lshl_b32 s0, s0, 5
        s_lshr_b32 s1, s2, 3
        s_add_u32 s0, s0, s1
        s_mul_i32 s{S_MB}, s0, 9363
        s_lshr_b32 s{S_MB}, s{S_MB}, 16
        s_mul_i32 s1, s{S_MB}, 7
        s_sub_u32 s{S_NB}, s0, s1
        s_cmp_ge_u32 s0, 224
        s_cselect_b32 s{S_NB}, 7, s{S_NB}
        s_min_u32 s{S_MB}, s{S_MB}, 31
        """)

    def precompute_a(self, A):
        T, T2 = 0, 1
        a0, a1 = S_Q, S_Q + 1
        A(f"""
        s_mul_i32 s{T}, s{S_HEAD}, 28
        s_add_u32 s{T2}, s{T}, 27
        s_lshr_b32 s{a0}, s{T}, 6
        s_lshr_b32 s{a1}, s{T2}, 6
        s_sub_u32 s{a1}, s{a1}, s{a0}
        v_and_b32 v5, 1, v0
        v_mul_u32_u24 v5, s{a1}, v5
        v_bfe_u32 v6, v0, 1, 1
        v_mad_u32_u24 v5, v6, 7, v5
        v_bfe_u32 v6, v0, 2, 2
        v_lshl_add_u32 v5, v6, 4, v5
        s_lshl_b32 s{a1}, s{S_GW}, 6
        s_add_u32 s{a1}, s{a1}, s{a0}
        v_add_u32 v5, s{a1}, v5
        s_lshl_b32 s{a1}, s{S_QB}, 4
        s_lshr_b32 s{T}, s{S_HEAD}, 3
        s_add_u32 s{T}, s{T}, s{a1}
        s_add_u32 s{T}, s{T}, 14
        v_writelane_b32 v5, s{T}, 16
        v_lshlrev_b32 v5, 7, v5
        v_add_u32 v{VPOLL}, {FLAG_S}, v5
        v_lshrrev_b32 v5, 5, v0
        v_mul_u32_u24 v5, {7168 - 512}, v5
        v_add_u32 v{VV0}, v5, v{VL16}
        s_mul_i32 s{S_OO}, s{S_HEAD}, 7
        s_lshr_b32 s{S_OO}, s{S_OO}, 1
        s_lshl_b32 s{S_OO}, s{S_OO}, 9
        s_mul_i32 s{T2}, s{S_GW}, {16 * 28672}
        s_add_u32 s{T}, s{T2}, s{S_OO}
        s_add_u32 s{T}, s{T}, {WS_K}
        """)
        srd(A, SRD_K, P_WS, 16 * 28672, add=f"s{T}")
        A(f"""
        s_mul_i32 s{T}, s{S_HEAD}, 448
        s_add_u32 s{T}, s{T}, s{T2}
        s_add_u32 s{T}, s{T}, {WS_V}
        """)
        srd(A, SRD_V, P_WS, 16 * 28672, add=f"s{T}")
        A(f"s_lshl_b32 s{T2}, s{S_QB}, 2")
        for j in range(4):
            A(f"""
            s_add_u32 s{T}, s{S_GW}, {j + 1}
            s_and_b32 s{T}, s{T}, 3
            s_add_u32 s{T}, s{T}, s{T2}
            s_mul_i32 s{T}, s{T}, 28672
            s_add_u32 s{S_Q + j}, s{T}, s{S_OO}
            """)
        A(f"""
        s_add_u32 s{T}, s{T2}, s{S_GW}
        s_lshl_b32 s{S_OFF}, s{T}, 7
        s_add_u32 s{S_AG}, s{S_OFF}, {WS_G}
        s_lshl_b32 s{T}, s{T}, 4
        s_add_u32 s{T}, s{T}, s{S_HEAD}
        s_lshl_b32 s{S_OO}, s{T}, 11
        s_add_u32 s{S_OO}, s{S_OO}, {WS_O}
        s_lshl_b32 s{S_OF}, s{T}, 7
        s_add_u32 s{S_OF}, s{S_OF}, {FLAG_O}
        s_mov_b32 s{S_ME}, 0x0fffffff
        s_mov_b32 s{S_ME + 1}, 0x0fffffff
        """)

    def precompute_g0(self, A):
        T = 0
        srd(A, SRD_WD, P_WD, F * D * 2)
        A(f"""
        v_lshrrev_b32 v5, 3, v0
        v_mul_u32_u24 v6, 896, v5
        v_lshrrev_b32 v5, 2, v0
        v_and_b32 v5, 4, v5
        v_and_b32 v7, 7, v0
        v_xor_b32 v5, v5, v7
        v_lshl_add_u32 v{VDW0}, v5, 4, v6
        v_add_u32 v{VDW1}, {7168 - 1024}, v{VDW0}
        s_and_b32 s{S_GW}, s{S_WAVE}, 3
        s_mul_i32 s{S_RB}, s{S_GW}, 14336
        s_mul_i32 s{S_RA}, s{S_GW}, 12288
        s_add_u32 s{S_RA}, s{S_RA}, {L_RING}
        """)
        self.out_tile(A)
        A(f"""
        s_lshl_b32 s{T}, s{S_NB}, 7
        s_mul_i32 s{S_WDO}, s{S_GW}, {448 * 896}
        s_add_u32 s{S_WDO}, s{S_WDO}, s{T}
        """)

    def precompute_g(self, A):
        T, T2 = 0, 1
        srd(A, SRD_WO, P_WO, D * D * 2)
        A(f"""
        s_lshl_b32 s{T}, s{S_NB}, 7
        s_mul_i32 s{S_WOO}, s{S_GW}, {112 * 896}
        s_add_u32 s{S_WOO}, s{S_WOO}, s{T}
        s_and_b32 s{T2}, s{S_GW}, 1
        s_lshl_b32 s{S_OUTO}, s{T2}, 6
        s_add_u32 s{S_OUTO}, s{S_OUTO}, s{T}
        s_lshl_b32 s{T2}, s{T2}, 3
        v_and_b32 v5, 1, v0
        v_lshlrev_b32 v5, 2, v5
        v_bfe_u32 v6, v0, 1, 1
        v_add_u32 v5, v5, v6
        v_bfe_u32 v6, v0, 4, 1
        v_lshl_add_u32 v5, v6, 1, v5
        v_and_b32 v6, 8, v0
        v_xor_b32 v5, v5, v6
        v_xor_b32 v5, s{T2}, v5
        v_lshrrev_b32 v6, 5, v0
        v_bfe_u32 v7, v0, 2, 2
        v_lshl_add_u32 v6, v6, 2, v7
        v_lshlrev_b32 v6, 7, v6
        v_lshl_add_u32 v{VTR}, v5, 3, v6
        s_lshr_b32 s{T}, s{S_GW}, 1
        s_lshl_b32 s{T2}, s{S_MB}, 1
        s_add_u32 s{T}, s{T}, s{T2}
        s_lshl_b32 s{S_GOFF}, s{T}, 7
        s_add_u32 s{S_GOFF}, s{S_GOFF}, {WS_G}
        s_mul_i32 s{T}, s{T}, {32 * 896}
        s_add_u32 s{S_OUTO}, s{S_OUTO}, s{T}
        s_mul_i32 s{S_HOFF}, s{S_MB}, {2 * 114688}
        s_mul_i32 s{T}, s{S_GW}, {28 * 1024}
        s_add_u32 s{S_HOFF}, s{S_HOFF}, s{T}
        s_add_u32 s{S_HOFF}, s{S_HOFF}, {WS_H}
        s_lshr_b32 s{T}, s{S_MB}, 1
        s_lshl_b32 s{T}, s{T}, 4
        s_mul_i32 s{T2}, s{S_GW}, 7
        s_lshr_b32 s{T2}, s{T2}, 1
        s_add_u32 s{T}, s{T}, s{T2}
        s_lshl_b32 s{T}, s{T}, 7
        s_add_u32 s{T}, s{T}, {FLAG_S}
        v_and_b32 v5, 3, v0
        v_lshl_add_u32 v{VPOLL}, v5, 7, s{T}
        """)

    def k_load(self, b):
        return [f"buffer_load_dwordx4 {vr(KB + 8 * b, 4)}, v{VK[b]}, {sr(SRD_K, 4)}, s{S_OFF} offen{LD}",
                f"buffer_load_dwordx4 {vr(KB + 8 * b + 4, 4)}, v{VK[b]}, {sr(SRD_K, 4)}, s{S_OFF} offen offset:1024{LD}"]

    def v_load(self, b):
        return [f"s_mov_b64 exec, {sr(S_ME, 2)}",
                f"buffer_load_dwordx4 {vr(VB + 8 * b, 4)}, v{VV[2 * b]}, {sr(SRD_V, 4)}, s{S_OFF} offen{LD}",
                f"buffer_load_dwordx4 {vr(VB + 8 * b + 4, 4)}, v{VV[2 * b + 1]}, {sr(SRD_V, 4)}, s{S_OFF} offen{LD}",
                "s_mov_b64 exec, -1"]

    @staticmethod
    def qk(i, half):
        b, j = (i >> 2) & 3, i & 3
        return mfma(SB + 16 * (i & 1), KB + 8 * b + 4 * half, QF + 8 * j + 4 * half, "0" if half == 0 else None)

    @staticmethod
    def pv(i, half, first=False):
        b, j = (i >> 2) & 3, i & 3
        return mfma(OA + 16 * j, VB + 8 * b + 4 * half, PB + 4 * half, "0" if first else None)

    @staticmethod
    def grp(i, g):
        r = SB + 16 * (i & 1) + 4 * g
        return [f"v_exp_f32 v{r + k}, v{r + k}" for k in range(4)] + \
               [f"v_cvt_pk_bf16_f32 v{PB + 2 * g + k}, v{r + 2 * k}, v{r + 2 * k + 1}" for k in range(2)]

    def wait_pair(self, base):
        A = self.A
        want = {f"v{base + 7}"}
        for e in A.vm:
            if e[1] & want:
                A.wait_tok(e[0])
                return

    def setup_units(self):
        R = Rec()
        for b in range(1, 4):
            R(f"v_add_u32 v{VK[b]}, {b * 28672}, v{VL16}")
        for n in range(1, 8):
            R(f"v_add_u32 v{VV[n]}, {n * 14336}, v{VV0}")
        for j in range(4):
            R(f"""
            s_add_u32 s0, s{S_GW}, {j + 1}
            s_and_b32 s0, s0, 3
            s_mul_i32 s0, s0, 12288
            s_add_u32 s0, s0, {L_OP + (j % 3) * 4096}
            v_add_u32 v{VXA + j}, s0, v{VL16}
            """)
        self.sync_addresses(M_AS, A=R, T=0)
        R(f"""
        s_and_b32 s0, s{S_HEAD}, 1
        v_lshrrev_b32 v{VMLO}, 5, v0
        v_or_b32 v{VMHI}, s0, v{VMLO}
        v_xor_b32 v{VMHI}, s0, v{VMHI}
        v_add_u32 v{VMHI}, -1, v{VMHI}
        v_xor_b32 v{VMLO}, 1, v{VMLO}
        v_and_b32 v{VMLO}, s0, v{VMLO}
        v_add_u32 v{VMLO}, -1, v{VMLO}
        v_and_b32 v{VGAD}, 31, v0
        v_lshlrev_b32 v{VGAD}, 2, v{VGAD}
        """)
        R(f"""
        v_and_b32 v{VONE}, 31, v0
        v_cmp_eq_u32 s[0:1], 28, v{VONE}
        v_mov_b32 v{VONE}, 0x3f803f80
        v_cndmask_b32 v{VONE}, 0, v{VONE}, s[0:1]
        """)
        return R.units, [[f"v_mov_b32 v{VB + r}, v{VONE}"] for r in range(32)]

    def first_loads(self):
        q = lambda j: [[f"buffer_load_dwordx4 {vr(QF + 8 * j + 4 * t, 4)}, v{VL16}, {sr(SRD_WS, 4)}, s{S_Q + j} offen"
                        f"{' offset:1024' * t}{LD}"] for t in range(2)]
        k = lambda b: [[x] for x in self.k_load(b)]
        return q(0) + k(0) + q(1) + [self.v_load(0)] + q(2) + q(3) + k(1) + \
            [[f"buffer_load_dword v{VGA}, v{VGAD}, {sr(SRD_WS, 4)}, s{S_AG} offen{LD}"]]

    def mask_q(self, j):
        self.wait_pair(QF + 8 * j)
        for r, m in ((0, VMLO), (1, VMLO), (6, VMHI), (7, VMHI)):
            self.A(f"v_and_b32 v{QF + 8 * j + r}, v{QF + 8 * j + r}, v{m}")

    def attn_main(self):
        A = self.A
        todo = [x for kt in range(1, 16) for x in (("v", kt, 4 * kt - 12), ("k", kt + 1, 4 * kt - 10)) if x[1] < 16]
        base = 0

        def loads(i, kind):
            nonlocal base
            if not todo or todo[0][2] > i or (todo[0][2] == i and todo[0][0] != kind) or issued[0] == i:
                return []
            kd, kt, _ = todo.pop(0)
            issued[0] = i
            o = []
            if kt >> 2 != base:
                base = kt >> 2
                o.append(f"s_add_u32 s{S_OFF}, s{S_OFF}, {4 * 28672}")
            return o + (self.v_load(kt & 3) if kd == "v" else self.k_load(kt & 3))

        issued = [-1]
        for i in range(64):
            kt, b, j = i >> 2, (i >> 2) & 3, i & 3
            seq = []
            if i < 3:
                self.mask_q(i + 1)
            if i < 63:
                if j == 3:
                    self.wait_pair(KB + 8 * ((b + 1) & 3))
                seq.append(self.qk(i + 1, 0))
            seq += self.grp(i, 0)
            if i:
                seq.append(self.pv(i - 1, 1))
            seq += loads(i, "v")
            seq += self.grp(i, 1)
            if i < 63:
                seq.append(self.qk(i + 1, 1))
            seq += loads(i, "k")
            seq += self.grp(i, 2)
            for x in seq:
                A(x)
            if j == 0:
                self.wait_pair(VB + 8 * b)
            A(self.pv(i, 0, first=i < 4))
            if i == 4:
                A(f"ds_write_b32 v{VHW}, v{VHW}")
            if i in (0, 4, 8, 16):
                self.stamp(A, f"a_t{i}")
            g3 = self.grp(i, 3)
            if i > 60:
                w = [f"ds_write_b128 v{VXA + j - 1}, {vr(OA + 16 * (j - 1) + 4 * q, 4)} offset:{1024 * q}" for q in range(4)]
                g3 = [g3[0], w[0], g3[1], w[1], g3[2], w[2], g3[3], w[3]] + g3[4:]
            for x in g3:
                A(x)
            if i == 63:
                self.pad("loop")
                A(f"ds_write_b32 v{VSW}, v{VSW}")
        assert not todo
        load = f"ds_read_b32 v6, v{VSR}"
        tok = A(load)
        A(self.pv(63, 1))
        self.stamp(A, "a_loop")
        self.stamp(A, "rt_loop")
        self.check_words(load, "v_cmp_eq_u32 vcc, 0, v6", tok)
        self.stamp(A, "a_sync")

    def lds_sync(self, value_reg, cmp_, VSW=VSW, VSR=VSR):
        A = self.A
        A(f"ds_write_b32 v{VSW}, v{value_reg}")
        load = f"ds_read_b32 v6, v{VSR}"
        tok = A(load)
        self.check_words(load, cmp_, tok)

    def sync_addresses(self, base, VSW=VSW, VSR=VSR, A=None, T=S_T):
        (A or self.A)(f"""
        s_lshl_b32 s{T}, s{S_GW}, 8
        s_add_u32 s{T}, s{T}, {base}
        v_lshl_add_u32 v{VSW}, v0, 2, s{T}
        v_and_b32 v{VSR}, 3, v0
        v_lshlrev_b32 v{VSR}, 8, v{VSR}
        v_add_u32 v{VSR}, {base}, v{VSR}
        """)

    def attn_finish(self):
        A = self.A
        R, O = VB, OA + 48
        order = [3, 0, 1, 2]
        for q in order:
            for p in range(3):
                A(f"ds_read_b128 {vr(R + 16 * p + 4 * q, 4)}, v{VXA + 3} offset:{4096 * p + 1024 * q}")
        for n, q in enumerate(order):
            for k in range(4):
                A(f"v_add_f32 v{R + 4 * q + k}, v{R + 4 * q + k}, v{R + 16 + 4 * q + k}")
            for k in range(4):
                A(f"v_add_f32 v{O + 4 * q + k}, v{O + 4 * q + k}, v{R + 32 + 4 * q + k}")
            for k in range(4):
                A(f"v_add_f32 v{O + 4 * q + k}, v{O + 4 * q + k}, v{R + 4 * q + k}")
            if n == 0:
                A(f"v_mov_b32 v8, v{O + 12}")
                A(f"v_mov_b32 v9, v{O + 12}")
            if n == 1:
                A("v_permlane32_swap_b32 v8, v9")
                A("v_rcp_f32 v12, v9")
            if n == 2:
                A(f"v_med3_f32 v8, v9, s{S_LO}, v{VHI}")
                A(f"v_mul_f32 v12, v12, v{VGA}")
                A("v_cmp_neq_f32 vcc, v8, v9")
        A(f"s_cbranch_vccnz {self.name}_slow")
        A(f"{self.name}_a_fin:")
        for hf in range(2):
            for r in range(8 * hf, 8 * hf + 8):
                A(f"v_mul_f32 v{O + r}, v{O + r}, v12")
            for jj in range(4 * hf, 4 * hf + 4):
                A(f"v_cvt_pk_bf16_f32 v{PB + jj}, v{O + 2 * jj}, v{O + 2 * jj + 1}")
            if hf == 0:
                A(f"buffer_store_dwordx4 {vr(PB, 4)}, v{VL16}, {sr(SRD_WS, 4)}, s{S_OO} offen{ST}")
        A(f"""
        s_mov_b32 exec_lo, 0
        v_mov_b64 {vr(PB + 6, 2)}, 0
        s_mov_b32 exec_lo, -1
        buffer_store_dwordx4 {vr(PB + 4, 4)}, v{VL16}, {sr(SRD_WS, 4)}, s{S_OO} offen offset:1024{ST}
        """)
        self.stamp(A, "a_st")
        self.tail_setup(0)
        A("s_waitcnt vmcnt(0)")
        self.one_lane_store(1, S_OF, tmp=8)

    def slow_path(self):
        A = self.A
        O, Q = OA + 48, QF + 24
        A.clear()
        A(f"{self.name}_slow:")
        A("s_waitcnt vmcnt(0) lgkmcnt(0)")
        A(f"s_mul_i32 s{S_T}, s{S_GW}, {16 * 28672}")
        for d in (SRD_K, SRD_V):
            A(f"s_sub_u32 s{d}, s{d}, s{S_T}")
            A(f"s_subb_u32 s{d + 1}, s{d + 1}, 0")
            A(f"s_mov_b32 s{d + 2}, {64 * 28672}")
        for r in range(8):
            A(f"v_mov_b32 v{VB + r}, v{VONE}")
        A(f"v_mov_b32 v{VM}, 0xff800000")
        for sub in (0, 1):
            lab = self.lab("slowloop")
            A(f"s_mov_b32 s{S_OFF}, 0")
            if sub:
                for r in range(16):
                    A(f"v_mov_b32 v{O + r}, 0")
            A(f"{lab}:")
            for x in self.k_load(0) + (self.v_load(0) if sub else []):
                A(x)
            A(mfma(SB, KB, Q, "0"))
            A(mfma(SB, KB + 4, Q + 4))
            if not sub:
                for r in range(0, 16, 2):
                    A(f"v_max3_f32 v{VM}, v{SB + r}, v{SB + r + 1}, v{VM}")
            else:
                for r in range(16):
                    A(f"v_sub_f32 v{SB + r}, v{SB + r}, v{VM}")
                for g in range(4):
                    for x in self.grp(0, g):
                        A(x)
                A(mfma(O, VB, PB))
                A(mfma(O, VB + 4, PB + 4))
            A(f"s_add_u32 s{S_OFF}, s{S_OFF}, 28672")
            A(f"s_cmp_lt_u32 s{S_OFF}, {64 * 28672}")
            A(f"s_cbranch_scc1 {lab}")
            if not sub:
                A(f"v_mov_b32 v9, v{VM}")
                A(f"v_permlane32_swap_b32 v9, v{VM}")
                A(f"v_max_f32 v{VM}, v9, v{VM}")
        A(f"""
        v_mov_b32 v8, v{O + 12}
        v_mov_b32 v9, v{O + 12}
        v_permlane32_swap_b32 v8, v9
        v_rcp_f32 v12, v9
        v_mul_f32 v12, v12, v{VGA}
        s_branch {self.name}_a_fin
        """)

    @staticmethod
    def slot(ks):
        k = ks % 13
        return ("A", k) if k < 6 else ("B", k - 6)

    def wd_dma(self, ks):
        reg, sl = self.slot(ks)
        return [f"s_add_u32 m0, s{S_RA if reg == 'A' else S_RB}, {sl * 2048}",
                f"s_add_u32 s0, s{S_WDO}, {ks * 16 * 896}",
                f"buffer_load_dwordx4 v{VDW0}, {sr(SRD_WD, 4)}, s0 offen lds",
                f"buffer_load_dwordx4 v{VDW1}, {sr(SRD_WD, 4)}, s0 offen offset:1024 lds"]

    def wo_dma(self, n):
        return [f"s_add_u32 m0, s{S_RB}, {n * 2048}",
                f"s_add_u32 s{S_T}, s{S_WOO}, {n * 16 * 896}",
                f"buffer_load_dwordx4 v{VDW0}, {sr(SRD_WO, 4)}, s{S_T} offen lds",
                f"buffer_load_dwordx4 v{VDW1}, {sr(SRD_WO, 4)}, s{S_T} offen offset:1024 lds"]

    def h_load(self, ks):
        b = HB + 8 * (ks % 10)
        return [f"s_add_u32 s{S_T}, s{S_HOFF}, {ks * 1024}",
                f"buffer_load_dwordx4 {vr(b, 4)}, v{VH0}, {sr(SRD_WS, 4)}, s{S_T} offen{LD}",
                f"buffer_load_dwordx4 {vr(b + 4, 4)}, v{VH1}, {sr(SRD_WS, 4)}, s{S_T} offen{LD}"]

    def gemm_start(self, e2):
        A = self.A
        tok = None
        for x in (e2[0] + e2[1] if e2 else sum([self.wd_dma(ks) for ks in range(6)], [])):
            tok = A(x)
        A("s_setprio 2")
        for ks in range(6, 6 + self.opt.get("gearly", 0)):
            for x in self.wd_dma(ks):
                A(x)
        self.precompute(A, 1)
        self.arrived_load()
        A.wait_tok(tok)

    def gemm_main(self):
        A = self.A
        toks = {}
        A.clear()
        first = 6 + self.opt.get("gearly", 0)
        for ks in range(6, first):
            for _ in range(2):
                A.nid += 1
                A.vm.append([A.nid, set()])
                toks[ks] = A.nid
        A.nid += 1
        A.vm.append([A.nid, {"v7"}])
        dbgtok = A.nid

        def issue(lst, key=None):
            for x in lst:
                t = A(x)
                if t and key is not None:
                    toks[key] = t

        def trr(ks):
            reg, sl = self.slot(ks)
            a = VAWA if reg == "A" else VAWB
            b = WBUF + 8 * (ks % 10)
            o = sl * 2048
            A.wait_tok(toks.get(ks))
            issue([f"ds_read_b64_tr_b16 {vr(b, 2)}, v{a} offset:{o}",
                   f"ds_read_b64_tr_b16 {vr(b + 2, 2)}, v{a} offset:{o + 1024}",
                   f"ds_read_b64_tr_b16 {vr(b + 4, 2)}, v{a + 1} offset:{o}",
                   f"ds_read_b64_tr_b16 {vr(b + 6, 2)}, v{a + 1} offset:{o + 1024}"], ("r", ks))

        def dma(ks):
            if ks >= 13:
                A.wait_tok(toks[("r", ks - 13)])
            issue(self.wd_dma(ks), ks)

        def mm(ks):
            for jj in range(4):
                A(mfma(ACC + 16 * jj, WBUF + 8 * (ks % 10) + 4 * (jj & 1), HB + 8 * (ks % 10) + 4 * (jj >> 1),
                       "0" if ks == 0 else None))

        A(f"""
        ds_write_b32 v{VHW}, v{VHW}
        v_xor_b32 v5, 64, v{VTR}
        v_add_u32 v{VAWA}, s{S_RA}, v{VTR}
        v_add_u32 v{VAWA + 1}, s{S_RA}, v5
        v_and_b32 v13, 7, v0
        v_lshlrev_b32 v13, 8, v13
        v_add_u32 v13, {M_HW}, v13
        """)
        for ks in range(6):
            trr(ks)
        A(f"""
        v_mov_b32 v{GL16}, v{VL16}
        v_add_u32 v{VAWB}, s{S_RB}, v{VTR}
        v_add_u32 v{VAWB + 1}, s{S_RB}, v5
        s_lshr_b32 s{S_T}, s{S_GW}, 1
        s_mul_i32 s{S_T}, s{S_T}, 114688
        v_add_u32 v{VH0}, s{S_T}, v{GL16}
        s_sub_u32 s{S_T}, 114688, s{S_T}
        v_add_u32 v{VH1}, s{S_T}, v{GL16}
        """)
        self.sync_addresses(M_GS, GSW, GSR)
        load = "ds_read_b32 v6, v13"
        tk = A(load)
        self.check_words(load, "v_cmp_eq_u32 vcc, 0, v6", tk, nap=1)
        self.one_lane_store(2, S_F1, wave=4)
        self.stamp(A, "g_hw")
        A(f"s_cmp_ge_u32 s{S_NB}, 7")
        A(f"s_cbranch_scc1 {self.name}_exit")
        self.arrived_check(dbgtok)
        A(f"""
        v_and_b32 v5, 31, v0
        v_lshlrev_b32 v5, 2, v5
        buffer_load_dword v{VG}, v5, {sr(SRD_WS, 4)}, s{S_GOFF} offen{LD}
        """)
        A(f"v_add_u32 v{VPW}, s{S_RA}, v{GL16}")
        A(f"v_subrev_u32 v{VGATE}, {M_GS - M_AS}, v{GSR}")
        for jj in range(1, 4):
            A(f"""
            s_xor_b32 s{S_T}, s{S_GW}, {jj}
            s_mul_i32 s{S_T}, s{S_T}, 12288
            s_add_u32 s{S_T}, s{S_T}, {L_RING + 4096 * (jj - 1)}
            v_add_u32 v{VPR + jj - 1}, s{S_T}, v{GL16}
            """)
        self.tail_setup(1)
        deep = self.opt.get("gdeep", 3)
        for ks in range(first, 23):
            if 6 <= ks - 7 < 10:
                trr(ks - 7)
            A.wait_tok(toks.get(ks - deep))
            dma(ks)
        self.stamp(A, "g_dma")
        tok = self.masked("15", POLL)
        self.check_words(POLL, "v_cmp_ne_u32 vcc, 2, v6", tok, mask="15", nap=2)
        A(f"v_sub_f32 v{VG}, 1.0, v{VG}")
        self.stamp(A, "g_flags")
        self.stamp(A, "rt_gflags")
        A("s_setprio 0")
        nh = self.opt.get("nh", 3)
        for ks in range(nh):
            issue(self.h_load(ks))
        ramp = 28 - NDEF - (10 - nh)
        for ks in range(28 - NDEF):
            mm(ks)
            for _ in range(2 if ks >= ramp else 1):
                if nh < 28:
                    assert nh - 10 <= ks
                    issue(self.h_load(nh))
                    nh += 1
            trr(ks + 10)
            if 1 <= ks <= 5:
                dma(ks + 22)
        assert nh == 28
        A.wait_tok(toks[("r", 25)])
        for n in range(7):
            issue(self.wo_dma(n))
        A("s_waitcnt lgkmcnt(0)")
        self.stamp(A, "g_pre")
        self.stamp(A, "rt_gpre")
        load = f"ds_read_b32 v6, v{VGATE}"
        tk = A(load)
        self.check_words(load, "v_cmp_eq_u32 vcc, 0, v6", tk, nap=2)
        wr = []
        for jj in (1, 2, 3, 0):
            for n, ks in enumerate(range(28 - NDEF, 28)):
                A(mfma(ACC + 16 * jj, WBUF + 8 * (ks % 10) + 4 * (jj & 1), HB + 8 * (ks % 10) + 4 * (jj >> 1)))
                if n >= 2 and wr:
                    A(wr.pop(0))
            assert not wr
            wr = [f"ds_write_b128 v{VPW}, {vr(ACC + 16 * jj + 4 * q, 4)} offset:{4096 * (jj - 1) + 1024 * q}" for q in range(4)]
            if jj == 3:
                wr.append(f"ds_write_b32 v{GSW}, v{GSW}")
        self.stamp(A, "g_loop")
        self.stamp(A, "rt_gloop")
        load = f"ds_read_b32 v6, v{GSR}"
        self.check_words(load, "v_cmp_eq_u32 vcc, 0, v6", A(load))
        for q in range(4):
            for jj in range(1, 4):
                A(f"ds_read_b128 {vr(ACC + 16 * jj + 4 * q, 4)}, v{VPR + jj - 1} offset:{1024 * q}")
        for q in range(4):
            r0 = (4 * q, 4 * q + 2)
            for r in r0:
                A(f"v_pk_add_f32 {vr(ACC + 16 + r, 2)}, {vr(ACC + 16 + r, 2)}, {vr(ACC + 32 + r, 2)}")
            for r in r0:
                A(f"v_pk_add_f32 {vr(ACC + r, 2)}, {vr(ACC + r, 2)}, {vr(ACC + 48 + r, 2)}")
            for r in r0:
                A(f"v_pk_add_f32 {vr(ACC + r, 2)}, {vr(ACC + r, 2)}, {vr(ACC + 16 + r, 2)}")
            for r in r0:
                A(f"v_pk_mul_f32 {vr(ACC + r, 2)}, {vr(ACC + r, 2)}, {vr(VG, 2)} op_sel_hi:[1,0]")

    def tail_setup(self, role):
        A = self.A
        A(f"""
        s_lshl_b32 s{S_T}, s{S_MB}, 5
        s_add_u32 s{S_T}, s{S_T}, s{S_GW}
        s_lshl_b32 s{S_MO}, s{S_T}, 7
        s_add_u32 s{S_MO}, s{S_MO}, {FLAG_O + role * 2048}
        v_lshlrev_b32 v{VTP if role else 5}, 9, v0
        s_lshl_b32 s{10 if role else S_T3}, s{S_T}, 11
        s_add_u32 s{10 if role else S_T3}, s{10 if role else S_T3}, {WS_O + role * 32768}
        s_lshl_b32 s{11 if role else S_T2}, s{S_GW}, 11
        """)
        if role == 1:
            srd(A, SRD_OUT, P_OUT, S * D * 2)
            A(f"""
            s_lshr_b32 s{S_T}, s{S_GW}, 1
            s_lshl_b32 s{S_OFF}, s{S_T}, 15
            s_add_u32 s{S_OFF}, s{S_OFF}, {L_O}
            v_add_u32 v14, s{S_OFF}, v{GL16}
            s_mul_i32 s{S_T}, s{S_GW}, 2560
            s_add_u32 s{S_T}, s{S_T}, {L_TR}
            v_and_b32 v7, 31, v0
            v_mul_u32_u24 v7, 80, v7
            v_lshrrev_b32 v8, 5, v0
            v_lshl_add_u32 v7, v8, 5, v7
            v_add_u32 v7, s{S_T}, v7
            v_lshrrev_b32 v4, 2, v0
            v_and_b32 v15, 3, v0
            v_lshlrev_b32 v15, 4, v15
            v_mul_u32_u24 v8, 80, v4
            v_add_u32 v8, v8, v15
            v_add_u32 v8, s{S_T}, v8
            v_mul_u32_u24 v4, 896, v4
            v_add_u32 v{VOUT}, v4, v15
            s_add_u32 s{S_OFF}, s{S_OUTO}, {16 * 896}
            """)

    def tail(self, role):
        A = self.A
        L16 = GL16 if role else VL16
        load = f"buffer_load_dword v6, v{VTP if role else 5}, {sr(SRD_WS, 4)}, s{S_MO} offen sc1"
        if role == 1:
            A("s_waitcnt vmcnt(0)")
        tok = self.masked("15", load)
        A.wait(lg=0)
        self.stamp(A, "t_bar0")
        A("s_barrier")
        self.stamp(A, "t_bar1")
        self.check_words(load, "v_cmp_ne_u32 vcc, 1, v6", tok, mask="15")
        self.stamp(A, "t_flag")
        self.stamp(A, "rt_tflag")
        toks = []
        for step in range(4):
            A(f"s_add_u32 m0, s{11 if role else S_T2}, {L_O + role * 32768 + step * 8192}")
            A(f"s_add_u32 s{S_T}, s{10 if role else S_T3}, {step * 8192}")
            for q in range(2):
                t = A(f"buffer_load_dwordx4 v{L16}, {sr(SRD_WS, 4)}, s{S_T} offen offset:{1024 * q} sc1 lds")
            toks.append(t)
        A.wait_tok(toks[0])
        A("s_barrier")
        self.stamp(A, "t_odata")
        self.stamp(A, "rt_odata")
        if role == 0:
            for step in range(1, 4):
                A.wait_tok(toks[step])
                A("s_barrier")
            return

        def rd(k):
            o = (28 * (k >> 1) + 16 * (k & 1)) * 128
            b = k % 4
            return [f"ds_read_b128 {vr(TB_ + 4 * b, 4)}, v14 offset:{k * 1024}",
                    f"ds_read_b64_tr_b16 {vr(TA_ + 4 * b, 2)}, v{VTR} offset:{o}",
                    f"ds_read_b64_tr_b16 {vr(TA_ + 4 * b + 2, 2)}, v{VTR} offset:{o + 1024}"]

        for k in range(3):
            for x in rd(k):
                A(x)
        for k in range(32):
            A(mfma(ACC, TA_ + 4 * (k % 4), TB_ + 4 * (k % 4)))
            if k + 3 < 32:
                if (k + 3) % 8 == 0:
                    A.wait_tok(toks[(k + 3) // 8])
                    A("s_barrier")
                for x in rd(k + 3):
                    A(x)
        self.stamp(A, "t_mm")
        for hf in range(2):
            for jj in range(4):
                A(f"v_cvt_pk_bf16_f32 v{TA_ + 4 * hf + jj}, v{ACC + 8 * hf + 2 * jj}, v{ACC + 8 * hf + 2 * jj + 1}")
            A(f"ds_write_b128 v7, {vr(TA_ + 4 * hf, 4)} offset:{16 * hf}")
        for q in range(2):
            A(f"ds_read_b128 {vr(TB_ + 4 * q, 4)}, v8 offset:{16 * 80 * q}")
        for q in range(2):
            A(f"buffer_store_dwordx4 {vr(TB_ + 4 * q, 4)}, v{VOUT}, {sr(SRD_OUT, 4)}, s{S_OFF if q else S_OUTO} offen{('', ' sc1', ' nt', ' sc0 sc1')[self.opt.get('ost', 0)]}")

    def finish(self):
        A = self.A
        if self.opt.get("pad_end"):
            A("s_waitcnt vmcnt(0)")
            self.pad("end")
        if self.stamp.enabled:
            A("s_waitcnt vmcnt(0)")
            self.stamp(A, "t_end")
            self.stamp(A, "rt_end")
            self.stamp.flush(A)
        A("s_endpgm")

    def build(self):
        A, name = self.A, self.name
        A(f".globl {name}\n.p2align 8\n.type {name},@function\n{name}:")
        A("s_cmp_ge_u32 s2, 256")
        A(f"s_cbranch_scc1 {name}_exit")
        if any(k.startswith("pad_") for k in self.opt):
            A("s_memrealtime s[96:97]")
        self.stamp(A, "rt0")
        self.stamp(A, "t0")
        p1.SX = self.opt.get('sx')
        p1.decode(A)
        A(f"s_cmp_ge_u32 s{p1.S_CG}, 14")
        A(f"s_cbranch_scc1 {name}_q")
        st0 = A.save()
        p1.programs(A, "KV", ST + self.opt.get("ntkv", 0) * " nt", self.hooks(True), self.opt)
        A.restore(st0)
        A(f"{name}_q:")
        p1.programs(A, "Q", ST + self.opt.get("ntq", 0) * " nt", self.hooks(False), self.opt)
        if self.opt.get("p1exit") or self.opt.get("p2exit"):
            for f in self.late:
                A.clear()
                f(A)
            A(f"{name}_exit:")
            A("s_endpgm")
            pads = A.fix_hazards()
            return A.text(), kernel_desc(name), pads
        e2 = p1.final_epilogue(ST + self.opt.get("ntkv", 0) * " nt")
        A.clear()
        self.target(A, f"{name}_a_plain")
        tok = self.arrived_load()
        for x in sum(sum(self.setup_units(), []), []):
            A(x)
        self.arrived_check(tok)
        A(f"s_branch {name}_a_poll")
        self.target(A, f"{name}_a_late")
        for x in e2[0] + e2[1]:
            A(x)
        self.target(A, f"{name}_a_poll", inline=True)
        tok = self.masked(POLLMASK, POLL)
        self.check_words(POLL, "v_cmp_eq_u32 vcc, 0, v6", tok, mask=POLLMASK)
        self.stamp(A, "a_flags")
        self.stamp(A, "rt_aflags")
        A(f"s_mov_b32 s{S_OFF}, 0")
        for x in sum(self.first_loads(), []):
            A(x)
        A(f"ds_write_b32 v{VHW}, v{VHW}")
        A(f"s_branch {name}_a_go")
        plain = A.save()
        A.clear()
        self.target(A, f"{name}_a_e2")
        self.masked(POLLMASK, "v_cmp_eq_u32 vcc, 0, v6")
        A(f"s_cbranch_vccnz {name}_a_late")
        self.stamp(A, "a_flags")
        self.stamp(A, "rt_aflags")
        A(f"s_mov_b32 s{S_OFF}, 0")
        work = e2[0][:-2] + e2[1][:-2]
        fl = self.first_loads()
        step = self.opt.get("lstep", 9)
        for k, x in enumerate(work):
            if k % step == 0 and fl:
                for y in fl.pop(0):
                    A(y)
            A(x)
        assert not fl
        for x in e2[0][-2:] + e2[1][-2:]:
            A(x)
        self.stamp(A, "a_e2b")
        assert [x for x in A.state()[0] if x] == [tuple(sorted(e[1])) for e in plain[0]]
        A.restore(plain)
        A.lg = []
        self.target(A, f"{name}_a_go", inline=True)
        A(f"s_mov_b32 s{S_LO}, {f32(2.0 ** -30)}")
        A(f"v_mov_b32 v{VHI}, {f32(2.0 ** 30)}")
        self.mask_q(0)
        A(self.qk(0, 0))
        A(self.qk(0, 1))
        A("s_setprio 1")
        self.stamp(A, "a_first")
        self.stamp(A, "rt_afirst")
        self.attn_main()
        self.attn_finish()
        self.stamp(A, "a_pub")
        self.stamp(A, "rt_pub")
        A(f"s_cmp_ge_u32 s{S_NB}, 7")
        A(f"s_cbranch_scc1 {name}_a_done")
        self.tail(0)
        A(f"{name}_a_done:")
        self.finish()
        A.clear()
        self.target(A, f"{name}_g_plain")
        self.gemm_start(None)
        A(f"s_branch {name}_g_go")
        A.clear()
        self.target(A, f"{name}_g_e2")
        self.gemm_start(e2)
        self.target(A, f"{name}_g_go", inline=True)
        self.gemm_main()
        self.tail(1)
        self.finish()
        self.slow_path()
        k = 0
        while k < len(self.late):
            A.clear()
            self.late[k](A)
            k += 1
        A(f"{name}_exit:")
        A("s_endpgm")
        pads = A.fix_hazards()
        return A.text(), kernel_desc(name), pads


HEADER = open("gated_mix__mha_block__glu_gated_geglu__prompt.s.ref").read().split("; Override")[0]


def main():
    diag = "diag" in sys.argv
    name = "gated_mix__mha_block__glu_gated_geglu__prompt_kernel"
    sets = {"diag": "rt0 t0 p1_pass2 a_flags a_first a_loop a_pub t_flag t_end rt_end g_hw g_dma g_flags g_pre g_loop",
            "diagt": "rt0 t0 a_first a_loop a_sync a_st a_pub t_bar0 t_bar1 t_flag t_odata t_mm t_end g_loop rt_end",
            "diagp": "rt0 t0 p1_pass1 p2_4 p2_8 p2_16 p1_pass2 a_flags a_first a_loop t_end rt_end",
            "diagb": "rt0 t0 b2_pre b2_vm b2_post b3_pre b3_vm t_end rt_end",
            "diagc": "rt0 t0 b5_pre b5_vm b5_post b7_pre b7_vm t_end rt_end",
            "diagd": "rt0 t0 p2_4 c7_pre c7_vm c7_post p2_8 t_end rt_end",
            "diage": "rt0 t0 c9_pre c9_vm c9_post c15_pre c15_vm t_end rt_end",
            "diagr": "rt0 t0 p1_first p1_pass1 rt_first rt_pass1 t_end rt_end",
            "diagz": "rt0 rt_end",
            "diagrt": "rt0 rt_first rt_pass1 rt_pubq rt_pass2 rt_aflags rt_afirst rt_loop rt_pub rt_tflag rt_odata rt_end rt_gflags rt_gpre",
            "diags": "rt0 t0 p1_pass1 p1_pass2 rt_pass1 rt_pass2 p2_8 t_end rt_end",
            "diaga": "rt0 t0 p1_pass2 a_flags a_e2b a_first a_t0 a_t4 a_t8 a_t16 t_end rt_end",
            "diagru": "rt0 rtkarg rtdma0 rtpro rtvm0 rt_first rtb1 rt_end",
            "diagrv": "rt0 rtb1 rtb2 rtb3 rtb4 rtb5 rtb6 rt_end",
            "diagsp": "rt0 t0 p1_pass1 p1_pass2 q_2b q_epi q_drain t_end rt_end",
            "diagq": "rt0 t0 karg dma0 p1_first p1_pass1 p2_4 t_end rt_end"}
    which = [a for a in sys.argv if a in sets]
    diag = bool(which)
    st = Stamps(diag, sets[which[0]].split() if diag else None)
    opt = {a.split("=")[0]: int(a.split("=")[1]) for a in sys.argv[1:] if "=" in a}
    g = Gen(name, st, opt)
    code, kd, pads = g.build()
    print(HEADER.rstrip())
    print("; @launch grid=(256,1,1) block=(512,1,1) lds=163840")
    if diag:
        print("; stamps: " + " ".join(st.only))
    print('.amdgcn_target "amdgcn-amd-amdhsa--gfx950"\n.text')
    print(code)
    print('.section .rodata,"a"\n.p2align 6')
    print(kd)


if __name__ == "__main__":
    main()
```

```python
import sys
from common import *
import phase1 as p1

ST = " sc1"
LD = " sc1"

FLAG_S = WS_FLAG
FLAG_O = WS_FLAG + 0x8000
SPIN = 1 << 17

L_WO, L_RING, L_OP, L_MISC = 0, 57344, 106496, 155648
L_O = L_RING
L_TR = 131072
M_HW, M_AS, M_GS, M_MAX = L_MISC, L_MISC + 2048, L_MISC + 3072, L_MISC + 4096

S_F1, S_SPIN = 27, 3
S_HEAD, S_QB, S_MB, S_NB, S_GW = range(66, 71)
S_AG = 61
S_MO, S_T, S_T2, S_T3, S_OFF, S_CNT = 54, 56, 57, 58, 60, 61
SRD_DBG, SRD_OUT = 48, 48
SRD_K, SRD_V, S_Q, S_ME, S_OO, S_OF = 72, 76, 80, 84, 86, 87
SRD_WD, SRD_WO = 72, 76
S_RA, S_RB, S_WDO, S_WOO, S_HOFF, S_GOFF, S_OUTO = range(80, 87)

VL16 = p1.VL16
VPOLL, VHW = 12, 14
OA, SB, PB, VB, KB, QF = 16, 80, 112, 160, 192, 224
VV0, VGA, VONE, VM, VHI = 10, 11, 13, 1, 7
VMLO, VMHI, VGAD = 120, 121, 122
S_LO = 62
VK = [VL16, 144, 145, 146]
VV = [VV0] + list(range(147, 154))
VXA, VSW, VSR = 154, 158, 159
ACC, HB, WBUF = 16, 80, 160
GL16, GSW, GSR = 1, 2, 3
NDEF = 10
VDW0, VDW1, VTR = 9, 10, 11
VH0, VH1, VAWA, VAWB, VG = 242, 243, 244, 246, 248
VPW, VPR, VGATE, VOUT, VTP = 240, 250, 241, 253, 254
ACA, TB_, TA_ = 80, 96, 112
POLLMASK = "0x1ffff"
POLL = f"buffer_load_dword v6, v{VPOLL}, {sr(SRD_WS, 4)}, 0 offen sc1"


class Gen:
    def __init__(self, name, stamps, opt=None):
        self.A = Asm()
        self.name = name
        self.stamp = stamps
        self.opt = opt or {}
        self.late = []
        self.nlab = 0

    def pad(self, where):
        us = self.opt.get("pad_" + where)
        if not us:
            return
        A, L = self.A, self.lab("pad")
        A.auto = False
        A(f"{L}:")
        A("s_memrealtime s[98:99]")
        A._emit_raw("s_waitcnt lgkmcnt(0)")
        A("s_sub_u32 s98, s98, s96")
        A(f"s_cmp_lt_u32 s98, {us * 100}")
        A(f"s_cbranch_scc1 {L}")
        A.auto = True
        A.sm = set()

    def jitter(self, A=None):
        seed = self.opt.get("jitter")
        if not seed:
            return
        A = A or self.A
        self.njit = getattr(self, "njit", 0) + 1
        L = self.lab("jit")
        A(f"""
        s_lshl_b32 s98, s2, 3
        s_add_u32 s98, s98, s{S_WAVE}
        s_add_u32 s98, s98, {(seed * 7919 + self.njit * 104729) & 0xffff}
        s_mul_i32 s98, s98, 0x9E3779B1
        s_lshr_b32 s99, s98, 29
        s_lshr_b32 s98, s98, 12
        s_and_b32 s98, s98, 63
        s_lshr_b32 s98, s98, s99
        {L}:
        s_sleep 4
        s_sub_u32 s98, s98, 1
        s_cbranch_scc0 {L}
        """)

    def lab(self, s):
        self.nlab += 1
        return f"{self.name}_{s}{self.nlab}"

    def one_lane_store(self, value, soff, wave=None, tmp=5):
        A = self.A
        skip = None
        if wave is not None:
            skip = self.lab("skip")
            A(f"s_cmp_lg_u32 s{S_WAVE}, {wave}")
            A(f"s_cbranch_scc1 {skip}")
        A(f"v_mov_b32 v{tmp}, {value}")
        A("s_mov_b64 exec, 1")
        A.uncounted(f"buffer_store_dword v{tmp}, off, {sr(SRD_WS, 4)}, s{soff} sc1")
        A("s_mov_b64 exec, -1")
        if skip:
            A(f"{skip}:")

    def check_words(self, load, cmp_, tok, mask=None, nap=0):
        A = self.A
        ok, loop = self.lab("ok"), self.lab("again")
        A.wait_tok(tok)
        if mask:
            A(f"s_mov_b64 exec, {mask}")
        A(cmp_)
        A(f"s_cbranch_vccz {ok}")
        sv = A.save()
        A(f"s_mov_b32 s{S_SPIN}, {SPIN}")
        A(f"{loop}:")
        if nap:
            A(f"s_sleep {nap}")
        A(load)
        A("s_waitcnt vmcnt(0)" if load.startswith("buffer") else "s_waitcnt lgkmcnt(0)")
        A(cmp_)
        A(f"s_cbranch_vccz {ok}")
        A(f"s_sub_u32 s{S_SPIN}, s{S_SPIN}, 1")
        A(f"s_cbranch_scc0 {loop}")
        A.restore(sv)
        A(f"{ok}:")
        if mask:
            A("s_mov_b64 exec, -1")

    def target(self, A, label, inline=False):
        if not self.opt.get("warm", 0):
            A(f"{label}:")
            return
        if inline:
            A(f"s_branch {label}")
        A(".p2align 6")
        A(f"{label}_w:")
        A("s_setpc_b64 s[0:1]")
        A(f"{label}:")

    def warm(self, A, special, own):
        if not self.opt.get("warm", 0):
            return
        n = self.name
        t = own + ([f"{n}_a_plain", f"{n}_g_plain", f"{n}_a_poll", f"{n}_a_go", f"{n}_g_go"] if special else
                   [f"{n}_a_e2", f"{n}_g_e2", f"{n}_a_late", f"{n}_a_go"])
        for w, lab in enumerate(t):
            skip = self.lab("skip")
            A(f"s_cmp_lg_u32 s{S_WAVE}, {w}")
            A(f"s_cbranch_scc1 {skip}")
            A(f"s_call_b64 s[0:1], {lab}_w")
            A(f"{skip}:")

    DBG = f"buffer_load_dword v7, v8, {sr(SRD_DBG, 4)}, 0 offen sc1"

    def arrived_load(self):
        self.A("v_and_b32 v8, 3, v0")
        self.A("v_lshlrev_b32 v8, 6, v8")
        return self.A(self.DBG)

    def arrived_check(self, tok):
        self.check_words(self.DBG, "v_cmp_gt_u32 vcc, 64, v7", tok)

    def masked(self, mask, text):
        self.A(f"s_mov_b64 exec, {mask}")
        t = self.A(text)
        self.A("s_mov_b64 exec, -1")
        return t

    def hooks(self, early_poll):
        A = self.A
        st = {}

        def entry(A):
            self.jitter()
            self.code_prefetch(A)
            skip = self.lab("skip")
            A(f"""
            s_lshl_b32 s{S_F1}, s{p1.S_RB}, 4
            s_add_u32 s{S_F1}, s{S_F1}, s{p1.S_CG}
            s_lshl_b32 s{S_F1}, s{S_F1}, 7
            s_add_u32 s{S_F1}, s{S_F1}, {FLAG_S}
            s_cmp_lg_u32 s{S_WAVE}, 0
            s_cbranch_scc1 {skip}
            s_and_b32 s{p1.S_T}, s2, 7
            s_lshl_b32 s{p1.S_T}, s{p1.S_T}, 1
            s_lshr_b32 s{p1.S_T2}, s2, 7
            s_add_u32 s{p1.S_T}, s{p1.S_T}, s{p1.S_T2}
            s_bfe_u32 s{p1.S_T2}, s2, 0x40003
            s_lshl_b32 s{p1.S_T2}, s{p1.S_T2}, 6
            s_add_u32 s{p1.S_T}, s{p1.S_T}, s{p1.S_T2}
            s_lshl_b32 s{p1.S_T}, s{p1.S_T}, 7
            s_add_u32 s{p1.S_T}, s{p1.S_T}, {FLAG_O}
            v_mov_b32 v10, 0
            v_lshlrev_b32 v11, 11, v0
            s_mov_b64 exec, 15
            """)
            A.uncounted(f"buffer_store_dword v10, v11, {sr(SRD_WS, 4)}, s{p1.S_T} offen sc1")
            A("s_mov_b64 exec, 1")
            A.uncounted(f"buffer_store_dword v10, off, {sr(SRD_WS, 4)}, s{S_F1} sc1")
            A("s_mov_b64 exec, -1")
            A(f"{skip}:")

        def p1bar(A, stg, role):
            if stg in (2, 4, 7):
                self.jitter()
            if stg == 1:
                self.pad("b1")

            if stg == 7:
                self.pad("p1")
            if stg != 4:
                return
            srd(A, SRD_DBG, P_DBG, 256)
            if role:
                return
            skip = self.lab("skip")
            A(f"""
            s_cmp_lg_u32 s{S_WAVE}, 0
            s_cbranch_scc1 {skip}
            s_and_b32 s3, s2, 3
            s_lshl_b32 s3, s3, 6
            v_mov_b32 v13, 1
            s_mov_b64 exec, 1
            """)
            A.uncounted(f"buffer_atomic_add v13, off, {sr(SRD_DBG, 4)}, s3 sc1")
            A("s_mov_b64 exec, -1")
            A(f"{skip}:")


        def clear_misc(A):
            A(f"""
            s_lshl_b32 s3, s{S_WAVE}, 9
            s_add_u32 s3, s3, {L_MISC}
            v_lshl_add_u32 v8, v0, 3, s3
            v_mov_b64 v[6:7], 0
            ds_write_b64 v8, v[6:7]
            """)

        def p2step(A, t, role):
            if t in (3, 10, 17, 26):
                self.jitter()
            if t == 8 and early_poll:
                clear_misc(A)
            if t == 14 and early_poll and not role:
                st["dbg"] = self.arrived_load()
            if t in (4, 8, 12, 16, 20, 24):
                self.stamp(A, f"p2_{t}")
            if t == self.opt.get('polls', 25) - 1 and early_poll and not role:
                self.arrived_check(st["dbg"])
            if early_poll and not role and t >= 4:
                early, consts = self.setup_units()
                units, lo, hi = (early, 4, 12) if t < 12 else (consts, 12, 28)
                for u in units[len(units) * (t - lo) // (hi - lo):len(units) * (t + 1 - lo) // (hi - lo)]:
                    for x in u:
                        A(x)
            if early_poll and role and t >= 16 and t % 2 == 0:
                for x in self.wd_dma((t - 16) // 2):
                    A(x)
            if t == self.opt.get('polls', 25) and early_poll and not role:
                st["poll"] = self.masked(POLLMASK, POLL)

        def qkv_done(A, role):
            if not role:
                self.one_lane_store(1, S_F1, wave=0)
                self.stamp(A, "rt_pubq")

        def regular_end(A, role):
            self.jitter()
            if self.opt.get("pad_p2"):
                self.pad("p2")
                if not role:
                    st["poll"] = self.masked(POLLMASK, POLL)
            if not role:
                A.wait_tok(st["poll"])
            A(f"s_branch {self.name}_{'g' if role else 'a'}_e2")

        def special_end(A, role):
            self.jitter()
            A("s_waitcnt vmcnt(0) lgkmcnt(0)")
            self.stamp(A, "q_drain")
            A("s_barrier")
            qkv_done(A, role)
            self.pad("p2")
            clear_misc(A)
            A("s_waitcnt lgkmcnt(0)")
            A("s_barrier")
            A(f"s_branch {self.name}_{'g' if role else 'a'}_plain")

        h = dict(stamp=self.stamp, label=self.lab, entry=entry, prologue=self.warm, target=self.target, prefetch=self.data_prefetch, p1bar=p1bar, p2step=p2step,
                 idle=lambda A, role: self.precompute_g0(A) if role else self.precompute(A, 0),
                 qkv_done=qkv_done, regular_end=regular_end, special_end=special_end)
        if self.opt.get("p1exit"):
            h["p1exit"] = self.finish
        if self.opt.get("p2exit"):
            h["p2exit"] = self.finish
        return h

    def data_prefetch(self, A, which):
        if not self.opt.get("pf", 3) >> which & 1:
            return
        if which == 0 and self.opt.get("pfx"):
            skip, lab = self.opt.get("pfskip", 3), self.lab("skip")
            srd_tail(A, p1.SRD_G, D * F * 2)
            srd_tail(A, p1.SRD_U, D * F * 2)
            A.wait(lg=0)
            A(f"""
            s_bitcmp1_b32 s2, 2
            s_cbranch_scc1 {lab}
            s_lshr_b32 s10, s2, 3
            s_lshl_b32 s10, s10, 2
            s_and_b32 s11, s2, 3
            s_add_u32 s10, s10, s11
            s_lshl_b32 s10, s10, 3
            s_add_u32 s10, s10, s{S_WAVE}
            s_lshl_b32 s11, s10, 7
            v_lshl_add_u32 v13, v0, 17, s11
            s_mov_b32 s10, {skip * 64 * 3584}
            s_mov_b32 s11, {skip * 64 * 2688}
            s_mov_b64 exec, 0x3fff
            """)
            for d, so in ((p1.SRD_G, "s10"), (p1.SRD_U, "s10"), (p1.SRD_P, "s11"), (p1.SRD_X, "0")):
                A.uncounted(f"buffer_load_dword v11, v13, {sr(d, 4)}, {so} offen")
            A("s_mov_b64 exec, -1")
            A(f"{lab}:")
            return
        A(f"""
        s_lshl_b32 s10, s2, 3
        s_add_u32 s10, s10, s{S_WAVE}
        s_lshl_b32 s11, s10, 7
        v_lshl_add_u32 v13, v0, 18, s11
        """)
        if which == 0:
            skip = self.opt.get("pfskip", 3)
            srd_tail(A, p1.SRD_G, D * F * 2)
            srd_tail(A, p1.SRD_U, D * F * 2)
            A(f"""
            s_mul_i32 s10, s10, 896
            v_lshl_add_u32 v15, v0, 7, s10
            s_mov_b32 s10, {skip * 64 * 3584}
            s_mov_b32 s11, {skip * 64 * 2688}
            s_mov_b64 exec, {(1 << (7 - skip)) - 1}
            buffer_load_dword v11, v15, {sr(p1.SRD_X, 4)}, 0 offen offset:{128 * skip}
            buffer_load_dword v11, v13, {sr(p1.SRD_P, 4)}, s11 offen
            s_mov_b64 exec, 0x7f
            buffer_load_dword v11, v13, {sr(p1.SRD_G, 4)}, s10 offen
            buffer_load_dword v11, v13, {sr(p1.SRD_U, 4)}, s10 offen
            s_mov_b64 exec, -1
            """)
        else:
            srd(A, 4, P_WD, F * D * 2)
            srd(A, 12, P_WO, D * D * 2)
            A(f"""
            s_mov_b64 exec, 0x7f
            buffer_load_dword v11, v13, s[4:7], 0 offen
            buffer_load_dword v11, v13, s[12:15], 0 offen
            s_mov_b64 exec, -1
            """)

    def code_prefetch(self, A):
        if not self.opt.get("cpf", 1):
            return
        here, skip = self.lab("pc"), self.lab("skip")
        A(f"""
        s_cmp_lg_u32 s{S_WAVE}, 7
        s_cbranch_scc1 {skip}
        s_getpc_b64 s[0:1]
        {here}:
        s_sub_u32 s0, s0, {here}-{self.name}
        s_subb_u32 s1, s1, 0
        s_lshr_b32 s{p1.S_T}, s2, 3
        s_lshl_b32 s{p1.S_T}, s{p1.S_T}, 11
        v_lshl_add_u32 v10, v0, 7, s{p1.S_T}
        v_min_u32 v10, {self.name}_exit-{self.name}, v10
        s_mov_b64 exec, 0xffff
        """)
        A.uncounted("global_load_dword v11, v10, s[0:1]")
        A("v_lshlrev_b32 v10, 7, v0")
        A.uncounted(f"buffer_load_dword v11, v10, {sr(p1.SRD_GW, 4)}, 0 offen")
        A("s_mov_b64 exec, -1")
        A(f"{skip}:")

    def precompute(self, A, role):
        T, T2 = 0, 1
        A(f"""
        s_and_b32 s{T}, s2, 7
        s_lshr_b32 s{T2}, s2, 3
        s_lshl_b32 s{S_HEAD}, s{T}, 1
        s_lshr_b32 s{S_QB}, s2, 7
        s_add_u32 s{S_HEAD}, s{S_HEAD}, s{S_QB}
        s_and_b32 s{S_QB}, s{T2}, 15
        s_and_b32 s{S_GW}, s{S_WAVE}, 3
        s_lshl_b32 s{T}, s{S_WAVE}, 8
        s_add_u32 s{T}, s{T}, {M_HW}
        v_lshl_add_u32 v{VHW}, v0, 2, s{T}
        """)
        if role == 0:
            self.out_tile(A)
            self.precompute_a(A)
        else:
            self.precompute_g(A)

    def out_tile(self, A):
        sg = self.opt.get("sg")
        if sg is None:
            A(f"""
            s_and_b32 s{S_MB}, s2, 7
            s_lshl_b32 s{S_MB}, s{S_MB}, 2
            s_bfe_u32 s{S_NB}, s2, 0x20003
            s_add_u32 s{S_MB}, s{S_MB}, s{S_NB}
            s_lshr_b32 s{S_NB}, s2, 5
            """)
            return
        A(f"""
        s_add_u32 s0, s2, {7 - sg}
        s_and_b32 s0, s0, 7
        s_lshl_b32 s0, s0, 5
        s_lshr_b32 s1, s2, 3
        s_add_u32 s0, s0, s1
        s_mul_i32 s{S_MB}, s0, 9363
        s_lshr_b32 s{S_MB}, s{S_MB}, 16
        s_mul_i32 s1, s{S_MB}, 7
        s_sub_u32 s{S_NB}, s0, s1
        s_cmp_ge_u32 s0, 224
        s_cselect_b32 s{S_NB}, 7, s{S_NB}
        s_min_u32 s{S_MB}, s{S_MB}, 31
        """)

    def precompute_a(self, A):
        T, T2 = 0, 1
        a0, a1 = S_Q, S_Q + 1
        A(f"""
        s_mul_i32 s{T}, s{S_HEAD}, 28
        s_add_u32 s{T2}, s{T}, 27
        s_lshr_b32 s{a0}, s{T}, 6
        s_lshr_b32 s{a1}, s{T2}, 6
        s_sub_u32 s{a1}, s{a1}, s{a0}
        v_and_b32 v5, 1, v0
        v_mul_u32_u24 v5, s{a1}, v5
        v_bfe_u32 v6, v0, 1, 1
        v_mad_u32_u24 v5, v6, 7, v5
        v_bfe_u32 v6, v0, 2, 2
        v_lshl_add_u32 v5, v6, 4, v5
        s_lshl_b32 s{a1}, s{S_GW}, 6
        s_add_u32 s{a1}, s{a1}, s{a0}
        v_add_u32 v5, s{a1}, v5
        s_lshl_b32 s{a1}, s{S_QB}, 4
        s_lshr_b32 s{T}, s{S_HEAD}, 3
        s_add_u32 s{T}, s{T}, s{a1}
        s_add_u32 s{T}, s{T}, 14
        v_writelane_b32 v5, s{T}, 16
        v_lshlrev_b32 v5, 7, v5
        v_add_u32 v{VPOLL}, {FLAG_S}, v5
        v_lshrrev_b32 v5, 5, v0
        v_mul_u32_u24 v5, {7168 - 512}, v5
        v_add_u32 v{VV0}, v5, v{VL16}
        s_mul_i32 s{S_OO}, s{S_HEAD}, 7
        s_lshr_b32 s{S_OO}, s{S_OO}, 1
        s_lshl_b32 s{S_OO}, s{S_OO}, 9
        s_mul_i32 s{T2}, s{S_GW}, {16 * 28672}
        s_add_u32 s{T}, s{T2}, s{S_OO}
        s_add_u32 s{T}, s{T}, {WS_K}
        """)
        srd(A, SRD_K, P_WS, 16 * 28672, add=f"s{T}")
        A(f"""
        s_mul_i32 s{T}, s{S_HEAD}, 448
        s_add_u32 s{T}, s{T}, s{T2}
        s_add_u32 s{T}, s{T}, {WS_V}
        """)
        srd(A, SRD_V, P_WS, 16 * 28672, add=f"s{T}")
        A(f"s_lshl_b32 s{T2}, s{S_QB}, 2")
        for j in range(4):
            A(f"""
            s_add_u32 s{T}, s{S_GW}, {j + 1}
            s_and_b32 s{T}, s{T}, 3
            s_add_u32 s{T}, s{T}, s{T2}
            s_mul_i32 s{T}, s{T}, 28672
            s_add_u32 s{S_Q + j}, s{T}, s{S_OO}
            """)
        A(f"""
        s_add_u32 s{T}, s{T2}, s{S_GW}
        s_lshl_b32 s{S_OFF}, s{T}, 7
        s_add_u32 s{S_AG}, s{S_OFF}, {WS_G}
        s_lshl_b32 s{T}, s{T}, 4
        s_add_u32 s{T}, s{T}, s{S_HEAD}
        s_lshl_b32 s{S_OO}, s{T}, 11
        s_add_u32 s{S_OO}, s{S_OO}, {WS_O}
        s_lshl_b32 s{S_OF}, s{T}, 7
        s_add_u32 s{S_OF}, s{S_OF}, {FLAG_O}
        s_mov_b32 s{S_ME}, 0x0fffffff
        s_mov_b32 s{S_ME + 1}, 0x0fffffff
        """)

    def precompute_g0(self, A):
        T = 0
        srd(A, SRD_WD, P_WD, F * D * 2)
        A(f"""
        v_lshrrev_b32 v5, 3, v0
        v_mul_u32_u24 v6, 896, v5
        v_lshrrev_b32 v5, 2, v0
        v_and_b32 v5, 4, v5
        v_and_b32 v7, 7, v0
        v_xor_b32 v5, v5, v7
        v_lshl_add_u32 v{VDW0}, v5, 4, v6
        v_add_u32 v{VDW1}, {7168 - 1024}, v{VDW0}
        s_and_b32 s{S_GW}, s{S_WAVE}, 3
        s_mul_i32 s{S_RB}, s{S_GW}, 14336
        s_mul_i32 s{S_RA}, s{S_GW}, 12288
        s_add_u32 s{S_RA}, s{S_RA}, {L_RING}
        """)
        self.out_tile(A)
        A(f"""
        s_lshl_b32 s{T}, s{S_NB}, 7
        s_mul_i32 s{S_WDO}, s{S_GW}, {448 * 896}
        s_add_u32 s{S_WDO}, s{S_WDO}, s{T}
        """)

    def precompute_g(self, A):
        T, T2 = 0, 1
        srd(A, SRD_WO, P_WO, D * D * 2)
        A(f"""
        s_lshl_b32 s{T}, s{S_NB}, 7
        s_mul_i32 s{S_WOO}, s{S_GW}, {112 * 896}
        s_add_u32 s{S_WOO}, s{S_WOO}, s{T}
        s_and_b32 s{T2}, s{S_GW}, 1
        s_lshl_b32 s{S_OUTO}, s{T2}, 6
        s_add_u32 s{S_OUTO}, s{S_OUTO}, s{T}
        s_lshl_b32 s{T2}, s{T2}, 3
        v_and_b32 v5, 1, v0
        v_lshlrev_b32 v5, 2, v5
        v_bfe_u32 v6, v0, 1, 1
        v_add_u32 v5, v5, v6
        v_bfe_u32 v6, v0, 4, 1
        v_lshl_add_u32 v5, v6, 1, v5
        v_and_b32 v6, 8, v0
        v_xor_b32 v5, v5, v6
        v_xor_b32 v5, s{T2}, v5
        v_lshrrev_b32 v6, 5, v0
        v_bfe_u32 v7, v0, 2, 2
        v_lshl_add_u32 v6, v6, 2, v7
        v_lshlrev_b32 v6, 7, v6
        v_lshl_add_u32 v{VTR}, v5, 3, v6
        s_lshr_b32 s{T}, s{S_GW}, 1
        s_lshl_b32 s{T2}, s{S_MB}, 1
        s_add_u32 s{T}, s{T}, s{T2}
        s_lshl_b32 s{S_GOFF}, s{T}, 7
        s_add_u32 s{S_GOFF}, s{S_GOFF}, {WS_G}
        s_mul_i32 s{T}, s{T}, {32 * 896}
        s_add_u32 s{S_OUTO}, s{S_OUTO}, s{T}
        s_mul_i32 s{S_HOFF}, s{S_MB}, {2 * 114688}
        s_mul_i32 s{T}, s{S_GW}, {28 * 1024}
        s_add_u32 s{S_HOFF}, s{S_HOFF}, s{T}
        s_add_u32 s{S_HOFF}, s{S_HOFF}, {WS_H}
        s_lshr_b32 s{T}, s{S_MB}, 1
        s_lshl_b32 s{T}, s{T}, 4
        s_mul_i32 s{T2}, s{S_GW}, 7
        s_lshr_b32 s{T2}, s{T2}, 1
        s_add_u32 s{T}, s{T}, s{T2}
        s_lshl_b32 s{T}, s{T}, 7
        s_add_u32 s{T}, s{T}, {FLAG_S}
        v_and_b32 v5, 3, v0
        v_lshl_add_u32 v{VPOLL}, v5, 7, s{T}
        """)

    def k_load(self, b):
        return [f"buffer_load_dwordx4 {vr(KB + 8 * b, 4)}, v{VK[b]}, {sr(SRD_K, 4)}, s{S_OFF} offen{LD}",
                f"buffer_load_dwordx4 {vr(KB + 8 * b + 4, 4)}, v{VK[b]}, {sr(SRD_K, 4)}, s{S_OFF} offen offset:1024{LD}"]

    def v_load(self, b):
        return [f"s_mov_b64 exec, {sr(S_ME, 2)}",
                f"buffer_load_dwordx4 {vr(VB + 8 * b, 4)}, v{VV[2 * b]}, {sr(SRD_V, 4)}, s{S_OFF} offen{LD}",
                f"buffer_load_dwordx4 {vr(VB + 8 * b + 4, 4)}, v{VV[2 * b + 1]}, {sr(SRD_V, 4)}, s{S_OFF} offen{LD}",
                "s_mov_b64 exec, -1"]

    @staticmethod
    def qk(i, half):
        b, j = (i >> 2) & 3, i & 3
        return mfma(SB + 16 * (i & 1), KB + 8 * b + 4 * half, QF + 8 * j + 4 * half, "0" if half == 0 else None)

    @staticmethod
    def pv(i, half, first=False):
        b, j = (i >> 2) & 3, i & 3
        return mfma(OA + 16 * j, VB + 8 * b + 4 * half, PB + 4 * half, "0" if first else None)

    @staticmethod
    def grp(i, g):
        r = SB + 16 * (i & 1) + 4 * g
        return [f"v_exp_f32 v{r + k}, v{r + k}" for k in range(4)] + \
               [f"v_cvt_pk_bf16_f32 v{PB + 2 * g + k}, v{r + 2 * k}, v{r + 2 * k + 1}" for k in range(2)]

    def wait_pair(self, base):
        A = self.A
        want = {f"v{base + 7}"}
        for e in A.vm:
            if e[1] & want:
                A.wait_tok(e[0])
                return

    def setup_units(self):
        R = Rec()
        for b in range(1, 4):
            R(f"v_add_u32 v{VK[b]}, {b * 28672}, v{VL16}")
        for n in range(1, 8):
            R(f"v_add_u32 v{VV[n]}, {n * 14336}, v{VV0}")
        for j in range(4):
            R(f"""
            s_add_u32 s0, s{S_GW}, {j + 1}
            s_and_b32 s0, s0, 3
            s_mul_i32 s0, s0, 12288
            s_add_u32 s0, s0, {L_OP + (j % 3) * 4096}
            v_add_u32 v{VXA + j}, s0, v{VL16}
            """)
        self.sync_addresses(M_AS, A=R, T=0)
        R(f"""
        s_and_b32 s0, s{S_HEAD}, 1
        v_lshrrev_b32 v{VMLO}, 5, v0
        v_or_b32 v{VMHI}, s0, v{VMLO}
        v_xor_b32 v{VMHI}, s0, v{VMHI}
        v_add_u32 v{VMHI}, -1, v{VMHI}
        v_xor_b32 v{VMLO}, 1, v{VMLO}
        v_and_b32 v{VMLO}, s0, v{VMLO}
        v_add_u32 v{VMLO}, -1, v{VMLO}
        v_and_b32 v{VGAD}, 31, v0
        v_lshlrev_b32 v{VGAD}, 2, v{VGAD}
        """)
        R(f"""
        v_and_b32 v{VONE}, 31, v0
        v_cmp_eq_u32 s[0:1], 28, v{VONE}
        v_mov_b32 v{VONE}, 0x3f803f80
        v_cndmask_b32 v{VONE}, 0, v{VONE}, s[0:1]
        """)
        return R.units, [[f"v_mov_b32 v{VB + r}, v{VONE}"] for r in range(32)]

    def first_loads(self):
        q = lambda j: [[f"buffer_load_dwordx4 {vr(QF + 8 * j + 4 * t, 4)}, v{VL16}, {sr(SRD_WS, 4)}, s{S_Q + j} offen"
                        f"{' offset:1024' * t}{LD}"] for t in range(2)]
        k = lambda b: [[x] for x in self.k_load(b)]
        return q(0) + k(0) + q(1) + [self.v_load(0)] + q(2) + q(3) + k(1) + \
            [[f"buffer_load_dword v{VGA}, v{VGAD}, {sr(SRD_WS, 4)}, s{S_AG} offen{LD}"]]

    def mask_q(self, j):
        self.wait_pair(QF + 8 * j)
        for r, m in ((0, VMLO), (1, VMLO), (6, VMHI), (7, VMHI)):
            self.A(f"v_and_b32 v{QF + 8 * j + r}, v{QF + 8 * j + r}, v{m}")

    def attn_main(self):
        A = self.A
        todo = [x for kt in range(1, 16) for x in (("v", kt, 4 * kt - 12), ("k", kt + 1, 4 * kt - 10)) if x[1] < 16]
        base = 0

        def loads(i, kind):
            nonlocal base
            if not todo or todo[0][2] > i or (todo[0][2] == i and todo[0][0] != kind) or issued[0] == i:
                return []
            kd, kt, _ = todo.pop(0)
            issued[0] = i
            o = []
            if kt >> 2 != base:
                base = kt >> 2
                o.append(f"s_add_u32 s{S_OFF}, s{S_OFF}, {4 * 28672}")
            return o + (self.v_load(kt & 3) if kd == "v" else self.k_load(kt & 3))

        issued = [-1]
        for i in range(64):
            kt, b, j = i >> 2, (i >> 2) & 3, i & 3
            seq = []
            if i < 3:
                self.mask_q(i + 1)
            if i < 63:
                if j == 3:
                    self.wait_pair(KB + 8 * ((b + 1) & 3))
                seq.append(self.qk(i + 1, 0))
            seq += self.grp(i, 0)
            if i:
                seq.append(self.pv(i - 1, 1))
            seq += loads(i, "v")
            seq += self.grp(i, 1)
            if i < 63:
                seq.append(self.qk(i + 1, 1))
            seq += loads(i, "k")
            seq += self.grp(i, 2)
            for x in seq:
                A(x)
            if j == 0:
                self.wait_pair(VB + 8 * b)
            A(self.pv(i, 0, first=i < 4))
            if i == 4:
                A(f"ds_write_b32 v{VHW}, v{VHW}")
            if i in (0, 4, 8, 16):
                self.stamp(A, f"a_t{i}")
            g3 = self.grp(i, 3)
            if i > 60:
                w = [f"ds_write_b128 v{VXA + j - 1}, {vr(OA + 16 * (j - 1) + 4 * q, 4)} offset:{1024 * q}" for q in range(4)]
                g3 = [g3[0], w[0], g3[1], w[1], g3[2], w[2], g3[3], w[3]] + g3[4:]
            for x in g3:
                A(x)
            if i in (2, 30, 60, 62):
                self.jitter()
            if i == 63:
                self.pad("loop")
                A(f"ds_write_b32 v{VSW}, v{VSW}")
        assert not todo
        load = f"ds_read_b32 v6, v{VSR}"
        tok = A(load)
        A(self.pv(63, 1))
        self.stamp(A, "a_loop")
        self.stamp(A, "rt_loop")
        self.check_words(load, "v_cmp_eq_u32 vcc, 0, v6", tok)
        self.stamp(A, "a_sync")
        self.jitter()

    def lds_sync(self, value_reg, cmp_, VSW=VSW, VSR=VSR):
        A = self.A
        A(f"ds_write_b32 v{VSW}, v{value_reg}")
        load = f"ds_read_b32 v6, v{VSR}"
        tok = A(load)
        self.check_words(load, cmp_, tok)

    def sync_addresses(self, base, VSW=VSW, VSR=VSR, A=None, T=S_T):
        (A or self.A)(f"""
        s_lshl_b32 s{T}, s{S_GW}, 8
        s_add_u32 s{T}, s{T}, {base}
        v_lshl_add_u32 v{VSW}, v0, 2, s{T}
        v_and_b32 v{VSR}, 3, v0
        v_lshlrev_b32 v{VSR}, 8, v{VSR}
        v_add_u32 v{VSR}, {base}, v{VSR}
        """)

    def attn_finish(self):
        A = self.A
        R, O = VB, OA + 48
        order = [3, 0, 1, 2]
        for q in order:
            for p in range(3):
                A(f"ds_read_b128 {vr(R + 16 * p + 4 * q, 4)}, v{VXA + 3} offset:{4096 * p + 1024 * q}")
        for n, q in enumerate(order):
            for k in range(4):
                A(f"v_add_f32 v{R + 4 * q + k}, v{R + 4 * q + k}, v{R + 16 + 4 * q + k}")
            for k in range(4):
                A(f"v_add_f32 v{O + 4 * q + k}, v{O + 4 * q + k}, v{R + 32 + 4 * q + k}")
            for k in range(4):
                A(f"v_add_f32 v{O + 4 * q + k}, v{O + 4 * q + k}, v{R + 4 * q + k}")
            if n == 0:
                A(f"v_mov_b32 v8, v{O + 12}")
                A(f"v_mov_b32 v9, v{O + 12}")
            if n == 1:
                A("v_permlane32_swap_b32 v8, v9")
                A("v_rcp_f32 v12, v9")
            if n == 2:
                A(f"v_med3_f32 v8, v9, s{S_LO}, v{VHI}")
                A(f"v_mul_f32 v12, v12, v{VGA}")
                A("v_cmp_neq_f32 vcc, v8, v9")
        A(f"s_cbranch_vccnz {self.name}_slow")
        A(f"{self.name}_a_fin:")
        for hf in range(2):
            for r in range(8 * hf, 8 * hf + 8):
                A(f"v_mul_f32 v{O + r}, v{O + r}, v12")
            for jj in range(4 * hf, 4 * hf + 4):
                A(f"v_cvt_pk_bf16_f32 v{PB + jj}, v{O + 2 * jj}, v{O + 2 * jj + 1}")
            if hf == 0:
                A(f"buffer_store_dwordx4 {vr(PB, 4)}, v{VL16}, {sr(SRD_WS, 4)}, s{S_OO} offen{ST}")
        A(f"""
        s_mov_b32 exec_lo, 0
        v_mov_b64 {vr(PB + 6, 2)}, 0
        s_mov_b32 exec_lo, -1
        buffer_store_dwordx4 {vr(PB + 4, 4)}, v{VL16}, {sr(SRD_WS, 4)}, s{S_OO} offen offset:1024{ST}
        """)
        self.stamp(A, "a_st")
        self.jitter()
        self.tail_setup(0)
        A("s_waitcnt vmcnt(0)")
        self.one_lane_store(1, S_OF, tmp=8)

    def slow_path(self):
        A = self.A
        O, Q = OA + 48, QF + 24
        A.clear()
        A(f"{self.name}_slow:")
        A("s_waitcnt vmcnt(0) lgkmcnt(0)")
        A(f"s_mul_i32 s{S_T}, s{S_GW}, {16 * 28672}")
        for d in (SRD_K, SRD_V):
            A(f"s_sub_u32 s{d}, s{d}, s{S_T}")
            A(f"s_subb_u32 s{d + 1}, s{d + 1}, 0")
            A(f"s_mov_b32 s{d + 2}, {64 * 28672}")
        for r in range(8):
            A(f"v_mov_b32 v{VB + r}, v{VONE}")
        A(f"v_mov_b32 v{VM}, 0xff800000")
        for sub in (0, 1):
            lab = self.lab("slowloop")
            A(f"s_mov_b32 s{S_OFF}, 0")
            if sub:
                for r in range(16):
                    A(f"v_mov_b32 v{O + r}, 0")
            A(f"{lab}:")
            for x in self.k_load(0) + (self.v_load(0) if sub else []):
                A(x)
            A(mfma(SB, KB, Q, "0"))
            A(mfma(SB, KB + 4, Q + 4))
            if not sub:
                for r in range(0, 16, 2):
                    A(f"v_max3_f32 v{VM}, v{SB + r}, v{SB + r + 1}, v{VM}")
            else:
                for r in range(16):
                    A(f"v_sub_f32 v{SB + r}, v{SB + r}, v{VM}")
                for g in range(4):
                    for x in self.grp(0, g):
                        A(x)
                A(mfma(O, VB, PB))
                A(mfma(O, VB + 4, PB + 4))
            A(f"s_add_u32 s{S_OFF}, s{S_OFF}, 28672")
            A(f"s_cmp_lt_u32 s{S_OFF}, {64 * 28672}")
            A(f"s_cbranch_scc1 {lab}")
            if not sub:
                A(f"v_mov_b32 v9, v{VM}")
                A(f"v_permlane32_swap_b32 v9, v{VM}")
                A(f"v_max_f32 v{VM}, v9, v{VM}")
        A(f"""
        v_mov_b32 v8, v{O + 12}
        v_mov_b32 v9, v{O + 12}
        v_permlane32_swap_b32 v8, v9
        v_rcp_f32 v12, v9
        v_mul_f32 v12, v12, v{VGA}
        s_branch {self.name}_a_fin
        """)

    @staticmethod
    def slot(ks):
        k = ks % 13
        return ("A", k) if k < 6 else ("B", k - 6)

    def wd_dma(self, ks):
        reg, sl = self.slot(ks)
        return [f"s_add_u32 m0, s{S_RA if reg == 'A' else S_RB}, {sl * 2048}",
                f"s_add_u32 s0, s{S_WDO}, {ks * 16 * 896}",
                f"buffer_load_dwordx4 v{VDW0}, {sr(SRD_WD, 4)}, s0 offen lds",
                f"buffer_load_dwordx4 v{VDW1}, {sr(SRD_WD, 4)}, s0 offen offset:1024 lds"]

    def wo_dma(self, n):
        return [f"s_add_u32 m0, s{S_RB}, {n * 2048}",
                f"s_add_u32 s{S_T}, s{S_WOO}, {n * 16 * 896}",
                f"buffer_load_dwordx4 v{VDW0}, {sr(SRD_WO, 4)}, s{S_T} offen lds",
                f"buffer_load_dwordx4 v{VDW1}, {sr(SRD_WO, 4)}, s{S_T} offen offset:1024 lds"]

    def h_load(self, ks):
        b = HB + 8 * (ks % 10)
        return [f"s_add_u32 s{S_T}, s{S_HOFF}, {ks * 1024}",
                f"buffer_load_dwordx4 {vr(b, 4)}, v{VH0}, {sr(SRD_WS, 4)}, s{S_T} offen{LD}",
                f"buffer_load_dwordx4 {vr(b + 4, 4)}, v{VH1}, {sr(SRD_WS, 4)}, s{S_T} offen{LD}"]

    def gemm_start(self, e2):
        A = self.A
        tok = None
        for x in (e2[0] + e2[1] if e2 else sum([self.wd_dma(ks) for ks in range(6)], [])):
            tok = A(x)
        A("s_setprio 2")
        for ks in range(6, 6 + self.opt.get("gearly", 0)):
            for x in self.wd_dma(ks):
                A(x)
        self.precompute(A, 1)
        self.arrived_load()
        A.wait_tok(tok)

    def gemm_main(self):
        A = self.A
        toks = {}
        A.clear()
        first = 6 + self.opt.get("gearly", 0)
        for ks in range(6, first):
            for _ in range(2):
                A.nid += 1
                A.vm.append([A.nid, set()])
                toks[ks] = A.nid
        A.nid += 1
        A.vm.append([A.nid, {"v7"}])
        dbgtok = A.nid

        def issue(lst, key=None):
            for x in lst:
                t = A(x)
                if t and key is not None:
                    toks[key] = t

        def trr(ks):
            reg, sl = self.slot(ks)
            a = VAWA if reg == "A" else VAWB
            b = WBUF + 8 * (ks % 10)
            o = sl * 2048
            A.wait_tok(toks.get(ks))
            issue([f"ds_read_b64_tr_b16 {vr(b, 2)}, v{a} offset:{o}",
                   f"ds_read_b64_tr_b16 {vr(b + 2, 2)}, v{a} offset:{o + 1024}",
                   f"ds_read_b64_tr_b16 {vr(b + 4, 2)}, v{a + 1} offset:{o}",
                   f"ds_read_b64_tr_b16 {vr(b + 6, 2)}, v{a + 1} offset:{o + 1024}"], ("r", ks))

        def dma(ks):
            if ks >= 13:
                A.wait_tok(toks[("r", ks - 13)])
            issue(self.wd_dma(ks), ks)

        def mm(ks):
            for jj in range(4):
                A(mfma(ACC + 16 * jj, WBUF + 8 * (ks % 10) + 4 * (jj & 1), HB + 8 * (ks % 10) + 4 * (jj >> 1),
                       "0" if ks == 0 else None))

        A(f"""
        ds_write_b32 v{VHW}, v{VHW}
        v_xor_b32 v5, 64, v{VTR}
        v_add_u32 v{VAWA}, s{S_RA}, v{VTR}
        v_add_u32 v{VAWA + 1}, s{S_RA}, v5
        v_and_b32 v13, 7, v0
        v_lshlrev_b32 v13, 8, v13
        v_add_u32 v13, {M_HW}, v13
        """)
        for ks in range(6):
            trr(ks)
        A(f"""
        v_mov_b32 v{GL16}, v{VL16}
        v_add_u32 v{VAWB}, s{S_RB}, v{VTR}
        v_add_u32 v{VAWB + 1}, s{S_RB}, v5
        s_lshr_b32 s{S_T}, s{S_GW}, 1
        s_mul_i32 s{S_T}, s{S_T}, 114688
        v_add_u32 v{VH0}, s{S_T}, v{GL16}
        s_sub_u32 s{S_T}, 114688, s{S_T}
        v_add_u32 v{VH1}, s{S_T}, v{GL16}
        """)
        self.sync_addresses(M_GS, GSW, GSR)
        load = "ds_read_b32 v6, v13"
        tk = A(load)
        self.check_words(load, "v_cmp_eq_u32 vcc, 0, v6", tk, nap=1)
        self.one_lane_store(2, S_F1, wave=4)
        self.stamp(A, "g_hw")
        self.jitter()
        A(f"s_cmp_ge_u32 s{S_NB}, 7")
        A(f"s_cbranch_scc1 {self.name}_exit")
        self.arrived_check(dbgtok)
        A(f"""
        v_and_b32 v5, 31, v0
        v_lshlrev_b32 v5, 2, v5
        buffer_load_dword v{VG}, v5, {sr(SRD_WS, 4)}, s{S_GOFF} offen{LD}
        """)
        A(f"v_add_u32 v{VPW}, s{S_RA}, v{GL16}")
        A(f"v_subrev_u32 v{VGATE}, {M_GS - M_AS}, v{GSR}")
        for jj in range(1, 4):
            A(f"""
            s_xor_b32 s{S_T}, s{S_GW}, {jj}
            s_mul_i32 s{S_T}, s{S_T}, 12288
            s_add_u32 s{S_T}, s{S_T}, {L_RING + 4096 * (jj - 1)}
            v_add_u32 v{VPR + jj - 1}, s{S_T}, v{GL16}
            """)
        self.tail_setup(1)
        deep = self.opt.get("gdeep", 3)
        for ks in range(first, 23):
            if 6 <= ks - 7 < 10:
                trr(ks - 7)
            A.wait_tok(toks.get(ks - deep))
            dma(ks)
        self.stamp(A, "g_dma")
        self.jitter()
        tok = self.masked("15", POLL)
        self.check_words(POLL, "v_cmp_ne_u32 vcc, 2, v6", tok, mask="15", nap=2)
        A(f"v_sub_f32 v{VG}, 1.0, v{VG}")
        self.stamp(A, "g_flags")
        self.stamp(A, "rt_gflags")
        A("s_setprio 0")
        nh = self.opt.get("nh", 3)
        for ks in range(nh):
            issue(self.h_load(ks))
        ramp = 28 - NDEF - (10 - nh)
        for ks in range(28 - NDEF):
            mm(ks)
            if ks in (3, 11):
                self.jitter()
            for _ in range(2 if ks >= ramp else 1):
                if nh < 28:
                    assert nh - 10 <= ks
                    issue(self.h_load(nh))
                    nh += 1
            trr(ks + 10)
            if 1 <= ks <= 5:
                dma(ks + 22)
        assert nh == 28
        A.wait_tok(toks[("r", 25)])
        for n in range(7):
            issue(self.wo_dma(n))
        A("s_waitcnt lgkmcnt(0)")
        self.stamp(A, "g_pre")
        self.jitter()
        self.stamp(A, "rt_gpre")
        load = f"ds_read_b32 v6, v{VGATE}"
        tk = A(load)
        self.check_words(load, "v_cmp_eq_u32 vcc, 0, v6", tk, nap=2)
        wr = []
        for jj in (1, 2, 3, 0):
            for n, ks in enumerate(range(28 - NDEF, 28)):
                A(mfma(ACC + 16 * jj, WBUF + 8 * (ks % 10) + 4 * (jj & 1), HB + 8 * (ks % 10) + 4 * (jj >> 1)))
                if n >= 2 and wr:
                    A(wr.pop(0))
            assert not wr
            wr = [f"ds_write_b128 v{VPW}, {vr(ACC + 16 * jj + 4 * q, 4)} offset:{4096 * (jj - 1) + 1024 * q}" for q in range(4)]
            if jj == 3:
                wr.append(f"ds_write_b32 v{GSW}, v{GSW}")
        self.stamp(A, "g_loop")
        self.jitter()
        self.stamp(A, "rt_gloop")
        load = f"ds_read_b32 v6, v{GSR}"
        self.check_words(load, "v_cmp_eq_u32 vcc, 0, v6", A(load))
        for q in range(4):
            for jj in range(1, 4):
                A(f"ds_read_b128 {vr(ACC + 16 * jj + 4 * q, 4)}, v{VPR + jj - 1} offset:{1024 * q}")
        for q in range(4):
            r0 = (4 * q, 4 * q + 2)
            for r in r0:
                A(f"v_pk_add_f32 {vr(ACC + 16 + r, 2)}, {vr(ACC + 16 + r, 2)}, {vr(ACC + 32 + r, 2)}")
            for r in r0:
                A(f"v_pk_add_f32 {vr(ACC + r, 2)}, {vr(ACC + r, 2)}, {vr(ACC + 48 + r, 2)}")
            for r in r0:
                A(f"v_pk_add_f32 {vr(ACC + r, 2)}, {vr(ACC + r, 2)}, {vr(ACC + 16 + r, 2)}")
            for r in r0:
                A(f"v_pk_mul_f32 {vr(ACC + r, 2)}, {vr(ACC + r, 2)}, {vr(VG, 2)} op_sel_hi:[1,0]")

    def tail_setup(self, role):
        A = self.A
        A(f"""
        s_lshl_b32 s{S_T}, s{S_MB}, 5
        s_add_u32 s{S_T}, s{S_T}, s{S_GW}
        s_lshl_b32 s{S_MO}, s{S_T}, 7
        s_add_u32 s{S_MO}, s{S_MO}, {FLAG_O + role * 2048}
        v_lshlrev_b32 v{VTP if role else 5}, 9, v0
        s_lshl_b32 s{10 if role else S_T3}, s{S_T}, 11
        s_add_u32 s{10 if role else S_T3}, s{10 if role else S_T3}, {WS_O + role * 32768}
        s_lshl_b32 s{11 if role else S_T2}, s{S_GW}, 11
        """)
        if role == 1:
            srd(A, SRD_OUT, P_OUT, S * D * 2)
            A(f"""
            s_lshr_b32 s{S_T}, s{S_GW}, 1
            s_lshl_b32 s{S_OFF}, s{S_T}, 15
            s_add_u32 s{S_OFF}, s{S_OFF}, {L_O}
            v_add_u32 v14, s{S_OFF}, v{GL16}
            s_mul_i32 s{S_T}, s{S_GW}, 2560
            s_add_u32 s{S_T}, s{S_T}, {L_TR}
            v_and_b32 v7, 31, v0
            v_mul_u32_u24 v7, 80, v7
            v_lshrrev_b32 v8, 5, v0
            v_lshl_add_u32 v7, v8, 5, v7
            v_add_u32 v7, s{S_T}, v7
            v_lshrrev_b32 v4, 2, v0
            v_and_b32 v15, 3, v0
            v_lshlrev_b32 v15, 4, v15
            v_mul_u32_u24 v8, 80, v4
            v_add_u32 v8, v8, v15
            v_add_u32 v8, s{S_T}, v8
            v_mul_u32_u24 v4, 896, v4
            v_add_u32 v{VOUT}, v4, v15
            s_add_u32 s{S_OFF}, s{S_OUTO}, {16 * 896}
            """)

    def tail(self, role):
        A = self.A
        L16 = GL16 if role else VL16
        load = f"buffer_load_dword v6, v{VTP if role else 5}, {sr(SRD_WS, 4)}, s{S_MO} offen sc1"
        if role == 1:
            A("s_waitcnt vmcnt(0)")
        tok = self.masked("15", load)
        A.wait(lg=0)
        self.stamp(A, "t_bar0")
        A("s_barrier")
        self.stamp(A, "t_bar1")
        self.jitter()
        self.check_words(load, "v_cmp_ne_u32 vcc, 1, v6", tok, mask="15")
        self.stamp(A, "t_flag")
        self.jitter()
        self.stamp(A, "rt_tflag")
        toks = []
        for step in range(4):
            A(f"s_add_u32 m0, s{11 if role else S_T2}, {L_O + role * 32768 + step * 8192}")
            A(f"s_add_u32 s{S_T}, s{10 if role else S_T3}, {step * 8192}")
            for q in range(2):
                t = A(f"buffer_load_dwordx4 v{L16}, {sr(SRD_WS, 4)}, s{S_T} offen offset:{1024 * q} sc1 lds")
            toks.append(t)
        A.wait_tok(toks[0])
        A("s_barrier")
        self.stamp(A, "t_odata")
        self.jitter()
        self.stamp(A, "rt_odata")
        if role == 0:
            for step in range(1, 4):
                A.wait_tok(toks[step])
                A("s_barrier")
            return

        def rd(k):
            o = (28 * (k >> 1) + 16 * (k & 1)) * 128
            b = k % 4
            return [f"ds_read_b128 {vr(TB_ + 4 * b, 4)}, v14 offset:{k * 1024}",
                    f"ds_read_b64_tr_b16 {vr(TA_ + 4 * b, 2)}, v{VTR} offset:{o}",
                    f"ds_read_b64_tr_b16 {vr(TA_ + 4 * b + 2, 2)}, v{VTR} offset:{o + 1024}"]

        for k in range(3):
            for x in rd(k):
                A(x)
        for k in range(32):
            A(mfma(ACC, TA_ + 4 * (k % 4), TB_ + 4 * (k % 4)))
            if k + 3 < 32:
                if (k + 3) % 8 == 0:
                    A.wait_tok(toks[(k + 3) // 8])
                    A("s_barrier")
                for x in rd(k + 3):
                    A(x)
        self.stamp(A, "t_mm")
        self.jitter()
        for hf in range(2):
            for jj in range(4):
                A(f"v_cvt_pk_bf16_f32 v{TA_ + 4 * hf + jj}, v{ACC + 8 * hf + 2 * jj}, v{ACC + 8 * hf + 2 * jj + 1}")
            A(f"ds_write_b128 v7, {vr(TA_ + 4 * hf, 4)} offset:{16 * hf}")
        for q in range(2):
            A(f"ds_read_b128 {vr(TB_ + 4 * q, 4)}, v8 offset:{16 * 80 * q}")
        for q in range(2):
            A(f"buffer_store_dwordx4 {vr(TB_ + 4 * q, 4)}, v{VOUT}, {sr(SRD_OUT, 4)}, s{S_OFF if q else S_OUTO} offen{('', ' sc1', ' nt', ' sc0 sc1')[self.opt.get('ost', 0)]}")

    def finish(self):
        A = self.A
        if self.opt.get("pad_end"):
            A("s_waitcnt vmcnt(0)")
            skip = self.lab("skip")
            if "padwg" in self.opt:
                A(f"s_cmp_lg_u32 s2, {self.opt['padwg']}")
                A(f"s_cbranch_scc1 {skip}")
            self.pad("end")
            A(f"{skip}:")
        if self.stamp.enabled:
            A("s_waitcnt vmcnt(0)")
            self.stamp(A, "t_end")
            self.stamp(A, "rt_end")
            self.stamp.flush(A)
        A("s_endpgm")

    def build(self):
        A, name = self.A, self.name
        A(f".globl {name}\n.p2align 8\n.type {name},@function\n{name}:")
        A("s_cmp_ge_u32 s2, 256")
        A(f"s_cbranch_scc1 {name}_exit")
        if any(k.startswith("pad_") for k in self.opt):
            A("s_memrealtime s[96:97]")
        self.stamp(A, "rt0")
        self.stamp(A, "t0")
        p1.SX = self.opt.get('sx')
        p1.decode(A)
        A(f"s_cmp_ge_u32 s{p1.S_CG}, 14")
        A(f"s_cbranch_scc1 {name}_q")
        st0 = A.save()
        p1.programs(A, "KV", ST + self.opt.get("ntkv", 0) * " nt", self.hooks(True), self.opt)
        A.restore(st0)
        A(f"{name}_q:")
        p1.programs(A, "Q", ST + self.opt.get("ntq", 0) * " nt", self.hooks(False), self.opt)
        if self.opt.get("p1exit") or self.opt.get("p2exit"):
            for f in self.late:
                A.clear()
                f(A)
            A(f"{name}_exit:")
            A("s_endpgm")
            pads = A.fix_hazards()
            return A.text(), kernel_desc(name), pads
        e2 = p1.final_epilogue(ST + self.opt.get("ntkv", 0) * " nt")
        A.clear()
        self.target(A, f"{name}_a_plain")
        tok = self.arrived_load()
        for x in sum(sum(self.setup_units(), []), []):
            A(x)
        self.arrived_check(tok)
        A(f"s_branch {name}_a_poll")
        self.target(A, f"{name}_a_late")
        if self.opt.get("mid", 1):
            tok = self.masked(POLLMASK, POLL)
            for x in e2[0]:
                A(x)
            A.wait_tok(tok)
            self.masked(POLLMASK, "v_cmp_eq_u32 vcc, 0, v6")
            A(f"s_cbranch_vccz {name}_a_mid")
            for x in e2[1]:
                A(x)
        else:
            for x in e2[0] + e2[1]:
                A(x)
        self.target(A, f"{name}_a_poll", inline=True)
        tok = self.masked(POLLMASK, POLL)
        self.check_words(POLL, "v_cmp_eq_u32 vcc, 0, v6", tok, mask=POLLMASK)
        self.stamp(A, "a_flags")
        self.stamp(A, "rt_aflags")
        A(f"s_mov_b32 s{S_OFF}, 0")
        for x in sum(self.first_loads(), []):
            A(x)
        A(f"ds_write_b32 v{VHW}, v{VHW}")
        A(f"s_branch {name}_a_go")
        plain = A.save()
        if self.opt.get("mid", 1):
            A.clear()
            A(f"{name}_a_mid:")
            self.stamp(A, "a_flags")
            self.stamp(A, "rt_aflags")
            A(f"s_mov_b32 s{S_OFF}, 0")
            fl = self.first_loads()
            for k, x in enumerate(e2[1][:-2]):
                if k % 4 == 0 and fl:
                    for y in fl.pop(0):
                        A(y)
                A(x)
            assert not fl
            for x in e2[1][-2:]:
                A(x)
            A(f"s_branch {name}_a_go")
        A.clear()
        self.target(A, f"{name}_a_e2")
        self.masked(POLLMASK, "v_cmp_eq_u32 vcc, 0, v6")
        A(f"s_cbranch_vccnz {name}_a_late")
        self.stamp(A, "a_flags")
        self.stamp(A, "rt_aflags")
        A(f"s_mov_b32 s{S_OFF}, 0")
        work = e2[0][:-2] + e2[1][:-2]
        fl = self.first_loads()
        step = self.opt.get("lstep", 9)
        for k, x in enumerate(work):
            if k % step == 0 and fl:
                for y in fl.pop(0):
                    A(y)
            A(x)
        assert not fl
        for x in e2[0][-2:] + e2[1][-2:]:
            A(x)
        self.stamp(A, "a_e2b")
        assert [x for x in A.state()[0] if x] == [tuple(sorted(e[1])) for e in plain[0]]
        A.restore(plain)
        A.lg = []
        self.target(A, f"{name}_a_go", inline=True)
        A(f"s_mov_b32 s{S_LO}, {f32(2.0 ** -30)}")
        A(f"v_mov_b32 v{VHI}, {f32(2.0 ** 30)}")
        self.mask_q(0)
        A(self.qk(0, 0))
        A(self.qk(0, 1))
        A("s_setprio 1")
        self.stamp(A, "a_first")
        self.stamp(A, "rt_afirst")
        self.attn_main()
        self.attn_finish()
        self.stamp(A, "a_pub")
        self.stamp(A, "rt_pub")
        A(f"s_cmp_ge_u32 s{S_NB}, 7")
        A(f"s_cbranch_scc1 {name}_a_done")
        self.tail(0)
        A(f"{name}_a_done:")
        self.finish()
        A.clear()
        self.target(A, f"{name}_g_plain")
        self.gemm_start(None)
        A(f"s_branch {name}_g_go")
        A.clear()
        self.target(A, f"{name}_g_e2")
        self.gemm_start(e2)
        self.target(A, f"{name}_g_go", inline=True)
        self.gemm_main()
        self.tail(1)
        self.finish()
        self.slow_path()
        k = 0
        while k < len(self.late):
            A.clear()
            self.late[k](A)
            k += 1
        A(f"{name}_exit:")
        A("s_endpgm")
        pads = A.fix_hazards()
        return A.text(), kernel_desc(name), pads


HEADER = open("gated_mix__mha_block__glu_gated_geglu__prompt.s.ref").read().split("; Override")[0]


def main():
    diag = "diag" in sys.argv
    name = "gated_mix__mha_block__glu_gated_geglu__prompt_kernel"
    sets = {"diag": "rt0 t0 p1_pass2 a_flags a_first a_loop a_pub t_flag t_end rt_end g_hw g_dma g_flags g_pre g_loop",
            "diagt": "rt0 t0 a_first a_loop a_sync a_st a_pub t_bar0 t_bar1 t_flag t_odata t_mm t_end g_loop rt_end",
            "diagp": "rt0 t0 p1_pass1 p2_4 p2_8 p2_16 p1_pass2 a_flags a_first a_loop t_end rt_end",
            "diagb": "rt0 t0 b2_pre b2_vm b2_post b3_pre b3_vm t_end rt_end",
            "diagc": "rt0 t0 b5_pre b5_vm b5_post b7_pre b7_vm t_end rt_end",
            "diagd": "rt0 t0 p2_4 c7_pre c7_vm c7_post p2_8 t_end rt_end",
            "diage": "rt0 t0 c9_pre c9_vm c9_post c15_pre c15_vm t_end rt_end",
            "diagr": "rt0 t0 p1_first p1_pass1 rt_first rt_pass1 t_end rt_end",
            "diagz": "rt0 rt_end",
            "diagrt": "rt0 rt_first rt_pass1 rt_pubq rt_pass2 rt_aflags rt_afirst rt_loop rt_pub rt_tflag rt_odata rt_end rt_gflags rt_gpre",
            "diags": "rt0 t0 p1_pass1 p1_pass2 rt_pass1 rt_pass2 p2_8 t_end rt_end",
            "diaga": "rt0 t0 p1_pass2 a_flags a_e2b a_first a_t0 a_t4 a_t8 a_t16 t_end rt_end",
            "diagru": "rt0 rtkarg rtdma0 rtpro rtvm0 rt_first rtb1 rt_end",
            "diagrv": "rt0 rtb1 rtb2 rtb3 rtb4 rtb5 rtb6 rt_end",
            "diagsp": "rt0 t0 p1_pass1 p1_pass2 q_2b q_epi q_drain t_end rt_end",
            "diagq": "rt0 t0 karg dma0 p1_first p1_pass1 p2_4 t_end rt_end"}
    which = [a for a in sys.argv if a in sets]
    diag = bool(which)
    st = Stamps(diag, sets[which[0]].split() if diag else None)
    opt = {a.split("=")[0]: int(a.split("=")[1]) for a in sys.argv[1:] if "=" in a}
    g = Gen(name, st, opt)
    code, kd, pads = g.build()
    print(HEADER.rstrip())
    print("; @launch grid=(256,1,1) block=(512,1,1) lds=163840")
    if diag:
        print("; stamps: " + " ".join(st.only))
    print('.amdgcn_target "amdgcn-amd-amdhsa--gfx950"\n.text')
    print(code)
    print('.section .rodata,"a"\n.p2align 6')
    print(kd)


if __name__ == "__main__":
    main()
```

```python
import sys
from common import *
import phase1 as p1

ST = " sc1"
LD = " sc1"

FLAG_S = WS_FLAG
FLAG_O = WS_FLAG + 0x8000
FLAG_T = WS_FLAG + 0x30000
SPIN = 1 << 17

L_WO, L_RING, L_OP, L_MISC = 0, 57344, 106496, 155648
L_O = L_RING
L_TR = 131072
M_HW, M_AS, M_GS, M_TK = L_MISC, L_MISC + 2048, L_MISC + 3072, L_MISC + 4096

S_F1, S_SPIN = 27, 3
S_HEAD, S_QB, S_MB, S_NB, S_GW = range(66, 71)
S_AG = 61
S_MO, S_T, S_T2, S_T3, S_OFF, S_CNT = 54, 56, 57, 58, 60, 61
SRD_DBG, SRD_OUT = 48, 48
SRD_K, SRD_V, S_Q, S_ME, S_OO, S_OF = 72, 76, 80, 84, 86, 87
SRD_WD, SRD_WO = 72, 76
S_RA, S_RB, S_WDO, S_WOO, S_HOFF, S_GOFF, S_OUTO = range(80, 87)

VL16 = p1.VL16
VPOLL, VHW = 12, 14
OA, SB, PB, VB, KB, QF = 16, 80, 112, 160, 192, 224
VV0, VGA, VONE, VM, VHI = 10, 11, 13, 1, 7
VMLO, VMHI, VGAD = 120, 121, 122
S_LO = 62
VK = [VL16, 144, 145, 146]
VV = [VV0] + list(range(147, 154))
VXA, VSW, VSR = 154, 158, 159
ACC, HB, WBUF = 16, 80, 160
GL16, GSW, GSR = 1, 2, 3
NDEF = int([a for a in sys.argv if a.startswith('ndef=')][0][5:]) if any(a.startswith('ndef=') for a in sys.argv) else 10
VDW0, VDW1, VTR = 9, 10, 11
VH0, VH1, VAWA, VAWB, VG = 242, 243, 244, 246, 248
VPW, VPR, VGATE, VOUT, VTP = 240, 250, 241, 253, 254
ACA, TB_, TA_ = 80, 96, 112
POLLMASK = "0x1ffff"
POLL = f"buffer_load_dword v6, v{VPOLL}, {sr(SRD_WS, 4)}, 0 offen sc1"


class Gen:
    def __init__(self, name, stamps, opt=None):
        self.A = Asm()
        self.name = name
        self.stamp = stamps
        self.opt = opt or {}
        self.late = []
        self.nlab = 0

    def pad(self, where):
        us = self.opt.get("pad_" + where)
        if not us:
            return
        A, L = self.A, self.lab("pad")
        A.auto = False
        A(f"{L}:")
        A("s_memrealtime s[98:99]")
        A._emit_raw("s_waitcnt lgkmcnt(0)")
        A("s_sub_u32 s98, s98, s96")
        A(f"s_cmp_lt_u32 s98, {us * 100}")
        A(f"s_cbranch_scc1 {L}")
        A.auto = True
        A.sm = set()

    def jitter(self, A=None):
        seed = self.opt.get("jitter")
        if not seed:
            return
        A = A or self.A
        self.njit = getattr(self, "njit", 0) + 1
        L = self.lab("jit")
        A(f"""
        s_lshl_b32 s98, s2, 3
        s_add_u32 s98, s98, s{S_WAVE}
        s_add_u32 s98, s98, {(seed * 7919 + self.njit * 104729) & 0xffff}
        s_mul_i32 s98, s98, 0x9E3779B1
        s_lshr_b32 s99, s98, 29
        s_lshr_b32 s98, s98, 12
        s_and_b32 s98, s98, 63
        s_lshr_b32 s98, s98, s99
        {L}:
        s_sleep 4
        s_sub_u32 s98, s98, 1
        s_cbranch_scc0 {L}
        """)

    def lab(self, s):
        self.nlab += 1
        return f"{self.name}_{s}{self.nlab}"

    def one_lane_store(self, value, soff, wave=None, tmp=5):
        A = self.A
        skip = None
        if wave is not None:
            skip = self.lab("skip")
            A(f"s_cmp_lg_u32 s{S_WAVE}, {wave}")
            A(f"s_cbranch_scc1 {skip}")
        A(f"v_mov_b32 v{tmp}, {value}")
        A("s_mov_b64 exec, 1")
        A.uncounted(f"buffer_store_dword v{tmp}, off, {sr(SRD_WS, 4)}, s{soff} sc1")
        A("s_mov_b64 exec, -1")
        if skip:
            A(f"{skip}:")

    def check_words(self, load, cmp_, tok, mask=None, nap=0):
        A = self.A
        ok, loop = self.lab("ok"), self.lab("again")
        A.wait_tok(tok)
        if mask:
            A(f"s_mov_b64 exec, {mask}")
        A(cmp_)
        A(f"s_cbranch_vccz {ok}")
        sv = A.save()
        A(f"s_mov_b32 s{S_SPIN}, {SPIN}")
        A(f"{loop}:")
        if nap:
            A(f"s_sleep {nap}")
        A(load)
        A("s_waitcnt vmcnt(0)" if load.startswith("buffer") else "s_waitcnt lgkmcnt(0)")
        A(cmp_)
        A(f"s_cbranch_vccz {ok}")
        A(f"s_sub_u32 s{S_SPIN}, s{S_SPIN}, 1")
        A(f"s_cbranch_scc0 {loop}")
        A.restore(sv)
        A(f"{ok}:")
        if mask:
            A("s_mov_b64 exec, -1")

    def target(self, A, label, inline=False):
        if not self.opt.get("warm", 0):
            A(f"{label}:")
            return
        if inline:
            A(f"s_branch {label}")
        A(".p2align 6")
        A(f"{label}_w:")
        A("s_setpc_b64 s[0:1]")
        A(f"{label}:")

    def warm(self, A, special, own):
        if not self.opt.get("warm", 0):
            return
        n = self.name
        t = own + ([f"{n}_a_plain", f"{n}_g_plain", f"{n}_a_poll", f"{n}_a_go", f"{n}_g_go"] if special else
                   [f"{n}_a_e2", f"{n}_g_e2", f"{n}_a_late", f"{n}_a_go"])
        for w, lab in enumerate(t):
            skip = self.lab("skip")
            A(f"s_cmp_lg_u32 s{S_WAVE}, {w}")
            A(f"s_cbranch_scc1 {skip}")
            A(f"s_call_b64 s[0:1], {lab}_w")
            A(f"{skip}:")

    DBG = f"buffer_load_dword v7, v8, {sr(SRD_DBG, 4)}, 0 offen sc1"

    def arrived_load(self):
        self.A("v_and_b32 v8, 3, v0")
        self.A("v_lshlrev_b32 v8, 6, v8")
        return self.A(self.DBG)

    def arrived_check(self, tok):
        self.check_words(self.DBG, "v_cmp_gt_u32 vcc, 64, v7", tok)

    def masked(self, mask, text):
        self.A(f"s_mov_b64 exec, {mask}")
        t = self.A(text)
        self.A("s_mov_b64 exec, -1")
        return t

    def hooks(self, early_poll):
        A = self.A
        st = {}
        steal = self.opt.get("steal", 0)

        def entry(A):
            self.jitter()
            self.code_prefetch(A)
            skip = self.lab("skip")
            A(f"""
            s_lshl_b32 s{S_F1}, s{p1.S_RB}, 4
            s_add_u32 s{S_F1}, s{S_F1}, s{p1.S_CG}
            s_lshl_b32 s{S_F1}, s{S_F1}, 7
            s_add_u32 s{S_F1}, s{S_F1}, {FLAG_S}
            s_cmp_lg_u32 s{S_WAVE}, 0
            s_cbranch_scc1 {skip}
            s_and_b32 s{p1.S_T}, s2, 7
            s_lshl_b32 s{p1.S_T}, s{p1.S_T}, 1
            s_lshr_b32 s{p1.S_T2}, s2, 7
            s_add_u32 s{p1.S_T}, s{p1.S_T}, s{p1.S_T2}
            s_bfe_u32 s{p1.S_T2}, s2, 0x40003
            s_lshl_b32 s{p1.S_T2}, s{p1.S_T2}, 6
            s_add_u32 s{p1.S_T}, s{p1.S_T}, s{p1.S_T2}
            s_lshl_b32 s{p1.S_T}, s{p1.S_T}, 7
            s_add_u32 s{p1.S_T}, s{p1.S_T}, {FLAG_O}
            v_mov_b32 v10, 0
            v_lshlrev_b32 v11, 11, v0
            s_mov_b64 exec, 15
            """)
            A.uncounted(f"buffer_store_dword v10, v11, {sr(SRD_WS, 4)}, s{p1.S_T} offen sc1")
            A("s_mov_b64 exec, 1")
            A.uncounted(f"buffer_store_dword v10, off, {sr(SRD_WS, 4)}, s{S_F1} sc1")
            if steal:
                A(f"s_lshl_b32 s{p1.S_T}, s2, 7")
                A(f"s_add_u32 s{p1.S_T}, s{p1.S_T}, {FLAG_T}")
                A.uncounted(f"buffer_store_dword v10, off, {sr(SRD_WS, 4)}, s{p1.S_T} sc1")
            A("s_mov_b64 exec, -1")
            A(f"{skip}:")

        def p1bar(A, stg, role):
            if stg in (2, 4, 7):
                self.jitter()
            if stg == 1:
                self.pad("b1")

            if stg == 7:
                self.pad("p1")
            if stg != 4:
                return
            srd(A, SRD_DBG, P_DBG, 256)
            if role:
                return
            skip = self.lab("skip")
            A(f"""
            s_cmp_lg_u32 s{S_WAVE}, 0
            s_cbranch_scc1 {skip}
            s_and_b32 s3, s2, 3
            s_lshl_b32 s3, s3, 6
            v_mov_b32 v13, 1
            s_mov_b64 exec, 1
            """)
            A.uncounted(f"buffer_atomic_add v13, off, {sr(SRD_DBG, 4)}, s3 sc1")
            A("s_mov_b64 exec, -1")
            A(f"{skip}:")


        def clear_misc(A):
            A(f"""
            s_lshl_b32 s3, s{S_WAVE}, 9
            s_add_u32 s3, s3, {L_MISC}
            v_lshl_add_u32 v8, v0, 3, s3
            v_mov_b64 v[6:7], 0
            ds_write_b64 v8, v[6:7]
            ds_write_b64 v8, v[6:7] offset:4096
            """)

        def take_ticket(A, tok):
            self.arrived_check(tok)
            skip = self.lab("skip")
            A(f"""
            s_cmp_lg_u32 s{S_WAVE}, 4
            s_cbranch_scc1 {skip}
            s_and_b32 s0, s2, 7
            s_lshl_b32 s0, s0, 7
            s_add_u32 s0, s0, {FLAG_T}
            v_mov_b32 v13, 1
            s_mov_b64 exec, 1
            """)
            A.uncounted(f"buffer_atomic_add v13, off, {sr(SRD_WS, 4)}, s0 sc0 sc1")
            A("s_mov_b64 exec, -1")
            A(f"{skip}:")

        def p2step(A, t, role):
            if t in (3, 10, 17, 26):
                self.jitter()
            if t == 8 and early_poll:
                clear_misc(A)
            if t == 14 and early_poll and not role:
                st["dbg"] = self.arrived_load()
            if t in (4, 8, 12, 16, 20, 24):
                self.stamp(A, f"p2_{t}")
            if t == self.opt.get('polls', 25) - 1 and early_poll and not role:
                self.arrived_check(st["dbg"])
            if early_poll and not role and t >= 4:
                early, consts = self.setup_units()
                units, lo, hi = (early, 4, 12) if t < 12 else (consts, 12, 28)
                for u in units[len(units) * (t - lo) // (hi - lo):len(units) * (t + 1 - lo) // (hi - lo)]:
                    for x in u:
                        A(x)
            tk = self.opt.get("tk", 16)
            if steal and early_poll and role and t == tk - 7:
                st["dbg"] = self.arrived_load()
            if steal and early_poll and role and t == tk:
                take_ticket(A, st["dbg"])
            if early_poll and role and t >= 16 and t % 2 == 0 and not steal:
                for x in self.wd_dma((t - 16) // 2):
                    A(x)
            if t == self.opt.get('polls', 25) and early_poll and not role:
                st["poll"] = self.masked(POLLMASK, POLL)

        def qkv_done(A, role):
            if not role:
                self.one_lane_store(1, S_F1, wave=0)
                self.stamp(A, "rt_pubq")

        def regular_end(A, role):
            self.jitter()
            if self.opt.get("pad_p2"):
                self.pad("p2")
                if not role:
                    st["poll"] = self.masked(POLLMASK, POLL)
            if not role:
                A.wait_tok(st["poll"])
            A(f"s_branch {self.name}_{'g' if role else 'a'}_e2")

        def special_end(A, role):
            self.jitter()
            A("s_waitcnt vmcnt(0) lgkmcnt(0)")
            self.stamp(A, "q_drain")
            A("s_barrier")
            qkv_done(A, role)
            self.pad("p2")
            clear_misc(A)
            A("s_waitcnt lgkmcnt(0)")
            A("s_barrier")
            if steal and role:
                take_ticket(A, self.arrived_load())
                A("s_waitcnt vmcnt(0)")
            A(f"s_branch {self.name}_{'g' if role else 'a'}_plain")

        h = dict(stamp=self.stamp, label=self.lab, entry=entry, prologue=self.warm, target=self.target, prefetch=self.data_prefetch, p1bar=p1bar, p2step=p2step,
                 idle=lambda A, role: (None if steal else self.precompute_g0(A)) if role else self.precompute(A, 0),
                 qkv_done=qkv_done, regular_end=regular_end, special_end=special_end)
        if self.opt.get("p1exit"):
            h["p1exit"] = self.finish
        if self.opt.get("p2exit"):
            h["p2exit"] = self.finish
        return h

    def data_prefetch(self, A, which):
        if not self.opt.get("pf", 3) >> which & 1:
            return
        if which == 0 and self.opt.get("pfx"):
            skip, lab = self.opt.get("pfskip", 3), self.lab("skip")
            srd_tail(A, p1.SRD_G, D * F * 2)
            srd_tail(A, p1.SRD_U, D * F * 2)
            A.wait(lg=0)
            A(f"""
            s_bitcmp1_b32 s2, 2
            s_cbranch_scc1 {lab}
            s_lshr_b32 s10, s2, 3
            s_lshl_b32 s10, s10, 2
            s_and_b32 s11, s2, 3
            s_add_u32 s10, s10, s11
            s_lshl_b32 s10, s10, 3
            s_add_u32 s10, s10, s{S_WAVE}
            s_lshl_b32 s11, s10, 7
            v_lshl_add_u32 v13, v0, 17, s11
            s_mov_b32 s10, {skip * 64 * 3584}
            s_mov_b32 s11, {skip * 64 * 2688}
            s_mov_b64 exec, 0x3fff
            """)
            for d, so in ((p1.SRD_G, "s10"), (p1.SRD_U, "s10"), (p1.SRD_P, "s11"), (p1.SRD_X, "0")):
                A.uncounted(f"buffer_load_dword v11, v13, {sr(d, 4)}, {so} offen")
            A("s_mov_b64 exec, -1")
            A(f"{lab}:")
            return
        A(f"""
        s_lshl_b32 s10, s2, 3
        s_add_u32 s10, s10, s{S_WAVE}
        s_lshl_b32 s11, s10, 7
        v_lshl_add_u32 v13, v0, 18, s11
        """)
        if which == 0:
            skip = self.opt.get("pfskip", 3)
            srd_tail(A, p1.SRD_G, D * F * 2)
            srd_tail(A, p1.SRD_U, D * F * 2)
            A(f"""
            s_mul_i32 s10, s10, 896
            v_lshl_add_u32 v15, v0, 7, s10
            s_mov_b32 s10, {skip * 64 * 3584}
            s_mov_b32 s11, {skip * 64 * 2688}
            s_mov_b64 exec, {(1 << (7 - skip)) - 1}
            buffer_load_dword v11, v15, {sr(p1.SRD_X, 4)}, 0 offen offset:{128 * skip}
            buffer_load_dword v11, v13, {sr(p1.SRD_P, 4)}, s11 offen
            s_mov_b64 exec, 0x7f
            buffer_load_dword v11, v13, {sr(p1.SRD_G, 4)}, s10 offen
            buffer_load_dword v11, v13, {sr(p1.SRD_U, 4)}, s10 offen
            s_mov_b64 exec, -1
            """)
        else:
            srd(A, 4, P_WD, F * D * 2)
            srd(A, 12, P_WO, D * D * 2)
            A(f"""
            s_mov_b64 exec, 0x7f
            buffer_load_dword v11, v13, s[4:7], 0 offen
            buffer_load_dword v11, v13, s[12:15], 0 offen
            s_mov_b64 exec, -1
            """)

    def code_prefetch(self, A):
        if not self.opt.get("cpf", 1):
            return
        here, skip = self.lab("pc"), self.lab("skip")
        A(f"""
        s_cmp_lg_u32 s{S_WAVE}, 7
        s_cbranch_scc1 {skip}
        s_getpc_b64 s[0:1]
        {here}:
        s_sub_u32 s0, s0, {here}-{self.name}
        s_subb_u32 s1, s1, 0
        s_lshr_b32 s{p1.S_T}, s2, 3
        s_lshl_b32 s{p1.S_T}, s{p1.S_T}, 11
        v_lshl_add_u32 v10, v0, 7, s{p1.S_T}
        v_min_u32 v10, {self.name}_exit-{self.name}, v10
        s_mov_b64 exec, 0xffff
        """)
        A.uncounted("global_load_dword v11, v10, s[0:1]")
        A("v_lshlrev_b32 v10, 7, v0")
        A.uncounted(f"buffer_load_dword v11, v10, {sr(p1.SRD_GW, 4)}, 0 offen")
        A("s_mov_b64 exec, -1")
        A(f"{skip}:")

    def precompute(self, A, role):
        T, T2 = 0, 1
        A(f"""
        s_and_b32 s{T}, s2, 7
        s_lshr_b32 s{T2}, s2, 3
        s_lshl_b32 s{S_HEAD}, s{T}, 1
        s_lshr_b32 s{S_QB}, s2, 7
        s_add_u32 s{S_HEAD}, s{S_HEAD}, s{S_QB}
        s_and_b32 s{S_QB}, s{T2}, 15
        s_and_b32 s{S_GW}, s{S_WAVE}, 3
        s_lshl_b32 s{T}, s{S_WAVE}, 8
        s_add_u32 s{T}, s{T}, {M_HW}
        v_lshl_add_u32 v{VHW}, v0, 2, s{T}
        """)
        steal = self.opt.get("steal", 0)
        if role == 0:
            if not steal:
                self.out_tile(A)
            self.precompute_a(A)
        else:
            if steal:
                self.precompute_g0(A)
            self.precompute_g(A)
            if not steal:
                self.precompute_g2(A)

    def resolve_ticket(self):
        A = self.A
        skip, got, loop, post = (self.lab(x) for x in ("skip", "got", "steal", "post"))
        A(f"""
        s_cmp_lg_u32 s{S_WAVE}, 4
        s_cbranch_scc1 {skip}
        v_readfirstlane_b32 s{S_NB}, v15
        s_and_b32 s{S_MB}, s2, 7
        s_cmp_lt_u32 s{S_NB}, 28
        s_cbranch_scc1 {got}
        v_lshlrev_b32 v4, 7, v0
        v_add_u32 v4, {FLAG_T}, v4
        s_mov_b32 s{S_SPIN}, 256
        s_mov_b64 exec, 0xff
        {loop}:
        """)
        A.auto = False
        A.uncounted(f"buffer_load_dword v5, v4, {sr(SRD_WS, 4)}, 0 offen sc1")
        A._emit_raw("s_waitcnt vmcnt(0)")
        A(f"""
        v_cmp_gt_u32 vcc, 28, v5
        s_mov_b32 s0, 0x10700
        s_ff1_i32_b32 s{S_MB}, vcc_lo
        s_cmp_lt_i32 s{S_MB}, 0
        s_cbranch_scc1 {post}
        s_sub_u32 s{S_SPIN}, s{S_SPIN}, 1
        s_cbranch_scc1 {post}
        s_lshl_b32 s1, s{S_MB}, 7
        s_add_u32 s1, s1, {FLAG_T}
        v_mov_b32 v5, 1
        s_mov_b64 exec, 1
        """)
        A.uncounted(f"buffer_atomic_add v5, off, {sr(SRD_WS, 4)}, s1 sc0 sc1")
        A._emit_raw("s_waitcnt vmcnt(0)")
        A(f"""
        v_readfirstlane_b32 s{S_NB}, v5
        s_mov_b64 exec, 0xff
        s_cmp_ge_u32 s{S_NB}, 28
        s_cbranch_scc1 {loop}
        {got}:
        s_lshl_b32 s{S_MB}, s{S_MB}, 2
        s_and_b32 s0, s{S_NB}, 3
        s_add_u32 s0, s0, s{S_MB}
        s_lshr_b32 s1, s{S_NB}, 2
        s_lshl_b32 s1, s1, 8
        s_add_u32 s0, s0, s1
        s_bitset1_b32 s0, 16
        {post}:
        s_mov_b64 exec, -1
        v_mov_b32 v4, {M_TK}
        v_mov_b32 v5, s0
        """)
        A.uncounted("ds_write_b32 v4, v5")
        A.auto = True
        A(f"{skip}:")

    def read_ticket(self, nap=0):
        A = self.A
        A(f"v_mov_b32 v4, {M_TK}")
        load = "ds_read_b32 v6, v4"
        self.check_words(load, "v_cmp_eq_u32 vcc, 0, v6", A(load), nap=nap)
        A(f"""
        v_readfirstlane_b32 s0, v6
        s_and_b32 s{S_MB}, s0, 31
        s_bfe_u32 s{S_NB}, s0, 0x30008
        """)

    def out_tile(self, A):
        sg = self.opt.get("sg")
        ne = self.opt.get("ne", 32)
        if ne:
            A(f"""
            s_lshr_b32 s0, s2, 3
            s_bitcmp1_b32 s2, 0
            s_cselect_b32 s1, {ne}, 0
            s_cselect_b32 s{S_NB}, {56 - ne}, {ne}
            s_cmp_ge_u32 s0, s{S_NB}
            s_cselect_b32 s{S_NB}, 7, 0
            s_add_u32 s0, s0, s1
            s_mul_i32 s{S_MB}, s0, 9363
            s_lshr_b32 s{S_MB}, s{S_MB}, 16
            s_mul_i32 s1, s{S_MB}, 7
            s_sub_u32 s0, s0, s1
            s_or_b32 s{S_NB}, s{S_NB}, s0
            s_min_u32 s{S_MB}, s{S_MB}, 7
            s_bfe_u32 s0, s2, 0x20001
            s_lshl_b32 s0, s0, 3
            s_add_u32 s{S_MB}, s{S_MB}, s0
            """)
            return
        if sg is None:
            A(f"""
            s_and_b32 s{S_MB}, s2, 7
            s_lshl_b32 s{S_MB}, s{S_MB}, 2
            s_bfe_u32 s{S_NB}, s2, 0x20003
            s_add_u32 s{S_MB}, s{S_MB}, s{S_NB}
            s_lshr_b32 s{S_NB}, s2, 5
            """)
            return
        A(f"""
        s_add_u32 s0, s2, {7 - sg}
        s_and_b32 s0, s0, 7
        s_lshl_b32 s0, s0, 5
        s_lshr_b32 s1, s2, 3
        s_add_u32 s0, s0, s1
        s_mul_i32 s{S_MB}, s0, 9363
        s_lshr_b32 s{S_MB}, s{S_MB}, 16
        s_mul_i32 s1, s{S_MB}, 7
        s_sub_u32 s{S_NB}, s0, s1
        s_cmp_ge_u32 s0, 224
        s_cselect_b32 s{S_NB}, 7, s{S_NB}
        s_min_u32 s{S_MB}, s{S_MB}, 31
        """)

    def precompute_a(self, A):
        T, T2 = 0, 1
        a0, a1 = S_Q, S_Q + 1
        A(f"""
        s_mul_i32 s{T}, s{S_HEAD}, 28
        s_add_u32 s{T2}, s{T}, 27
        s_lshr_b32 s{a0}, s{T}, 6
        s_lshr_b32 s{a1}, s{T2}, 6
        s_sub_u32 s{a1}, s{a1}, s{a0}
        v_and_b32 v5, 1, v0
        v_mul_u32_u24 v5, s{a1}, v5
        v_bfe_u32 v6, v0, 1, 1
        v_mad_u32_u24 v5, v6, 7, v5
        v_bfe_u32 v6, v0, 2, 2
        v_lshl_add_u32 v5, v6, 4, v5
        s_lshl_b32 s{a1}, s{S_GW}, 6
        s_add_u32 s{a1}, s{a1}, s{a0}
        v_add_u32 v5, s{a1}, v5
        s_lshl_b32 s{a1}, s{S_QB}, 4
        s_lshr_b32 s{T}, s{S_HEAD}, 3
        s_add_u32 s{T}, s{T}, s{a1}
        s_add_u32 s{T}, s{T}, 14
        v_writelane_b32 v5, s{T}, 16
        v_lshlrev_b32 v5, 7, v5
        v_add_u32 v{VPOLL}, {FLAG_S}, v5
        v_lshrrev_b32 v5, 5, v0
        v_mul_u32_u24 v5, {7168 - 512}, v5
        v_add_u32 v{VV0}, v5, v{VL16}
        s_mul_i32 s{S_OO}, s{S_HEAD}, 7
        s_lshr_b32 s{S_OO}, s{S_OO}, 1
        s_lshl_b32 s{S_OO}, s{S_OO}, 9
        s_mul_i32 s{T2}, s{S_GW}, {16 * 28672}
        s_add_u32 s{T}, s{T2}, s{S_OO}
        s_add_u32 s{T}, s{T}, {WS_K}
        """)
        srd(A, SRD_K, P_WS, 16 * 28672, add=f"s{T}")
        A(f"""
        s_mul_i32 s{T}, s{S_HEAD}, 448
        s_add_u32 s{T}, s{T}, s{T2}
        s_add_u32 s{T}, s{T}, {WS_V}
        """)
        srd(A, SRD_V, P_WS, 16 * 28672, add=f"s{T}")
        A(f"s_lshl_b32 s{T2}, s{S_QB}, 2")
        for j in range(4):
            A(f"""
            s_add_u32 s{T}, s{S_GW}, {j + 1}
            s_and_b32 s{T}, s{T}, 3
            s_add_u32 s{T}, s{T}, s{T2}
            s_mul_i32 s{T}, s{T}, 28672
            s_add_u32 s{S_Q + j}, s{T}, s{S_OO}
            """)
        A(f"""
        s_add_u32 s{T}, s{T2}, s{S_GW}
        s_lshl_b32 s{S_OFF}, s{T}, 7
        s_add_u32 s{S_AG}, s{S_OFF}, {WS_G}
        s_lshl_b32 s{T}, s{T}, 4
        s_add_u32 s{T}, s{T}, s{S_HEAD}
        s_lshl_b32 s{S_OO}, s{T}, 11
        s_add_u32 s{S_OO}, s{S_OO}, {WS_O}
        s_lshl_b32 s{S_OF}, s{T}, 7
        s_add_u32 s{S_OF}, s{S_OF}, {FLAG_O}
        s_mov_b32 s{S_ME}, 0x0fffffff
        s_mov_b32 s{S_ME + 1}, 0x0fffffff
        """)

    def precompute_g0(self, A):
        T = 0
        srd(A, SRD_WD, P_WD, F * D * 2)
        A(f"""
        v_lshrrev_b32 v5, 3, v0
        v_mul_u32_u24 v6, 896, v5
        v_lshrrev_b32 v5, 2, v0
        v_and_b32 v5, 4, v5
        v_and_b32 v7, 7, v0
        v_xor_b32 v5, v5, v7
        v_lshl_add_u32 v{VDW0}, v5, 4, v6
        v_add_u32 v{VDW1}, {7168 - 1024}, v{VDW0}
        s_and_b32 s{S_GW}, s{S_WAVE}, 3
        s_mul_i32 s{S_RB}, s{S_GW}, 14336
        s_mul_i32 s{S_RA}, s{S_GW}, 12288
        s_add_u32 s{S_RA}, s{S_RA}, {L_RING}
        """)
        if not self.opt.get("steal", 0):
            self.out_tile(A)
            self.wd_offset(A)

    def wd_offset(self, A):
        A(f"""
        s_lshl_b32 s0, s{S_NB}, 7
        s_mul_i32 s{S_WDO}, s{S_GW}, {448 * 896}
        s_add_u32 s{S_WDO}, s{S_WDO}, s0
        """)

    def precompute_g(self, A):
        T, T2 = 0, 1
        srd(A, SRD_WO, P_WO, D * D * 2)
        A(f"""
        s_and_b32 s{T2}, s{S_GW}, 1
        s_lshl_b32 s{T2}, s{T2}, 3
        v_and_b32 v5, 1, v0
        v_lshlrev_b32 v5, 2, v5
        v_bfe_u32 v6, v0, 1, 1
        v_add_u32 v5, v5, v6
        v_bfe_u32 v6, v0, 4, 1
        v_lshl_add_u32 v5, v6, 1, v5
        v_and_b32 v6, 8, v0
        v_xor_b32 v5, v5, v6
        v_xor_b32 v5, s{T2}, v5
        v_lshrrev_b32 v6, 5, v0
        v_bfe_u32 v7, v0, 2, 2
        v_lshl_add_u32 v6, v6, 2, v7
        v_lshlrev_b32 v6, 7, v6
        v_lshl_add_u32 v{VTR}, v5, 3, v6
        """)

    def precompute_g2(self, A):
        T, T2 = 0, 1
        A(f"""
        s_lshl_b32 s{T}, s{S_NB}, 7
        s_mul_i32 s{S_WOO}, s{S_GW}, {112 * 896}
        s_add_u32 s{S_WOO}, s{S_WOO}, s{T}
        s_and_b32 s{T2}, s{S_GW}, 1
        s_lshl_b32 s{S_OUTO}, s{T2}, 6
        s_add_u32 s{S_OUTO}, s{S_OUTO}, s{T}
        s_lshr_b32 s{T}, s{S_GW}, 1
        s_lshl_b32 s{T2}, s{S_MB}, 1
        s_add_u32 s{T}, s{T}, s{T2}
        s_lshl_b32 s{S_GOFF}, s{T}, 7
        s_add_u32 s{S_GOFF}, s{S_GOFF}, {WS_G}
        s_mul_i32 s{T}, s{T}, {32 * 896}
        s_add_u32 s{S_OUTO}, s{S_OUTO}, s{T}
        s_mul_i32 s{S_HOFF}, s{S_MB}, {2 * 114688}
        s_mul_i32 s{T}, s{S_GW}, {28 * 1024}
        s_add_u32 s{S_HOFF}, s{S_HOFF}, s{T}
        s_add_u32 s{S_HOFF}, s{S_HOFF}, {WS_H}
        s_lshr_b32 s{T}, s{S_MB}, 1
        s_lshl_b32 s{T}, s{T}, 4
        s_mul_i32 s{T2}, s{S_GW}, 7
        s_lshr_b32 s{T2}, s{T2}, 1
        s_add_u32 s{T}, s{T}, s{T2}
        s_lshl_b32 s{T}, s{T}, 7
        s_add_u32 s{T}, s{T}, {FLAG_S}
        v_and_b32 v5, 3, v0
        v_lshl_add_u32 v{VPOLL}, v5, 7, s{T}
        """)

    def k_load(self, b):
        return [f"buffer_load_dwordx4 {vr(KB + 8 * b, 4)}, v{VK[b]}, {sr(SRD_K, 4)}, s{S_OFF} offen{LD}",
                f"buffer_load_dwordx4 {vr(KB + 8 * b + 4, 4)}, v{VK[b]}, {sr(SRD_K, 4)}, s{S_OFF} offen offset:1024{LD}"]

    def v_load(self, b):
        return [f"s_mov_b64 exec, {sr(S_ME, 2)}",
                f"buffer_load_dwordx4 {vr(VB + 8 * b, 4)}, v{VV[2 * b]}, {sr(SRD_V, 4)}, s{S_OFF} offen{LD}",
                f"buffer_load_dwordx4 {vr(VB + 8 * b + 4, 4)}, v{VV[2 * b + 1]}, {sr(SRD_V, 4)}, s{S_OFF} offen{LD}",
                "s_mov_b64 exec, -1"]

    @staticmethod
    def qk(i, half):
        b, j = (i >> 2) & 3, i & 3
        return mfma(SB + 16 * (i & 1), KB + 8 * b + 4 * half, QF + 8 * j + 4 * half, "0" if half == 0 else None)

    @staticmethod
    def pv(i, half, first=False):
        b, j = (i >> 2) & 3, i & 3
        return mfma(OA + 16 * j, VB + 8 * b + 4 * half, PB + 4 * half, "0" if first else None)

    @staticmethod
    def grp(i, g):
        r = SB + 16 * (i & 1) + 4 * g
        return [f"v_exp_f32 v{r + k}, v{r + k}" for k in range(4)] + \
               [f"v_cvt_pk_bf16_f32 v{PB + 2 * g + k}, v{r + 2 * k}, v{r + 2 * k + 1}" for k in range(2)]

    def wait_pair(self, base):
        A = self.A
        want = {f"v{base + 7}"}
        for e in A.vm:
            if e[1] & want:
                A.wait_tok(e[0])
                return

    def setup_units(self):
        R = Rec()
        for b in range(1, 4):
            R(f"v_add_u32 v{VK[b]}, {b * 28672}, v{VL16}")
        for n in range(1, 8):
            R(f"v_add_u32 v{VV[n]}, {n * 14336}, v{VV0}")
        for j in range(4):
            R(f"""
            s_add_u32 s0, s{S_GW}, {j + 1}
            s_and_b32 s0, s0, 3
            s_mul_i32 s0, s0, 12288
            s_add_u32 s0, s0, {L_OP + (j % 3) * 4096}
            v_add_u32 v{VXA + j}, s0, v{VL16}
            """)
        self.sync_addresses(M_AS, A=R, T=0)
        R(f"""
        s_and_b32 s0, s{S_HEAD}, 1
        v_lshrrev_b32 v{VMLO}, 5, v0
        v_or_b32 v{VMHI}, s0, v{VMLO}
        v_xor_b32 v{VMHI}, s0, v{VMHI}
        v_add_u32 v{VMHI}, -1, v{VMHI}
        v_xor_b32 v{VMLO}, 1, v{VMLO}
        v_and_b32 v{VMLO}, s0, v{VMLO}
        v_add_u32 v{VMLO}, -1, v{VMLO}
        v_and_b32 v{VGAD}, 31, v0
        v_lshlrev_b32 v{VGAD}, 2, v{VGAD}
        """)
        R(f"""
        v_and_b32 v{VONE}, 31, v0
        v_cmp_eq_u32 s[0:1], 28, v{VONE}
        v_mov_b32 v{VONE}, 0x3f803f80
        v_cndmask_b32 v{VONE}, 0, v{VONE}, s[0:1]
        """)
        return R.units, [[f"v_mov_b32 v{VB + r}, v{VONE}"] for r in range(32)]

    def first_loads(self):
        q = lambda j: [[f"buffer_load_dwordx4 {vr(QF + 8 * j + 4 * t, 4)}, v{VL16}, {sr(SRD_WS, 4)}, s{S_Q + j} offen"
                        f"{' offset:1024' * t}{LD}"] for t in range(2)]
        k = lambda b: [[x] for x in self.k_load(b)]
        return q(0) + k(0) + q(1) + [self.v_load(0)] + q(2) + q(3) + k(1) + \
            [[f"buffer_load_dword v{VGA}, v{VGAD}, {sr(SRD_WS, 4)}, s{S_AG} offen{LD}"]]

    def mask_q(self, j):
        self.wait_pair(QF + 8 * j)
        for r, m in ((0, VMLO), (1, VMLO), (6, VMHI), (7, VMHI)):
            self.A(f"v_and_b32 v{QF + 8 * j + r}, v{QF + 8 * j + r}, v{m}")

    def attn_main(self):
        A = self.A
        todo = [x for kt in range(1, 16) for x in (("v", kt, 4 * kt - 12), ("k", kt + 1, 4 * kt - 10)) if x[1] < 16]
        base = 0

        def loads(i, kind):
            nonlocal base
            if not todo or todo[0][2] > i or (todo[0][2] == i and todo[0][0] != kind) or issued[0] == i:
                return []
            kd, kt, _ = todo.pop(0)
            issued[0] = i
            o = []
            if kt >> 2 != base:
                base = kt >> 2
                o.append(f"s_add_u32 s{S_OFF}, s{S_OFF}, {4 * 28672}")
            return o + (self.v_load(kt & 3) if kd == "v" else self.k_load(kt & 3))

        issued = [-1]
        for i in range(64):
            kt, b, j = i >> 2, (i >> 2) & 3, i & 3
            seq = []
            if i < 3:
                self.mask_q(i + 1)
            if i < 63:
                if j == 3:
                    self.wait_pair(KB + 8 * ((b + 1) & 3))
                seq.append(self.qk(i + 1, 0))
            seq += self.grp(i, 0)
            if i:
                seq.append(self.pv(i - 1, 1))
            seq += loads(i, "v")
            seq += self.grp(i, 1)
            if i < 63:
                seq.append(self.qk(i + 1, 1))
            seq += loads(i, "k")
            seq += self.grp(i, 2)
            for x in seq:
                A(x)
            if j == 0:
                self.wait_pair(VB + 8 * b)
            A(self.pv(i, 0, first=i < 4))
            if i == 4:
                A(f"ds_write_b32 v{VHW}, v{VHW}")
            if i in (0, 4, 8, 16):
                self.stamp(A, f"a_t{i}")
            g3 = self.grp(i, 3)
            if i > 60:
                w = [f"ds_write_b128 v{VXA + j - 1}, {vr(OA + 16 * (j - 1) + 4 * q, 4)} offset:{1024 * q}" for q in range(4)]
                g3 = [g3[0], w[0], g3[1], w[1], g3[2], w[2], g3[3], w[3]] + g3[4:]
            for x in g3:
                A(x)
            if i in (2, 30, 60, 62):
                self.jitter()
            if i == 63:
                self.pad("loop")
                A(f"ds_write_b32 v{VSW}, v{VSW}")
        assert not todo
        load = f"ds_read_b32 v6, v{VSR}"
        tok = A(load)
        A(self.pv(63, 1))
        self.stamp(A, "a_loop")
        self.stamp(A, "rt_loop")
        self.check_words(load, "v_cmp_eq_u32 vcc, 0, v6", tok)
        self.stamp(A, "a_sync")
        self.jitter()

    def lds_sync(self, value_reg, cmp_, VSW=VSW, VSR=VSR):
        A = self.A
        A(f"ds_write_b32 v{VSW}, v{value_reg}")
        load = f"ds_read_b32 v6, v{VSR}"
        tok = A(load)
        self.check_words(load, cmp_, tok)

    def sync_addresses(self, base, VSW=VSW, VSR=VSR, A=None, T=S_T):
        (A or self.A)(f"""
        s_lshl_b32 s{T}, s{S_GW}, 8
        s_add_u32 s{T}, s{T}, {base}
        v_lshl_add_u32 v{VSW}, v0, 2, s{T}
        v_and_b32 v{VSR}, 3, v0
        v_lshlrev_b32 v{VSR}, 8, v{VSR}
        v_add_u32 v{VSR}, {base}, v{VSR}
        """)

    def attn_finish(self):
        A = self.A
        R, O = VB, OA + 48
        order = [3, 0, 1, 2]
        for q in order:
            for p in range(3):
                A(f"ds_read_b128 {vr(R + 16 * p + 4 * q, 4)}, v{VXA + 3} offset:{4096 * p + 1024 * q}")
        for n, q in enumerate(order):
            for k in range(4):
                A(f"v_add_f32 v{R + 4 * q + k}, v{R + 4 * q + k}, v{R + 16 + 4 * q + k}")
            for k in range(4):
                A(f"v_add_f32 v{O + 4 * q + k}, v{O + 4 * q + k}, v{R + 32 + 4 * q + k}")
            for k in range(4):
                A(f"v_add_f32 v{O + 4 * q + k}, v{O + 4 * q + k}, v{R + 4 * q + k}")
            if n == 0:
                A(f"v_mov_b32 v8, v{O + 12}")
                A(f"v_mov_b32 v9, v{O + 12}")
            if n == 1:
                A("v_permlane32_swap_b32 v8, v9")
                A("v_rcp_f32 v12, v9")
            if n == 2:
                A(f"v_med3_f32 v8, v9, s{S_LO}, v{VHI}")
                A(f"v_mul_f32 v12, v12, v{VGA}")
                A("v_cmp_neq_f32 vcc, v8, v9")
        A(f"s_cbranch_vccnz {self.name}_slow")
        A(f"{self.name}_a_fin:")
        for hf in range(2):
            for r in range(8 * hf, 8 * hf + 8):
                A(f"v_mul_f32 v{O + r}, v{O + r}, v12")
            for jj in range(4 * hf, 4 * hf + 4):
                A(f"v_cvt_pk_bf16_f32 v{PB + jj}, v{O + 2 * jj}, v{O + 2 * jj + 1}")
            if hf == 0:
                A(f"buffer_store_dwordx4 {vr(PB, 4)}, v{VL16}, {sr(SRD_WS, 4)}, s{S_OO} offen{ST}")
        A(f"""
        s_mov_b32 exec_lo, 0
        v_mov_b64 {vr(PB + 6, 2)}, 0
        s_mov_b32 exec_lo, -1
        buffer_store_dwordx4 {vr(PB + 4, 4)}, v{VL16}, {sr(SRD_WS, 4)}, s{S_OO} offen offset:1024{ST}
        """)
        self.stamp(A, "a_st")
        self.jitter()
        if self.opt.get("steal", 0):
            self.read_ticket()
        self.tail_setup(0)
        A("s_waitcnt vmcnt(0)")
        self.one_lane_store(1, S_OF, tmp=8)

    def slow_path(self):
        A = self.A
        O, Q = OA + 48, QF + 24
        A.clear()
        A(f"{self.name}_slow:")
        A("s_waitcnt vmcnt(0) lgkmcnt(0)")
        A(f"s_mul_i32 s{S_T}, s{S_GW}, {16 * 28672}")
        for d in (SRD_K, SRD_V):
            A(f"s_sub_u32 s{d}, s{d}, s{S_T}")
            A(f"s_subb_u32 s{d + 1}, s{d + 1}, 0")
            A(f"s_mov_b32 s{d + 2}, {64 * 28672}")
        for r in range(8):
            A(f"v_mov_b32 v{VB + r}, v{VONE}")
        A(f"v_mov_b32 v{VM}, 0xff800000")
        for sub in (0, 1):
            lab = self.lab("slowloop")
            A(f"s_mov_b32 s{S_OFF}, 0")
            if sub:
                for r in range(16):
                    A(f"v_mov_b32 v{O + r}, 0")
            A(f"{lab}:")
            for x in self.k_load(0) + (self.v_load(0) if sub else []):
                A(x)
            A(mfma(SB, KB, Q, "0"))
            A(mfma(SB, KB + 4, Q + 4))
            if not sub:
                for r in range(0, 16, 2):
                    A(f"v_max3_f32 v{VM}, v{SB + r}, v{SB + r + 1}, v{VM}")
            else:
                for r in range(16):
                    A(f"v_sub_f32 v{SB + r}, v{SB + r}, v{VM}")
                for g in range(4):
                    for x in self.grp(0, g):
                        A(x)
                A(mfma(O, VB, PB))
                A(mfma(O, VB + 4, PB + 4))
            A(f"s_add_u32 s{S_OFF}, s{S_OFF}, 28672")
            A(f"s_cmp_lt_u32 s{S_OFF}, {64 * 28672}")
            A(f"s_cbranch_scc1 {lab}")
            if not sub:
                A(f"v_mov_b32 v9, v{VM}")
                A(f"v_permlane32_swap_b32 v9, v{VM}")
                A(f"v_max_f32 v{VM}, v9, v{VM}")
        A(f"""
        v_mov_b32 v8, v{O + 12}
        v_mov_b32 v9, v{O + 12}
        v_permlane32_swap_b32 v8, v9
        v_rcp_f32 v12, v9
        v_mul_f32 v12, v12, v{VGA}
        s_branch {self.name}_a_fin
        """)

    @staticmethod
    def slot(ks):
        k = ks % 13
        return ("A", k) if k < 6 else ("B", k - 6)

    def wd_dma(self, ks):
        reg, sl = self.slot(ks)
        return [f"s_add_u32 m0, s{S_RA if reg == 'A' else S_RB}, {sl * 2048}",
                f"s_add_u32 s0, s{S_WDO}, {ks * 16 * 896}",
                f"buffer_load_dwordx4 v{VDW0}, {sr(SRD_WD, 4)}, s0 offen lds",
                f"buffer_load_dwordx4 v{VDW1}, {sr(SRD_WD, 4)}, s0 offen offset:1024 lds"]

    def wo_dma(self, n):
        return [f"s_add_u32 m0, s{S_RB}, {n * 2048}",
                f"s_add_u32 s{S_T}, s{S_WOO}, {n * 16 * 896}",
                f"buffer_load_dwordx4 v{VDW0}, {sr(SRD_WO, 4)}, s{S_T} offen lds",
                f"buffer_load_dwordx4 v{VDW1}, {sr(SRD_WO, 4)}, s{S_T} offen offset:1024 lds"]

    def h_load(self, ks):
        b = HB + 8 * (ks % 10)
        return [f"s_add_u32 s{S_T}, s{S_HOFF}, {ks * 1024}",
                f"buffer_load_dwordx4 {vr(b, 4)}, v{VH0}, {sr(SRD_WS, 4)}, s{S_T} offen{LD}",
                f"buffer_load_dwordx4 {vr(b + 4, 4)}, v{VH1}, {sr(SRD_WS, 4)}, s{S_T} offen{LD}"]

    def gemm_start(self, e2):
        A = self.A
        tok = None
        steal = self.opt.get("steal", 0)
        for x in (e2[0] + e2[1] if e2 else sum([self.wd_dma(ks) for ks in range(0 if steal else 6)], [])):
            tok = A(x)
        A("s_setprio 2")
        for ks in range(6, 6 + self.opt.get("gearly", 0)):
            for x in self.wd_dma(ks):
                A(x)
        self.precompute(A, 1)
        if not steal:
            self.arrived_load()
        A.wait_tok(tok)

    def gemm_main(self):
        A = self.A
        toks = {}
        A.clear()
        steal = self.opt.get("steal", 0)
        first = 0 if steal else 6 + self.opt.get("gearly", 0)
        for ks in range(6, first):
            for _ in range(2):
                A.nid += 1
                A.vm.append([A.nid, set()])
                toks[ks] = A.nid
        if not steal:
            A.nid += 1
            A.vm.append([A.nid, {"v7"}])
            dbgtok = A.nid

        def issue(lst, key=None):
            for x in lst:
                t = A(x)
                if t and key is not None:
                    toks[key] = t

        def trr(ks):
            reg, sl = self.slot(ks)
            a = VAWA if reg == "A" else VAWB
            b = WBUF + 8 * (ks % 10)
            o = sl * 2048
            A.wait_tok(toks.get(ks))
            issue([f"ds_read_b64_tr_b16 {vr(b, 2)}, v{a} offset:{o}",
                   f"ds_read_b64_tr_b16 {vr(b + 2, 2)}, v{a} offset:{o + 1024}",
                   f"ds_read_b64_tr_b16 {vr(b + 4, 2)}, v{a + 1} offset:{o}",
                   f"ds_read_b64_tr_b16 {vr(b + 6, 2)}, v{a + 1} offset:{o + 1024}"], ("r", ks))

        def dma(ks):
            if ks >= 13:
                A.wait_tok(toks[("r", ks - 13)])
            issue(self.wd_dma(ks), ks)

        def mm(ks):
            for jj in range(4):
                A(mfma(ACC + 16 * jj, WBUF + 8 * (ks % 10) + 4 * (jj & 1), HB + 8 * (ks % 10) + 4 * (jj >> 1),
                       "0" if ks == 0 else None))

        A(f"""
        ds_write_b32 v{VHW}, v{VHW}
        v_mov_b32 v15, v13
        v_xor_b32 v5, 64, v{VTR}
        v_add_u32 v{VAWA}, s{S_RA}, v{VTR}
        v_add_u32 v{VAWA + 1}, s{S_RA}, v5
        v_and_b32 v13, 7, v0
        v_lshlrev_b32 v13, 8, v13
        v_add_u32 v13, {M_HW}, v13
        """)
        for ks in range(0 if steal else 6):
            trr(ks)
        A(f"""
        v_mov_b32 v{GL16}, v{VL16}
        v_add_u32 v{VAWB}, s{S_RB}, v{VTR}
        v_add_u32 v{VAWB + 1}, s{S_RB}, v5
        s_lshr_b32 s{S_T}, s{S_GW}, 1
        s_mul_i32 s{S_T}, s{S_T}, 114688
        v_add_u32 v{VH0}, s{S_T}, v{GL16}
        s_sub_u32 s{S_T}, 114688, s{S_T}
        v_add_u32 v{VH1}, s{S_T}, v{GL16}
        """)
        self.sync_addresses(M_GS, GSW, GSR)
        load = "ds_read_b32 v6, v13"
        tk = A(load)
        self.check_words(load, "v_cmp_eq_u32 vcc, 0, v6", tk, nap=1)
        self.one_lane_store(2, S_F1, wave=4)
        self.stamp(A, "g_hw")
        self.jitter()
        if steal:
            self.resolve_ticket()
            self.read_ticket(nap=1)
        A(f"s_cmp_ge_u32 s{S_NB}, 7")
        A(f"s_cbranch_scc1 {self.name}_exit")
        if steal:
            self.wd_offset(A)
            for ks in range(self.opt.get("gdeep", 3)):
                dma(ks)
            first = self.opt.get("gdeep", 3)
            self.precompute_g2(A)
        if not steal:
            self.arrived_check(dbgtok)
        A(f"""
        v_and_b32 v5, 31, v0
        v_lshlrev_b32 v5, 2, v5
        buffer_load_dword v{VG}, v5, {sr(SRD_WS, 4)}, s{S_GOFF} offen{LD}
        """)
        A(f"v_add_u32 v{VPW}, s{S_RA}, v{GL16}")
        A(f"v_subrev_u32 v{VGATE}, {M_GS - M_AS}, v{GSR}")
        for jj in range(1, 4):
            A(f"""
            s_xor_b32 s{S_T}, s{S_GW}, {jj}
            s_mul_i32 s{S_T}, s{S_T}, 12288
            s_add_u32 s{S_T}, s{S_T}, {L_RING + 4096 * (jj - 1)}
            v_add_u32 v{VPR + jj - 1}, s{S_T}, v{GL16}
            """)
        self.tail_setup(1)
        deep = self.opt.get("gdeep", 3)
        for ks in range(first, 23):
            if (0 if steal else 6) <= ks - 7 < 10:
                trr(ks - 7)
            A.wait_tok(toks.get(ks - deep))
            dma(ks)
        self.stamp(A, "g_dma")
        self.jitter()
        tok = self.masked("15", POLL)
        self.check_words(POLL, "v_cmp_ne_u32 vcc, 2, v6", tok, mask="15", nap=2)
        A(f"v_sub_f32 v{VG}, 1.0, v{VG}")
        self.stamp(A, "g_flags")
        self.stamp(A, "rt_gflags")
        A("s_setprio 0")
        nh = self.opt.get("nh", 2)
        for ks in range(nh):
            issue(self.h_load(ks))
        ramp = 28 - NDEF - (NDEF - nh)
        for ks in range(28 - NDEF):
            mm(ks)
            if ks in (3, 11):
                self.jitter()
            for _ in range(2 if ks >= ramp else 1):
                if nh < 28:
                    assert nh - 10 <= ks
                    issue(self.h_load(nh))
                    nh += 1
            if ks + 10 < 28:
                trr(ks + 10)
            if 1 <= ks <= 5:
                dma(ks + 22)
        assert nh == 28
        A.wait_tok(toks[("r", 25)])
        for n in range(7):
            issue(self.wo_dma(n))
        A("s_waitcnt lgkmcnt(0)")
        self.stamp(A, "g_pre")
        self.jitter()
        self.stamp(A, "rt_gpre")
        load = f"ds_read_b32 v6, v{VGATE}"
        tk = A(load)
        self.check_words(load, "v_cmp_eq_u32 vcc, 0, v6", tk, nap=2)
        wr = []
        for jj in (1, 2, 3, 0):
            for n, ks in enumerate(range(28 - NDEF, 28)):
                A(mfma(ACC + 16 * jj, WBUF + 8 * (ks % 10) + 4 * (jj & 1), HB + 8 * (ks % 10) + 4 * (jj >> 1)))
                if n >= min(2, NDEF - 5) and wr:
                    A(wr.pop(0))
            assert not wr
            wr = [f"ds_write_b128 v{VPW}, {vr(ACC + 16 * jj + 4 * q, 4)} offset:{4096 * (jj - 1) + 1024 * q}" for q in range(4)]
            if jj == 3:
                wr.append(f"ds_write_b32 v{GSW}, v{GSW}")
        self.stamp(A, "g_loop")
        self.jitter()
        self.stamp(A, "rt_gloop")
        load = f"ds_read_b32 v6, v{GSR}"
        self.check_words(load, "v_cmp_eq_u32 vcc, 0, v6", A(load))
        for q in range(4):
            for jj in range(1, 4):
                A(f"ds_read_b128 {vr(ACC + 16 * jj + 4 * q, 4)}, v{VPR + jj - 1} offset:{1024 * q}")
        for q in range(4):
            r0 = (4 * q, 4 * q + 2)
            for r in r0:
                A(f"v_pk_add_f32 {vr(ACC + 16 + r, 2)}, {vr(ACC + 16 + r, 2)}, {vr(ACC + 32 + r, 2)}")
            for r in r0:
                A(f"v_pk_add_f32 {vr(ACC + r, 2)}, {vr(ACC + r, 2)}, {vr(ACC + 48 + r, 2)}")
            for r in r0:
                A(f"v_pk_add_f32 {vr(ACC + r, 2)}, {vr(ACC + r, 2)}, {vr(ACC + 16 + r, 2)}")
            for r in r0:
                A(f"v_pk_mul_f32 {vr(ACC + r, 2)}, {vr(ACC + r, 2)}, {vr(VG, 2)} op_sel_hi:[1,0]")

    def tail_setup(self, role):
        A = self.A
        A(f"""
        s_lshl_b32 s{S_T}, s{S_MB}, 5
        s_add_u32 s{S_T}, s{S_T}, s{S_GW}
        s_lshl_b32 s{S_MO}, s{S_T}, 7
        s_add_u32 s{S_MO}, s{S_MO}, {FLAG_O + role * 2048}
        v_lshlrev_b32 v{VTP if role else 5}, 9, v0
        s_lshl_b32 s{10 if role else S_T3}, s{S_T}, 11
        s_add_u32 s{10 if role else S_T3}, s{10 if role else S_T3}, {WS_O + role * 32768}
        s_lshl_b32 s{11 if role else S_T2}, s{S_GW}, 11
        """)
        if role == 1:
            srd(A, SRD_OUT, P_OUT, S * D * 2)
            A(f"""
            s_lshr_b32 s{S_T}, s{S_GW}, 1
            s_lshl_b32 s{S_OFF}, s{S_T}, 15
            s_add_u32 s{S_OFF}, s{S_OFF}, {L_O}
            v_add_u32 v14, s{S_OFF}, v{GL16}
            s_mul_i32 s{S_T}, s{S_GW}, 2560
            s_add_u32 s{S_T}, s{S_T}, {L_TR}
            v_and_b32 v7, 31, v0
            v_mul_u32_u24 v7, 80, v7
            v_lshrrev_b32 v8, 5, v0
            v_lshl_add_u32 v7, v8, 5, v7
            v_add_u32 v7, s{S_T}, v7
            v_lshrrev_b32 v4, 2, v0
            v_and_b32 v15, 3, v0
            v_lshlrev_b32 v15, 4, v15
            v_mul_u32_u24 v8, 80, v4
            v_add_u32 v8, v8, v15
            v_add_u32 v8, s{S_T}, v8
            v_mul_u32_u24 v4, 896, v4
            v_add_u32 v{VOUT}, v4, v15
            s_add_u32 s{S_OFF}, s{S_OUTO}, {16 * 896}
            """)

    def tail(self, role):
        A = self.A
        L16 = GL16 if role else VL16
        load = f"buffer_load_dword v6, v{VTP if role else 5}, {sr(SRD_WS, 4)}, s{S_MO} offen sc1"
        if role == 1:
            A("s_waitcnt vmcnt(0)")
        tok = self.masked("15", load)
        A.wait(lg=0)
        self.stamp(A, "t_bar0")
        A("s_barrier")
        self.stamp(A, "t_bar1")
        self.jitter()
        self.check_words(load, "v_cmp_ne_u32 vcc, 1, v6", tok, mask="15")
        self.stamp(A, "t_flag")
        self.jitter()
        self.stamp(A, "rt_tflag")
        toks = []
        for step in range(4):
            A(f"s_add_u32 m0, s{11 if role else S_T2}, {L_O + role * 32768 + step * 8192}")
            A(f"s_add_u32 s{S_T}, s{10 if role else S_T3}, {step * 8192}")
            for q in range(2):
                t = A(f"buffer_load_dwordx4 v{L16}, {sr(SRD_WS, 4)}, s{S_T} offen offset:{1024 * q} sc1 lds")
            toks.append(t)
        A.wait_tok(toks[0])
        A("s_barrier")
        self.stamp(A, "t_odata")
        self.jitter()
        self.stamp(A, "rt_odata")
        if role == 0:
            for step in range(1, 4):
                A.wait_tok(toks[step])
                A("s_barrier")
            return

        def rd(k):
            o = (28 * (k >> 1) + 16 * (k & 1)) * 128
            b = k % 4
            return [f"ds_read_b128 {vr(TB_ + 4 * b, 4)}, v14 offset:{k * 1024}",
                    f"ds_read_b64_tr_b16 {vr(TA_ + 4 * b, 2)}, v{VTR} offset:{o}",
                    f"ds_read_b64_tr_b16 {vr(TA_ + 4 * b + 2, 2)}, v{VTR} offset:{o + 1024}"]

        for k in range(3):
            for x in rd(k):
                A(x)
        for k in range(32):
            A(mfma(ACC, TA_ + 4 * (k % 4), TB_ + 4 * (k % 4)))
            if k + 3 < 32:
                if (k + 3) % 8 == 0:
                    A.wait_tok(toks[(k + 3) // 8])
                    A("s_barrier")
                for x in rd(k + 3):
                    A(x)
        self.stamp(A, "t_mm")
        self.jitter()
        for hf in range(2):
            for jj in range(4):
                A(f"v_cvt_pk_bf16_f32 v{TA_ + 4 * hf + jj}, v{ACC + 8 * hf + 2 * jj}, v{ACC + 8 * hf + 2 * jj + 1}")
            A(f"ds_write_b128 v7, {vr(TA_ + 4 * hf, 4)} offset:{16 * hf}")
        for q in range(2):
            A(f"ds_read_b128 {vr(TB_ + 4 * q, 4)}, v8 offset:{16 * 80 * q}")
        for q in range(2):
            A(f"buffer_store_dwordx4 {vr(TB_ + 4 * q, 4)}, v{VOUT}, {sr(SRD_OUT, 4)}, s{S_OFF if q else S_OUTO} offen{('', ' sc1', ' nt', ' sc0 sc1')[self.opt.get('ost', 0)]}")

    def finish(self):
        A = self.A
        if self.opt.get("pad_end"):
            A("s_waitcnt vmcnt(0)")
            skip = self.lab("skip")
            if "padwg" in self.opt:
                A(f"s_cmp_lg_u32 s2, {self.opt['padwg']}")
                A(f"s_cbranch_scc1 {skip}")
            self.pad("end")
            A(f"{skip}:")
        if self.stamp.enabled:
            A("s_waitcnt vmcnt(0)")
            self.stamp(A, "t_end")
            self.stamp(A, "rt_end")
            self.stamp.flush(A)
        A("s_endpgm")

    def build(self):
        A, name = self.A, self.name
        A(f".globl {name}\n.p2align 8\n.type {name},@function\n{name}:")
        A("s_cmp_ge_u32 s2, 256")
        A(f"s_cbranch_scc1 {name}_exit")
        if any(k.startswith("pad_") for k in self.opt):
            A("s_memrealtime s[96:97]")
        self.stamp(A, "rt0")
        self.stamp(A, "t0")
        p1.SX = self.opt.get('sx')
        p1.decode(A)
        A(f"s_cmp_ge_u32 s{p1.S_CG}, 14")
        A(f"s_cbranch_scc1 {name}_q")
        st0 = A.save()
        p1.programs(A, "KV", ST + self.opt.get("ntkv", 0) * " nt", self.hooks(True), self.opt)
        A.restore(st0)
        A(f"{name}_q:")
        p1.programs(A, "Q", ST + self.opt.get("ntq", 0) * " nt", self.hooks(False), self.opt)
        if self.opt.get("p1exit") or self.opt.get("p2exit"):
            for f in self.late:
                A.clear()
                f(A)
            A(f"{name}_exit:")
            A("s_endpgm")
            pads = A.fix_hazards()
            return A.text(), kernel_desc(name), pads
        e2 = p1.final_epilogue(ST + self.opt.get("ntkv", 0) * " nt")
        A.clear()
        self.target(A, f"{name}_a_plain")
        tok = self.arrived_load()
        for x in sum(sum(self.setup_units(), []), []):
            A(x)
        self.arrived_check(tok)
        A(f"s_branch {name}_a_poll")
        self.target(A, f"{name}_a_late")
        if self.opt.get("mid", 1):
            tok = self.masked(POLLMASK, POLL)
            for x in e2[0]:
                A(x)
            A.wait_tok(tok)
            self.masked(POLLMASK, "v_cmp_eq_u32 vcc, 0, v6")
            A(f"s_cbranch_vccz {name}_a_mid")
            for x in e2[1]:
                A(x)
        else:
            for x in e2[0] + e2[1]:
                A(x)
        self.target(A, f"{name}_a_poll", inline=True)
        tok = self.masked(POLLMASK, POLL)
        self.check_words(POLL, "v_cmp_eq_u32 vcc, 0, v6", tok, mask=POLLMASK)
        self.stamp(A, "a_flags")
        self.stamp(A, "rt_aflags")
        A(f"s_mov_b32 s{S_OFF}, 0")
        for x in sum(self.first_loads(), []):
            A(x)
        A(f"ds_write_b32 v{VHW}, v{VHW}")
        A(f"s_branch {name}_a_go")
        plain = A.save()
        if self.opt.get("mid", 1):
            A.clear()
            A(f"{name}_a_mid:")
            self.stamp(A, "a_flags")
            self.stamp(A, "rt_aflags")
            A(f"s_mov_b32 s{S_OFF}, 0")
            fl = self.first_loads()
            for k, x in enumerate(e2[1][:-2]):
                if k % 4 == 0 and fl:
                    for y in fl.pop(0):
                        A(y)
                A(x)
            assert not fl
            for x in e2[1][-2:]:
                A(x)
            A(f"s_branch {name}_a_go")
        A.clear()
        self.target(A, f"{name}_a_e2")
        self.masked(POLLMASK, "v_cmp_eq_u32 vcc, 0, v6")
        A(f"s_cbranch_vccnz {name}_a_late")
        self.stamp(A, "a_flags")
        self.stamp(A, "rt_aflags")
        A(f"s_mov_b32 s{S_OFF}, 0")
        work = e2[0][:-2] + e2[1][:-2]
        fl = self.first_loads()
        step = self.opt.get("lstep", 6)
        for k, x in enumerate(work):
            if k % step == 0 and fl:
                for y in fl.pop(0):
                    A(y)
            A(x)
        assert not fl
        for x in e2[0][-2:] + e2[1][-2:]:
            A(x)
        self.stamp(A, "a_e2b")
        assert [x for x in A.state()[0] if x] == [tuple(sorted(e[1])) for e in plain[0]]
        A.restore(plain)
        A.lg = []
        self.target(A, f"{name}_a_go", inline=True)
        A(f"s_mov_b32 s{S_LO}, {f32(2.0 ** -30)}")
        A(f"v_mov_b32 v{VHI}, {f32(2.0 ** 30)}")
        self.mask_q(0)
        A(self.qk(0, 0))
        A(self.qk(0, 1))
        A("s_setprio 1")
        self.stamp(A, "a_first")
        self.stamp(A, "rt_afirst")
        self.attn_main()
        self.attn_finish()
        self.stamp(A, "a_pub")
        self.stamp(A, "rt_pub")
        A(f"s_cmp_ge_u32 s{S_NB}, 7")
        A(f"s_cbranch_scc1 {name}_a_done")
        self.tail(0)
        A(f"{name}_a_done:")
        self.finish()
        A.clear()
        self.target(A, f"{name}_g_plain")
        self.gemm_start(None)
        A(f"s_branch {name}_g_go")
        A.clear()
        self.target(A, f"{name}_g_e2")
        self.gemm_start(e2)
        self.target(A, f"{name}_g_go", inline=True)
        self.gemm_main()
        self.tail(1)
        self.finish()
        self.slow_path()
        k = 0
        while k < len(self.late):
            A.clear()
            self.late[k](A)
            k += 1
        A(f"{name}_exit:")
        A("s_endpgm")
        pads = A.fix_hazards()
        return A.text(), kernel_desc(name), pads


HEADER = open("gated_mix__mha_block__glu_gated_geglu__prompt.s.ref").read().split("; Override")[0]


def main():
    diag = "diag" in sys.argv
    name = "gated_mix__mha_block__glu_gated_geglu__prompt_kernel"
    sets = {"diag": "rt0 t0 p1_pass2 a_flags a_first a_loop a_pub t_flag t_end rt_end g_hw g_dma g_flags g_pre g_loop",
            "diagt": "rt0 t0 a_first a_loop a_sync a_st a_pub t_bar0 t_bar1 t_flag t_odata t_mm t_end g_loop rt_end",
            "diagp": "rt0 t0 p1_pass1 p2_4 p2_8 p2_16 p1_pass2 a_flags a_first a_loop t_end rt_end",
            "diagb": "rt0 t0 b2_pre b2_vm b2_post b3_pre b3_vm t_end rt_end",
            "diagc": "rt0 t0 b5_pre b5_vm b5_post b7_pre b7_vm t_end rt_end",
            "diagd": "rt0 t0 p2_4 c7_pre c7_vm c7_post p2_8 t_end rt_end",
            "diage": "rt0 t0 c9_pre c9_vm c9_post c15_pre c15_vm t_end rt_end",
            "diagr": "rt0 t0 p1_first p1_pass1 rt_first rt_pass1 t_end rt_end",
            "diagz": "rt0 rt_end",
            "diagrt": "rt0 rt_first rt_pass1 rt_pubq rt_pass2 rt_aflags rt_afirst rt_loop rt_pub rt_tflag rt_odata rt_end rt_gflags rt_gpre",
            "diags": "rt0 t0 p1_pass1 p1_pass2 rt_pass1 rt_pass2 p2_8 t_end rt_end",
            "diaga": "rt0 t0 p1_pass2 a_flags a_e2b a_first a_t0 a_t4 a_t8 a_t16 t_end rt_end",
            "diagru": "rt0 rtkarg rtdma0 rtpro rtvm0 rt_first rtb1 rt_end",
            "diagrv": "rt0 rtb1 rtb2 rtb3 rtb4 rtb5 rtb6 rt_end",
            "diagsp": "rt0 t0 p1_pass1 p1_pass2 q_2b q_epi q_drain t_end rt_end",
            "diagx": "rt0 t0 p1_first p1_pass2 rt_first rt_pass2 a_first a_loop rt_afirst rt_loop rt_end",
            "diagq": "rt0 t0 karg dma0 p1_first p1_pass1 p2_4 t_end rt_end"}
    which = [a for a in sys.argv if a in sets]
    diag = bool(which)
    st = Stamps(diag, sets[which[0]].split() if diag else None)
    opt = {a.split("=")[0]: int(a.split("=")[1]) for a in sys.argv[1:] if "=" in a}
    g = Gen(name, st, opt)
    code, kd, pads = g.build()
    print(HEADER.rstrip())
    print("; @launch grid=(256,1,1) block=(512,1,1) lds=163840")
    if diag:
        print("; stamps: " + " ".join(st.only))
    print('.amdgcn_target "amdgcn-amd-amdhsa--gfx950"\n.text')
    print(code)
    print('.section .rodata,"a"\n.p2align 6')
    print(kd)


if __name__ == "__main__":
    main()
```

```python
from common import *

XF, ACC1, ACC2, WB = 144, 16, 64, 96
VDX0, VDX1, VDP, VDG, VDU = 120, 121, 122, 123, 124
VAX, VAP, VAG, VAGX, VL16, VSTV, VNC1 = 125, 129, 130, 132, 134, 135, 15
PK = 136
SRD_X, SRD_P, SRD_G, SRD_U, SRD_GW = 32, 36, 40, 44, 48
S_RB, S_CG, S_XO, S_PO, S_GO, S_W1K, S_W2K, S_T, S_RT, S_C, S_ST1, S_STH, S_T2, S_QS = range(52, 66)
S_ACT = 0
LX, LP, LQ = 0, 65536, 98304


SX = None


def decode(A):
    load_args(A, {SRD_X: 0, SRD_WS: 80, SRD_P: 8, SRD_G: 32, SRD_U: 40, SRD_GW: 56})
    A(f"""
    v_lshrrev_b32 v1, 6, v0
    v_and_b32 v0, 63, v0
    v_readfirstlane_b32 s{S_WAVE}, v1
    """)
    if SX is None:
        A(f"""
        s_bfe_u32 s{S_T}, s2, 0x20001
        s_lshl_b32 s{S_T}, s{S_T}, 2
        s_lshr_b32 s{S_CG}, s2, 6
        s_add_u32 s{S_CG}, s{S_CG}, s{S_T}
        """)
    else:
        A(f"""
        s_add_u32 s{S_T}, s2, {7 - SX}
        s_and_b32 s{S_T}, s{S_T}, 7
        s_lshl_b32 s{S_T}, s{S_T}, 1
        s_lshr_b32 s{S_CG}, s2, 7
        s_add_u32 s{S_CG}, s{S_CG}, s{S_T}
        """)


def x_addresses(A):
    if SX is None:
        A(f"""
        s_bfe_u32 s{S_RB}, s2, 0x30003
        s_bitcmp1_b32 s2, 0
        s_cselect_b32 s{S_T}, 8, 0
        s_or_b32 s{S_RB}, s{S_RB}, s{S_T}
        """)
    else:
        A(f"s_bfe_u32 s{S_RB}, s2, 0x40003")
    A(f"""
    v_lshrrev_b32 v2, 3, v0
    v_and_b32 v3, 7, v0
    v_lshrrev_b32 v5, 4, v0
    s_lshl_b32 s{S_T}, s{S_RB}, 3
    v_mul_u32_u24 v6, 896, v2
    s_add_u32 s{S_T}, s{S_T}, s{S_WAVE}
    v_xor_b32 v7, v3, v5
    s_mul_i32 s{S_XO}, s{S_T}, {16 * 896}
    v_lshl_add_u32 v{VDX0}, v7, 4, v6
    s_lshl_b32 s{S_W2K}, s{S_WAVE}, 11
    v_xor_b32 v{VDX1}, 64, v{VDX0}
    v_add_u32 v{VDX1}, {8 * 896 - 1024}, v{VDX1}
    """)


def w_addresses(A, special):
    A(f"""
    v_and_b32 v4, 1, v5
    s_lshl_b32 s{S_T}, s{S_WAVE}, 3
    v_add_u32 v6, s{S_T}, v2
    s_lshl_b32 s{S_W1K}, s{S_WAVE}, 10
    v_lshlrev_b32 v7, 2, v4
    v_xor_b32 v7, v3, v7
    v_mul_u32_u24 v8, 2688, v6
    v_lshl_add_u32 v{VDP}, v7, 4, v8
    """)


def gu_dma_addresses(A):
    A(f"""
    v_lshlrev_b32 v7, 1, v4
    v_xor_b32 v7, v3, v7
    v_mul_u32_u24 v8, 3584, v6
    v_lshl_add_u32 v{VDG}, v7, 4, v8
    v_xor_b32 v{VDU}, 64, v{VDG}
    """)


def read_addresses(A):
    A(f"""
    v_and_b32 v2, 31, v0
    v_lshrrev_b32 v3, 5, v0
    s_lshl_b32 s{S_T}, s{S_RT}, 12
    v_lshl_add_u32 v4, v2, 7, s{S_T}
    v_bfe_u32 v5, v2, 1, 3
    v_xor_b32 v5, v5, v3
    """)
    for s in range(4):
        A(f"v_xor_b32 v6, {2 * s}, v5")
        A(f"v_lshl_add_u32 v{VAX + s}, v6, 4, v4")
    A(f"""
    v_and_b32 v2, 3, v0
    v_bfe_u32 v4, v0, 2, 2
    v_bfe_u32 v5, v0, 4, 1
    v_bfe_u32 v6, v0, 3, 1
    v_lshl_add_u32 v7, v3, 3, v4
    v_lshlrev_b32 v7, 7, v7
    s_lshl_b32 s{S_T}, s{S_C}, 3
    v_lshl_add_u32 v8, v5, 2, v2
    v_add_u32 v8, s{S_T}, v8
    v_lshlrev_b32 v9, 3, v6
    v_xor_b32 v8, v8, v9
    v_lshl_add_u32 v8, v8, 3, v7
    v_add_u32 v{VAP}, {LP}, v8
    """)


def gu_addresses(A, special):
    if special:
        A(f"""
        v_add_u32 v{VAG}, {LQ}, v8
        v_add_u32 v{VAG + 1}, {LQ + 8192}, v8
        v_mov_b32 v{VAGX}, v8
        v_add_u32 v{VAGX + 1}, 8192, v8
        """)
        return
    A(f"""
    v_add_u32 v8, s{S_T}, v2
    v_lshlrev_b32 v9, 2, v6
    v_xor_b32 v8, v8, v9
    v_lshlrev_b32 v9, 3, v5
    v_xor_b32 v8, v8, v9
    v_lshl_add_u32 v7, v5, 13, v7
    v_lshl_add_u32 v{VAGX}, v8, 3, v7
    v_xor_b32 v8, 4, v8
    v_lshl_add_u32 v{VAGX + 1}, v8, 3, v7
    v_add_u32 v{VAG}, {LQ}, v{VAGX}
    v_add_u32 v{VAG + 1}, {LQ}, v{VAGX + 1}
    v_mov_b32 v{VNC1}, {f32(-GELU_C1)}
    """)


def dma(m0base, m0s, voff, srd_, sbase, soff, imm=0, setm0=True):
    out = []
    if setm0:
        out.append(f"s_add_u32 m0, s{m0s}, {m0base}")
    if soff:
        out.append(f"s_add_u32 s{S_T2}, s{sbase}, {soff}")
    out.append(f"buffer_load_dwordx4 v{voff}, {sr(srd_, 4)}, s{S_T2 if soff else sbase} offen{' offset:%d' % imm if imm else ''} lds")
    return out


def stage_dma(stage, special, up=0):
    sl = stage % 4
    g = []
    g.append(dma(LX + sl * 16384 + up * 8192, S_W2K, VDX0, SRD_X, S_XO, stage * 128 + up * 64 * 896) +
             [f"buffer_load_dwordx4 v{VDX1}, {sr(SRD_X, 4)}, s{S_T2 if stage or up else S_XO} offen offset:1024 lds"])
    k0 = stage * 64 + up * 32
    g.append(dma(LP + sl * 8192 + up * 4096, S_W1K, VDP, SRD_P, S_PO, k0 * 2688))
    q = LQ + sl * 16384 + up * 4096
    if special:
        g.append(dma(q, S_W1K, VDP, SRD_P, S_PO, k0 * 2688 + 128))
    else:
        g.append(dma(q, S_W1K, VDG, SRD_G, S_GO, k0 * 3584))
        g.append(dma(q + 8192, S_W1K, VDU, SRD_U, S_GO, k0 * 3584))
    return g


P2LOC = {0: (LX, 3), 1: (LQ, 3), 2: (LX, 0), 3: (LQ, 0), 4: (LX, 1), 5: (LQ, 1), 6: (LX, 2)}


def p2_dma(ch, special, up=0):
    reg, sl = P2LOC[ch]
    base = reg + sl * 16384 + up * 4096
    k0 = ch * 64 + up * 32
    if special:
        return [dma(base, S_W1K, VDP, SRD_P, S_PO, k0 * 2688 + 256),
                dma(base + 8192, S_W1K, VDP, SRD_P, S_GO, k0 * 2688)]
    return [dma(base, S_W1K, VDG, SRD_G, S_GO, k0 * 3584 + 128),
            dma(base + 8192, S_W1K, VDU, SRD_U, S_GO, k0 * 3584 + 128)]


def tr_reads(dst, addr, off):
    return [f"ds_read_b64_tr_b16 {vr(dst, 2)}, v{addr} offset:{off}",
            f"ds_read_b64_tr_b16 {vr(dst + 2, 2)}, v{addr} offset:{off + 512}"]


LA1, LA2 = 1, 1


def wb1(t):
    return WB + 12 * (t & 1) if LA1 == 1 else (WB + 12, ACC2, WB)[t % 3]


def reads1(t):
    ch, s = divmod(t, 4)
    sl = ch % 4
    b = wb1(t)
    return ([f"ds_read_b128 {vr(XF + 4 * t, 4)}, v{VAX + s} offset:{LX + sl * 16384}"] +
            tr_reads(b, VAP, sl * 8192 + s * 2048),
            tr_reads(b + 4, VAG, sl * 16384 + s * 2048),
            tr_reads(b + 8, VAG + 1, sl * 16384 + s * 2048))


def wb2(t, ntile):
    if ntile == 1:
        return WB + 4 * (t % 6)
    return WB + 12 * (t & 1) if LA2 == 1 else WB + 8 * (t % 3)


def reads2(t, ntile, img=0):
    if ntile == 1:
        ch, s = divmod(t % 28, 4)
        reg, sl = P2LOC[ch]
        return [tr_reads(wb2(t, 1), (VAGX if reg == LX else VAG) + t // 28, sl * 16384 + s * 2048)]
    ch, s = divmod(t, 4)
    reg, sl = P2LOC[ch]
    a = VAGX if reg == LX else VAG
    b = wb2(t, ntile)
    return [tr_reads(b + 4 * e, a + e, sl * 16384 + s * 2048) for e in range(ntile)]


def epi_gu(acc, pk, soff_expr, st):
    o = []
    T = [1, 2, 3, 4]
    for half in range(2):
        g = [acc + 4 * half + i for i in range(4)]
        u = [acc + 8 + 4 * half + i for i in range(4)]
        o += [f"v_mul_f32 v{T[i]}, v{g[i]}, v{g[i]}" for i in range(4)]
        o += [f"v_fmamk_f32 v{T[i]}, v{T[i]}, {f32(-GELU_C1 * GELU_C2)}, v{VNC1}" for i in range(4)]
        o += [f"v_mul_f32 v{T[i]}, v{T[i]}, v{g[i]}" for i in range(4)]
        o += [f"v_exp_f32 v{T[i]}, v{T[i]}" for i in range(4)]
        o += [f"v_mul_f32 v{u[i]}, v{g[i]}, v{u[i]}" for i in range(4)]
        o += [f"v_add_f32 v{T[i]}, 1.0, v{T[i]}" for i in range(4)]
        o += [f"v_rcp_f32 v{T[i]}, v{T[i]}" for i in range(4)]
        o += [f"v_mul_f32 v{u[i]}, v{u[i]}, v{T[i]}" for i in range(4)]
        o += [f"v_cvt_pk_bf16_f32 v{pk + 2 * half + i}, v{u[2 * i]}, v{u[2 * i + 1]}" for i in range(2)]
    o.append(f"s_add_u32 s{S_T}, s{S_STH}, {soff_expr}")
    o.append(f"buffer_store_dwordx4 {vr(pk, 4)}, v{VL16}, {sr(SRD_WS, 4)}, s{S_T} offen{st}")
    return o


def epi_qk(acc, scale, soff, st, base=None):
    o = []
    if scale:
        o += [f"v_mul_f32 v{acc + r}, s{S_QS}, v{acc + r}" for r in range(16)]
    o += [f"v_cvt_pk_bf16_f32 v{PK + j}, v{acc + 2 * j}, v{acc + 2 * j + 1}" for j in range(8)]
    o.append(f"s_add_u32 s{S_T}, s{base or S_ST1}, {soff}")
    for q in range(2):
        o.append(f"v_permlane32_swap_b32 v{PK + 4 * q}, v{PK + 4 * q + 2}")
        o.append(f"v_permlane32_swap_b32 v{PK + 4 * q + 1}, v{PK + 4 * q + 3}")
    for q in range(2):
        o.append(f"buffer_store_dwordx4 {vr(PK + 4 * q, 4)}, v{VL16}, {sr(SRD_WS, 4)}, s{S_T} offen offset:{1024 * q}{st}")
    return o


def epi_v(acc, st):
    o = [f"v_cvt_pk_bf16_f32 v{PK + j}, v{acc + 2 * j}, v{acc + 2 * j + 1}" for j in range(8)]
    o.append(f"s_add_u32 s{S_T}, s{S_ST1}, 14336")
    o.append(f"buffer_store_dwordx4 {vr(PK, 4)}, v{VSTV}, {sr(SRD_WS, 4)}, s{S_ST1} offen{st}")
    o.append(f"buffer_store_dwordx4 {vr(PK + 4, 4)}, v{VSTV}, {sr(SRD_WS, 4)}, s{S_T} offen{st}")
    return o


def final_epilogue(st):
    return epi_gu(ACC2, PK, 4096, st), epi_gu(ACC2 + 16, PK + 4, 5120, st)


def gate_loads(A):
    A(f"""
    s_lshl_b32 s10, s{S_RB}, 7
    s_lshl_b32 s11, s{S_CG}, 3
    s_add_u32 s10, s10, s11
    s_add_u32 s3, s10, s{S_WAVE}
    s_mul_i32 s10, s3, 896
    """)
    for r in range(136, 144, 2):
        A(f"v_mov_b64 {vr(r, 2)}, 0")
    A(f"""
    s_mov_b32 exec_hi, 0x00ffffff
    buffer_load_dwordx4 v[136:139], v{VL16}, {sr(SRD_X, 4)}, s10 offen
    buffer_load_dwordx4 v[140:143], v{VL16}, {sr(SRD_GW, 4)}, 0 offen
    s_mov_b64 exec, -1
    """)


def gate_compute(A, st):
    A("v_mov_b32 v1, 0")
    for i in range(4):
        A(f"v_dot2_f32_bf16 v1, v{136 + i}, v{140 + i}, v1")
    for m in ("row_shr:1 row_mask:0xf", "row_shr:2 row_mask:0xf", "row_shr:4 row_mask:0xf", "row_shr:8 row_mask:0xf",
              "row_bcast:15 row_mask:0xa", "row_bcast:31 row_mask:0xc"):
        A(f"v_add_f32_dpp v1, v1, v1 {m} bank_mask:0xf")
    A(f"""
    v_mul_f32 v1, {f32(-LOG2E)}, v1
    v_exp_f32 v1, v1
    s_lshl_b32 s3, s3, 2
    v_add_f32 v1, 1.0, v1
    v_rcp_f32 v1, v1
    s_add_u32 s3, s3, {WS_G}
    s_mov_b32 exec_lo, 0
    s_mov_b32 exec_hi, 0x80000000
    """)
    tok = A(f"buffer_store_dword v1, off, {sr(SRD_WS, 4)}, s3{st}")
    A("s_mov_b64 exec, -1")
    return tok


def programs(A, kinds, st, hooks, opt):
    global LA1, LA2
    LA1, LA2 = opt.get("la1", 2), opt.get("la2", 1)
    LA0, LA = opt.get("LA0", 2), opt.get("LA", 2)
    p2bars, pubbar, popstart = (7, 15), opt.get("pubbar", 9), opt.get("popstart", 4)
    dma_a = opt.get("dma_a", 1)
    stamp = hooks["stamp"]
    special = kinds == "Q"
    if special:
        dma_a = opt.get("dma_aq", 0)
        LA = opt.get("LAq", 2)
    ntile2 = 1 if special else 2
    toks = {}

    def issue(groups, key):
        for g in groups:
            for x in g:
                t = A(x)
                if t:
                    toks[key] = t

    def groups_of(stg, up):
        if stg < 7:
            return stage_dma(stg, special, up)
        if stg > 10:
            return []
        c0 = 2 * (stg - 7)
        return p2_dma(c0, special, up) + (p2_dma(c0 + 1, special, up) if c0 < 6 else [])

    pfpos, split = opt.get("pfpos", 1), False
    g0 = groups_of(0, 0)
    x_addresses(A)
    w_addresses(A, special)
    if special:
        A(f"s_and_b32 s{S_PO}, s{S_CG}, 1")
        A(f"s_lshl_b32 s{S_PO}, s{S_PO}, 9")
        A(f"s_mov_b32 s{S_GO}, 384")
    else:
        A(f"s_lshl_b32 s{S_PO}, s{S_CG}, 7")
        A(f"s_add_u32 s{S_PO}, s{S_PO}, 896")
        gu_dma_addresses(A)
        A(f"s_lshl_b32 s{S_GO}, s{S_CG}, 8")
        srd_tail(A, SRD_G, D * F * 2)
        srd_tail(A, SRD_U, D * F * 2)
    srd_tail(A, SRD_X, S * D * 2)
    srd_tail(A, SRD_P, D * 3 * D * 2)
    A(g0[0][0])
    A.wait(lg=0)
    stamp(A, "karg")
    stamp(A, "rtkarg")
    issue([g0[0][1:]] + g0[1:], 0)
    load_args2(A)
    stamp(A, "dma0")
    stamp(A, "rtdma0")
    srd_tail(A, SRD_GW, D * 2)
    srd_tail(A, SRD_WS, WS_BYTES)
    A(f"""
    v_lshlrev_b32 v{VL16}, 4, v0
    s_and_b32 s{S_RT}, s{S_WAVE}, 3
    s_lshr_b32 s{S_C}, s{S_WAVE}, 2
    s_cselect_b32 s{S_ROLE}, 1, 0
    """)
    A.wait(lg=0)
    hooks["entry"](A)
    A("s_barrier")
    issue(groups_of(1, 0), 1)
    hooks["prefetch"](A, 0)
    gate_loads(A)
    read_addresses(A)
    gu_addresses(A, special)
    labels = {(k, r): hooks["label"](f"{k}{r}_") for k in kinds for r in (0, 1)}
    hooks["prologue"](A, special, [labels[k] for k in labels][1:])

    def side_work(kind, role):
        A = Rec()
        S_T, S_T2 = 0, 1
        A(f"s_lshl_b32 s{S_T}, s{S_RB}, 2")
        A(f"s_add_u32 s{S_T}, s{S_T}, s{S_RT}")
        A(f"s_mul_i32 s{S_ST1}, s{S_T}, 28672")
        if special:
            A(f"s_add_u32 s{S_STH}, s{S_ST1}, {role << 11}")
            A(f"s_lshl_b32 s{S_T}, s{S_PO}, 5")
            A(f"s_add_u32 s{S_ST1}, s{S_STH}, s{S_T}")
            A(f"s_mov_b32 s{S_QS}, {f32(QSCALE)}")
        else:
            A(f"s_mul_i32 s{S_STH}, s{S_T}, 114688")
            A(f"s_lshl_b32 s{S_T}, s{S_CG}, 13")
            A(f"s_add_u32 s{S_STH}, s{S_STH}, s{S_T}")
            A(f"s_add_u32 s{S_STH}, s{S_STH}, {WS_H + (role << 11)}")
            if kind == "K":
                A(f"s_lshl_b32 s{S_T}, s{S_CG}, 12")
                A(f"s_add_u32 s{S_ST1}, s{S_ST1}, s{S_T}")
                A(f"s_add_u32 s{S_ST1}, s{S_ST1}, {WS_K + (role << 11)}")
            else:
                A(f"s_lshl_b32 s{S_T}, s{S_CG}, 10")
                A(f"s_add_u32 s{S_ST1}, s{S_ST1}, s{S_T}")
                A(f"s_add_u32 s{S_ST1}, s{S_ST1}, {WS_V - 7 * 1024 + (role << 9)}")
                A(f"v_lshrrev_b32 v{VSTV}, 5, v0")
                A(f"v_mul_u32_u24 v{VSTV}, {7168 - 512}, v{VSTV}")
                A(f"v_add_u32 v{VSTV}, v{VSTV}, v{VL16}")
        hooks["idle"](A, role)
        L, G = Rec(), Rec()
        gate_loads(L)
        gate_compute(G, st)
        return A.units, L.units, G.units

    def mm1(kind, t, i):
        b = wb1(t) + 4 * i
        c = "0" if t == 0 else None
        if kind == "V" and i == 0:
            return mfma(ACC1, XF + 4 * t, b, c)
        return mfma(ACC1 + 16 * i, b, XF + 4 * t, c)

    def mm2(t, i):
        return mfma(ACC2 + 16 * i, wb2(t, ntile2) + 4 * i, XF + 4 * t, "0" if t == 0 else None)

    stamp(A, "rtpro")
    if split:
        skip = hooks["label"]("skip")
        sv = A.save()
        A.wait_tok(toks["x0"])
        A(f"s_cmp_ge_u32 s{S_WAVE}, 4")
        A(f"s_cbranch_scc1 {skip}")
        A.wait_tok(toks[0])
        A(f"{skip}:")
        A.restore(sv)
    else:
        A.wait_tok(toks[0])
    stamp(A, "rtvm0")
    A("s_barrier")
    stamp(A, "p1_first")
    stamp(A, "rt_first")
    nt1 = 2 if special else 3
    for k in range(LA1):
        for r in reads1(k)[:nt1]:
            for x in r:
                A(x)
    if not special:
        v = hooks["label"]("isv")
        A(f"s_cmp_ge_u32 s{S_CG}, 7")
        A(f"s_cbranch_scc0 {v}")
        A(f"s_cmp_eq_u32 s{S_ROLE}, 0")
        A(f"s_cbranch_scc1 {labels['V', 0]}")
        A(f"s_branch {labels['V', 1]}")
        A(f"{v}:")
    A(f"s_cmp_eq_u32 s{S_ROLE}, 0")
    A(f"s_cbranch_scc0 {labels[kinds[0], 1]}")
    sv0, toks0 = A.save(), dict(toks)

    def one_wait(ms):
        regs = set().union(*[Ins(m).uses for m in ms])
        A.wait_tok(*[e[0] for e in A.lg if e[1] & regs])

    def stream(kind, role):
        pend = []

        def stage_groups(stg):
            if not dma_a:
                return [(g, stg) for g in groups_of(stg, 0)]
            if role:
                return []
            return [(g, stg) for pair in zip(groups_of(stg, 0), groups_of(stg, 1)) for g in pair]

        def pop(n=1):
            for _ in range(n):
                if pend:
                    g, key = pend.pop(0)
                    if opt.get("nodma"):
                        toks[key] = None
                    else:
                        issue([g], key)

        side, gload, gate = side_work(kind, role)
        half = len(side) // 3
        plan = [(gate, 3, 7), (side, 8, 25)]

        def fill(t, k):
            hit = [p for p in plan if p[1] <= t <= p[2]]
            if opt.get("nofill") or not hit:
                return
            units, lo, hi = hit[0]
            n = 3 * (hi - lo + 1)
            pos = 3 * (t - lo) + k
            for u in units[len(units) * pos // n:len(units) * (pos + 1) // n]:
                for x in u:
                    tk = A(x)
                    if tk and "store" in x:
                        toks["gate"] = tk

        for k in range(LA0, LA + 1):
            pend += stage_groups(k)
        for t in range(28):
            if t + LA1 < 28:
                nxt = reads1(t + LA1)
            elif t < 27:
                nxt = [[], [], []]
            elif ntile2 == 1:
                nxt = [reads2(k, 1)[0] for k in range(3)]
            else:
                nxt = reads2(0, 2) + [sum(reads2(1, 2), []) if LA2 == 2 else []]
            bound = (t + LA1) % 4 == 0 if t < 25 else t == 27
            if split and t == 0:
                nxt = [[], [], []]
            if split and t == 1:
                nxt = [a_ + b_ for a_, b_ in zip(reads1(2), reads1(3))]
            if bound:
                A.wait(lg=0)
            if opt.get("merge1", 1) and LA1 == 2 and t > 1:
                one_wait([mm1(kind, t, i) for i in range(nt1)])
            A(mm1(kind, t, 0))
            if split and t == 1:
                A.wait_tok(toks[0])
                A("s_barrier")
            if bound:
                stg = (t + LA1) // 4
                assert not pend
                need = stg if stg < 7 else 7 + p2bars[0] // 8
                stamp(A, f"b{stg}_pre")
                A.wait_tok(toks.get(need), toks.get("gate") if stg == 4 else None)
                stamp(A, f"b{stg}_vm")
                if not opt.get("nobar"):
                    A("s_barrier")
                stamp(A, f"b{stg}_post")
                stamp(A, f"rtb{stg}")
                hooks["p1bar"](A, stg, role)
                todo = list(range(stg + LA, stg + LA + 1 if stg < 7 else 11))
                if special and LA == 2 and stg >= 6:
                    todo = [8, 9] if stg == 6 else [10]
                for k in todo:
                    pend += stage_groups(k)
            left = (3 - LA1 - t) % 4 + 1
            npop = -(-len(pend) // left) if t < 27 else len(pend) * special
            for i in range(3):
                if 0 < i < nt1:
                    A(mm1(kind, t, i))
                for x in (nxt[i] if i < nt1 or t == 27 else []):
                    A(x)
                pop((npop + (0, 2, 1)[i]) // 3)
                fill(t, i)
            if t == opt.get("pf2", 21):
                hooks["prefetch"](A, 1)
        stamp(A, "p1_pass1")
        stamp(A, "rt_pass1")
        if "p1exit" in hooks:
            hooks["p1exit"]()
            return
        if kind == "K":
            e1 = epi_qk(ACC1, False, 0, st)
        elif kind == "V":
            e1 = epi_v(ACC1, st)
        else:
            e1 = sum([epi_qk(ACC1 + 16 * k, True, WS_Q + 4096 * k, st) for k in range(2)], [])
        nq = len(e1)
        if not special:
            e1 = e1 + epi_gu(ACC1 + 16, PK, 0, st) + epi_gu(ACC1 + 32, PK + 4, 1024, st)

        if opt.get("nost"):
            e1 = [("s_nop 0" if x.startswith("buffer_store") else x) for x in e1]
        if opt.get("noe1"):
            e1 = e1[:nq]
        if opt.get("notrans"):
            e1 = [x.replace("v_exp_f32", "v_mov_b32").replace("v_rcp_f32", "v_mov_b32") for x in e1]

        def bar_token(k):
            return toks.get(7 + p2bars[k + 1] // 8 if k + 1 < len(p2bars) else 10)

        done = 0
        qtok = None
        la = LA2 if ntile2 == 2 else 3
        nslots = 27 * ntile2
        slot = 0
        for t in range(28):
            nxt = reads2(t + la, ntile2) if t + la < 28 or special else [[]] * ntile2
            bound = t + la - 1 in p2bars
            pub = not special and t == pubbar
            endbar = t == 27 and not special
            if endbar or (bound and not special):
                A.wait(lg=0)
            hooks["p2step"](A, t, role)
            if opt.get("merge2", 0):
                one_wait([mm2(t, i) for i in range(ntile2)])
            for i in range(ntile2):
                A(mm2(t, i))
                if endbar and i == 0:
                    A("s_barrier")
                if (bound or pub) and i == 0:
                    assert not pub or done >= nq
                    stamp(A, f"c{t}_pre")
                    A.wait_tok(bar_token(p2bars.index(t + la - 1)) if bound else None, qtok if pub else None)
                    stamp(A, f"c{t}_vm")
                    A("s_barrier")
                    stamp(A, f"c{t}_post")
                    if pub:
                        hooks["qkv_done"](A, role)
                for x in nxt[i]:
                    A(x)
                if special:
                    pop(2 if t >= 2 else 0)
                elif t >= popstart and (dma_a or i == 0):
                    pop()
                upto = 0
                if t >= 1:
                    slot += 1
                    upto = min(len(e1), (len(e1) * slot * 27) // (nslots * 25))
                upto = max(upto, min(nq, (opt.get("qpace", 8) if special else 8) * (ntile2 * t + i + 1)))
                while done < upto:
                    tk = A(e1[done])
                    if tk and done < nq:
                        qtok = tk
                    done += 1
        assert done == len(e1) and not pend
        stamp(A, "p1_pass2")
        stamp(A, "rt_pass2")
        if "p2exit" in hooks:
            hooks["p2exit"]()
            return
        if not special:
            hooks["regular_end"](A, role)
            return
        e2 = epi_qk(ACC2, True, WS_Q + 8192, st)
        idle, fin = hooks["label"]("idle"), hooks["label"]("fin")
        A(f"s_bitcmp{1 - role}_b32 s{S_CG}, 0")
        A(f"s_cbranch_scc1 {idle}")
        sv = A.save()
        done = 0
        for t in range(28):
            A(mfma(ACC1, wb2(28 + t, 1), XF + 4 * t, "0" if t == 0 else None))
            for x in (reads2(28 + t + 3, 1)[0] if t + 3 < 28 else []):
                A(x)
            while t >= 1 and done < min(len(e2), opt.get("qpace2", 6) * t):
                A(e2[done])
                done += 1
        stamp(A, "q_2b")
        for x in epi_qk(ACC1, True, WS_Q + 12288, st, base=S_STH):
            A(x)
        stamp(A, "q_epi")
        A(f"s_branch {fin}")
        A(f"{idle}:")
        A.restore(sv)
        for x in e2:
            A(x)
        A(f"{fin}:")
        hooks["special_end"](A, role)

    for n, (kind, role) in enumerate(labels):
        if n:
            hooks["target"](A, labels[kind, role])
            A.restore(sv0)
            toks.clear()
            toks.update(toks0)
        stream(kind, role)
        assert "p1exit" in hooks or "p2exit" in hooks or (all(not e[1] for e in A.vm) and all(not e[1] for e in A.lg)), A.state()
```

```python
import sys
from common import *
import phase1 as p1

ST = " sc1"
LD = " sc1"

FLAG_S = WS_FLAG
FLAG_O = WS_FLAG + 0x8000
FLAG_T = WS_FLAG + 0x30000
SPIN = 1 << 17

L_WO, L_RING, L_OP, L_MISC = 0, 57344, 106496, 155648
L_O = L_RING
L_TR = 131072
M_HW, M_AS, M_GS, M_TK = L_MISC, L_MISC + 2048, L_MISC + 3072, L_MISC + 4096

S_F1, S_SPIN = 27, 3
S_HEAD, S_QB, S_MB, S_NB, S_GW = range(66, 71)
S_AG = 61
S_MO, S_T, S_T2, S_T3, S_OFF, S_CNT = 54, 56, 57, 58, 60, 61
SRD_DBG, SRD_OUT = 48, 48
SRD_K, SRD_V, S_Q, S_ME, S_OO, S_OF = 72, 76, 80, 84, 86, 87
SRD_WD, SRD_WO = 72, 76
S_RA, S_RB, S_WDO, S_WOO, S_HOFF, S_GOFF, S_OUTO = range(80, 87)

VL16 = p1.VL16
VPOLL, VHW = 12, 14
OA, SB, PB, VB, KB, QF = 16, 80, 112, 160, 192, 224
VV0, VGA, VONE, VM, VHI = 10, 11, 13, 1, 7
VMLO, VMHI, VGAD = 120, 121, 122
S_LO = 62
VK = [VL16, 144, 145, 146]
VV = [VV0] + list(range(147, 154))
VXA, VSW, VSR = 154, 158, 159
ACC, HB, WBUF = 16, 80, 160
GL16, GSW, GSR = 1, 2, 3
NDEF = int([a for a in sys.argv if a.startswith('ndef=')][0][5:]) if any(a.startswith('ndef=') for a in sys.argv) else 10
VDW0, VDW1, VTR = 9, 10, 11
VH0, VH1, VAWA, VAWB, VG = 242, 243, 244, 246, 248
VPW, VPR, VGATE, VOUT, VTP = 240, 250, 241, 253, 254
ACA, TB_, TA_ = 80, 96, 112
POLLMASK = "0x1ffff"
POLL = f"buffer_load_dword v6, v{VPOLL}, {sr(SRD_WS, 4)}, 0 offen sc1"


class Gen:
    def __init__(self, name, stamps, opt=None):
        self.A = Asm()
        self.name = name
        self.stamp = stamps
        self.opt = opt or {}
        self.late = []
        self.nlab = 0

    def pad(self, where):
        us = self.opt.get("pad_" + where)
        if not us:
            return
        A, L = self.A, self.lab("pad")
        A.auto = False
        A(f"{L}:")
        A("s_memrealtime s[98:99]")
        A._emit_raw("s_waitcnt lgkmcnt(0)")
        A("s_sub_u32 s98, s98, s96")
        A(f"s_cmp_lt_u32 s98, {us * 100}")
        A(f"s_cbranch_scc1 {L}")
        A.auto = True
        A.sm = set()

    def jitter(self, A=None):
        seed = self.opt.get("jitter")
        if not seed:
            return
        A = A or self.A
        self.njit = getattr(self, "njit", 0) + 1
        L = self.lab("jit")
        A(f"""
        s_lshl_b32 s98, s2, 3
        s_add_u32 s98, s98, s{S_WAVE}
        s_add_u32 s98, s98, {(seed * 7919 + self.njit * 104729) & 0xffff}
        s_mul_i32 s98, s98, 0x9E3779B1
        s_lshr_b32 s99, s98, 29
        s_lshr_b32 s98, s98, 12
        s_and_b32 s98, s98, 63
        s_lshr_b32 s98, s98, s99
        {L}:
        s_sleep 4
        s_sub_u32 s98, s98, 1
        s_cbranch_scc0 {L}
        """)

    def lab(self, s):
        self.nlab += 1
        return f"{self.name}_{s}{self.nlab}"

    def one_lane_store(self, value, soff, wave=None, tmp=5):
        A = self.A
        skip = None
        if wave is not None:
            skip = self.lab("skip")
            A(f"s_cmp_lg_u32 s{S_WAVE}, {wave}")
            A(f"s_cbranch_scc1 {skip}")
        A(f"v_mov_b32 v{tmp}, {value}")
        A("s_mov_b64 exec, 1")
        A.uncounted(f"buffer_store_dword v{tmp}, off, {sr(SRD_WS, 4)}, s{soff} sc1")
        A("s_mov_b64 exec, -1")
        if skip:
            A(f"{skip}:")

    def check_words(self, load, cmp_, tok, mask=None, nap=0, alt=None):
        A = self.A
        ok, loop = self.lab("ok"), self.lab("again")
        A.wait_tok(tok)
        if mask:
            A(f"s_mov_b64 exec, {mask}")
        A(cmp_)
        A(f"s_cbranch_vccz {ok}")
        sv = A.save()
        A(f"s_mov_b32 s{S_SPIN}, {SPIN}")
        if alt:
            swap = lambda x: x.replace("v6", f"v{alt}")
            A("s_waitcnt vmcnt(0)")
            A.auto = False
            A(load)
            A("s_sleep 4")
            A(f"{loop}:")
            for l_, c_ in ((swap(load), cmp_), (load, swap(cmp_))):
                A(l_)
                A._emit_raw("s_waitcnt vmcnt(1)")
                A(c_)
                A(f"s_cbranch_vccz {ok}")
            A(f"s_sub_u32 s{S_SPIN}, s{S_SPIN}, 1")
            A(f"s_cbranch_scc0 {loop}")
            A.auto = True
            A.restore(sv)
            A(f"{ok}:")
            if mask:
                A("s_mov_b64 exec, -1")
            return
        A(f"{loop}:")
        if nap:
            A(f"s_sleep {nap}")
        A(load)
        A("s_waitcnt vmcnt(0)" if load.startswith("buffer") else "s_waitcnt lgkmcnt(0)")
        A(cmp_)
        A(f"s_cbranch_vccz {ok}")
        A(f"s_sub_u32 s{S_SPIN}, s{S_SPIN}, 1")
        A(f"s_cbranch_scc0 {loop}")
        A.restore(sv)
        A(f"{ok}:")
        if mask:
            A("s_mov_b64 exec, -1")

    def target(self, A, label, inline=False):
        if not self.opt.get("warm", 0):
            A(f"{label}:")
            return
        if inline:
            A(f"s_branch {label}")
        A(".p2align 6")
        A(f"{label}_w:")
        A("s_setpc_b64 s[0:1]")
        A(f"{label}:")

    def warm(self, A, special, own):
        if not self.opt.get("warm", 0):
            return
        n = self.name
        t = own + ([f"{n}_a_plain", f"{n}_g_plain", f"{n}_a_poll", f"{n}_a_go", f"{n}_g_go"] if special else
                   [f"{n}_a_e2", f"{n}_g_e2", f"{n}_a_late", f"{n}_a_go"])
        for w, lab in enumerate(t):
            skip = self.lab("skip")
            A(f"s_cmp_lg_u32 s{S_WAVE}, {w}")
            A(f"s_cbranch_scc1 {skip}")
            A(f"s_call_b64 s[0:1], {lab}_w")
            A(f"{skip}:")

    DBG = f"buffer_load_dword v7, v8, {sr(SRD_DBG, 4)}, 0 offen sc1"

    def arrived_load(self):
        self.A("v_and_b32 v8, 3, v0")
        self.A("v_lshlrev_b32 v8, 6, v8")
        return self.A(self.DBG)

    def arrived_check(self, tok):
        self.check_words(self.DBG, "v_cmp_gt_u32 vcc, 64, v7", tok)

    def masked(self, mask, text):
        self.A(f"s_mov_b64 exec, {mask}")
        t = self.A(text)
        self.A("s_mov_b64 exec, -1")
        return t

    def hooks(self, early_poll):
        A = self.A
        st = {}
        steal = self.opt.get("steal", 0)

        def entry(A):
            self.jitter()
            self.code_prefetch(A)
            skip = self.lab("skip")
            A(f"""
            s_lshl_b32 s{S_F1}, s{p1.S_RB}, 4
            s_add_u32 s{S_F1}, s{S_F1}, s{p1.S_CG}
            s_lshl_b32 s{S_F1}, s{S_F1}, 7
            s_add_u32 s{S_F1}, s{S_F1}, {FLAG_S}
            s_cmp_lg_u32 s{S_WAVE}, 0
            s_cbranch_scc1 {skip}
            s_and_b32 s{p1.S_T}, s2, 7
            s_lshl_b32 s{p1.S_T}, s{p1.S_T}, 1
            s_lshr_b32 s{p1.S_T2}, s2, 7
            s_add_u32 s{p1.S_T}, s{p1.S_T}, s{p1.S_T2}
            s_bfe_u32 s{p1.S_T2}, s2, 0x40003
            s_lshl_b32 s{p1.S_T2}, s{p1.S_T2}, 6
            s_add_u32 s{p1.S_T}, s{p1.S_T}, s{p1.S_T2}
            s_lshl_b32 s{p1.S_T}, s{p1.S_T}, 7
            s_add_u32 s{p1.S_T}, s{p1.S_T}, {FLAG_O}
            v_mov_b32 v10, 0
            v_lshlrev_b32 v11, 11, v0
            s_mov_b64 exec, 15
            """)
            A.uncounted(f"buffer_store_dword v10, v11, {sr(SRD_WS, 4)}, s{p1.S_T} offen sc1")
            A("s_mov_b64 exec, 1")
            A.uncounted(f"buffer_store_dword v10, off, {sr(SRD_WS, 4)}, s{S_F1} sc1")
            if steal:
                A(f"s_lshl_b32 s{p1.S_T}, s2, 7")
                A(f"s_add_u32 s{p1.S_T}, s{p1.S_T}, {FLAG_T}")
                A.uncounted(f"buffer_store_dword v10, off, {sr(SRD_WS, 4)}, s{p1.S_T} sc1")
            A("s_mov_b64 exec, -1")
            A(f"{skip}:")

        def p1bar(A, stg, role):
            if stg in (2, 4, 7):
                self.jitter()
            if stg == 1:
                self.pad("b1")

            if stg == 7:
                self.pad("p1")
            if stg != 4:
                return
            srd(A, SRD_DBG, P_DBG, 256)
            if role:
                return
            skip = self.lab("skip")
            A(f"""
            s_cmp_lg_u32 s{S_WAVE}, 0
            s_cbranch_scc1 {skip}
            s_and_b32 s3, s2, 3
            s_lshl_b32 s3, s3, 6
            v_mov_b32 v13, 1
            s_mov_b64 exec, 1
            """)
            A.uncounted(f"buffer_atomic_add v13, off, {sr(SRD_DBG, 4)}, s3 sc1")
            A("s_mov_b64 exec, -1")
            A(f"{skip}:")


        def clear_misc(A):
            A(f"""
            s_lshl_b32 s3, s{S_WAVE}, 9
            s_add_u32 s3, s3, {L_MISC}
            v_lshl_add_u32 v8, v0, 3, s3
            v_mov_b64 v[6:7], 0
            ds_write_b64 v8, v[6:7]
            ds_write_b64 v8, v[6:7] offset:4096
            """)

        def take_ticket(A, tok):
            self.arrived_check(tok)
            skip = self.lab("skip")
            A(f"""
            s_cmp_lg_u32 s{S_WAVE}, 4
            s_cbranch_scc1 {skip}
            s_and_b32 s0, s2, 7
            s_lshl_b32 s0, s0, 7
            s_add_u32 s0, s0, {FLAG_T}
            v_mov_b32 v13, 1
            s_mov_b64 exec, 1
            """)
            A.uncounted(f"buffer_atomic_add v13, off, {sr(SRD_WS, 4)}, s0 sc0 sc1")
            A("s_mov_b64 exec, -1")
            A(f"{skip}:")

        def p2step(A, t, role):
            if t in (3, 10, 17, 26):
                self.jitter()
            if t == 8 and early_poll:
                clear_misc(A)
            if t == 14 and early_poll and not role:
                st["dbg"] = self.arrived_load()
            if t in (4, 8, 12, 16, 20, 24):
                self.stamp(A, f"p2_{t}")
            if t == self.opt.get('polls', 25) - 1 and early_poll and not role:
                self.arrived_check(st["dbg"])
            if early_poll and not role and t >= 4:
                early, consts = self.setup_units()
                units, lo, hi = (early, 4, 12) if t < 12 else (consts, 12, 28)
                for u in units[len(units) * (t - lo) // (hi - lo):len(units) * (t + 1 - lo) // (hi - lo)]:
                    for x in u:
                        A(x)
            tk = self.opt.get("tk", 16)
            if steal and early_poll and role and t == tk - 7:
                st["dbg"] = self.arrived_load()
            if steal and early_poll and role and t == tk:
                take_ticket(A, st["dbg"])
            if early_poll and role and t >= 16 and t % 2 == 0 and not steal:
                for x in self.wd_dma((t - 16) // 2):
                    A(x)
            if t == self.opt.get('polls', 25) and early_poll and not role:
                st["poll"] = self.masked(POLLMASK, POLL)

        def qkv_done(A, role):
            if not role:
                self.one_lane_store(1, S_F1, wave=0)
                self.stamp(A, "rt_pubq")

        def regular_end(A, role):
            self.jitter()
            if self.opt.get("pad_p2"):
                self.pad("p2")
                if not role:
                    st["poll"] = self.masked(POLLMASK, POLL)
            if not role:
                A.wait_tok(st["poll"])
            A(f"s_branch {self.name}_{'g' if role else 'a'}_e2")

        def special_end(A, role):
            self.jitter()
            A("s_waitcnt vmcnt(0) lgkmcnt(0)")
            self.stamp(A, "q_drain")
            A("s_barrier")
            qkv_done(A, role)
            self.pad("p2")
            clear_misc(A)
            A("s_waitcnt lgkmcnt(0)")
            A("s_barrier")
            if steal and role:
                take_ticket(A, self.arrived_load())
                A("s_waitcnt vmcnt(0)")
            A(f"s_branch {self.name}_{'g' if role else 'a'}_plain")

        h = dict(stamp=self.stamp, label=self.lab, entry=entry, prologue=self.warm, target=self.target, prefetch=self.data_prefetch, p1bar=p1bar, p2step=p2step,
                 idle=lambda A, role: (None if steal else self.precompute_g0(A)) if role else self.precompute(A, 0),
                 qkv_done=qkv_done, regular_end=regular_end, special_end=special_end)
        if self.opt.get("p1exit"):
            h["p1exit"] = self.finish
        if self.opt.get("p2exit"):
            h["p2exit"] = self.finish
        return h

    def data_prefetch(self, A, which):
        if not self.opt.get("pf", 3) >> which & 1:
            return
        if which == 0 and self.opt.get("pfx"):
            skip, lab = self.opt.get("pfskip", 3), self.lab("skip")
            srd_tail(A, p1.SRD_G, D * F * 2)
            srd_tail(A, p1.SRD_U, D * F * 2)
            A.wait(lg=0)
            A(f"""
            s_bitcmp1_b32 s2, 2
            s_cbranch_scc1 {lab}
            s_lshr_b32 s10, s2, 3
            s_lshl_b32 s10, s10, 2
            s_and_b32 s11, s2, 3
            s_add_u32 s10, s10, s11
            s_lshl_b32 s10, s10, 3
            s_add_u32 s10, s10, s{S_WAVE}
            s_lshl_b32 s11, s10, 7
            v_lshl_add_u32 v13, v0, 17, s11
            s_mov_b32 s10, {skip * 64 * 3584}
            s_mov_b32 s11, {skip * 64 * 2688}
            s_mov_b64 exec, 0x3fff
            """)
            for d, so in ((p1.SRD_G, "s10"), (p1.SRD_U, "s10"), (p1.SRD_P, "s11"), (p1.SRD_X, "0")):
                A.uncounted(f"buffer_load_dword v11, v13, {sr(d, 4)}, {so} offen")
            A("s_mov_b64 exec, -1")
            A(f"{lab}:")
            return
        A(f"""
        s_lshl_b32 s18, s2, 3
        s_add_u32 s18, s18, s{S_WAVE}
        s_lshl_b32 s19, s18, 7
        v_lshl_add_u32 v13, v0, 18, s19
        """)
        if which == 0:
            skip = self.opt.get("pfskip", 3)
            srd_tail(A, p1.SRD_G, D * F * 2)
            srd_tail(A, p1.SRD_U, D * F * 2)
            A(f"""
            s_mul_i32 s18, s18, 896
            v_lshl_add_u32 v14, v0, 7, s18
            s_mov_b32 s18, {skip * 64 * 3584}
            s_mov_b32 s19, {skip * 64 * 2688}
            s_mov_b64 exec, {(1 << (7 - skip)) - 1}
            buffer_load_dword v11, v14, {sr(p1.SRD_X, 4)}, 0 offen offset:{128 * skip}
            buffer_load_dword v11, v13, {sr(p1.SRD_P, 4)}, s19 offen
            s_mov_b64 exec, 0x7f
            buffer_load_dword v11, v13, {sr(p1.SRD_G, 4)}, s18 offen
            buffer_load_dword v11, v13, {sr(p1.SRD_U, 4)}, s18 offen
            s_mov_b64 exec, -1
            """)
        else:
            srd(A, 4, P_WD, F * D * 2)
            srd(A, 12, P_WO, D * D * 2)
            A(f"""
            s_mov_b64 exec, 0x7f
            buffer_load_dword v11, v13, s[4:7], 0 offen
            buffer_load_dword v11, v13, s[12:15], 0 offen
            s_mov_b64 exec, -1
            """)

    def code_prefetch(self, A):
        if not self.opt.get("cpf", 1):
            return
        here, skip = self.lab("pc"), self.lab("skip")
        A(f"""
        s_cmp_lg_u32 s{S_WAVE}, 7
        s_cbranch_scc1 {skip}
        s_getpc_b64 s[0:1]
        {here}:
        s_sub_u32 s0, s0, {here}-{self.name}
        s_subb_u32 s1, s1, 0
        s_lshr_b32 s{p1.S_T}, s2, 3
        s_lshl_b32 s{p1.S_T}, s{p1.S_T}, 11
        v_lshl_add_u32 v10, v0, 7, s{p1.S_T}
        v_min_u32 v10, {self.name}_exit-{self.name}, v10
        s_mov_b64 exec, 0xffff
        """)
        A.uncounted("global_load_dword v11, v10, s[0:1]")
        A("v_lshlrev_b32 v10, 7, v0")
        A.uncounted(f"buffer_load_dword v11, v10, {sr(p1.SRD_GW, 4)}, 0 offen")
        A("s_mov_b64 exec, -1")
        A(f"{skip}:")

    def precompute(self, A, role):
        T, T2 = 0, 1
        A(f"""
        s_and_b32 s{T}, s2, 7
        s_lshr_b32 s{T2}, s2, 3
        s_lshl_b32 s{S_HEAD}, s{T}, 1
        s_lshr_b32 s{S_QB}, s2, 7
        s_add_u32 s{S_HEAD}, s{S_HEAD}, s{S_QB}
        s_and_b32 s{S_QB}, s{T2}, 15
        s_and_b32 s{S_GW}, s{S_WAVE}, 3
        s_lshl_b32 s{T}, s{S_WAVE}, 8
        s_add_u32 s{T}, s{T}, {M_HW}
        v_lshl_add_u32 v{VHW}, v0, 2, s{T}
        """)
        steal = self.opt.get("steal", 0)
        if role == 0:
            if not steal:
                self.out_tile(A)
            self.precompute_a(A)
        else:
            if steal:
                self.precompute_g0(A)
            self.precompute_g(A)
            if not steal:
                self.precompute_g2(A)

    def resolve_ticket(self):
        A = self.A
        skip, got, loop, post = (self.lab(x) for x in ("skip", "got", "steal", "post"))
        A(f"""
        s_cmp_lg_u32 s{S_WAVE}, 4
        s_cbranch_scc1 {skip}
        v_readfirstlane_b32 s{S_NB}, v15
        s_and_b32 s{S_MB}, s2, 7
        s_cmp_lt_u32 s{S_NB}, 28
        s_cbranch_scc1 {got}
        v_lshlrev_b32 v4, 7, v0
        v_add_u32 v4, {FLAG_T}, v4
        s_mov_b32 s{S_SPIN}, 256
        s_mov_b64 exec, 0xff
        {loop}:
        """)
        A.auto = False
        A.uncounted(f"buffer_load_dword v5, v4, {sr(SRD_WS, 4)}, 0 offen sc1")
        A._emit_raw("s_waitcnt vmcnt(0)")
        A(f"""
        v_cmp_gt_u32 vcc, 28, v5
        s_mov_b32 s0, 0x10700
        s_ff1_i32_b32 s{S_MB}, vcc_lo
        s_cmp_lt_i32 s{S_MB}, 0
        s_cbranch_scc1 {post}
        s_sub_u32 s{S_SPIN}, s{S_SPIN}, 1
        s_cbranch_scc1 {post}
        s_lshl_b32 s1, s{S_MB}, 7
        s_add_u32 s1, s1, {FLAG_T}
        v_mov_b32 v5, 1
        s_mov_b64 exec, 1
        """)
        A.uncounted(f"buffer_atomic_add v5, off, {sr(SRD_WS, 4)}, s1 sc0 sc1")
        A._emit_raw("s_waitcnt vmcnt(0)")
        A(f"""
        v_readfirstlane_b32 s{S_NB}, v5
        s_mov_b64 exec, 0xff
        s_cmp_ge_u32 s{S_NB}, 28
        s_cbranch_scc1 {loop}
        {got}:
        s_lshl_b32 s{S_MB}, s{S_MB}, 2
        s_and_b32 s0, s{S_NB}, 3
        s_add_u32 s0, s0, s{S_MB}
        s_lshr_b32 s1, s{S_NB}, 2
        s_lshl_b32 s1, s1, 8
        s_add_u32 s0, s0, s1
        s_bitset1_b32 s0, 16
        {post}:
        s_mov_b64 exec, -1
        v_mov_b32 v4, {M_TK}
        v_mov_b32 v5, s0
        """)
        A.uncounted("ds_write_b32 v4, v5")
        A.auto = True
        A(f"{skip}:")

    def read_ticket(self, nap=0):
        A = self.A
        A(f"v_mov_b32 v4, {M_TK}")
        load = "ds_read_b32 v6, v4"
        self.check_words(load, "v_cmp_eq_u32 vcc, 0, v6", A(load), nap=nap)
        A(f"""
        v_readfirstlane_b32 s0, v6
        s_and_b32 s{S_MB}, s0, 31
        s_bfe_u32 s{S_NB}, s0, 0x30008
        """)

    def out_tile(self, A):
        sg = self.opt.get("sg")
        ne = self.opt.get("ne", 32)
        if ne:
            A(f"""
            s_lshr_b32 s0, s2, 3
            s_bitcmp1_b32 s2, 0
            s_cselect_b32 s1, {ne}, 0
            s_cselect_b32 s{S_NB}, {56 - ne}, {ne}
            s_cmp_ge_u32 s0, s{S_NB}
            s_cselect_b32 s{S_NB}, 7, 0
            s_add_u32 s0, s0, s1
            s_mul_i32 s{S_MB}, s0, 9363
            s_lshr_b32 s{S_MB}, s{S_MB}, 16
            s_mul_i32 s1, s{S_MB}, 7
            s_sub_u32 s0, s0, s1
            s_or_b32 s{S_NB}, s{S_NB}, s0
            s_min_u32 s{S_MB}, s{S_MB}, 7
            s_bfe_u32 s0, s2, 0x20001
            s_lshl_b32 s0, s0, 3
            s_add_u32 s{S_MB}, s{S_MB}, s0
            """)
            return
        if sg is None:
            A(f"""
            s_and_b32 s{S_MB}, s2, 7
            s_lshl_b32 s{S_MB}, s{S_MB}, 2
            s_bfe_u32 s{S_NB}, s2, 0x20003
            s_add_u32 s{S_MB}, s{S_MB}, s{S_NB}
            s_lshr_b32 s{S_NB}, s2, 5
            """)
            return
        A(f"""
        s_add_u32 s0, s2, {7 - sg}
        s_and_b32 s0, s0, 7
        s_lshl_b32 s0, s0, 5
        s_lshr_b32 s1, s2, 3
        s_add_u32 s0, s0, s1
        s_mul_i32 s{S_MB}, s0, 9363
        s_lshr_b32 s{S_MB}, s{S_MB}, 16
        s_mul_i32 s1, s{S_MB}, 7
        s_sub_u32 s{S_NB}, s0, s1
        s_cmp_ge_u32 s0, 224
        s_cselect_b32 s{S_NB}, 7, s{S_NB}
        s_min_u32 s{S_MB}, s{S_MB}, 31
        """)

    def precompute_a(self, A):
        T, T2 = 0, 1
        a0, a1 = S_Q, S_Q + 1
        A(f"""
        s_mul_i32 s{T}, s{S_HEAD}, 28
        s_add_u32 s{T2}, s{T}, 27
        s_lshr_b32 s{a0}, s{T}, 6
        s_lshr_b32 s{a1}, s{T2}, 6
        s_sub_u32 s{a1}, s{a1}, s{a0}
        v_and_b32 v5, 1, v0
        v_mul_u32_u24 v5, s{a1}, v5
        v_bfe_u32 v6, v0, 1, 1
        v_mad_u32_u24 v5, v6, 7, v5
        v_bfe_u32 v6, v0, 2, 2
        v_lshl_add_u32 v5, v6, 4, v5
        s_lshl_b32 s{a1}, s{S_GW}, 6
        s_add_u32 s{a1}, s{a1}, s{a0}
        v_add_u32 v5, s{a1}, v5
        s_lshl_b32 s{a1}, s{S_QB}, 4
        s_lshr_b32 s{T}, s{S_HEAD}, 3
        s_add_u32 s{T}, s{T}, s{a1}
        s_add_u32 s{T}, s{T}, 14
        v_writelane_b32 v5, s{T}, 16
        v_lshlrev_b32 v5, 7, v5
        v_add_u32 v{VPOLL}, {FLAG_S}, v5
        v_lshrrev_b32 v5, 5, v0
        v_mul_u32_u24 v5, {7168 - 512}, v5
        v_add_u32 v{VV0}, v5, v{VL16}
        s_mul_i32 s{S_OO}, s{S_HEAD}, 7
        s_lshr_b32 s{S_OO}, s{S_OO}, 1
        s_lshl_b32 s{S_OO}, s{S_OO}, 9
        s_mul_i32 s{T2}, s{S_GW}, {16 * 28672}
        s_add_u32 s{T}, s{T2}, s{S_OO}
        s_add_u32 s{T}, s{T}, {WS_K}
        """)
        srd(A, SRD_K, P_WS, 16 * 28672, add=f"s{T}")
        A(f"""
        s_mul_i32 s{T}, s{S_HEAD}, 448
        s_add_u32 s{T}, s{T}, s{T2}
        s_add_u32 s{T}, s{T}, {WS_V}
        """)
        srd(A, SRD_V, P_WS, 16 * 28672, add=f"s{T}")
        A(f"s_lshl_b32 s{T2}, s{S_QB}, 2")
        for j in range(4):
            A(f"""
            s_add_u32 s{T}, s{S_GW}, {j + 1}
            s_and_b32 s{T}, s{T}, 3
            s_add_u32 s{T}, s{T}, s{T2}
            s_mul_i32 s{T}, s{T}, 28672
            s_add_u32 s{S_Q + j}, s{T}, s{S_OO}
            """)
        A(f"""
        s_add_u32 s{T}, s{T2}, s{S_GW}
        s_lshl_b32 s{S_OFF}, s{T}, 7
        s_add_u32 s{S_AG}, s{S_OFF}, {WS_G}
        s_lshl_b32 s{T}, s{T}, 4
        s_add_u32 s{T}, s{T}, s{S_HEAD}
        s_lshl_b32 s{S_OO}, s{T}, 11
        s_add_u32 s{S_OO}, s{S_OO}, {WS_O}
        s_lshl_b32 s{S_OF}, s{T}, 7
        s_add_u32 s{S_OF}, s{S_OF}, {FLAG_O}
        s_mov_b32 s{S_ME}, 0x0fffffff
        s_mov_b32 s{S_ME + 1}, 0x0fffffff
        """)

    def precompute_g0(self, A):
        T = 0
        srd(A, SRD_WD, P_WD, F * D * 2)
        A(f"""
        v_lshrrev_b32 v5, 3, v0
        v_mul_u32_u24 v6, 896, v5
        v_lshrrev_b32 v5, 2, v0
        v_and_b32 v5, 4, v5
        v_and_b32 v7, 7, v0
        v_xor_b32 v5, v5, v7
        v_lshl_add_u32 v{VDW0}, v5, 4, v6
        v_add_u32 v{VDW1}, {7168 - 1024}, v{VDW0}
        s_and_b32 s{S_GW}, s{S_WAVE}, 3
        s_mul_i32 s{S_RB}, s{S_GW}, 14336
        s_mul_i32 s{S_RA}, s{S_GW}, 12288
        s_add_u32 s{S_RA}, s{S_RA}, {L_RING}
        """)
        if not self.opt.get("steal", 0):
            self.out_tile(A)
            self.wd_offset(A)

    def wd_offset(self, A):
        A(f"""
        s_lshl_b32 s0, s{S_NB}, 7
        s_mul_i32 s{S_WDO}, s{S_GW}, {448 * 896}
        s_add_u32 s{S_WDO}, s{S_WDO}, s0
        """)

    def precompute_g(self, A):
        T, T2 = 0, 1
        srd(A, SRD_WO, P_WO, D * D * 2)
        A(f"""
        s_and_b32 s{T2}, s{S_GW}, 1
        s_lshl_b32 s{T2}, s{T2}, 3
        v_and_b32 v5, 1, v0
        v_lshlrev_b32 v5, 2, v5
        v_bfe_u32 v6, v0, 1, 1
        v_add_u32 v5, v5, v6
        v_bfe_u32 v6, v0, 4, 1
        v_lshl_add_u32 v5, v6, 1, v5
        v_and_b32 v6, 8, v0
        v_xor_b32 v5, v5, v6
        v_xor_b32 v5, s{T2}, v5
        v_lshrrev_b32 v6, 5, v0
        v_bfe_u32 v7, v0, 2, 2
        v_lshl_add_u32 v6, v6, 2, v7
        v_lshlrev_b32 v6, 7, v6
        v_lshl_add_u32 v{VTR}, v5, 3, v6
        """)

    def precompute_g2(self, A):
        T, T2 = 0, 1
        A(f"""
        s_lshl_b32 s{T}, s{S_NB}, 7
        s_mul_i32 s{S_WOO}, s{S_GW}, {112 * 896}
        s_add_u32 s{S_WOO}, s{S_WOO}, s{T}
        s_and_b32 s{T2}, s{S_GW}, 1
        s_lshl_b32 s{S_OUTO}, s{T2}, 6
        s_add_u32 s{S_OUTO}, s{S_OUTO}, s{T}
        s_lshr_b32 s{T}, s{S_GW}, 1
        s_lshl_b32 s{T2}, s{S_MB}, 1
        s_add_u32 s{T}, s{T}, s{T2}
        s_lshl_b32 s{S_GOFF}, s{T}, 7
        s_add_u32 s{S_GOFF}, s{S_GOFF}, {WS_G}
        s_mul_i32 s{T}, s{T}, {32 * 896}
        s_add_u32 s{S_OUTO}, s{S_OUTO}, s{T}
        s_mul_i32 s{S_HOFF}, s{S_MB}, {2 * 114688}
        s_mul_i32 s{T}, s{S_GW}, {28 * 1024}
        s_add_u32 s{S_HOFF}, s{S_HOFF}, s{T}
        s_add_u32 s{S_HOFF}, s{S_HOFF}, {WS_H}
        s_lshr_b32 s{T}, s{S_MB}, 1
        s_lshl_b32 s{T}, s{T}, 4
        s_mul_i32 s{T2}, s{S_GW}, 7
        s_lshr_b32 s{T2}, s{T2}, 1
        s_add_u32 s{T}, s{T}, s{T2}
        s_lshl_b32 s{T}, s{T}, 7
        s_add_u32 s{T}, s{T}, {FLAG_S}
        v_and_b32 v5, 3, v0
        v_lshl_add_u32 v{VPOLL}, v5, 7, s{T}
        """)

    def k_load(self, b):
        return [f"buffer_load_dwordx4 {vr(KB + 8 * b, 4)}, v{VK[b]}, {sr(SRD_K, 4)}, s{S_OFF} offen{LD}",
                f"buffer_load_dwordx4 {vr(KB + 8 * b + 4, 4)}, v{VK[b]}, {sr(SRD_K, 4)}, s{S_OFF} offen offset:1024{LD}"]

    def v_load(self, b):
        return [f"s_mov_b64 exec, {sr(S_ME, 2)}",
                f"buffer_load_dwordx4 {vr(VB + 8 * b, 4)}, v{VV[2 * b]}, {sr(SRD_V, 4)}, s{S_OFF} offen{LD}",
                f"buffer_load_dwordx4 {vr(VB + 8 * b + 4, 4)}, v{VV[2 * b + 1]}, {sr(SRD_V, 4)}, s{S_OFF} offen{LD}",
                "s_mov_b64 exec, -1"]

    @staticmethod
    def qk(i, half):
        b, j = (i >> 2) & 3, i & 3
        return mfma(SB + 16 * (i & 1), KB + 8 * b + 4 * half, QF + 8 * j + 4 * half, "0" if half == 0 else None)

    @staticmethod
    def pv(i, half, first=False):
        b, j = (i >> 2) & 3, i & 3
        return mfma(OA + 16 * j, VB + 8 * b + 4 * half, PB + 4 * half, "0" if first else None)

    @staticmethod
    def grp(i, g):
        r = SB + 16 * (i & 1) + 4 * g
        return [f"v_exp_f32 v{r + k}, v{r + k}" for k in range(4)] + \
               [f"v_cvt_pk_bf16_f32 v{PB + 2 * g + k}, v{r + 2 * k}, v{r + 2 * k + 1}" for k in range(2)]

    def wait_pair(self, base):
        A = self.A
        want = {f"v{base + 7}"}
        for e in A.vm:
            if e[1] & want:
                A.wait_tok(e[0])
                return

    def setup_units(self):
        R = Rec()
        for b in range(1, 4):
            R(f"v_add_u32 v{VK[b]}, {b * 28672}, v{VL16}")
        for n in range(1, 8):
            R(f"v_add_u32 v{VV[n]}, {n * 14336}, v{VV0}")
        for j in range(4):
            R(f"""
            s_add_u32 s0, s{S_GW}, {j + 1}
            s_and_b32 s0, s0, 3
            s_mul_i32 s0, s0, 12288
            s_add_u32 s0, s0, {L_OP + (j % 3) * 4096}
            v_add_u32 v{VXA + j}, s0, v{VL16}
            """)
        self.sync_addresses(M_AS, A=R, T=0)
        R(f"""
        s_and_b32 s0, s{S_HEAD}, 1
        v_lshrrev_b32 v{VMLO}, 5, v0
        v_or_b32 v{VMHI}, s0, v{VMLO}
        v_xor_b32 v{VMHI}, s0, v{VMHI}
        v_add_u32 v{VMHI}, -1, v{VMHI}
        v_xor_b32 v{VMLO}, 1, v{VMLO}
        v_and_b32 v{VMLO}, s0, v{VMLO}
        v_add_u32 v{VMLO}, -1, v{VMLO}
        v_and_b32 v{VGAD}, 31, v0
        v_lshlrev_b32 v{VGAD}, 2, v{VGAD}
        """)
        R(f"""
        v_and_b32 v{VONE}, 31, v0
        v_cmp_eq_u32 s[0:1], 28, v{VONE}
        v_mov_b32 v{VONE}, 0x3f803f80
        v_cndmask_b32 v{VONE}, 0, v{VONE}, s[0:1]
        """)
        return R.units, [[f"v_mov_b32 v{VB + r}, v{VONE}"] for r in range(32)]

    def first_loads(self):
        q = lambda j: [[f"buffer_load_dwordx4 {vr(QF + 8 * j + 4 * t, 4)}, v{VL16}, {sr(SRD_WS, 4)}, s{S_Q + j} offen"
                        f"{' offset:1024' * t}{LD}"] for t in range(2)]
        k = lambda b: [[x] for x in self.k_load(b)]
        return q(0) + k(0) + q(1) + [self.v_load(0)] + q(2) + q(3) + k(1) + \
            [[f"buffer_load_dword v{VGA}, v{VGAD}, {sr(SRD_WS, 4)}, s{S_AG} offen{LD}"]]

    def mask_q(self, j):
        self.wait_pair(QF + 8 * j)
        for r, m in ((0, VMLO), (1, VMLO), (6, VMHI), (7, VMHI)):
            self.A(f"v_and_b32 v{QF + 8 * j + r}, v{QF + 8 * j + r}, v{m}")

    def attn_main(self):
        A = self.A
        todo = [x for kt in range(1, 16) for x in (("v", kt, 4 * kt - 12), ("k", kt + 1, 4 * kt - 10)) if x[1] < 16]
        base = 0

        def loads(i, kind):
            nonlocal base
            if not todo or todo[0][2] > i or (todo[0][2] == i and todo[0][0] != kind) or issued[0] == i:
                return []
            kd, kt, _ = todo.pop(0)
            issued[0] = i
            o = []
            if kt >> 2 != base:
                base = kt >> 2
                o.append(f"s_add_u32 s{S_OFF}, s{S_OFF}, {4 * 28672}")
            return o + (self.v_load(kt & 3) if kd == "v" else self.k_load(kt & 3))

        issued = [-1]
        roll = self.opt.get("roll", 1)
        for i in range(64):
            kt, b, j = i >> 2, (i >> 2) & 3, i & 3
            if roll and i == 16:
                lab = self.lab("aloop")
                A(f"s_mov_b32 s{S_T}, 1")
                while A.vm and not A.vm[0][1]:
                    A.vm.pop(0)
                A.lg = []
                st0 = A.state()
                A(f"{lab}:")
            if roll and 32 <= i < 48:
                loads(i, "v")
                loads(i, "k")
                continue
            seq = []
            if i < 3:
                self.mask_q(i + 1)
            if i < 63:
                if j == 3:
                    self.wait_pair(KB + 8 * ((b + 1) & 3))
                seq.append(self.qk(i + 1, 0))
            seq += self.grp(i, 0)
            if i:
                seq.append(self.pv(i - 1, 1))
            seq += loads(i, "v")
            seq += self.grp(i, 1)
            if i < 63:
                seq.append(self.qk(i + 1, 1))
            seq += loads(i, "k")
            seq += self.grp(i, 2)
            for x in seq:
                A(x)
            if j == 0:
                self.wait_pair(VB + 8 * b)
            A(self.pv(i, 0, first=i < 4))
            if i == 4:
                A(f"ds_write_b32 v{VHW}, v{VHW}")
            if i in (0, 4, 8, 16):
                self.stamp(A, f"a_t{i}")
            g3 = self.grp(i, 3)
            if roll and i == 31:
                g3 = [f"s_sub_u32 s{S_T}, s{S_T}, 1"] + g3 + [f"s_cbranch_scc0 {lab}"]
            if i > 60:
                w = [f"ds_write_b128 v{VXA + j - 1}, {vr(OA + 16 * (j - 1) + 4 * q, 4)} offset:{1024 * q}" for q in range(4)]
                g3 = [g3[0], w[0], g3[1], w[1], g3[2], w[2], g3[3], w[3]] + g3[4:]
            for x in g3:
                A(x)
            if roll and i == 31:
                assert A.state() == st0, (A.state(), st0)
            if i in (2, 12, 60, 62):
                self.jitter()
            if i == 63:
                self.pad("loop")
                A(f"ds_write_b32 v{VSW}, v{VSW}")
        assert not todo
        load = f"ds_read_b32 v6, v{VSR}"
        tok = A(load)
        A(self.pv(63, 1))
        self.stamp(A, "a_loop")
        self.stamp(A, "rt_loop")
        self.check_words(load, "v_cmp_eq_u32 vcc, 0, v6", tok)
        self.stamp(A, "a_sync")
        self.jitter()

    def lds_sync(self, value_reg, cmp_, VSW=VSW, VSR=VSR):
        A = self.A
        A(f"ds_write_b32 v{VSW}, v{value_reg}")
        load = f"ds_read_b32 v6, v{VSR}"
        tok = A(load)
        self.check_words(load, cmp_, tok)

    def sync_addresses(self, base, VSW=VSW, VSR=VSR, A=None, T=S_T):
        (A or self.A)(f"""
        s_lshl_b32 s{T}, s{S_GW}, 8
        s_add_u32 s{T}, s{T}, {base}
        v_lshl_add_u32 v{VSW}, v0, 2, s{T}
        v_and_b32 v{VSR}, 3, v0
        v_lshlrev_b32 v{VSR}, 8, v{VSR}
        v_add_u32 v{VSR}, {base}, v{VSR}
        """)

    def attn_finish(self):
        A = self.A
        R, O = VB, OA + 48
        order = [3, 0, 1, 2]
        for q in order:
            for p in range(3):
                A(f"ds_read_b128 {vr(R + 16 * p + 4 * q, 4)}, v{VXA + 3} offset:{4096 * p + 1024 * q}")
        for n, q in enumerate(order):
            for k in range(4):
                A(f"v_add_f32 v{R + 4 * q + k}, v{R + 4 * q + k}, v{R + 16 + 4 * q + k}")
            for k in range(4):
                A(f"v_add_f32 v{O + 4 * q + k}, v{O + 4 * q + k}, v{R + 32 + 4 * q + k}")
            for k in range(4):
                A(f"v_add_f32 v{O + 4 * q + k}, v{O + 4 * q + k}, v{R + 4 * q + k}")
            if n == 0:
                A(f"v_mov_b32 v8, v{O + 12}")
                A(f"v_mov_b32 v9, v{O + 12}")
            if n == 1:
                A("v_permlane32_swap_b32 v8, v9")
                A("v_rcp_f32 v12, v9")
            if n == 2:
                A(f"v_med3_f32 v8, v9, s{S_LO}, v{VHI}")
                A(f"v_mul_f32 v12, v12, v{VGA}")
                A("v_cmp_neq_f32 vcc, v8, v9")
        A(f"s_cbranch_vccnz {self.name}_slow")
        A(f"{self.name}_a_fin:")
        for hf in range(2):
            for r in range(8 * hf, 8 * hf + 8):
                A(f"v_mul_f32 v{O + r}, v{O + r}, v12")
            for jj in range(4 * hf, 4 * hf + 4):
                A(f"v_cvt_pk_bf16_f32 v{PB + jj}, v{O + 2 * jj}, v{O + 2 * jj + 1}")
            if hf == 0:
                A(f"buffer_store_dwordx4 {vr(PB, 4)}, v{VL16}, {sr(SRD_WS, 4)}, s{S_OO} offen{ST}")
        A(f"""
        s_mov_b32 exec_lo, 0
        v_mov_b64 {vr(PB + 6, 2)}, 0
        s_mov_b32 exec_lo, -1
        buffer_store_dwordx4 {vr(PB + 4, 4)}, v{VL16}, {sr(SRD_WS, 4)}, s{S_OO} offen offset:1024{ST}
        """)
        self.stamp(A, "a_st")
        self.jitter()
        if self.opt.get("steal", 0):
            self.read_ticket()
        self.tail_setup(0)
        A("s_waitcnt vmcnt(0)")
        self.one_lane_store(1, S_OF, tmp=8)

    def slow_path(self):
        A = self.A
        O, Q = OA + 48, QF + 24
        A.clear()
        A(f"{self.name}_slow:")
        A("s_waitcnt vmcnt(0) lgkmcnt(0)")
        A(f"s_mul_i32 s{S_T}, s{S_GW}, {16 * 28672}")
        for d in (SRD_K, SRD_V):
            A(f"s_sub_u32 s{d}, s{d}, s{S_T}")
            A(f"s_subb_u32 s{d + 1}, s{d + 1}, 0")
            A(f"s_mov_b32 s{d + 2}, {64 * 28672}")
        for r in range(8):
            A(f"v_mov_b32 v{VB + r}, v{VONE}")
        A(f"v_mov_b32 v{VM}, 0xff800000")
        for sub in (0, 1):
            lab = self.lab("slowloop")
            A(f"s_mov_b32 s{S_OFF}, 0")
            if sub:
                for r in range(16):
                    A(f"v_mov_b32 v{O + r}, 0")
            A(f"{lab}:")
            for x in self.k_load(0) + (self.v_load(0) if sub else []):
                A(x)
            A(mfma(SB, KB, Q, "0"))
            A(mfma(SB, KB + 4, Q + 4))
            if not sub:
                for r in range(0, 16, 2):
                    A(f"v_max3_f32 v{VM}, v{SB + r}, v{SB + r + 1}, v{VM}")
            else:
                for r in range(16):
                    A(f"v_sub_f32 v{SB + r}, v{SB + r}, v{VM}")
                for g in range(4):
                    for x in self.grp(0, g):
                        A(x)
                A(mfma(O, VB, PB))
                A(mfma(O, VB + 4, PB + 4))
            A(f"s_add_u32 s{S_OFF}, s{S_OFF}, 28672")
            A(f"s_cmp_lt_u32 s{S_OFF}, {64 * 28672}")
            A(f"s_cbranch_scc1 {lab}")
            if not sub:
                A(f"v_mov_b32 v9, v{VM}")
                A(f"v_permlane32_swap_b32 v9, v{VM}")
                A(f"v_max_f32 v{VM}, v9, v{VM}")
        A(f"""
        v_mov_b32 v8, v{O + 12}
        v_mov_b32 v9, v{O + 12}
        v_permlane32_swap_b32 v8, v9
        v_rcp_f32 v12, v9
        v_mul_f32 v12, v12, v{VGA}
        s_branch {self.name}_a_fin
        """)

    @staticmethod
    def slot(ks):
        k = ks % 13
        return ("A", k) if k < 6 else ("B", k - 6)

    def wd_dma(self, ks):
        reg, sl = self.slot(ks)
        return [f"s_add_u32 m0, s{S_RA if reg == 'A' else S_RB}, {sl * 2048}",
                f"s_add_u32 s0, s{S_WDO}, {ks * 16 * 896}",
                f"buffer_load_dwordx4 v{VDW0}, {sr(SRD_WD, 4)}, s0 offen lds",
                f"buffer_load_dwordx4 v{VDW1}, {sr(SRD_WD, 4)}, s0 offen offset:1024 lds"]

    def wo_dma(self, n):
        return [f"s_add_u32 m0, s{S_RB}, {n * 2048}",
                f"s_add_u32 s{S_T}, s{S_WOO}, {n * 16 * 896}",
                f"buffer_load_dwordx4 v{VDW0}, {sr(SRD_WO, 4)}, s{S_T} offen lds",
                f"buffer_load_dwordx4 v{VDW1}, {sr(SRD_WO, 4)}, s{S_T} offen offset:1024 lds"]

    def h_load(self, ks):
        b = HB + 8 * (ks % 10)
        return [f"s_add_u32 s{S_T}, s{S_HOFF}, {ks * 1024}",
                f"buffer_load_dwordx4 {vr(b, 4)}, v{VH0}, {sr(SRD_WS, 4)}, s{S_T} offen{LD}",
                f"buffer_load_dwordx4 {vr(b + 4, 4)}, v{VH1}, {sr(SRD_WS, 4)}, s{S_T} offen{LD}"]

    def gemm_start(self, e2):
        A = self.A
        tok = None
        steal = self.opt.get("steal", 0)
        for x in (e2[0] + e2[1] if e2 else sum([self.wd_dma(ks) for ks in range(0 if steal else 6)], [])):
            tok = A(x)
        A("s_setprio 2")
        for ks in range(6, 6 + self.opt.get("gearly", 0)):
            for x in self.wd_dma(ks):
                A(x)
        self.precompute(A, 1)
        if not steal:
            self.arrived_load()
        A.wait_tok(tok)

    def gemm_main(self):
        A = self.A
        toks = {}
        A.clear()
        steal = self.opt.get("steal", 0)
        first = 0 if steal else 6 + self.opt.get("gearly", 0)
        for ks in range(6, first):
            for _ in range(2):
                A.nid += 1
                A.vm.append([A.nid, set()])
                toks[ks] = A.nid
        if not steal:
            A.nid += 1
            A.vm.append([A.nid, {"v7"}])
            dbgtok = A.nid

        def issue(lst, key=None):
            for x in lst:
                t = A(x)
                if t and key is not None:
                    toks[key] = t

        def trr(ks):
            reg, sl = self.slot(ks)
            a = VAWA if reg == "A" else VAWB
            b = WBUF + 8 * (ks % 10)
            o = sl * 2048
            A.wait_tok(toks.get(ks))
            issue([f"ds_read_b64_tr_b16 {vr(b, 2)}, v{a} offset:{o}",
                   f"ds_read_b64_tr_b16 {vr(b + 2, 2)}, v{a} offset:{o + 1024}",
                   f"ds_read_b64_tr_b16 {vr(b + 4, 2)}, v{a + 1} offset:{o}",
                   f"ds_read_b64_tr_b16 {vr(b + 6, 2)}, v{a + 1} offset:{o + 1024}"], ("r", ks))

        def dma(ks):
            if ks >= 13:
                A.wait_tok(toks[("r", ks - 13)])
            issue(self.wd_dma(ks), ks)

        def mm(ks):
            for jj in range(4):
                A(mfma(ACC + 16 * jj, WBUF + 8 * (ks % 10) + 4 * (jj & 1), HB + 8 * (ks % 10) + 4 * (jj >> 1),
                       "0" if ks == 0 else None))

        A(f"""
        ds_write_b32 v{VHW}, v{VHW}
        v_mov_b32 v15, v13
        v_xor_b32 v5, 64, v{VTR}
        v_add_u32 v{VAWA}, s{S_RA}, v{VTR}
        v_add_u32 v{VAWA + 1}, s{S_RA}, v5
        v_and_b32 v13, 7, v0
        v_lshlrev_b32 v13, 8, v13
        v_add_u32 v13, {M_HW}, v13
        """)
        for ks in range(0 if steal else 6):
            trr(ks)
        A(f"""
        v_mov_b32 v{GL16}, v{VL16}
        v_add_u32 v{VAWB}, s{S_RB}, v{VTR}
        v_add_u32 v{VAWB + 1}, s{S_RB}, v5
        s_lshr_b32 s{S_T}, s{S_GW}, 1
        s_mul_i32 s{S_T}, s{S_T}, 114688
        v_add_u32 v{VH0}, s{S_T}, v{GL16}
        s_sub_u32 s{S_T}, 114688, s{S_T}
        v_add_u32 v{VH1}, s{S_T}, v{GL16}
        """)
        self.sync_addresses(M_GS, GSW, GSR)
        load = "ds_read_b32 v6, v13"
        tk = A(load)
        self.check_words(load, "v_cmp_eq_u32 vcc, 0, v6", tk, nap=1)
        self.one_lane_store(2, S_F1, wave=4)
        self.stamp(A, "g_hw")
        self.jitter()
        if steal:
            self.resolve_ticket()
            self.read_ticket(nap=1)
        A(f"s_cmp_ge_u32 s{S_NB}, 7")
        A(f"s_cbranch_scc1 {self.name}_exit")
        if steal:
            self.wd_offset(A)
            for ks in range(self.opt.get("gdeep", 3)):
                dma(ks)
            first = self.opt.get("gdeep", 3)
            self.precompute_g2(A)
        if not steal:
            self.arrived_check(dbgtok)
        A(f"""
        v_and_b32 v5, 31, v0
        v_lshlrev_b32 v5, 2, v5
        buffer_load_dword v{VG}, v5, {sr(SRD_WS, 4)}, s{S_GOFF} offen{LD}
        """)
        A(f"v_add_u32 v{VPW}, s{S_RA}, v{GL16}")
        A(f"v_subrev_u32 v{VGATE}, {M_GS - M_AS}, v{GSR}")
        for jj in range(1, 4):
            A(f"""
            s_xor_b32 s{S_T}, s{S_GW}, {jj}
            s_mul_i32 s{S_T}, s{S_T}, 12288
            s_add_u32 s{S_T}, s{S_T}, {L_RING + 4096 * (jj - 1)}
            v_add_u32 v{VPR + jj - 1}, s{S_T}, v{GL16}
            """)
        self.tail_setup(1)
        deep = self.opt.get("gdeep", 3)
        for ks in range(first, 23):
            if (0 if steal else 6) <= ks - 7 < 10:
                trr(ks - 7)
            A.wait_tok(toks.get(ks - deep))
            dma(ks)
        self.stamp(A, "g_dma")
        self.jitter()
        tok = self.masked("15", POLL)
        self.check_words(POLL, "v_cmp_ne_u32 vcc, 2, v6", tok, mask="15", nap=2)
        A(f"v_sub_f32 v{VG}, 1.0, v{VG}")
        self.stamp(A, "g_flags")
        self.stamp(A, "rt_gflags")
        A("s_setprio 0")
        nh = self.opt.get("nh", 2)
        for ks in range(nh):
            issue(self.h_load(ks))
        ramp = 28 - NDEF - (NDEF - nh)
        for ks in range(28 - NDEF):
            mm(ks)
            if ks in (3, 11):
                self.jitter()
            for _ in range(2 if ks >= ramp else 1):
                if nh < 28:
                    assert nh - 10 <= ks
                    issue(self.h_load(nh))
                    nh += 1
            if ks + 10 < 28:
                trr(ks + 10)
            if 1 <= ks <= 5:
                dma(ks + 22)
        assert nh == 28
        A.wait_tok(toks[("r", 25)])
        for n in range(7):
            issue(self.wo_dma(n))
        A("s_waitcnt lgkmcnt(0)")
        self.stamp(A, "g_pre")
        self.jitter()
        self.stamp(A, "rt_gpre")
        load = f"ds_read_b32 v6, v{VGATE}"
        tk = A(load)
        self.check_words(load, "v_cmp_eq_u32 vcc, 0, v6", tk, nap=2)
        wr = []
        for jj in (1, 2, 3, 0):
            for n, ks in enumerate(range(28 - NDEF, 28)):
                A(mfma(ACC + 16 * jj, WBUF + 8 * (ks % 10) + 4 * (jj & 1), HB + 8 * (ks % 10) + 4 * (jj >> 1)))
                if n >= min(2, NDEF - 5) and wr:
                    A(wr.pop(0))
            assert not wr
            wr = [f"ds_write_b128 v{VPW}, {vr(ACC + 16 * jj + 4 * q, 4)} offset:{4096 * (jj - 1) + 1024 * q}" for q in range(4)]
            if jj == 3:
                wr.append(f"ds_write_b32 v{GSW}, v{GSW}")
        self.stamp(A, "g_loop")
        self.jitter()
        self.stamp(A, "rt_gloop")
        load = f"ds_read_b32 v6, v{GSR}"
        self.check_words(load, "v_cmp_eq_u32 vcc, 0, v6", A(load))
        for q in range(4):
            for jj in range(1, 4):
                A(f"ds_read_b128 {vr(ACC + 16 * jj + 4 * q, 4)}, v{VPR + jj - 1} offset:{1024 * q}")
        for q in range(4):
            r0 = (4 * q, 4 * q + 2)
            for r in r0:
                A(f"v_pk_add_f32 {vr(ACC + 16 + r, 2)}, {vr(ACC + 16 + r, 2)}, {vr(ACC + 32 + r, 2)}")
            for r in r0:
                A(f"v_pk_add_f32 {vr(ACC + r, 2)}, {vr(ACC + r, 2)}, {vr(ACC + 48 + r, 2)}")
            for r in r0:
                A(f"v_pk_add_f32 {vr(ACC + r, 2)}, {vr(ACC + r, 2)}, {vr(ACC + 16 + r, 2)}")
            for r in r0:
                A(f"v_pk_mul_f32 {vr(ACC + r, 2)}, {vr(ACC + r, 2)}, {vr(VG, 2)} op_sel_hi:[1,0]")

    def tail_setup(self, role):
        A = self.A
        A(f"""
        s_lshl_b32 s{S_T}, s{S_MB}, 5
        s_add_u32 s{S_T}, s{S_T}, s{S_GW}
        s_lshl_b32 s{S_MO}, s{S_T}, 7
        s_add_u32 s{S_MO}, s{S_MO}, {FLAG_O + role * 2048}
        v_lshlrev_b32 v{VTP if role else 5}, 9, v0
        s_lshl_b32 s{10 if role else S_T3}, s{S_T}, 11
        s_add_u32 s{10 if role else S_T3}, s{10 if role else S_T3}, {WS_O + role * 32768}
        s_lshl_b32 s{11 if role else S_T2}, s{S_GW}, 11
        """)
        if role == 1:
            srd(A, SRD_OUT, P_OUT, S * D * 2)
            A(f"""
            s_lshr_b32 s{S_T}, s{S_GW}, 1
            s_lshl_b32 s{S_OFF}, s{S_T}, 15
            s_add_u32 s{S_OFF}, s{S_OFF}, {L_O}
            v_add_u32 v14, s{S_OFF}, v{GL16}
            s_mul_i32 s{S_T}, s{S_GW}, 2560
            s_add_u32 s{S_T}, s{S_T}, {L_TR}
            v_and_b32 v7, 31, v0
            v_mul_u32_u24 v7, 80, v7
            v_lshrrev_b32 v8, 5, v0
            v_lshl_add_u32 v7, v8, 5, v7
            v_add_u32 v7, s{S_T}, v7
            v_lshrrev_b32 v4, 2, v0
            v_and_b32 v15, 3, v0
            v_lshlrev_b32 v15, 4, v15
            v_mul_u32_u24 v8, 80, v4
            v_add_u32 v8, v8, v15
            v_add_u32 v8, s{S_T}, v8
            v_mul_u32_u24 v4, 896, v4
            v_add_u32 v{VOUT}, v4, v15
            s_add_u32 s{S_OFF}, s{S_OUTO}, {16 * 896}
            """)

    def tail(self, role):
        A = self.A
        L16 = GL16 if role else VL16
        load = f"buffer_load_dword v6, v{VTP if role else 5}, {sr(SRD_WS, 4)}, s{S_MO} offen sc1"
        if role == 1:
            A("s_waitcnt vmcnt(0)")
        tok = self.masked("15", load)
        A.wait(lg=0)
        self.stamp(A, "t_bar0")
        A("s_barrier")
        self.stamp(A, "t_bar1")
        self.jitter()
        self.check_words(load, "v_cmp_ne_u32 vcc, 1, v6", tok, mask="15", alt=4 if self.opt.get("pp", 0) else None)
        self.stamp(A, "t_flag")
        self.jitter()
        self.stamp(A, "rt_tflag")
        toks = []
        for step in range(4):
            A(f"s_add_u32 m0, s{11 if role else S_T2}, {L_O + role * 32768 + step * 8192}")
            A(f"s_add_u32 s{S_T}, s{10 if role else S_T3}, {step * 8192}")
            for q in range(2):
                t = A(f"buffer_load_dwordx4 v{L16}, {sr(SRD_WS, 4)}, s{S_T} offen offset:{1024 * q} sc1 lds")
            toks.append(t)
        A.wait_tok(toks[0])
        A("s_barrier")
        self.stamp(A, "t_odata")
        self.jitter()
        self.stamp(A, "rt_odata")
        if role == 0:
            for step in range(1, 4):
                A.wait_tok(toks[step])
                A("s_barrier")
            return

        def rd(k):
            o = (28 * (k >> 1) + 16 * (k & 1)) * 128
            b = k % 4
            return [f"ds_read_b128 {vr(TB_ + 4 * b, 4)}, v14 offset:{k * 1024}",
                    f"ds_read_b64_tr_b16 {vr(TA_ + 4 * b, 2)}, v{VTR} offset:{o}",
                    f"ds_read_b64_tr_b16 {vr(TA_ + 4 * b + 2, 2)}, v{VTR} offset:{o + 1024}"]

        for k in range(3):
            for x in rd(k):
                A(x)
        for k in range(32):
            A(mfma(ACC, TA_ + 4 * (k % 4), TB_ + 4 * (k % 4)))
            if k + 3 < 32:
                if (k + 3) % 8 == 0:
                    A.wait_tok(toks[(k + 3) // 8])
                    A("s_barrier")
                for x in rd(k + 3):
                    A(x)
        self.stamp(A, "t_mm")
        self.jitter()
        for hf in range(2):
            for jj in range(4):
                A(f"v_cvt_pk_bf16_f32 v{TA_ + 4 * hf + jj}, v{ACC + 8 * hf + 2 * jj}, v{ACC + 8 * hf + 2 * jj + 1}")
            A(f"ds_write_b128 v7, {vr(TA_ + 4 * hf, 4)} offset:{16 * hf}")
        for q in range(2):
            A(f"ds_read_b128 {vr(TB_ + 4 * q, 4)}, v8 offset:{16 * 80 * q}")
        for q in range(2):
            A(f"buffer_store_dwordx4 {vr(TB_ + 4 * q, 4)}, v{VOUT}, {sr(SRD_OUT, 4)}, s{S_OFF if q else S_OUTO} offen{('', ' sc1', ' nt', ' sc0 sc1')[self.opt.get('ost', 0)]}")

    def finish(self):
        A = self.A
        if self.opt.get("pad_end"):
            A("s_waitcnt vmcnt(0)")
            skip = self.lab("skip")
            if "padwg" in self.opt:
                A(f"s_cmp_lg_u32 s2, {self.opt['padwg']}")
                A(f"s_cbranch_scc1 {skip}")
            self.pad("end")
            A(f"{skip}:")
        if self.stamp.enabled:
            A("s_waitcnt vmcnt(0)")
            self.stamp(A, "t_end")
            self.stamp(A, "rt_end")
            self.stamp.flush(A)
        A("s_endpgm")

    def build(self):
        A, name = self.A, self.name
        A(f".globl {name}\n.p2align 8\n.type {name},@function\n{name}:")
        A("s_cmp_ge_u32 s2, 256")
        A(f"s_cbranch_scc1 {name}_exit")
        if any(k.startswith("pad_") for k in self.opt):
            A("s_memrealtime s[96:97]")
        self.stamp(A, "rt0")
        self.stamp(A, "t0")
        p1.SX = self.opt.get('sx')
        p1.decode(A)
        A(f"s_cmp_ge_u32 s{p1.S_CG}, 14")
        A(f"s_cbranch_scc1 {name}_q")
        st0 = A.save()
        p1.programs(A, "KV", ST + self.opt.get("ntkv", 0) * " nt", self.hooks(True), self.opt)
        A.restore(st0)
        A(f"{name}_q:")
        p1.programs(A, "Q", ST + self.opt.get("ntq", 0) * " nt", self.hooks(False), self.opt)
        if self.opt.get("p1exit") or self.opt.get("p2exit"):
            for f in self.late:
                A.clear()
                f(A)
            A(f"{name}_exit:")
            A("s_endpgm")
            pads = A.fix_hazards()
            return A.text(), kernel_desc(name), pads
        e2 = p1.final_epilogue(ST + self.opt.get("ntkv", 0) * " nt")
        A.clear()
        self.target(A, f"{name}_a_plain")
        tok = self.arrived_load()
        for x in sum(sum(self.setup_units(), []), []):
            A(x)
        self.arrived_check(tok)
        A(f"s_branch {name}_a_poll")
        self.target(A, f"{name}_a_late")
        if self.opt.get("mid", 1):
            tok = self.masked(POLLMASK, POLL)
            for x in e2[0]:
                A(x)
            A.wait_tok(tok)
            self.masked(POLLMASK, "v_cmp_eq_u32 vcc, 0, v6")
            A(f"s_cbranch_vccz {name}_a_mid")
            for x in e2[1]:
                A(x)
        else:
            for x in e2[0] + e2[1]:
                A(x)
        self.target(A, f"{name}_a_poll", inline=True)
        tok = self.masked(POLLMASK, POLL)
        self.check_words(POLL, "v_cmp_eq_u32 vcc, 0, v6", tok, mask=POLLMASK)
        self.stamp(A, "a_flags")
        self.stamp(A, "rt_aflags")
        A(f"s_mov_b32 s{S_OFF}, 0")
        for x in sum(self.first_loads(), []):
            A(x)
        A(f"ds_write_b32 v{VHW}, v{VHW}")
        A(f"s_branch {name}_a_go")
        plain = A.save()
        if self.opt.get("mid", 1):
            A.clear()
            A(f"{name}_a_mid:")
            self.stamp(A, "a_flags")
            self.stamp(A, "rt_aflags")
            A(f"s_mov_b32 s{S_OFF}, 0")
            fl = self.first_loads()
            for k, x in enumerate(e2[1][:-2]):
                if k % 4 == 0 and fl:
                    for y in fl.pop(0):
                        A(y)
                A(x)
            assert not fl
            for x in e2[1][-2:]:
                A(x)
            A(f"s_branch {name}_a_go")
        A.clear()
        self.target(A, f"{name}_a_e2")
        self.masked(POLLMASK, "v_cmp_eq_u32 vcc, 0, v6")
        A(f"s_cbranch_vccnz {name}_a_late")
        self.stamp(A, "a_flags")
        self.stamp(A, "rt_aflags")
        A(f"s_mov_b32 s{S_OFF}, 0")
        work = e2[0][:-2] + e2[1][:-2]
        fl = self.first_loads()
        step = self.opt.get("lstep", 6)
        for k, x in enumerate(work):
            if k % step == 0 and fl:
                for y in fl.pop(0):
                    A(y)
            A(x)
        assert not fl
        for x in e2[0][-2:] + e2[1][-2:]:
            A(x)
        self.stamp(A, "a_e2b")
        assert [x for x in A.state()[0] if x] == [tuple(sorted(e[1])) for e in plain[0]]
        A.restore(plain)
        A.lg = []
        self.target(A, f"{name}_a_go", inline=True)
        A(f"s_mov_b32 s{S_LO}, {f32(2.0 ** -30)}")
        A(f"v_mov_b32 v{VHI}, {f32(2.0 ** 30)}")
        self.mask_q(0)
        A(self.qk(0, 0))
        A(self.qk(0, 1))
        A("s_setprio 1")
        self.stamp(A, "a_first")
        self.stamp(A, "rt_afirst")
        self.attn_main()
        self.attn_finish()
        self.stamp(A, "a_pub")
        self.stamp(A, "rt_pub")
        A(f"s_cmp_ge_u32 s{S_NB}, 7")
        A(f"s_cbranch_scc1 {name}_a_done")
        self.tail(0)
        A(f"{name}_a_done:")
        self.finish()
        A.clear()
        self.target(A, f"{name}_g_plain")
        self.gemm_start(None)
        A(f"s_branch {name}_g_go")
        A.clear()
        self.target(A, f"{name}_g_e2")
        self.gemm_start(e2)
        self.target(A, f"{name}_g_go", inline=True)
        self.gemm_main()
        self.tail(1)
        self.finish()
        self.slow_path()
        k = 0
        while k < len(self.late):
            A.clear()
            self.late[k](A)
            k += 1
        A(f"{name}_exit:")
        A("s_endpgm")
        pads = A.fix_hazards()
        return A.text(), kernel_desc(name), pads


HEADER = open("gated_mix__mha_block__glu_gated_geglu__prompt.s.ref").read().split("; Override")[0]


def main():
    diag = "diag" in sys.argv
    name = "gated_mix__mha_block__glu_gated_geglu__prompt_kernel"
    sets = {"diag": "rt0 t0 p1_pass2 a_flags a_first a_loop a_pub t_flag t_end rt_end g_hw g_dma g_flags g_pre g_loop",
            "diagt": "rt0 t0 a_first a_loop a_sync a_st a_pub t_bar0 t_bar1 t_flag t_odata t_mm t_end g_loop rt_end",
            "diagp": "rt0 t0 p1_pass1 p2_4 p2_8 p2_16 p1_pass2 a_flags a_first a_loop t_end rt_end",
            "diagb": "rt0 t0 b2_pre b2_vm b2_post b3_pre b3_vm t_end rt_end",
            "diagc": "rt0 t0 b5_pre b5_vm b5_post b7_pre b7_vm t_end rt_end",
            "diagd": "rt0 t0 p2_4 c7_pre c7_vm c7_post p2_8 t_end rt_end",
            "diage": "rt0 t0 c9_pre c9_vm c9_post c15_pre c15_vm t_end rt_end",
            "diagr": "rt0 t0 p1_first p1_pass1 rt_first rt_pass1 t_end rt_end",
            "diagz": "rt0 rt_end",
            "diagrt": "rt0 rt_first rt_pass1 rt_pubq rt_pass2 rt_aflags rt_afirst rt_loop rt_pub rt_tflag rt_odata rt_end rt_gflags rt_gpre",
            "diags": "rt0 t0 p1_pass1 p1_pass2 rt_pass1 rt_pass2 p2_8 t_end rt_end",
            "diaga": "rt0 t0 p1_pass2 a_flags a_e2b a_first a_t0 a_t4 a_t8 a_t16 t_end rt_end",
            "diagru": "rt0 rtkarg rtdma0 rtpro rtvm0 rt_first rtb1 rt_end",
            "diagrv": "rt0 rtb1 rtb2 rtb3 rtb4 rtb5 rtb6 rt_end",
            "diagsp": "rt0 t0 p1_pass1 p1_pass2 q_2b q_epi q_drain t_end rt_end",
            "diagx": "rt0 t0 p1_first p1_pass2 rt_first rt_pass2 a_first a_loop rt_afirst rt_loop rt_end",
            "diagq": "rt0 t0 karg dma0 p1_first p1_pass1 p2_4 t_end rt_end"}
    which = [a for a in sys.argv if a in sets]
    diag = bool(which)
    st = Stamps(diag, sets[which[0]].split() if diag else None)
    opt = {a.split("=")[0]: int(a.split("=")[1]) for a in sys.argv[1:] if "=" in a}
    g = Gen(name, st, opt)
    code, kd, pads = g.build()
    print(HEADER.rstrip())
    print("; @launch grid=(256,1,1) block=(512,1,1) lds=163840")
    if diag:
        print("; stamps: " + " ".join(st.only))
    print('.amdgcn_target "amdgcn-amd-amdhsa--gfx950"\n.text')
    print(code)
    print('.section .rodata,"a"\n.p2align 6')
    print(kd)


if __name__ == "__main__":
    main()
```

```python
import math
import struct
from asmlib import *

S, D, H, DH, F = 2048, 448, 16, 28, 1792

SEC = 64 * 28672
WS_Q = 0
WS_K = SEC
WS_V = 2 * SEC
WS_H = 3 * SEC
WS_O = WS_H + 64 * 114688
WS_G = WS_O + 64 * 32768
WS_FLAG = 0xF00000
WS_BYTES = 0x1000000


def f32(x):
    return "0x%08x" % struct.unpack("<I", struct.pack("<f", x))[0]


LOG2E = 1.4426950408889634
QSCALE = LOG2E * DH ** -0.5
GELU_C1 = 2.0 * math.sqrt(2.0 / math.pi) * LOG2E
GELU_C2 = 0.044715

P_X, P_WQKV, P_WO = 4, 6, 8
P_WG, P_WU, P_WD, P_GW = 12, 14, 16, 18
P_OUT, P_DBG, P_WS = 20, 22, 28
S_WAVE = 26
S_ROLE = 71
SRD_WS = 28


def srd(A, d, ptr, nbytes, add=None):
    if add is None:
        A(f"s_mov_b32 s{d}, s{ptr}")
        A(f"s_mov_b32 s{d + 1}, s{ptr + 1}")
    else:
        A(f"s_add_u32 s{d}, s{ptr}, {add}")
        A(f"s_addc_u32 s{d + 1}, s{ptr + 1}, 0")
    A(f"s_mov_b32 s{d + 2}, {nbytes}")
    A(f"s_mov_b32 s{d + 3}, 0x00020000")


def load_args(A, direct):
    for d, off in direct.items():
        A(f"s_load_dwordx2 s[{d}:{d + 1}], s[0:1], {off}")


def load_args2(A):
    A(f"s_load_dwordx2 s[{P_WO}:{P_WO + 1}], s[0:1], 16")
    A(f"s_load_dwordx2 s[{P_WD}:{P_WD + 1}], s[0:1], 48")
    A("s_load_dwordx4 s[20:23], s[0:1], 64")


def srd_tail(A, d, nbytes):
    A(f"s_mov_b32 s{d + 2}, {nbytes}")
    A(f"s_mov_b32 s{d + 3}, 0x00020000")


def mfma(d, a, b, c=None):
    cs = vr(d, 16) if c is None else c
    return f"v_mfma_f32_32x32x16_bf16 {vr(d, 16)}, {vr(a, 4)}, {vr(b, 4)}, {cs}"


def mfma16(d, a, b, c=None):
    cs = vr(d, 4) if c is None else c
    return f"v_mfma_f32_16x16x32_bf16 {vr(d, 4)}, {vr(a, 4)}, {vr(b, 4)}, {cs}"


def interleave(main, fill, start=0):
    out = []
    n = len(main) - start
    j = 0
    for i, m in enumerate(main):
        out += m if isinstance(m, list) else [m]
        if i >= start:
            k = (len(fill) * (i - start + 1)) // n
            out += fill[j:k]
            j = k
    return out + fill[j:]


class Stamps:
    WS_OFF = 0xE80000
    EARLY = list(range(88, 102, 2))
    LATE = list(range(32, 48, 2))

    def __init__(self, enabled, only=None):
        self.enabled = enabled
        self.only = only
        self.names = []
        self.reg = {}

    def __call__(self, A, name):
        if not self.enabled or (self.only and name not in self.only):
            return
        if name not in self.names:
            late = name[:2] in ("a_", "g_", "t_") or (name[:3] == "rt_" and name not in ("rt_pass1", "rt_pass2", "rt_first", "rt_pubq"))
            used = set(self.reg.values())
            pool = [r for r in ((self.LATE if late else []) + self.EARLY) if r not in used]
            self.reg[name] = pool[0]
            self.names.append(name)
        r = self.reg[name]
        A(f"s_memrealtime s[{r}:{r + 1}]") if name.startswith("rt") else A(f"s_memtime s[{r}:{r + 1}]")

    def flush(self, A):
        if not self.enabled:
            return
        A("s_waitcnt vmcnt(0) lgkmcnt(0)")
        A(f"s_lshl_b32 s3, s2, 3")
        A(f"s_add_u32 s3, s3, s{S_WAVE}")
        A(f"s_lshl_b32 s3, s3, 6")
        A(f"s_add_u32 s3, s3, {self.WS_OFF}")
        A("s_mov_b64 exec, 1")
        for k, n in enumerate(self.only):
            if n in self.reg:
                A(f"v_mov_b32 v1, s{self.reg[n]}")
                A(f"buffer_store_dword v1, off, {sr(SRD_WS, 4)}, s3 offset:{4 * k}")
        A("s_mov_b64 exec, -1")


class Rec:
    def __init__(self):
        self.units = []
        self.glue = False

    def __call__(self, text):
        for line in text.split("\n"):
            line = line.strip()
            if not line:
                continue
            op = line.split()[0]
            join = self.glue or op in ("s_addc_u32", "s_cselect_b32")
            if join and self.units:
                self.units[-1].append(line)
            else:
                self.units.append([line])
            if "exec" in line and op.startswith("s_mov"):
                self.glue = not line.endswith("exec, -1")
```

```python
from common import *

XF, ACC1, ACC2, WB = 144, 16, 64, 96
VDX0, VDX1, VDP, VDG, VDU = 120, 121, 122, 123, 124
VAX, VAP, VAG, VAGX, VL16, VSTV, VNC1 = 125, 129, 130, 132, 134, 135, 15
PK = 136
SRD_X, SRD_P, SRD_G, SRD_U, SRD_GW = 32, 36, 40, 44, 48
S_RB, S_CG, S_XO, S_PO, S_GO, S_W1K, S_W2K, S_T, S_RT, S_C, S_ST1, S_STH, S_T2, S_QS = range(52, 66)
S_ACT = 0
LX, LP, LQ = 0, 65536, 98304


SX = None


def decode(A):
    load_args(A, {SRD_X: 0, SRD_WS: 80, SRD_P: 8, SRD_G: 32, SRD_U: 40, SRD_GW: 56})
    A(f"""
    v_lshrrev_b32 v1, 6, v0
    v_and_b32 v0, 63, v0
    v_readfirstlane_b32 s{S_WAVE}, v1
    """)
    if SX is None:
        A(f"""
        s_bfe_u32 s{S_T}, s2, 0x20001
        s_lshl_b32 s{S_T}, s{S_T}, 2
        s_lshr_b32 s{S_CG}, s2, 6
        s_add_u32 s{S_CG}, s{S_CG}, s{S_T}
        """)
    else:
        A(f"""
        s_add_u32 s{S_T}, s2, {7 - SX}
        s_and_b32 s{S_T}, s{S_T}, 7
        s_lshl_b32 s{S_T}, s{S_T}, 1
        s_lshr_b32 s{S_CG}, s2, 7
        s_add_u32 s{S_CG}, s{S_CG}, s{S_T}
        """)


def x_addresses(A):
    if SX is None:
        A(f"""
        s_bfe_u32 s{S_RB}, s2, 0x30003
        s_bitcmp1_b32 s2, 0
        s_cselect_b32 s{S_T}, 8, 0
        s_or_b32 s{S_RB}, s{S_RB}, s{S_T}
        """)
    else:
        A(f"s_bfe_u32 s{S_RB}, s2, 0x40003")
    A(f"""
    v_lshrrev_b32 v2, 3, v0
    v_and_b32 v3, 7, v0
    v_lshrrev_b32 v5, 4, v0
    s_lshl_b32 s{S_T}, s{S_RB}, 3
    v_mul_u32_u24 v6, 896, v2
    s_add_u32 s{S_T}, s{S_T}, s{S_WAVE}
    v_xor_b32 v7, v3, v5
    s_mul_i32 s{S_XO}, s{S_T}, {16 * 896}
    v_lshl_add_u32 v{VDX0}, v7, 4, v6
    s_lshl_b32 s{S_W2K}, s{S_WAVE}, 11
    v_xor_b32 v{VDX1}, 64, v{VDX0}
    v_add_u32 v{VDX1}, {8 * 896 - 1024}, v{VDX1}
    """)


def w_addresses(A, special):
    A(f"""
    v_and_b32 v4, 1, v5
    s_lshl_b32 s{S_T}, s{S_WAVE}, 3
    v_add_u32 v6, s{S_T}, v2
    s_lshl_b32 s{S_W1K}, s{S_WAVE}, 10
    v_mul_u32_u24 v8, 2688, v6
    """)
    if M16:
        A(f"""
        s_lshr_b32 s{S_T}, s{S_T}, 1
        s_and_b32 s{S_T}, s{S_T}, 4
        v_lshl_or_b32 v7, v4, 1, s{S_T}
        v_xor_b32 v7, v3, v7
        v_lshl_add_u32 v{VDP}, v7, 4, v8
        """)
        if special and M16 == 1:
            A(f"""
            v_lshlrev_b32 v9, 2, v4
            v_xor_b32 v9, v3, v9
            v_lshl_add_u32 v{VDG}, v9, 4, v8
            """)
        return
    A(f"""
    v_lshlrev_b32 v7, 2, v4
    v_xor_b32 v7, v3, v7
    v_lshl_add_u32 v{VDP}, v7, 4, v8
    """)


def gu_dma_addresses(A):
    if M16:
        A(f"""
        v_mul_u32_u24 v8, 3584, v6
        v_lshl_add_u32 v{VDG}, v7, 4, v8
        """)
        return
    A(f"""
    v_lshlrev_b32 v7, 1, v4
    v_xor_b32 v7, v3, v7
    v_mul_u32_u24 v8, 3584, v6
    v_lshl_add_u32 v{VDG}, v7, 4, v8
    v_xor_b32 v{VDU}, 64, v{VDG}
    """)


def pass2_dma_addresses(A):
    A(f"""
    s_lshl_b32 s10, s{S_WAVE}, 6
    s_and_b32 s10, s10, 64
    v_xor_b32 v{VDG}, s10, v{VDG}
    v_xor_b32 v{VDU}, 64, v{VDG}
    """)


def read_addresses16(A, special):
    A(f"""
    v_and_b32 v2, 15, v0
    v_lshrrev_b32 v3, 4, v0
    s_lshl_b32 s{S_T}, s{S_RT}, 12
    v_lshl_add_u32 v4, v2, 7, s{S_T}
    v_lshrrev_b32 v5, 1, v2
    v_xor_b32 v5, v5, v3
    v_lshl_add_u32 v{VAX}, v5, 4, v4
    v_xor_b32 v{VAX + 1}, 64, v{VAX}
    """)
    A(f"""
    v_and_b32 v2, 3, v0
    v_bfe_u32 v4, v0, 2, 2
    v_lshl_add_u32 v5, v3, 3, v4
    v_bfe_u32 v6, v0, 3, 2
    s_lshl_b32 s{S_T}, s{S_C}, 1
    v_xor_b32 v6, s{S_T}, v6
    v_lshlrev_b32 v6, 5, v6
    v_lshl_add_u32 v5, v5, 7, v6
    v_lshl_add_u32 v6, v2, 3, v5
    v_add_u32 v{VAP}, {LP}, v6
    v_xor_b32 v{VAP1}, 32, v{VAP}
    """)
    if not special:
        A(f"""
        v_lshrrev_b32 v6, 1, v2
        v_and_b32 v7, 1, v2
        v_lshl_or_b32 v6, v7, 1, v6
        v_lshl_add_u32 v6, v6, 3, v5
        """)
    A(f"""
    v_add_u32 v{VAG}, {LQ}, v6
    v_xor_b32 v{VAG + 1}, 32, v{VAG}
    """)
    if M16 == 2:
        A(f"""
        v_mov_b32 v{VAGX}, v6
        v_xor_b32 v{VAGX + 1}, 32, v6
        v_mov_b32 v{VNC1}, {f32(-GELU_C1)}
        """)
        return
    A(f"""
    v_lshrrev_b32 v3, 5, v0
    v_bfe_u32 v5, v0, 4, 1
    v_bfe_u32 v6, v0, 3, 1
    v_lshl_add_u32 v7, v3, 4, v4
    v_lshlrev_b32 v7, 7, v7
    s_lshl_b32 s{S_T}, s{S_C}, 3
    """)
    if special:
        A(f"""
        v_lshl_add_u32 v8, v5, 2, v2
        v_add_u32 v8, s{S_T}, v8
        v_lshlrev_b32 v9, 3, v6
        v_xor_b32 v8, v8, v9
        v_lshl_add_u32 v{VAGX}, v8, 3, v7
        v_add_u32 v{VAGX + 1}, 8192, v{VAGX}
        """)
        return
    A(f"""
    v_add_u32 v8, s{S_T}, v2
    v_lshlrev_b32 v9, 2, v6
    v_xor_b32 v8, v8, v9
    v_lshlrev_b32 v9, 3, v5
    v_xor_b32 v8, v8, v9
    v_lshl_add_u32 v7, v5, 13, v7
    v_lshl_add_u32 v{VAGX}, v8, 3, v7
    v_xor_b32 v{VAGX + 1}, 32, v{VAGX}
    v_mov_b32 v{VNC1}, {f32(-GELU_C1)}
    """)


def read_addresses(A):
    A(f"""
    v_and_b32 v2, 31, v0
    v_lshrrev_b32 v3, 5, v0
    s_lshl_b32 s{S_T}, s{S_RT}, 12
    v_lshl_add_u32 v4, v2, 7, s{S_T}
    v_bfe_u32 v5, v2, 1, 3
    v_xor_b32 v5, v5, v3
    """)
    for s in range(4):
        A(f"v_xor_b32 v6, {2 * s}, v5")
        A(f"v_lshl_add_u32 v{VAX + s}, v6, 4, v4")
    A(f"""
    v_and_b32 v2, 3, v0
    v_bfe_u32 v4, v0, 2, 2
    v_bfe_u32 v5, v0, 4, 1
    v_bfe_u32 v6, v0, 3, 1
    v_lshl_add_u32 v7, v3, 3, v4
    v_lshlrev_b32 v7, 7, v7
    s_lshl_b32 s{S_T}, s{S_C}, 3
    v_lshl_add_u32 v8, v5, 2, v2
    v_add_u32 v8, s{S_T}, v8
    v_lshlrev_b32 v9, 3, v6
    v_xor_b32 v8, v8, v9
    v_lshl_add_u32 v8, v8, 3, v7
    v_add_u32 v{VAP}, {LP}, v8
    """)


def gu_addresses(A, special):
    if special:
        A(f"""
        v_add_u32 v{VAG}, {LQ}, v8
        v_add_u32 v{VAG + 1}, {LQ + 8192}, v8
        v_mov_b32 v{VAGX}, v8
        v_add_u32 v{VAGX + 1}, 8192, v8
        """)
        return
    A(f"""
    v_add_u32 v8, s{S_T}, v2
    v_lshlrev_b32 v9, 2, v6
    v_xor_b32 v8, v8, v9
    v_lshlrev_b32 v9, 3, v5
    v_xor_b32 v8, v8, v9
    v_lshl_add_u32 v7, v5, 13, v7
    v_lshl_add_u32 v{VAGX}, v8, 3, v7
    v_xor_b32 v8, 4, v8
    v_lshl_add_u32 v{VAGX + 1}, v8, 3, v7
    v_add_u32 v{VAG}, {LQ}, v{VAGX}
    v_add_u32 v{VAG + 1}, {LQ}, v{VAGX + 1}
    v_mov_b32 v{VNC1}, {f32(-GELU_C1)}
    """)


def dma(m0base, m0s, voff, srd_, sbase, soff, imm=0, setm0=True):
    out = []
    if setm0:
        out.append(f"s_add_u32 m0, s{m0s}, {m0base}")
    if soff:
        out.append(f"s_add_u32 s{S_T2}, s{sbase}, {soff}")
    out.append(f"buffer_load_dwordx4 v{voff}, {sr(srd_, 4)}, s{S_T2 if soff else sbase} offen{' offset:%d' % imm if imm else ''} lds")
    return out


def stage_dma(stage, special, up=0):
    sl = stage % 4
    g = []
    g.append(dma(LX + sl * 16384 + up * 8192, S_W2K, VDX0, SRD_X, S_XO, stage * 128 + up * 64 * 896) +
             [f"buffer_load_dwordx4 v{VDX1}, {sr(SRD_X, 4)}, s{S_T2 if stage or up else S_XO} offen offset:1024 lds"])
    k0 = stage * 64 + up * 32
    g.append(dma(LP + sl * 8192 + up * 4096, S_W1K, VDP, SRD_P, S_PO, k0 * 2688))
    q = LQ + sl * 16384 + up * 4096
    if special:
        g.append(dma(q, S_W1K, VDP, SRD_P, S_PO, k0 * 2688 + 128))
    else:
        g.append(dma(q, S_W1K, VDG, SRD_G, S_GO, k0 * 3584))
        g.append(dma(q + 8192, S_W1K, VDG if M16 else VDU, SRD_U, S_GO, k0 * 3584))
    return g


P2LOC = {0: (LX, 3), 1: (LQ, 3), 2: (LX, 0), 3: (LQ, 0), 4: (LX, 1), 5: (LQ, 1), 6: (LX, 2)}


def p2_dma(ch, special, up=0):
    reg, sl = P2LOC[ch]
    base = reg + sl * 16384 + up * 4096
    k0 = ch * 64 + up * 32
    if special:
        v = VDG if M16 == 1 else VDP
        return [dma(base, S_W1K, v, SRD_P, S_PO, k0 * 2688 + 256),
                dma(base + 8192, S_W1K, v, SRD_P, S_GO, k0 * 2688)]
    return [dma(base, S_W1K, VDG, SRD_G, S_GO, k0 * 3584 + 128),
            dma(base + 8192, S_W1K, VDG if M16 == 2 else VDU, SRD_U, S_GO, k0 * 3584 + 128)]


def tr_reads(dst, addr, off):
    return [f"ds_read_b64_tr_b16 {vr(dst, 2)}, v{addr} offset:{off}",
            f"ds_read_b64_tr_b16 {vr(dst + 2, 2)}, v{addr} offset:{off + 512}"]


M16 = 1
VAP1 = 127
LA1, LA2 = 1, 1


def wb1(t):
    return WB + 12 * (t & 1) if LA1 == 1 else (WB + 12, ACC2, WB)[t % 3]


def reads1(t, special=False):
    ch, s = divmod(t, 4)
    sl = ch % 4
    b = wb1(t)
    if M16:
        s32, nh = s >> 1, s & 1
        x = [] if nh else [f"ds_read_b128 {vr(XF + 4 * (t + th), 4)}, v{VAX + s32} offset:{LX + sl * 16384 + th * 2048}"
                           for th in range(2)]
        if special:
            return (x + tr_reads(b, VAP1 if nh else VAP, sl * 8192 + s32 * 4096),
                    tr_reads(b + 4, VAG + nh, sl * 16384 + s32 * 4096), [])
        return (x + tr_reads(b, VAP1 if nh else VAP, sl * 8192 + s32 * 4096),
                tr_reads(b + 4, VAG, sl * 16384 + s32 * 4096 + nh * 8192),
                tr_reads(b + 8, VAG + 1, sl * 16384 + s32 * 4096 + nh * 8192))
    return ([f"ds_read_b128 {vr(XF + 4 * t, 4)}, v{VAX + s} offset:{LX + sl * 16384}"] +
            tr_reads(b, VAP, sl * 8192 + s * 2048),
            tr_reads(b + 4, VAG, sl * 16384 + s * 2048),
            tr_reads(b + 8, VAG + 1, sl * 16384 + s * 2048))


def koff2(s):
    if M16 == 2:
        return (s >> 1) * 4096 + (s & 1) * 8192
    return (s >> 1) * 4096 + (s & 1) * 1024 if M16 else s * 2048


def wb2(t, ntile):
    if ntile == 1:
        return WB + 4 * (t % 6)
    return WB + 12 * (t & 1) if LA2 == 1 else WB + 8 * (t % 3)


def reads2(t, ntile, img=0):
    if ntile == 1:
        ch, s = divmod(t % 28, 4)
        reg, sl = P2LOC[ch]
        if M16 == 2:
            return [tr_reads(wb2(t, 1), (VAGX if reg == LX else VAG) + (s & 1), sl * 16384 + (s >> 1) * 4096 + t // 28 * 8192)]
        return [tr_reads(wb2(t, 1), (VAGX if reg == LX else VAG) + t // 28, sl * 16384 + koff2(s))]
    ch, s = divmod(t, 4)
    reg, sl = P2LOC[ch]
    a = VAGX if reg == LX else VAG
    b = wb2(t, ntile)
    return [tr_reads(b + 4 * e, a + e, sl * 16384 + koff2(s)) for e in range(ntile)]


def epi_gu(acc, pk, soff_expr, st, m16=False):
    o = []
    T = [1, 2, 3, 4]
    for half in range(2):
        g = [acc + 4 * half + i for i in range(4)]
        u = [acc + 8 + 4 * half + i for i in range(4)]
        o += [f"v_mul_f32 v{T[i]}, v{g[i]}, v{g[i]}" for i in range(4)]
        o += [f"v_fmamk_f32 v{T[i]}, v{T[i]}, {f32(-GELU_C1 * GELU_C2)}, v{VNC1}" for i in range(4)]
        o += [f"v_mul_f32 v{T[i]}, v{T[i]}, v{g[i]}" for i in range(4)]
        o += [f"v_exp_f32 v{T[i]}, v{T[i]}" for i in range(4)]
        o += [f"v_mul_f32 v{u[i]}, v{g[i]}, v{u[i]}" for i in range(4)]
        o += [f"v_add_f32 v{T[i]}, 1.0, v{T[i]}" for i in range(4)]
        o += [f"v_rcp_f32 v{T[i]}, v{T[i]}" for i in range(4)]
        o += [f"v_mul_f32 v{u[i]}, v{u[i]}, v{T[i]}" for i in range(4)]
        o += [f"v_cvt_pk_bf16_f32 v{pk + 2 * half + i}, v{u[2 * i]}, v{u[2 * i + 1]}" for i in range(2)]
    o.append(f"s_add_u32 s{S_T}, s{S_STH}, {soff_expr}")
    if m16:
        o += [f"v_permlane16_swap_b32 v{pk + i}, v{pk + 2 + i}" for i in range(2)]
    o.append(f"buffer_store_dwordx4 {vr(pk, 4)}, v{VL16}, {sr(SRD_WS, 4)}, s{S_T} offen{st}")
    return o


def epi_qk(acc, scale, soff, st, base=None, m16=False):
    o = []
    if scale:
        o += [f"v_mul_f32 v{acc + r}, s{S_QS}, v{acc + r}" for r in range(16)]
    o += [f"v_cvt_pk_bf16_f32 v{PK + j}, v{acc + 2 * j}, v{acc + 2 * j + 1}" for j in range(8)]
    o.append(f"s_add_u32 s{S_T}, s{base or S_ST1}, {soff}")
    for q in range(2):
        o.append(f"v_permlane{16 if m16 else 32}_swap_b32 v{PK + 4 * q}, v{PK + 4 * q + 2}")
        o.append(f"v_permlane{16 if m16 else 32}_swap_b32 v{PK + 4 * q + 1}, v{PK + 4 * q + 3}")
    for q in range(2):
        o.append(f"buffer_store_dwordx4 {vr(PK + 4 * q, 4)}, v{VL16}, {sr(SRD_WS, 4)}, s{S_T} offen offset:{1024 * q}{st}")
    return o


def epi_v(acc, st):
    o = [f"v_cvt_pk_bf16_f32 v{PK + j}, v{acc + 2 * j}, v{acc + 2 * j + 1}" for j in range(8)]
    o.append(f"s_add_u32 s{S_T}, s{S_ST1}, 14336")
    if M16:
        for w in (16, 32):
            o += [f"v_permlane{w}_swap_b32 v{PK + j}, v{PK + j + 2}" for j in (0, 1, 4, 5)]
    o.append(f"buffer_store_dwordx4 {vr(PK, 4)}, v{VSTV}, {sr(SRD_WS, 4)}, s{S_ST1} offen{st}")
    o.append(f"buffer_store_dwordx4 {vr(PK + 4, 4)}, v{VSTV}, {sr(SRD_WS, 4)}, s{S_T} offen{st}")
    return o


def final_epilogue(st, skew):
    def parts(e):
        tail = [x for x in e if x.startswith("s_add") or x.startswith("buffer_store")]
        return [x for x in e if x not in tail], tail
    b, bs = parts(epi_gu(ACC2 + 16, PK + 4, 5120, st, M16 == 2))
    if skew:
        return b[:34], b[34:], bs
    a, as_ = parts(epi_gu(ACC2, PK, 4096, st, M16 == 2))
    return a, b, as_ + bs


def skew_order(skew):
    if skew == 1:
        return [x for g in range(14) for x in ((0, 2 * g), (0, 2 * g + 1), (1, g))] + [(1, k) for k in range(14, 28)]
    if skew == 2:
        return [x for g in range(9) for x in ((0, 3 * g), (0, 3 * g + 1), (1, 2 * g), (0, 3 * g + 2), (1, 2 * g + 1))] + \
               [(0, 27)] + [(1, k) for k in range(18, 28)]
    return [(0, k) for k in range(28)] + [(1, k) for k in range(28)]


def reads_seq(n, e, k):
    ch, s = divmod(k, 4)
    reg, sl = P2LOC[ch]
    return tr_reads(wb2(n, 1), (VAGX if reg == LX else VAG) + e, sl * 16384 + koff2(s))


def gate_loads(A):
    A(f"""
    s_lshl_b32 s10, s{S_RB}, 7
    s_lshl_b32 s11, s{S_CG}, 3
    s_add_u32 s10, s10, s11
    s_add_u32 s3, s10, s{S_WAVE}
    s_mul_i32 s10, s3, 896
    """)
    for r in range(136, 144, 2):
        A(f"v_mov_b64 {vr(r, 2)}, 0")
    A(f"""
    s_mov_b32 exec_hi, 0x00ffffff
    buffer_load_dwordx4 v[136:139], v{VL16}, {sr(SRD_X, 4)}, s10 offen
    buffer_load_dwordx4 v[140:143], v{VL16}, {sr(SRD_GW, 4)}, 0 offen
    s_mov_b64 exec, -1
    """)


def gate_compute(A, st):
    A("v_mov_b32 v1, 0")
    for i in range(4):
        A(f"v_dot2_f32_bf16 v1, v{136 + i}, v{140 + i}, v1")
    for m in ("row_shr:1 row_mask:0xf", "row_shr:2 row_mask:0xf", "row_shr:4 row_mask:0xf", "row_shr:8 row_mask:0xf",
              "row_bcast:15 row_mask:0xa", "row_bcast:31 row_mask:0xc"):
        A(f"v_add_f32_dpp v1, v1, v1 {m} bank_mask:0xf")
    A(f"""
    v_mul_f32 v1, {f32(-LOG2E)}, v1
    v_exp_f32 v1, v1
    s_lshl_b32 s3, s3, 2
    v_add_f32 v1, 1.0, v1
    v_rcp_f32 v1, v1
    s_add_u32 s3, s3, {WS_G}
    s_mov_b32 exec_lo, 0
    s_mov_b32 exec_hi, 0x80000000
    """)
    tok = A(f"buffer_store_dword v1, off, {sr(SRD_WS, 4)}, s3{st}")
    A("s_mov_b64 exec, -1")
    return tok


def programs(A, kinds, st, hooks, opt):
    global LA1, LA2, M16
    M16 = opt.get('m16', 2)
    LA1, LA2 = opt.get("la1", 2), opt.get("la2", 1)
    LA0, LA = opt.get("LA0", 2), opt.get("LA", 2)
    p2bars, pubbar, popstart = (7, 15), opt.get("pubbar", 9), opt.get("popstart", 4)
    dma_a = opt.get("dma_a", 1)
    stamp = hooks["stamp"]
    special = kinds == "Q"
    if special:
        dma_a = opt.get("dma_aq", 0)
        LA = opt.get("LAq", 2)
    ntile2 = 1 if special else 2
    skew = 0 if special else opt.get("skew", 0)
    seq = skew_order(skew)
    toks = {}

    def issue(groups, key):
        for g in groups:
            for x in g:
                t = A(x)
                if t:
                    toks[key] = t

    def groups_of(stg, up):
        if stg < 7:
            return stage_dma(stg, special, up)
        if stg > 10:
            return []
        c0 = 2 * (stg - 7)
        return p2_dma(c0, special, up) + (p2_dma(c0 + 1, special, up) if c0 < 6 else [])

    pfpos, split = opt.get("pfpos", 1), False
    g0 = groups_of(0, 0)
    x_addresses(A)
    w_addresses(A, special)
    if special:
        A(f"s_and_b32 s{S_PO}, s{S_CG}, 1")
        A(f"s_lshl_b32 s{S_PO}, s{S_PO}, 9")
        A(f"s_mov_b32 s{S_GO}, 384")
    else:
        A(f"s_lshl_b32 s{S_PO}, s{S_CG}, 7")
        A(f"s_add_u32 s{S_PO}, s{S_PO}, 896")
        gu_dma_addresses(A)
        A(f"s_lshl_b32 s{S_GO}, s{S_CG}, 8")
        srd_tail(A, SRD_G, D * F * 2)
        srd_tail(A, SRD_U, D * F * 2)
    srd_tail(A, SRD_X, S * D * 2)
    srd_tail(A, SRD_P, D * 3 * D * 2)
    A(g0[0][0])
    A.wait(lg=0)
    stamp(A, "karg")
    stamp(A, "rtkarg")
    issue([g0[0][1:]] + g0[1:], 0)
    load_args2(A)
    stamp(A, "dma0")
    stamp(A, "rtdma0")
    srd_tail(A, SRD_GW, D * 2)
    srd_tail(A, SRD_WS, WS_BYTES)
    A(f"""
    v_lshlrev_b32 v{VL16}, 4, v0
    s_and_b32 s{S_RT}, s{S_WAVE}, 3
    s_lshr_b32 s{S_C}, s{S_WAVE}, 2
    s_cselect_b32 s{S_ROLE}, 1, 0
    """)
    A.wait(lg=0)
    hooks["entry"](A)
    A("s_barrier")
    issue(groups_of(1, 0), 1)
    hooks["prefetch"](A, 0)
    gate_loads(A)
    if M16:
        read_addresses16(A, special)
    else:
        read_addresses(A)
        gu_addresses(A, special)
    labels = {(k, r): hooks["label"](f"{k}{r}_") for k in kinds for r in (0, 1)}
    hooks["prologue"](A, special, [labels[k] for k in labels][1:])

    def side_work(kind, role):
        A = Rec()
        S_T, S_T2 = 0, 1
        A(f"s_lshl_b32 s{S_T}, s{S_RB}, 2")
        A(f"s_add_u32 s{S_T}, s{S_T}, s{S_RT}")
        A(f"s_mul_i32 s{S_ST1}, s{S_T}, 28672")
        if special:
            A(f"s_add_u32 s{S_STH}, s{S_ST1}, {role << 11}")
            A(f"s_lshl_b32 s{S_T}, s{S_PO}, 5")
            A(f"s_add_u32 s{S_ST1}, s{S_STH}, s{S_T}")
            A(f"s_mov_b32 s{S_QS}, {f32(QSCALE)}")
        else:
            A(f"s_mul_i32 s{S_STH}, s{S_T}, 114688")
            A(f"s_lshl_b32 s{S_T}, s{S_CG}, 13")
            A(f"s_add_u32 s{S_STH}, s{S_STH}, s{S_T}")
            A(f"s_add_u32 s{S_STH}, s{S_STH}, {WS_H + (role << 11)}")
            if kind == "K":
                A(f"s_lshl_b32 s{S_T}, s{S_CG}, 12")
                A(f"s_add_u32 s{S_ST1}, s{S_ST1}, s{S_T}")
                A(f"s_add_u32 s{S_ST1}, s{S_ST1}, {WS_K + (role << 11)}")
            else:
                A(f"s_lshl_b32 s{S_T}, s{S_CG}, 10")
                A(f"s_add_u32 s{S_ST1}, s{S_ST1}, s{S_T}")
                A(f"s_add_u32 s{S_ST1}, s{S_ST1}, {WS_V - 7 * 1024 + (role << 9)}")
                A(f"v_lshrrev_b32 v{VSTV}, 5, v0")
                A(f"v_mul_u32_u24 v{VSTV}, {7168 - 512}, v{VSTV}")
                A(f"v_add_u32 v{VSTV}, v{VSTV}, v{VL16}")
        hooks["idle"](A, role)
        L, G = Rec(), Rec()
        gate_loads(L)
        gate_compute(G, st)
        return A.units, L.units, G.units

    def pair16(acc, w, t, swap=False):
        o = []
        for th in range(2):
            x = XF + 4 * ((t & ~1) + th)
            d = acc + 8 * th + 4 * (t & 1) if swap else acc + 8 * (t & 1) + 4 * th
            o.append(mfma16(d, x, w, "0" if t < 2 else None) if swap else mfma16(d, w, x, "0" if t < 2 else None))
        return "\n".join(o)

    def mm1(kind, t, i):
        b = wb1(t) + 4 * i
        if M16:
            return pair16(ACC1 + 16 * i, b, t, kind == "V" and i == 0)
        c = "0" if t == 0 else None
        if kind == "V" and i == 0:
            return mfma(ACC1, XF + 4 * t, b, c)
        return mfma(ACC1 + 16 * i, b, XF + 4 * t, c)

    def mm2(t, i):
        if M16 == 2:
            return pair16(ACC2 + 16 * i, wb2(t, ntile2) + 4 * i, t)
        return mfma(ACC2 + 16 * i, wb2(t, ntile2) + 4 * i, XF + 4 * t, "0" if t == 0 else None)

    stamp(A, "rtpro")
    if split:
        skip = hooks["label"]("skip")
        sv = A.save()
        A.wait_tok(toks["x0"])
        A(f"s_cmp_ge_u32 s{S_WAVE}, 4")
        A(f"s_cbranch_scc1 {skip}")
        A.wait_tok(toks[0])
        A(f"{skip}:")
        A.restore(sv)
    else:
        A.wait_tok(toks[0])
    stamp(A, "rtvm0")
    A("s_barrier")
    stamp(A, "p1_first")
    stamp(A, "rt_first")
    nt1 = 2 if special else 3
    for k in range(LA1):
        for r in reads1(k, special)[:nt1]:
            for x in r:
                A(x)
    if not special:
        v = hooks["label"]("isv")
        A(f"s_cmp_ge_u32 s{S_CG}, 7")
        A(f"s_cbranch_scc0 {v}")
        A(f"s_cmp_eq_u32 s{S_ROLE}, 0")
        A(f"s_cbranch_scc1 {labels['V', 0]}")
        A(f"s_branch {labels['V', 1]}")
        A(f"{v}:")
    A(f"s_cmp_eq_u32 s{S_ROLE}, 0")
    A(f"s_cbranch_scc0 {labels[kinds[0], 1]}")
    sv0, toks0 = A.save(), dict(toks)

    def one_wait(ms):
        regs = set().union(*[Ins(x).uses for m in ms for x in m.split('\n')])
        A.wait_tok(*[e[0] for e in A.lg if e[1] & regs])

    def stream(kind, role):
        pend = []

        def stage_groups(stg):
            if not dma_a:
                return [(g, stg) for g in groups_of(stg, 0)]
            if role:
                return []
            return [(g, stg) for pair in zip(groups_of(stg, 0), groups_of(stg, 1)) for g in pair]

        def pop(n=1):
            for _ in range(n):
                if pend:
                    g, key = pend.pop(0)
                    if opt.get("nodma"):
                        toks[key] = None
                    else:
                        issue([g], key)

        side, gload, gate = side_work(kind, role)
        half = len(side) // 3
        plan = [(gate, 3, 7), (side, 8, 25)]

        def fill(t, k):
            hit = [p for p in plan if p[1] <= t <= p[2]]
            if opt.get("nofill") or not hit:
                return
            units, lo, hi = hit[0]
            n = 3 * (hi - lo + 1)
            pos = 3 * (t - lo) + k
            for u in units[len(units) * pos // n:len(units) * (pos + 1) // n]:
                for x in u:
                    tk = A(x)
                    if tk and "store" in x:
                        toks["gate"] = tk

        for k in range(LA0, LA + 1):
            pend += stage_groups(k)
        for t in range(28):
            if t + LA1 < 28:
                nxt = reads1(t + LA1, special)
            elif t < 27:
                nxt = [[], [], []]
            elif skew:
                nxt = [reads_seq(n, *seq[n]) for n in range(3)]
            elif ntile2 == 1:
                nxt = [reads2(k, 1)[0] for k in range(3)]
            else:
                nxt = reads2(0, 2) + [sum(reads2(1, 2), []) if LA2 == 2 else []]
            bound = (t + LA1) % 4 == 0 if t < 25 else t == 27
            if split and t == 0:
                nxt = [[], [], []]
            if split and t == 1:
                nxt = [a_ + b_ for a_, b_ in zip(reads1(2), reads1(3))]
            if bound:
                A.wait(lg=0)
            if opt.get("merge1", 1) and LA1 == 2 and t > 1:
                one_wait([mm1(kind, t, i) for i in range(nt1)])
            A(mm1(kind, t, 0))
            if split and t == 1:
                A.wait_tok(toks[0])
                A("s_barrier")
            if bound:
                stg = (t + LA1) // 4
                assert not pend
                need = stg if stg < 7 else 7 + p2bars[0] // 8
                stamp(A, f"b{stg}_pre")
                A.wait_tok(toks.get(need), toks.get("gate") if stg == 4 else None)
                stamp(A, f"b{stg}_vm")
                if not opt.get("nobar"):
                    A("s_barrier")
                stamp(A, f"b{stg}_post")
                stamp(A, f"rtb{stg}")
                hooks["p1bar"](A, stg, role)
                if M16 == 1 and stg + LA == 7 and not special and not (dma_a and role):
                    pass2_dma_addresses(A)
                todo = list(range(stg + LA, stg + LA + 1 if stg < 7 else 11))
                if (special or (skew and opt.get("early9", 1))) and LA == 2 and stg >= 6:
                    todo = [8, 9] if stg == 6 else [10]
                for k in todo:
                    pend += stage_groups(k)
            left = (3 - LA1 - t) % 4 + 1
            npop = -(-len(pend) // left) if t < 27 else len(pend) * special
            for i in range(3):
                if 0 < i < nt1:
                    A(mm1(kind, t, i))
                for x in (nxt[i] if i < nt1 or t == 27 else []):
                    A(x)
                pop((npop + (0, 2, 1)[i]) // 3)
                fill(t, i)
                if M16 == 1 and t >= 2 and i < 2:
                    x0 = XF + 4 * ((t & ~1) - 2)
                    d = 2 * (t & 1) + i
                    A(f"v_permlane16_swap_b32 v{x0 + d}, v{x0 + 4 + d}")
            if M16 == 1 and t == 26:
                A(f"v_add_u32 v{VAG}, {LQ}, v{VAGX}")
                A(f"v_add_u32 v{VAG + 1}, {LQ}, v{VAGX + 1}")
            if t == opt.get("pf2", 21):
                hooks["prefetch"](A, 1)
        if M16 == 1:
            for d in range(4):
                A(f"v_permlane16_swap_b32 v{XF + 104 + d}, v{XF + 108 + d}")
        stamp(A, "p1_pass1")
        stamp(A, "rt_pass1")
        if "p1exit" in hooks:
            hooks["p1exit"]()
            return
        if kind == "K":
            e1 = epi_qk(ACC1, False, 0, st, m16=M16)
        elif kind == "V":
            e1 = epi_v(ACC1, st)
        else:
            e1 = sum([epi_qk(ACC1 + 16 * k, True, WS_Q + 4096 * k, st, m16=M16) for k in range(2)], [])
        nq = len(e1)
        if not special:
            e1 = e1 + epi_gu(ACC1 + 16, PK, 0, st, M16) + epi_gu(ACC1 + 32, PK + 4, 1024, st, M16)

        if opt.get("nost"):
            e1 = [("s_nop 0" if x.startswith("buffer_store") else x) for x in e1]
        if opt.get("noe1"):
            e1 = e1[:nq]
        if opt.get("notrans"):
            e1 = [x.replace("v_exp_f32", "v_mov_b32").replace("v_rcp_f32", "v_mov_b32") for x in e1]

        def bar_token(k):
            return toks.get(7 + p2bars[k + 1] // 8 if k + 1 < len(p2bars) else 10)

        if skew:
            ea = epi_gu(ACC2, PK, 4096, st)
            work = e1 + ea
            last_a = max(n for n, x in enumerate(seq) if x[0] == 0)
            first = lambda ch: min(n for n, x in enumerate(seq) if x[1] >= 4 * ch)
            bars = {first(2) - 3: 0, first(4) - 3: 1}
            free = (max(n for n, x in enumerate(seq) if x[1] < 16) - 2, 53)
            pA = last_a + opt.get("lagA", 2)
            pub2, pop2 = opt.get("pub2", 18), opt.get("pop2", 8)
            done = 0
            qtok = None
            for n, (e, k) in enumerate(seq):
                if n in free:
                    A.wait(lg=0)
                hooks["p2seq"](A, n, role, seq, free[0])
                A(mfma(ACC2 + 16 * e, wb2(n, 1), XF + 4 * k, "0" if k == 0 else None))
                if n in bars or n == pub2 or n in free:
                    A.wait_tok(bar_token(bars[n]) if n in bars else None, qtok if n == pub2 else None)
                    A("s_barrier")
                    if n == pub2:
                        hooks["qkv_done"](A, role)
                for x in (reads_seq(n + 3, *seq[n + 3]) if n + 3 < 56 else []):
                    A(x)
                if n >= pop2:
                    pop()
                if n <= pA:
                    upto = max(min(nq, 8 * (n + 1)), len(e1) * n // pA)
                else:
                    upto = min(len(work), len(e1) + len(ea) * (n - pA) // (54 - pA))
                while done < upto:
                    tk = A(work[done])
                    if tk and done < nq:
                        qtok = tk
                    done += 1
            assert done == len(work) and not pend
            stamp(A, "p1_pass2")
            stamp(A, "rt_pass2")
            hooks["regular_end"](A, role)
            return
        done = 0
        qtok = None
        la = LA2 if ntile2 == 2 else 3
        nslots = 27 * ntile2
        slot = 0
        for t in range(28):
            nxt = reads2(t + la, ntile2) if t + la < 28 or special else [[]] * ntile2
            bound = t + la - 1 in p2bars
            pub = not special and t == pubbar
            endbar = t == 27 and not special
            if endbar or (bound and not special):
                A.wait(lg=0)
            hooks["p2step"](A, t, role)
            if opt.get("merge2", 0):
                one_wait([mm2(t, i) for i in range(ntile2)])
            for i in range(ntile2):
                A(mm2(t, i))
                if endbar and i == 0:
                    A("s_barrier")
                if (bound or pub) and i == 0:
                    assert not pub or done >= nq
                    stamp(A, f"c{t}_pre")
                    A.wait_tok(bar_token(p2bars.index(t + la - 1)) if bound else None, qtok if pub else None)
                    stamp(A, f"c{t}_vm")
                    A("s_barrier")
                    stamp(A, f"c{t}_post")
                    if pub:
                        hooks["qkv_done"](A, role)
                for x in nxt[i]:
                    A(x)
                if special:
                    pop(2 if t >= 2 else 0)
                elif t >= popstart and (dma_a or i == 0):
                    pop()
                upto = 0
                if t >= 1:
                    slot += 1
                    upto = min(len(e1), (len(e1) * slot * 27) // (nslots * 25))
                upto = max(upto, min(nq, (opt.get("qpace", 8) if special else 8) * (ntile2 * t + i + 1)))
                while done < upto:
                    tk = A(e1[done])
                    if tk and done < nq:
                        qtok = tk
                    done += 1
        assert done == len(e1) and not pend
        stamp(A, "p1_pass2")
        stamp(A, "rt_pass2")
        if "p2exit" in hooks:
            hooks["p2exit"]()
            return
        if not special:
            hooks["regular_end"](A, role)
            return
        e2 = epi_qk(ACC2, True, WS_Q + 8192, st, m16=M16 == 2)
        idle, fin = hooks["label"]("idle"), hooks["label"]("fin")
        A(f"s_bitcmp{1 - role}_b32 s{S_CG}, 0")
        A(f"s_cbranch_scc1 {idle}")
        sv = A.save()
        done = 0
        for t in range(28):
            A(pair16(ACC1, wb2(28 + t, 1), t) if M16 == 2 else mfma(ACC1, wb2(28 + t, 1), XF + 4 * t, "0" if t == 0 else None))
            for x in (reads2(28 + t + 3, 1)[0] if t + 3 < 28 else []):
                A(x)
            while t >= 1 and done < min(len(e2), opt.get("qpace2", 6) * t):
                A(e2[done])
                done += 1
        stamp(A, "q_2b")
        for x in epi_qk(ACC1, True, WS_Q + 12288, st, base=S_STH, m16=M16 == 2):
            A(x)
        stamp(A, "q_epi")
        A(f"s_branch {fin}")
        A(f"{idle}:")
        A.restore(sv)
        for x in e2:
            A(x)
        A(f"{fin}:")
        hooks["special_end"](A, role)

    for n, (kind, role) in enumerate(labels):
        if n:
            hooks["target"](A, labels[kind, role])
            A.restore(sv0)
            toks.clear()
            toks.update(toks0)
        stream(kind, role)
        assert "p1exit" in hooks or "p2exit" in hooks or (all(not e[1] for e in A.vm) and all(not e[1] for e in A.lg)), A.state()
```

```python
import sys
from common import *
import phase1 as p1

ST = " sc1"
LD = " sc1"

FLAG_S = WS_FLAG
FLAG_O = WS_FLAG + 0x8000
FLAG_T = WS_FLAG + 0x30000
SPIN = 1 << 17

L_WO, L_RING, L_OP, L_MISC = 0, 57344, 106496, 155648
L_O = L_RING
L_TR = 131072
M_HW, M_AS, M_GS, M_TK = L_MISC, L_MISC + 2048, L_MISC + 3072, L_MISC + 4096

S_F1, S_SPIN = 27, 3
S_HEAD, S_QB, S_MB, S_NB, S_GW = range(66, 71)
S_AG = 61
S_MO, S_T, S_T2, S_T3, S_OFF, S_CNT = 54, 56, 57, 58, 60, 61
SRD_DBG, SRD_OUT = 48, 48
SRD_K, SRD_V, S_Q, S_ME, S_OO, S_OF = 72, 76, 80, 84, 86, 87
SRD_WD, SRD_WO = 72, 76
S_RA, S_RB, S_WDO, S_WOO, S_HOFF, S_GOFF, S_OUTO = range(80, 87)

VL16 = p1.VL16
VPOLL, VHW = 12, 14
OA, SB, PB, VB, KB, QF = 16, 80, 112, 160, 192, 224
VV0, VGA, VONE, VM, VHI = 10, 11, 13, 1, 7
VMLO, VMHI, VGAD = 120, 121, 122
S_LO = 62
VK = [VL16, 144, 145, 146]
VV = [VV0] + list(range(147, 154))
VXA, VSW, VSR = 154, 158, 159
ACC, HB, WBUF = 16, 80, 160
GL16, GSW, GSR = 1, 2, 3
NDEF = int([a for a in sys.argv if a.startswith('ndef=')][0][5:]) if any(a.startswith('ndef=') for a in sys.argv) else 10
VDW0, VDW1, VTR = 9, 10, 11
VH0, VH1, VAWA, VAWB, VG = 242, 243, 244, 246, 248
VPW, VPR, VGATE, VOUT, VTP = 240, 250, 241, 253, 254
ACA, TB_, TA_ = 80, 96, 112
POLLMASK = "0x1ffff"
POLL = f"buffer_load_dword v6, v{VPOLL}, {sr(SRD_WS, 4)}, 0 offen sc1"


class Gen:
    def __init__(self, name, stamps, opt=None):
        self.A = Asm()
        self.name = name
        self.stamp = stamps
        self.opt = opt or {}
        self.late = []
        self.nlab = 0

    def pad(self, where):
        us = self.opt.get("pad_" + where)
        if not us:
            return
        A, L = self.A, self.lab("pad")
        A.auto = False
        A(f"{L}:")
        A("s_memrealtime s[98:99]")
        A._emit_raw("s_waitcnt lgkmcnt(0)")
        A("s_sub_u32 s98, s98, s96")
        A(f"s_cmp_lt_u32 s98, {us * 100}")
        A(f"s_cbranch_scc1 {L}")
        A.auto = True
        A.sm = set()

    def jitter(self, A=None):
        seed = self.opt.get("jitter")
        if not seed:
            return
        A = A or self.A
        self.njit = getattr(self, "njit", 0) + 1
        L = self.lab("jit")
        A(f"""
        s_lshl_b32 s98, s2, 3
        s_add_u32 s98, s98, s{S_WAVE}
        s_add_u32 s98, s98, {(seed * 7919 + self.njit * 104729) & 0xffff}
        s_mul_i32 s98, s98, 0x9E3779B1
        s_lshr_b32 s99, s98, 29
        s_lshr_b32 s98, s98, 12
        s_and_b32 s98, s98, 63
        s_lshr_b32 s98, s98, s99
        {L}:
        s_sleep 4
        s_sub_u32 s98, s98, 1
        s_cbranch_scc0 {L}
        """)

    def lab(self, s):
        self.nlab += 1
        return f"{self.name}_{s}{self.nlab}"

    def one_lane_store(self, value, soff, wave=None, tmp=5):
        A = self.A
        skip = None
        if wave is not None:
            skip = self.lab("skip")
            A(f"s_cmp_lg_u32 s{S_WAVE}, {wave}")
            A(f"s_cbranch_scc1 {skip}")
        A(f"v_mov_b32 v{tmp}, {value}")
        A("s_mov_b64 exec, 1")
        A.uncounted(f"buffer_store_dword v{tmp}, off, {sr(SRD_WS, 4)}, s{soff} sc1")
        A("s_mov_b64 exec, -1")
        if skip:
            A(f"{skip}:")

    def check_words(self, load, cmp_, tok, mask=None, nap=0, alt=None):
        A = self.A
        ok, loop = self.lab("ok"), self.lab("again")
        A.wait_tok(tok)
        if mask:
            A(f"s_mov_b64 exec, {mask}")
        A(cmp_)
        A(f"s_cbranch_vccz {ok}")
        sv = A.save()
        A(f"s_mov_b32 s{S_SPIN}, {SPIN}")
        if alt:
            swap = lambda x: x.replace("v6", f"v{alt}")
            A("s_waitcnt vmcnt(0)")
            A.auto = False
            A(load)
            A("s_sleep 4")
            A(f"{loop}:")
            for l_, c_ in ((swap(load), cmp_), (load, swap(cmp_))):
                A(l_)
                A._emit_raw("s_waitcnt vmcnt(1)")
                A(c_)
                A(f"s_cbranch_vccz {ok}")
            A(f"s_sub_u32 s{S_SPIN}, s{S_SPIN}, 1")
            A(f"s_cbranch_scc0 {loop}")
            A.auto = True
            A.restore(sv)
            A(f"{ok}:")
            if mask:
                A("s_mov_b64 exec, -1")
            return
        A(f"{loop}:")
        if nap:
            A(f"s_sleep {nap}")
        A(load)
        A("s_waitcnt vmcnt(0)" if load.startswith("buffer") else "s_waitcnt lgkmcnt(0)")
        A(cmp_)
        A(f"s_cbranch_vccz {ok}")
        A(f"s_sub_u32 s{S_SPIN}, s{S_SPIN}, 1")
        A(f"s_cbranch_scc0 {loop}")
        A.restore(sv)
        A(f"{ok}:")
        if mask:
            A("s_mov_b64 exec, -1")

    def target(self, A, label, inline=False):
        if not self.opt.get("warm", 0):
            A(f"{label}:")
            return
        if inline:
            A(f"s_branch {label}")
        A(".p2align 6")
        A(f"{label}_w:")
        A("s_setpc_b64 s[0:1]")
        A(f"{label}:")

    def warm(self, A, special, own):
        if not self.opt.get("warm", 0):
            return
        n = self.name
        t = own + ([f"{n}_a_plain", f"{n}_g_plain", f"{n}_a_poll", f"{n}_a_go", f"{n}_g_go"] if special else
                   [f"{n}_a_e2", f"{n}_g_e2", f"{n}_a_late", f"{n}_a_go"])
        for w, lab in enumerate(t):
            skip = self.lab("skip")
            A(f"s_cmp_lg_u32 s{S_WAVE}, {w}")
            A(f"s_cbranch_scc1 {skip}")
            A(f"s_call_b64 s[0:1], {lab}_w")
            A(f"{skip}:")

    DBG = f"buffer_load_dword v7, v8, {sr(SRD_DBG, 4)}, 0 offen sc1"

    def arrived_load(self):
        self.A("v_and_b32 v8, 3, v0")
        self.A("v_lshlrev_b32 v8, 6, v8")
        return self.A(self.DBG)

    def arrived_check(self, tok):
        self.check_words(self.DBG, "v_cmp_gt_u32 vcc, 64, v7", tok)

    def masked(self, mask, text):
        self.A(f"s_mov_b64 exec, {mask}")
        t = self.A(text)
        self.A("s_mov_b64 exec, -1")
        return t

    def hooks(self, early_poll):
        A = self.A
        st = {}
        steal = self.opt.get("steal", 0)

        def entry(A):
            self.jitter()
            self.code_prefetch(A)
            skip = self.lab("skip")
            A(f"""
            s_lshl_b32 s{S_F1}, s{p1.S_RB}, 4
            s_add_u32 s{S_F1}, s{S_F1}, s{p1.S_CG}
            s_lshl_b32 s{S_F1}, s{S_F1}, 7
            s_add_u32 s{S_F1}, s{S_F1}, {FLAG_S}
            s_cmp_lg_u32 s{S_WAVE}, 0
            s_cbranch_scc1 {skip}
            s_and_b32 s{p1.S_T}, s2, 7
            s_lshl_b32 s{p1.S_T}, s{p1.S_T}, 1
            s_lshr_b32 s{p1.S_T2}, s2, 7
            s_add_u32 s{p1.S_T}, s{p1.S_T}, s{p1.S_T2}
            s_bfe_u32 s{p1.S_T2}, s2, 0x40003
            s_lshl_b32 s{p1.S_T2}, s{p1.S_T2}, 6
            s_add_u32 s{p1.S_T}, s{p1.S_T}, s{p1.S_T2}
            s_lshl_b32 s{p1.S_T}, s{p1.S_T}, 7
            s_add_u32 s{p1.S_T}, s{p1.S_T}, {FLAG_O}
            v_mov_b32 v10, 0
            v_lshlrev_b32 v11, 11, v0
            s_mov_b64 exec, 15
            """)
            A.uncounted(f"buffer_store_dword v10, v11, {sr(SRD_WS, 4)}, s{p1.S_T} offen sc1")
            A("s_mov_b64 exec, 1")
            A.uncounted(f"buffer_store_dword v10, off, {sr(SRD_WS, 4)}, s{S_F1} sc1")
            if steal:
                A(f"s_lshl_b32 s{p1.S_T}, s2, 7")
                A(f"s_add_u32 s{p1.S_T}, s{p1.S_T}, {FLAG_T}")
                A.uncounted(f"buffer_store_dword v10, off, {sr(SRD_WS, 4)}, s{p1.S_T} sc1")
            A("s_mov_b64 exec, -1")
            A(f"{skip}:")

        def p1bar(A, stg, role):
            if stg in (2, 4, 7):
                self.jitter()
            if stg == 1:
                self.pad("b1")

            if stg == 7:
                self.pad("p1")
            if stg != 4:
                return
            srd(A, SRD_DBG, P_DBG, 256)
            if role:
                return
            skip = self.lab("skip")
            A(f"""
            s_cmp_lg_u32 s{S_WAVE}, 0
            s_cbranch_scc1 {skip}
            s_and_b32 s3, s2, 3
            s_lshl_b32 s3, s3, 6
            v_mov_b32 v13, 1
            s_mov_b64 exec, 1
            """)
            A.uncounted(f"buffer_atomic_add v13, off, {sr(SRD_DBG, 4)}, s3 sc1")
            A("s_mov_b64 exec, -1")
            A(f"{skip}:")


        def clear_misc(A):
            A(f"""
            s_lshl_b32 s3, s{S_WAVE}, 9
            s_add_u32 s3, s3, {L_MISC}
            v_lshl_add_u32 v8, v0, 3, s3
            v_mov_b64 v[6:7], 0
            ds_write_b64 v8, v[6:7]
            ds_write_b64 v8, v[6:7] offset:4096
            """)

        def take_ticket(A, tok):
            self.arrived_check(tok)
            skip = self.lab("skip")
            A(f"""
            s_cmp_lg_u32 s{S_WAVE}, 4
            s_cbranch_scc1 {skip}
            s_and_b32 s0, s2, 7
            s_lshl_b32 s0, s0, 7
            s_add_u32 s0, s0, {FLAG_T}
            v_mov_b32 v13, 1
            s_mov_b64 exec, 1
            """)
            A.uncounted(f"buffer_atomic_add v13, off, {sr(SRD_WS, 4)}, s0 sc0 sc1")
            A("s_mov_b64 exec, -1")
            A(f"{skip}:")

        def p2step(A, t, role):
            if t in (3, 10, 17, 26):
                self.jitter()
            if t == 8 and early_poll:
                clear_misc(A)
            if t == 14 and early_poll and not role:
                st["dbg"] = self.arrived_load()
            if t in (4, 8, 12, 16, 20, 24):
                self.stamp(A, f"p2_{t}")
            if t == self.opt.get('polls', 25) - 1 and early_poll and not role:
                self.arrived_check(st["dbg"])
            if early_poll and not role and t >= 4:
                early, consts = self.setup_units()
                units, lo, hi = (early, 4, 12) if t < 12 else (consts, 12, 28)
                for u in units[len(units) * (t - lo) // (hi - lo):len(units) * (t + 1 - lo) // (hi - lo)]:
                    for x in u:
                        A(x)
            tk = self.opt.get("tk", 16)
            if steal and early_poll and role and t == tk - 7:
                st["dbg"] = self.arrived_load()
            if steal and early_poll and role and t == tk:
                take_ticket(A, st["dbg"])
            if early_poll and role and t >= 16 and t % 2 == 0 and not steal:
                for x in self.wd_dma((t - 16) // 2):
                    A(x)
            if t == self.opt.get('polls', 25) and early_poll and not role:
                st["poll"] = self.masked(POLLMASK, POLL)

        def p2seq(A, n, role, seq, free):
            dead = lambda k: max(i for i, x in enumerate(seq) if x[1] <= k) + 1
            if n in (6, 20, 36, 50):
                self.jitter()
            if n == free + 1:
                clear_misc(A)
            if role:
                if n > free and (n - free) % 2 == 1 and (n - free) // 2 < 6:
                    for x in self.wd_dma((n - free) // 2):
                        A(x)
                return
            if n == 26:
                st["dbg"] = self.arrived_load()
            if n == free:
                self.arrived_check(st["dbg"])
            early, consts = self.setup_units()
            lo, mid = dead(3), max(dead(11), dead(3) + 14)
            for units, a_, b_ in ((early, lo, mid), (consts, mid, min(56, mid + 16))):
                if a_ <= n < b_:
                    for u in units[len(units) * (n - a_) // (b_ - a_):len(units) * (n + 1 - a_) // (b_ - a_)]:
                        for x in u:
                            A(x)
            if n == self.opt.get("polls2", 50):
                st["poll"] = self.masked(POLLMASK, POLL)

        def qkv_done(A, role):
            if not role:
                self.one_lane_store(1, S_F1, wave=0)
                self.stamp(A, "rt_pubq")

        def regular_end(A, role):
            self.jitter()
            if self.opt.get("pad_p2"):
                self.pad("p2")
                if not role:
                    st["poll"] = self.masked(POLLMASK, POLL)
            if not role:
                A.wait_tok(st["poll"])
            A(f"s_branch {self.name}_{'g' if role else 'a'}_e2")

        def special_end(A, role):
            self.jitter()
            A("s_waitcnt vmcnt(0) lgkmcnt(0)")
            self.stamp(A, "q_drain")
            A("s_barrier")
            qkv_done(A, role)
            self.pad("p2")
            clear_misc(A)
            A("s_waitcnt lgkmcnt(0)")
            A("s_barrier")
            if steal and role:
                take_ticket(A, self.arrived_load())
                A("s_waitcnt vmcnt(0)")
            A(f"s_branch {self.name}_{'g' if role else 'a'}_plain")

        h = dict(stamp=self.stamp, label=self.lab, entry=entry, prologue=self.warm, target=self.target, prefetch=self.data_prefetch, p1bar=p1bar, p2step=p2step, p2seq=p2seq,
                 idle=lambda A, role: (None if steal else self.precompute_g0(A)) if role else self.precompute(A, 0),
                 qkv_done=qkv_done, regular_end=regular_end, special_end=special_end)
        if self.opt.get("p1exit"):
            h["p1exit"] = self.finish
        if self.opt.get("p2exit"):
            h["p2exit"] = self.finish
        return h

    def data_prefetch(self, A, which):
        if not self.opt.get("pf", 3) >> which & 1:
            return
        if which == 0 and self.opt.get("pfx"):
            skip, lab = self.opt.get("pfskip", 3), self.lab("skip")
            srd_tail(A, p1.SRD_G, D * F * 2)
            srd_tail(A, p1.SRD_U, D * F * 2)
            A.wait(lg=0)
            A(f"""
            s_bitcmp1_b32 s2, 2
            s_cbranch_scc1 {lab}
            s_lshr_b32 s10, s2, 3
            s_lshl_b32 s10, s10, 2
            s_and_b32 s11, s2, 3
            s_add_u32 s10, s10, s11
            s_lshl_b32 s10, s10, 3
            s_add_u32 s10, s10, s{S_WAVE}
            s_lshl_b32 s11, s10, 7
            v_lshl_add_u32 v13, v0, 17, s11
            s_mov_b32 s10, {skip * 64 * 3584}
            s_mov_b32 s11, {skip * 64 * 2688}
            s_mov_b64 exec, 0x3fff
            """)
            for d, so in ((p1.SRD_G, "s10"), (p1.SRD_U, "s10"), (p1.SRD_P, "s11"), (p1.SRD_X, "0")):
                A.uncounted(f"buffer_load_dword v11, v13, {sr(d, 4)}, {so} offen")
            A("s_mov_b64 exec, -1")
            A(f"{lab}:")
            return
        A(f"""
        s_lshl_b32 s18, s2, 3
        s_add_u32 s18, s18, s{S_WAVE}
        s_lshl_b32 s19, s18, 7
        v_lshl_add_u32 v13, v0, 18, s19
        """)
        if which == 0:
            skip = self.opt.get("pfskip", 3)
            srd_tail(A, p1.SRD_G, D * F * 2)
            srd_tail(A, p1.SRD_U, D * F * 2)
            A(f"""
            s_mul_i32 s18, s18, 896
            v_lshl_add_u32 v14, v0, 7, s18
            s_mov_b32 s18, {skip * 64 * 3584}
            s_mov_b32 s19, {skip * 64 * 2688}
            s_mov_b64 exec, {(1 << (7 - skip)) - 1}
            buffer_load_dword v11, v14, {sr(p1.SRD_X, 4)}, 0 offen offset:{128 * skip}
            buffer_load_dword v11, v13, {sr(p1.SRD_P, 4)}, s19 offen
            s_mov_b64 exec, 0x7f
            buffer_load_dword v11, v13, {sr(p1.SRD_G, 4)}, s18 offen
            buffer_load_dword v11, v13, {sr(p1.SRD_U, 4)}, s18 offen
            s_mov_b64 exec, -1
            """)
        else:
            srd(A, 4, P_WD, F * D * 2)
            srd(A, 12, P_WO, D * D * 2)
            A(f"""
            s_mov_b64 exec, 0x7f
            buffer_load_dword v11, v13, s[4:7], 0 offen
            buffer_load_dword v11, v13, s[12:15], 0 offen
            s_mov_b64 exec, -1
            """)

    def code_prefetch(self, A):
        if not self.opt.get("cpf", 1):
            return
        here, skip = self.lab("pc"), self.lab("skip")
        A(f"""
        s_cmp_lg_u32 s{S_WAVE}, 7
        s_cbranch_scc1 {skip}
        s_getpc_b64 s[0:1]
        {here}:
        s_sub_u32 s0, s0, {here}-{self.name}
        s_subb_u32 s1, s1, 0
        s_lshr_b32 s{p1.S_T}, s2, 3
        s_mul_i32 s{p1.S_T}, s{p1.S_T}, {17 * 128}
        v_lshl_add_u32 v10, v0, 7, s{p1.S_T}
        v_min_u32 v10, {self.name}_exit-{self.name}, v10
        s_mov_b64 exec, 0x1ffff
        """)
        A.uncounted("global_load_dword v11, v10, s[0:1]")
        A("v_lshlrev_b32 v10, 7, v0")
        A.uncounted(f"buffer_load_dword v11, v10, {sr(p1.SRD_GW, 4)}, 0 offen")
        A("s_mov_b64 exec, -1")
        A(f"{skip}:")

    def precompute(self, A, role):
        T, T2 = 0, 1
        A(f"""
        s_and_b32 s{T}, s2, 7
        s_lshr_b32 s{T2}, s2, 3
        s_lshl_b32 s{S_HEAD}, s{T}, 1
        s_lshr_b32 s{S_QB}, s2, 7
        s_add_u32 s{S_HEAD}, s{S_HEAD}, s{S_QB}
        s_and_b32 s{S_QB}, s{T2}, 15
        s_and_b32 s{S_GW}, s{S_WAVE}, 3
        s_lshl_b32 s{T}, s{S_WAVE}, 8
        s_add_u32 s{T}, s{T}, {M_HW}
        v_lshl_add_u32 v{VHW}, v0, 2, s{T}
        """)
        steal = self.opt.get("steal", 0)
        if role == 0:
            if not steal:
                self.out_tile(A)
            self.precompute_a(A)
        else:
            if steal:
                self.precompute_g0(A)
            self.precompute_g(A)
            if not steal:
                self.precompute_g2(A)

    def resolve_ticket(self):
        A = self.A
        skip, got, loop, post = (self.lab(x) for x in ("skip", "got", "steal", "post"))
        A(f"""
        s_cmp_lg_u32 s{S_WAVE}, 4
        s_cbranch_scc1 {skip}
        v_readfirstlane_b32 s{S_NB}, v15
        s_and_b32 s{S_MB}, s2, 7
        s_cmp_lt_u32 s{S_NB}, 28
        s_cbranch_scc1 {got}
        v_lshlrev_b32 v4, 7, v0
        v_add_u32 v4, {FLAG_T}, v4
        s_mov_b32 s{S_SPIN}, 256
        s_mov_b64 exec, 0xff
        {loop}:
        """)
        A.auto = False
        A.uncounted(f"buffer_load_dword v5, v4, {sr(SRD_WS, 4)}, 0 offen sc1")
        A._emit_raw("s_waitcnt vmcnt(0)")
        A(f"""
        v_cmp_gt_u32 vcc, 28, v5
        s_mov_b32 s0, 0x10700
        s_ff1_i32_b32 s{S_MB}, vcc_lo
        s_cmp_lt_i32 s{S_MB}, 0
        s_cbranch_scc1 {post}
        s_sub_u32 s{S_SPIN}, s{S_SPIN}, 1
        s_cbranch_scc1 {post}
        s_lshl_b32 s1, s{S_MB}, 7
        s_add_u32 s1, s1, {FLAG_T}
        v_mov_b32 v5, 1
        s_mov_b64 exec, 1
        """)
        A.uncounted(f"buffer_atomic_add v5, off, {sr(SRD_WS, 4)}, s1 sc0 sc1")
        A._emit_raw("s_waitcnt vmcnt(0)")
        A(f"""
        v_readfirstlane_b32 s{S_NB}, v5
        s_mov_b64 exec, 0xff
        s_cmp_ge_u32 s{S_NB}, 28
        s_cbranch_scc1 {loop}
        {got}:
        s_lshl_b32 s{S_MB}, s{S_MB}, 2
        s_and_b32 s0, s{S_NB}, 3
        s_add_u32 s0, s0, s{S_MB}
        s_lshr_b32 s1, s{S_NB}, 2
        s_lshl_b32 s1, s1, 8
        s_add_u32 s0, s0, s1
        s_bitset1_b32 s0, 16
        {post}:
        s_mov_b64 exec, -1
        v_mov_b32 v4, {M_TK}
        v_mov_b32 v5, s0
        """)
        A.uncounted("ds_write_b32 v4, v5")
        A.auto = True
        A(f"{skip}:")

    def read_ticket(self, nap=0):
        A = self.A
        A(f"v_mov_b32 v4, {M_TK}")
        load = "ds_read_b32 v6, v4"
        self.check_words(load, "v_cmp_eq_u32 vcc, 0, v6", A(load), nap=nap)
        A(f"""
        v_readfirstlane_b32 s0, v6
        s_and_b32 s{S_MB}, s0, 31
        s_bfe_u32 s{S_NB}, s0, 0x30008
        """)

    def out_tile(self, A):
        sg = self.opt.get("sg")
        ne = self.opt.get("ne", 32)
        if ne:
            A(f"""
            s_lshr_b32 s0, s2, 3
            s_bitcmp1_b32 s2, 0
            s_cselect_b32 s1, {ne}, 0
            s_cselect_b32 s{S_NB}, {56 - ne}, {ne}
            s_cmp_ge_u32 s0, s{S_NB}
            s_cselect_b32 s{S_NB}, 7, 0
            s_add_u32 s0, s0, s1
            s_mul_i32 s{S_MB}, s0, 9363
            s_lshr_b32 s{S_MB}, s{S_MB}, 16
            s_mul_i32 s1, s{S_MB}, 7
            s_sub_u32 s0, s0, s1
            s_or_b32 s{S_NB}, s{S_NB}, s0
            s_min_u32 s{S_MB}, s{S_MB}, 7
            s_bfe_u32 s0, s2, 0x20001
            s_lshl_b32 s0, s0, 3
            s_add_u32 s{S_MB}, s{S_MB}, s0
            """)
            return
        if sg is None:
            A(f"""
            s_and_b32 s{S_MB}, s2, 7
            s_lshl_b32 s{S_MB}, s{S_MB}, 2
            s_bfe_u32 s{S_NB}, s2, 0x20003
            s_add_u32 s{S_MB}, s{S_MB}, s{S_NB}
            s_lshr_b32 s{S_NB}, s2, 5
            """)
            return
        A(f"""
        s_add_u32 s0, s2, {7 - sg}
        s_and_b32 s0, s0, 7
        s_lshl_b32 s0, s0, 5
        s_lshr_b32 s1, s2, 3
        s_add_u32 s0, s0, s1
        s_mul_i32 s{S_MB}, s0, 9363
        s_lshr_b32 s{S_MB}, s{S_MB}, 16
        s_mul_i32 s1, s{S_MB}, 7
        s_sub_u32 s{S_NB}, s0, s1
        s_cmp_ge_u32 s0, 224
        s_cselect_b32 s{S_NB}, 7, s{S_NB}
        s_min_u32 s{S_MB}, s{S_MB}, 31
        """)

    def precompute_a(self, A):
        T, T2 = 0, 1
        a0, a1 = S_Q, S_Q + 1
        A(f"""
        s_mul_i32 s{T}, s{S_HEAD}, 28
        s_add_u32 s{T2}, s{T}, 27
        s_lshr_b32 s{a0}, s{T}, 6
        s_lshr_b32 s{a1}, s{T2}, 6
        s_sub_u32 s{a1}, s{a1}, s{a0}
        v_and_b32 v5, 1, v0
        v_mul_u32_u24 v5, s{a1}, v5
        v_bfe_u32 v6, v0, 1, 1
        v_mad_u32_u24 v5, v6, 7, v5
        v_bfe_u32 v6, v0, 2, 2
        v_lshl_add_u32 v5, v6, 4, v5
        s_lshl_b32 s{a1}, s{S_GW}, 6
        s_add_u32 s{a1}, s{a1}, s{a0}
        v_add_u32 v5, s{a1}, v5
        s_lshl_b32 s{a1}, s{S_QB}, 4
        s_lshr_b32 s{T}, s{S_HEAD}, 3
        s_add_u32 s{T}, s{T}, s{a1}
        s_add_u32 s{T}, s{T}, 14
        v_writelane_b32 v5, s{T}, 16
        v_lshlrev_b32 v5, 7, v5
        v_add_u32 v{VPOLL}, {FLAG_S}, v5
        v_lshrrev_b32 v5, 5, v0
        v_mul_u32_u24 v5, {7168 - 512}, v5
        v_add_u32 v{VV0}, v5, v{VL16}
        s_mul_i32 s{S_OO}, s{S_HEAD}, 7
        s_lshr_b32 s{S_OO}, s{S_OO}, 1
        s_lshl_b32 s{S_OO}, s{S_OO}, 9
        s_mul_i32 s{T2}, s{S_GW}, {16 * 28672}
        s_add_u32 s{T}, s{T2}, s{S_OO}
        s_add_u32 s{T}, s{T}, {WS_K}
        """)
        srd(A, SRD_K, P_WS, 16 * 28672, add=f"s{T}")
        A(f"""
        s_mul_i32 s{T}, s{S_HEAD}, 448
        s_add_u32 s{T}, s{T}, s{T2}
        s_add_u32 s{T}, s{T}, {WS_V}
        """)
        srd(A, SRD_V, P_WS, 16 * 28672, add=f"s{T}")
        A(f"s_lshl_b32 s{T2}, s{S_QB}, 2")
        for j in range(4):
            A(f"""
            s_add_u32 s{T}, s{S_GW}, {j + 1}
            s_and_b32 s{T}, s{T}, 3
            s_add_u32 s{T}, s{T}, s{T2}
            s_mul_i32 s{T}, s{T}, 28672
            s_add_u32 s{S_Q + j}, s{T}, s{S_OO}
            """)
        A(f"""
        s_add_u32 s{T}, s{T2}, s{S_GW}
        s_lshl_b32 s{S_OFF}, s{T}, 7
        s_add_u32 s{S_AG}, s{S_OFF}, {WS_G}
        s_lshl_b32 s{T}, s{T}, 4
        s_add_u32 s{T}, s{T}, s{S_HEAD}
        s_lshl_b32 s{S_OO}, s{T}, 11
        s_add_u32 s{S_OO}, s{S_OO}, {WS_O}
        s_lshl_b32 s{S_OF}, s{T}, 7
        s_add_u32 s{S_OF}, s{S_OF}, {FLAG_O}
        s_mov_b32 s{S_ME}, 0x0fffffff
        s_mov_b32 s{S_ME + 1}, 0x0fffffff
        """)

    def precompute_g0(self, A):
        T = 0
        srd(A, SRD_WD, P_WD, F * D * 2)
        A(f"""
        v_lshrrev_b32 v5, 3, v0
        v_mul_u32_u24 v6, 896, v5
        v_lshrrev_b32 v5, 2, v0
        v_and_b32 v5, 4, v5
        v_and_b32 v7, 7, v0
        v_xor_b32 v5, v5, v7
        v_lshl_add_u32 v{VDW0}, v5, 4, v6
        v_add_u32 v{VDW1}, {7168 - 1024}, v{VDW0}
        s_and_b32 s{S_GW}, s{S_WAVE}, 3
        s_mul_i32 s{S_RB}, s{S_GW}, 14336
        s_mul_i32 s{S_RA}, s{S_GW}, 12288
        s_add_u32 s{S_RA}, s{S_RA}, {L_RING}
        """)
        if not self.opt.get("steal", 0):
            self.out_tile(A)
            self.wd_offset(A)

    def wd_offset(self, A):
        A(f"""
        s_lshl_b32 s0, s{S_NB}, 7
        s_mul_i32 s{S_WDO}, s{S_GW}, {448 * 896}
        s_add_u32 s{S_WDO}, s{S_WDO}, s0
        """)

    def precompute_g(self, A):
        T, T2 = 0, 1
        srd(A, SRD_WO, P_WO, D * D * 2)
        A(f"""
        s_and_b32 s{T2}, s{S_GW}, 1
        s_lshl_b32 s{T2}, s{T2}, 3
        v_and_b32 v5, 1, v0
        v_lshlrev_b32 v5, 2, v5
        v_bfe_u32 v6, v0, 1, 1
        v_add_u32 v5, v5, v6
        v_bfe_u32 v6, v0, 4, 1
        v_lshl_add_u32 v5, v6, 1, v5
        v_and_b32 v6, 8, v0
        v_xor_b32 v5, v5, v6
        v_xor_b32 v5, s{T2}, v5
        v_lshrrev_b32 v6, 5, v0
        v_bfe_u32 v7, v0, 2, 2
        v_lshl_add_u32 v6, v6, 2, v7
        v_lshlrev_b32 v6, 7, v6
        v_lshl_add_u32 v{VTR}, v5, 3, v6
        """)

    def precompute_g2(self, A):
        T, T2 = 0, 1
        A(f"""
        s_lshl_b32 s{T}, s{S_NB}, 7
        s_mul_i32 s{S_WOO}, s{S_GW}, {112 * 896}
        s_add_u32 s{S_WOO}, s{S_WOO}, s{T}
        s_and_b32 s{T2}, s{S_GW}, 1
        s_lshl_b32 s{S_OUTO}, s{T2}, 6
        s_add_u32 s{S_OUTO}, s{S_OUTO}, s{T}
        s_lshr_b32 s{T}, s{S_GW}, 1
        s_lshl_b32 s{T2}, s{S_MB}, 1
        s_add_u32 s{T}, s{T}, s{T2}
        s_lshl_b32 s{S_GOFF}, s{T}, 7
        s_add_u32 s{S_GOFF}, s{S_GOFF}, {WS_G}
        s_mul_i32 s{T}, s{T}, {32 * 896}
        s_add_u32 s{S_OUTO}, s{S_OUTO}, s{T}
        s_mul_i32 s{S_HOFF}, s{S_MB}, {2 * 114688}
        s_mul_i32 s{T}, s{S_GW}, {28 * 1024}
        s_add_u32 s{S_HOFF}, s{S_HOFF}, s{T}
        s_add_u32 s{S_HOFF}, s{S_HOFF}, {WS_H}
        s_lshr_b32 s{T}, s{S_MB}, 1
        s_lshl_b32 s{T}, s{T}, 4
        s_mul_i32 s{T2}, s{S_GW}, 7
        s_lshr_b32 s{T2}, s{T2}, 1
        s_add_u32 s{T}, s{T}, s{T2}
        s_lshl_b32 s{T}, s{T}, 7
        s_add_u32 s{T}, s{T}, {FLAG_S}
        v_and_b32 v5, 3, v0
        v_lshl_add_u32 v{VPOLL}, v5, 7, s{T}
        """)

    def k_load(self, b):
        return [f"buffer_load_dwordx4 {vr(KB + 8 * b, 4)}, v{VK[b]}, {sr(SRD_K, 4)}, s{S_OFF} offen{LD}",
                f"buffer_load_dwordx4 {vr(KB + 8 * b + 4, 4)}, v{VK[b]}, {sr(SRD_K, 4)}, s{S_OFF} offen offset:1024{LD}"]

    def v_load(self, b):
        return [f"s_mov_b64 exec, {sr(S_ME, 2)}",
                f"buffer_load_dwordx4 {vr(VB + 8 * b, 4)}, v{VV[2 * b]}, {sr(SRD_V, 4)}, s{S_OFF} offen{LD}",
                f"buffer_load_dwordx4 {vr(VB + 8 * b + 4, 4)}, v{VV[2 * b + 1]}, {sr(SRD_V, 4)}, s{S_OFF} offen{LD}",
                "s_mov_b64 exec, -1"]

    @staticmethod
    def qk(i, half):
        b, j = (i >> 2) & 3, i & 3
        return mfma(SB + 16 * (i & 1), KB + 8 * b + 4 * half, QF + 8 * j + 4 * half, "0" if half == 0 else None)

    @staticmethod
    def pv(i, half, first=False):
        b, j = (i >> 2) & 3, i & 3
        return mfma(OA + 16 * j, VB + 8 * b + 4 * half, PB + 4 * half, "0" if first else None)

    @staticmethod
    def grp(i, g):
        r = SB + 16 * (i & 1) + 4 * g
        return [f"v_exp_f32 v{r + k}, v{r + k}" for k in range(4)] + \
               [f"v_cvt_pk_bf16_f32 v{PB + 2 * g + k}, v{r + 2 * k}, v{r + 2 * k + 1}" for k in range(2)]

    def wait_pair(self, base):
        A = self.A
        want = {f"v{base + 7}"}
        for e in A.vm:
            if e[1] & want:
                A.wait_tok(e[0])
                return

    def setup_units(self):
        R = Rec()
        for b in range(1, 4):
            R(f"v_add_u32 v{VK[b]}, {b * 28672}, v{VL16}")
        for n in range(1, 8):
            R(f"v_add_u32 v{VV[n]}, {n * 14336}, v{VV0}")
        for j in range(4):
            R(f"""
            s_add_u32 s0, s{S_GW}, {j + 1}
            s_and_b32 s0, s0, 3
            s_mul_i32 s0, s0, 12288
            s_add_u32 s0, s0, {L_OP + (j % 3) * 4096}
            v_add_u32 v{VXA + j}, s0, v{VL16}
            """)
        self.sync_addresses(M_AS, A=R, T=0)
        R(f"""
        s_and_b32 s0, s{S_HEAD}, 1
        v_lshrrev_b32 v{VMLO}, 5, v0
        v_or_b32 v{VMHI}, s0, v{VMLO}
        v_xor_b32 v{VMHI}, s0, v{VMHI}
        v_add_u32 v{VMHI}, -1, v{VMHI}
        v_xor_b32 v{VMLO}, 1, v{VMLO}
        v_and_b32 v{VMLO}, s0, v{VMLO}
        v_add_u32 v{VMLO}, -1, v{VMLO}
        v_and_b32 v{VGAD}, 31, v0
        v_lshlrev_b32 v{VGAD}, 2, v{VGAD}
        """)
        R(f"""
        v_and_b32 v{VONE}, 31, v0
        v_cmp_eq_u32 s[0:1], 28, v{VONE}
        v_mov_b32 v{VONE}, 0x3f803f80
        v_cndmask_b32 v{VONE}, 0, v{VONE}, s[0:1]
        """)
        return R.units, [[f"v_mov_b32 v{VB + r}, v{VONE}"] for r in range(32)]

    def first_loads(self):
        q = lambda j: [[f"buffer_load_dwordx4 {vr(QF + 8 * j + 4 * t, 4)}, v{VL16}, {sr(SRD_WS, 4)}, s{S_Q + j} offen"
                        f"{' offset:1024' * t}{LD}"] for t in range(2)]
        k = lambda b: [[x] for x in self.k_load(b)]
        return q(0) + k(0) + q(1) + [self.v_load(0)] + q(2) + q(3) + k(1) + \
            [[f"buffer_load_dword v{VGA}, v{VGAD}, {sr(SRD_WS, 4)}, s{S_AG} offen{LD}"]]

    def mask_q(self, j):
        self.wait_pair(QF + 8 * j)
        for r, m in ((0, VMLO), (1, VMLO), (6, VMHI), (7, VMHI)):
            self.A(f"v_and_b32 v{QF + 8 * j + r}, v{QF + 8 * j + r}, v{m}")

    def attn_main(self):
        A = self.A
        todo = [x for kt in range(1, 16) for x in (("v", kt, 4 * kt - 12), ("k", kt + 1, 4 * kt - 10)) if x[1] < 16]
        base = 0

        def loads(i, kind):
            nonlocal base
            if not todo or todo[0][2] > i or (todo[0][2] == i and todo[0][0] != kind) or issued[0] == i:
                return []
            kd, kt, _ = todo.pop(0)
            issued[0] = i
            o = []
            if kt >> 2 != base:
                base = kt >> 2
                o.append(f"s_add_u32 s{S_OFF}, s{S_OFF}, {4 * 28672}")
            return o + (self.v_load(kt & 3) if kd == "v" else self.k_load(kt & 3))

        issued = [-1]
        roll = self.opt.get("roll", 1)
        for i in range(64):
            kt, b, j = i >> 2, (i >> 2) & 3, i & 3
            if roll and i == 16:
                lab = self.lab("aloop")
                A(f"s_mov_b32 s{S_T}, 1")
                while A.vm and not A.vm[0][1]:
                    A.vm.pop(0)
                A.lg = []
                st0 = A.state()
                A(f"{lab}:")
            if roll and 32 <= i < 48:
                loads(i, "v")
                loads(i, "k")
                continue
            seq = []
            if i < 3:
                self.mask_q(i + 1)
            if i < 63:
                if j == 3:
                    self.wait_pair(KB + 8 * ((b + 1) & 3))
                seq.append(self.qk(i + 1, 0))
            seq += self.grp(i, 0)
            if i:
                seq.append(self.pv(i - 1, 1))
            seq += loads(i, "v")
            seq += self.grp(i, 1)
            if i < 63:
                seq.append(self.qk(i + 1, 1))
            seq += loads(i, "k")
            seq += self.grp(i, 2)
            for x in seq:
                A(x)
            if j == 0:
                self.wait_pair(VB + 8 * b)
            A(self.pv(i, 0, first=i < 4))
            if i == 4:
                A(f"ds_write_b32 v{VHW}, v{VHW}")
            if i in (0, 4, 8, 16):
                self.stamp(A, f"a_t{i}")
            g3 = self.grp(i, 3)
            if roll and i == 31:
                g3 = [f"s_sub_u32 s{S_T}, s{S_T}, 1"] + g3 + [f"s_cbranch_scc0 {lab}"]
            if i > 60:
                w = [f"ds_write_b128 v{VXA + j - 1}, {vr(OA + 16 * (j - 1) + 4 * q, 4)} offset:{1024 * q}" for q in range(4)]
                g3 = [g3[0], w[0], g3[1], w[1], g3[2], w[2], g3[3], w[3]] + g3[4:]
            for x in g3:
                A(x)
            if roll and i == 31:
                assert A.state() == st0, (A.state(), st0)
            if i in (2, 12, 60, 62):
                self.jitter()
            if i == 63:
                self.pad("loop")
                A(f"ds_write_b32 v{VSW}, v{VSW}")
        assert not todo
        load = f"ds_read_b32 v6, v{VSR}"
        tok = A(load)
        A(self.pv(63, 1))
        self.stamp(A, "a_loop")
        self.stamp(A, "rt_loop")
        self.check_words(load, "v_cmp_eq_u32 vcc, 0, v6", tok)
        self.stamp(A, "a_sync")
        self.jitter()

    def lds_sync(self, value_reg, cmp_, VSW=VSW, VSR=VSR):
        A = self.A
        A(f"ds_write_b32 v{VSW}, v{value_reg}")
        load = f"ds_read_b32 v6, v{VSR}"
        tok = A(load)
        self.check_words(load, cmp_, tok)

    def sync_addresses(self, base, VSW=VSW, VSR=VSR, A=None, T=S_T):
        (A or self.A)(f"""
        s_lshl_b32 s{T}, s{S_GW}, 8
        s_add_u32 s{T}, s{T}, {base}
        v_lshl_add_u32 v{VSW}, v0, 2, s{T}
        v_and_b32 v{VSR}, 3, v0
        v_lshlrev_b32 v{VSR}, 8, v{VSR}
        v_add_u32 v{VSR}, {base}, v{VSR}
        """)

    def attn_finish(self):
        A = self.A
        R, O = VB, OA + 48
        order = [3, 0, 1, 2]
        for q in order:
            for p in range(3):
                A(f"ds_read_b128 {vr(R + 16 * p + 4 * q, 4)}, v{VXA + 3} offset:{4096 * p + 1024 * q}")
        for n, q in enumerate(order):
            for k in range(4):
                A(f"v_add_f32 v{R + 4 * q + k}, v{R + 4 * q + k}, v{R + 16 + 4 * q + k}")
            for k in range(4):
                A(f"v_add_f32 v{O + 4 * q + k}, v{O + 4 * q + k}, v{R + 32 + 4 * q + k}")
            for k in range(4):
                A(f"v_add_f32 v{O + 4 * q + k}, v{O + 4 * q + k}, v{R + 4 * q + k}")
            if n == 0:
                A(f"v_mov_b32 v8, v{O + 12}")
                A(f"v_mov_b32 v9, v{O + 12}")
            if n == 1:
                A("v_permlane32_swap_b32 v8, v9")
                A("v_rcp_f32 v12, v9")
            if n == 2:
                A(f"v_med3_f32 v8, v9, s{S_LO}, v{VHI}")
                A(f"v_mul_f32 v12, v12, v{VGA}")
                A("v_cmp_neq_f32 vcc, v8, v9")
        A(f"s_cbranch_vccnz {self.name}_slow")
        A(f"{self.name}_a_fin:")
        for hf in range(2):
            for r in range(8 * hf, 8 * hf + 8):
                A(f"v_mul_f32 v{O + r}, v{O + r}, v12")
            for jj in range(4 * hf, 4 * hf + 4):
                A(f"v_cvt_pk_bf16_f32 v{PB + jj}, v{O + 2 * jj}, v{O + 2 * jj + 1}")
            if hf == 0:
                A(f"buffer_store_dwordx4 {vr(PB, 4)}, v{VL16}, {sr(SRD_WS, 4)}, s{S_OO} offen{ST}")
        A(f"""
        s_mov_b32 exec_lo, 0
        v_mov_b64 {vr(PB + 6, 2)}, 0
        s_mov_b32 exec_lo, -1
        buffer_store_dwordx4 {vr(PB + 4, 4)}, v{VL16}, {sr(SRD_WS, 4)}, s{S_OO} offen offset:1024{ST}
        """)
        self.stamp(A, "a_st")
        self.jitter()
        if self.opt.get("steal", 0):
            self.read_ticket()
        self.tail_setup(0)
        A("s_waitcnt vmcnt(0)")
        self.one_lane_store(1, S_OF, tmp=8)

    def slow_path(self):
        A = self.A
        O, Q = OA + 48, QF + 24
        A.clear()
        A(f"{self.name}_slow:")
        A("s_waitcnt vmcnt(0) lgkmcnt(0)")
        A(f"s_mul_i32 s{S_T}, s{S_GW}, {16 * 28672}")
        for d in (SRD_K, SRD_V):
            A(f"s_sub_u32 s{d}, s{d}, s{S_T}")
            A(f"s_subb_u32 s{d + 1}, s{d + 1}, 0")
            A(f"s_mov_b32 s{d + 2}, {64 * 28672}")
        for r in range(8):
            A(f"v_mov_b32 v{VB + r}, v{VONE}")
        A(f"v_mov_b32 v{VM}, 0xff800000")
        for sub in (0, 1):
            lab = self.lab("slowloop")
            A(f"s_mov_b32 s{S_OFF}, 0")
            if sub:
                for r in range(16):
                    A(f"v_mov_b32 v{O + r}, 0")
            A(f"{lab}:")
            for x in self.k_load(0) + (self.v_load(0) if sub else []):
                A(x)
            A(mfma(SB, KB, Q, "0"))
            A(mfma(SB, KB + 4, Q + 4))
            if not sub:
                for r in range(0, 16, 2):
                    A(f"v_max3_f32 v{VM}, v{SB + r}, v{SB + r + 1}, v{VM}")
            else:
                for r in range(16):
                    A(f"v_sub_f32 v{SB + r}, v{SB + r}, v{VM}")
                for g in range(4):
                    for x in self.grp(0, g):
                        A(x)
                A(mfma(O, VB, PB))
                A(mfma(O, VB + 4, PB + 4))
            A(f"s_add_u32 s{S_OFF}, s{S_OFF}, 28672")
            A(f"s_cmp_lt_u32 s{S_OFF}, {64 * 28672}")
            A(f"s_cbranch_scc1 {lab}")
            if not sub:
                A(f"v_mov_b32 v9, v{VM}")
                A(f"v_permlane32_swap_b32 v9, v{VM}")
                A(f"v_max_f32 v{VM}, v9, v{VM}")
        A(f"""
        v_mov_b32 v8, v{O + 12}
        v_mov_b32 v9, v{O + 12}
        v_permlane32_swap_b32 v8, v9
        v_rcp_f32 v12, v9
        v_mul_f32 v12, v12, v{VGA}
        s_branch {self.name}_a_fin
        """)

    @staticmethod
    def slot(ks):
        k = ks % 13
        return ("A", k) if k < 6 else ("B", k - 6)

    def wd_dma(self, ks):
        reg, sl = self.slot(ks)
        return [f"s_add_u32 m0, s{S_RA if reg == 'A' else S_RB}, {sl * 2048}",
                f"s_add_u32 s0, s{S_WDO}, {ks * 16 * 896}",
                f"buffer_load_dwordx4 v{VDW0}, {sr(SRD_WD, 4)}, s0 offen lds",
                f"buffer_load_dwordx4 v{VDW1}, {sr(SRD_WD, 4)}, s0 offen offset:1024 lds"]

    def wo_dma(self, n):
        return [f"s_add_u32 m0, s{S_RB}, {n * 2048}",
                f"s_add_u32 s{S_T}, s{S_WOO}, {n * 16 * 896}",
                f"buffer_load_dwordx4 v{VDW0}, {sr(SRD_WO, 4)}, s{S_T} offen lds",
                f"buffer_load_dwordx4 v{VDW1}, {sr(SRD_WO, 4)}, s{S_T} offen offset:1024 lds"]

    def h_load(self, ks):
        b = HB + 8 * (ks % 10)
        return [f"s_add_u32 s{S_T}, s{S_HOFF}, {ks * 1024}",
                f"buffer_load_dwordx4 {vr(b, 4)}, v{VH0}, {sr(SRD_WS, 4)}, s{S_T} offen{LD}",
                f"buffer_load_dwordx4 {vr(b + 4, 4)}, v{VH1}, {sr(SRD_WS, 4)}, s{S_T} offen{LD}"]

    def gemm_start(self, e2):
        A = self.A
        tok = None
        steal = self.opt.get("steal", 0)
        for x in (e2[0] + e2[1] + e2[2] if e2 else sum([self.wd_dma(ks) for ks in range(0 if steal else 6)], [])):
            tok = A(x)
        A("s_setprio 2")
        for ks in range(6, 6 + self.opt.get("gearly", 0)):
            for x in self.wd_dma(ks):
                A(x)
        self.precompute(A, 1)
        if not steal:
            self.arrived_load()
        A.wait_tok(tok)

    def gemm_main(self):
        A = self.A
        toks = {}
        A.clear()
        steal = self.opt.get("steal", 0)
        first = 0 if steal else 6 + self.opt.get("gearly", 0)
        for ks in range(6, first):
            for _ in range(2):
                A.nid += 1
                A.vm.append([A.nid, set()])
                toks[ks] = A.nid
        if not steal:
            A.nid += 1
            A.vm.append([A.nid, {"v7"}])
            dbgtok = A.nid

        def issue(lst, key=None):
            for x in lst:
                t = A(x)
                if t and key is not None:
                    toks[key] = t

        def trr(ks):
            reg, sl = self.slot(ks)
            a = VAWA if reg == "A" else VAWB
            b = WBUF + 8 * (ks % 10)
            o = sl * 2048
            A.wait_tok(toks.get(ks))
            issue([f"ds_read_b64_tr_b16 {vr(b, 2)}, v{a} offset:{o}",
                   f"ds_read_b64_tr_b16 {vr(b + 2, 2)}, v{a} offset:{o + 1024}",
                   f"ds_read_b64_tr_b16 {vr(b + 4, 2)}, v{a + 1} offset:{o}",
                   f"ds_read_b64_tr_b16 {vr(b + 6, 2)}, v{a + 1} offset:{o + 1024}"], ("r", ks))

        def dma(ks):
            if ks >= 13:
                A.wait_tok(toks[("r", ks - 13)])
            issue(self.wd_dma(ks), ks)

        def mm(ks):
            for jj in range(4):
                A(mfma(ACC + 16 * jj, WBUF + 8 * (ks % 10) + 4 * (jj & 1), HB + 8 * (ks % 10) + 4 * (jj >> 1),
                       "0" if ks == 0 else None))

        A(f"""
        ds_write_b32 v{VHW}, v{VHW}
        v_mov_b32 v15, v13
        v_xor_b32 v5, 64, v{VTR}
        v_add_u32 v{VAWA}, s{S_RA}, v{VTR}
        v_add_u32 v{VAWA + 1}, s{S_RA}, v5
        v_and_b32 v13, 7, v0
        v_lshlrev_b32 v13, 8, v13
        v_add_u32 v13, {M_HW}, v13
        """)
        for ks in range(0 if steal else 6):
            trr(ks)
        A(f"""
        v_mov_b32 v{GL16}, v{VL16}
        v_add_u32 v{VAWB}, s{S_RB}, v{VTR}
        v_add_u32 v{VAWB + 1}, s{S_RB}, v5
        s_lshr_b32 s{S_T}, s{S_GW}, 1
        s_mul_i32 s{S_T}, s{S_T}, 114688
        v_add_u32 v{VH0}, s{S_T}, v{GL16}
        s_sub_u32 s{S_T}, 114688, s{S_T}
        v_add_u32 v{VH1}, s{S_T}, v{GL16}
        """)
        self.sync_addresses(M_GS, GSW, GSR)
        load = "ds_read_b32 v6, v13"
        tk = A(load)
        self.check_words(load, "v_cmp_eq_u32 vcc, 0, v6", tk, nap=1)
        self.one_lane_store(2, S_F1, wave=4)
        self.stamp(A, "g_hw")
        self.jitter()
        if steal:
            self.resolve_ticket()
            self.read_ticket(nap=1)
        A(f"s_cmp_ge_u32 s{S_NB}, 7")
        A(f"s_cbranch_scc1 {self.name}_exit")
        if steal:
            self.wd_offset(A)
            for ks in range(self.opt.get("gdeep", 3)):
                dma(ks)
            first = self.opt.get("gdeep", 3)
            self.precompute_g2(A)
        if not steal:
            self.arrived_check(dbgtok)
        A(f"""
        v_and_b32 v5, 31, v0
        v_lshlrev_b32 v5, 2, v5
        buffer_load_dword v{VG}, v5, {sr(SRD_WS, 4)}, s{S_GOFF} offen{LD}
        """)
        A(f"v_add_u32 v{VPW}, s{S_RA}, v{GL16}")
        A(f"v_subrev_u32 v{VGATE}, {M_GS - M_AS}, v{GSR}")
        for jj in range(1, 4):
            A(f"""
            s_xor_b32 s{S_T}, s{S_GW}, {jj}
            s_mul_i32 s{S_T}, s{S_T}, 12288
            s_add_u32 s{S_T}, s{S_T}, {L_RING + 4096 * (jj - 1)}
            v_add_u32 v{VPR + jj - 1}, s{S_T}, v{GL16}
            """)
        self.tail_setup(1)
        deep = self.opt.get("gdeep", 3)
        for ks in range(first, 23):
            if (0 if steal else 6) <= ks - 7 < 10:
                trr(ks - 7)
            A.wait_tok(toks.get(ks - deep))
            dma(ks)
        self.stamp(A, "g_dma")
        self.jitter()
        tok = self.masked("15", POLL)
        self.check_words(POLL, "v_cmp_ne_u32 vcc, 2, v6", tok, mask="15", nap=2)
        A(f"v_sub_f32 v{VG}, 1.0, v{VG}")
        self.stamp(A, "g_flags")
        self.stamp(A, "rt_gflags")
        A("s_setprio 0")
        nh = self.opt.get("nh", 2)
        for ks in range(nh):
            issue(self.h_load(ks))
        ramp = 28 - NDEF - (NDEF - nh)
        for ks in range(28 - NDEF):
            mm(ks)
            if ks in (3, 11):
                self.jitter()
            for _ in range(2 if ks >= ramp else 1):
                if nh < 28:
                    assert nh - 10 <= ks
                    issue(self.h_load(nh))
                    nh += 1
            if ks + 10 < 28:
                trr(ks + 10)
            if 1 <= ks <= 5:
                dma(ks + 22)
        assert nh == 28
        A.wait_tok(toks[("r", 25)])
        for n in range(7):
            issue(self.wo_dma(n))
        A("s_waitcnt lgkmcnt(0)")
        self.stamp(A, "g_pre")
        self.jitter()
        self.stamp(A, "rt_gpre")
        load = f"ds_read_b32 v6, v{VGATE}"
        tk = A(load)
        self.check_words(load, "v_cmp_eq_u32 vcc, 0, v6", tk, nap=2)
        wr = []
        for jj in (1, 2, 3, 0):
            for n, ks in enumerate(range(28 - NDEF, 28)):
                A(mfma(ACC + 16 * jj, WBUF + 8 * (ks % 10) + 4 * (jj & 1), HB + 8 * (ks % 10) + 4 * (jj >> 1)))
                if n >= min(2, NDEF - 5) and wr:
                    A(wr.pop(0))
            assert not wr
            wr = [f"ds_write_b128 v{VPW}, {vr(ACC + 16 * jj + 4 * q, 4)} offset:{4096 * (jj - 1) + 1024 * q}" for q in range(4)]
            if jj == 3:
                wr.append(f"ds_write_b32 v{GSW}, v{GSW}")
        self.stamp(A, "g_loop")
        self.jitter()
        self.stamp(A, "rt_gloop")
        load = f"ds_read_b32 v6, v{GSR}"
        self.check_words(load, "v_cmp_eq_u32 vcc, 0, v6", A(load))
        for q in range(4):
            for jj in range(1, 4):
                A(f"ds_read_b128 {vr(ACC + 16 * jj + 4 * q, 4)}, v{VPR + jj - 1} offset:{1024 * q}")
        for q in range(4):
            r0 = (4 * q, 4 * q + 2)
            for r in r0:
                A(f"v_pk_add_f32 {vr(ACC + 16 + r, 2)}, {vr(ACC + 16 + r, 2)}, {vr(ACC + 32 + r, 2)}")
            for r in r0:
                A(f"v_pk_add_f32 {vr(ACC + r, 2)}, {vr(ACC + r, 2)}, {vr(ACC + 48 + r, 2)}")
            for r in r0:
                A(f"v_pk_add_f32 {vr(ACC + r, 2)}, {vr(ACC + r, 2)}, {vr(ACC + 16 + r, 2)}")
            for r in r0:
                A(f"v_pk_mul_f32 {vr(ACC + r, 2)}, {vr(ACC + r, 2)}, {vr(VG, 2)} op_sel_hi:[1,0]")

    def tail_setup(self, role):
        A = self.A
        A(f"""
        s_lshl_b32 s{S_T}, s{S_MB}, 5
        s_add_u32 s{S_T}, s{S_T}, s{S_GW}
        s_lshl_b32 s{S_MO}, s{S_T}, 7
        s_add_u32 s{S_MO}, s{S_MO}, {FLAG_O + role * 2048}
        v_lshlrev_b32 v{VTP if role else 5}, 9, v0
        s_lshl_b32 s{10 if role else S_T3}, s{S_T}, 11
        s_add_u32 s{10 if role else S_T3}, s{10 if role else S_T3}, {WS_O + role * 32768}
        s_lshl_b32 s{11 if role else S_T2}, s{S_GW}, 11
        """)
        if role == 1:
            srd(A, SRD_OUT, P_OUT, S * D * 2)
            A(f"""
            s_lshr_b32 s{S_T}, s{S_GW}, 1
            s_lshl_b32 s{S_OFF}, s{S_T}, 15
            s_add_u32 s{S_OFF}, s{S_OFF}, {L_O}
            v_add_u32 v14, s{S_OFF}, v{GL16}
            s_mul_i32 s{S_T}, s{S_GW}, 2560
            s_add_u32 s{S_T}, s{S_T}, {L_TR}
            v_and_b32 v7, 31, v0
            v_mul_u32_u24 v7, 80, v7
            v_lshrrev_b32 v8, 5, v0
            v_lshl_add_u32 v7, v8, 5, v7
            v_add_u32 v7, s{S_T}, v7
            v_lshrrev_b32 v4, 2, v0
            v_and_b32 v15, 3, v0
            v_lshlrev_b32 v15, 4, v15
            v_mul_u32_u24 v8, 80, v4
            v_add_u32 v8, v8, v15
            v_add_u32 v8, s{S_T}, v8
            v_mul_u32_u24 v4, 896, v4
            v_add_u32 v{VOUT}, v4, v15
            s_add_u32 s{S_OFF}, s{S_OUTO}, {16 * 896}
            """)

    def tail(self, role):
        A = self.A
        L16 = GL16 if role else VL16
        load = f"buffer_load_dword v6, v{VTP if role else 5}, {sr(SRD_WS, 4)}, s{S_MO} offen sc1"
        if role == 1:
            A("s_waitcnt vmcnt(0)")
        tok = self.masked("15", load)
        A.wait(lg=0)
        self.stamp(A, "t_bar0")
        A("s_barrier")
        self.stamp(A, "t_bar1")
        self.jitter()
        self.check_words(load, "v_cmp_ne_u32 vcc, 1, v6", tok, mask="15", alt=4 if self.opt.get("pp", 0) else None)
        self.stamp(A, "t_flag")
        self.jitter()
        self.stamp(A, "rt_tflag")
        toks = []
        for step in range(4):
            A(f"s_add_u32 m0, s{11 if role else S_T2}, {L_O + role * 32768 + step * 8192}")
            A(f"s_add_u32 s{S_T}, s{10 if role else S_T3}, {step * 8192}")
            for q in range(2):
                t = A(f"buffer_load_dwordx4 v{L16}, {sr(SRD_WS, 4)}, s{S_T} offen offset:{1024 * q} sc1 lds")
            toks.append(t)
        A.wait_tok(toks[0])
        A("s_barrier")
        self.stamp(A, "t_odata")
        self.jitter()
        self.stamp(A, "rt_odata")
        if role == 0:
            for step in range(1, 4):
                A.wait_tok(toks[step])
                A("s_barrier")
            return

        def rd(k):
            o = (28 * (k >> 1) + 16 * (k & 1)) * 128
            b = k % 4
            return [f"ds_read_b128 {vr(TB_ + 4 * b, 4)}, v14 offset:{k * 1024}",
                    f"ds_read_b64_tr_b16 {vr(TA_ + 4 * b, 2)}, v{VTR} offset:{o}",
                    f"ds_read_b64_tr_b16 {vr(TA_ + 4 * b + 2, 2)}, v{VTR} offset:{o + 1024}"]

        for k in range(3):
            for x in rd(k):
                A(x)
        for k in range(32):
            A(mfma(ACC, TA_ + 4 * (k % 4), TB_ + 4 * (k % 4)))
            if k + 3 < 32:
                if (k + 3) % 8 == 0:
                    A.wait_tok(toks[(k + 3) // 8])
                    A("s_barrier")
                for x in rd(k + 3):
                    A(x)
        self.stamp(A, "t_mm")
        self.jitter()
        for hf in range(2):
            for jj in range(4):
                A(f"v_cvt_pk_bf16_f32 v{TA_ + 4 * hf + jj}, v{ACC + 8 * hf + 2 * jj}, v{ACC + 8 * hf + 2 * jj + 1}")
            A(f"ds_write_b128 v7, {vr(TA_ + 4 * hf, 4)} offset:{16 * hf}")
        for q in range(2):
            A(f"ds_read_b128 {vr(TB_ + 4 * q, 4)}, v8 offset:{16 * 80 * q}")
        for q in range(2):
            A(f"buffer_store_dwordx4 {vr(TB_ + 4 * q, 4)}, v{VOUT}, {sr(SRD_OUT, 4)}, s{S_OFF if q else S_OUTO} offen{('', ' sc1', ' nt', ' sc0 sc1')[self.opt.get('ost', 0)]}")

    def finish(self):
        A = self.A
        if self.opt.get("pad_end"):
            A("s_waitcnt vmcnt(0)")
            skip = self.lab("skip")
            if "padwg" in self.opt:
                A(f"s_cmp_lg_u32 s2, {self.opt['padwg']}")
                A(f"s_cbranch_scc1 {skip}")
            self.pad("end")
            A(f"{skip}:")
        if self.stamp.enabled:
            A("s_waitcnt vmcnt(0)")
            self.stamp(A, "t_end")
            self.stamp(A, "rt_end")
            self.stamp.flush(A)
        A("s_endpgm")

    def build(self):
        A, name = self.A, self.name
        A(f".globl {name}\n.p2align 8\n.type {name},@function\n{name}:")
        A("s_cmp_ge_u32 s2, 256")
        A(f"s_cbranch_scc1 {name}_exit")
        if any(k.startswith("pad_") for k in self.opt):
            A("s_memrealtime s[96:97]")
        self.stamp(A, "rt0")
        self.stamp(A, "t0")
        p1.SX = self.opt.get('sx')
        p1.decode(A)
        A(f"s_cmp_ge_u32 s{p1.S_CG}, 14")
        A(f"s_cbranch_scc1 {name}_q")
        st0 = A.save()
        p1.programs(A, "KV", ST + self.opt.get("ntkv", 0) * " nt", self.hooks(True), self.opt)
        A.restore(st0)
        A(f"{name}_q:")
        p1.programs(A, "Q", ST + self.opt.get("ntq", 0) * " nt", self.hooks(False), self.opt)
        if self.opt.get("p1exit") or self.opt.get("p2exit"):
            for f in self.late:
                A.clear()
                f(A)
            A(f"{name}_exit:")
            A("s_endpgm")
            pads = A.fix_hazards()
            return A.text(), kernel_desc(name), pads
        e2 = p1.final_epilogue(ST + self.opt.get("ntkv", 0) * " nt", self.opt.get("skew", 0))
        A.clear()
        self.target(A, f"{name}_a_plain")
        tok = self.arrived_load()
        for x in sum(sum(self.setup_units(), []), []):
            A(x)
        self.arrived_check(tok)
        A(f"s_branch {name}_a_poll")
        self.target(A, f"{name}_a_late")
        if self.opt.get("mid", 1):
            tok = self.masked(POLLMASK, POLL)
            for x in e2[0]:
                A(x)
            A.wait_tok(tok)
            self.masked(POLLMASK, "v_cmp_eq_u32 vcc, 0, v6")
            A(f"s_cbranch_vccz {name}_a_mid")
            for x in e2[1] + e2[2]:
                A(x)
        else:
            for x in e2[0] + e2[1] + e2[2]:
                A(x)
        self.target(A, f"{name}_a_poll", inline=True)
        tok = self.masked(POLLMASK, POLL)
        self.check_words(POLL, "v_cmp_eq_u32 vcc, 0, v6", tok, mask=POLLMASK)
        self.stamp(A, "a_flags")
        self.stamp(A, "rt_aflags")
        A(f"s_mov_b32 s{S_OFF}, 0")
        for x in sum(self.first_loads(), []):
            A(x)
        A(f"ds_write_b32 v{VHW}, v{VHW}")
        A(f"s_branch {name}_a_go")
        plain = A.save()
        if self.opt.get("mid", 1):
            A.clear()
            A(f"{name}_a_mid:")
            self.stamp(A, "a_flags")
            self.stamp(A, "rt_aflags")
            A(f"s_mov_b32 s{S_OFF}, 0")
            fl = self.first_loads()
            for k, x in enumerate(e2[1]):
                if k % (len(e2[1]) // 15) == 0 and fl:
                    for y in fl.pop(0):
                        A(y)
                A(x)
            assert not fl
            for x in e2[2]:
                A(x)
            A(f"s_branch {name}_a_go")
        A.clear()
        self.target(A, f"{name}_a_e2")
        self.masked(POLLMASK, "v_cmp_eq_u32 vcc, 0, v6")
        A(f"s_cbranch_vccnz {name}_a_late")
        self.stamp(A, "a_flags")
        self.stamp(A, "rt_aflags")
        A(f"s_mov_b32 s{S_OFF}, 0")
        work = e2[0] + e2[1]
        fl = self.first_loads()
        step = min(self.opt.get("lstep", 6), len(work) // 15)
        for k, x in enumerate(work):
            if k % step == 0 and fl:
                for y in fl.pop(0):
                    A(y)
            A(x)
        assert not fl
        for x in e2[2]:
            A(x)
        self.stamp(A, "a_e2b")
        assert [x for x in A.state()[0] if x] == [tuple(sorted(e[1])) for e in plain[0]]
        A.restore(plain)
        A.lg = []
        self.target(A, f"{name}_a_go", inline=True)
        A(f"s_mov_b32 s{S_LO}, {f32(2.0 ** -30)}")
        A(f"v_mov_b32 v{VHI}, {f32(2.0 ** 30)}")
        self.mask_q(0)
        A(self.qk(0, 0))
        A(self.qk(0, 1))
        A("s_setprio 1")
        self.stamp(A, "a_first")
        self.stamp(A, "rt_afirst")
        self.attn_main()
        self.attn_finish()
        self.stamp(A, "a_pub")
        self.stamp(A, "rt_pub")
        A(f"s_cmp_ge_u32 s{S_NB}, 7")
        A(f"s_cbranch_scc1 {name}_a_done")
        self.tail(0)
        A(f"{name}_a_done:")
        self.finish()
        A.clear()
        self.target(A, f"{name}_g_plain")
        self.gemm_start(None)
        A(f"s_branch {name}_g_go")
        A.clear()
        self.target(A, f"{name}_g_e2")
        self.gemm_start(e2)
        self.target(A, f"{name}_g_go", inline=True)
        self.gemm_main()
        self.tail(1)
        self.finish()
        self.slow_path()
        k = 0
        while k < len(self.late):
            A.clear()
            self.late[k](A)
            k += 1
        A(f"{name}_exit:")
        A("s_endpgm")
        pads = A.fix_hazards()
        return A.text(), kernel_desc(name), pads


HEADER = open("gated_mix__mha_block__glu_gated_geglu__prompt.s.ref").read().split("; Override")[0]


DOC = """
;  nobody looks at a word before all 256 are counted.  All polls are bounded.
"""


def main():
    diag = "diag" in sys.argv
    name = "gated_mix__mha_block__glu_gated_geglu__prompt_kernel"
    sets = {"diag": "rt0 t0 p1_pass2 a_flags a_first a_loop a_pub t_flag t_end rt_end g_hw g_dma g_flags g_pre g_loop",
            "diagt": "rt0 t0 a_first a_loop a_sync a_st a_pub t_bar0 t_bar1 t_flag t_odata t_mm t_end g_loop rt_end",
            "diagp": "rt0 t0 p1_pass1 p2_4 p2_8 p2_16 p1_pass2 a_flags a_first a_loop t_end rt_end",
            "diagb": "rt0 t0 b2_pre b2_vm b2_post b3_pre b3_vm t_end rt_end",
            "diagc": "rt0 t0 b5_pre b5_vm b5_post b7_pre b7_vm t_end rt_end",
            "diagd": "rt0 t0 p2_4 c7_pre c7_vm c7_post p2_8 t_end rt_end",
            "diage": "rt0 t0 c9_pre c9_vm c9_post c15_pre c15_vm t_end rt_end",
            "diagr": "rt0 t0 p1_first p1_pass1 rt_first rt_pass1 t_end rt_end",
            "diagz": "rt0 rt_end",
            "diagrt": "rt0 rt_first rt_pass1 rt_pubq rt_pass2 rt_aflags rt_afirst rt_loop rt_pub rt_tflag rt_odata rt_end rt_gflags rt_gpre",
            "diags": "rt0 t0 p1_pass1 p1_pass2 rt_pass1 rt_pass2 p2_8 t_end rt_end",
            "diaga": "rt0 t0 p1_pass2 a_flags a_e2b a_first a_t0 a_t4 a_t8 a_t16 t_end rt_end",
            "diagru": "rt0 rtkarg rtdma0 rtpro rtvm0 rt_first rtb1 rt_end",
            "diagrv": "rt0 rtb1 rtb2 rtb3 rtb4 rtb5 rtb6 rt_end",
            "diagsp": "rt0 t0 p1_pass1 p1_pass2 q_2b q_epi q_drain t_end rt_end",
            "diagx": "rt0 t0 p1_first p1_pass2 rt_first rt_pass2 a_first a_loop rt_afirst rt_loop rt_end",
            "diagzz": "rt0 rt_end rt_first rt_pass1 rt_pass2",
            "diagq": "rt0 t0 karg dma0 p1_first p1_pass1 p2_4 t_end rt_end"}
    which = [a for a in sys.argv if a in sets]
    diag = bool(which)
    st = Stamps(diag, sets[which[0]].split() if diag else None)
    opt = {a.split("=")[0]: int(a.split("=")[1]) for a in sys.argv[1:] if "=" in a}
    g = Gen(name, st, opt)
    code, kd, pads = g.build()
    print(HEADER.rstrip())
    print(DOC.strip())
    print("; @launch grid=(256,1,1) block=(512,1,1) lds=163840")
    if diag:
        print("; stamps: " + " ".join(st.only))
    print('.amdgcn_target "amdgcn-amd-amdhsa--gfx950"\n.text')
    print(code)
    print('.section .rodata,"a"\n.p2align 6')
    print(kd)


if __name__ == "__main__":
    main()
```

```python
from common import *

XF, ACC1, ACC2, WB = 144, 16, 64, 96
VDX0, VDX1, VDP, VDG, VDU = 120, 121, 122, 123, 124
VAX, VAP, VAG, VAGX, VL16, VSTV, VNC1 = 125, 129, 130, 132, 134, 135, 15
PK = 136
SRD_X, SRD_P, SRD_G, SRD_U, SRD_GW = 32, 36, 40, 44, 48
S_RB, S_CG, S_XO, S_PO, S_GO, S_W1K, S_W2K, S_T, S_RT, S_C, S_ST1, S_STH, S_T2, S_QS = range(52, 66)
S_ACT = 0
LX, LP, LQ = 0, 65536, 98304


SX = None


def decode(A, first=None, pos=1):
    if first and pos == 0:
        first(A)
    load_args(A, {SRD_X: 0, SRD_WS: 80, SRD_P: 8, SRD_G: 32, SRD_U: 40, SRD_GW: 56})
    if first and pos == 1:
        first(A)
    A(f"""
    v_lshrrev_b32 v1, 6, v0
    v_and_b32 v0, 63, v0
    v_readfirstlane_b32 s{S_WAVE}, v1
    """)
    if SX is None:
        A(f"""
        s_bfe_u32 s{S_T}, s2, 0x20001
        s_lshl_b32 s{S_T}, s{S_T}, 2
        s_lshr_b32 s{S_CG}, s2, 6
        s_add_u32 s{S_CG}, s{S_CG}, s{S_T}
        """)
    else:
        A(f"""
        s_add_u32 s{S_T}, s2, {7 - SX}
        s_and_b32 s{S_T}, s{S_T}, 7
        s_lshl_b32 s{S_T}, s{S_T}, 1
        s_lshr_b32 s{S_CG}, s2, 7
        s_add_u32 s{S_CG}, s{S_CG}, s{S_T}
        """)


def x_addresses(A):
    if SX is None:
        A(f"""
        s_bfe_u32 s{S_RB}, s2, 0x30003
        s_bitcmp1_b32 s2, 0
        s_cselect_b32 s{S_T}, 8, 0
        s_or_b32 s{S_RB}, s{S_RB}, s{S_T}
        """)
    else:
        A(f"s_bfe_u32 s{S_RB}, s2, 0x40003")
    A(f"""
    v_lshrrev_b32 v2, 3, v0
    v_and_b32 v3, 7, v0
    v_lshrrev_b32 v5, 4, v0
    s_lshl_b32 s{S_T}, s{S_RB}, 3
    v_mul_u32_u24 v6, 896, v2
    s_add_u32 s{S_T}, s{S_T}, s{S_WAVE}
    v_xor_b32 v7, v3, v5
    s_mul_i32 s{S_XO}, s{S_T}, {16 * 896}
    v_lshl_add_u32 v{VDX0}, v7, 4, v6
    s_lshl_b32 s{S_W2K}, s{S_WAVE}, 11
    v_xor_b32 v{VDX1}, 64, v{VDX0}
    v_add_u32 v{VDX1}, {8 * 896 - 1024}, v{VDX1}
    """)


def w_addresses(A, special):
    A(f"""
    v_and_b32 v4, 1, v5
    s_lshl_b32 s{S_T}, s{S_WAVE}, 3
    v_add_u32 v6, s{S_T}, v2
    s_lshl_b32 s{S_W1K}, s{S_WAVE}, 10
    v_mul_u32_u24 v8, 2688, v6
    """)
    if M16:
        A(f"""
        s_lshr_b32 s{S_T}, s{S_T}, 1
        s_and_b32 s{S_T}, s{S_T}, 4
        v_lshl_or_b32 v7, v4, 1, s{S_T}
        v_xor_b32 v7, v3, v7
        v_lshl_add_u32 v{VDP}, v7, 4, v8
        """)
        if special and M16 == 1:
            A(f"""
            v_lshlrev_b32 v9, 2, v4
            v_xor_b32 v9, v3, v9
            v_lshl_add_u32 v{VDG}, v9, 4, v8
            """)
        return
    A(f"""
    v_lshlrev_b32 v7, 2, v4
    v_xor_b32 v7, v3, v7
    v_lshl_add_u32 v{VDP}, v7, 4, v8
    """)


def gu_dma_addresses(A):
    if M16:
        A(f"""
        v_mul_u32_u24 v8, 3584, v6
        v_lshl_add_u32 v{VDG}, v7, 4, v8
        """)
        return
    A(f"""
    v_lshlrev_b32 v7, 1, v4
    v_xor_b32 v7, v3, v7
    v_mul_u32_u24 v8, 3584, v6
    v_lshl_add_u32 v{VDG}, v7, 4, v8
    v_xor_b32 v{VDU}, 64, v{VDG}
    """)


def pass2_dma_addresses(A):
    A(f"""
    s_lshl_b32 s10, s{S_WAVE}, 6
    s_and_b32 s10, s10, 64
    v_xor_b32 v{VDG}, s10, v{VDG}
    v_xor_b32 v{VDU}, 64, v{VDG}
    """)


def read_addresses16(A, special):
    A(f"""
    v_and_b32 v2, 15, v0
    v_lshrrev_b32 v3, 4, v0
    s_lshl_b32 s{S_T}, s{S_RT}, 12
    v_lshl_add_u32 v4, v2, 7, s{S_T}
    v_lshrrev_b32 v5, 1, v2
    v_xor_b32 v5, v5, v3
    v_lshl_add_u32 v{VAX}, v5, 4, v4
    v_xor_b32 v{VAX + 1}, 64, v{VAX}
    """)
    A(f"""
    v_and_b32 v2, 3, v0
    v_bfe_u32 v4, v0, 2, 2
    v_lshl_add_u32 v5, v3, 3, v4
    v_bfe_u32 v6, v0, 3, 2
    s_lshl_b32 s{S_T}, s{S_C}, 1
    v_xor_b32 v6, s{S_T}, v6
    v_lshlrev_b32 v6, 5, v6
    v_lshl_add_u32 v5, v5, 7, v6
    v_lshl_add_u32 v6, v2, 3, v5
    v_add_u32 v{VAP}, {LP}, v6
    v_xor_b32 v{VAP1}, 32, v{VAP}
    """)
    if not special:
        A(f"""
        v_lshrrev_b32 v6, 1, v2
        v_and_b32 v7, 1, v2
        v_lshl_or_b32 v6, v7, 1, v6
        v_lshl_add_u32 v6, v6, 3, v5
        """)
    A(f"""
    v_add_u32 v{VAG}, {LQ}, v6
    v_xor_b32 v{VAG + 1}, 32, v{VAG}
    """)
    if M16 == 2:
        A(f"""
        v_mov_b32 v{VAGX}, v6
        v_xor_b32 v{VAGX + 1}, 32, v6
        v_mov_b32 v{VNC1}, {f32(-GELU_C1)}
        """)
        return
    A(f"""
    v_lshrrev_b32 v3, 5, v0
    v_bfe_u32 v5, v0, 4, 1
    v_bfe_u32 v6, v0, 3, 1
    v_lshl_add_u32 v7, v3, 4, v4
    v_lshlrev_b32 v7, 7, v7
    s_lshl_b32 s{S_T}, s{S_C}, 3
    """)
    if special:
        A(f"""
        v_lshl_add_u32 v8, v5, 2, v2
        v_add_u32 v8, s{S_T}, v8
        v_lshlrev_b32 v9, 3, v6
        v_xor_b32 v8, v8, v9
        v_lshl_add_u32 v{VAGX}, v8, 3, v7
        v_add_u32 v{VAGX + 1}, 8192, v{VAGX}
        """)
        return
    A(f"""
    v_add_u32 v8, s{S_T}, v2
    v_lshlrev_b32 v9, 2, v6
    v_xor_b32 v8, v8, v9
    v_lshlrev_b32 v9, 3, v5
    v_xor_b32 v8, v8, v9
    v_lshl_add_u32 v7, v5, 13, v7
    v_lshl_add_u32 v{VAGX}, v8, 3, v7
    v_xor_b32 v{VAGX + 1}, 32, v{VAGX}
    v_mov_b32 v{VNC1}, {f32(-GELU_C1)}
    """)


def read_addresses(A):
    A(f"""
    v_and_b32 v2, 31, v0
    v_lshrrev_b32 v3, 5, v0
    s_lshl_b32 s{S_T}, s{S_RT}, 12
    v_lshl_add_u32 v4, v2, 7, s{S_T}
    v_bfe_u32 v5, v2, 1, 3
    v_xor_b32 v5, v5, v3
    """)
    for s in range(4):
        A(f"v_xor_b32 v6, {2 * s}, v5")
        A(f"v_lshl_add_u32 v{VAX + s}, v6, 4, v4")
    A(f"""
    v_and_b32 v2, 3, v0
    v_bfe_u32 v4, v0, 2, 2
    v_bfe_u32 v5, v0, 4, 1
    v_bfe_u32 v6, v0, 3, 1
    v_lshl_add_u32 v7, v3, 3, v4
    v_lshlrev_b32 v7, 7, v7
    s_lshl_b32 s{S_T}, s{S_C}, 3
    v_lshl_add_u32 v8, v5, 2, v2
    v_add_u32 v8, s{S_T}, v8
    v_lshlrev_b32 v9, 3, v6
    v_xor_b32 v8, v8, v9
    v_lshl_add_u32 v8, v8, 3, v7
    v_add_u32 v{VAP}, {LP}, v8
    """)


def gu_addresses(A, special):
    if special:
        A(f"""
        v_add_u32 v{VAG}, {LQ}, v8
        v_add_u32 v{VAG + 1}, {LQ + 8192}, v8
        v_mov_b32 v{VAGX}, v8
        v_add_u32 v{VAGX + 1}, 8192, v8
        """)
        return
    A(f"""
    v_add_u32 v8, s{S_T}, v2
    v_lshlrev_b32 v9, 2, v6
    v_xor_b32 v8, v8, v9
    v_lshlrev_b32 v9, 3, v5
    v_xor_b32 v8, v8, v9
    v_lshl_add_u32 v7, v5, 13, v7
    v_lshl_add_u32 v{VAGX}, v8, 3, v7
    v_xor_b32 v8, 4, v8
    v_lshl_add_u32 v{VAGX + 1}, v8, 3, v7
    v_add_u32 v{VAG}, {LQ}, v{VAGX}
    v_add_u32 v{VAG + 1}, {LQ}, v{VAGX + 1}
    v_mov_b32 v{VNC1}, {f32(-GELU_C1)}
    """)


def dma(m0base, m0s, voff, srd_, sbase, soff, imm=0, setm0=True):
    out = []
    if setm0:
        out.append(f"s_add_u32 m0, s{m0s}, {m0base}")
    if soff:
        out.append(f"s_add_u32 s{S_T2}, s{sbase}, {soff}")
    out.append(f"buffer_load_dwordx4 v{voff}, {sr(srd_, 4)}, s{S_T2 if soff else sbase} offen{' offset:%d' % imm if imm else ''} lds")
    return out


def stage_dma(stage, special, up=0):
    sl = stage % 4
    g = []
    g.append(dma(LX + sl * 16384 + up * 8192, S_W2K, VDX0, SRD_X, S_XO, stage * 128 + up * 64 * 896) +
             [f"buffer_load_dwordx4 v{VDX1}, {sr(SRD_X, 4)}, s{S_T2 if stage or up else S_XO} offen offset:1024 lds"])
    k0 = stage * 64 + up * 32
    g.append(dma(LP + sl * 8192 + up * 4096, S_W1K, VDP, SRD_P, S_PO, k0 * 2688))
    q = LQ + sl * 16384 + up * 4096
    if special:
        g.append(dma(q, S_W1K, VDP, SRD_P, S_PO, k0 * 2688 + 128))
    else:
        g.append(dma(q, S_W1K, VDG, SRD_G, S_GO, k0 * 3584))
        g.append(dma(q + 8192, S_W1K, VDG if M16 else VDU, SRD_U, S_GO, k0 * 3584))
    return g


P2LOC = {0: (LX, 3), 1: (LQ, 3), 2: (LX, 0), 3: (LQ, 0), 4: (LX, 1), 5: (LQ, 1), 6: (LX, 2)}


def p2_dma(ch, special, up=0):
    reg, sl = P2LOC[ch]
    base = reg + sl * 16384 + up * 4096
    k0 = ch * 64 + up * 32
    if special:
        v = VDG if M16 == 1 else VDP
        return [dma(base, S_W1K, v, SRD_P, S_PO, k0 * 2688 + 256),
                dma(base + 8192, S_W1K, v, SRD_P, S_GO, k0 * 2688)]
    return [dma(base, S_W1K, VDG, SRD_G, S_GO, k0 * 3584 + 128),
            dma(base + 8192, S_W1K, VDG if M16 == 2 else VDU, SRD_U, S_GO, k0 * 3584 + 128)]


def tr_reads(dst, addr, off):
    return [f"ds_read_b64_tr_b16 {vr(dst, 2)}, v{addr} offset:{off}",
            f"ds_read_b64_tr_b16 {vr(dst + 2, 2)}, v{addr} offset:{off + 512}"]


M16 = 1
VAP1 = 127
LA1, LA2 = 1, 1


def wb1(t):
    return WB + 12 * (t & 1) if LA1 == 1 else (WB + 12, ACC2, WB)[t % 3]


def reads1(t, special=False):
    ch, s = divmod(t, 4)
    sl = ch % 4
    b = wb1(t)
    if M16:
        s32, nh = s >> 1, s & 1
        x = [] if nh else [f"ds_read_b128 {vr(XF + 4 * (t + th), 4)}, v{VAX + s32} offset:{LX + sl * 16384 + th * 2048}"
                           for th in range(2)]
        if special:
            return (x + tr_reads(b, VAP1 if nh else VAP, sl * 8192 + s32 * 4096),
                    tr_reads(b + 4, VAG + nh, sl * 16384 + s32 * 4096), [])
        return (x + tr_reads(b, VAP1 if nh else VAP, sl * 8192 + s32 * 4096),
                tr_reads(b + 4, VAG, sl * 16384 + s32 * 4096 + nh * 8192),
                tr_reads(b + 8, VAG + 1, sl * 16384 + s32 * 4096 + nh * 8192))
    return ([f"ds_read_b128 {vr(XF + 4 * t, 4)}, v{VAX + s} offset:{LX + sl * 16384}"] +
            tr_reads(b, VAP, sl * 8192 + s * 2048),
            tr_reads(b + 4, VAG, sl * 16384 + s * 2048),
            tr_reads(b + 8, VAG + 1, sl * 16384 + s * 2048))


def koff2(s):
    if M16 == 2:
        return (s >> 1) * 4096 + (s & 1) * 8192
    return (s >> 1) * 4096 + (s & 1) * 1024 if M16 else s * 2048


def wb2(t, ntile):
    if ntile == 1:
        return WB + 4 * (t % 6)
    return WB + 12 * (t & 1) if LA2 == 1 else WB + 8 * (t % 3)


def reads2(t, ntile, img=0):
    if ntile == 1:
        ch, s = divmod(t % 28, 4)
        reg, sl = P2LOC[ch]
        if M16 == 2:
            return [tr_reads(wb2(t, 1), (VAGX if reg == LX else VAG) + (s & 1), sl * 16384 + (s >> 1) * 4096 + t // 28 * 8192)]
        return [tr_reads(wb2(t, 1), (VAGX if reg == LX else VAG) + t // 28, sl * 16384 + koff2(s))]
    ch, s = divmod(t, 4)
    reg, sl = P2LOC[ch]
    a = VAGX if reg == LX else VAG
    b = wb2(t, ntile)
    return [tr_reads(b + 4 * e, a + e, sl * 16384 + koff2(s)) for e in range(ntile)]


def epi_gu(acc, pk, soff_expr, st, m16=False):
    o = []
    T = [1, 2, 3, 4]
    for half in range(2):
        g = [acc + 4 * half + i for i in range(4)]
        u = [acc + 8 + 4 * half + i for i in range(4)]
        o += [f"v_mul_f32 v{T[i]}, v{g[i]}, v{g[i]}" for i in range(4)]
        o += [f"v_fmamk_f32 v{T[i]}, v{T[i]}, {f32(-GELU_C1 * GELU_C2)}, v{VNC1}" for i in range(4)]
        o += [f"v_mul_f32 v{T[i]}, v{T[i]}, v{g[i]}" for i in range(4)]
        o += [f"v_exp_f32 v{T[i]}, v{T[i]}" for i in range(4)]
        o += [f"v_mul_f32 v{u[i]}, v{g[i]}, v{u[i]}" for i in range(4)]
        o += [f"v_add_f32 v{T[i]}, 1.0, v{T[i]}" for i in range(4)]
        o += [f"v_rcp_f32 v{T[i]}, v{T[i]}" for i in range(4)]
        o += [f"v_mul_f32 v{u[i]}, v{u[i]}, v{T[i]}" for i in range(4)]
        o += [f"v_cvt_pk_bf16_f32 v{pk + 2 * half + i}, v{u[2 * i]}, v{u[2 * i + 1]}" for i in range(2)]
    o.append(f"s_add_u32 s{S_T}, s{S_STH}, {soff_expr}")
    if m16:
        o += [f"v_permlane16_swap_b32 v{pk + i}, v{pk + 2 + i}" for i in range(2)]
    o.append(f"buffer_store_dwordx4 {vr(pk, 4)}, v{VL16}, {sr(SRD_WS, 4)}, s{S_T} offen{st}")
    return o


def epi_qk(acc, scale, soff, st, base=None, m16=False):
    o = []
    if scale:
        o += [f"v_mul_f32 v{acc + r}, s{S_QS}, v{acc + r}" for r in range(16)]
    o += [f"v_cvt_pk_bf16_f32 v{PK + j}, v{acc + 2 * j}, v{acc + 2 * j + 1}" for j in range(8)]
    o.append(f"s_add_u32 s{S_T}, s{base or S_ST1}, {soff}")
    for q in range(2):
        o.append(f"v_permlane{16 if m16 else 32}_swap_b32 v{PK + 4 * q}, v{PK + 4 * q + 2}")
        o.append(f"v_permlane{16 if m16 else 32}_swap_b32 v{PK + 4 * q + 1}, v{PK + 4 * q + 3}")
    for q in range(2):
        o.append(f"buffer_store_dwordx4 {vr(PK + 4 * q, 4)}, v{VL16}, {sr(SRD_WS, 4)}, s{S_T} offen offset:{1024 * q}{st}")
    return o


def epi_v(acc, st):
    o = [f"v_cvt_pk_bf16_f32 v{PK + j}, v{acc + 2 * j}, v{acc + 2 * j + 1}" for j in range(8)]
    o.append(f"s_add_u32 s{S_T}, s{S_ST1}, 14336")
    if M16:
        for w in (16, 32):
            o += [f"v_permlane{w}_swap_b32 v{PK + j}, v{PK + j + 2}" for j in (0, 1, 4, 5)]
    o.append(f"buffer_store_dwordx4 {vr(PK, 4)}, v{VSTV}, {sr(SRD_WS, 4)}, s{S_ST1} offen{st}")
    o.append(f"buffer_store_dwordx4 {vr(PK + 4, 4)}, v{VSTV}, {sr(SRD_WS, 4)}, s{S_T} offen{st}")
    return o


def final_epilogue(st, skew):
    def parts(e):
        tail = [x for x in e if x.startswith("s_add") or x.startswith("buffer_store")]
        return [x for x in e if x not in tail], tail
    b, bs = parts(epi_gu(ACC2 + 16, PK + 4, 5120, st, M16 == 2))
    if skew:
        return b[:34], b[34:], bs
    a, as_ = parts(epi_gu(ACC2, PK, 4096, st, M16 == 2))
    return a, b, as_ + bs


def skew_order(skew):
    if skew == 1:
        return [x for g in range(14) for x in ((0, 2 * g), (0, 2 * g + 1), (1, g))] + [(1, k) for k in range(14, 28)]
    if skew == 2:
        return [x for g in range(9) for x in ((0, 3 * g), (0, 3 * g + 1), (1, 2 * g), (0, 3 * g + 2), (1, 2 * g + 1))] + \
               [(0, 27)] + [(1, k) for k in range(18, 28)]
    return [(0, k) for k in range(28)] + [(1, k) for k in range(28)]


def reads_seq(n, e, k):
    ch, s = divmod(k, 4)
    reg, sl = P2LOC[ch]
    return tr_reads(wb2(n, 1), (VAGX if reg == LX else VAG) + e, sl * 16384 + koff2(s))


def gate_loads(A):
    A(f"""
    s_lshl_b32 s10, s{S_RB}, 7
    s_lshl_b32 s11, s{S_CG}, 3
    s_add_u32 s10, s10, s11
    s_add_u32 s3, s10, s{S_WAVE}
    s_mul_i32 s10, s3, 896
    """)
    for r in range(136, 144, 2):
        A(f"v_mov_b64 {vr(r, 2)}, 0")
    A(f"""
    s_mov_b32 exec_hi, 0x00ffffff
    buffer_load_dwordx4 v[136:139], v{VL16}, {sr(SRD_X, 4)}, s10 offen
    buffer_load_dwordx4 v[140:143], v{VL16}, {sr(SRD_GW, 4)}, 0 offen
    s_mov_b64 exec, -1
    """)


def gate_compute(A, st):
    A("v_mov_b32 v1, 0")
    for i in range(4):
        A(f"v_dot2_f32_bf16 v1, v{136 + i}, v{140 + i}, v1")
    for m in ("row_shr:1 row_mask:0xf", "row_shr:2 row_mask:0xf", "row_shr:4 row_mask:0xf", "row_shr:8 row_mask:0xf",
              "row_bcast:15 row_mask:0xa", "row_bcast:31 row_mask:0xc"):
        A(f"v_add_f32_dpp v1, v1, v1 {m} bank_mask:0xf")
    A(f"""
    v_mul_f32 v1, {f32(-LOG2E)}, v1
    v_exp_f32 v1, v1
    s_lshl_b32 s3, s3, 2
    v_add_f32 v1, 1.0, v1
    v_rcp_f32 v1, v1
    s_add_u32 s3, s3, {WS_G}
    s_mov_b32 exec_lo, 0
    s_mov_b32 exec_hi, 0x80000000
    """)
    tok = A(f"buffer_store_dword v1, off, {sr(SRD_WS, 4)}, s3{st}")
    A("s_mov_b64 exec, -1")
    return tok


def programs(A, kinds, st, hooks, opt):
    global LA1, LA2, M16
    M16 = opt.get('m16', 2)
    LA1, LA2 = opt.get("la1", 2), opt.get("la2", 1)
    LA0, LA = opt.get("LA0", 2), opt.get("LA", 2)
    p2bars, pubbar, popstart = (7, 15), opt.get("pubbar", 9), opt.get("popstart", 4)
    dma_a = opt.get("dma_a", 1)
    stamp = hooks["stamp"]
    special = kinds == "Q"
    if special:
        dma_a = opt.get("dma_aq", 0)
        LA = opt.get("LAq", 2)
    ntile2 = 1 if special else 2
    skew = 0 if special else opt.get("skew", 0)
    seq = skew_order(skew)
    toks = {}

    def issue(groups, key):
        for g in groups:
            for x in g:
                t = A(x)
                if t:
                    toks[key] = t

    def groups_of(stg, up):
        if stg < 7:
            return stage_dma(stg, special, up)
        if stg > 10:
            return []
        c0 = 2 * (stg - 7)
        return p2_dma(c0, special, up) + (p2_dma(c0 + 1, special, up) if c0 < 6 else [])

    pfpos, split = opt.get("pfpos", 1), False
    g0 = groups_of(0, 0)
    x_addresses(A)
    w_addresses(A, special)
    if special:
        A(f"s_and_b32 s{S_PO}, s{S_CG}, 1")
        A(f"s_lshl_b32 s{S_PO}, s{S_PO}, 9")
        A(f"s_mov_b32 s{S_GO}, 384")
    else:
        A(f"s_lshl_b32 s{S_PO}, s{S_CG}, 7")
        A(f"s_add_u32 s{S_PO}, s{S_PO}, 896")
        gu_dma_addresses(A)
        A(f"s_lshl_b32 s{S_GO}, s{S_CG}, 8")
        srd_tail(A, SRD_G, D * F * 2)
        srd_tail(A, SRD_U, D * F * 2)
    srd_tail(A, SRD_X, S * D * 2)
    srd_tail(A, SRD_P, D * 3 * D * 2)
    A(g0[0][0])
    hooks["prefetch"](A, 2)
    A.wait(lg=0)
    stamp(A, "karg")
    stamp(A, "rtkarg")
    issue([g0[0][1:]] + g0[1:], 0)
    load_args2(A)
    stamp(A, "dma0")
    stamp(A, "rtdma0")
    srd_tail(A, SRD_GW, D * 2)
    srd_tail(A, SRD_WS, WS_BYTES)
    A(f"""
    v_lshlrev_b32 v{VL16}, 4, v0
    s_and_b32 s{S_RT}, s{S_WAVE}, 3
    s_lshr_b32 s{S_C}, s{S_WAVE}, 2
    s_cselect_b32 s{S_ROLE}, 1, 0
    """)
    A.wait(lg=0)
    ep = opt.get("entrypos", 0)
    hooks["entry"](A, 3 & ~ep)
    A("s_barrier")
    issue(groups_of(1, 0), 1)
    hooks["prefetch"](A, 0)
    gate_loads(A)
    hooks["entry"](A, 3 & ep)
    if M16:
        read_addresses16(A, special)
    else:
        read_addresses(A)
        gu_addresses(A, special)
    labels = {(k, r): hooks["label"](f"{k}{r}_") for k in kinds for r in (0, 1)}
    hooks["prologue"](A, special, [labels[k] for k in labels][1:])

    def side_work(kind, role):
        A = Rec()
        S_T, S_T2 = 0, 1
        A(f"s_lshl_b32 s{S_T}, s{S_RB}, 2")
        A(f"s_add_u32 s{S_T}, s{S_T}, s{S_RT}")
        A(f"s_mul_i32 s{S_ST1}, s{S_T}, 28672")
        if special:
            A(f"s_add_u32 s{S_STH}, s{S_ST1}, {role << 11}")
            A(f"s_lshl_b32 s{S_T}, s{S_PO}, 5")
            A(f"s_add_u32 s{S_ST1}, s{S_STH}, s{S_T}")
            A(f"s_mov_b32 s{S_QS}, {f32(QSCALE)}")
        else:
            A(f"s_mul_i32 s{S_STH}, s{S_T}, 114688")
            A(f"s_lshl_b32 s{S_T}, s{S_CG}, 13")
            A(f"s_add_u32 s{S_STH}, s{S_STH}, s{S_T}")
            A(f"s_add_u32 s{S_STH}, s{S_STH}, {WS_H + (role << 11)}")
            if kind == "K":
                A(f"s_lshl_b32 s{S_T}, s{S_CG}, 12")
                A(f"s_add_u32 s{S_ST1}, s{S_ST1}, s{S_T}")
                A(f"s_add_u32 s{S_ST1}, s{S_ST1}, {WS_K + (role << 11)}")
            else:
                A(f"s_lshl_b32 s{S_T}, s{S_CG}, 10")
                A(f"s_add_u32 s{S_ST1}, s{S_ST1}, s{S_T}")
                A(f"s_add_u32 s{S_ST1}, s{S_ST1}, {WS_V - 7 * 1024 + (role << 9)}")
                A(f"v_lshrrev_b32 v{VSTV}, 5, v0")
                A(f"v_mul_u32_u24 v{VSTV}, {7168 - 512}, v{VSTV}")
                A(f"v_add_u32 v{VSTV}, v{VSTV}, v{VL16}")
        hooks["idle"](A, role)
        L, G = Rec(), Rec()
        gate_loads(L)
        gate_compute(G, st)
        return A.units, L.units, G.units

    def pair16(acc, w, t, swap=False):
        o = []
        for th in range(2):
            x = XF + 4 * ((t & ~1) + th)
            d = acc + 8 * th + 4 * (t & 1) if swap else acc + 8 * (t & 1) + 4 * th
            o.append(mfma16(d, x, w, "0" if t < 2 else None) if swap else mfma16(d, w, x, "0" if t < 2 else None))
        return "\n".join(o)

    def mm1(kind, t, i):
        b = wb1(t) + 4 * i
        if M16:
            return pair16(ACC1 + 16 * i, b, t, kind == "V" and i == 0)
        c = "0" if t == 0 else None
        if kind == "V" and i == 0:
            return mfma(ACC1, XF + 4 * t, b, c)
        return mfma(ACC1 + 16 * i, b, XF + 4 * t, c)

    def mm2(t, i):
        if M16 == 2:
            return pair16(ACC2 + 16 * i, wb2(t, ntile2) + 4 * i, t)
        return mfma(ACC2 + 16 * i, wb2(t, ntile2) + 4 * i, XF + 4 * t, "0" if t == 0 else None)

    stamp(A, "rtpro")
    if split:
        skip = hooks["label"]("skip")
        sv = A.save()
        A.wait_tok(toks["x0"])
        A(f"s_cmp_ge_u32 s{S_WAVE}, 4")
        A(f"s_cbranch_scc1 {skip}")
        A.wait_tok(toks[0])
        A(f"{skip}:")
        A.restore(sv)
    else:
        A.wait_tok(toks[0])
    stamp(A, "rtvm0")
    A("s_barrier")
    stamp(A, "p1_first")
    stamp(A, "rt_first")
    nt1 = 2 if special else 3
    for k in range(LA1):
        for r in reads1(k, special)[:nt1]:
            for x in r:
                A(x)
    if not special:
        v = hooks["label"]("isv")
        A(f"s_cmp_ge_u32 s{S_CG}, 7")
        A(f"s_cbranch_scc0 {v}")
        A(f"s_cmp_eq_u32 s{S_ROLE}, 0")
        A(f"s_cbranch_scc1 {labels['V', 0]}")
        A(f"s_branch {labels['V', 1]}")
        A(f"{v}:")
    A(f"s_cmp_eq_u32 s{S_ROLE}, 0")
    A(f"s_cbranch_scc0 {labels[kinds[0], 1]}")
    sv0, toks0 = A.save(), dict(toks)

    def one_wait(ms):
        regs = set().union(*[Ins(x).uses for m in ms for x in m.split('\n')])
        A.wait_tok(*[e[0] for e in A.lg if e[1] & regs])

    def stream(kind, role):
        pend = []

        def stage_groups(stg):
            if not dma_a:
                return [(g, stg) for g in groups_of(stg, 0)]
            if role:
                return []
            return [(g, stg) for pair in zip(groups_of(stg, 0), groups_of(stg, 1)) for g in pair]

        def pop(n=1):
            for _ in range(n):
                if pend:
                    g, key = pend.pop(0)
                    if opt.get("nodma"):
                        toks[key] = None
                    else:
                        issue([g], key)

        side, gload, gate = side_work(kind, role)
        half = len(side) // 3
        plan = [(gate, 3, 7), (side, 8, 25)]

        def fill(t, k):
            hit = [p for p in plan if p[1] <= t <= p[2]]
            if opt.get("nofill") or not hit:
                return
            units, lo, hi = hit[0]
            n = 3 * (hi - lo + 1)
            pos = 3 * (t - lo) + k
            for u in units[len(units) * pos // n:len(units) * (pos + 1) // n]:
                for x in u:
                    tk = A(x)
                    if tk and "store" in x:
                        toks["gate"] = tk

        for k in range(LA0, LA + 1):
            pend += stage_groups(k)
        for t in range(28):
            if t + LA1 < 28:
                nxt = reads1(t + LA1, special)
            elif t < 27:
                nxt = [[], [], []]
            elif skew:
                nxt = [reads_seq(n, *seq[n]) for n in range(3)]
            elif ntile2 == 1:
                nxt = [reads2(k, 1)[0] for k in range(3)]
            else:
                nxt = reads2(0, 2) + [sum(reads2(1, 2), []) if LA2 == 2 else []]
            bound = (t + LA1) % 4 == 0 if t < 25 else t == 27
            if split and t == 0:
                nxt = [[], [], []]
            if split and t == 1:
                nxt = [a_ + b_ for a_, b_ in zip(reads1(2), reads1(3))]
            if bound:
                A.wait(lg=0)
            if opt.get("merge1", 1) and LA1 == 2 and t > 1:
                one_wait([mm1(kind, t, i) for i in range(nt1)])
            A(mm1(kind, t, 0))
            if split and t == 1:
                A.wait_tok(toks[0])
                A("s_barrier")
            if bound:
                stg = (t + LA1) // 4
                assert not pend
                need = stg if stg < 7 else 7 + p2bars[0] // 8
                stamp(A, f"b{stg}_pre")
                A.wait_tok(toks.get(need), toks.get("gate") if stg == 4 else None)
                stamp(A, f"b{stg}_vm")
                if not opt.get("nobar"):
                    A("s_barrier")
                stamp(A, f"b{stg}_post")
                stamp(A, f"rtb{stg}")
                hooks["p1bar"](A, stg, role)
                if M16 == 1 and stg + LA == 7 and not special and not (dma_a and role):
                    pass2_dma_addresses(A)
                todo = list(range(stg + LA, stg + LA + 1 if stg < 7 else 11))
                if (special or (skew and opt.get("early9", 1))) and LA == 2 and stg >= 6:
                    todo = [8, 9] if stg == 6 else [10]
                for k in todo:
                    pend += stage_groups(k)
            left = (3 - LA1 - t) % 4 + 1
            npop = -(-len(pend) // left) if t < 27 else len(pend) * special
            for i in range(3):
                if 0 < i < nt1:
                    A(mm1(kind, t, i))
                for x in (nxt[i] if i < nt1 or t == 27 else []):
                    A(x)
                pop((npop + (0, 2, 1)[i]) // 3)
                fill(t, i)
                if M16 == 1 and t >= 2 and i < 2:
                    x0 = XF + 4 * ((t & ~1) - 2)
                    d = 2 * (t & 1) + i
                    A(f"v_permlane16_swap_b32 v{x0 + d}, v{x0 + 4 + d}")
            if M16 == 1 and t == 26:
                A(f"v_add_u32 v{VAG}, {LQ}, v{VAGX}")
                A(f"v_add_u32 v{VAG + 1}, {LQ}, v{VAGX + 1}")
            if t == opt.get("pf2", 21):
                hooks["prefetch"](A, 1)
        if M16 == 1:
            for d in range(4):
                A(f"v_permlane16_swap_b32 v{XF + 104 + d}, v{XF + 108 + d}")
        stamp(A, "p1_pass1")
        stamp(A, "rt_pass1")
        if "p1exit" in hooks:
            hooks["p1exit"]()
            return
        if kind == "K":
            e1 = epi_qk(ACC1, False, 0, st, m16=M16)
        elif kind == "V":
            e1 = epi_v(ACC1, st)
        else:
            e1 = sum([epi_qk(ACC1 + 16 * k, True, WS_Q + 4096 * k, st, m16=M16) for k in range(2)], [])
        nq = len(e1)
        if not special:
            e1 = e1 + epi_gu(ACC1 + 16, PK, 0, st, M16) + epi_gu(ACC1 + 32, PK + 4, 1024, st, M16)

        if opt.get("nost"):
            e1 = [("s_nop 0" if x.startswith("buffer_store") else x) for x in e1]
        if opt.get("noe1"):
            e1 = e1[:nq]
        if opt.get("notrans"):
            e1 = [x.replace("v_exp_f32", "v_mov_b32").replace("v_rcp_f32", "v_mov_b32") for x in e1]

        def bar_token(k):
            return toks.get(7 + p2bars[k + 1] // 8 if k + 1 < len(p2bars) else 10)

        if skew:
            ea = epi_gu(ACC2, PK, 4096, st)
            work = e1 + ea
            last_a = max(n for n, x in enumerate(seq) if x[0] == 0)
            first = lambda ch: min(n for n, x in enumerate(seq) if x[1] >= 4 * ch)
            bars = {first(2) - 3: 0, first(4) - 3: 1}
            free = (max(n for n, x in enumerate(seq) if x[1] < 16) - 2, 53)
            pA = last_a + opt.get("lagA", 2)
            pub2, pop2 = opt.get("pub2", 18), opt.get("pop2", 8)
            done = 0
            qtok = None
            for n, (e, k) in enumerate(seq):
                if n in free:
                    A.wait(lg=0)
                hooks["p2seq"](A, n, role, seq, free[0])
                A(mfma(ACC2 + 16 * e, wb2(n, 1), XF + 4 * k, "0" if k == 0 else None))
                if n in bars or n == pub2 or n in free:
                    A.wait_tok(bar_token(bars[n]) if n in bars else None, qtok if n == pub2 else None)
                    A("s_barrier")
                    if n == pub2:
                        hooks["qkv_done"](A, role)
                for x in (reads_seq(n + 3, *seq[n + 3]) if n + 3 < 56 else []):
                    A(x)
                if n >= pop2:
                    pop()
                if n <= pA:
                    upto = max(min(nq, 8 * (n + 1)), len(e1) * n // pA)
                else:
                    upto = min(len(work), len(e1) + len(ea) * (n - pA) // (54 - pA))
                while done < upto:
                    tk = A(work[done])
                    if tk and done < nq:
                        qtok = tk
                    done += 1
            assert done == len(work) and not pend
            stamp(A, "p1_pass2")
            stamp(A, "rt_pass2")
            hooks["regular_end"](A, role)
            return
        done = 0
        qtok = None
        la = LA2 if ntile2 == 2 else 3
        nslots = 27 * ntile2
        slot = 0
        for t in range(28):
            nxt = reads2(t + la, ntile2) if t + la < 28 or special else [[]] * ntile2
            bound = t + la - 1 in p2bars
            pub = not special and t == pubbar
            endbar = t == 27 and not special
            if endbar or (bound and not special):
                A.wait(lg=0)
            hooks["p2step"](A, t, role)
            if opt.get("merge2", 0):
                one_wait([mm2(t, i) for i in range(ntile2)])
            for i in range(ntile2):
                A(mm2(t, i))
                if endbar and i == 0:
                    A("s_barrier")
                if (bound or pub) and i == 0:
                    assert not pub or done >= nq
                    stamp(A, f"c{t}_pre")
                    A.wait_tok(bar_token(p2bars.index(t + la - 1)) if bound else None, qtok if pub else None)
                    stamp(A, f"c{t}_vm")
                    A("s_barrier")
                    stamp(A, f"c{t}_post")
                    if pub:
                        hooks["qkv_done"](A, role)
                for x in nxt[i]:
                    A(x)
                if special:
                    pop(2 if t >= 2 else 0)
                elif t >= popstart and (dma_a or i == 0):
                    pop()
                upto = 0
                if t >= 1:
                    slot += 1
                    upto = min(len(e1), (len(e1) * slot * 27) // (nslots * 25))
                upto = max(upto, min(nq, (opt.get("qpace", 8) if special else 8) * (ntile2 * t + i + 1)))
                while done < upto:
                    tk = A(e1[done])
                    if tk and done < nq:
                        qtok = tk
                    done += 1
        assert done == len(e1) and not pend
        stamp(A, "p1_pass2")
        stamp(A, "rt_pass2")
        if "p2exit" in hooks:
            hooks["p2exit"]()
            return
        if not special:
            hooks["regular_end"](A, role)
            return
        e2 = epi_qk(ACC2, True, WS_Q + 8192, st, m16=M16 == 2)
        idle, fin = hooks["label"]("idle"), hooks["label"]("fin")
        A(f"s_bitcmp{1 - role}_b32 s{S_CG}, 0")
        A(f"s_cbranch_scc1 {idle}")
        sv = A.save()
        done = 0
        for t in range(28):
            A(pair16(ACC1, wb2(28 + t, 1), t) if M16 == 2 else mfma(ACC1, wb2(28 + t, 1), XF + 4 * t, "0" if t == 0 else None))
            for x in (reads2(28 + t + 3, 1)[0] if t + 3 < 28 else []):
                A(x)
            while t >= 1 and done < min(len(e2), opt.get("qpace2", 6) * t):
                A(e2[done])
                done += 1
        stamp(A, "q_2b")
        for x in epi_qk(ACC1, True, WS_Q + 12288, st, base=S_STH, m16=M16 == 2):
            A(x)
        stamp(A, "q_epi")
        A(f"s_branch {fin}")
        A(f"{idle}:")
        A.restore(sv)
        for x in e2:
            A(x)
        A(f"{fin}:")
        hooks["special_end"](A, role)

    for n, (kind, role) in enumerate(labels):
        if n:
            hooks["target"](A, labels[kind, role])
            A.restore(sv0)
            toks.clear()
            toks.update(toks0)
        stream(kind, role)
        assert "p1exit" in hooks or "p2exit" in hooks or (all(not e[1] for e in A.vm) and all(not e[1] for e in A.lg)), A.state()
```

```python
import sys
from common import *
import phase1 as p1

ST = " sc1"
LD = " sc1"

FLAG_S = WS_FLAG
FLAG_O = WS_FLAG + 0x8000
FLAG_T = WS_FLAG + 0x30000
SPIN = 1 << 17

L_WO, L_RING, L_OP, L_MISC = 0, 57344, 106496, 155648
L_O = L_RING
L_TR = 131072
M_HW, M_AS, M_GS, M_TK = L_MISC, L_MISC + 2048, L_MISC + 3072, L_MISC + 4096

S_F1, S_SPIN = 27, 3
S_HEAD, S_QB, S_MB, S_NB, S_GW = range(66, 71)
S_AG = 61
S_MO, S_T, S_T2, S_T3, S_OFF, S_CNT = 54, 56, 57, 58, 60, 61
SRD_DBG, SRD_OUT = 48, 48
SRD_K, SRD_V, S_Q, S_ME, S_OO, S_OF = 72, 76, 80, 84, 86, 87
SRD_WD, SRD_WO = 72, 76
S_RA, S_RB, S_WDO, S_WOO, S_HOFF, S_GOFF, S_OUTO = range(80, 87)

VL16 = p1.VL16
VPOLL, VHW = 12, 14
OA, SB, PB, VB, KB, QF = 16, 80, 112, 160, 192, 224
VV0, VGA, VONE, VM, VHI = 10, 11, 13, 1, 7
VMLO, VMHI, VGAD = 120, 121, 122
S_LO = 62
VK = [VL16, 144, 145, 146]
VV = [VV0] + list(range(147, 154))
VXA, VSW, VSR = 154, 158, 159
ACC, HB, WBUF = 16, 80, 160
GL16, GSW, GSR = 1, 2, 3
NDEF = int([a for a in sys.argv if a.startswith('ndef=')][0][5:]) if any(a.startswith('ndef=') for a in sys.argv) else 10
VDW0, VDW1, VTR = 9, 10, 11
VH0, VH1, VAWA, VAWB, VG = 242, 243, 244, 246, 248
VPW, VPR, VGATE, VOUT, VTP = 240, 250, 241, 253, 254
ACA, TB_, TA_ = 80, 96, 112
POLLMASK = "0x1ffff"
POLL = f"buffer_load_dword v6, v{VPOLL}, {sr(SRD_WS, 4)}, 0 offen sc1"


class Gen:
    def __init__(self, name, stamps, opt=None):
        self.A = Asm()
        self.name = name
        self.stamp = stamps
        self.opt = opt or {}
        self.late = []
        self.nlab = 0

    def pad(self, where):
        us = self.opt.get("pad_" + where)
        if not us:
            return
        A, L = self.A, self.lab("pad")
        A.auto = False
        A(f"{L}:")
        A("s_memrealtime s[98:99]")
        A._emit_raw("s_waitcnt lgkmcnt(0)")
        A("s_sub_u32 s98, s98, s96")
        A(f"s_cmp_lt_u32 s98, {us * 100}")
        A(f"s_cbranch_scc1 {L}")
        A.auto = True
        A.sm = set()

    def jitter(self, A=None):
        seed = self.opt.get("jitter")
        if not seed:
            return
        A = A or self.A
        self.njit = getattr(self, "njit", 0) + 1
        L = self.lab("jit")
        A(f"""
        s_lshl_b32 s98, s2, 3
        s_add_u32 s98, s98, s{S_WAVE}
        s_add_u32 s98, s98, {(seed * 7919 + self.njit * 104729) & 0xffff}
        s_mul_i32 s98, s98, 0x9E3779B1
        s_lshr_b32 s99, s98, 29
        s_lshr_b32 s98, s98, 12
        s_and_b32 s98, s98, 63
        s_lshr_b32 s98, s98, s99
        {L}:
        s_sleep 4
        s_sub_u32 s98, s98, 1
        s_cbranch_scc0 {L}
        """)

    def lab(self, s):
        self.nlab += 1
        return f"{self.name}_{s}{self.nlab}"

    def one_lane_store(self, value, soff, wave=None, tmp=5):
        A = self.A
        skip = None
        if wave is not None:
            skip = self.lab("skip")
            A(f"s_cmp_lg_u32 s{S_WAVE}, {wave}")
            A(f"s_cbranch_scc1 {skip}")
        A(f"v_mov_b32 v{tmp}, {value}")
        A("s_mov_b64 exec, 1")
        A.uncounted(f"buffer_store_dword v{tmp}, off, {sr(SRD_WS, 4)}, s{soff} sc1")
        A("s_mov_b64 exec, -1")
        if skip:
            A(f"{skip}:")

    def check_words(self, load, cmp_, tok, mask=None, nap=0, alt=None):
        A = self.A
        ok, loop = self.lab("ok"), self.lab("again")
        A.wait_tok(tok)
        if mask:
            A(f"s_mov_b64 exec, {mask}")
        A(cmp_)
        A(f"s_cbranch_vccz {ok}")
        sv = A.save()
        A(f"s_mov_b32 s{S_SPIN}, {SPIN}")
        if alt:
            swap = lambda x: x.replace("v6", f"v{alt}")
            A("s_waitcnt vmcnt(0)")
            A.auto = False
            A(load)
            A("s_sleep 4")
            A(f"{loop}:")
            for l_, c_ in ((swap(load), cmp_), (load, swap(cmp_))):
                A(l_)
                A._emit_raw("s_waitcnt vmcnt(1)")
                A(c_)
                A(f"s_cbranch_vccz {ok}")
            A(f"s_sub_u32 s{S_SPIN}, s{S_SPIN}, 1")
            A(f"s_cbranch_scc0 {loop}")
            A.auto = True
            A.restore(sv)
            A(f"{ok}:")
            if mask:
                A("s_mov_b64 exec, -1")
            return
        A(f"{loop}:")
        if nap:
            A(f"s_sleep {nap}")
        A(load)
        A("s_waitcnt vmcnt(0)" if load.startswith("buffer") else "s_waitcnt lgkmcnt(0)")
        A(cmp_)
        A(f"s_cbranch_vccz {ok}")
        A(f"s_sub_u32 s{S_SPIN}, s{S_SPIN}, 1")
        A(f"s_cbranch_scc0 {loop}")
        A.restore(sv)
        A(f"{ok}:")
        if mask:
            A("s_mov_b64 exec, -1")

    def target(self, A, label, inline=False):
        if not self.opt.get("warm", 0):
            A(f"{label}:")
            return
        if inline:
            A(f"s_branch {label}")
        A(".p2align 6")
        A(f"{label}_w:")
        A("s_setpc_b64 s[0:1]")
        A(f"{label}:")

    def warm(self, A, special, own):
        if not self.opt.get("warm", 0):
            return
        n = self.name
        t = own + ([f"{n}_a_plain", f"{n}_g_plain", f"{n}_a_poll", f"{n}_a_go", f"{n}_g_go"] if special else
                   [f"{n}_a_e2", f"{n}_g_e2", f"{n}_a_late", f"{n}_a_go"])
        for w, lab in enumerate(t):
            skip = self.lab("skip")
            A(f"s_cmp_lg_u32 s{S_WAVE}, {w}")
            A(f"s_cbranch_scc1 {skip}")
            A(f"s_call_b64 s[0:1], {lab}_w")
            A(f"{skip}:")

    DBG = f"buffer_load_dword v7, v8, {sr(SRD_DBG, 4)}, 0 offen sc1"

    def arrived_load(self):
        self.A("v_and_b32 v8, 3, v0")
        self.A("v_lshlrev_b32 v8, 6, v8")
        return self.A(self.DBG)

    def arrived_check(self, tok):
        self.check_words(self.DBG, "v_cmp_gt_u32 vcc, 64, v7", tok)

    def masked(self, mask, text):
        self.A(f"s_mov_b64 exec, {mask}")
        t = self.A(text)
        self.A("s_mov_b64 exec, -1")
        return t

    def hooks(self, early_poll):
        A = self.A
        st = {}
        steal = self.opt.get("steal", 0)

        def entry(A, what):
            if what & 1:
                self.code_prefetch(A)
            if not what & 2:
                return
            self.jitter()
            skip = self.lab("skip")
            A(f"""
            s_lshl_b32 s{S_F1}, s{p1.S_RB}, 4
            s_add_u32 s{S_F1}, s{S_F1}, s{p1.S_CG}
            s_lshl_b32 s{S_F1}, s{S_F1}, 7
            s_add_u32 s{S_F1}, s{S_F1}, {FLAG_S}
            s_cmp_lg_u32 s{S_WAVE}, 0
            s_cbranch_scc1 {skip}
            s_and_b32 s{p1.S_T}, s2, 7
            s_lshl_b32 s{p1.S_T}, s{p1.S_T}, 1
            s_lshr_b32 s{p1.S_T2}, s2, 7
            s_add_u32 s{p1.S_T}, s{p1.S_T}, s{p1.S_T2}
            s_bfe_u32 s{p1.S_T2}, s2, 0x40003
            s_lshl_b32 s{p1.S_T2}, s{p1.S_T2}, 6
            s_add_u32 s{p1.S_T}, s{p1.S_T}, s{p1.S_T2}
            s_lshl_b32 s{p1.S_T}, s{p1.S_T}, 7
            s_add_u32 s{p1.S_T}, s{p1.S_T}, {FLAG_O}
            v_mov_b32 v10, 0
            v_lshlrev_b32 v9, 11, v0
            s_mov_b64 exec, 15
            """)
            A.uncounted(f"buffer_store_dword v10, v9, {sr(SRD_WS, 4)}, s{p1.S_T} offen sc1")
            A("s_mov_b64 exec, 1")
            A.uncounted(f"buffer_store_dword v10, off, {sr(SRD_WS, 4)}, s{S_F1} sc1")
            if steal:
                A(f"s_lshl_b32 s{p1.S_T}, s2, 7")
                A(f"s_add_u32 s{p1.S_T}, s{p1.S_T}, {FLAG_T}")
                A.uncounted(f"buffer_store_dword v10, off, {sr(SRD_WS, 4)}, s{p1.S_T} sc1")
            A("s_mov_b64 exec, -1")
            A(f"{skip}:")

        def p1bar(A, stg, role):
            if stg in (2, 4, 7):
                self.jitter()
            if stg == 1:
                self.pad("b1")

            if stg == 7:
                self.pad("p1")
            if stg != 4:
                return
            srd(A, SRD_DBG, P_DBG, 256)
            if role:
                return
            skip = self.lab("skip")
            A(f"""
            s_cmp_lg_u32 s{S_WAVE}, 0
            s_cbranch_scc1 {skip}
            s_and_b32 s3, s2, 3
            s_lshl_b32 s3, s3, 6
            v_mov_b32 v13, 1
            s_mov_b64 exec, 1
            """)
            A.uncounted(f"buffer_atomic_add v13, off, {sr(SRD_DBG, 4)}, s3 sc1")
            A("s_mov_b64 exec, -1")
            A(f"{skip}:")


        def clear_misc(A):
            A(f"""
            s_lshl_b32 s3, s{S_WAVE}, 9
            s_add_u32 s3, s3, {L_MISC}
            v_lshl_add_u32 v8, v0, 3, s3
            v_mov_b64 v[6:7], 0
            ds_write_b64 v8, v[6:7]
            ds_write_b64 v8, v[6:7] offset:4096
            """)

        def take_ticket(A, tok):
            self.arrived_check(tok)
            skip = self.lab("skip")
            A(f"""
            s_cmp_lg_u32 s{S_WAVE}, 4
            s_cbranch_scc1 {skip}
            s_and_b32 s0, s2, 7
            s_lshl_b32 s0, s0, 7
            s_add_u32 s0, s0, {FLAG_T}
            v_mov_b32 v13, 1
            s_mov_b64 exec, 1
            """)
            A.uncounted(f"buffer_atomic_add v13, off, {sr(SRD_WS, 4)}, s0 sc0 sc1")
            A("s_mov_b64 exec, -1")
            A(f"{skip}:")

        def p2step(A, t, role):
            if t in (3, 10, 17, 26):
                self.jitter()
            if t == 8 and early_poll:
                clear_misc(A)
            if t == 14 and early_poll and not role:
                st["dbg"] = self.arrived_load()
            if t in (4, 8, 12, 16, 20, 24):
                self.stamp(A, f"p2_{t}")
            if t == self.opt.get('polls', 25) - 1 and early_poll and not role:
                self.arrived_check(st["dbg"])
            if early_poll and not role and t >= 4:
                early, consts = self.setup_units()
                units, lo, hi = (early, 4, 12) if t < 12 else (consts, 12, 28)
                for u in units[len(units) * (t - lo) // (hi - lo):len(units) * (t + 1 - lo) // (hi - lo)]:
                    for x in u:
                        A(x)
            tk = self.opt.get("tk", 16)
            if steal and early_poll and role and t == tk - 7:
                st["dbg"] = self.arrived_load()
            if steal and early_poll and role and t == tk:
                take_ticket(A, st["dbg"])
            if early_poll and role and t >= 16 and t % 2 == 0 and not steal:
                for x in self.wd_dma((t - 16) // 2):
                    A(x)
            if t == self.opt.get('polls', 25) and early_poll and not role:
                st["poll"] = self.masked(POLLMASK, POLL)

        def p2seq(A, n, role, seq, free):
            dead = lambda k: max(i for i, x in enumerate(seq) if x[1] <= k) + 1
            if n in (6, 20, 36, 50):
                self.jitter()
            if n == free + 1:
                clear_misc(A)
            if role:
                if n > free and (n - free) % 2 == 1 and (n - free) // 2 < 6:
                    for x in self.wd_dma((n - free) // 2):
                        A(x)
                return
            if n == 26:
                st["dbg"] = self.arrived_load()
            if n == free:
                self.arrived_check(st["dbg"])
            early, consts = self.setup_units()
            lo, mid = dead(3), max(dead(11), dead(3) + 14)
            for units, a_, b_ in ((early, lo, mid), (consts, mid, min(56, mid + 16))):
                if a_ <= n < b_:
                    for u in units[len(units) * (n - a_) // (b_ - a_):len(units) * (n + 1 - a_) // (b_ - a_)]:
                        for x in u:
                            A(x)
            if n == self.opt.get("polls2", 50):
                st["poll"] = self.masked(POLLMASK, POLL)

        def qkv_done(A, role):
            if not role:
                self.one_lane_store(1, S_F1, wave=0)
                self.stamp(A, "rt_pubq")

        def regular_end(A, role):
            self.jitter()
            if self.opt.get("pad_p2"):
                self.pad("p2")
                if not role:
                    st["poll"] = self.masked(POLLMASK, POLL)
            if not role:
                A.wait_tok(st["poll"])
            A(f"s_branch {self.name}_{'g' if role else 'a'}_e2")

        def special_end(A, role):
            self.jitter()
            A("s_waitcnt vmcnt(0) lgkmcnt(0)")
            self.stamp(A, "q_drain")
            A("s_barrier")
            qkv_done(A, role)
            self.pad("p2")
            clear_misc(A)
            A("s_waitcnt lgkmcnt(0)")
            A("s_barrier")
            if steal and role:
                take_ticket(A, self.arrived_load())
                A("s_waitcnt vmcnt(0)")
            A(f"s_branch {self.name}_{'g' if role else 'a'}_plain")

        h = dict(stamp=self.stamp, label=self.lab, entry=entry, prologue=self.warm, target=self.target, prefetch=self.data_prefetch, p1bar=p1bar, p2step=p2step, p2seq=p2seq,
                 idle=lambda A, role: (None if steal else self.precompute_g0(A)) if role else self.precompute(A, 0),
                 qkv_done=qkv_done, regular_end=regular_end, special_end=special_end)
        if self.opt.get("p1exit"):
            h["p1exit"] = self.finish
        if self.opt.get("p2exit"):
            h["p2exit"] = self.finish
        return h

    def data_prefetch(self, A, which):
        if not self.opt.get("pf", 3) >> which & 1:
            return
        if which == 2:
            a, n = self.opt.get("p0a", 1), self.opt.get("p0n", 2)
            srd_tail(A, p1.SRD_G, D * F * 2)
            srd_tail(A, p1.SRD_U, D * F * 2)
            A(f"""
            s_lshl_b32 s18, s2, 3
            s_add_u32 s18, s18, s{S_WAVE}
            s_lshl_b32 s19, s18, 7
            v_lshl_add_u32 v13, v0, 18, s19
            s_mul_i32 s18, s18, 896
            v_lshl_add_u32 v14, v0, 7, s18
            s_mov_b32 s18, {a * 64 * 3584}
            s_mov_b32 s19, {a * 64 * 2688}
            s_mov_b64 exec, {(1 << n) - 1}
            buffer_load_dword v12, v14, {sr(p1.SRD_X, 4)}, 0 offen offset:{128 * a}
            buffer_load_dword v12, v13, {sr(p1.SRD_G, 4)}, s18 offen
            buffer_load_dword v12, v13, {sr(p1.SRD_U, 4)}, s18 offen
            buffer_load_dword v12, v13, {sr(p1.SRD_P, 4)}, s19 offen
            s_mov_b64 exec, -1
            """)
            return
        if which == 0 and self.opt.get("pfx"):
            skip, lab = self.opt.get("pfskip", 3), self.lab("skip")
            srd_tail(A, p1.SRD_G, D * F * 2)
            srd_tail(A, p1.SRD_U, D * F * 2)
            A.wait(lg=0)
            A(f"""
            s_bitcmp1_b32 s2, 2
            s_cbranch_scc1 {lab}
            s_lshr_b32 s10, s2, 3
            s_lshl_b32 s10, s10, 2
            s_and_b32 s11, s2, 3
            s_add_u32 s10, s10, s11
            s_lshl_b32 s10, s10, 3
            s_add_u32 s10, s10, s{S_WAVE}
            s_lshl_b32 s11, s10, 7
            v_lshl_add_u32 v13, v0, 17, s11
            s_mov_b32 s10, {skip * 64 * 3584}
            s_mov_b32 s11, {skip * 64 * 2688}
            s_mov_b64 exec, 0x3fff
            """)
            for d, so in ((p1.SRD_G, "s10"), (p1.SRD_U, "s10"), (p1.SRD_P, "s11"), (p1.SRD_X, "0")):
                A.uncounted(f"buffer_load_dword v11, v13, {sr(d, 4)}, {so} offen")
            A("s_mov_b64 exec, -1")
            A(f"{lab}:")
            return
        A(f"""
        s_lshl_b32 s18, s2, 3
        s_add_u32 s18, s18, s{S_WAVE}
        s_lshl_b32 s19, s18, 7
        v_lshl_add_u32 v13, v0, 18, s19
        """)
        if which == 0:
            skip = self.opt.get("pfskip", 3)
            srd_tail(A, p1.SRD_G, D * F * 2)
            srd_tail(A, p1.SRD_U, D * F * 2)
            A(f"""
            s_mul_i32 s18, s18, 896
            v_lshl_add_u32 v14, v0, 7, s18
            s_mov_b32 s18, {skip * 64 * 3584}
            s_mov_b32 s19, {skip * 64 * 2688}
            s_mov_b64 exec, {(1 << (7 - skip)) - 1}
            buffer_load_dword v11, v14, {sr(p1.SRD_X, 4)}, 0 offen offset:{128 * skip}
            buffer_load_dword v11, v13, {sr(p1.SRD_P, 4)}, s19 offen
            s_mov_b64 exec, 0x7f
            buffer_load_dword v11, v13, {sr(p1.SRD_G, 4)}, s18 offen
            buffer_load_dword v11, v13, {sr(p1.SRD_U, 4)}, s18 offen
            s_mov_b64 exec, -1
            """)
        else:
            srd(A, 4, P_WD, F * D * 2)
            srd(A, 12, P_WO, D * D * 2)
            A(f"""
            s_mov_b64 exec, 0x7f
            buffer_load_dword v11, v13, s[4:7], 0 offen
            buffer_load_dword v11, v13, s[12:15], 0 offen
            s_mov_b64 exec, -1
            """)

    def code_prefetch_first(self, A):
        here = self.lab("pc")
        A(f"""
        s_getpc_b64 s[4:5]
        {here}:
        s_lshr_b32 s6, s2, 3
        s_mul_i32 s6, s6, {24 * 128}
        v_lshrrev_b32 v2, 6, v0
        v_mul_u32_u24 v2, 61, v2
        v_sub_u32 v2, v0, v2
        s_sub_u32 s4, s4, {here}-{self.name}
        s_subb_u32 s5, s5, 0
        v_lshl_add_u32 v2, v2, 7, s6
        v_min_u32 v2, {self.name}_exit-{self.name}, v2
        s_mov_b64 exec, 7
        global_load_dword v12, v2, s[4:5]
        s_mov_b64 exec, -1
        """)

    def code_prefetch(self, A):
        if not self.opt.get("cpf", 2):
            return
        here, skip = self.lab("pc"), self.lab("skip")
        if self.opt.get("cpf", 2) == 2:
            A(f"""
            s_cmp_lg_u32 s{S_WAVE}, 7
            s_cbranch_scc1 {skip}
            v_lshlrev_b32 v10, 7, v0
            s_mov_b64 exec, 0x7f
            """)
            A.uncounted(f"buffer_load_dword v11, v10, {sr(p1.SRD_GW, 4)}, 0 offen")
            A("s_mov_b64 exec, -1")
            A(f"{skip}:")
            return
        A(f"""
        s_cmp_lg_u32 s{S_WAVE}, 7
        s_cbranch_scc1 {skip}
        s_getpc_b64 s[0:1]
        {here}:
        s_sub_u32 s0, s0, {here}-{self.name}
        s_subb_u32 s1, s1, 0
        s_lshr_b32 s{p1.S_T}, s2, 3
        s_mul_i32 s{p1.S_T}, s{p1.S_T}, {17 * 128}
        v_lshl_add_u32 v10, v0, 7, s{p1.S_T}
        v_min_u32 v10, {self.name}_exit-{self.name}, v10
        s_mov_b64 exec, 0x1ffff
        """)
        A.uncounted("global_load_dword v11, v10, s[0:1]")
        A("v_lshlrev_b32 v10, 7, v0")
        A.uncounted(f"buffer_load_dword v11, v10, {sr(p1.SRD_GW, 4)}, 0 offen")
        if self.opt.get("tlb"):
            A("v_lshlrev_b32 v10, 20, v0")
            A.uncounted(f"buffer_load_dword v11, v10, {sr(SRD_WS, 4)}, 0 offen offset:3968 sc1")
            if self.opt["tlb"] > 1:
                srd(A, 4, P_OUT, S * D * 2)
                srd(A, 12, P_WD, F * D * 2)
                A.uncounted(f"buffer_load_dword v11, v10, s[4:7], 0 offen")
                A.uncounted(f"buffer_load_dword v11, v10, s[12:15], 0 offen")
        A("s_mov_b64 exec, -1")
        A(f"{skip}:")

    def precompute(self, A, role):
        T, T2 = 0, 1
        A(f"""
        s_and_b32 s{T}, s2, 7
        s_lshr_b32 s{T2}, s2, 3
        s_lshl_b32 s{S_HEAD}, s{T}, 1
        s_lshr_b32 s{S_QB}, s2, 7
        s_add_u32 s{S_HEAD}, s{S_HEAD}, s{S_QB}
        s_and_b32 s{S_QB}, s{T2}, 15
        s_and_b32 s{S_GW}, s{S_WAVE}, 3
        s_lshl_b32 s{T}, s{S_WAVE}, 8
        s_add_u32 s{T}, s{T}, {M_HW}
        v_lshl_add_u32 v{VHW}, v0, 2, s{T}
        """)
        steal = self.opt.get("steal", 0)
        if role == 0:
            if not steal:
                self.out_tile(A)
            self.precompute_a(A)
        else:
            if steal:
                self.precompute_g0(A)
            self.precompute_g(A)
            if not steal:
                self.precompute_g2(A)

    def resolve_ticket(self):
        A = self.A
        skip, got, loop, post = (self.lab(x) for x in ("skip", "got", "steal", "post"))
        A(f"""
        s_cmp_lg_u32 s{S_WAVE}, 4
        s_cbranch_scc1 {skip}
        v_readfirstlane_b32 s{S_NB}, v15
        s_and_b32 s{S_MB}, s2, 7
        s_cmp_lt_u32 s{S_NB}, 28
        s_cbranch_scc1 {got}
        v_lshlrev_b32 v4, 7, v0
        v_add_u32 v4, {FLAG_T}, v4
        s_mov_b32 s{S_SPIN}, 256
        s_mov_b64 exec, 0xff
        {loop}:
        """)
        A.auto = False
        A.uncounted(f"buffer_load_dword v5, v4, {sr(SRD_WS, 4)}, 0 offen sc1")
        A._emit_raw("s_waitcnt vmcnt(0)")
        A(f"""
        v_cmp_gt_u32 vcc, 28, v5
        s_mov_b32 s0, 0x10700
        s_ff1_i32_b32 s{S_MB}, vcc_lo
        s_cmp_lt_i32 s{S_MB}, 0
        s_cbranch_scc1 {post}
        s_sub_u32 s{S_SPIN}, s{S_SPIN}, 1
        s_cbranch_scc1 {post}
        s_lshl_b32 s1, s{S_MB}, 7
        s_add_u32 s1, s1, {FLAG_T}
        v_mov_b32 v5, 1
        s_mov_b64 exec, 1
        """)
        A.uncounted(f"buffer_atomic_add v5, off, {sr(SRD_WS, 4)}, s1 sc0 sc1")
        A._emit_raw("s_waitcnt vmcnt(0)")
        A(f"""
        v_readfirstlane_b32 s{S_NB}, v5
        s_mov_b64 exec, 0xff
        s_cmp_ge_u32 s{S_NB}, 28
        s_cbranch_scc1 {loop}
        {got}:
        s_lshl_b32 s{S_MB}, s{S_MB}, 2
        s_and_b32 s0, s{S_NB}, 3
        s_add_u32 s0, s0, s{S_MB}
        s_lshr_b32 s1, s{S_NB}, 2
        s_lshl_b32 s1, s1, 8
        s_add_u32 s0, s0, s1
        s_bitset1_b32 s0, 16
        {post}:
        s_mov_b64 exec, -1
        v_mov_b32 v4, {M_TK}
        v_mov_b32 v5, s0
        """)
        A.uncounted("ds_write_b32 v4, v5")
        A.auto = True
        A(f"{skip}:")

    def read_ticket(self, nap=0):
        A = self.A
        A(f"v_mov_b32 v4, {M_TK}")
        load = "ds_read_b32 v6, v4"
        self.check_words(load, "v_cmp_eq_u32 vcc, 0, v6", A(load), nap=nap)
        A(f"""
        v_readfirstlane_b32 s0, v6
        s_and_b32 s{S_MB}, s0, 31
        s_bfe_u32 s{S_NB}, s0, 0x30008
        """)

    def out_tile(self, A):
        sg = self.opt.get("sg")
        ne = self.opt.get("ne", 32)
        if ne:
            A(f"""
            s_lshr_b32 s0, s2, 3
            s_bitcmp1_b32 s2, 0
            s_cselect_b32 s1, {ne}, 0
            s_cselect_b32 s{S_NB}, {56 - ne}, {ne}
            s_cmp_ge_u32 s0, s{S_NB}
            s_cselect_b32 s{S_NB}, 7, 0
            s_add_u32 s0, s0, s1
            s_mul_i32 s{S_MB}, s0, 9363
            s_lshr_b32 s{S_MB}, s{S_MB}, 16
            s_mul_i32 s1, s{S_MB}, 7
            s_sub_u32 s0, s0, s1
            s_or_b32 s{S_NB}, s{S_NB}, s0
            s_min_u32 s{S_MB}, s{S_MB}, 7
            s_bfe_u32 s0, s2, 0x20001
            s_lshl_b32 s0, s0, 3
            s_add_u32 s{S_MB}, s{S_MB}, s0
            """)
            return
        if sg is None:
            A(f"""
            s_and_b32 s{S_MB}, s2, 7
            s_lshl_b32 s{S_MB}, s{S_MB}, 2
            s_bfe_u32 s{S_NB}, s2, 0x20003
            s_add_u32 s{S_MB}, s{S_MB}, s{S_NB}
            s_lshr_b32 s{S_NB}, s2, 5
            """)
            return
        A(f"""
        s_add_u32 s0, s2, {7 - sg}
        s_and_b32 s0, s0, 7
        s_lshl_b32 s0, s0, 5
        s_lshr_b32 s1, s2, 3
        s_add_u32 s0, s0, s1
        s_mul_i32 s{S_MB}, s0, 9363
        s_lshr_b32 s{S_MB}, s{S_MB}, 16
        s_mul_i32 s1, s{S_MB}, 7
        s_sub_u32 s{S_NB}, s0, s1
        s_cmp_ge_u32 s0, 224
        s_cselect_b32 s{S_NB}, 7, s{S_NB}
        s_min_u32 s{S_MB}, s{S_MB}, 31
        """)

    def precompute_a(self, A):
        T, T2 = 0, 1
        a0, a1 = S_Q, S_Q + 1
        A(f"""
        s_mul_i32 s{T}, s{S_HEAD}, 28
        s_add_u32 s{T2}, s{T}, 27
        s_lshr_b32 s{a0}, s{T}, 6
        s_lshr_b32 s{a1}, s{T2}, 6
        s_sub_u32 s{a1}, s{a1}, s{a0}
        v_and_b32 v5, 1, v0
        v_mul_u32_u24 v5, s{a1}, v5
        v_bfe_u32 v6, v0, 1, 1
        v_mad_u32_u24 v5, v6, 7, v5
        v_bfe_u32 v6, v0, 2, 2
        v_lshl_add_u32 v5, v6, 4, v5
        s_lshl_b32 s{a1}, s{S_GW}, 6
        s_add_u32 s{a1}, s{a1}, s{a0}
        v_add_u32 v5, s{a1}, v5
        s_lshl_b32 s{a1}, s{S_QB}, 4
        s_lshr_b32 s{T}, s{S_HEAD}, 3
        s_add_u32 s{T}, s{T}, s{a1}
        s_add_u32 s{T}, s{T}, 14
        v_writelane_b32 v5, s{T}, 16
        v_lshlrev_b32 v5, 7, v5
        v_add_u32 v{VPOLL}, {FLAG_S}, v5
        v_lshrrev_b32 v5, 5, v0
        v_mul_u32_u24 v5, {7168 - 512}, v5
        v_add_u32 v{VV0}, v5, v{VL16}
        s_mul_i32 s{S_OO}, s{S_HEAD}, 7
        s_lshr_b32 s{S_OO}, s{S_OO}, 1
        s_lshl_b32 s{S_OO}, s{S_OO}, 9
        s_mul_i32 s{T2}, s{S_GW}, {16 * 28672}
        s_add_u32 s{T}, s{T2}, s{S_OO}
        s_add_u32 s{T}, s{T}, {WS_K}
        """)
        srd(A, SRD_K, P_WS, 16 * 28672, add=f"s{T}")
        A(f"""
        s_mul_i32 s{T}, s{S_HEAD}, 448
        s_add_u32 s{T}, s{T}, s{T2}
        s_add_u32 s{T}, s{T}, {WS_V}
        """)
        srd(A, SRD_V, P_WS, 16 * 28672, add=f"s{T}")
        A(f"s_lshl_b32 s{T2}, s{S_QB}, 2")
        for j in range(4):
            A(f"""
            s_add_u32 s{T}, s{S_GW}, {j + 1}
            s_and_b32 s{T}, s{T}, 3
            s_add_u32 s{T}, s{T}, s{T2}
            s_mul_i32 s{T}, s{T}, 28672
            s_add_u32 s{S_Q + j}, s{T}, s{S_OO}
            """)
        A(f"""
        s_add_u32 s{T}, s{T2}, s{S_GW}
        s_lshl_b32 s{S_OFF}, s{T}, 7
        s_add_u32 s{S_AG}, s{S_OFF}, {WS_G}
        s_lshl_b32 s{T}, s{T}, 4
        s_add_u32 s{T}, s{T}, s{S_HEAD}
        s_lshl_b32 s{S_OO}, s{T}, 11
        s_add_u32 s{S_OO}, s{S_OO}, {WS_O}
        s_lshl_b32 s{S_OF}, s{T}, 7
        s_add_u32 s{S_OF}, s{S_OF}, {FLAG_O}
        s_mov_b32 s{S_ME}, 0x0fffffff
        s_mov_b32 s{S_ME + 1}, 0x0fffffff
        """)

    def precompute_g0(self, A):
        T = 0
        srd(A, SRD_WD, P_WD, F * D * 2)
        A(f"""
        v_lshrrev_b32 v5, 3, v0
        v_mul_u32_u24 v6, 896, v5
        v_lshrrev_b32 v5, 2, v0
        v_and_b32 v5, 4, v5
        v_and_b32 v7, 7, v0
        v_xor_b32 v5, v5, v7
        v_lshl_add_u32 v{VDW0}, v5, 4, v6
        v_add_u32 v{VDW1}, {7168 - 1024}, v{VDW0}
        s_and_b32 s{S_GW}, s{S_WAVE}, 3
        s_mul_i32 s{S_RB}, s{S_GW}, 14336
        s_mul_i32 s{S_RA}, s{S_GW}, 12288
        s_add_u32 s{S_RA}, s{S_RA}, {L_RING}
        """)
        if not self.opt.get("steal", 0):
            self.out_tile(A)
            self.wd_offset(A)

    def wd_offset(self, A):
        A(f"""
        s_lshl_b32 s0, s{S_NB}, 7
        s_mul_i32 s{S_WDO}, s{S_GW}, {448 * 896}
        s_add_u32 s{S_WDO}, s{S_WDO}, s0
        """)

    def precompute_g(self, A):
        T, T2 = 0, 1
        srd(A, SRD_WO, P_WO, D * D * 2)
        A(f"""
        s_and_b32 s{T2}, s{S_GW}, 1
        s_lshl_b32 s{T2}, s{T2}, 3
        v_and_b32 v5, 1, v0
        v_lshlrev_b32 v5, 2, v5
        v_bfe_u32 v6, v0, 1, 1
        v_add_u32 v5, v5, v6
        v_bfe_u32 v6, v0, 4, 1
        v_lshl_add_u32 v5, v6, 1, v5
        v_and_b32 v6, 8, v0
        v_xor_b32 v5, v5, v6
        v_xor_b32 v5, s{T2}, v5
        v_lshrrev_b32 v6, 5, v0
        v_bfe_u32 v7, v0, 2, 2
        v_lshl_add_u32 v6, v6, 2, v7
        v_lshlrev_b32 v6, 7, v6
        v_lshl_add_u32 v{VTR}, v5, 3, v6
        """)

    def precompute_g2(self, A):
        T, T2 = 0, 1
        A(f"""
        s_lshl_b32 s{T}, s{S_NB}, 7
        s_mul_i32 s{S_WOO}, s{S_GW}, {112 * 896}
        s_add_u32 s{S_WOO}, s{S_WOO}, s{T}
        s_and_b32 s{T2}, s{S_GW}, 1
        s_lshl_b32 s{S_OUTO}, s{T2}, 6
        s_add_u32 s{S_OUTO}, s{S_OUTO}, s{T}
        s_lshr_b32 s{T}, s{S_GW}, 1
        s_lshl_b32 s{T2}, s{S_MB}, 1
        s_add_u32 s{T}, s{T}, s{T2}
        s_lshl_b32 s{S_GOFF}, s{T}, 7
        s_add_u32 s{S_GOFF}, s{S_GOFF}, {WS_G}
        s_mul_i32 s{T}, s{T}, {32 * 896}
        s_add_u32 s{S_OUTO}, s{S_OUTO}, s{T}
        s_mul_i32 s{S_HOFF}, s{S_MB}, {2 * 114688}
        s_mul_i32 s{T}, s{S_GW}, {28 * 1024}
        s_add_u32 s{S_HOFF}, s{S_HOFF}, s{T}
        s_add_u32 s{S_HOFF}, s{S_HOFF}, {WS_H}
        s_lshr_b32 s{T}, s{S_MB}, 1
        s_lshl_b32 s{T}, s{T}, 4
        s_mul_i32 s{T2}, s{S_GW}, 7
        s_lshr_b32 s{T2}, s{T2}, 1
        s_add_u32 s{T}, s{T}, s{T2}
        s_lshl_b32 s{T}, s{T}, 7
        s_add_u32 s{T}, s{T}, {FLAG_S}
        v_and_b32 v5, 3, v0
        v_lshl_add_u32 v{VPOLL}, v5, 7, s{T}
        """)

    def k_load(self, b):
        return [f"buffer_load_dwordx4 {vr(KB + 8 * b, 4)}, v{VK[b]}, {sr(SRD_K, 4)}, s{S_OFF} offen{LD}",
                f"buffer_load_dwordx4 {vr(KB + 8 * b + 4, 4)}, v{VK[b]}, {sr(SRD_K, 4)}, s{S_OFF} offen offset:1024{LD}"]

    def v_load(self, b):
        return [f"s_mov_b64 exec, {sr(S_ME, 2)}",
                f"buffer_load_dwordx4 {vr(VB + 8 * b, 4)}, v{VV[2 * b]}, {sr(SRD_V, 4)}, s{S_OFF} offen{LD}",
                f"buffer_load_dwordx4 {vr(VB + 8 * b + 4, 4)}, v{VV[2 * b + 1]}, {sr(SRD_V, 4)}, s{S_OFF} offen{LD}",
                "s_mov_b64 exec, -1"]

    @staticmethod
    def qk(i, half):
        b, j = (i >> 2) & 3, i & 3
        return mfma(SB + 16 * (i & 1), KB + 8 * b + 4 * half, QF + 8 * j + 4 * half, "0" if half == 0 else None)

    @staticmethod
    def pv(i, half, first=False):
        b, j = (i >> 2) & 3, i & 3
        return mfma(OA + 16 * j, VB + 8 * b + 4 * half, PB + 4 * half, "0" if first else None)

    @staticmethod
    def grp(i, g):
        r = SB + 16 * (i & 1) + 4 * g
        return [f"v_exp_f32 v{r + k}, v{r + k}" for k in range(4)] + \
               [f"v_cvt_pk_bf16_f32 v{PB + 2 * g + k}, v{r + 2 * k}, v{r + 2 * k + 1}" for k in range(2)]

    def wait_pair(self, base):
        A = self.A
        want = {f"v{base + 7}"}
        for e in A.vm:
            if e[1] & want:
                A.wait_tok(e[0])
                return

    def setup_units(self):
        R = Rec()
        for b in range(1, 4):
            R(f"v_add_u32 v{VK[b]}, {b * 28672}, v{VL16}")
        for n in range(1, 8):
            R(f"v_add_u32 v{VV[n]}, {n * 14336}, v{VV0}")
        for j in range(4):
            R(f"""
            s_add_u32 s0, s{S_GW}, {j + 1}
            s_and_b32 s0, s0, 3
            s_mul_i32 s0, s0, 12288
            s_add_u32 s0, s0, {L_OP + (j % 3) * 4096}
            v_add_u32 v{VXA + j}, s0, v{VL16}
            """)
        self.sync_addresses(M_AS, A=R, T=0)
        R(f"""
        s_and_b32 s0, s{S_HEAD}, 1
        v_lshrrev_b32 v{VMLO}, 5, v0
        v_or_b32 v{VMHI}, s0, v{VMLO}
        v_xor_b32 v{VMHI}, s0, v{VMHI}
        v_add_u32 v{VMHI}, -1, v{VMHI}
        v_xor_b32 v{VMLO}, 1, v{VMLO}
        v_and_b32 v{VMLO}, s0, v{VMLO}
        v_add_u32 v{VMLO}, -1, v{VMLO}
        v_and_b32 v{VGAD}, 31, v0
        v_lshlrev_b32 v{VGAD}, 2, v{VGAD}
        """)
        R(f"""
        v_and_b32 v{VONE}, 31, v0
        v_cmp_eq_u32 s[0:1], 28, v{VONE}
        v_mov_b32 v{VONE}, 0x3f803f80
        v_cndmask_b32 v{VONE}, 0, v{VONE}, s[0:1]
        """)
        return R.units, [[f"v_mov_b32 v{VB + r}, v{VONE}"] for r in range(32)]

    def first_loads(self):
        q = lambda j: [[f"buffer_load_dwordx4 {vr(QF + 8 * j + 4 * t, 4)}, v{VL16}, {sr(SRD_WS, 4)}, s{S_Q + j} offen"
                        f"{' offset:1024' * t}{LD}"] for t in range(2)]
        k = lambda b: [[x] for x in self.k_load(b)]
        return q(0) + k(0) + q(1) + [self.v_load(0)] + q(2) + q(3) + k(1) + \
            [[f"buffer_load_dword v{VGA}, v{VGAD}, {sr(SRD_WS, 4)}, s{S_AG} offen{LD}"]]

    def mask_q(self, j):
        self.wait_pair(QF + 8 * j)
        for r, m in ((0, VMLO), (1, VMLO), (6, VMHI), (7, VMHI)):
            self.A(f"v_and_b32 v{QF + 8 * j + r}, v{QF + 8 * j + r}, v{m}")

    def attn_main(self):
        A = self.A
        todo = [x for kt in range(1, 16) for x in (("v", kt, 4 * kt - 12), ("k", kt + 1, 4 * kt - 10)) if x[1] < 16]
        base = 0

        def loads(i, kind):
            nonlocal base
            if not todo or todo[0][2] > i or (todo[0][2] == i and todo[0][0] != kind) or issued[0] == i:
                return []
            kd, kt, _ = todo.pop(0)
            issued[0] = i
            o = []
            if kt >> 2 != base:
                base = kt >> 2
                o.append(f"s_add_u32 s{S_OFF}, s{S_OFF}, {4 * 28672}")
            return o + (self.v_load(kt & 3) if kd == "v" else self.k_load(kt & 3))

        issued = [-1]
        roll = self.opt.get("roll", 1)
        for i in range(64):
            kt, b, j = i >> 2, (i >> 2) & 3, i & 3
            if roll and i == 16:
                lab = self.lab("aloop")
                A(f"s_mov_b32 s{S_T}, 1")
                while A.vm and not A.vm[0][1]:
                    A.vm.pop(0)
                A.lg = []
                st0 = A.state()
                A(f"{lab}:")
            if roll and 32 <= i < 48:
                loads(i, "v")
                loads(i, "k")
                continue
            seq = []
            if i < 3:
                self.mask_q(i + 1)
            if i < 63:
                if j == 3:
                    self.wait_pair(KB + 8 * ((b + 1) & 3))
                seq.append(self.qk(i + 1, 0))
            seq += self.grp(i, 0)
            if i:
                seq.append(self.pv(i - 1, 1))
            seq += loads(i, "v")
            seq += self.grp(i, 1)
            if i < 63:
                seq.append(self.qk(i + 1, 1))
            seq += loads(i, "k")
            seq += self.grp(i, 2)
            for x in seq:
                A(x)
            if j == 0:
                self.wait_pair(VB + 8 * b)
            A(self.pv(i, 0, first=i < 4))
            if i == 4:
                A(f"ds_write_b32 v{VHW}, v{VHW}")
            if i in (0, 4, 8, 16):
                self.stamp(A, f"a_t{i}")
            g3 = self.grp(i, 3)
            if roll and i == 31:
                g3 = [f"s_sub_u32 s{S_T}, s{S_T}, 1"] + g3 + [f"s_cbranch_scc0 {lab}"]
            if i > 60:
                w = [f"ds_write_b128 v{VXA + j - 1}, {vr(OA + 16 * (j - 1) + 4 * q, 4)} offset:{1024 * q}" for q in range(4)]
                g3 = [g3[0], w[0], g3[1], w[1], g3[2], w[2], g3[3], w[3]] + g3[4:]
            for x in g3:
                A(x)
            if roll and i == 31:
                assert A.state() == st0, (A.state(), st0)
            if i in (2, 12, 60, 62):
                self.jitter()
            if i == 63:
                self.pad("loop")
                A(f"ds_write_b32 v{VSW}, v{VSW}")
        assert not todo
        load = f"ds_read_b32 v6, v{VSR}"
        tok = A(load)
        A(self.pv(63, 1))
        self.stamp(A, "a_loop")
        self.stamp(A, "rt_loop")
        self.check_words(load, "v_cmp_eq_u32 vcc, 0, v6", tok)
        self.stamp(A, "a_sync")
        self.jitter()

    def lds_sync(self, value_reg, cmp_, VSW=VSW, VSR=VSR):
        A = self.A
        A(f"ds_write_b32 v{VSW}, v{value_reg}")
        load = f"ds_read_b32 v6, v{VSR}"
        tok = A(load)
        self.check_words(load, cmp_, tok)

    def sync_addresses(self, base, VSW=VSW, VSR=VSR, A=None, T=S_T):
        (A or self.A)(f"""
        s_lshl_b32 s{T}, s{S_GW}, 8
        s_add_u32 s{T}, s{T}, {base}
        v_lshl_add_u32 v{VSW}, v0, 2, s{T}
        v_and_b32 v{VSR}, 3, v0
        v_lshlrev_b32 v{VSR}, 8, v{VSR}
        v_add_u32 v{VSR}, {base}, v{VSR}
        """)

    def attn_finish(self):
        A = self.A
        R, O = VB, OA + 48
        order = [3, 0, 1, 2]
        for q in order:
            for p in range(3):
                A(f"ds_read_b128 {vr(R + 16 * p + 4 * q, 4)}, v{VXA + 3} offset:{4096 * p + 1024 * q}")
        for n, q in enumerate(order):
            for k in range(4):
                A(f"v_add_f32 v{R + 4 * q + k}, v{R + 4 * q + k}, v{R + 16 + 4 * q + k}")
            for k in range(4):
                A(f"v_add_f32 v{O + 4 * q + k}, v{O + 4 * q + k}, v{R + 32 + 4 * q + k}")
            for k in range(4):
                A(f"v_add_f32 v{O + 4 * q + k}, v{O + 4 * q + k}, v{R + 4 * q + k}")
            if n == 0:
                A(f"v_mov_b32 v8, v{O + 12}")
                A(f"v_mov_b32 v9, v{O + 12}")
            if n == 1:
                A("v_permlane32_swap_b32 v8, v9")
                A("v_rcp_f32 v12, v9")
            if n == 2:
                A(f"v_med3_f32 v8, v9, s{S_LO}, v{VHI}")
                A(f"v_mul_f32 v12, v12, v{VGA}")
                A("v_cmp_neq_f32 vcc, v8, v9")
        A(f"s_cbranch_vccnz {self.name}_slow")
        A(f"{self.name}_a_fin:")
        for hf in range(2):
            for r in range(8 * hf, 8 * hf + 8):
                A(f"v_mul_f32 v{O + r}, v{O + r}, v12")
            for jj in range(4 * hf, 4 * hf + 4):
                A(f"v_cvt_pk_bf16_f32 v{PB + jj}, v{O + 2 * jj}, v{O + 2 * jj + 1}")
            if hf == 0:
                A(f"buffer_store_dwordx4 {vr(PB, 4)}, v{VL16}, {sr(SRD_WS, 4)}, s{S_OO} offen{ST}")
        A(f"""
        s_mov_b32 exec_lo, 0
        v_mov_b64 {vr(PB + 6, 2)}, 0
        s_mov_b32 exec_lo, -1
        buffer_store_dwordx4 {vr(PB + 4, 4)}, v{VL16}, {sr(SRD_WS, 4)}, s{S_OO} offen offset:1024{ST}
        """)
        self.stamp(A, "a_st")
        self.jitter()
        if self.opt.get("steal", 0):
            self.read_ticket()
        self.tail_setup(0)
        A("s_waitcnt vmcnt(0)")
        self.one_lane_store(1, S_OF, tmp=8)

    def slow_path(self):
        A = self.A
        O, Q = OA + 48, QF + 24
        A.clear()
        A(f"{self.name}_slow:")
        A("s_waitcnt vmcnt(0) lgkmcnt(0)")
        A(f"s_mul_i32 s{S_T}, s{S_GW}, {16 * 28672}")
        for d in (SRD_K, SRD_V):
            A(f"s_sub_u32 s{d}, s{d}, s{S_T}")
            A(f"s_subb_u32 s{d + 1}, s{d + 1}, 0")
            A(f"s_mov_b32 s{d + 2}, {64 * 28672}")
        for r in range(8):
            A(f"v_mov_b32 v{VB + r}, v{VONE}")
        A(f"v_mov_b32 v{VM}, 0xff800000")
        for sub in (0, 1):
            lab = self.lab("slowloop")
            A(f"s_mov_b32 s{S_OFF}, 0")
            if sub:
                for r in range(16):
                    A(f"v_mov_b32 v{O + r}, 0")
            A(f"{lab}:")
            for x in self.k_load(0) + (self.v_load(0) if sub else []):
                A(x)
            A(mfma(SB, KB, Q, "0"))
            A(mfma(SB, KB + 4, Q + 4))
            if not sub:
                for r in range(0, 16, 2):
                    A(f"v_max3_f32 v{VM}, v{SB + r}, v{SB + r + 1}, v{VM}")
            else:
                for r in range(16):
                    A(f"v_sub_f32 v{SB + r}, v{SB + r}, v{VM}")
                for g in range(4):
                    for x in self.grp(0, g):
                        A(x)
                A(mfma(O, VB, PB))
                A(mfma(O, VB + 4, PB + 4))
            A(f"s_add_u32 s{S_OFF}, s{S_OFF}, 28672")
            A(f"s_cmp_lt_u32 s{S_OFF}, {64 * 28672}")
            A(f"s_cbranch_scc1 {lab}")
            if not sub:
                A(f"v_mov_b32 v9, v{VM}")
                A(f"v_permlane32_swap_b32 v9, v{VM}")
                A(f"v_max_f32 v{VM}, v9, v{VM}")
        A(f"""
        v_mov_b32 v8, v{O + 12}
        v_mov_b32 v9, v{O + 12}
        v_permlane32_swap_b32 v8, v9
        v_rcp_f32 v12, v9
        v_mul_f32 v12, v12, v{VGA}
        s_branch {self.name}_a_fin
        """)

    @staticmethod
    def slot(ks):
        k = ks % 13
        return ("A", k) if k < 6 else ("B", k - 6)

    def wd_dma(self, ks):
        reg, sl = self.slot(ks)
        return [f"s_add_u32 m0, s{S_RA if reg == 'A' else S_RB}, {sl * 2048}",
                f"s_add_u32 s0, s{S_WDO}, {ks * 16 * 896}",
                f"buffer_load_dwordx4 v{VDW0}, {sr(SRD_WD, 4)}, s0 offen lds",
                f"buffer_load_dwordx4 v{VDW1}, {sr(SRD_WD, 4)}, s0 offen offset:1024 lds"]

    def wo_dma(self, n):
        return [f"s_add_u32 m0, s{S_RB}, {n * 2048}",
                f"s_add_u32 s{S_T}, s{S_WOO}, {n * 16 * 896}",
                f"buffer_load_dwordx4 v{VDW0}, {sr(SRD_WO, 4)}, s{S_T} offen lds",
                f"buffer_load_dwordx4 v{VDW1}, {sr(SRD_WO, 4)}, s{S_T} offen offset:1024 lds"]

    def h_load(self, ks):
        b = HB + 8 * (ks % 10)
        return [f"s_add_u32 s{S_T}, s{S_HOFF}, {ks * 1024}",
                f"buffer_load_dwordx4 {vr(b, 4)}, v{VH0}, {sr(SRD_WS, 4)}, s{S_T} offen{LD}",
                f"buffer_load_dwordx4 {vr(b + 4, 4)}, v{VH1}, {sr(SRD_WS, 4)}, s{S_T} offen{LD}"]

    def gemm_start(self, e2):
        A = self.A
        tok = None
        steal = self.opt.get("steal", 0)
        for x in (e2[0] + e2[1] + e2[2] if e2 else sum([self.wd_dma(ks) for ks in range(0 if steal else 6)], [])):
            tok = A(x)
        A("s_setprio 2")
        for ks in range(6, 6 + self.opt.get("gearly", 0)):
            for x in self.wd_dma(ks):
                A(x)
        self.precompute(A, 1)
        if not steal:
            self.arrived_load()
        A.wait_tok(tok)

    def gemm_main(self):
        A = self.A
        toks = {}
        A.clear()
        steal = self.opt.get("steal", 0)
        first = 0 if steal else 6 + self.opt.get("gearly", 0)
        for ks in range(6, first):
            for _ in range(2):
                A.nid += 1
                A.vm.append([A.nid, set()])
                toks[ks] = A.nid
        if not steal:
            A.nid += 1
            A.vm.append([A.nid, {"v7"}])
            dbgtok = A.nid

        def issue(lst, key=None):
            for x in lst:
                t = A(x)
                if t and key is not None:
                    toks[key] = t

        def trr(ks):
            reg, sl = self.slot(ks)
            a = VAWA if reg == "A" else VAWB
            b = WBUF + 8 * (ks % 10)
            o = sl * 2048
            A.wait_tok(toks.get(ks))
            issue([f"ds_read_b64_tr_b16 {vr(b, 2)}, v{a} offset:{o}",
                   f"ds_read_b64_tr_b16 {vr(b + 2, 2)}, v{a} offset:{o + 1024}",
                   f"ds_read_b64_tr_b16 {vr(b + 4, 2)}, v{a + 1} offset:{o}",
                   f"ds_read_b64_tr_b16 {vr(b + 6, 2)}, v{a + 1} offset:{o + 1024}"], ("r", ks))

        def dma(ks):
            if ks >= 13:
                A.wait_tok(toks[("r", ks - 13)])
            issue(self.wd_dma(ks), ks)

        def mm(ks):
            for jj in range(4):
                A(mfma(ACC + 16 * jj, WBUF + 8 * (ks % 10) + 4 * (jj & 1), HB + 8 * (ks % 10) + 4 * (jj >> 1),
                       "0" if ks == 0 else None))

        A(f"""
        ds_write_b32 v{VHW}, v{VHW}
        v_mov_b32 v15, v13
        v_xor_b32 v5, 64, v{VTR}
        v_add_u32 v{VAWA}, s{S_RA}, v{VTR}
        v_add_u32 v{VAWA + 1}, s{S_RA}, v5
        v_and_b32 v13, 7, v0
        v_lshlrev_b32 v13, 8, v13
        v_add_u32 v13, {M_HW}, v13
        """)
        for ks in range(0 if steal else 6):
            trr(ks)
        A(f"""
        v_mov_b32 v{GL16}, v{VL16}
        v_add_u32 v{VAWB}, s{S_RB}, v{VTR}
        v_add_u32 v{VAWB + 1}, s{S_RB}, v5
        s_lshr_b32 s{S_T}, s{S_GW}, 1
        s_mul_i32 s{S_T}, s{S_T}, 114688
        v_add_u32 v{VH0}, s{S_T}, v{GL16}
        s_sub_u32 s{S_T}, 114688, s{S_T}
        v_add_u32 v{VH1}, s{S_T}, v{GL16}
        """)
        self.sync_addresses(M_GS, GSW, GSR)
        load = "ds_read_b32 v6, v13"
        tk = A(load)
        self.check_words(load, "v_cmp_eq_u32 vcc, 0, v6", tk, nap=1)
        self.one_lane_store(2, S_F1, wave=4)
        self.stamp(A, "g_hw")
        self.jitter()
        if steal:
            self.resolve_ticket()
            self.read_ticket(nap=1)
        A(f"s_cmp_ge_u32 s{S_NB}, 7")
        A(f"s_cbranch_scc1 {self.name}_exit")
        if steal:
            self.wd_offset(A)
            for ks in range(self.opt.get("gdeep", 3)):
                dma(ks)
            first = self.opt.get("gdeep", 3)
            self.precompute_g2(A)
        if not steal:
            self.arrived_check(dbgtok)
        A(f"""
        v_and_b32 v5, 31, v0
        v_lshlrev_b32 v5, 2, v5
        buffer_load_dword v{VG}, v5, {sr(SRD_WS, 4)}, s{S_GOFF} offen{LD}
        """)
        A(f"v_add_u32 v{VPW}, s{S_RA}, v{GL16}")
        A(f"v_subrev_u32 v{VGATE}, {M_GS - M_AS}, v{GSR}")
        for jj in range(1, 4):
            A(f"""
            s_xor_b32 s{S_T}, s{S_GW}, {jj}
            s_mul_i32 s{S_T}, s{S_T}, 12288
            s_add_u32 s{S_T}, s{S_T}, {L_RING + 4096 * (jj - 1)}
            v_add_u32 v{VPR + jj - 1}, s{S_T}, v{GL16}
            """)
        self.tail_setup(1)
        deep = self.opt.get("gdeep", 3)
        for ks in range(first, 23):
            if (0 if steal else 6) <= ks - 7 < 10:
                trr(ks - 7)
            A.wait_tok(toks.get(ks - deep))
            dma(ks)
        self.stamp(A, "g_dma")
        self.jitter()
        tok = self.masked("15", POLL)
        self.check_words(POLL, "v_cmp_ne_u32 vcc, 2, v6", tok, mask="15", nap=2)
        A(f"v_sub_f32 v{VG}, 1.0, v{VG}")
        self.stamp(A, "g_flags")
        self.stamp(A, "rt_gflags")
        A("s_setprio 0")
        nh = self.opt.get("nh", 2)
        for ks in range(nh):
            issue(self.h_load(ks))
        ramp = 28 - NDEF - (NDEF - nh)
        for ks in range(28 - NDEF):
            mm(ks)
            if ks in (3, 11):
                self.jitter()
            for _ in range(2 if ks >= ramp else 1):
                if nh < 28:
                    assert nh - 10 <= ks
                    issue(self.h_load(nh))
                    nh += 1
            if ks + 10 < 28:
                trr(ks + 10)
            if 1 <= ks <= 5:
                dma(ks + 22)
        assert nh == 28
        A.wait_tok(toks[("r", 25)])
        for n in range(7):
            issue(self.wo_dma(n))
        A("s_waitcnt lgkmcnt(0)")
        self.stamp(A, "g_pre")
        self.jitter()
        self.stamp(A, "rt_gpre")
        load = f"ds_read_b32 v6, v{VGATE}"
        gp = self.opt.get("gprio", 0)
        if gp:
            A("s_setprio 2")
        tk = A(load)
        self.check_words(load, "v_cmp_eq_u32 vcc, 0, v6", tk, nap=self.opt.get("gnap", 2))
        if gp == 1:
            A("s_setprio 0")
        wr = []
        for jj in (1, 2, 3, 0):
            for n, ks in enumerate(range(28 - NDEF, 28)):
                A(mfma(ACC + 16 * jj, WBUF + 8 * (ks % 10) + 4 * (jj & 1), HB + 8 * (ks % 10) + 4 * (jj >> 1)))
                if n >= min(2, NDEF - 5) and wr:
                    A(wr.pop(0))
            assert not wr
            wr = [f"ds_write_b128 v{VPW}, {vr(ACC + 16 * jj + 4 * q, 4)} offset:{4096 * (jj - 1) + 1024 * q}" for q in range(4)]
            if jj == 3:
                wr.append(f"ds_write_b32 v{GSW}, v{GSW}")
        self.stamp(A, "g_loop")
        self.jitter()
        self.stamp(A, "rt_gloop")
        load = f"ds_read_b32 v6, v{GSR}"
        self.check_words(load, "v_cmp_eq_u32 vcc, 0, v6", A(load))
        for q in range(4):
            for jj in range(1, 4):
                A(f"ds_read_b128 {vr(ACC + 16 * jj + 4 * q, 4)}, v{VPR + jj - 1} offset:{1024 * q}")
        for q in range(4):
            r0 = (4 * q, 4 * q + 2)
            for r in r0:
                A(f"v_pk_add_f32 {vr(ACC + 16 + r, 2)}, {vr(ACC + 16 + r, 2)}, {vr(ACC + 32 + r, 2)}")
            for r in r0:
                A(f"v_pk_add_f32 {vr(ACC + r, 2)}, {vr(ACC + r, 2)}, {vr(ACC + 48 + r, 2)}")
            for r in r0:
                A(f"v_pk_add_f32 {vr(ACC + r, 2)}, {vr(ACC + r, 2)}, {vr(ACC + 16 + r, 2)}")
            for r in r0:
                A(f"v_pk_mul_f32 {vr(ACC + r, 2)}, {vr(ACC + r, 2)}, {vr(VG, 2)} op_sel_hi:[1,0]")

    def tail_setup(self, role):
        A = self.A
        A(f"""
        s_lshl_b32 s{S_T}, s{S_MB}, 5
        s_add_u32 s{S_T}, s{S_T}, s{S_GW}
        s_lshl_b32 s{S_MO}, s{S_T}, 7
        s_add_u32 s{S_MO}, s{S_MO}, {FLAG_O + role * 2048}
        v_lshlrev_b32 v{VTP if role else 5}, 9, v0
        s_lshl_b32 s{10 if role else S_T3}, s{S_T}, 11
        s_add_u32 s{10 if role else S_T3}, s{10 if role else S_T3}, {WS_O + role * 32768}
        s_lshl_b32 s{11 if role else S_T2}, s{S_GW}, 11
        """)
        if role == 1:
            srd(A, SRD_OUT, P_OUT, S * D * 2)
            A(f"""
            s_lshr_b32 s{S_T}, s{S_GW}, 1
            s_lshl_b32 s{S_OFF}, s{S_T}, 15
            s_add_u32 s{S_OFF}, s{S_OFF}, {L_O}
            v_add_u32 v14, s{S_OFF}, v{GL16}
            s_mul_i32 s{S_T}, s{S_GW}, 2560
            s_add_u32 s{S_T}, s{S_T}, {L_TR}
            v_and_b32 v7, 31, v0
            v_mul_u32_u24 v7, 80, v7
            v_lshrrev_b32 v8, 5, v0
            v_lshl_add_u32 v7, v8, 5, v7
            v_add_u32 v7, s{S_T}, v7
            v_lshrrev_b32 v4, 2, v0
            v_and_b32 v15, 3, v0
            v_lshlrev_b32 v15, 4, v15
            v_mul_u32_u24 v8, 80, v4
            v_add_u32 v8, v8, v15
            v_add_u32 v8, s{S_T}, v8
            v_mul_u32_u24 v4, 896, v4
            v_add_u32 v{VOUT}, v4, v15
            s_add_u32 s{S_OFF}, s{S_OUTO}, {16 * 896}
            """)

    def tail(self, role):
        A = self.A
        L16 = GL16 if role else VL16
        load = f"buffer_load_dword v6, v{VTP if role else 5}, {sr(SRD_WS, 4)}, s{S_MO} offen sc1"
        if role == 1:
            A("s_waitcnt vmcnt(0)")
        tok = self.masked("15", load)
        A.wait(lg=0)
        self.stamp(A, "t_bar0")
        A("s_barrier")
        self.stamp(A, "t_bar1")
        self.jitter()
        self.check_words(load, "v_cmp_ne_u32 vcc, 1, v6", tok, mask="15", alt=4 if self.opt.get("pp", 0) else None)
        self.stamp(A, "t_flag")
        self.jitter()
        self.stamp(A, "rt_tflag")
        toks = []
        for step in range(4):
            A(f"s_add_u32 m0, s{11 if role else S_T2}, {L_O + role * 32768 + step * 8192}")
            A(f"s_add_u32 s{S_T}, s{10 if role else S_T3}, {step * 8192}")
            for q in range(2):
                t = A(f"buffer_load_dwordx4 v{L16}, {sr(SRD_WS, 4)}, s{S_T} offen offset:{1024 * q} sc1 lds")
            toks.append(t)
        A.wait_tok(toks[0])
        A("s_barrier")
        self.stamp(A, "t_odata")
        self.jitter()
        self.stamp(A, "rt_odata")
        if role == 0:
            for step in range(1, 4):
                A.wait_tok(toks[step])
                A("s_barrier")
            return

        def rd(k):
            o = (28 * (k >> 1) + 16 * (k & 1)) * 128
            b = k % 4
            return [f"ds_read_b128 {vr(TB_ + 4 * b, 4)}, v14 offset:{k * 1024}",
                    f"ds_read_b64_tr_b16 {vr(TA_ + 4 * b, 2)}, v{VTR} offset:{o}",
                    f"ds_read_b64_tr_b16 {vr(TA_ + 4 * b + 2, 2)}, v{VTR} offset:{o + 1024}"]

        for k in range(3):
            for x in rd(k):
                A(x)
        for k in range(32):
            A(mfma(ACC, TA_ + 4 * (k % 4), TB_ + 4 * (k % 4)))
            if k + 3 < 32:
                if (k + 3) % 8 == 0:
                    A.wait_tok(toks[(k + 3) // 8])
                    A("s_barrier")
                for x in rd(k + 3):
                    A(x)
        self.stamp(A, "t_mm")
        self.jitter()
        for hf in range(2):
            for jj in range(4):
                A(f"v_cvt_pk_bf16_f32 v{TA_ + 4 * hf + jj}, v{ACC + 8 * hf + 2 * jj}, v{ACC + 8 * hf + 2 * jj + 1}")
            A(f"ds_write_b128 v7, {vr(TA_ + 4 * hf, 4)} offset:{16 * hf}")
        for q in range(2):
            A(f"ds_read_b128 {vr(TB_ + 4 * q, 4)}, v8 offset:{16 * 80 * q}")
        for q in range(2):
            A(f"buffer_store_dwordx4 {vr(TB_ + 4 * q, 4)}, v{VOUT}, {sr(SRD_OUT, 4)}, s{S_OFF if q else S_OUTO} offen{('', ' sc1', ' nt', ' sc0 sc1')[self.opt.get('ost', 0)]}")

    def finish(self):
        A = self.A
        if self.opt.get("pad_end"):
            A("s_waitcnt vmcnt(0)")
            skip = self.lab("skip")
            if "padwg" in self.opt:
                A(f"s_cmp_lg_u32 s2, {self.opt['padwg']}")
                A(f"s_cbranch_scc1 {skip}")
            self.pad("end")
            A(f"{skip}:")
        if self.stamp.enabled:
            A("s_waitcnt vmcnt(0)")
            self.stamp(A, "t_end")
            self.stamp(A, "rt_end")
            self.stamp.flush(A)
        A("s_endpgm")

    def build(self):
        A, name = self.A, self.name
        A(f".globl {name}\n.p2align 8\n.type {name},@function\n{name}:")
        A("s_cmp_ge_u32 s2, 256")
        A(f"s_cbranch_scc1 {name}_exit")
        if any(k.startswith("pad_") for k in self.opt):
            A("s_memrealtime s[96:97]")
        self.stamp(A, "rt0")
        self.stamp(A, "t0")
        p1.SX = self.opt.get('sx')
        p1.decode(A, self.code_prefetch_first if self.opt.get('cpf', 2) == 2 else None, self.opt.get('cpos', 1))
        A(f"s_cmp_ge_u32 s{p1.S_CG}, 14")
        A(f"s_cbranch_scc1 {name}_q")
        st0 = A.save()
        p1.programs(A, "KV", ST + self.opt.get("ntkv", 0) * " nt", self.hooks(True), self.opt)
        A.restore(st0)
        A(f"{name}_q:")
        p1.programs(A, "Q", ST + self.opt.get("ntq", 0) * " nt", self.hooks(False), self.opt)
        if self.opt.get("p1exit") or self.opt.get("p2exit"):
            for f in self.late:
                A.clear()
                f(A)
            A(f"{name}_exit:")
            A("s_endpgm")
            pads = A.fix_hazards()
            return A.text(), kernel_desc(name), pads
        e2 = p1.final_epilogue(ST + self.opt.get("ntkv", 0) * " nt", self.opt.get("skew", 0))
        A.clear()
        self.target(A, f"{name}_a_plain")
        tok = self.arrived_load()
        for x in sum(sum(self.setup_units(), []), []):
            A(x)
        self.arrived_check(tok)
        A(f"s_branch {name}_a_poll")
        self.target(A, f"{name}_a_late")
        if self.opt.get("mid", 1):
            tok = self.masked(POLLMASK, POLL)
            for x in e2[0]:
                A(x)
            A.wait_tok(tok)
            self.masked(POLLMASK, "v_cmp_eq_u32 vcc, 0, v6")
            A(f"s_cbranch_vccz {name}_a_mid")
            for x in e2[1] + e2[2]:
                A(x)
        else:
            for x in e2[0] + e2[1] + e2[2]:
                A(x)
        self.target(A, f"{name}_a_poll", inline=True)
        tok = self.masked(POLLMASK, POLL)
        self.check_words(POLL, "v_cmp_eq_u32 vcc, 0, v6", tok, mask=POLLMASK)
        self.stamp(A, "a_flags")
        self.stamp(A, "rt_aflags")
        A(f"s_mov_b32 s{S_OFF}, 0")
        for x in sum(self.first_loads(), []):
            A(x)
        A(f"ds_write_b32 v{VHW}, v{VHW}")
        A(f"s_branch {name}_a_go")
        plain = A.save()
        if self.opt.get("mid", 1):
            A.clear()
            A(f"{name}_a_mid:")
            self.stamp(A, "a_flags")
            self.stamp(A, "rt_aflags")
            A(f"s_mov_b32 s{S_OFF}, 0")
            fl = self.first_loads()
            for k, x in enumerate(e2[1]):
                if k % (len(e2[1]) // 15) == 0 and fl:
                    for y in fl.pop(0):
                        A(y)
                A(x)
            assert not fl
            for x in e2[2]:
                A(x)
            A(f"s_branch {name}_a_go")
        A.clear()
        self.target(A, f"{name}_a_e2")
        self.masked(POLLMASK, "v_cmp_eq_u32 vcc, 0, v6")
        A(f"s_cbranch_vccnz {name}_a_late")
        self.stamp(A, "a_flags")
        self.stamp(A, "rt_aflags")
        A(f"s_mov_b32 s{S_OFF}, 0")
        work = e2[0] + e2[1]
        fl = self.first_loads()
        step = min(self.opt.get("lstep", 6), len(work) // 15)
        for k, x in enumerate(work):
            if k % step == 0 and fl:
                for y in fl.pop(0):
                    A(y)
            A(x)
        assert not fl
        for x in e2[2]:
            A(x)
        self.stamp(A, "a_e2b")
        assert [x for x in A.state()[0] if x] == [tuple(sorted(e[1])) for e in plain[0]]
        A.restore(plain)
        A.lg = []
        self.target(A, f"{name}_a_go", inline=True)
        A(f"s_mov_b32 s{S_LO}, {f32(2.0 ** -30)}")
        A(f"v_mov_b32 v{VHI}, {f32(2.0 ** 30)}")
        self.mask_q(0)
        A(self.qk(0, 0))
        A(self.qk(0, 1))
        A("s_setprio 1")
        self.stamp(A, "a_first")
        self.stamp(A, "rt_afirst")
        self.attn_main()
        self.attn_finish()
        self.stamp(A, "a_pub")
        self.stamp(A, "rt_pub")
        A(f"s_cmp_ge_u32 s{S_NB}, 7")
        A(f"s_cbranch_scc1 {name}_a_done")
        self.tail(0)
        A(f"{name}_a_done:")
        self.finish()
        A.clear()
        self.target(A, f"{name}_g_plain")
        self.gemm_start(None)
        A(f"s_branch {name}_g_go")
        A.clear()
        self.target(A, f"{name}_g_e2")
        self.gemm_start(e2)
        self.target(A, f"{name}_g_go", inline=True)
        self.gemm_main()
        self.tail(1)
        self.finish()
        self.slow_path()
        k = 0
        while k < len(self.late):
            A.clear()
            self.late[k](A)
            k += 1
        A(f"{name}_exit:")
        A("s_endpgm")
        pads = A.fix_hazards()
        return A.text(), kernel_desc(name), pads


HEADER = open("gated_mix__mha_block__glu_gated_geglu__prompt.s.ref").read().split("; Override")[0]


DOC = """
;  nobody looks at a word before all 256 are counted.  All polls are bounded.
"""


def main():
    diag = "diag" in sys.argv
    name = "gated_mix__mha_block__glu_gated_geglu__prompt_kernel"
    sets = {"diag": "rt0 t0 p1_pass2 a_flags a_first a_loop a_pub t_flag t_end rt_end g_hw g_dma g_flags g_pre g_loop",
            "diagt": "rt0 t0 a_first a_loop a_sync a_st a_pub t_bar0 t_bar1 t_flag t_odata t_mm t_end g_loop rt_end",
            "diagp": "rt0 t0 p1_pass1 p2_4 p2_8 p2_16 p1_pass2 a_flags a_first a_loop t_end rt_end",
            "diagb": "rt0 t0 b2_pre b2_vm b2_post b3_pre b3_vm t_end rt_end",
            "diagc": "rt0 t0 b5_pre b5_vm b5_post b7_pre b7_vm t_end rt_end",
            "diagd": "rt0 t0 p2_4 c7_pre c7_vm c7_post p2_8 t_end rt_end",
            "diage": "rt0 t0 c9_pre c9_vm c9_post c15_pre c15_vm t_end rt_end",
            "diagr": "rt0 t0 p1_first p1_pass1 rt_first rt_pass1 t_end rt_end",
            "diagz": "rt0 rt_end",
            "diagrt": "rt0 rt_first rt_pass1 rt_pubq rt_pass2 rt_aflags rt_afirst rt_loop rt_pub rt_tflag rt_odata rt_end rt_gflags rt_gpre",
            "diags": "rt0 t0 p1_pass1 p1_pass2 rt_pass1 rt_pass2 p2_8 t_end rt_end",
            "diaga": "rt0 t0 p1_pass2 a_flags a_e2b a_first a_t0 a_t4 a_t8 a_t16 t_end rt_end",
            "diagru": "rt0 rtkarg rtdma0 rtpro rtvm0 rt_first rtb1 rt_end",
            "diagrv": "rt0 rtb1 rtb2 rtb3 rtb4 rtb5 rtb6 rt_end",
            "diagsp": "rt0 t0 p1_pass1 p1_pass2 q_2b q_epi q_drain t_end rt_end",
            "diagx": "rt0 t0 p1_first p1_pass2 rt_first rt_pass2 a_first a_loop rt_afirst rt_loop rt_end",
            "diagzz": "rt0 rt_end rt_first rt_pass1 rt_pass2",
            "diagq": "rt0 t0 karg dma0 p1_first p1_pass1 p2_4 t_end rt_end"}
    which = [a for a in sys.argv if a in sets]
    diag = bool(which)
    st = Stamps(diag, sets[which[0]].split() if diag else None)
    opt = {a.split("=")[0]: int(a.split("=")[1]) for a in sys.argv[1:] if "=" in a}
    g = Gen(name, st, opt)
    code, kd, pads = g.build()
    print(HEADER.rstrip())
    print(DOC.strip())
    print("; @launch grid=(256,1,1) block=(512,1,1) lds=163840")
    if diag:
        print("; stamps: " + " ".join(st.only))
    print('.amdgcn_target "amdgcn-amd-amdhsa--gfx950"\n.text')
    print(code)
    print('.section .rodata,"a"\n.p2align 6')
    print(kd)


if __name__ == "__main__":
    main()
```

```python
import sys
from common import *
import phase1 as p1

ST = " sc1"
LD = " sc1"

FLAG_S = WS_FLAG
FLAG_O = WS_FLAG + 0x8000
FLAG_T = WS_FLAG + 0x30000
SPIN = 1 << 17

L_WO, L_RING, L_OP, L_MISC = 0, 57344, 106496, 155648
L_O = L_RING
L_TR = 131072
M_HW, M_AS, M_GS, M_TK = L_MISC, L_MISC + 2048, L_MISC + 3072, L_MISC + 4096

S_F1, S_SPIN = 27, 3
S_HEAD, S_QB, S_MB, S_NB, S_GW = range(66, 71)
S_AG = 61
S_MO, S_T, S_T2, S_T3, S_OFF, S_CNT = 54, 56, 57, 58, 60, 61
SRD_DBG, SRD_OUT = 48, 48
SRD_K, SRD_V, S_Q, S_ME, S_OO, S_OF = 72, 76, 80, 84, 86, 87
SRD_WD, SRD_WO = 72, 76
S_RA, S_RB, S_WDO, S_WOO, S_HOFF, S_GOFF, S_OUTO = range(80, 87)

VL16 = p1.VL16
VPOLL, VHW = 12, 14
OA, SB, PB, VB, KB, QF = 16, 80, 112, 160, 192, 224
VV0, VGA, VONE, VM, VHI = 10, 11, 13, 1, 7
VMLO, VMHI, VGAD = 120, 121, 122
S_LO = 62
VK = [VL16, 144, 145, 146]
VV = [VV0] + list(range(147, 154))
VXA, VSW, VSR = 154, 158, 159
ACC, HB, WBUF = 16, 80, 160
GL16, GSW, GSR = 1, 2, 3
NDEF = int([a for a in sys.argv if a.startswith('ndef=')][0][5:]) if any(a.startswith('ndef=') for a in sys.argv) else 10
VDW0, VDW1, VTR = 9, 10, 11
VH0, VH1, VAWA, VAWB, VG = 242, 243, 244, 246, 248
VPW, VPR, VGATE, VOUT, VTP = 240, 250, 241, 253, 254
ACA, TB_, TA_ = 80, 96, 112
POLLMASK = "0x1ffff"
POLL = f"buffer_load_dword v6, v{VPOLL}, {sr(SRD_WS, 4)}, 0 offen sc1"


class Gen:
    def __init__(self, name, stamps, opt=None):
        self.A = Asm()
        self.name = name
        self.stamp = stamps
        self.opt = opt or {}
        self.late = []
        self.nlab = 0

    def pad(self, where):
        us = self.opt.get("pad_" + where)
        if not us:
            return
        A, L = self.A, self.lab("pad")
        A.auto = False
        A(f"{L}:")
        A("s_memrealtime s[98:99]")
        A._emit_raw("s_waitcnt lgkmcnt(0)")
        A("s_sub_u32 s98, s98, s96")
        A(f"s_cmp_lt_u32 s98, {us * 100}")
        A(f"s_cbranch_scc1 {L}")
        A.auto = True
        A.sm = set()

    def jitter(self, A=None):
        seed = self.opt.get("jitter")
        if not seed:
            return
        A = A or self.A
        self.njit = getattr(self, "njit", 0) + 1
        L = self.lab("jit")
        A(f"""
        s_lshl_b32 s98, s2, 3
        s_add_u32 s98, s98, s{S_WAVE}
        s_add_u32 s98, s98, {(seed * 7919 + self.njit * 104729) & 0xffff}
        s_mul_i32 s98, s98, 0x9E3779B1
        s_lshr_b32 s99, s98, 29
        s_lshr_b32 s98, s98, 12
        s_and_b32 s98, s98, 63
        s_lshr_b32 s98, s98, s99
        {L}:
        s_sleep 4
        s_sub_u32 s98, s98, 1
        s_cbranch_scc0 {L}
        """)

    def lab(self, s):
        self.nlab += 1
        return f"{self.name}_{s}{self.nlab}"

    def one_lane_store(self, value, soff, wave=None, tmp=5):
        A = self.A
        skip = None
        if wave is not None:
            skip = self.lab("skip")
            A(f"s_cmp_lg_u32 s{S_WAVE}, {wave}")
            A(f"s_cbranch_scc1 {skip}")
        A(f"v_mov_b32 v{tmp}, {value}")
        A("s_mov_b64 exec, 1")
        A.uncounted(f"buffer_store_dword v{tmp}, off, {sr(SRD_WS, 4)}, s{soff} sc1")
        A("s_mov_b64 exec, -1")
        if skip:
            A(f"{skip}:")

    def check_words(self, load, cmp_, tok, mask=None, nap=0, alt=None):
        A = self.A
        ok, loop = self.lab("ok"), self.lab("again")
        A.wait_tok(tok)
        if mask:
            A(f"s_mov_b64 exec, {mask}")
        A(cmp_)
        A(f"s_cbranch_vccz {ok}")
        sv = A.save()
        A(f"s_mov_b32 s{S_SPIN}, {SPIN}")
        if alt:
            swap = lambda x: x.replace("v6", f"v{alt}")
            A("s_waitcnt vmcnt(0)")
            A.auto = False
            A(load)
            A("s_sleep 4")
            A(f"{loop}:")
            for l_, c_ in ((swap(load), cmp_), (load, swap(cmp_))):
                A(l_)
                A._emit_raw("s_waitcnt vmcnt(1)")
                A(c_)
                A(f"s_cbranch_vccz {ok}")
            A(f"s_sub_u32 s{S_SPIN}, s{S_SPIN}, 1")
            A(f"s_cbranch_scc0 {loop}")
            A.auto = True
            A.restore(sv)
            A(f"{ok}:")
            if mask:
                A("s_mov_b64 exec, -1")
            return
        A(f"{loop}:")
        if nap:
            A(f"s_sleep {nap}")
        A(load)
        A("s_waitcnt vmcnt(0)" if load.startswith("buffer") else "s_waitcnt lgkmcnt(0)")
        A(cmp_)
        A(f"s_cbranch_vccz {ok}")
        A(f"s_sub_u32 s{S_SPIN}, s{S_SPIN}, 1")
        A(f"s_cbranch_scc0 {loop}")
        A.restore(sv)
        A(f"{ok}:")
        if mask:
            A("s_mov_b64 exec, -1")

    def target(self, A, label, inline=False):
        if not self.opt.get("warm", 0):
            A(f"{label}:")
            return
        if inline:
            A(f"s_branch {label}")
        A(".p2align 6")
        A(f"{label}_w:")
        A("s_setpc_b64 s[0:1]")
        A(f"{label}:")

    def warm(self, A, special, own):
        if not self.opt.get("warm", 0):
            return
        n = self.name
        t = own + ([f"{n}_a_plain", f"{n}_g_plain", f"{n}_a_poll", f"{n}_a_go", f"{n}_g_go"] if special else
                   [f"{n}_a_e2", f"{n}_g_e2", f"{n}_a_late", f"{n}_a_go"])
        for w, lab in enumerate(t):
            skip = self.lab("skip")
            A(f"s_cmp_lg_u32 s{S_WAVE}, {w}")
            A(f"s_cbranch_scc1 {skip}")
            A(f"s_call_b64 s[0:1], {lab}_w")
            A(f"{skip}:")

    DBG = f"buffer_load_dword v7, v8, {sr(SRD_DBG, 4)}, 0 offen sc1"

    def arrived_load(self):
        self.A("v_and_b32 v8, 3, v0")
        self.A("v_lshlrev_b32 v8, 6, v8")
        return self.A(self.DBG)

    def arrived_check(self, tok):
        self.check_words(self.DBG, "v_cmp_gt_u32 vcc, 64, v7", tok)

    def masked(self, mask, text):
        self.A(f"s_mov_b64 exec, {mask}")
        t = self.A(text)
        self.A("s_mov_b64 exec, -1")
        return t

    def hooks(self, early_poll):
        A = self.A
        st = {}
        steal = self.opt.get("steal", 0)

        def entry(A, what):
            if what & 1:
                self.code_prefetch(A)
            if not what & 2:
                return
            self.jitter()
            skip = self.lab("skip")
            A(f"""
            s_lshl_b32 s{S_F1}, s{p1.S_RB}, 4
            s_add_u32 s{S_F1}, s{S_F1}, s{p1.S_CG}
            s_lshl_b32 s{S_F1}, s{S_F1}, 7
            s_add_u32 s{S_F1}, s{S_F1}, {FLAG_S}
            s_cmp_lg_u32 s{S_WAVE}, 0
            s_cbranch_scc1 {skip}
            s_and_b32 s{p1.S_T}, s2, 7
            s_lshl_b32 s{p1.S_T}, s{p1.S_T}, 1
            s_lshr_b32 s{p1.S_T2}, s2, 7
            s_add_u32 s{p1.S_T}, s{p1.S_T}, s{p1.S_T2}
            s_bfe_u32 s{p1.S_T2}, s2, 0x40003
            s_lshl_b32 s{p1.S_T2}, s{p1.S_T2}, 6
            s_add_u32 s{p1.S_T}, s{p1.S_T}, s{p1.S_T2}
            s_lshl_b32 s{p1.S_T}, s{p1.S_T}, 7
            s_add_u32 s{p1.S_T}, s{p1.S_T}, {FLAG_O}
            v_mov_b32 v10, 0
            v_lshlrev_b32 v9, 11, v0
            s_mov_b64 exec, 15
            """)
            A.uncounted(f"buffer_store_dword v10, v9, {sr(SRD_WS, 4)}, s{p1.S_T} offen sc1")
            A("s_mov_b64 exec, 1")
            A.uncounted(f"buffer_store_dword v10, off, {sr(SRD_WS, 4)}, s{S_F1} sc1")
            if steal:
                A(f"s_lshl_b32 s{p1.S_T}, s2, 7")
                A(f"s_add_u32 s{p1.S_T}, s{p1.S_T}, {FLAG_T}")
                A.uncounted(f"buffer_store_dword v10, off, {sr(SRD_WS, 4)}, s{p1.S_T} sc1")
            A("s_mov_b64 exec, -1")
            A(f"{skip}:")

        def p1bar(A, stg, role):
            if stg in (2, 4, 7):
                self.jitter()
            if stg == 1:
                self.pad("b1")

            if stg == 7:
                self.pad("p1")
            if stg != self.opt.get('arr', 6):
                return
            srd(A, SRD_DBG, P_DBG, 256)
            if role:
                return
            skip = self.lab("skip")
            A(f"""
            s_cmp_lg_u32 s{S_WAVE}, 0
            s_cbranch_scc1 {skip}
            s_and_b32 s3, s2, 3
            s_lshl_b32 s3, s3, 6
            v_mov_b32 v13, 1
            s_mov_b64 exec, 1
            """)
            A.uncounted(f"buffer_atomic_add v13, off, {sr(SRD_DBG, 4)}, s3 sc1")
            A("s_mov_b64 exec, -1")
            A(f"{skip}:")


        def clear_misc(A):
            A(f"""
            s_lshl_b32 s3, s{S_WAVE}, 9
            s_add_u32 s3, s3, {L_MISC}
            v_lshl_add_u32 v8, v0, 3, s3
            v_mov_b64 v[6:7], 0
            ds_write_b64 v8, v[6:7]
            ds_write_b64 v8, v[6:7] offset:4096
            """)

        def take_ticket(A, tok):
            self.arrived_check(tok)
            skip = self.lab("skip")
            A(f"""
            s_cmp_lg_u32 s{S_WAVE}, 4
            s_cbranch_scc1 {skip}
            s_and_b32 s0, s2, 7
            s_lshl_b32 s0, s0, 7
            s_add_u32 s0, s0, {FLAG_T}
            v_mov_b32 v13, 1
            s_mov_b64 exec, 1
            """)
            A.uncounted(f"buffer_atomic_add v13, off, {sr(SRD_WS, 4)}, s0 sc0 sc1")
            A("s_mov_b64 exec, -1")
            A(f"{skip}:")

        def p2step(A, t, role):
            if t in (3, 10, 17, 26):
                self.jitter()
            if t == 8 and early_poll:
                clear_misc(A)
            if t == 14 and early_poll and not role:
                st["dbg"] = self.arrived_load()
            if t in (4, 8, 12, 16, 20, 24):
                self.stamp(A, f"p2_{t}")
            if t == self.opt.get('polls', 25) - 1 and early_poll and not role:
                self.arrived_check(st["dbg"])
            if early_poll and not role and t >= 4:
                early, consts = self.setup_units()
                units, lo, hi = (early, 4, 12) if t < 12 else (consts, 12, 28)
                for u in units[len(units) * (t - lo) // (hi - lo):len(units) * (t + 1 - lo) // (hi - lo)]:
                    for x in u:
                        A(x)
            tk = self.opt.get("tk", 16)
            if steal and early_poll and role and t == tk - 7:
                st["dbg"] = self.arrived_load()
            if steal and early_poll and role and t == tk:
                take_ticket(A, st["dbg"])
            if early_poll and role and t >= 16 and t % 2 == 0 and not steal:
                for x in self.wd_dma((t - 16) // 2):
                    A(x)
            if t == self.opt.get('polls', 25) and early_poll and not role:
                st["poll"] = self.masked(POLLMASK, POLL)

        def p2seq(A, n, role, seq, free):
            dead = lambda k: max(i for i, x in enumerate(seq) if x[1] <= k) + 1
            if n in (6, 20, 36, 50):
                self.jitter()
            if n == free + 1:
                clear_misc(A)
            if role:
                if n > free and (n - free) % 2 == 1 and (n - free) // 2 < 6:
                    for x in self.wd_dma((n - free) // 2):
                        A(x)
                return
            if n == 26:
                st["dbg"] = self.arrived_load()
            if n == free:
                self.arrived_check(st["dbg"])
            early, consts = self.setup_units()
            lo, mid = dead(3), max(dead(11), dead(3) + 14)
            for units, a_, b_ in ((early, lo, mid), (consts, mid, min(56, mid + 16))):
                if a_ <= n < b_:
                    for u in units[len(units) * (n - a_) // (b_ - a_):len(units) * (n + 1 - a_) // (b_ - a_)]:
                        for x in u:
                            A(x)
            if n == self.opt.get("polls2", 50):
                st["poll"] = self.masked(POLLMASK, POLL)

        def qkv_done(A, role):
            if not role:
                self.one_lane_store(1, S_F1, wave=0)
                self.stamp(A, "rt_pubq")

        def regular_end(A, role):
            self.jitter()
            if self.opt.get("pad_p2"):
                self.pad("p2")
                if not role:
                    st["poll"] = self.masked(POLLMASK, POLL)
            if not role:
                A.wait_tok(st["poll"])
            A(f"s_branch {self.name}_{'g' if role else 'a'}_e2")

        def special_end(A, role):
            self.jitter()
            A("s_waitcnt vmcnt(0) lgkmcnt(0)")
            self.stamp(A, "q_drain")
            A("s_barrier")
            qkv_done(A, role)
            self.pad("p2")
            clear_misc(A)
            A("s_waitcnt lgkmcnt(0)")
            A("s_barrier")
            if steal and role:
                take_ticket(A, self.arrived_load())
                A("s_waitcnt vmcnt(0)")
            A(f"s_branch {self.name}_{'g' if role else 'a'}_plain")

        h = dict(stamp=self.stamp, label=self.lab, entry=entry, prologue=self.warm, target=self.target, prefetch=self.data_prefetch, p1bar=p1bar, p2step=p2step, p2seq=p2seq,
                 idle=lambda A, role: (None if steal else self.precompute_g0(A)) if role else self.precompute(A, 0),
                 qkv_done=qkv_done, regular_end=regular_end, special_end=special_end)
        if self.opt.get("p1exit"):
            h["p1exit"] = self.finish
        if self.opt.get("p2exit"):
            h["p2exit"] = self.finish
        return h

    def data_prefetch(self, A, which):
        if not self.opt.get("pf", 3) >> which & 1:
            return
        if which == 2:
            a, n = self.opt.get("p0a", 1), self.opt.get("p0n", 2)
            srd_tail(A, p1.SRD_G, D * F * 2)
            srd_tail(A, p1.SRD_U, D * F * 2)
            A(f"""
            s_lshl_b32 s18, s2, 3
            s_add_u32 s18, s18, s{S_WAVE}
            s_lshl_b32 s19, s18, 7
            v_lshl_add_u32 v13, v0, 18, s19
            s_mul_i32 s18, s18, 896
            v_lshl_add_u32 v14, v0, 7, s18
            s_mov_b32 s18, {a * 64 * 3584}
            s_mov_b32 s19, {a * 64 * 2688}
            s_mov_b64 exec, {(1 << n) - 1}
            buffer_load_dword v12, v14, {sr(p1.SRD_X, 4)}, 0 offen offset:{128 * a}
            buffer_load_dword v12, v13, {sr(p1.SRD_G, 4)}, s18 offen
            buffer_load_dword v12, v13, {sr(p1.SRD_U, 4)}, s18 offen
            buffer_load_dword v12, v13, {sr(p1.SRD_P, 4)}, s19 offen
            s_mov_b64 exec, -1
            """)
            return
        if which == 0 and self.opt.get("pfx"):
            skip, lab = self.opt.get("pfskip", 3), self.lab("skip")
            srd_tail(A, p1.SRD_G, D * F * 2)
            srd_tail(A, p1.SRD_U, D * F * 2)
            A.wait(lg=0)
            A(f"""
            s_bitcmp1_b32 s2, 2
            s_cbranch_scc1 {lab}
            s_lshr_b32 s10, s2, 3
            s_lshl_b32 s10, s10, 2
            s_and_b32 s11, s2, 3
            s_add_u32 s10, s10, s11
            s_lshl_b32 s10, s10, 3
            s_add_u32 s10, s10, s{S_WAVE}
            s_lshl_b32 s11, s10, 7
            v_lshl_add_u32 v13, v0, 17, s11
            s_mov_b32 s10, {skip * 64 * 3584}
            s_mov_b32 s11, {skip * 64 * 2688}
            s_mov_b64 exec, 0x3fff
            """)
            for d, so in ((p1.SRD_G, "s10"), (p1.SRD_U, "s10"), (p1.SRD_P, "s11"), (p1.SRD_X, "0")):
                A.uncounted(f"buffer_load_dword v11, v13, {sr(d, 4)}, {so} offen")
            A("s_mov_b64 exec, -1")
            A(f"{lab}:")
            return
        A(f"""
        s_lshl_b32 s18, s2, 3
        s_add_u32 s18, s18, s{S_WAVE}
        s_lshl_b32 s19, s18, 7
        v_lshl_add_u32 v13, v0, 18, s19
        """)
        if which == 0:
            skip = self.opt.get("pfskip", 3)
            srd_tail(A, p1.SRD_G, D * F * 2)
            srd_tail(A, p1.SRD_U, D * F * 2)
            A(f"""
            s_mul_i32 s18, s18, 896
            v_lshl_add_u32 v14, v0, 7, s18
            s_mov_b32 s18, {skip * 64 * 3584}
            s_mov_b32 s19, {skip * 64 * 2688}
            s_mov_b64 exec, {(1 << (7 - skip)) - 1}
            buffer_load_dword v11, v14, {sr(p1.SRD_X, 4)}, 0 offen offset:{128 * skip}
            buffer_load_dword v11, v13, {sr(p1.SRD_P, 4)}, s19 offen
            s_mov_b64 exec, 0x7f
            buffer_load_dword v11, v13, {sr(p1.SRD_G, 4)}, s18 offen
            buffer_load_dword v11, v13, {sr(p1.SRD_U, 4)}, s18 offen
            s_mov_b64 exec, -1
            """)
        else:
            srd(A, 4, P_WD, F * D * 2)
            srd(A, 12, P_WO, D * D * 2)
            A(f"""
            s_mov_b64 exec, 0x7f
            buffer_load_dword v11, v13, s[4:7], 0 offen
            buffer_load_dword v11, v13, s[12:15], 0 offen
            s_mov_b64 exec, -1
            """)

    def code_prefetch_first(self, A):
        here = self.lab("pc")
        A(f"""
        s_getpc_b64 s[4:5]
        {here}:
        s_lshr_b32 s6, s2, 3
        s_mul_i32 s6, s6, {24 * 128}
        v_lshrrev_b32 v2, 6, v0
        v_mul_u32_u24 v2, 61, v2
        v_sub_u32 v2, v0, v2
        s_sub_u32 s4, s4, {here}-{self.name}
        s_subb_u32 s5, s5, 0
        v_lshl_add_u32 v2, v2, 7, s6
        v_min_u32 v2, {self.name}_exit-{self.name}, v2
        s_mov_b64 exec, 7
        global_load_dword v12, v2, s[4:5]
        s_mov_b64 exec, -1
        """)

    def code_prefetch(self, A):
        if not self.opt.get("cpf", 2):
            return
        here, skip = self.lab("pc"), self.lab("skip")
        if self.opt.get("cpf", 2) == 2:
            A(f"""
            s_cmp_lg_u32 s{S_WAVE}, 7
            s_cbranch_scc1 {skip}
            v_lshlrev_b32 v10, 7, v0
            s_mov_b64 exec, 0x7f
            """)
            A.uncounted(f"buffer_load_dword v11, v10, {sr(p1.SRD_GW, 4)}, 0 offen")
            A("s_mov_b64 exec, -1")
            A(f"{skip}:")
            return
        A(f"""
        s_cmp_lg_u32 s{S_WAVE}, 7
        s_cbranch_scc1 {skip}
        s_getpc_b64 s[0:1]
        {here}:
        s_sub_u32 s0, s0, {here}-{self.name}
        s_subb_u32 s1, s1, 0
        s_lshr_b32 s{p1.S_T}, s2, 3
        s_mul_i32 s{p1.S_T}, s{p1.S_T}, {17 * 128}
        v_lshl_add_u32 v10, v0, 7, s{p1.S_T}
        v_min_u32 v10, {self.name}_exit-{self.name}, v10
        s_mov_b64 exec, 0x1ffff
        """)
        A.uncounted("global_load_dword v11, v10, s[0:1]")
        A("v_lshlrev_b32 v10, 7, v0")
        A.uncounted(f"buffer_load_dword v11, v10, {sr(p1.SRD_GW, 4)}, 0 offen")
        if self.opt.get("tlb"):
            A("v_lshlrev_b32 v10, 20, v0")
            A.uncounted(f"buffer_load_dword v11, v10, {sr(SRD_WS, 4)}, 0 offen offset:3968 sc1")
            if self.opt["tlb"] > 1:
                srd(A, 4, P_OUT, S * D * 2)
                srd(A, 12, P_WD, F * D * 2)
                A.uncounted(f"buffer_load_dword v11, v10, s[4:7], 0 offen")
                A.uncounted(f"buffer_load_dword v11, v10, s[12:15], 0 offen")
        A("s_mov_b64 exec, -1")
        A(f"{skip}:")

    def precompute(self, A, role):
        T, T2 = 0, 1
        A(f"""
        s_and_b32 s{T}, s2, 7
        s_lshr_b32 s{T2}, s2, 3
        s_lshl_b32 s{S_HEAD}, s{T}, 1
        s_lshr_b32 s{S_QB}, s2, 7
        s_add_u32 s{S_HEAD}, s{S_HEAD}, s{S_QB}
        s_and_b32 s{S_QB}, s{T2}, 15
        s_and_b32 s{S_GW}, s{S_WAVE}, 3
        s_lshl_b32 s{T}, s{S_WAVE}, 8
        s_add_u32 s{T}, s{T}, {M_HW}
        v_lshl_add_u32 v{VHW}, v0, 2, s{T}
        """)
        steal = self.opt.get("steal", 0)
        if role == 0:
            if not steal:
                self.out_tile(A)
            self.precompute_a(A)
        else:
            if steal:
                self.precompute_g0(A)
            self.precompute_g(A)
            if not steal:
                self.precompute_g2(A)

    def resolve_ticket(self):
        A = self.A
        skip, got, loop, post = (self.lab(x) for x in ("skip", "got", "steal", "post"))
        A(f"""
        s_cmp_lg_u32 s{S_WAVE}, 4
        s_cbranch_scc1 {skip}
        v_readfirstlane_b32 s{S_NB}, v15
        s_and_b32 s{S_MB}, s2, 7
        s_cmp_lt_u32 s{S_NB}, 28
        s_cbranch_scc1 {got}
        v_lshlrev_b32 v4, 7, v0
        v_add_u32 v4, {FLAG_T}, v4
        s_mov_b32 s{S_SPIN}, 256
        s_mov_b64 exec, 0xff
        {loop}:
        """)
        A.auto = False
        A.uncounted(f"buffer_load_dword v5, v4, {sr(SRD_WS, 4)}, 0 offen sc1")
        A._emit_raw("s_waitcnt vmcnt(0)")
        A(f"""
        v_cmp_gt_u32 vcc, 28, v5
        s_mov_b32 s0, 0x10700
        s_ff1_i32_b32 s{S_MB}, vcc_lo
        s_cmp_lt_i32 s{S_MB}, 0
        s_cbranch_scc1 {post}
        s_sub_u32 s{S_SPIN}, s{S_SPIN}, 1
        s_cbranch_scc1 {post}
        s_lshl_b32 s1, s{S_MB}, 7
        s_add_u32 s1, s1, {FLAG_T}
        v_mov_b32 v5, 1
        s_mov_b64 exec, 1
        """)
        A.uncounted(f"buffer_atomic_add v5, off, {sr(SRD_WS, 4)}, s1 sc0 sc1")
        A._emit_raw("s_waitcnt vmcnt(0)")
        A(f"""
        v_readfirstlane_b32 s{S_NB}, v5
        s_mov_b64 exec, 0xff
        s_cmp_ge_u32 s{S_NB}, 28
        s_cbranch_scc1 {loop}
        {got}:
        s_lshl_b32 s{S_MB}, s{S_MB}, 2
        s_and_b32 s0, s{S_NB}, 3
        s_add_u32 s0, s0, s{S_MB}
        s_lshr_b32 s1, s{S_NB}, 2
        s_lshl_b32 s1, s1, 8
        s_add_u32 s0, s0, s1
        s_bitset1_b32 s0, 16
        {post}:
        s_mov_b64 exec, -1
        v_mov_b32 v4, {M_TK}
        v_mov_b32 v5, s0
        """)
        A.uncounted("ds_write_b32 v4, v5")
        A.auto = True
        A(f"{skip}:")

    def read_ticket(self, nap=0):
        A = self.A
        A(f"v_mov_b32 v4, {M_TK}")
        load = "ds_read_b32 v6, v4"
        self.check_words(load, "v_cmp_eq_u32 vcc, 0, v6", A(load), nap=nap)
        A(f"""
        v_readfirstlane_b32 s0, v6
        s_and_b32 s{S_MB}, s0, 31
        s_bfe_u32 s{S_NB}, s0, 0x30008
        """)

    def out_tile(self, A):
        sg = self.opt.get("sg")
        ne = self.opt.get("ne", 32)
        if ne:
            A(f"""
            s_lshr_b32 s0, s2, 3
            s_bitcmp1_b32 s2, 0
            s_cselect_b32 s1, {ne}, 0
            s_cselect_b32 s{S_NB}, {56 - ne}, {ne}
            s_cmp_ge_u32 s0, s{S_NB}
            s_cselect_b32 s{S_NB}, 7, 0
            s_add_u32 s0, s0, s1
            s_mul_i32 s{S_MB}, s0, 9363
            s_lshr_b32 s{S_MB}, s{S_MB}, 16
            s_mul_i32 s1, s{S_MB}, 7
            s_sub_u32 s0, s0, s1
            s_or_b32 s{S_NB}, s{S_NB}, s0
            s_min_u32 s{S_MB}, s{S_MB}, 7
            s_bfe_u32 s0, s2, 0x20001
            s_lshl_b32 s0, s0, 3
            s_add_u32 s{S_MB}, s{S_MB}, s0
            """)
            return
        if sg is None:
            A(f"""
            s_and_b32 s{S_MB}, s2, 7
            s_lshl_b32 s{S_MB}, s{S_MB}, 2
            s_bfe_u32 s{S_NB}, s2, 0x20003
            s_add_u32 s{S_MB}, s{S_MB}, s{S_NB}
            s_lshr_b32 s{S_NB}, s2, 5
            """)
            return
        A(f"""
        s_add_u32 s0, s2, {7 - sg}
        s_and_b32 s0, s0, 7
        s_lshl_b32 s0, s0, 5
        s_lshr_b32 s1, s2, 3
        s_add_u32 s0, s0, s1
        s_mul_i32 s{S_MB}, s0, 9363
        s_lshr_b32 s{S_MB}, s{S_MB}, 16
        s_mul_i32 s1, s{S_MB}, 7
        s_sub_u32 s{S_NB}, s0, s1
        s_cmp_ge_u32 s0, 224
        s_cselect_b32 s{S_NB}, 7, s{S_NB}
        s_min_u32 s{S_MB}, s{S_MB}, 31
        """)

    def precompute_a(self, A):
        T, T2 = 0, 1
        a0, a1 = S_Q, S_Q + 1
        A(f"""
        s_mul_i32 s{T}, s{S_HEAD}, 28
        s_add_u32 s{T2}, s{T}, 27
        s_lshr_b32 s{a0}, s{T}, 6
        s_lshr_b32 s{a1}, s{T2}, 6
        s_sub_u32 s{a1}, s{a1}, s{a0}
        v_and_b32 v5, 1, v0
        v_mul_u32_u24 v5, s{a1}, v5
        v_bfe_u32 v6, v0, 1, 1
        v_mad_u32_u24 v5, v6, 7, v5
        v_bfe_u32 v6, v0, 2, 2
        v_lshl_add_u32 v5, v6, 4, v5
        s_lshl_b32 s{a1}, s{S_GW}, 6
        s_add_u32 s{a1}, s{a1}, s{a0}
        v_add_u32 v5, s{a1}, v5
        s_lshl_b32 s{a1}, s{S_QB}, 4
        s_lshr_b32 s{T}, s{S_HEAD}, 3
        s_add_u32 s{T}, s{T}, s{a1}
        s_add_u32 s{T}, s{T}, 14
        v_writelane_b32 v5, s{T}, 16
        v_lshlrev_b32 v5, 7, v5
        v_add_u32 v{VPOLL}, {FLAG_S}, v5
        v_lshrrev_b32 v5, 5, v0
        v_mul_u32_u24 v5, {7168 - 512}, v5
        v_add_u32 v{VV0}, v5, v{VL16}
        s_mul_i32 s{S_OO}, s{S_HEAD}, 7
        s_lshr_b32 s{S_OO}, s{S_OO}, 1
        s_lshl_b32 s{S_OO}, s{S_OO}, 9
        s_mul_i32 s{T2}, s{S_GW}, {16 * 28672}
        s_add_u32 s{T}, s{T2}, s{S_OO}
        s_add_u32 s{T}, s{T}, {WS_K}
        """)
        srd(A, SRD_K, P_WS, 16 * 28672, add=f"s{T}")
        A(f"""
        s_mul_i32 s{T}, s{S_HEAD}, 448
        s_add_u32 s{T}, s{T}, s{T2}
        s_add_u32 s{T}, s{T}, {WS_V}
        """)
        srd(A, SRD_V, P_WS, 16 * 28672, add=f"s{T}")
        A(f"s_lshl_b32 s{T2}, s{S_QB}, 2")
        for j in range(4):
            A(f"""
            s_add_u32 s{T}, s{S_GW}, {j + 1}
            s_and_b32 s{T}, s{T}, 3
            s_add_u32 s{T}, s{T}, s{T2}
            s_mul_i32 s{T}, s{T}, 28672
            s_add_u32 s{S_Q + j}, s{T}, s{S_OO}
            """)
        A(f"""
        s_add_u32 s{T}, s{T2}, s{S_GW}
        s_lshl_b32 s{S_OFF}, s{T}, 7
        s_add_u32 s{S_AG}, s{S_OFF}, {WS_G}
        s_lshl_b32 s{T}, s{T}, 4
        s_add_u32 s{T}, s{T}, s{S_HEAD}
        s_lshl_b32 s{S_OO}, s{T}, 11
        s_add_u32 s{S_OO}, s{S_OO}, {WS_O}
        s_lshl_b32 s{S_OF}, s{T}, 7
        s_add_u32 s{S_OF}, s{S_OF}, {FLAG_O}
        s_mov_b32 s{S_ME}, 0x0fffffff
        s_mov_b32 s{S_ME + 1}, 0x0fffffff
        """)

    def precompute_g0(self, A):
        T = 0
        srd(A, SRD_WD, P_WD, F * D * 2)
        A(f"""
        v_lshrrev_b32 v5, 3, v0
        v_mul_u32_u24 v6, 896, v5
        v_lshrrev_b32 v5, 2, v0
        v_and_b32 v5, 4, v5
        v_and_b32 v7, 7, v0
        v_xor_b32 v5, v5, v7
        v_lshl_add_u32 v{VDW0}, v5, 4, v6
        v_add_u32 v{VDW1}, {7168 - 1024}, v{VDW0}
        s_and_b32 s{S_GW}, s{S_WAVE}, 3
        s_mul_i32 s{S_RB}, s{S_GW}, 14336
        s_mul_i32 s{S_RA}, s{S_GW}, 12288
        s_add_u32 s{S_RA}, s{S_RA}, {L_RING}
        """)
        if not self.opt.get("steal", 0):
            self.out_tile(A)
            self.wd_offset(A)

    def wd_offset(self, A):
        A(f"""
        s_lshl_b32 s0, s{S_NB}, 7
        s_mul_i32 s{S_WDO}, s{S_GW}, {448 * 896}
        s_add_u32 s{S_WDO}, s{S_WDO}, s0
        """)

    def precompute_g(self, A):
        T, T2 = 0, 1
        srd(A, SRD_WO, P_WO, D * D * 2)
        A(f"""
        s_and_b32 s{T2}, s{S_GW}, 1
        s_lshl_b32 s{T2}, s{T2}, 3
        v_and_b32 v5, 1, v0
        v_lshlrev_b32 v5, 2, v5
        v_bfe_u32 v6, v0, 1, 1
        v_add_u32 v5, v5, v6
        v_bfe_u32 v6, v0, 4, 1
        v_lshl_add_u32 v5, v6, 1, v5
        v_and_b32 v6, 8, v0
        v_xor_b32 v5, v5, v6
        v_xor_b32 v5, s{T2}, v5
        v_lshrrev_b32 v6, 5, v0
        v_bfe_u32 v7, v0, 2, 2
        v_lshl_add_u32 v6, v6, 2, v7
        v_lshlrev_b32 v6, 7, v6
        v_lshl_add_u32 v{VTR}, v5, 3, v6
        """)

    def precompute_g2(self, A):
        T, T2 = 0, 1
        A(f"""
        s_lshl_b32 s{T}, s{S_NB}, 7
        s_mul_i32 s{S_WOO}, s{S_GW}, {112 * 896}
        s_add_u32 s{S_WOO}, s{S_WOO}, s{T}
        s_and_b32 s{T2}, s{S_GW}, 1
        s_lshl_b32 s{S_OUTO}, s{T2}, 6
        s_add_u32 s{S_OUTO}, s{S_OUTO}, s{T}
        s_lshr_b32 s{T}, s{S_GW}, 1
        s_lshl_b32 s{T2}, s{S_MB}, 1
        s_add_u32 s{T}, s{T}, s{T2}
        s_lshl_b32 s{S_GOFF}, s{T}, 7
        s_add_u32 s{S_GOFF}, s{S_GOFF}, {WS_G}
        s_mul_i32 s{T}, s{T}, {32 * 896}
        s_add_u32 s{S_OUTO}, s{S_OUTO}, s{T}
        s_mul_i32 s{S_HOFF}, s{S_MB}, {2 * 114688}
        s_mul_i32 s{T}, s{S_GW}, {28 * 1024}
        s_add_u32 s{S_HOFF}, s{S_HOFF}, s{T}
        s_add_u32 s{S_HOFF}, s{S_HOFF}, {WS_H}
        s_lshr_b32 s{T}, s{S_MB}, 1
        s_lshl_b32 s{T}, s{T}, 4
        s_mul_i32 s{T2}, s{S_GW}, 7
        s_lshr_b32 s{T2}, s{T2}, 1
        s_add_u32 s{T}, s{T}, s{T2}
        s_lshl_b32 s{T}, s{T}, 7
        s_add_u32 s{T}, s{T}, {FLAG_S}
        v_and_b32 v5, 3, v0
        v_lshl_add_u32 v{VPOLL}, v5, 7, s{T}
        """)

    def k_load(self, b):
        return [f"buffer_load_dwordx4 {vr(KB + 8 * b, 4)}, v{VK[b]}, {sr(SRD_K, 4)}, s{S_OFF} offen{LD}",
                f"buffer_load_dwordx4 {vr(KB + 8 * b + 4, 4)}, v{VK[b]}, {sr(SRD_K, 4)}, s{S_OFF} offen offset:1024{LD}"]

    def v_load(self, b):
        return [f"s_mov_b64 exec, {sr(S_ME, 2)}",
                f"buffer_load_dwordx4 {vr(VB + 8 * b, 4)}, v{VV[2 * b]}, {sr(SRD_V, 4)}, s{S_OFF} offen{LD}",
                f"buffer_load_dwordx4 {vr(VB + 8 * b + 4, 4)}, v{VV[2 * b + 1]}, {sr(SRD_V, 4)}, s{S_OFF} offen{LD}",
                "s_mov_b64 exec, -1"]

    @staticmethod
    def qk(i, half):
        b, j = (i >> 2) & 3, i & 3
        return mfma(SB + 16 * (i & 1), KB + 8 * b + 4 * half, QF + 8 * j + 4 * half, "0" if half == 0 else None)

    @staticmethod
    def pv(i, half, first=False):
        b, j = (i >> 2) & 3, i & 3
        return mfma(OA + 16 * j, VB + 8 * b + 4 * half, PB + 4 * half, "0" if first else None)

    @staticmethod
    def grp(i, g):
        r = SB + 16 * (i & 1) + 4 * g
        return [f"v_exp_f32 v{r + k}, v{r + k}" for k in range(4)] + \
               [f"v_cvt_pk_bf16_f32 v{PB + 2 * g + k}, v{r + 2 * k}, v{r + 2 * k + 1}" for k in range(2)]

    def wait_pair(self, base):
        A = self.A
        want = {f"v{base + 7}"}
        for e in A.vm:
            if e[1] & want:
                A.wait_tok(e[0])
                return

    def setup_units(self):
        R = Rec()
        for b in range(1, 4):
            R(f"v_add_u32 v{VK[b]}, {b * 28672}, v{VL16}")
        for n in range(1, 8):
            R(f"v_add_u32 v{VV[n]}, {n * 14336}, v{VV0}")
        for j in range(4):
            R(f"""
            s_add_u32 s0, s{S_GW}, {j + 1}
            s_and_b32 s0, s0, 3
            s_mul_i32 s0, s0, 12288
            s_add_u32 s0, s0, {L_OP + (j % 3) * 4096}
            v_add_u32 v{VXA + j}, s0, v{VL16}
            """)
        self.sync_addresses(M_AS, A=R, T=0)
        R(f"""
        s_and_b32 s0, s{S_HEAD}, 1
        v_lshrrev_b32 v{VMLO}, 5, v0
        v_or_b32 v{VMHI}, s0, v{VMLO}
        v_xor_b32 v{VMHI}, s0, v{VMHI}
        v_add_u32 v{VMHI}, -1, v{VMHI}
        v_xor_b32 v{VMLO}, 1, v{VMLO}
        v_and_b32 v{VMLO}, s0, v{VMLO}
        v_add_u32 v{VMLO}, -1, v{VMLO}
        v_and_b32 v{VGAD}, 31, v0
        v_lshlrev_b32 v{VGAD}, 2, v{VGAD}
        """)
        R(f"""
        v_and_b32 v{VONE}, 31, v0
        v_cmp_eq_u32 s[0:1], 28, v{VONE}
        v_mov_b32 v{VONE}, 0x3f803f80
        v_cndmask_b32 v{VONE}, 0, v{VONE}, s[0:1]
        """)
        return R.units, [[f"v_mov_b32 v{VB + r}, v{VONE}"] for r in range(32)]

    def first_loads(self):
        q = lambda j: [[f"buffer_load_dwordx4 {vr(QF + 8 * j + 4 * t, 4)}, v{VL16}, {sr(SRD_WS, 4)}, s{S_Q + j} offen"
                        f"{' offset:1024' * t}{LD}"] for t in range(2)]
        k = lambda b: [[x] for x in self.k_load(b)]
        return q(0) + k(0) + q(1) + [self.v_load(0)] + q(2) + q(3) + k(1) + \
            [[f"buffer_load_dword v{VGA}, v{VGAD}, {sr(SRD_WS, 4)}, s{S_AG} offen{LD}"]]

    def mask_q(self, j):
        self.wait_pair(QF + 8 * j)
        for r, m in ((0, VMLO), (1, VMLO), (6, VMHI), (7, VMHI)):
            self.A(f"v_and_b32 v{QF + 8 * j + r}, v{QF + 8 * j + r}, v{m}")

    def attn_main(self):
        A = self.A
        todo = [x for kt in range(1, 16) for x in (("v", kt, 4 * kt - 12), ("k", kt + 1, 4 * kt - 10)) if x[1] < 16]
        base = 0

        def loads(i, kind):
            nonlocal base
            if not todo or todo[0][2] > i or (todo[0][2] == i and todo[0][0] != kind) or issued[0] == i:
                return []
            kd, kt, _ = todo.pop(0)
            issued[0] = i
            o = []
            if kt >> 2 != base:
                base = kt >> 2
                o.append(f"s_add_u32 s{S_OFF}, s{S_OFF}, {4 * 28672}")
            if self.opt.get("noload") and i > 8:
                return [x if not x.startswith("buffer") else "s_nop 0" for x in o + (self.v_load(kt & 3) if kd == "v" else self.k_load(kt & 3))]
            return o + (self.v_load(kt & 3) if kd == "v" else self.k_load(kt & 3))

        issued = [-1]
        roll = self.opt.get("roll", 1)
        for i in range(64):
            kt, b, j = i >> 2, (i >> 2) & 3, i & 3
            if self.opt.get("nowait") and i == 9:
                A.auto = False
                self.wait_pair = lambda base: None
            if self.opt.get("nowait") and i == 60:
                A.auto = True
                A("s_waitcnt vmcnt(0)")
            if roll and i == 16:
                lab = self.lab("aloop")
                A(f"s_mov_b32 s{S_T}, 1")
                while A.vm and not A.vm[0][1]:
                    A.vm.pop(0)
                A.lg = []
                st0 = A.state()
                A(f"{lab}:")
            if roll and 32 <= i < 48:
                loads(i, "v")
                loads(i, "k")
                continue
            seq = []
            if i < 3:
                self.mask_q(i + 1)
            if i < 63:
                if j == 3:
                    if i > 8 and self.opt.get("onewait", 0):
                        self.wait_pair(VB + 8 * ((b + 1) & 3))
                    self.wait_pair(KB + 8 * ((b + 1) & 3))
                seq.append(self.qk(i + 1, 0))
            seq += self.grp(i, 0)
            if i:
                seq.append(self.pv(i - 1, 1))
            seq += loads(i, "v")
            seq += self.grp(i, 1)
            if i < 63:
                seq.append(self.qk(i + 1, 1))
            seq += loads(i, "k")
            seq += self.grp(i, 2)
            for x in seq:
                A(x)
            if j == 0:
                self.wait_pair(VB + 8 * b)
            A(self.pv(i, 0, first=i < 4))
            if i == 4:
                A(f"ds_write_b32 v{VHW}, v{VHW}")
            if i in (0, 4, 8, 16):
                self.stamp(A, f"a_t{i}")
            g3 = self.grp(i, 3)
            if roll and i == 31:
                g3 = [f"s_sub_u32 s{S_T}, s{S_T}, 1"] + g3 + [f"s_cbranch_scc0 {lab}"]
            if i > 60:
                w = [f"ds_write_b128 v{VXA + j - 1}, {vr(OA + 16 * (j - 1) + 4 * q, 4)} offset:{1024 * q}" for q in range(4)]
                g3 = [g3[0], w[0], g3[1], w[1], g3[2], w[2], g3[3], w[3]] + g3[4:]
            for x in g3:
                A(x)
            if roll and i == 31:
                assert A.state() == st0 or self.opt.get("nowait") or self.opt.get("noload"), (A.state(), st0)
            if i in (2, 12, 60, 62):
                self.jitter()
            if i == 63:
                self.pad("loop")
                A(f"ds_write_b32 v{VSW}, v{VSW}")
        assert not todo
        load = f"ds_read_b32 v6, v{VSR}"
        tok = A(load)
        A(self.pv(63, 1))
        self.stamp(A, "a_loop")
        self.stamp(A, "rt_loop")
        self.check_words(load, "v_cmp_eq_u32 vcc, 0, v6", tok)
        self.stamp(A, "a_sync")
        self.jitter()

    def lds_sync(self, value_reg, cmp_, VSW=VSW, VSR=VSR):
        A = self.A
        A(f"ds_write_b32 v{VSW}, v{value_reg}")
        load = f"ds_read_b32 v6, v{VSR}"
        tok = A(load)
        self.check_words(load, cmp_, tok)

    def sync_addresses(self, base, VSW=VSW, VSR=VSR, A=None, T=S_T):
        (A or self.A)(f"""
        s_lshl_b32 s{T}, s{S_GW}, 8
        s_add_u32 s{T}, s{T}, {base}
        v_lshl_add_u32 v{VSW}, v0, 2, s{T}
        v_and_b32 v{VSR}, 3, v0
        v_lshlrev_b32 v{VSR}, 8, v{VSR}
        v_add_u32 v{VSR}, {base}, v{VSR}
        """)

    def attn_finish(self):
        A = self.A
        R, O = VB, OA + 48
        order = [3, 0, 1, 2]
        for q in order:
            for p in range(3):
                A(f"ds_read_b128 {vr(R + 16 * p + 4 * q, 4)}, v{VXA + 3} offset:{4096 * p + 1024 * q}")
        for n, q in enumerate(order):
            for k in range(4):
                A(f"v_add_f32 v{R + 4 * q + k}, v{R + 4 * q + k}, v{R + 16 + 4 * q + k}")
            for k in range(4):
                A(f"v_add_f32 v{O + 4 * q + k}, v{O + 4 * q + k}, v{R + 32 + 4 * q + k}")
            for k in range(4):
                A(f"v_add_f32 v{O + 4 * q + k}, v{O + 4 * q + k}, v{R + 4 * q + k}")
            if n == 0:
                A(f"v_mov_b32 v8, v{O + 12}")
                A(f"v_mov_b32 v9, v{O + 12}")
            if n == 1:
                A("v_permlane32_swap_b32 v8, v9")
                A("v_rcp_f32 v12, v9")
            if n == 2:
                A(f"v_med3_f32 v8, v9, s{S_LO}, v{VHI}")
                A(f"v_mul_f32 v12, v12, v{VGA}")
                A("v_cmp_neq_f32 vcc, v8, v9")
        A(f"s_cbranch_vccnz {self.name}_slow")
        A(f"{self.name}_a_fin:")
        for hf in range(2):
            for r in range(8 * hf, 8 * hf + 8):
                A(f"v_mul_f32 v{O + r}, v{O + r}, v12")
            for jj in range(4 * hf, 4 * hf + 4):
                A(f"v_cvt_pk_bf16_f32 v{PB + jj}, v{O + 2 * jj}, v{O + 2 * jj + 1}")
            if hf == 0:
                A(f"buffer_store_dwordx4 {vr(PB, 4)}, v{VL16}, {sr(SRD_WS, 4)}, s{S_OO} offen{ST}")
        A(f"""
        s_mov_b32 exec_lo, 0
        v_mov_b64 {vr(PB + 6, 2)}, 0
        s_mov_b32 exec_lo, -1
        buffer_store_dwordx4 {vr(PB + 4, 4)}, v{VL16}, {sr(SRD_WS, 4)}, s{S_OO} offen offset:1024{ST}
        """)
        self.stamp(A, "a_st")
        self.jitter()
        if self.opt.get("steal", 0):
            self.read_ticket()
        self.tail_setup(0)
        A("s_waitcnt vmcnt(0)")
        self.one_lane_store(1, S_OF, tmp=8)

    def slow_path(self):
        A = self.A
        O, Q = OA + 48, QF + 24
        A.clear()
        A(f"{self.name}_slow:")
        A("s_waitcnt vmcnt(0) lgkmcnt(0)")
        A(f"s_mul_i32 s{S_T}, s{S_GW}, {16 * 28672}")
        for d in (SRD_K, SRD_V):
            A(f"s_sub_u32 s{d}, s{d}, s{S_T}")
            A(f"s_subb_u32 s{d + 1}, s{d + 1}, 0")
            A(f"s_mov_b32 s{d + 2}, {64 * 28672}")
        for r in range(8):
            A(f"v_mov_b32 v{VB + r}, v{VONE}")
        A(f"v_mov_b32 v{VM}, 0xff800000")
        for sub in (0, 1):
            lab = self.lab("slowloop")
            A(f"s_mov_b32 s{S_OFF}, 0")
            if sub:
                for r in range(16):
                    A(f"v_mov_b32 v{O + r}, 0")
            A(f"{lab}:")
            for x in self.k_load(0) + (self.v_load(0) if sub else []):
                A(x)
            A(mfma(SB, KB, Q, "0"))
            A(mfma(SB, KB + 4, Q + 4))
            if not sub:
                for r in range(0, 16, 2):
                    A(f"v_max3_f32 v{VM}, v{SB + r}, v{SB + r + 1}, v{VM}")
            else:
                for r in range(16):
                    A(f"v_sub_f32 v{SB + r}, v{SB + r}, v{VM}")
                for g in range(4):
                    for x in self.grp(0, g):
                        A(x)
                A(mfma(O, VB, PB))
                A(mfma(O, VB + 4, PB + 4))
            A(f"s_add_u32 s{S_OFF}, s{S_OFF}, 28672")
            A(f"s_cmp_lt_u32 s{S_OFF}, {64 * 28672}")
            A(f"s_cbranch_scc1 {lab}")
            if not sub:
                A(f"v_mov_b32 v9, v{VM}")
                A(f"v_permlane32_swap_b32 v9, v{VM}")
                A(f"v_max_f32 v{VM}, v9, v{VM}")
        A(f"""
        v_mov_b32 v8, v{O + 12}
        v_mov_b32 v9, v{O + 12}
        v_permlane32_swap_b32 v8, v9
        v_rcp_f32 v12, v9
        v_mul_f32 v12, v12, v{VGA}
        s_branch {self.name}_a_fin
        """)

    @staticmethod
    def slot(ks):
        k = ks % 13
        return ("A", k) if k < 6 else ("B", k - 6)

    def wd_dma(self, ks):
        reg, sl = self.slot(ks)
        return [f"s_add_u32 m0, s{S_RA if reg == 'A' else S_RB}, {sl * 2048}",
                f"s_add_u32 s0, s{S_WDO}, {ks * 16 * 896}",
                f"buffer_load_dwordx4 v{VDW0}, {sr(SRD_WD, 4)}, s0 offen lds",
                f"buffer_load_dwordx4 v{VDW1}, {sr(SRD_WD, 4)}, s0 offen offset:1024 lds"]

    def wo_dma(self, n):
        return [f"s_add_u32 m0, s{S_RB}, {n * 2048}",
                f"s_add_u32 s{S_T}, s{S_WOO}, {n * 16 * 896}",
                f"buffer_load_dwordx4 v{VDW0}, {sr(SRD_WO, 4)}, s{S_T} offen lds",
                f"buffer_load_dwordx4 v{VDW1}, {sr(SRD_WO, 4)}, s{S_T} offen offset:1024 lds"]

    def h_load(self, ks):
        b = HB + 8 * (ks % 10)
        if self.opt.get("hsame"):
            ks = ks % 2
        return [f"s_add_u32 s{S_T}, s{S_HOFF}, {ks * 1024}",
                f"buffer_load_dwordx4 {vr(b, 4)}, v{VH0}, {sr(SRD_WS, 4)}, s{S_T} offen{LD}",
                f"buffer_load_dwordx4 {vr(b + 4, 4)}, v{VH1}, {sr(SRD_WS, 4)}, s{S_T} offen{LD}"]

    def gemm_start(self, e2):
        A = self.A
        tok = None
        steal = self.opt.get("steal", 0)
        for x in (e2[0] + e2[1] + e2[2] if e2 else sum([self.wd_dma(ks) for ks in range(0 if steal else 6)], [])):
            tok = A(x)
        A("s_setprio 2")
        for ks in range(6, 6 + self.opt.get("gearly", 0)):
            for x in self.wd_dma(ks):
                A(x)
        self.precompute(A, 1)
        if not steal:
            self.arrived_load()
        A.wait_tok(tok)

    def gemm_main(self):
        A = self.A
        toks = {}
        A.clear()
        steal = self.opt.get("steal", 0)
        first = 0 if steal else 6 + self.opt.get("gearly", 0)
        for ks in range(6, first):
            for _ in range(2):
                A.nid += 1
                A.vm.append([A.nid, set()])
                toks[ks] = A.nid
        if not steal:
            A.nid += 1
            A.vm.append([A.nid, {"v7"}])
            dbgtok = A.nid

        def issue(lst, key=None):
            for x in lst:
                t = A(x)
                if t and key is not None:
                    toks[key] = t

        def trr(ks):
            reg, sl = self.slot(ks)
            a = VAWA if reg == "A" else VAWB
            b = WBUF + 8 * (ks % 10)
            o = sl * 2048
            A.wait_tok(toks.get(ks))
            issue([f"ds_read_b64_tr_b16 {vr(b, 2)}, v{a} offset:{o}",
                   f"ds_read_b64_tr_b16 {vr(b + 2, 2)}, v{a} offset:{o + 1024}",
                   f"ds_read_b64_tr_b16 {vr(b + 4, 2)}, v{a + 1} offset:{o}",
                   f"ds_read_b64_tr_b16 {vr(b + 6, 2)}, v{a + 1} offset:{o + 1024}"], ("r", ks))

        def dma(ks):
            if ks >= 13:
                A.wait_tok(toks[("r", ks - 13)])
            issue(self.wd_dma(ks), ks)

        def mm(ks):
            for jj in range(4):
                A(mfma(ACC + 16 * jj, WBUF + 8 * (ks % 10) + 4 * (jj & 1), HB + 8 * (ks % 10) + 4 * (jj >> 1),
                       "0" if ks == 0 else None))

        A(f"""
        ds_write_b32 v{VHW}, v{VHW}
        v_mov_b32 v15, v13
        v_xor_b32 v5, 64, v{VTR}
        v_add_u32 v{VAWA}, s{S_RA}, v{VTR}
        v_add_u32 v{VAWA + 1}, s{S_RA}, v5
        v_and_b32 v13, 7, v0
        v_lshlrev_b32 v13, 8, v13
        v_add_u32 v13, {M_HW}, v13
        """)
        for ks in range(0 if steal else 6):
            trr(ks)
        A(f"""
        v_mov_b32 v{GL16}, v{VL16}
        v_add_u32 v{VAWB}, s{S_RB}, v{VTR}
        v_add_u32 v{VAWB + 1}, s{S_RB}, v5
        s_lshr_b32 s{S_T}, s{S_GW}, 1
        s_mul_i32 s{S_T}, s{S_T}, 114688
        v_add_u32 v{VH0}, s{S_T}, v{GL16}
        s_sub_u32 s{S_T}, 114688, s{S_T}
        v_add_u32 v{VH1}, s{S_T}, v{GL16}
        """)
        self.sync_addresses(M_GS, GSW, GSR)
        load = "ds_read_b32 v6, v13"
        tk = A(load)
        self.check_words(load, "v_cmp_eq_u32 vcc, 0, v6", tk, nap=1)
        self.one_lane_store(2, S_F1, wave=4)
        self.stamp(A, "g_hw")
        self.jitter()
        if steal:
            self.resolve_ticket()
            self.read_ticket(nap=1)
        A(f"s_cmp_ge_u32 s{S_NB}, 7")
        A(f"s_cbranch_scc1 {self.name}_exit")
        if steal:
            self.wd_offset(A)
            for ks in range(self.opt.get("gdeep", 3)):
                dma(ks)
            first = self.opt.get("gdeep", 3)
            self.precompute_g2(A)
        if not steal:
            self.arrived_check(dbgtok)
        A(f"""
        v_and_b32 v5, 31, v0
        v_lshlrev_b32 v5, 2, v5
        buffer_load_dword v{VG}, v5, {sr(SRD_WS, 4)}, s{S_GOFF} offen{LD}
        """)
        A(f"v_add_u32 v{VPW}, s{S_RA}, v{GL16}")
        A(f"v_subrev_u32 v{VGATE}, {M_GS - M_AS}, v{GSR}")
        for jj in range(1, 4):
            A(f"""
            s_xor_b32 s{S_T}, s{S_GW}, {jj}
            s_mul_i32 s{S_T}, s{S_T}, 12288
            s_add_u32 s{S_T}, s{S_T}, {L_RING + 4096 * (jj - 1)}
            v_add_u32 v{VPR + jj - 1}, s{S_T}, v{GL16}
            """)
        self.tail_setup(1)
        deep = self.opt.get("gdeep", 3)
        for ks in range(first, 23):
            if (0 if steal else 6) <= ks - 7 < 10:
                trr(ks - 7)
            A.wait_tok(toks.get(ks - deep))
            dma(ks)
        self.stamp(A, "g_dma")
        self.jitter()
        tok = self.masked("15", POLL)
        self.check_words(POLL, "v_cmp_ne_u32 vcc, 2, v6", tok, mask="15", nap=2)
        A(f"v_sub_f32 v{VG}, 1.0, v{VG}")
        self.stamp(A, "g_flags")
        self.stamp(A, "rt_gflags")
        A("s_setprio 0")
        nh = self.opt.get("nh", 2)
        for ks in range(nh):
            issue(self.h_load(ks))
        ramp = 28 - NDEF - (NDEF - nh)
        for ks in range(28 - NDEF):
            mm(ks)
            if ks in (3, 11):
                self.jitter()
            for _ in range(2 if ks >= ramp else 1):
                if nh < 28:
                    assert nh - 10 <= ks
                    issue(self.h_load(nh))
                    nh += 1
            if ks + 10 < 28:
                trr(ks + 10)
            if 1 <= ks <= 5:
                dma(ks + 22)
        assert nh == 28
        A.wait_tok(toks[("r", 25)])
        for n in range(7):
            issue(self.wo_dma(n))
        A("s_waitcnt lgkmcnt(0)")
        self.stamp(A, "g_pre")
        self.jitter()
        self.stamp(A, "rt_gpre")
        load = f"ds_read_b32 v6, v{VGATE}"
        gp = self.opt.get("gprio", 0)
        if gp:
            A("s_setprio 2")
        tk = A(load)
        self.check_words(load, "v_cmp_eq_u32 vcc, 0, v6", tk, nap=self.opt.get("gnap", 2))
        if gp == 1:
            A("s_setprio 0")
        wr = []
        for jj in (1, 2, 3, 0):
            for n, ks in enumerate(range(28 - NDEF, 28)):
                A(mfma(ACC + 16 * jj, WBUF + 8 * (ks % 10) + 4 * (jj & 1), HB + 8 * (ks % 10) + 4 * (jj >> 1)))
                if n >= min(2, NDEF - 5) and wr:
                    A(wr.pop(0))
            assert not wr
            wr = [f"ds_write_b128 v{VPW}, {vr(ACC + 16 * jj + 4 * q, 4)} offset:{4096 * (jj - 1) + 1024 * q}" for q in range(4)]
            if jj == 3:
                wr.append(f"ds_write_b32 v{GSW}, v{GSW}")
        self.stamp(A, "g_loop")
        self.jitter()
        self.stamp(A, "rt_gloop")
        load = f"ds_read_b32 v6, v{GSR}"
        self.check_words(load, "v_cmp_eq_u32 vcc, 0, v6", A(load))
        for q in range(4):
            for jj in range(1, 4):
                A(f"ds_read_b128 {vr(ACC + 16 * jj + 4 * q, 4)}, v{VPR + jj - 1} offset:{1024 * q}")
        for q in range(4):
            r0 = (4 * q, 4 * q + 2)
            for r in r0:
                A(f"v_pk_add_f32 {vr(ACC + 16 + r, 2)}, {vr(ACC + 16 + r, 2)}, {vr(ACC + 32 + r, 2)}")
            for r in r0:
                A(f"v_pk_add_f32 {vr(ACC + r, 2)}, {vr(ACC + r, 2)}, {vr(ACC + 48 + r, 2)}")
            for r in r0:
                A(f"v_pk_add_f32 {vr(ACC + r, 2)}, {vr(ACC + r, 2)}, {vr(ACC + 16 + r, 2)}")
            for r in r0:
                A(f"v_pk_mul_f32 {vr(ACC + r, 2)}, {vr(ACC + r, 2)}, {vr(VG, 2)} op_sel_hi:[1,0]")

    def tail_setup(self, role):
        A = self.A
        A(f"""
        s_lshl_b32 s{S_T}, s{S_MB}, 5
        s_add_u32 s{S_T}, s{S_T}, s{S_GW}
        s_lshl_b32 s{S_MO}, s{S_T}, 7
        s_add_u32 s{S_MO}, s{S_MO}, {FLAG_O + role * 2048}
        v_lshlrev_b32 v{VTP if role else 5}, 9, v0
        s_lshl_b32 s{10 if role else S_T3}, s{S_T}, 11
        s_add_u32 s{10 if role else S_T3}, s{10 if role else S_T3}, {WS_O + role * 32768}
        s_lshl_b32 s{11 if role else S_T2}, s{S_GW}, 11
        """)
        if role == 1:
            srd(A, SRD_OUT, P_OUT, S * D * 2)
            A(f"""
            s_lshr_b32 s{S_T}, s{S_GW}, 1
            s_lshl_b32 s{S_OFF}, s{S_T}, 15
            s_add_u32 s{S_OFF}, s{S_OFF}, {L_O}
            v_add_u32 v14, s{S_OFF}, v{GL16}
            s_mul_i32 s{S_T}, s{S_GW}, 2560
            s_add_u32 s{S_T}, s{S_T}, {L_TR}
            v_and_b32 v7, 31, v0
            v_mul_u32_u24 v7, 80, v7
            v_lshrrev_b32 v8, 5, v0
            v_lshl_add_u32 v7, v8, 5, v7
            v_add_u32 v7, s{S_T}, v7
            v_lshrrev_b32 v4, 2, v0
            v_and_b32 v15, 3, v0
            v_lshlrev_b32 v15, 4, v15
            v_mul_u32_u24 v8, 80, v4
            v_add_u32 v8, v8, v15
            v_add_u32 v8, s{S_T}, v8
            v_mul_u32_u24 v4, 896, v4
            v_add_u32 v{VOUT}, v4, v15
            s_add_u32 s{S_OFF}, s{S_OUTO}, {16 * 896}
            """)

    def tail(self, role):
        A = self.A
        L16 = GL16 if role else VL16
        load = f"buffer_load_dword v6, v{VTP if role else 5}, {sr(SRD_WS, 4)}, s{S_MO} offen sc1"
        if role == 1:
            A("s_waitcnt vmcnt(0)")
        tok = self.masked("15", load)
        A.wait(lg=0)
        self.stamp(A, "t_bar0")
        A("s_barrier")
        self.stamp(A, "t_bar1")
        self.jitter()
        self.check_words(load, "v_cmp_ne_u32 vcc, 1, v6", tok, mask="15", alt=4 if self.opt.get("pp", 0) else None)
        self.stamp(A, "t_flag")
        self.jitter()
        self.stamp(A, "rt_tflag")
        toks = []
        for step in range(4):
            A(f"s_add_u32 m0, s{11 if role else S_T2}, {L_O + role * 32768 + step * 8192}")
            A(f"s_add_u32 s{S_T}, s{10 if role else S_T3}, {step * 8192}")
            for q in range(2):
                t = A(f"buffer_load_dwordx4 v{L16}, {sr(SRD_WS, 4)}, s{S_T} offen offset:{1024 * q} sc1 lds")
            toks.append(t)
        A.wait_tok(toks[0])
        A("s_barrier")
        self.stamp(A, "t_odata")
        self.jitter()
        self.stamp(A, "rt_odata")
        if role == 0:
            for step in range(1, 4):
                A.wait_tok(toks[step])
                A("s_barrier")
            return

        def rd(k):
            o = (28 * (k >> 1) + 16 * (k & 1)) * 128
            b = k % 4
            return [f"ds_read_b128 {vr(TB_ + 4 * b, 4)}, v14 offset:{k * 1024}",
                    f"ds_read_b64_tr_b16 {vr(TA_ + 4 * b, 2)}, v{VTR} offset:{o}",
                    f"ds_read_b64_tr_b16 {vr(TA_ + 4 * b + 2, 2)}, v{VTR} offset:{o + 1024}"]

        for k in range(3):
            for x in rd(k):
                A(x)
        for k in range(32):
            A(mfma(ACC, TA_ + 4 * (k % 4), TB_ + 4 * (k % 4)))
            if k + 3 < 32:
                if (k + 3) % 8 == 0:
                    A.wait_tok(toks[(k + 3) // 8])
                    A("s_barrier")
                for x in rd(k + 3):
                    A(x)
        self.stamp(A, "t_mm")
        self.jitter()
        for hf in range(2):
            for jj in range(4):
                A(f"v_cvt_pk_bf16_f32 v{TA_ + 4 * hf + jj}, v{ACC + 8 * hf + 2 * jj}, v{ACC + 8 * hf + 2 * jj + 1}")
            A(f"ds_write_b128 v7, {vr(TA_ + 4 * hf, 4)} offset:{16 * hf}")
        for q in range(2):
            A(f"ds_read_b128 {vr(TB_ + 4 * q, 4)}, v8 offset:{16 * 80 * q}")
        for q in range(2):
            A(f"buffer_store_dwordx4 {vr(TB_ + 4 * q, 4)}, v{VOUT}, {sr(SRD_OUT, 4)}, s{S_OFF if q else S_OUTO} offen{('', ' sc1', ' nt', ' sc0 sc1')[self.opt.get('ost', 0)]}")

    def finish(self):
        A = self.A
        if self.opt.get("pad_end"):
            A("s_waitcnt vmcnt(0)")
            skip = self.lab("skip")
            if "padwg" in self.opt:
                A(f"s_cmp_lg_u32 s2, {self.opt['padwg']}")
                A(f"s_cbranch_scc1 {skip}")
            self.pad("end")
            A(f"{skip}:")
        if self.stamp.enabled:
            A("s_waitcnt vmcnt(0)")
            self.stamp(A, "t_end")
            self.stamp(A, "rt_end")
            self.stamp.flush(A)
        A("s_endpgm")

    def build(self):
        A, name = self.A, self.name
        A(f".globl {name}\n.p2align 8\n.type {name},@function\n{name}:")
        A("s_cmp_ge_u32 s2, 256")
        A(f"s_cbranch_scc1 {name}_exit")
        if any(k.startswith("pad_") for k in self.opt):
            A("s_memrealtime s[96:97]")
        self.stamp(A, "rt0")
        self.stamp(A, "t0")
        p1.SX = self.opt.get('sx')
        p1.decode(A, self.code_prefetch_first if self.opt.get('cpf', 2) == 2 else None, self.opt.get('cpos', 1))
        A(f"s_cmp_ge_u32 s{p1.S_CG}, 14")
        A(f"s_cbranch_scc1 {name}_q")
        st0 = A.save()
        p1.programs(A, "KV", ST + self.opt.get("ntkv", 0) * " nt", self.hooks(True), self.opt)
        A.restore(st0)
        A(f"{name}_q:")
        p1.programs(A, "Q", ST + self.opt.get("ntq", 0) * " nt", self.hooks(False), self.opt)
        if self.opt.get("p1exit") or self.opt.get("p2exit"):
            for f in self.late:
                A.clear()
                f(A)
            A(f"{name}_exit:")
            A("s_endpgm")
            pads = A.fix_hazards()
            return A.text(), kernel_desc(name), pads
        e2 = p1.final_epilogue(ST + self.opt.get("ntkv", 0) * " nt", self.opt.get("skew", 0))
        A.clear()
        self.target(A, f"{name}_a_plain")
        tok = self.arrived_load()
        for x in sum(sum(self.setup_units(), []), []):
            A(x)
        self.arrived_check(tok)
        A(f"s_branch {name}_a_poll")
        self.target(A, f"{name}_a_late")
        if self.opt.get("mid", 1):
            tok = self.masked(POLLMASK, POLL)
            for x in e2[0]:
                A(x)
            A.wait_tok(tok)
            self.masked(POLLMASK, "v_cmp_eq_u32 vcc, 0, v6")
            A(f"s_cbranch_vccz {name}_a_mid")
            for x in e2[1] + e2[2]:
                A(x)
        else:
            for x in e2[0] + e2[1] + e2[2]:
                A(x)
        self.target(A, f"{name}_a_poll", inline=True)
        tok = self.masked(POLLMASK, POLL)
        self.check_words(POLL, "v_cmp_eq_u32 vcc, 0, v6", tok, mask=POLLMASK)
        self.stamp(A, "a_flags")
        self.stamp(A, "rt_aflags")
        A(f"s_mov_b32 s{S_OFF}, 0")
        for x in sum(self.first_loads(), []):
            A(x)
        A(f"ds_write_b32 v{VHW}, v{VHW}")
        A(f"s_branch {name}_a_go")
        plain = A.save()
        if self.opt.get("mid", 1):
            A.clear()
            A(f"{name}_a_mid:")
            self.stamp(A, "a_flags")
            self.stamp(A, "rt_aflags")
            A(f"s_mov_b32 s{S_OFF}, 0")
            fl = self.first_loads()
            for k, x in enumerate(e2[1]):
                if k % (len(e2[1]) // 15) == 0 and fl:
                    for y in fl.pop(0):
                        A(y)
                A(x)
            assert not fl
            for x in e2[2]:
                A(x)
            A(f"s_branch {name}_a_go")
        A.clear()
        self.target(A, f"{name}_a_e2")
        self.masked(POLLMASK, "v_cmp_eq_u32 vcc, 0, v6")
        A(f"s_cbranch_vccnz {name}_a_late")
        self.stamp(A, "a_flags")
        self.stamp(A, "rt_aflags")
        A(f"s_mov_b32 s{S_OFF}, 0")
        work = e2[0] + e2[1]
        fl = self.first_loads()
        step = min(self.opt.get("lstep", 6), len(work) // 15)
        for k, x in enumerate(work):
            if k % step == 0 and fl:
                for y in fl.pop(0):
                    A(y)
            A(x)
        assert not fl
        for x in e2[2]:
            A(x)
        self.stamp(A, "a_e2b")
        assert [x for x in A.state()[0] if x] == [tuple(sorted(e[1])) for e in plain[0]]
        A.restore(plain)
        A.lg = []
        self.target(A, f"{name}_a_go", inline=True)
        A(f"s_mov_b32 s{S_LO}, {f32(2.0 ** -30)}")
        A(f"v_mov_b32 v{VHI}, {f32(2.0 ** 30)}")
        self.mask_q(0)
        A(self.qk(0, 0))
        A(self.qk(0, 1))
        A("s_setprio 1")
        self.stamp(A, "a_first")
        self.stamp(A, "rt_afirst")
        self.attn_main()
        self.attn_finish()
        self.stamp(A, "a_pub")
        self.stamp(A, "rt_pub")
        A(f"s_cmp_ge_u32 s{S_NB}, 7")
        A(f"s_cbranch_scc1 {name}_a_done")
        self.tail(0)
        A(f"{name}_a_done:")
        self.finish()
        A.clear()
        self.target(A, f"{name}_g_plain")
        self.gemm_start(None)
        A(f"s_branch {name}_g_go")
        A.clear()
        self.target(A, f"{name}_g_e2")
        self.gemm_start(e2)
        self.target(A, f"{name}_g_go", inline=True)
        self.gemm_main()
        self.tail(1)
        self.finish()
        self.slow_path()
        k = 0
        while k < len(self.late):
            A.clear()
            self.late[k](A)
            k += 1
        A(f"{name}_exit:")
        A("s_endpgm")
        pads = A.fix_hazards()
        return A.text(), kernel_desc(name), pads


HEADER = open("gated_mix__mha_block__glu_gated_geglu__prompt.s.ref").read().split("; Override")[0]


DOC = """
;  nobody looks at a word before all 256 are counted.  All polls are bounded.
"""


def main():
    diag = "diag" in sys.argv
    name = "gated_mix__mha_block__glu_gated_geglu__prompt_kernel"
    sets = {"diag": "rt0 t0 p1_pass2 a_flags a_first a_loop a_pub t_flag t_end rt_end g_hw g_dma g_flags g_pre g_loop",
            "diagt": "rt0 t0 a_first a_loop a_sync a_st a_pub t_bar0 t_bar1 t_flag t_odata t_mm t_end g_loop rt_end",
            "diagp": "rt0 t0 p1_pass1 p2_4 p2_8 p2_16 p1_pass2 a_flags a_first a_loop t_end rt_end",
            "diagb": "rt0 t0 b2_pre b2_vm b2_post b3_pre b3_vm t_end rt_end",
            "diagc": "rt0 t0 b5_pre b5_vm b5_post b7_pre b7_vm t_end rt_end",
            "diagd": "rt0 t0 p2_4 c7_pre c7_vm c7_post p2_8 t_end rt_end",
            "diage": "rt0 t0 c9_pre c9_vm c9_post c15_pre c15_vm t_end rt_end",
            "diagr": "rt0 t0 p1_first p1_pass1 rt_first rt_pass1 t_end rt_end",
            "diagz": "rt0 rt_end",
            "diagrt": "rt0 rt_first rt_pass1 rt_pubq rt_pass2 rt_aflags rt_afirst rt_loop rt_pub rt_tflag rt_odata rt_end rt_gflags rt_gpre",
            "diags": "rt0 t0 p1_pass1 p1_pass2 rt_pass1 rt_pass2 p2_8 t_end rt_end",
            "diaga": "rt0 t0 p1_pass2 a_flags a_e2b a_first a_t0 a_t4 a_t8 a_t16 t_end rt_end",
            "diagru": "rt0 rtkarg rtdma0 rtpro rtvm0 rt_first rtb1 rt_end",
            "diagrv": "rt0 rtb1 rtb2 rtb3 rtb4 rtb5 rtb6 rt_end",
            "diagsp": "rt0 t0 p1_pass1 p1_pass2 q_2b q_epi q_drain t_end rt_end",
            "diagx": "rt0 t0 p1_first p1_pass2 rt_first rt_pass2 a_first a_loop rt_afirst rt_loop rt_end",
            "diagzz": "rt0 rt_end rt_first rt_pass1 rt_pass2",
            "diagq": "rt0 t0 karg dma0 p1_first p1_pass1 p2_4 t_end rt_end"}
    which = [a for a in sys.argv if a in sets]
    diag = bool(which)
    st = Stamps(diag, sets[which[0]].split() if diag else None)
    opt = {a.split("=")[0]: int(a.split("=")[1]) for a in sys.argv[1:] if "=" in a}
    g = Gen(name, st, opt)
    code, kd, pads = g.build()
    print(HEADER.rstrip())
    print(DOC.strip())
    print("; @launch grid=(256,1,1) block=(512,1,1) lds=163840")
    if diag:
        print("; stamps: " + " ".join(st.only))
    print('.amdgcn_target "amdgcn-amd-amdhsa--gfx950"\n.text')
    print(code)
    print('.section .rodata,"a"\n.p2align 6')
    print(kd)


if __name__ == "__main__":
    main()
```

```python
from common import *

XF, ACC1, ACC2, WB = 144, 16, 64, 96
VDX0, VDX1, VDP, VDG, VDU = 120, 121, 122, 123, 124
VAX, VAP, VAG, VAGX, VL16, VSTV, VNC1 = 125, 129, 130, 132, 134, 135, 15
PK = 136
SRD_X, SRD_P, SRD_G, SRD_U, SRD_GW = 32, 36, 40, 44, 48
S_RB, S_CG, S_XO, S_PO, S_GO, S_W1K, S_W2K, S_T, S_RT, S_C, S_ST1, S_STH, S_T2, S_QS = range(52, 66)
S_ACT = 0
LX, LP, LQ = 0, 65536, 98304


SX = None


def decode(A, first=None, pos=1):
    if first and pos == 0:
        first(A)
    load_args(A, {SRD_X: 0, SRD_WS: 80, SRD_P: 8, SRD_G: 32, SRD_U: 40, SRD_GW: 56})
    if first and pos == 1:
        first(A)
    A(f"""
    v_lshrrev_b32 v1, 6, v0
    v_and_b32 v0, 63, v0
    v_readfirstlane_b32 s{S_WAVE}, v1
    """)
    if SX is None:
        A(f"""
        s_bfe_u32 s{S_T}, s2, 0x20001
        s_lshl_b32 s{S_T}, s{S_T}, 2
        s_lshr_b32 s{S_CG}, s2, 6
        s_add_u32 s{S_CG}, s{S_CG}, s{S_T}
        """)
    else:
        A(f"""
        s_add_u32 s{S_T}, s2, {7 - SX}
        s_and_b32 s{S_T}, s{S_T}, 7
        s_lshl_b32 s{S_T}, s{S_T}, 1
        s_lshr_b32 s{S_CG}, s2, 7
        s_add_u32 s{S_CG}, s{S_CG}, s{S_T}
        """)


def x_addresses(A):
    if SX is None:
        A(f"""
        s_bfe_u32 s{S_RB}, s2, 0x30003
        s_bitcmp1_b32 s2, 0
        s_cselect_b32 s{S_T}, 8, 0
        s_or_b32 s{S_RB}, s{S_RB}, s{S_T}
        """)
    else:
        A(f"s_bfe_u32 s{S_RB}, s2, 0x40003")
    A(f"""
    v_lshrrev_b32 v2, 3, v0
    v_and_b32 v3, 7, v0
    v_lshrrev_b32 v5, 4, v0
    s_lshl_b32 s{S_T}, s{S_RB}, 3
    v_mul_u32_u24 v6, 896, v2
    s_add_u32 s{S_T}, s{S_T}, s{S_WAVE}
    v_xor_b32 v7, v3, v5
    s_mul_i32 s{S_XO}, s{S_T}, {16 * 896}
    v_lshl_add_u32 v{VDX0}, v7, 4, v6
    s_lshl_b32 s{S_W2K}, s{S_WAVE}, 11
    v_xor_b32 v{VDX1}, 64, v{VDX0}
    v_add_u32 v{VDX1}, {8 * 896 - 1024}, v{VDX1}
    """)


def w_addresses(A, special):
    A(f"""
    v_and_b32 v4, 1, v5
    s_lshl_b32 s{S_T}, s{S_WAVE}, 3
    v_add_u32 v6, s{S_T}, v2
    s_lshl_b32 s{S_W1K}, s{S_WAVE}, 10
    v_mul_u32_u24 v8, 2688, v6
    """)
    if M16:
        A(f"""
        s_lshr_b32 s{S_T}, s{S_T}, 1
        s_and_b32 s{S_T}, s{S_T}, 4
        v_lshl_or_b32 v7, v4, 1, s{S_T}
        v_xor_b32 v7, v3, v7
        v_lshl_add_u32 v{VDP}, v7, 4, v8
        """)
        if special and M16 == 1:
            A(f"""
            v_lshlrev_b32 v9, 2, v4
            v_xor_b32 v9, v3, v9
            v_lshl_add_u32 v{VDG}, v9, 4, v8
            """)
        return
    A(f"""
    v_lshlrev_b32 v7, 2, v4
    v_xor_b32 v7, v3, v7
    v_lshl_add_u32 v{VDP}, v7, 4, v8
    """)


def gu_dma_addresses(A):
    if M16:
        A(f"""
        v_mul_u32_u24 v8, 3584, v6
        v_lshl_add_u32 v{VDG}, v7, 4, v8
        """)
        return
    A(f"""
    v_lshlrev_b32 v7, 1, v4
    v_xor_b32 v7, v3, v7
    v_mul_u32_u24 v8, 3584, v6
    v_lshl_add_u32 v{VDG}, v7, 4, v8
    v_xor_b32 v{VDU}, 64, v{VDG}
    """)


def pass2_dma_addresses(A):
    A(f"""
    s_lshl_b32 s10, s{S_WAVE}, 6
    s_and_b32 s10, s10, 64
    v_xor_b32 v{VDG}, s10, v{VDG}
    v_xor_b32 v{VDU}, 64, v{VDG}
    """)


def read_addresses16(A, special):
    A(f"""
    v_and_b32 v2, 15, v0
    v_lshrrev_b32 v3, 4, v0
    s_lshl_b32 s{S_T}, s{S_RT}, 12
    v_lshl_add_u32 v4, v2, 7, s{S_T}
    v_lshrrev_b32 v5, 1, v2
    v_xor_b32 v5, v5, v3
    v_lshl_add_u32 v{VAX}, v5, 4, v4
    v_xor_b32 v{VAX + 1}, 64, v{VAX}
    """)
    A(f"""
    v_and_b32 v2, 3, v0
    v_bfe_u32 v4, v0, 2, 2
    v_lshl_add_u32 v5, v3, 3, v4
    v_bfe_u32 v6, v0, 3, 2
    s_lshl_b32 s{S_T}, s{S_C}, 1
    v_xor_b32 v6, s{S_T}, v6
    v_lshlrev_b32 v6, 5, v6
    v_lshl_add_u32 v5, v5, 7, v6
    v_lshl_add_u32 v6, v2, 3, v5
    v_add_u32 v{VAP}, {LP}, v6
    v_xor_b32 v{VAP1}, 32, v{VAP}
    """)
    if not special:
        A(f"""
        v_lshrrev_b32 v6, 1, v2
        v_and_b32 v7, 1, v2
        v_lshl_or_b32 v6, v7, 1, v6
        v_lshl_add_u32 v6, v6, 3, v5
        """)
    A(f"""
    v_add_u32 v{VAG}, {LQ}, v6
    v_xor_b32 v{VAG + 1}, 32, v{VAG}
    """)
    if M16 == 2:
        A(f"""
        v_mov_b32 v{VAGX}, v6
        v_xor_b32 v{VAGX + 1}, 32, v6
        v_mov_b32 v{VNC1}, {f32(-GELU_C1)}
        """)
        return
    A(f"""
    v_lshrrev_b32 v3, 5, v0
    v_bfe_u32 v5, v0, 4, 1
    v_bfe_u32 v6, v0, 3, 1
    v_lshl_add_u32 v7, v3, 4, v4
    v_lshlrev_b32 v7, 7, v7
    s_lshl_b32 s{S_T}, s{S_C}, 3
    """)
    if special:
        A(f"""
        v_lshl_add_u32 v8, v5, 2, v2
        v_add_u32 v8, s{S_T}, v8
        v_lshlrev_b32 v9, 3, v6
        v_xor_b32 v8, v8, v9
        v_lshl_add_u32 v{VAGX}, v8, 3, v7
        v_add_u32 v{VAGX + 1}, 8192, v{VAGX}
        """)
        return
    A(f"""
    v_add_u32 v8, s{S_T}, v2
    v_lshlrev_b32 v9, 2, v6
    v_xor_b32 v8, v8, v9
    v_lshlrev_b32 v9, 3, v5
    v_xor_b32 v8, v8, v9
    v_lshl_add_u32 v7, v5, 13, v7
    v_lshl_add_u32 v{VAGX}, v8, 3, v7
    v_xor_b32 v{VAGX + 1}, 32, v{VAGX}
    v_mov_b32 v{VNC1}, {f32(-GELU_C1)}
    """)


def read_addresses(A):
    A(f"""
    v_and_b32 v2, 31, v0
    v_lshrrev_b32 v3, 5, v0
    s_lshl_b32 s{S_T}, s{S_RT}, 12
    v_lshl_add_u32 v4, v2, 7, s{S_T}
    v_bfe_u32 v5, v2, 1, 3
    v_xor_b32 v5, v5, v3
    """)
    for s in range(4):
        A(f"v_xor_b32 v6, {2 * s}, v5")
        A(f"v_lshl_add_u32 v{VAX + s}, v6, 4, v4")
    A(f"""
    v_and_b32 v2, 3, v0
    v_bfe_u32 v4, v0, 2, 2
    v_bfe_u32 v5, v0, 4, 1
    v_bfe_u32 v6, v0, 3, 1
    v_lshl_add_u32 v7, v3, 3, v4
    v_lshlrev_b32 v7, 7, v7
    s_lshl_b32 s{S_T}, s{S_C}, 3
    v_lshl_add_u32 v8, v5, 2, v2
    v_add_u32 v8, s{S_T}, v8
    v_lshlrev_b32 v9, 3, v6
    v_xor_b32 v8, v8, v9
    v_lshl_add_u32 v8, v8, 3, v7
    v_add_u32 v{VAP}, {LP}, v8
    """)


def gu_addresses(A, special):
    if special:
        A(f"""
        v_add_u32 v{VAG}, {LQ}, v8
        v_add_u32 v{VAG + 1}, {LQ + 8192}, v8
        v_mov_b32 v{VAGX}, v8
        v_add_u32 v{VAGX + 1}, 8192, v8
        """)
        return
    A(f"""
    v_add_u32 v8, s{S_T}, v2
    v_lshlrev_b32 v9, 2, v6
    v_xor_b32 v8, v8, v9
    v_lshlrev_b32 v9, 3, v5
    v_xor_b32 v8, v8, v9
    v_lshl_add_u32 v7, v5, 13, v7
    v_lshl_add_u32 v{VAGX}, v8, 3, v7
    v_xor_b32 v8, 4, v8
    v_lshl_add_u32 v{VAGX + 1}, v8, 3, v7
    v_add_u32 v{VAG}, {LQ}, v{VAGX}
    v_add_u32 v{VAG + 1}, {LQ}, v{VAGX + 1}
    v_mov_b32 v{VNC1}, {f32(-GELU_C1)}
    """)


def dma(m0base, m0s, voff, srd_, sbase, soff, imm=0, setm0=True):
    out = []
    if setm0:
        out.append(f"s_add_u32 m0, s{m0s}, {m0base}")
    if soff:
        out.append(f"s_add_u32 s{S_T2}, s{sbase}, {soff}")
    out.append(f"buffer_load_dwordx4 v{voff}, {sr(srd_, 4)}, s{S_T2 if soff else sbase} offen{' offset:%d' % imm if imm else ''} lds")
    return out


def stage_dma(stage, special, up=0):
    sl = stage % 4
    g = []
    g.append(dma(LX + sl * 16384 + up * 8192, S_W2K, VDX0, SRD_X, S_XO, stage * 128 + up * 64 * 896) +
             [f"buffer_load_dwordx4 v{VDX1}, {sr(SRD_X, 4)}, s{S_T2 if stage or up else S_XO} offen offset:1024 lds"])
    k0 = stage * 64 + up * 32
    g.append(dma(LP + sl * 8192 + up * 4096, S_W1K, VDP, SRD_P, S_PO, k0 * 2688))
    q = LQ + sl * 16384 + up * 4096
    if special:
        g.append(dma(q, S_W1K, VDP, SRD_P, S_PO, k0 * 2688 + 128))
    else:
        g.append(dma(q, S_W1K, VDG, SRD_G, S_GO, k0 * 3584))
        g.append(dma(q + 8192, S_W1K, VDG if M16 else VDU, SRD_U, S_GO, k0 * 3584))
    return g


P2LOC = {0: (LX, 3), 1: (LQ, 3), 2: (LX, 0), 3: (LQ, 0), 4: (LX, 1), 5: (LQ, 1), 6: (LX, 2)}


def p2_dma(ch, special, up=0):
    reg, sl = P2LOC[ch]
    base = reg + sl * 16384 + up * 4096
    k0 = ch * 64 + up * 32
    if special:
        v = VDG if M16 == 1 else VDP
        return [dma(base, S_W1K, v, SRD_P, S_PO, k0 * 2688 + 256),
                dma(base + 8192, S_W1K, v, SRD_P, S_GO, k0 * 2688)]
    return [dma(base, S_W1K, VDG, SRD_G, S_GO, k0 * 3584 + 128),
            dma(base + 8192, S_W1K, VDG if M16 == 2 else VDU, SRD_U, S_GO, k0 * 3584 + 128)]


def tr_reads(dst, addr, off):
    return [f"ds_read_b64_tr_b16 {vr(dst, 2)}, v{addr} offset:{off}",
            f"ds_read_b64_tr_b16 {vr(dst + 2, 2)}, v{addr} offset:{off + 512}"]


M16 = 1
VAP1 = 127
LA1, LA2 = 1, 1


def wb1(t):
    return WB + 12 * (t & 1) if LA1 == 1 else (WB + 12, ACC2, WB)[t % 3]


def reads1(t, special=False):
    ch, s = divmod(t, 4)
    sl = ch % 4
    b = wb1(t)
    if M16:
        s32, nh = s >> 1, s & 1
        x = [] if nh else [f"ds_read_b128 {vr(XF + 4 * (t + th), 4)}, v{VAX + s32} offset:{LX + sl * 16384 + th * 2048}"
                           for th in range(2)]
        if special:
            return (x + tr_reads(b, VAP1 if nh else VAP, sl * 8192 + s32 * 4096),
                    tr_reads(b + 4, VAG + nh, sl * 16384 + s32 * 4096), [])
        return (x + tr_reads(b, VAP1 if nh else VAP, sl * 8192 + s32 * 4096),
                tr_reads(b + 4, VAG, sl * 16384 + s32 * 4096 + nh * 8192),
                tr_reads(b + 8, VAG + 1, sl * 16384 + s32 * 4096 + nh * 8192))
    return ([f"ds_read_b128 {vr(XF + 4 * t, 4)}, v{VAX + s} offset:{LX + sl * 16384}"] +
            tr_reads(b, VAP, sl * 8192 + s * 2048),
            tr_reads(b + 4, VAG, sl * 16384 + s * 2048),
            tr_reads(b + 8, VAG + 1, sl * 16384 + s * 2048))


def koff2(s):
    if M16 == 2:
        return (s >> 1) * 4096 + (s & 1) * 8192
    return (s >> 1) * 4096 + (s & 1) * 1024 if M16 else s * 2048


def wb2(t, ntile):
    if ntile == 1:
        return WB + 4 * (t % 6)
    return WB + 12 * (t & 1) if LA2 == 1 else WB + 8 * (t % 3)


def reads2(t, ntile, img=0):
    if ntile == 1:
        ch, s = divmod(t % 28, 4)
        reg, sl = P2LOC[ch]
        if M16 == 2:
            return [tr_reads(wb2(t, 1), (VAGX if reg == LX else VAG) + (s & 1), sl * 16384 + (s >> 1) * 4096 + t // 28 * 8192)]
        return [tr_reads(wb2(t, 1), (VAGX if reg == LX else VAG) + t // 28, sl * 16384 + koff2(s))]
    ch, s = divmod(t, 4)
    reg, sl = P2LOC[ch]
    a = VAGX if reg == LX else VAG
    b = wb2(t, ntile)
    return [tr_reads(b + 4 * e, a + e, sl * 16384 + koff2(s)) for e in range(ntile)]


def epi_gu(acc, pk, soff_expr, st, m16=False):
    o = []
    T = [1, 2, 3, 4]
    for half in range(2):
        g = [acc + 4 * half + i for i in range(4)]
        u = [acc + 8 + 4 * half + i for i in range(4)]
        o += [f"v_mul_f32 v{T[i]}, v{g[i]}, v{g[i]}" for i in range(4)]
        o += [f"v_fmamk_f32 v{T[i]}, v{T[i]}, {f32(-GELU_C1 * GELU_C2)}, v{VNC1}" for i in range(4)]
        o += [f"v_mul_f32 v{T[i]}, v{T[i]}, v{g[i]}" for i in range(4)]
        o += [f"v_exp_f32 v{T[i]}, v{T[i]}" for i in range(4)]
        o += [f"v_mul_f32 v{u[i]}, v{g[i]}, v{u[i]}" for i in range(4)]
        o += [f"v_add_f32 v{T[i]}, 1.0, v{T[i]}" for i in range(4)]
        o += [f"v_rcp_f32 v{T[i]}, v{T[i]}" for i in range(4)]
        o += [f"v_mul_f32 v{u[i]}, v{u[i]}, v{T[i]}" for i in range(4)]
        o += [f"v_cvt_pk_bf16_f32 v{pk + 2 * half + i}, v{u[2 * i]}, v{u[2 * i + 1]}" for i in range(2)]
    o.append(f"s_add_u32 s{S_T}, s{S_STH}, {soff_expr}")
    if m16:
        o += [f"v_permlane16_swap_b32 v{pk + i}, v{pk + 2 + i}" for i in range(2)]
    o.append(f"buffer_store_dwordx4 {vr(pk, 4)}, v{VL16}, {sr(SRD_WS, 4)}, s{S_T} offen{st}")
    return o


def epi_qk(acc, scale, soff, st, base=None, m16=False):
    o = []
    if scale:
        o += [f"v_mul_f32 v{acc + r}, s{S_QS}, v{acc + r}" for r in range(16)]
    o += [f"v_cvt_pk_bf16_f32 v{PK + j}, v{acc + 2 * j}, v{acc + 2 * j + 1}" for j in range(8)]
    o.append(f"s_add_u32 s{S_T}, s{base or S_ST1}, {soff}")
    for q in range(2):
        o.append(f"v_permlane{16 if m16 else 32}_swap_b32 v{PK + 4 * q}, v{PK + 4 * q + 2}")
        o.append(f"v_permlane{16 if m16 else 32}_swap_b32 v{PK + 4 * q + 1}, v{PK + 4 * q + 3}")
    for q in range(2):
        o.append(f"buffer_store_dwordx4 {vr(PK + 4 * q, 4)}, v{VL16}, {sr(SRD_WS, 4)}, s{S_T} offen offset:{1024 * q}{st}")
    return o


def epi_v(acc, st):
    o = [f"v_cvt_pk_bf16_f32 v{PK + j}, v{acc + 2 * j}, v{acc + 2 * j + 1}" for j in range(8)]
    o.append(f"s_add_u32 s{S_T}, s{S_ST1}, 14336")
    if M16:
        for w in (16, 32):
            o += [f"v_permlane{w}_swap_b32 v{PK + j}, v{PK + j + 2}" for j in (0, 1, 4, 5)]
    o.append(f"buffer_store_dwordx4 {vr(PK, 4)}, v{VSTV}, {sr(SRD_WS, 4)}, s{S_ST1} offen{st}")
    o.append(f"buffer_store_dwordx4 {vr(PK + 4, 4)}, v{VSTV}, {sr(SRD_WS, 4)}, s{S_T} offen{st}")
    return o


def final_epilogue(st, skew):
    def parts(e):
        tail = [x for x in e if x.startswith("s_add") or x.startswith("buffer_store")]
        return [x for x in e if x not in tail], tail
    b, bs = parts(epi_gu(ACC2 + 16, PK + 4, 5120, st, M16 == 2))
    if skew:
        return b[:34], b[34:], bs
    a, as_ = parts(epi_gu(ACC2, PK, 4096, st, M16 == 2))
    return a, b, as_ + bs


def skew_order(skew):
    if skew == 1:
        return [x for g in range(14) for x in ((0, 2 * g), (0, 2 * g + 1), (1, g))] + [(1, k) for k in range(14, 28)]
    if skew == 2:
        return [x for g in range(9) for x in ((0, 3 * g), (0, 3 * g + 1), (1, 2 * g), (0, 3 * g + 2), (1, 2 * g + 1))] + \
               [(0, 27)] + [(1, k) for k in range(18, 28)]
    return [(0, k) for k in range(28)] + [(1, k) for k in range(28)]


def reads_seq(n, e, k):
    ch, s = divmod(k, 4)
    reg, sl = P2LOC[ch]
    return tr_reads(wb2(n, 1), (VAGX if reg == LX else VAG) + e, sl * 16384 + koff2(s))


def gate_loads(A):
    A(f"""
    s_lshl_b32 s10, s{S_RB}, 7
    s_lshl_b32 s11, s{S_CG}, 3
    s_add_u32 s10, s10, s11
    s_add_u32 s3, s10, s{S_WAVE}
    s_mul_i32 s10, s3, 896
    """)
    for r in range(136, 144, 2):
        A(f"v_mov_b64 {vr(r, 2)}, 0")
    A(f"""
    s_mov_b32 exec_hi, 0x00ffffff
    buffer_load_dwordx4 v[136:139], v{VL16}, {sr(SRD_X, 4)}, s10 offen
    buffer_load_dwordx4 v[140:143], v{VL16}, {sr(SRD_GW, 4)}, 0 offen
    s_mov_b64 exec, -1
    """)


def gate_compute(A, st):
    A("v_mov_b32 v1, 0")
    for i in range(4):
        A(f"v_dot2_f32_bf16 v1, v{136 + i}, v{140 + i}, v1")
    for m in ("row_shr:1 row_mask:0xf", "row_shr:2 row_mask:0xf", "row_shr:4 row_mask:0xf", "row_shr:8 row_mask:0xf",
              "row_bcast:15 row_mask:0xa", "row_bcast:31 row_mask:0xc"):
        A(f"v_add_f32_dpp v1, v1, v1 {m} bank_mask:0xf")
    A(f"""
    v_mul_f32 v1, {f32(-LOG2E)}, v1
    v_exp_f32 v1, v1
    s_lshl_b32 s3, s3, 2
    v_add_f32 v1, 1.0, v1
    v_rcp_f32 v1, v1
    s_add_u32 s3, s3, {WS_G}
    s_mov_b32 exec_lo, 0
    s_mov_b32 exec_hi, 0x80000000
    """)
    tok = A(f"buffer_store_dword v1, off, {sr(SRD_WS, 4)}, s3{st}")
    A("s_mov_b64 exec, -1")
    return tok


def programs(A, kinds, st, hooks, opt):
    global LA1, LA2, M16
    M16 = opt.get('m16', 2)
    LA1, LA2 = opt.get("la1", 2), opt.get("la2", 1)
    LA0, LA = opt.get("LA0", 2), opt.get("LA", 2)
    p2bars, pubbar, popstart = (7, 15), opt.get("pubbar", 9), opt.get("popstart", 4)
    dma_a = opt.get("dma_a", 1)
    stamp = hooks["stamp"]
    special = kinds == "Q"
    if special:
        dma_a = opt.get("dma_aq", 0)
        LA = opt.get("LAq", 2)
    ntile2 = 1 if special else 2
    skew = 0 if special else opt.get("skew", 0)
    seq = skew_order(skew)
    toks = {}

    def issue(groups, key):
        for g in groups:
            for x in g:
                t = A(x)
                if t:
                    toks[key] = t

    def groups_of(stg, up):
        if stg < 7:
            return stage_dma(stg, special, up)
        if stg > 10:
            return []
        c0 = 2 * (stg - 7)
        return p2_dma(c0, special, up) + (p2_dma(c0 + 1, special, up) if c0 < 6 else [])

    pfpos, split = opt.get("pfpos", 1), False
    g0 = groups_of(0, 0)
    x_addresses(A)
    w_addresses(A, special)
    if special:
        A(f"s_and_b32 s{S_PO}, s{S_CG}, 1")
        A(f"s_lshl_b32 s{S_PO}, s{S_PO}, 9")
        A(f"s_mov_b32 s{S_GO}, 384")
    else:
        A(f"s_lshl_b32 s{S_PO}, s{S_CG}, 7")
        A(f"s_add_u32 s{S_PO}, s{S_PO}, 896")
        gu_dma_addresses(A)
        A(f"s_lshl_b32 s{S_GO}, s{S_CG}, 8")
        srd_tail(A, SRD_G, D * F * 2)
        srd_tail(A, SRD_U, D * F * 2)
    srd_tail(A, SRD_X, S * D * 2)
    srd_tail(A, SRD_P, D * 3 * D * 2)
    A(g0[0][0])
    hooks["prefetch"](A, 2)
    A.wait(lg=0)
    stamp(A, "karg")
    stamp(A, "rtkarg")
    issue([g0[0][1:]] + g0[1:], 0)
    load_args2(A)
    stamp(A, "dma0")
    stamp(A, "rtdma0")
    srd_tail(A, SRD_GW, D * 2)
    srd_tail(A, SRD_WS, WS_BYTES)
    A(f"""
    v_lshlrev_b32 v{VL16}, 4, v0
    s_and_b32 s{S_RT}, s{S_WAVE}, 3
    s_lshr_b32 s{S_C}, s{S_WAVE}, 2
    s_cselect_b32 s{S_ROLE}, 1, 0
    """)
    A.wait(lg=0)
    ep = opt.get("entrypos", 0)
    hooks["entry"](A, 3 & ~ep)
    A("s_barrier")
    issue(groups_of(1, 0), 1)
    if opt.get("gfirst", 0):
        gate_loads(A)
    hooks["prefetch"](A, 0)
    if not opt.get("gfirst", 0):
        gate_loads(A)
    hooks["entry"](A, 3 & ep)
    if M16:
        read_addresses16(A, special)
    else:
        read_addresses(A)
        gu_addresses(A, special)
    labels = {(k, r): hooks["label"](f"{k}{r}_") for k in kinds for r in (0, 1)}
    hooks["prologue"](A, special, [labels[k] for k in labels][1:])

    def side_work(kind, role):
        A = Rec()
        S_T, S_T2 = 0, 1
        A(f"s_lshl_b32 s{S_T}, s{S_RB}, 2")
        A(f"s_add_u32 s{S_T}, s{S_T}, s{S_RT}")
        A(f"s_mul_i32 s{S_ST1}, s{S_T}, 28672")
        if special:
            A(f"s_add_u32 s{S_STH}, s{S_ST1}, {role << 11}")
            A(f"s_lshl_b32 s{S_T}, s{S_PO}, 5")
            A(f"s_add_u32 s{S_ST1}, s{S_STH}, s{S_T}")
            A(f"s_mov_b32 s{S_QS}, {f32(QSCALE)}")
        else:
            A(f"s_mul_i32 s{S_STH}, s{S_T}, 114688")
            A(f"s_lshl_b32 s{S_T}, s{S_CG}, 13")
            A(f"s_add_u32 s{S_STH}, s{S_STH}, s{S_T}")
            A(f"s_add_u32 s{S_STH}, s{S_STH}, {WS_H + (role << 11)}")
            if kind == "K":
                A(f"s_lshl_b32 s{S_T}, s{S_CG}, 12")
                A(f"s_add_u32 s{S_ST1}, s{S_ST1}, s{S_T}")
                A(f"s_add_u32 s{S_ST1}, s{S_ST1}, {WS_K + (role << 11)}")
            else:
                A(f"s_lshl_b32 s{S_T}, s{S_CG}, 10")
                A(f"s_add_u32 s{S_ST1}, s{S_ST1}, s{S_T}")
                A(f"s_add_u32 s{S_ST1}, s{S_ST1}, {WS_V - 7 * 1024 + (role << 9)}")
                A(f"v_lshrrev_b32 v{VSTV}, 5, v0")
                A(f"v_mul_u32_u24 v{VSTV}, {7168 - 512}, v{VSTV}")
                A(f"v_add_u32 v{VSTV}, v{VSTV}, v{VL16}")
        hooks["idle"](A, role)
        L, G = Rec(), Rec()
        gate_loads(L)
        gate_compute(G, st)
        return A.units, L.units, G.units

    def pair16(acc, w, t, swap=False):
        o = []
        for th in range(2):
            x = XF + 4 * ((t & ~1) + th)
            d = acc + 8 * th + 4 * (t & 1) if swap else acc + 8 * (t & 1) + 4 * th
            o.append(mfma16(d, x, w, "0" if t < 2 else None) if swap else mfma16(d, w, x, "0" if t < 2 else None))
        return "\n".join(o)

    def mm1(kind, t, i):
        b = wb1(t) + 4 * i
        if M16:
            return pair16(ACC1 + 16 * i, b, t, kind == "V" and i == 0)
        c = "0" if t == 0 else None
        if kind == "V" and i == 0:
            return mfma(ACC1, XF + 4 * t, b, c)
        return mfma(ACC1 + 16 * i, b, XF + 4 * t, c)

    def mm2(t, i):
        if M16 == 2:
            return pair16(ACC2 + 16 * i, wb2(t, ntile2) + 4 * i, t)
        return mfma(ACC2 + 16 * i, wb2(t, ntile2) + 4 * i, XF + 4 * t, "0" if t == 0 else None)

    stamp(A, "rtpro")
    if split:
        skip = hooks["label"]("skip")
        sv = A.save()
        A.wait_tok(toks["x0"])
        A(f"s_cmp_ge_u32 s{S_WAVE}, 4")
        A(f"s_cbranch_scc1 {skip}")
        A.wait_tok(toks[0])
        A(f"{skip}:")
        A.restore(sv)
    else:
        A.wait_tok(toks[0])
    stamp(A, "rtvm0")
    A("s_barrier")
    stamp(A, "p1_first")
    stamp(A, "rt_first")
    nt1 = 2 if special else 3
    for k in range(LA1):
        for r in reads1(k, special)[:nt1]:
            for x in r:
                A(x)
    if not special:
        v = hooks["label"]("isv")
        A(f"s_cmp_ge_u32 s{S_CG}, 7")
        A(f"s_cbranch_scc0 {v}")
        A(f"s_cmp_eq_u32 s{S_ROLE}, 0")
        A(f"s_cbranch_scc1 {labels['V', 0]}")
        A(f"s_branch {labels['V', 1]}")
        A(f"{v}:")
    A(f"s_cmp_eq_u32 s{S_ROLE}, 0")
    A(f"s_cbranch_scc0 {labels[kinds[0], 1]}")
    sv0, toks0 = A.save(), dict(toks)

    def one_wait(ms):
        regs = set().union(*[Ins(x).uses for m in ms for x in m.split('\n')])
        A.wait_tok(*[e[0] for e in A.lg if e[1] & regs])

    def stream(kind, role):
        pend = []

        def stage_groups(stg):
            if not dma_a:
                return [(g, stg) for g in groups_of(stg, 0)]
            if role:
                return []
            return [(g, stg) for pair in zip(groups_of(stg, 0), groups_of(stg, 1)) for g in pair]

        def pop(n=1):
            for _ in range(n):
                if pend:
                    g, key = pend.pop(0)
                    if opt.get("nodma"):
                        toks[key] = None
                    else:
                        issue([g], key)

        side, gload, gate = side_work(kind, role)
        half = len(side) // 3
        g0_ = opt.get('gstart', 9)
        plan = [(gate, g0_, g0_ + 4), (side, g0_ + 5, 25)]

        def fill(t, k):
            hit = [p for p in plan if p[1] <= t <= p[2]]
            if opt.get("nofill") or not hit:
                return
            units, lo, hi = hit[0]
            n = 3 * (hi - lo + 1)
            pos = 3 * (t - lo) + k
            for u in units[len(units) * pos // n:len(units) * (pos + 1) // n]:
                for x in u:
                    tk = A(x)
                    if tk and "store" in x:
                        toks["gate"] = tk

        for k in range(LA0, LA + 1):
            pend += stage_groups(k)
        for t in range(28):
            if t + LA1 < 28:
                nxt = reads1(t + LA1, special)
            elif t < 27:
                nxt = [[], [], []]
            elif skew:
                nxt = [reads_seq(n, *seq[n]) for n in range(3)]
            elif ntile2 == 1:
                nxt = [reads2(k, 1)[0] for k in range(3)]
            else:
                nxt = reads2(0, 2) + [sum(reads2(1, 2), []) if LA2 == 2 else []]
            bound = (t + LA1) % 4 == 0 if t < 25 else t == 27
            if split and t == 0:
                nxt = [[], [], []]
            if split and t == 1:
                nxt = [a_ + b_ for a_, b_ in zip(reads1(2), reads1(3))]
            if bound:
                A.wait(lg=0)
            if opt.get("merge1", 1) and LA1 == 2 and t > 1:
                one_wait([mm1(kind, t, i) for i in range(nt1)])
            A(mm1(kind, t, 0))
            if split and t == 1:
                A.wait_tok(toks[0])
                A("s_barrier")
            if bound:
                stg = (t + LA1) // 4
                assert not pend or (opt.get("rate") and stg < 3 and all(k > stg for _, k in pend))
                need = stg if stg < 7 else 7 + p2bars[0] // 8
                stamp(A, f"b{stg}_pre")
                A.wait_tok(toks.get(need), toks.get("gate") if stg == opt.get("arr", 6) else None)
                stamp(A, f"b{stg}_vm")
                if not opt.get("nobar"):
                    A("s_barrier")
                stamp(A, f"b{stg}_post")
                stamp(A, f"rtb{stg}")
                hooks["p1bar"](A, stg, role)
                if M16 == 1 and stg + LA == 7 and not special and not (dma_a and role):
                    pass2_dma_addresses(A)
                todo = list(range(stg + LA, stg + LA + 1 if stg < 7 else 11))
                if (special or (skew and opt.get("early9", 1))) and LA == 2 and stg >= 6:
                    todo = [8, 9] if stg == 6 else [10]
                for k in todo:
                    pend += stage_groups(k)
            left = (3 - LA1 - t) % 4 + 1
            npop = -(-len(pend) // left) if t < 27 else len(pend) * special
            if opt.get("rate") and t < 10 and not special:
                npop = 0 if t < opt.get("r0", 1) else min(len(pend), opt["rate"])
            for i in range(3):
                if 0 < i < nt1:
                    A(mm1(kind, t, i))
                for x in (nxt[i] if i < nt1 or t == 27 else []):
                    A(x)
                pop((npop + (0, 2, 1)[i]) // 3)
                fill(t, i)
                if M16 == 1 and t >= 2 and i < 2:
                    x0 = XF + 4 * ((t & ~1) - 2)
                    d = 2 * (t & 1) + i
                    A(f"v_permlane16_swap_b32 v{x0 + d}, v{x0 + 4 + d}")
            if M16 == 1 and t == 26:
                A(f"v_add_u32 v{VAG}, {LQ}, v{VAGX}")
                A(f"v_add_u32 v{VAG + 1}, {LQ}, v{VAGX + 1}")
            if t == opt.get("pf2", 21):
                hooks["prefetch"](A, 1)
        if M16 == 1:
            for d in range(4):
                A(f"v_permlane16_swap_b32 v{XF + 104 + d}, v{XF + 108 + d}")
        stamp(A, "p1_pass1")
        stamp(A, "rt_pass1")
        if "p1exit" in hooks:
            hooks["p1exit"]()
            return
        if kind == "K":
            e1 = epi_qk(ACC1, False, 0, st, m16=M16)
        elif kind == "V":
            e1 = epi_v(ACC1, st)
        else:
            e1 = sum([epi_qk(ACC1 + 16 * k, True, WS_Q + 4096 * k, st, m16=M16) for k in range(2)], [])
        nq = len(e1)
        if not special:
            e1 = e1 + epi_gu(ACC1 + 16, PK, 0, st, M16) + epi_gu(ACC1 + 32, PK + 4, 1024, st, M16)

        if opt.get("nost"):
            e1 = [("s_nop 0" if x.startswith("buffer_store") else x) for x in e1]
        if opt.get("noe1"):
            e1 = e1[:nq]
        if opt.get("notrans"):
            e1 = [x.replace("v_exp_f32", "v_mov_b32").replace("v_rcp_f32", "v_mov_b32") for x in e1]

        def bar_token(k):
            return toks.get(7 + p2bars[k + 1] // 8 if k + 1 < len(p2bars) else 10)

        if skew:
            ea = epi_gu(ACC2, PK, 4096, st)
            work = e1 + ea
            last_a = max(n for n, x in enumerate(seq) if x[0] == 0)
            first = lambda ch: min(n for n, x in enumerate(seq) if x[1] >= 4 * ch)
            bars = {first(2) - 3: 0, first(4) - 3: 1}
            free = (max(n for n, x in enumerate(seq) if x[1] < 16) - 2, 53)
            pA = last_a + opt.get("lagA", 2)
            pub2, pop2 = opt.get("pub2", 18), opt.get("pop2", 8)
            done = 0
            qtok = None
            for n, (e, k) in enumerate(seq):
                if n in free:
                    A.wait(lg=0)
                hooks["p2seq"](A, n, role, seq, free[0])
                A(mfma(ACC2 + 16 * e, wb2(n, 1), XF + 4 * k, "0" if k == 0 else None))
                if n in bars or n == pub2 or n in free:
                    A.wait_tok(bar_token(bars[n]) if n in bars else None, qtok if n == pub2 else None)
                    A("s_barrier")
                    if n == pub2:
                        hooks["qkv_done"](A, role)
                for x in (reads_seq(n + 3, *seq[n + 3]) if n + 3 < 56 else []):
                    A(x)
                if n >= pop2:
                    pop()
                if n <= pA:
                    upto = max(min(nq, 8 * (n + 1)), len(e1) * n // pA)
                else:
                    upto = min(len(work), len(e1) + len(ea) * (n - pA) // (54 - pA))
                while done < upto:
                    tk = A(work[done])
                    if tk and done < nq:
                        qtok = tk
                    done += 1
            assert done == len(work) and not pend
            stamp(A, "p1_pass2")
            stamp(A, "rt_pass2")
            hooks["regular_end"](A, role)
            return
        done = 0
        qtok = None
        la = LA2 if ntile2 == 2 else 3
        nslots = 27 * ntile2
        slot = 0
        for t in range(28):
            nxt = reads2(t + la, ntile2) if t + la < 28 or special else [[]] * ntile2
            bound = t + la - 1 in p2bars
            pub = not special and t == pubbar
            endbar = t == 27 and not special
            if endbar or (bound and not special):
                A.wait(lg=0)
            hooks["p2step"](A, t, role)
            if opt.get("merge2", 0):
                one_wait([mm2(t, i) for i in range(ntile2)])
            for i in range(ntile2):
                A(mm2(t, i))
                if endbar and i == 0:
                    A("s_barrier")
                if (bound or pub) and i == 0:
                    assert not pub or done >= nq
                    stamp(A, f"c{t}_pre")
                    A.wait_tok(bar_token(p2bars.index(t + la - 1)) if bound else None, qtok if pub else None)
                    stamp(A, f"c{t}_vm")
                    A("s_barrier")
                    stamp(A, f"c{t}_post")
                    if pub:
                        hooks["qkv_done"](A, role)
                for x in nxt[i]:
                    A(x)
                if special:
                    pop(2 if t >= 2 else 0)
                elif t >= popstart and (dma_a or i == 0):
                    pop()
                upto = 0
                if t >= 1:
                    slot += 1
                    upto = min(len(e1), (len(e1) * slot * 27) // (nslots * 25))
                upto = max(upto, min(nq, (opt.get("qpace", 8) if special else 8) * (ntile2 * t + i + 1)))
                while done < upto:
                    tk = A(e1[done])
                    if tk and done < nq:
                        qtok = tk
                    done += 1
        assert done == len(e1) and not pend
        stamp(A, "p1_pass2")
        stamp(A, "rt_pass2")
        if "p2exit" in hooks:
            hooks["p2exit"]()
            return
        if not special:
            hooks["regular_end"](A, role)
            return
        e2 = epi_qk(ACC2, True, WS_Q + 8192, st, m16=M16 == 2)
        idle, fin = hooks["label"]("idle"), hooks["label"]("fin")
        A(f"s_bitcmp{1 - role}_b32 s{S_CG}, 0")
        A(f"s_cbranch_scc1 {idle}")
        sv = A.save()
        done = 0
        for t in range(28):
            A(pair16(ACC1, wb2(28 + t, 1), t) if M16 == 2 else mfma(ACC1, wb2(28 + t, 1), XF + 4 * t, "0" if t == 0 else None))
            for x in (reads2(28 + t + 3, 1)[0] if t + 3 < 28 else []):
                A(x)
            while t >= 1 and done < min(len(e2), opt.get("qpace2", 6) * t):
                A(e2[done])
                done += 1
        stamp(A, "q_2b")
        for x in epi_qk(ACC1, True, WS_Q + 12288, st, base=S_STH, m16=M16 == 2):
            A(x)
        stamp(A, "q_epi")
        A(f"s_branch {fin}")
        A(f"{idle}:")
        A.restore(sv)
        for x in e2:
            A(x)
        A(f"{fin}:")
        hooks["special_end"](A, role)

    for n, (kind, role) in enumerate(labels):
        if n:
            hooks["target"](A, labels[kind, role])
            A.restore(sv0)
            toks.clear()
            toks.update(toks0)
        stream(kind, role)
        assert "p1exit" in hooks or "p2exit" in hooks or (all(not e[1] for e in A.vm) and all(not e[1] for e in A.lg)), A.state()
```
